```python
import torch

def _softmax(x, axis=-1):
    return torch.softmax(x, dim=axis)

def _gelu(x):
    return torch.nn.functional.gelu(x, approximate='tanh')

def _silu(x):
    return torch.nn.functional.silu(x)

def _sigmoid(x):
    return torch.sigmoid(x)

def _layernorm(x, axis=-1, eps=1e-05):
    m = x.mean(dim=axis, keepdim=True)
    v = x.var(dim=axis, keepdim=True, unbiased=False)
    return (x - m) / torch.sqrt(v + eps)

def _scatter_add(tgt, idx, src, axis=0):
    return tgt.clone().index_add_(axis, idx, src)

def _segment_sum(src, seg, n):
    out = torch.zeros((n,) + src.shape[1:], dtype=src.dtype)
    return out.index_add_(0, seg, src)

def _pad(x, pw):
    flat = tuple((v for pair in reversed(pw) for v in pair))
    return torch.nn.functional.pad(x, flat)
kernel_name = 'adaLN_cond__spectral_gfnet__mixer_channel_mlp__prompt'

def setup_inputs():

    _w = lambda a: (lambda t: t.to(torch.bfloat16) if t.is_floating_point() else t)(torch.as_tensor(a))

    def _A_setup():
        B, S, D = (1, 2048, 640)
        Df = D // 2 + 1
        return {'x': _w((lambda *s: torch.randn(*s, dtype=torch.bfloat16) * 0.05)(B, S, D)), 'w_r': _w((lambda *s: torch.randn(*s, dtype=torch.bfloat16) * 3.2)(S, Df) * 0.02), 'w_i': _w((lambda *s: torch.randn(*s, dtype=torch.bfloat16) * 3.2)(S, Df) * 0.02)}
    _A_in = _A_setup()

    def _B_setup():
        B, S, D, F = (1, 2048, 640, 1536)
        return {'x': _w((lambda *s: torch.randn(*s, dtype=torch.bfloat16) * 0.05)(B, S, D)), 'w1': _w((lambda *s: torch.randn(*s, dtype=torch.bfloat16) * 1.6)(D, F) * D ** (-0.5)), 'b1': _w((lambda *s: torch.randn(*s, dtype=torch.bfloat16) * 0.4)(F)), 'w2': _w((lambda *s: torch.randn(*s, dtype=torch.bfloat16) * 0.1)(F, D) * F ** (-0.5)), 'b2': _w((lambda *s: torch.randn(*s, dtype=torch.bfloat16) * 0.1)(D))}
    _B_in = _B_setup()
    return {'A_x': _A_in['x'], 'A_w_r': _A_in['w_r'], 'A_w_i': _A_in['w_i'], 'B_x': _B_in['x'], 'B_w1': _B_in['w1'], 'B_b1': _B_in['b1'], 'B_w2': _B_in['w2'], 'B_b2': _B_in['b2'], 'c': _w((lambda *s: torch.randn(*s, dtype=torch.bfloat16) * 0.1)(1, 640) * 8.0), 'w_mod': _w((lambda *s: torch.randn(*s, dtype=torch.bfloat16) * 0.1)(640, 6 * 640) * 640 ** (-0.5) * 8.0)}

def reference(A_x, A_w_r, A_w_i, B_x, B_w1, B_b1, B_w2, B_b2, c, w_mod):

    def _A_ref(x, w_r, w_i):
        B, S, D = x.shape
        X = (lambda x, axes=(-2, -1): torch.fft.rfft2(x.float(), dim=axes))(x, axes=(-2, -1))
        W = w_r + 1j * w_i
        X = X * W
        y = (lambda x, s, axes=(-2, -1): torch.fft.irfft2(x, s=s, dim=axes).to(torch.bfloat16))(X, (S, D), axes=(-2, -1))
        return y

    def _B_ref(x, w1, b1, w2, b2):
        y = _layernorm(x, axis=-1)
        h = _gelu(torch.einsum('bsd,df->bsf', y, w1) + b1)
        return torch.einsum('bsf,fd->bsd', h, w2) + b2
    x = A_x
    mod = (_silu(c) @ w_mod).reshape(c.shape[0], 6, 1, -1)
    sa, ca, ga, sb, cb, gb = (mod[:, 0].clone(), mod[:, 1].clone(), mod[:, 2].clone(), mod[:, 3].clone(), mod[:, 4].clone(), mod[:, 5].clone())
    h = _layernorm(x, axis=-1) * (1 + ca) + sa
    x = x + ga * _A_ref(h, A_w_r, A_w_i)
    h = _layernorm(x, axis=-1) * (1 + cb) + sb
    x = x + gb * _B_ref(h, B_w1, B_b1, B_w2, B_b2)
    return x
```

```python
import re

REG_RE = re.compile(r'^(-|abs\()?([vas])(?:(\d+)|\[(\d+):(\d+)\])\)?$')
TRANS = ('v_exp_f32', 'v_log_f32', 'v_rcp_f32', 'v_rsq_f32', 'v_sqrt_f32', 'v_sin_f32', 'v_cos_f32')


def regs_of(tok):
    tok = tok.strip()
    if tok == 'vcc':
        return [('s', 'vcc')]
    if tok == 'exec':
        return [('s', 'exec')]
    if tok in ('exec_lo', 'exec_hi'):
        return [('s', 'exec')]
    if tok in ('vcc_lo', 'vcc_hi'):
        return [('s', 'vcc')]
    if tok == 'm0':
        return [('s', 'm0')]
    m = REG_RE.match(tok)
    if not m:
        return []
    k = m.group(2)
    if m.group(3) is not None:
        return [(k, int(m.group(3)))]
    return [(k, i) for i in range(int(m.group(4)), int(m.group(5)) + 1)]


class Ins:
    def __init__(self, text):
        self.text = text
        t = text.split(';')[0].strip()
        self.label = t.endswith(':')
        self.directive = t.startswith('.')
        self.defs = []
        self.uses = []
        self.kind = 'other'
        self.op = ''
        if self.label or self.directive or not t:
            self.kind = 'label' if self.label else 'dir'
            return
        parts = t.split(None, 1)
        op = parts[0]
        self.op = op
        rest = parts[1] if len(parts) > 1 else ''
        ops = []
        cur = ''
        depth = 0
        for ch in rest:
            if ch in '[(':
                depth += 1
            if ch in '])':
                depth -= 1
            if ch == ',' and depth == 0:
                ops.append(cur.strip())
                cur = ''
            else:
                cur += ch
        if cur.strip():
            ops.append(cur.strip())
        mods = ''
        if ops:
            last = ops[-1].split(None, 1)
            if len(last) > 1:
                ops[-1] = last[0]
                mods = last[1]
        self.ops = ops
        self.mods = mods
        R = [regs_of(o) for o in ops]
        flat = lambda l: [r for x in l for r in x]
        base = op.replace('_e32', '').replace('_e64', '').replace('_dpp', '').replace('_sdwa', '')
        self.base = base
        self.dpp = op.endswith('_dpp')
        if op.startswith('v_mfma'):
            self.kind = 'mfma'
            self.defs = R[0]
            self.srcA, self.srcB, self.srcC = R[1], R[2], R[3]
            self.uses = flat(R[1:])
            self.passes = 8 if '32x32' in op else 4
        elif op.startswith('v_'):
            self.kind = 'valu'
            if base.startswith('v_cmp'):
                self.defs = R[0]
                self.uses = flat(R[1:])
            elif base in ('v_swap_b32', 'v_permlane16_swap_b32', 'v_permlane32_swap_b32'):
                self.defs = flat(R)
                self.uses = flat(R)
            elif base in ('v_add_co_u32', 'v_addc_co_u32', 'v_sub_co_u32'):
                self.defs = R[0] + R[1]
                self.uses = flat(R[2:])
            elif base == 'v_nop':
                pass
            else:
                self.defs = R[0]
                self.uses = flat(R[1:])
                if base in ('v_fmac_f32', 'v_dot2c_f32_bf16', 'v_writelane_b32') or self.dpp or op.endswith('_sdwa'):
                    self.uses = self.uses + R[0]
        elif op.startswith('ds_'):
            self.kind = 'ds'
            if op.startswith('ds_read') or op.startswith('ds_bpermute') or op.startswith('ds_permute') or op.startswith('ds_swizzle'):
                self.defs = R[0]
                self.uses = flat(R[1:])
            else:
                self.uses = flat(R)
            if 'addtid' in op:
                self.uses = self.uses + [('s', 'm0')]
        elif op.startswith('buffer_') or op.startswith('global_'):
            self.kind = 'vmem'
            self.store = 'store' in op
            self.lds = ' lds' in (' ' + mods) or op.startswith('global_load_lds')
            if op in ('buffer_wbl2', 'buffer_inv'):
                pass
            elif self.lds:
                self.uses = flat(R) + [('s', 'm0')]
            elif self.store:
                self.uses = flat(R)
                if op.startswith('buffer_'):
                    self.data = R[0]
                else:
                    self.data = R[1]
            else:
                self.defs = R[0]
                self.uses = flat(R[1:])
                if 'd16' in op:
                    self.uses = self.uses + R[0]
        elif op.startswith('s_load') or op in ('s_memtime', 's_memrealtime'):
            self.kind = 'smem'
            self.defs = R[0]
            self.uses = flat(R[1:])
        elif op == 's_waitcnt':
            self.kind = 'wait'
        elif op == 's_nop':
            self.kind = 'nop'
            self.n = int(ops[0], 0) + 1
        elif op in ('s_barrier', 's_endpgm', 's_sleep', 's_setprio'):
            self.kind = 'sctl'
        elif op.startswith('s_cbranch') or op == 's_branch':
            self.kind = 'branch'
            if 'vcc' in op:
                self.uses = [('s', 'vcc')]
        elif op.startswith('s_cmp') or op.startswith('s_bitcmp'):
            self.kind = 'salu'
            self.uses = flat(R)
        elif op.startswith('s_'):
            self.kind = 'salu'
            self.defs = R[0]
            self.uses = flat(R[1:])
            if 'saveexec' in op:
                self.defs = self.defs + [('s', 'exec')]
            if base in ('s_addk_i32', 's_mulk_i32', 's_cmov_b32'):
                self.uses = self.uses + R[0]
        else:
            raise ValueError('unknown instruction ' + text)


class Asm:
    def __init__(self):
        self.items = []

    def __call__(self, text):
        for line in text.split('\n'):
            line = line.strip()
            if line:
                self.items.append(Ins(line))

    def finish(self):
        out = []
        vm = []
        lg = []
        hist = []
        pos = [0]

        def issue(ins):
            out.append(ins)
            if ins.kind in ('label', 'dir'):
                return
            hist.append((pos[0], ins))
            pos[0] += ins.n if ins.kind == 'nop' else 1
            while hist and pos[0] - hist[0][0] > 40:
                hist.pop(0)

        def parse_wait(ins):
            t = ins.text
            m = re.search(r'vmcnt\((\d+)\)', t)
            if m:
                n = int(m.group(1))
                del vm[:max(0, len(vm) - n)]
            m = re.search(r'lgkmcnt\((\d+)\)', t)
            if m:
                n = int(m.group(1))
                if n == 0:
                    del lg[:]
                elif all(k == 'ds' for k, _ in lg):
                    del lg[:max(0, len(lg) - n)]

        for ins in self.items:
            if ins.kind == 'dir' and ins.text.startswith('.segment'):
                del vm[:]
                del lg[:]
                del hist[:]
                continue
            if ins.kind in ('label', 'dir'):
                out.append(ins)
                continue
            if ins.kind == 'wait':
                parse_wait(ins)
                issue(ins)
                continue
            touched = set(ins.defs) | set(ins.uses)
            need_vm = None
            for i, d in enumerate(vm):
                if d & touched:
                    need_vm = len(vm) - 1 - i
            need_lg = None
            for i, (k, d) in enumerate(lg):
                if d & touched:
                    need_lg = len(lg) - 1 - i
            if need_lg is not None and any(k == 'smem' for k, _ in lg):
                need_lg = 0
            if need_vm is not None or need_lg is not None:
                w = 's_waitcnt'
                if need_vm is not None:
                    w += ' vmcnt(%d)' % min(need_vm, 63)
                if need_lg is not None:
                    w += ' lgkmcnt(%d)' % min(need_lg, 15)
                wi = Ins(w)
                parse_wait(wi)
                issue(wi)
            need = 0
            uses = set(ins.uses)
            defs = set(ins.defs)
            for p, h in hist:
                dist = pos[0] - p - 1
                req = 0
                hd = set(h.defs)
                if h.kind == 'valu':
                    vd = {r for r in hd if r[0] in 'va'}
                    sd = {r for r in hd if r[0] == 's'}
                    if ins.kind == 'mfma' and (vd & uses):
                        req = max(req, 2)
                    if ins.kind == 'valu':
                        if h.base in TRANS and (vd & uses):
                            req = max(req, 1)
                        if ins.dpp and (vd & uses):
                            req = max(req, 2)
                        if ins.base.startswith('v_permlane') and (vd & uses):
                            req = max(req, 2)
                        if ins.base in ('v_readlane_b32', 'v_readfirstlane_b32') and (vd & uses):
                            req = max(req, 1)
                        if sd & uses:
                            req = max(req, 4 if ins.base in ('v_readlane_b32', 'v_writelane_b32') else 2)
                        if (h.op.endswith('_sdwa') or 'op_sel' in h.mods) and (vd & (uses | defs)):
                            req = max(req, 1 if not h.base.startswith('v_pk_') else 0)
                    if ins.kind == 'vmem' and (sd & uses):
                        req = max(req, 5)
                    if ins.kind in ('salu', 'smem') and (sd & uses):
                        req = max(req, 1)
                if h.kind == 'mfma':
                    long = 12 if h.passes == 8 else 8
                    if ins.kind == 'mfma':
                        if hd & (set(ins.srcA) | set(ins.srcB)):
                            req = max(req, long)
                        c = set(ins.srcC)
                        if hd & c and not (ins.srcC == h.defs and ins.passes == h.passes):
                            req = max(req, long - 2)
                        if (hd & defs) and not (ins.srcC == h.defs and ins.defs == h.defs and ins.passes == h.passes):
                            req = max(req, long - 2)
                    elif ins.kind in ('valu', 'vmem', 'ds'):
                        if hd & (uses | defs):
                            req = max(req, long)
                        if set(h.srcC) & defs:
                            req = max(req, 7 if h.passes == 8 else 3)
                if h.kind == 'vmem' and getattr(h, 'store', False) and len(h.data) >= 3:
                    if set(h.data) & defs:
                        req = max(req, 2)
                if h.kind == 'ds' and not h.defs and ins.kind == 'valu' and (set(h.uses) & defs) and ('b128' in h.op or 'b96' in h.op or 'write2_b64' in h.op):
                    req = max(req, 2)
                if h.kind == 'salu' and ('s', 'm0') in hd and ('s', 'm0') in uses:
                    req = max(req, 1)
                if h.kind == 'salu' and ('s', 'exec') in hd and ins.kind == 'valu' and (ins.dpp or ins.base.startswith('v_permlane')):
                    req = max(req, 1)
                need = max(need, req - dist)
            while need > 0:
                n = min(need, 16)
                issue(Ins('s_nop %d' % (n - 1)))
                need -= n
            issue(ins)
            if ins.kind == 'vmem':
                vm.append(set(ins.defs))
            elif ins.kind == 'ds':
                lg.append(('ds', set(ins.defs)))
            elif ins.kind == 'smem':
                lg.append(('smem', set(ins.defs)))
        return out

    def text(self):
        lines = []
        for i in self.finish():
            lines.append(i.text if i.kind in ('label', 'dir') else '    ' + i.text)
        return '\n'.join(lines) + '\n'


def vr(a, n=1):
    return 'v%d' % a if n == 1 else 'v[%d:%d]' % (a, a + n - 1)


def ar(a, n=1):
    return 'a%d' % a if n == 1 else 'a[%d:%d]' % (a, a + n - 1)


def sr(a, n=1):
    return 's%d' % a if n == 1 else 's[%d:%d]' % (a, a + n - 1)


def f2u(x):
    import struct
    return '0x%08x' % struct.unpack('<I', struct.pack('<f', x))[0]
```

```python
import sys, os
sys.path.insert(0, os.path.dirname(os.path.abspath(__file__)))
from asmlib import Asm, vr, ar, sr, f2u

NAME = 'adaLN_cond__spectral_gfnet__mixer_channel_mlp__prompt'
OPT = dict(stamps=0, stop=99)
for a in sys.argv[2:]:
    k, v = a.split('=')
    OPT[k] = int(v)

WS_EPOCH = 0x0
WS_MOD = 0x1000
BS = 16384 + 256
WS_T = 0x100000
WS_TP = 0x520000
WS_Y2 = 0x940000
WS_X1 = 0xBC0000
WS_H = 0xE40000
WS_W2P = 0x1440000
WS_STAMP = 0x1800000
WS_SIZE = 268435456
OOB = 0x7ff00000

BIG = 0
SCR = 122880
L_X1E = SCR
L_H1 = SCR + 24576
L_K2I = SCR + 24576
L_K2O = SCR
L_K3I = SCR + 24576
L_Y = SCR
L_Y2 = SCR + 24576
L_RED = SCR + 39680
L_W2S = SCR
LDS_SIZE = 163840

S_X, S_WR, S_WI, S_W1, S_B1, S_W2, S_B2, S_C, S_WM, S_OUT, S_WS = [4 + 4 * i for i in range(11)]
sME, sW, sTAG, sXC, sG, sK1, sCL, sJ = range(48, 56)
sT0, sT1, sT2, sT3, sT4, sT5, sT6, sT7 = range(56, 64)
sCNT = 96
sM1, sM2 = 64, 66
sU = 68
sSTAMP = 98

A = Asm()
RETRY = Asm()
nstamp = [0]


def srd(s):
    return sr(s, 4)


def stamp(name):
    if not OPT['stamps']:
        return
    i = nstamp[0]
    nstamp[0] += 1
    A(f'''s_memrealtime {sr(sSTAMP, 2)}
    s_waitcnt lgkmcnt(0)
    v_writelane_b32 v255, s{sSTAMP}, {i}''')
    STAMPS.append(name)


STAMPS = []


def poll_check(label, loads, bad_cmp):
    A(f'L_chk_{label}:')
    A(bad_cmp)
    A(f's_cbranch_vccnz L_retry_{label}')
    A(f'L_ok_{label}:')
    RETRY('.segment')
    RETRY(f'''L_retry_{label}:
    s_sub_u32 s{sCNT}, s{sCNT}, 1
    s_cmp_lt_i32 s{sCNT}, 0
    s_cbranch_scc1 L_ok_{label}
    s_waitcnt vmcnt(0) lgkmcnt(0)
    s_nop 15''')
    RETRY(loads)
    RETRY(f'''s_waitcnt vmcnt(0)
    s_branch L_chk_{label}''')


def sincos(ang, c, s):
    A(f'v_cos_f32 v{c}, v{ang}')
    A(f'v_sin_f32 v{s}, v{ang}')


def fmamk(d, a, k, b):
    if k == 0:
        A(f'v_mov_b32 v{d}, v{b}')
    elif k == 1:
        A(f'v_add_f32 v{d}, v{a}, v{b}')
    else:
        A(f'v_fmamk_f32 v{d}, v{a}, {f2u(k)}, v{b}')


def unpack(lo, hi, src):
    A(f'v_lshlrev_b32 v{lo}, 16, v{src}')
    A(f'v_and_b32 v{hi}, 0xffff0000, v{src}')


def mod5(d, src, tmp):
    A(f'v_mul_u32_u24 v{tmp}, 205, v{src}')
    A(f'v_lshrrev_b32 v{tmp}, 10, v{tmp}')
    A(f'v_mul_u32_u24 v{tmp}, 5, v{tmp}')
    A(f'v_sub_u32 v{d}, v{src}, v{tmp}')


vT, vL = 0, 1
vL31, vH = 2, 3
vL15, vQ = 4, 5
vL16 = 6
vT16 = 7
TMP = 8


def setup():
    A(f'''s_cmp_ge_u32 s2, 256
    s_cbranch_scc1 L_end
    s_load_dwordx16 s[64:79], s[0:1], 0
    s_load_dwordx8 s[80:87], s[0:1], 64
    s_load_dwordx2 s[88:89], s[0:1], 96
    s_and_b32 s{sXC}, s2, 7
    s_lshr_b32 s{sG}, s2, 3
    s_lshl_b32 s{sME}, s{sXC}, 5
    s_or_b32 s{sME}, s{sME}, s{sG}
    s_lshr_b32 s{sCL}, s{sME}, 4
    s_and_b32 s{sJ}, s{sME}, 15
    s_mov_b32 s{sCNT}, 20000
    v_and_b32 v{vL}, 63, v0
    v_lshrrev_b32 v{TMP}, 6, v0
    v_and_b32 v{vL31}, 31, v0
    v_readfirstlane_b32 s{sW}, v{TMP}
    v_lshrrev_b32 v{vH}, 5, v{vL}
    v_and_b32 v{vL15}, 15, v0
    v_lshrrev_b32 v{vQ}, 4, v{vL}
    v_lshlrev_b32 v{vL16}, 4, v{vL}
    v_lshlrev_b32 v{vT16}, 4, v0''')
    A(f'''s_sub_u32 s{sT0}, 8, s{sXC}
    s_and_b32 s{sT0}, s{sT0}, 7
    s_cmp_lt_u32 s{sG}, 16
    s_cselect_b32 s{sK1}, s{sXC}, s{sT0}''')
    sizes = {S_X: 2621440, S_WR: 1314816, S_WI: 1314816, S_W1: 1966080, S_B1: 3072, S_W2: 1966080, S_B2: 1280,
             S_C: 1280, S_WM: 4915200, S_OUT: 2621440, S_WS: WS_SIZE}
    src = {S_X: 64, S_WR: 66, S_WI: 68, S_W1: 72, S_B1: 74, S_W2: 76, S_B2: 78, S_C: 80, S_WM: 82, S_OUT: 84, S_WS: 88}
    for s in sizes:
        A(f's_mov_b32 s{s + 2}, {sizes[s]}')
        A(f's_mov_b32 s{s + 3}, 0x00020000')
    A('s_waitcnt lgkmcnt(0)')
    A(f's_load_dword s{sTAG}, s[88:89], {WS_EPOCH}')
    for s in (S_C, S_WM, S_X, S_WS, S_W2, S_WR, S_WI, S_W1, S_B1, S_B2, S_OUT):
        A(f's_mov_b64 {sr(s, 2)}, {sr(src[s], 2)}')


G_C = 24
G_W = 32
G_ACC = 52
sCB = sU
sMODST = sU + 1


def gemv_issue():
    A(f'''s_lshr_b32 s{sT0}, s{sG}, 2
    s_lshl_b32 s{sT0}, s{sT0}, 3
    s_add_u32 s{sT0}, s{sT0}, s{sXC}
    s_lshl_b32 s{sT1}, s{sT0}, 2
    s_and_b32 s{sT2}, s{sG}, 3
    s_add_u32 s{sCB}, s{sT1}, s{sT2}
    s_lshl_b32 s{sMODST}, s{sCB}, 6
    s_add_u32 s{sMODST}, s{sMODST}, {WS_MOD}
    s_cmp_lt_u32 s{sT0}, 60
    s_cselect_b32 s{sCB}, s{sCB}, 0
    s_cselect_b32 s{sMODST}, s{sMODST}, {OOB}
    s_lshl_b32 s{sT1}, s{sCB}, 5
    v_lshrrev_b32 v{TMP}, 1, v0
    v_lshlrev_b32 v{TMP + 1}, 1, v{TMP}
    v_mul_u32_u24 v{TMP}, 7680, v{TMP}
    v_and_b32 v{TMP + 2}, 1, v0
    v_lshl_add_u32 v{TMP}, v{TMP + 2}, 4, v{TMP}''')
    for i in range(5):
        A(f'buffer_load_ushort v{G_C + i}, v{TMP + 1}, {srd(S_C)}, 0 offen offset:{256 * i}')
    for i in range(5):
        A(f'buffer_load_dwordx4 {vr(G_W + 4 * i, 4)}, v{TMP}, {srd(S_WM)}, s{sT1} offen')
        if i < 4:
            A(f's_add_u32 s{sT1}, s{sT1}, {128 * 7680}')


def gemv_compute(younger):
    t = TMP
    for i in range(5):
        A(f'v_lshlrev_b32 v{G_C + i}, 16, v{G_C + i}')
    for i in range(5):
        A(f'v_mul_f32 v{t + i}, {f2u(-1.4426950408889634)}, v{G_C + i}')
    for i in range(5):
        A(f'v_exp_f32 v{t + i}, v{t + i}')
    for i in range(5):
        A(f'v_add_f32 v{t + i}, 1.0, v{t + i}')
    for i in range(5):
        A(f'v_rcp_f32 v{t + i}, v{t + i}')
    for i in range(5):
        A(f'v_mul_f32 v{t + i}, v{G_C + i}, v{t + i}')
    for i in range(5):
        A(f'v_cvt_pk_bf16_f32 v{t + i}, v{t + i}, v{t + i}')
    for i in range(5):
        A(f'v_lshlrev_b32 v{G_C + i}, 16, v{t + i}')
    for i in range(5):
        sp = (G_C + i) & ~1
        sel = (G_C + i) & 1
        for k in range(4):
            u = t + 2 * (k & 1)
            unpack(u, u + 1, G_W + 4 * i + k)
            if i == 0:
                A(f'v_pk_mul_f32 {vr(G_ACC + 2 * k, 2)}, {vr(u, 2)}, {vr(sp, 2)} op_sel:[0,{sel}] op_sel_hi:[1,{sel}]')
            else:
                A(f'v_pk_fma_f32 {vr(G_ACC + 2 * k, 2)}, {vr(u, 2)}, {vr(sp, 2)}, {vr(G_ACC + 2 * k, 2)} op_sel:[0,{sel},0] op_sel_hi:[1,{sel},1]')
    a = G_ACC
    A(f'''v_and_b32 v{t + 4}, 1, v{vL}
    v_lshlrev_b32 v{t + 4}, 5, v{t + 4}
    v_and_b32 v{t + 5}, 1, v{vQ}
    v_lshl_add_u32 v{t + 4}, v{t + 5}, 3, v{t + 4}
    v_lshl_add_u32 v{t + 4}, v{vH}, 2, v{t + 4}
    s_lshl_b32 s{sT0}, s{sW}, 6
    s_add_u32 s{sT0}, s{sT0}, {L_RED}
    v_add_u32 v{t + 4}, s{sT0}, v{t + 4}''')
    for k in range(4):
        A(f'v_permlane32_swap_b32 v{a + 2 * k}, v{a + 2 * k + 1}')
    for k in range(4):
        A(f'v_add_f32 v{a + 2 * k}, v{a + 2 * k}, v{a + 2 * k + 1}')
    A(f'v_permlane16_swap_b32 v{a}, v{a + 2}')
    A(f'v_permlane16_swap_b32 v{a + 4}, v{a + 6}')
    A(f'v_add_f32 v{a}, v{a}, v{a + 2}')
    A(f'v_add_f32 v{a + 4}, v{a + 4}, v{a + 6}')
    for r in (8, 4, 2):
        A(f'v_add_f32_dpp v{a}, v{a}, v{a} row_ror:{r} row_mask:0xf bank_mask:0xf')
        A(f'v_add_f32_dpp v{a + 4}, v{a + 4}, v{a + 4} row_ror:{r} row_mask:0xf bank_mask:0xf')
    A(f'''ds_write_b32 v{t + 4}, v{a}
    ds_write_b32 v{t + 4}, v{a + 4} offset:16
    v_and_b32 v{t + 5}, 3, v{vL}
    v_lshlrev_b32 v{t + 5}, 4, v{t + 5}
    v_add_u32 v{t + 6}, {L_RED}, v{t + 5}
    s_waitcnt vmcnt({younger}) lgkmcnt(0)
    s_barrier''')
    for w in range(4):
        A(f'ds_read_b128 {vr(G_W + 4 * w, 4)}, v{t + 6} offset:{64 * w}')
    A(f'''s_mul_i32 s{sTAG}, s{sTAG}, 0x9E3779B1
    s_add_u32 s{sTAG}, s{sTAG}, 0x7F4A7C15
    s_mul_i32 s{sT0}, s{sCB}, 205
    s_lshr_b32 s{sT0}, s{sT0}, 13
    s_cmp_eq_u32 s{sT0}, 1
    s_cselect_b32 s{sT1}, 1.0, 0
    s_cmp_eq_u32 s{sT0}, 4
    s_cselect_b32 s{sT1}, 1.0, s{sT1}
    v_cmp_gt_u32 vcc, 4, v0
    v_mov_b32 v{t + 7}, {OOB}
    v_cndmask_b32 v{t + 5}, v{t + 7}, v{t + 5}, vcc''')
    g = G_W
    for p in (0, 2):
        A(f'v_pk_add_f32 {vr(g + p, 2)}, {vr(g + p, 2)}, {vr(g + 4 + p, 2)}')
        A(f'v_pk_add_f32 {vr(g + 8 + p, 2)}, {vr(g + 8 + p, 2)}, {vr(g + 12 + p, 2)}')
    for p in (0, 2):
        A(f'v_pk_add_f32 {vr(g + p, 2)}, {vr(g + p, 2)}, {vr(g + 8 + p, 2)}')
    A(f'v_cvt_pk_bf16_f32 v{g + 4}, v{g}, v{g + 1}')
    A(f'v_cvt_pk_bf16_f32 v{g + 5}, v{g + 2}, v{g + 3}')
    unpack(g, g + 1, g + 4)
    unpack(g + 2, g + 3, g + 5)
    for k in range(4):
        A(f'v_add_f32 v{g + k}, s{sT1}, v{g + k}')
    A(f'''v_cvt_pk_bf16_f32 v{g + 4}, v{g}, v{g + 1}
    v_cvt_pk_bf16_f32 v{g + 5}, v{g + 2}, v{g + 3}
    v_mov_b32 v{g + 6}, s{sTAG}
    v_mov_b32 v{g + 7}, s{sTAG}
    buffer_store_dwordx4 {vr(g + 4, 4)}, v{t + 5}, {srd(S_WS)}, s{sMODST} offen sc1''')


def code_prefetch(nbytes):
    t = TMP
    per = ((nbytes + 32 * 128 - 1) // (32 * 128))
    assert per <= 64
    A(f'''s_getpc_b64 {sr(sT2, 2)}
    L_pc:
    s_mul_i32 s{sT0}, s{sG}, {per * 128}
    s_sub_u32 s{sT0}, s{sT0}, L_pc-{NAME}_kernel
    v_min_u32 v{t}, {per - 1}, v{vL}
    v_lshlrev_b32 v{t}, 7, v{t}
    v_add_u32 v{t}, s{sT0}, v{t}
    v_min_i32 v{t}, L_last-L_pc, v{t}
    v_ashrrev_i32 v{t + 1}, 31, v{t}
    v_mov_b32 v{t + 2}, s{sT3}
    v_add_co_u32 v{t}, vcc, s{sT2}, v{t}
    v_addc_co_u32 v{t + 1}, vcc, v{t + 2}, v{t + 1}, vcc
    global_load_dword v250, {vr(t, 2)}, off''')


POIS = 240


def fill_region(base, per_wg):
    n = per_wg // 4096
    rem = per_wg - n * 4096
    A(f's_mul_i32 s{sT0}, s{sME}, {per_wg if base not in (WS_T, WS_TP) else BS}')
    A(f's_add_u32 s{sT0}, s{sT0}, {base}')
    for i in range(n):
        A(f'buffer_store_dwordx4 {vr(POIS, 4)}, v{vT16}, {srd(S_WS)}, s{sT0} offen sc1')
        if i < n - 1 or rem:
            A(f's_add_u32 s{sT0}, s{sT0}, 4096')
    if rem:
        t = TMP
        A(f'''v_cmp_gt_u32 vcc, {rem // 16}, v0
        v_mov_b32 v{t}, {OOB}
        v_cndmask_b32 v{t}, v{t}, v{vT16}, vcc
        buffer_store_dwordx4 {vr(POIS, 4)}, v{t}, {srd(S_WS)}, s{sT0} offen sc1''')


def pois_init():
    for i in range(4):
        A(f'v_mov_b32 v{POIS + i}, -1')


def w1_dma():
    t = TMP
    for i in range(3):
        A(f'''v_add_u32 v{t + 3}, {64 * i}, v{vL}
        v_mul_u32_u24 v{t + 4}, 171, v{t + 3}
        v_lshrrev_b32 v{t + 4}, 11, v{t + 4}
        v_mul_u32_u24 v{t + 5}, 12, v{t + 4}
        v_sub_u32 v{t + 5}, v{t + 3}, v{t + 5}
        v_mul_u32_u24 v{t + 4}, 3072, v{t + 4}
        v_lshl_add_u32 v{t + i}, v{t + 5}, 4, v{t + 4}''')
    A(f'''s_mul_i32 s{sT0}, s{sW}, {160 * 3072}
    s_mul_i32 s{sT1}, s{sJ}, 192
    s_add_u32 s{sT0}, s{sT0}, s{sT1}
    s_mul_i32 s{sT1}, s{sW}, 30720
    s_add_u32 m0, s{sT1}, {BIG}''')
    for g in range(10):
        for i in range(3):
            A(f'buffer_load_dwordx4 v{t + i}, {srd(S_W1)}, s{sT0} offen lds')
            A('s_add_u32 m0, m0, 1024')
        A(f's_add_u32 s{sT0}, s{sT0}, {16 * 3072}')


sW2ST = sU + 2


def w2_fmt_issue():
    t = TMP
    A(f'''s_mul_i32 s{sT0}, s{sME}, 205
    s_lshr_b32 s{sT0}, s{sT0}, 10
    s_mul_i32 s{sT1}, s{sT0}, 5
    s_sub_u32 s{sT1}, s{sME}, s{sT1}
    s_mul_i32 s{sT2}, s{sT0}, {32 * 1280}
    s_lshl_b32 s{sT3}, s{sT1}, 8
    s_add_u32 s{sT2}, s{sT2}, s{sT3}
    s_mul_i32 s{sW2ST}, s{sT0}, 40960
    s_lshl_b32 s{sT3}, s{sT1}, 13
    s_add_u32 s{sW2ST}, s{sW2ST}, s{sT3}
    s_lshl_b32 s{sT3}, s{sW}, 11
    s_add_u32 s{sW2ST}, s{sW2ST}, s{sT3}
    s_add_u32 s{sW2ST}, s{sW2ST}, {WS_W2P}
    s_cmp_lt_u32 s{sME}, 240
    s_cselect_b32 s{sW2ST}, s{sW2ST}, {OOB}
    s_cselect_b32 s{sT2}, s{sT2}, 0
    v_lshrrev_b32 v{t}, 4, v0
    v_mul_u32_u24 v{t}, 1280, v{t}
    v_lshl_add_u32 v{t}, v{vL15}, 4, v{t}
    s_lshl_b32 s{sT3}, s{sW}, 10
    s_add_u32 m0, s{sT3}, {L_W2S}
    s_add_u32 s{sT4}, s{sT2}, {16 * 1280}
    buffer_load_dwordx4 v{t}, {srd(S_W2)}, s{sT2} offen lds
    s_add_u32 m0, m0, 4096
    s_nop 0
    buffer_load_dwordx4 v{t}, {srd(S_W2)}, s{sT4} offen lds''')


def w2_fmt_finish():
    t = TMP
    A(f'''v_lshrrev_b32 v{t}, 2, v{vL}
    v_lshlrev_b32 v{t}, 8, v{t}
    v_and_b32 v{t + 1}, 3, v{vL}
    v_lshl_add_u32 v{t}, v{t + 1}, 3, v{t}
    s_lshl_b32 s{sT0}, s{sW}, 6
    s_add_u32 s{sT0}, s{sT0}, {L_W2S}
    v_add_u32 v{t}, s{sT0}, v{t}''')
    for i in range(2):
        A(f'ds_read_b64_tr_b16 {vr(t + 4 + 4 * i, 2)}, v{t} offset:{32 * i}')
        A(f'ds_read_b64_tr_b16 {vr(t + 6 + 4 * i, 2)}, v{t} offset:{32 * i + 4096}')
    for i in range(2):
        A(f'buffer_store_dwordx4 {vr(t + 4 + 4 * i, 4)}, v{vL16}, {srd(S_WS)}, s{sW2ST} offen offset:{1024 * i} sc1')


def w2_load(k0, k1):
    A(f'''s_mul_i32 s{sT0}, s{sW}, {12 * 40960}
    s_and_b32 s{sT1}, s{sJ}, 7
    s_mul_i32 s{sT1}, s{sT1}, 5120
    s_add_u32 s{sT0}, s{sT0}, s{sT1}
    s_add_u32 s{sT0}, s{sT0}, {WS_W2P + k0 * 40960}''')
    for kl in range(k0, k1):
        A(f's_add_u32 s{sT1}, s{sT0}, 4096')
        for nt in range(5):
            so, off = (sT0, 1024 * nt) if nt < 4 else (sT1, 0)
            A(f'buffer_load_dwordx4 {ar((kl * 5 + nt) * 4, 4)}, v{vL16}, {srd(S_WS)}, s{so} offen offset:{off} sc1')
        A(f's_add_u32 s{sT0}, s{sT0}, 40960')


F_RAW = 200
F_SH = 216
F_W = 216


def filt_issue():
    t = TMP
    A(f'''s_mul_i32 s{sT0}, s{sG}, 20
    s_mul_i32 s{sT1}, s{sW}, 5
    s_add_u32 s{sT0}, s{sT0}, s{sT1}
    s_sub_u32 s{sT1}, 638, s{sT0}
    s_cmp_lt_u32 s{sG}, 16
    s_cselect_b32 s{sT0}, s{sT0}, s{sT1}
    s_cselect_b32 s{sT2}, 1, -1
    v_lshlrev_b32 v{t}, 9, v{vQ}
    v_lshl_add_u32 v{t}, v{vL15}, 3, v{t}
    v_add_u32 v{t}, s{sK1}, v{t}''')
    for j in range(4):
        A(f'''v_add_u32 v{t + 1}, {128 * j}, v{t}
        v_mul_i32_i24 v{t + 1}, s{sT2}, v{t + 1}
        v_and_b32 v{t + 1}, 2047, v{t + 1}
        v_mul_u32_u24 v{t + 1}, 321, v{t + 1}
        v_add_u32 v{t + 1}, s{sT0}, v{t + 1}
        v_and_b32 v{t + 2}, 1, v{t + 1}
        v_lshlrev_b32 v{196 + j}, 4, v{t + 2}
        v_lshrrev_b32 v{t + 1}, 1, v{t + 1}
        v_lshlrev_b32 v{t + 4 + j}, 2, v{t + 1}
        buffer_load_dwordx2 {vr(F_RAW + 4 * j, 2)}, v{t + 4 + j}, {srd(S_WR)}, 0 offen
        buffer_load_dwordx2 {vr(F_RAW + 4 * j + 2, 2)}, v{t + 4 + j}, {srd(S_WI)}, 0 offen''')


def filt_finish():
    t = TMP
    sc = 1.0 / (2048.0 * 640.0)
    A(f'''s_cmp_lt_u32 s{sG}, 16
    s_cselect_b64 vcc, -1, 0
    s_cselect_b32 s{sT3}, 0, 0x80000000
    s_mov_b32 s{sT0}, {f2u(sc)}
    s_mov_b32 s{sT1}, {f2u(2 * sc)}
    s_xor_b32 s{sT2}, s{sT0}, s{sT3}
    s_xor_b32 s{sT3}, s{sT1}, s{sT3}''')
    for j in range(4):
        for p in range(2):
            r = F_RAW + 4 * j + 2 * p
            A(f'v_lshrrev_b64 {vr(r, 2)}, v{196 + j}, {vr(r, 2)}')
            A(f'''v_lshlrev_b32 v{t}, 16, v{r}
            v_lshlrev_b32 v{t + 1}, 16, v{r + 1}
            v_and_b32 v{t + 2}, 0xffff0000, v{r}
            v_cndmask_b32 v{t + 3}, v{t + 1}, v{t}, vcc
            v_cndmask_b32 v{t + 4}, v{t}, v{t + 1}, vcc
            v_mul_f32 v{F_W + 8 + 4 * p + j}, s{sT1 + 2 * p}, v{t + 2}
            v_mul_f32 v{F_W + 4 * p + j}, s{sT0 + 2 * p}, v{t + 3}
            v_mul_f32 v{F_W + 16 + 4 * p + j}, s{sT1 + 2 * p}, v{t + 4}''')


X_RAW = 60
X_N = 72
K1_AD = 92
K1_M1 = 100
K1_M2 = 124
MODR = 24


def x1_issue():
    A(f'''s_lshl_b32 s{sT0}, s{sW}, 9
    s_add_u32 s{sT0}, s{sT0}, s{sME}
    s_mul_i32 s{sT0}, s{sT0}, 1280
    s_add_u32 s{sT1}, s{sT0}, {256 * 1280}
    v_lshlrev_b32 v{TMP + 3}, 2, v{vL}
    buffer_load_dwordx4 {vr(X_RAW, 4)}, v{vL16}, {srd(S_X)}, s{sT0} offen
    buffer_load_dwordx4 {vr(X_RAW + 4, 4)}, v{vL16}, {srd(S_X)}, s{sT1} offen
    buffer_load_dword v{X_RAW + 8}, v{TMP + 3}, {srd(S_X)}, s{sT0} offen offset:1024
    buffer_load_dword v{X_RAW + 9}, v{TMP + 3}, {srd(S_X)}, s{sT1} offen offset:1024''')


def k1_const_a():
    t = TMP
    A(f'''v_lshrrev_b32 v{t}, 3, v{vL31}
    v_cvt_f32_u32 v{t}, v{t}
    v_mul_f32 v{t}, {f2u(0.4)}, v{t}
    v_and_b32 v{t + 1}, 7, v{vL}
    v_cvt_f32_u32 v{t + 1}, v{t + 1}
    v_mul_f32 v{t + 1}, {f2u(0.125)}, v{t + 1}
    v_cvt_f32_u32 v{t + 2}, v{vH}
    v_mul_f32 v{t + 2}, v{t + 2}, v{t}''')
    for tau in range(3):
        fmamk(t + 3, t, 2 * tau, t + 2)
        for p in range(4):
            fmamk(t + 4, t + 1, 2 * p, t + 3)
            fmamk(t + 5, t + 1, 2 * p + 1, t + 3)
            sincos(t + 4, t + 6, t + 8)
            sincos(t + 5, t + 7, t + 9)
            A(f'v_cvt_pk_bf16_f32 v{K1_M1 + 4 * tau + p}, v{t + 6}, v{t + 7}')
            A(f'v_cvt_pk_bf16_f32 v{K1_M1 + 12 + 4 * tau + p}, -v{t + 8}, -v{t + 9}')
    A('s_mov_b32 exec_lo, 0')
    for p in range(4):
        A(f'v_mov_b32 v{K1_M1 + 8 + p}, 0')
        A(f'v_mov_b32 v{K1_M1 + 20 + p}, 0')
    A('s_mov_b32 exec_lo, -1')


def k1_const_b():
    t = TMP
    A(f'''v_cvt_f32_u32 v{t}, v{vL31}
    v_lshlrev_b32 v{t + 1}, 4, v{vH}
    v_add_u32 v{t + 1}, s{sW}, v{t + 1}
    v_cvt_f32_u32 v{t + 1}, v{t + 1}
    v_mul_f32 v{t}, {f2u(1.0 / 128)}, v{t}
    v_mul_f32 v{t + 1}, v{t + 1}, v{t}''')
    for u in range(4):
        for jj in range(4):
            e = 2 + 3 * (jj & 1)
            fmamk(t + e, t, 4 * (8 * u + jj), t + 1)
            sincos(t + e, t + e + 1, t + e + 2)
            A(f'v_cvt_pk_bf16_f32 v{K1_M2 + 4 * u + jj}, v{t + e + 1}, v{t + e + 2}')
            A(f'v_cvt_pk_bf16_f32 v{K1_M2 + 16 + 4 * u + jj}, -v{t + e + 2}, v{t + e + 1}')


def k1_addr():
    t = TMP
    A(f'''s_mul_i32 s{sT0}, s{sW}, 2560
    s_add_u32 s{sT0}, s{sT0}, {L_H1}
    v_mul_u32_u24 v{t}, 3, v{vL}
    v_lshlrev_b32 v{t + 1}, 3, v{vL15}
    v_add_u32 v{t + 1}, s{sT0}, v{t + 1}''')
    for k in range(5):
        A(f'v_add_u32 v{t + 2}, {k}, v{t}')
        mod5(t + 2, t + 2, t + 3)
        A(f'v_lshl_add_u32 v{K1_AD + k}, v{t + 2}, 9, v{t + 1}')
    A(f'''v_lshrrev_b32 v{t + 1}, 1, v{vL}
    v_lshlrev_b32 v{t + 1}, 2, v{t + 1}
    v_and_b32 v{t + 2}, 1, v{vL}
    v_lshl_add_u32 v{t + 1}, v{t + 2}, 8, v{t + 1}
    v_add_u32 v{t + 1}, s{sT0}, v{t + 1}''')
    for e in range(2):
        A(f'v_lshl_add_u32 v{t + 2}, v{vL}, 1, {2 + e}')
        mod5(t + 2, t + 2, t + 3)
        A(f'v_lshl_add_u32 v{K1_AD + 5 + e}, v{t + 2}, 9, v{t + 1}')
    A(f'''v_cmp_gt_u32 {sr(sM1, 2)}, 19, v{vL31}
    v_cmp_gt_u32 {sr(sM2, 2)}, 6, v{vL31}''')


def ln1():
    t = TMP
    for r in range(2):
        for k in range(4):
            unpack(X_N + 10 * r + 2 * k, X_N + 10 * r + 2 * k + 1, X_RAW + 4 * r + k)
        unpack(X_N + 10 * r + 8, X_N + 10 * r + 9, X_RAW + 8 + r)
    for r in range(2):
        b = X_N + 10 * r
        A(f'v_pk_add_f32 {vr(t + 2 * r, 2)}, {vr(b, 2)}, {vr(b + 2, 2)}')
        A(f'v_pk_mul_f32 {vr(t + 4 + 2 * r, 2)}, {vr(b, 2)}, {vr(b, 2)}')
        for k in range(1, 5):
            if k > 1:
                A(f'v_pk_add_f32 {vr(t + 2 * r, 2)}, {vr(t + 2 * r, 2)}, {vr(b + 2 * k, 2)}')
            A(f'v_pk_fma_f32 {vr(t + 4 + 2 * r, 2)}, {vr(b + 2 * k, 2)}, {vr(b + 2 * k, 2)}, {vr(t + 4 + 2 * r, 2)}')
    for k in range(4):
        A(f'v_add_f32 v{t + 2 * k}, v{t + 2 * k}, v{t + 2 * k + 1}')
    A(f'''v_permlane32_swap_b32 v{t}, v{t + 2}
    v_permlane32_swap_b32 v{t + 4}, v{t + 6}
    v_add_f32 v{t}, v{t}, v{t + 2}
    v_add_f32 v{t + 4}, v{t + 4}, v{t + 6}
    v_permlane16_swap_b32 v{t}, v{t + 4}
    v_add_f32 v{t}, v{t}, v{t + 4}''')
    for r in (8, 4, 2, 1):
        A(f'v_add_f32_dpp v{t}, v{t}, v{t} row_ror:{r} row_mask:0xf bank_mask:0xf')
    A(f'v_mul_f32 v{t}, {f2u(1.0 / 640)}, v{t}')
    for k in range(4):
        A(f'v_readlane_b32 s{sT0 + k}, v{t}, {16 * k}')
    for r in range(2):
        A(f'v_mov_b32 v{t + 4 + r}, s{sT0 + 2 * r}')
    for r in range(2):
        A(f'v_fma_f32 v{t + 2 * r}, -v{t + 4 + r}, v{t + 4 + r}, s{sT1 + 2 * r}')
    for r in range(2):
        A(f'v_max_f32 v{t + 2 * r}, 0, v{t + 2 * r}')
    for r in range(2):
        A(f'v_add_f32 v{t + 2 * r}, {f2u(1e-5)}, v{t + 2 * r}')
    for r in range(2):
        A(f'v_rsq_f32 v{t + 2 * r}, v{t + 2 * r}')
    for r in range(2):
        A(f'v_mul_f32 v{t + 2 * r + 1}, v{t + 4 + r}, v{t + 2 * r}')
    for r in range(2):
        for k in range(5):
            b = X_N + 10 * r + 2 * k
            A(f'v_pk_fma_f32 {vr(b, 2)}, {vr(b, 2)}, {vr(t + 2 * r, 2)}, {vr(t + 2 * r, 2)} op_sel:[0,0,1] op_sel_hi:[1,0,1] neg_lo:[0,0,1] neg_hi:[0,0,1]')


vMA, vMB = 48, 49


def mod1_loads():
    s = ''
    for v in range(2):
        o = v * 2560
        s += f'buffer_load_dwordx4 {vr(MODR + 12 * v, 4)}, v{vMA}, {srd(S_WS)}, 0 offen offset:{o} sc1\n'
        s += f'buffer_load_dwordx4 {vr(MODR + 12 * v + 4, 4)}, v{vMA}, {srd(S_WS)}, 0 offen offset:{o + 16} sc1\n'
        s += f'buffer_load_dwordx4 {vr(MODR + 12 * v + 8, 4)}, v{vMB}, {srd(S_WS)}, 0 offen offset:{o} sc1\n'
    return s


def tagcheck(regs):
    s = f'v_cmp_ne_u32 vcc, s{sTAG}, v{regs[0]}\n'
    for r in regs[1:]:
        s += f'v_cmp_ne_u32 {sr(sT6, 2)}, s{sTAG}, v{r}\n'
        s += f's_or_b64 vcc, vcc, {sr(sT6, 2)}\n'
    return s


def mod1_issue():
    A(f'''v_lshlrev_b32 v{vMA}, 5, v{vL}
    v_add_u32 v{vMA}, {WS_MOD}, v{vMA}
    v_lshrrev_b32 v{vMB}, 1, v{vL}
    v_lshlrev_b32 v{vMB}, 4, v{vMB}
    v_add_u32 v{vMB}, {WS_MOD + 2048}, v{vMB}''')
    A(mod1_loads())


K1_D = 24


def k1_main():
    t = TMP
    poll_check('mod1', mod1_loads(), tagcheck([MODR + 4 * i + 2 for i in range(6)]))
    stamp('mod1')
    A(f'''v_and_b32 v{t}, 1, v{vL}
    v_cmp_eq_u32 vcc, 1, v{t}
    v_cndmask_b32 v{MODR + 8}, v{MODR + 8}, v{MODR + 9}, vcc
    v_cndmask_b32 v{MODR + 20}, v{MODR + 20}, v{MODR + 21}, vcc''')
    srcs = [0, 1, 4, 5, 8]
    for k in range(5):
        u = t + 4 * (k & 1)
        unpack(u, u + 1, MODR + srcs[k])
        unpack(u + 2, u + 3, MODR + 12 + srcs[k])
        for r in range(2):
            b = X_N + 10 * r + 2 * k
            A(f'v_pk_fma_f32 {vr(b, 2)}, {vr(b, 2)}, {vr(u + 2, 2)}, {vr(u, 2)}')
        for e in (2 * k, 2 * k + 1):
            A(f'v_cvt_pk_bf16_f32 v{X_N + e}, v{X_N + e}, v{X_N + 10 + e}')
            if e < 8:
                A(f'ds_write_b32 v{K1_AD + e % 5}, v{X_N + e} offset:{(e & 3) * 128 + (e >> 2) * 4}')
            else:
                A(f'ds_write_b32 v{K1_AD + 5 + e - 8}, v{X_N + e} offset:{(e - 8) * 128}')
    A(f'''s_lshl_b32 s{sT0}, s{sW}, 7
    s_add_u32 s{sT0}, s{sT0}, {L_H1}
    v_lshl_add_u32 v{t + 1}, v{vL31}, 2, s{sT0}
    v_lshl_add_u32 v{t}, v{vH}, 9, v{t + 1}
    s_waitcnt lgkmcnt(0)
    s_barrier''')
    OPA = 60
    DRE, DIM = 24, 40
    for tau in range(3):
        ad = t if tau < 2 else t + 1
        for p in (0, 2):
            A(f'ds_read2st64_b32 {vr(OPA + 4 * tau + p, 2)}, v{ad} offset0:{4 * tau + 10 * p} offset1:{4 * tau + 10 * p + 10}')
    for tau in range(3):
        A(f'v_mfma_f32_32x32x16_bf16 {vr(DRE, 16)}, {vr(OPA + 4 * tau, 4)}, {vr(K1_M1 + 4 * tau, 4)}, {vr(DRE, 16) if tau else 0}')
        A(f'v_mfma_f32_32x32x16_bf16 {vr(DIM, 16)}, {vr(OPA + 4 * tau, 4)}, {vr(K1_M1 + 12 + 4 * tau, 4)}, {vr(DIM, 16) if tau else 0}')
    A(f'''s_mul_i32 s{sT0}, s{sW}, 6144
    s_add_u32 s{sT0}, s{sT0}, {L_X1E}
    v_lshl_add_u32 v{t}, v{vL31}, 3, s{sT0}
    v_lshl_add_u32 v{t}, v{vH}, 10, v{t}
    v_add_u32 v{t + 1}, 2048, v{t}
    v_add_u32 v{t + 2}, 4096, v{t}''')
    OPB = 72
    ERE, EIM = 156, 172
    for u in range(4):
        for jj in range(4):
            A(f'v_cvt_pk_bf16_f32 v{OPB + 4 * u + jj}, v{DRE + 4 * u + jj}, v{DIM + 4 * u + jj}')
        A(f'v_mfma_f32_32x32x16_bf16 {vr(ERE, 16)}, {vr(OPB + 4 * u, 4)}, {vr(K1_M2 + 4 * u, 4)}, {vr(ERE, 16) if u else 0}')
        A(f'v_mfma_f32_32x32x16_bf16 {vr(EIM, 16)}, {vr(OPB + 4 * u, 4)}, {vr(K1_M2 + 16 + 4 * u, 4)}, {vr(EIM, 16) if u else 0}')
    RA = t + 4
    A(f'v_lshrrev_b32 v{t + 3}, 5, v0')
    A(f'v_lshlrev_b32 v{t + 7}, 8, v{t + 3}')
    for c in range(3):
        A(f'''v_add_u32 v{RA + c}, {13 * c}, v{vL31}
        v_and_b32 v{RA + c}, 31, v{RA + c}
        v_lshl_add_u32 v{RA + c}, v{RA + c}, 3, v{t + 7}
        v_add_u32 v{RA + c}, {L_X1E + 2048 * c}, v{RA + c}''')
    A(f'''v_lshlrev_b32 v{t + 8}, 4, v{vL31}
    v_sub_u32 v{t + 9}, 8, v{t + 3}
    v_and_b32 v{t + 9}, 7, v{t + 9}
    v_lshl_add_u32 v{t + 9}, v{t + 9}, 11, v{t + 8}
    v_lshl_add_u32 v{t + 8}, v{t + 3}, 11, v{t + 8}
    s_mul_i32 s{sT1}, s{sME}, {BS}
    s_add_u32 s{sT1}, s{sT1}, {WS_T}''')
    for j in range(12):
        A(f'ds_write2_b32 v{t + (j >> 2)}, v{ERE + j}, v{EIM + j} offset0:{64 * (j & 3)} offset1:{64 * (j & 3) + 1}')
    A('''s_waitcnt lgkmcnt(0)
    s_barrier''')
    Z = 24
    for c in range(3):
        for b2 in range(4):
            A(f'ds_read_b64 {vr(Z + 8 * c + 2 * b2, 2)}, v{RA + c} offset:{6144 * b2}')
    O = 60
    P = 48
    for m in range(4):
        A(f'v_mov_b32 v{O + 4 * m + 3}, s{sTAG}')
    for c in range(3):
        z = Z + 8 * c
        A(f'''v_pk_add_f32 {vr(P, 2)}, {vr(z, 2)}, {vr(z + 4, 2)}
        v_pk_add_f32 {vr(P + 2, 2)}, {vr(z, 2)}, {vr(z + 4, 2)} neg_lo:[0,1] neg_hi:[0,1]
        v_pk_add_f32 {vr(P + 4, 2)}, {vr(z + 2, 2)}, {vr(z + 6, 2)}
        v_pk_add_f32 {vr(P + 6, 2)}, {vr(z + 2, 2)}, {vr(z + 6, 2)} neg_lo:[0,1] neg_hi:[0,1]
        v_pk_add_f32 {vr(z, 2)}, {vr(P, 2)}, {vr(P + 4, 2)}
        v_pk_add_f32 {vr(z + 4, 2)}, {vr(P, 2)}, {vr(P + 4, 2)} neg_lo:[0,1] neg_hi:[0,1]
        v_pk_add_f32 {vr(z + 2, 2)}, {vr(P + 2, 2)}, {vr(P + 6, 2)} op_sel:[0,1] op_sel_hi:[1,0] neg_hi:[0,1]
        v_pk_add_f32 {vr(z + 6, 2)}, {vr(P + 2, 2)}, {vr(P + 6, 2)} op_sel:[0,1] op_sel_hi:[1,0] neg_lo:[0,1]''')
        if c == 0:
            for k in range(4):
                A(f'v_cvt_pk_bf16_f32 v{O + 4 * k}, v{z + 2 * k}, v{z + 2 * k + 1}')
        else:
            for k in range(4):
                A(f'v_cvt_pk_bf16_f32 v{56 + k}, v{z + 2 * k}, v{z + 2 * k + 1}')
            r0 = 1 if c == 1 else 3
            for m in range(4):
                A(f'v_cndmask_b32 v{O + 4 * m + c}, v{56 + (m - r0) % 4}, v{56 + (m - r0 - 1) % 4}, {sr(sM1 if c == 1 else sM2, 2)}')
    A('s_waitcnt vmcnt(0)')
    for m in range(4):
        A(f'buffer_store_dwordx4 {vr(O + 4 * m, 4)}, v{t + 8 + (m >> 1)}, {srd(S_WS)}, s{sT1} offen offset:{512 * m} sc1')


K2C = 100
C_M1, C_TW1, C_M2, C_M3, C_TW2, C_M4 = [K2C + 8 * i for i in range(6)]
K2_IN = 24
vK2A = 148


def k2_const():
    t = TMP
    A(f'''v_cvt_f32_u32 v{t}, v{vL15}
    v_cvt_f32_u32 v{t + 1}, v{vQ}
    v_cvt_f32_u32 v{t + 2}, s{sK1}
    v_mul_f32 v{t + 1}, 4.0, v{t + 1}''')
    fmamk(t + 3, t, 8, t + 2)
    A(f'v_mul_f32 v{t + 3}, {f2u(1.0 / 128)}, v{t + 3}')
    A(f'v_mul_f32 v{t + 4}, {f2u(1.0 / 16)}, v{t}')
    A(f'v_mul_f32 v{t + 5}, {f2u(1.0 / 128)}, v{t}')
    A(f'v_mul_f32 v{t + 5}, v{t + 5}, v{t + 2}')
    for jj in range(4):
        A(f'v_add_f32 v{t + 6}, {f2u(float(jj))}, v{t + 1}')
        A(f'v_mul_f32 v{t + 7}, v{t + 6}, v{t + 3}')
        A(f'v_mul_f32 v{t + 8}, {f2u(1.0 / 16)}, v{t + 7}')
        A(f'v_mul_f32 v{t + 9}, v{t + 6}, v{t + 4}')
        A(f'v_add_f32 v{t + 10}, v{t + 9}, v{t + 5}')
        A(f'v_mul_f32 v{t + 11}, {f2u(1.0 / 16)}, v{t + 10}')
        sincos(t + 7, t + 12, t + 13)
        sincos(t + 8, C_TW1 + jj, C_TW1 + 4 + jj)
        A(f'v_cvt_pk_bf16_f32 v{C_M1 + jj}, v{t + 12}, v{t + 13}')
        A(f'v_cvt_pk_bf16_f32 v{C_M1 + 4 + jj}, -v{t + 13}, v{t + 12}')
        sincos(t + 9, t + 12, t + 13)
        sincos(t + 11, C_TW2 + jj, C_TW2 + 4 + jj)
        A(f'v_cvt_pk_bf16_f32 v{C_M2 + jj}, v{t + 12}, v{t + 13}')
        A(f'v_cvt_pk_bf16_f32 v{C_M2 + 4 + jj}, -v{t + 13}, v{t + 12}')
        A(f'v_cvt_pk_bf16_f32 v{C_M3 + jj}, v{t + 12}, -v{t + 13}')
        A(f'v_cvt_pk_bf16_f32 v{C_M3 + 4 + jj}, v{t + 13}, v{t + 12}')
        sincos(t + 10, t + 14, t + 15)
        A(f'v_cvt_pk_bf16_f32 v{C_M4 + jj}, v{t + 14}, -v{t + 15}')
        A(f'v_cvt_pk_bf16_f32 v{C_M4 + 4 + jj}, v{t + 15}, v{t + 14}')


sK2L = sU + 4


def k2_loads():
    s = ''
    for j in range(4):
        s += f'buffer_load_dwordx4 {vr(K2_IN + 4 * j, 4)}, v{vK2A}, {srd(S_WS)}, s{sK2L + j} offen sc1\n'
    return s


def k2_issue():
    t = TMP
    A(f'''v_lshrrev_b32 v{t}, 2, v{vL}
    v_mul_u32_u24 v{t}, {BS}, v{t}
    v_and_b32 v{t + 1}, 3, v{vL}
    v_lshl_add_u32 v{vK2A}, v{t + 1}, 4, v{t}
    s_mul_i32 s{sT0}, s{sW}, {64 * BS}
    s_lshl_b32 s{sT1}, s{sME}, 6
    s_add_u32 s{sT0}, s{sT0}, s{sT1}
    s_add_u32 s{sK2L}, s{sT0}, {WS_T}''')
    for j in range(1, 4):
        A(f's_add_u32 s{sK2L + j}, s{sK2L}, {16 * j * BS}')
    A(k2_loads())


def cmul(dre, dim, wr, wi, conj, tmp):
    for p in (0, 2):
        A(f'v_pk_mul_f32 {vr(tmp + p, 2)}, {vr(dre + p, 2)}, {vr(wr + p, 2)}')
        A(f'v_pk_mul_f32 {vr(tmp + 4 + p, 2)}, {vr(dim + p, 2)}, {vr(wr + p, 2)}')
    n1 = '' if conj else ' neg_lo:[1,0,0] neg_hi:[1,0,0]'
    n2 = ' neg_lo:[1,0,0] neg_hi:[1,0,0]' if conj else ''
    for p in (0, 2):
        A(f'v_pk_fma_f32 {vr(tmp + p, 2)}, {vr(dim + p, 2)}, {vr(wi + p, 2)}, {vr(tmp + p, 2)}{n1}')
        A(f'v_pk_fma_f32 {vr(tmp + 4 + p, 2)}, {vr(dre + p, 2)}, {vr(wi + p, 2)}, {vr(tmp + 4 + p, 2)}{n2}')


def k2_main(after_poll):
    t = TMP
    A(f'''v_and_b32 v{t}, 3, v{vL}
    v_mul_u32_u24 v{t}, 3104, v{t}
    v_lshrrev_b32 v{t + 1}, 2, v0
    v_lshl_add_u32 v{t}, v{t + 1}, 4, v{t}
    s_mul_i32 s{sT0}, s{sW}, 3104
    v_add_u32 v{t + 1}, s{sT0}, v{vL16}
    v_add_u32 v{t + 2}, {L_K2O}, v{t}
    v_add_u32 v{t + 3}, {L_K2O}, v{t + 1}
    v_add_u32 v{t}, {L_K2I}, v{t}
    v_add_u32 v{t + 1}, {L_K2I}, v{t + 1}''')
    poll_check('t', k2_loads(), tagcheck([K2_IN + 4 * j + 3 for j in range(4)]))
    stamp('T')
    X = 40
    for c in range(3):
        cb, cs = c & ~1, c & 1
        for p in (0, 2):
            A(f'v_pk_mov_b32 {vr(X + 4 * c + p, 2)}, {vr(K2_IN + 4 * p + cb, 2)}, {vr(K2_IN + 4 * p + 4 + cb, 2)} op_sel:[{cs},{cs}]')
        A(f'ds_write_b128 v{t}, {vr(X + 4 * c, 4)} offset:{1024 * c}')
    A('''s_waitcnt lgkmcnt(0)
    s_barrier''')
    OP = 24
    D = 40
    U = 64
    for c in range(3):
        A(f'ds_read_b128 {vr(OP + 4 * c, 4)}, v{t + 1} offset:{1024 * c}')
    after_poll()

    def stage(M, data_is_a):
        for c in range(3):
            for p in range(2):
                a, b = (vr(OP + 4 * c, 4), vr(M + 4 * p, 4)) if data_is_a else (vr(M + 4 * p, 4), vr(OP + 4 * c, 4))
                A(f'v_mfma_f32_16x16x32_bf16 {vr(D + 8 * c + 4 * p, 4)}, {a}, {b}, 0')

    def mid(wr, wi, conj, M, data_is_a):
        for c in range(3):
            cmul(D + 8 * c, D + 8 * c + 4, wr(c), wi(c), conj, U + 8 * c)
            for jj in range(4):
                A(f'v_cvt_pk_bf16_f32 v{OP + 4 * c + jj}, v{U + 8 * c + jj}, v{U + 8 * c + 4 + jj}')
            for p in range(2):
                a, b = (vr(OP + 4 * c, 4), vr(M + 4 * p, 4)) if data_is_a else (vr(M + 4 * p, 4), vr(OP + 4 * c, 4))
                A(f'v_mfma_f32_16x16x32_bf16 {vr(D + 8 * c + 4 * p, 4)}, {a}, {b}, 0')
    stage(C_M1, True)
    mid(lambda c: C_TW1, lambda c: C_TW1 + 4, True, C_M2, False)
    mid(lambda c: F_W + 8 * c, lambda c: F_W + 8 * c + 4, False, C_M3, True)
    mid(lambda c: C_TW2, lambda c: C_TW2 + 4, False, C_M4, False)
    for c in range(3):
        for jj in range(4):
            A(f'v_cvt_pk_bf16_f32 v{OP + 4 * c + jj}, v{D + 8 * c + jj}, v{D + 8 * c + 4 + jj}')
        A(f'ds_write_b128 v{t + 3}, {vr(OP + 4 * c, 4)} offset:{1024 * c}')
    A(f'''s_mul_i32 s{sT0}, s{sME}, {BS}
    s_lshl_b32 s{sT1}, s{sW}, 12
    s_add_u32 s{sT0}, s{sT0}, s{sT1}
    s_add_u32 s{sT0}, s{sT0}, {WS_TP}
    v_mov_b32 v{52}, s{sTAG}
    v_mov_b32 v{53}, s{sTAG}
    s_waitcnt lgkmcnt(0)
    s_barrier''')
    for c in range(3):
        A(f'ds_read_b128 {vr(X + 4 * c, 4)}, v{t + 2} offset:{1024 * c}')
    O = 64
    for j in range(4):
        jb, js = j & ~1, j & 1
        A(f'v_pk_mov_b32 {vr(O + 4 * j, 2)}, {vr(X + jb, 2)}, {vr(X + 4 + jb, 2)} op_sel:[{js},{js}]')
        A(f'v_pk_mov_b32 {vr(O + 4 * j + 2, 2)}, {vr(X + 8 + jb, 2)}, {vr(52, 2)} op_sel:[{js},0]')
        A(f'buffer_store_dwordx4 {vr(O + 4 * j, 4)}, v{vL16}, {srd(S_WS)}, s{sT0} offen offset:{1024 * j} sc1')


def epoch_store():
    t = TMP + 12
    A(f'''s_cmp_eq_u32 s{sME}, 0
    s_cselect_b32 s{sT0}, {WS_EPOCH}, {OOB}
    v_mov_b32 v{t}, s{sTAG}
    v_mov_b32 v{t + 1}, 0
    buffer_store_dword v{t}, v{t + 1}, {srd(S_WS)}, s{sT0} offen sc1''')


K3_MA = 100
K3_MB = 132
K3_X = 156
K3_GA = 176
K3_SB = 196
K3_CB = 216
K3_IN = 24
vK3A, vK3B = 236, 237
vXA, vXC = 22, 23
sK3 = sU + 8
RAW3 = 40


def k3_const():
    t = TMP
    A(f'''v_lshlrev_b32 v{t}, 2, v{vL31}
    v_add_u32 v{t}, s{sW}, v{t}
    v_cvt_f32_u32 v{t}, v{t}
    v_mul_f32 v{t}, {f2u(1.0 / 128)}, v{t}
    v_cvt_f32_u32 v{t + 8}, v{vH}
    v_mul_f32 v{t + 8}, 4.0, v{t + 8}
    v_mul_f32 v{t + 1}, v{t + 8}, v{t}''')
    for u in range(4):
        for jj in range(4):
            e = 2 + 3 * (jj & 1)
            fmamk(t + e, t, 8 * u + jj, t + 1)
            sincos(t + e, t + e + 1, t + e + 2)
            A(f'v_cvt_pk_bf16_f32 v{K3_MA + 4 * u + jj}, v{t + e + 1}, -v{t + e + 2}')
            A(f'v_cvt_pk_bf16_f32 v{K3_MA + 16 + 4 * u + jj}, v{t + e + 2}, v{t + e + 1}')
    A(f'''v_lshrrev_b32 v{t}, 3, v{vL31}
    v_cvt_f32_u32 v{t}, v{t}
    v_mul_f32 v{t}, {f2u(0.4)}, v{t}
    v_and_b32 v{t + 1}, 7, v{vL}
    v_cvt_f32_u32 v{t + 1}, v{t + 1}
    v_mul_f32 v{t + 1}, {f2u(0.125)}, v{t + 1}
    v_mul_f32 v{t + 9}, v{t + 8}, v{t + 1}''')
    for jj in range(4):
        fmamk(t + 10, t + 1, jj, t + 9)
        for tau in range(3):
            fmamk(t + 2, t, tau, t + 10)
            sincos(t + 2, t + 3, t + 4)
            if tau:
                A(f'v_add_f32 v{t + 5}, {f2u(1.6 * tau)}, v{t + 10}')
                sincos(t + 5, t + 6, t + 7)
            A(f'v_cvt_pk_bf16_f32 v{K3_MB + 4 * tau + jj}, v{t + 3}, -v{t + 4}')
            if tau:
                A(f'v_cvt_pk_bf16_f32 v{K3_MB + 12 + 4 * tau + jj}, v{t + 6}, -v{t + 7}')
            else:
                A(f'v_mov_b32 v{K3_MB + 12 + jj}, v{K3_MB + jj}')


def k3_loads():
    s = ''
    for m in range(4):
        s += f'buffer_load_dwordx4 {vr(K3_IN + 4 * m, 4)}, v{vK3A + (m >> 1)}, {srd(S_WS)}, s{sK3 + m} offen sc1\n'
    return s


def k3_issue():
    t = TMP
    A(f'''v_lshrrev_b32 v{t}, 5, v0
    v_sub_u32 v{t + 1}, 8, v{t}
    v_and_b32 v{t + 1}, 7, v{t + 1}
    v_lshrrev_b32 v{t + 2}, 2, v{vL31}
    v_lshl_add_u32 v{t}, v{t}, 5, v{t + 2}
    v_lshl_add_u32 v{t + 1}, v{t + 1}, 5, v{t + 2}
    v_mul_u32_u24 v{t}, {BS}, v{t}
    v_mul_u32_u24 v{t + 1}, {BS}, v{t + 1}
    v_and_b32 v{t + 2}, 3, v{vL}
    v_lshl_add_u32 v{vK3A}, v{t + 2}, 4, v{t}
    v_lshl_add_u32 v{vK3B}, v{t + 2}, 4, v{t + 1}
    s_lshl_b32 s{sT0}, s{sME}, 6
    s_add_u32 s{sK3}, s{sT0}, {WS_TP}''')
    for m in range(1, 4):
        A(f's_add_u32 s{sK3 + m}, s{sK3}, {8 * m * BS}')
    A(k3_loads())


sX3 = sU + 12


def k3_side_issue(R):
    t = TMP + 10
    A(f'''s_lshl_b32 s{sT0}, s{sW}, 9
    s_add_u32 s{sT0}, s{sT0}, s{sME}
    s_mul_i32 s{sX3}, s{sT0}, 1280
    v_mul_u32_u24 v{t}, {256 * 1280}, v{vH}
    v_lshl_add_u32 v{vXA}, v{vL31}, 4, v{t}
    v_lshl_add_u32 v{vXC}, v{vL31}, 3, v{t}
    buffer_load_dwordx4 {vr(R, 4)}, v{vXA}, {srd(S_X)}, s{sX3} offen
    buffer_load_dwordx4 {vr(R + 4, 4)}, v{vXA}, {srd(S_X)}, s{sX3} offen offset:512
    buffer_load_dwordx2 {vr(R + 8, 2)}, v{vXC}, {srd(S_X)}, s{sX3} offen offset:1024
    v_lshlrev_b32 v{t}, 5, v{vL31}
    v_lshlrev_b32 v{t + 1}, 4, v{vL31}''')
    for v in range(3):
        A(f's_mov_b32 s{sT0}, {WS_MOD + (2 + v) * 2560}')
        for k in range(4):
            A(f'buffer_load_dwordx2 {vr(R + 10 + 10 * v + 2 * k, 2)}, v{t}, {srd(S_WS)}, s{sT0} offen offset:{1024 * (k >> 1) + 16 * (k & 1)} sc1')
        A(f'buffer_load_dwordx2 {vr(R + 10 + 10 * v + 8, 2)}, v{t + 1}, {srd(S_WS)}, s{sT0} offen offset:2048 sc1')


def k3_side_finish(R):
    for i, dst in enumerate((K3_X, K3_GA, K3_SB, K3_CB)):
        for k in range(10):
            unpack(dst + 2 * k, dst + 2 * k + 1, R + 10 * i + k)


def row_stats(b, t):
    A(f'v_pk_add_f32 {vr(t, 2)}, {vr(b, 2)}, {vr(b + 2, 2)}')
    A(f'v_pk_mul_f32 {vr(t + 2, 2)}, {vr(b, 2)}, {vr(b, 2)}')
    for k in range(1, 10):
        if k > 1:
            A(f'v_pk_add_f32 {vr(t, 2)}, {vr(t, 2)}, {vr(b + 2 * k, 2)}')
        A(f'v_pk_fma_f32 {vr(t + 2, 2)}, {vr(b + 2 * k, 2)}, {vr(b + 2 * k, 2)}, {vr(t + 2, 2)}')
    A(f'''v_add_f32 v{t}, v{t}, v{t + 1}
    v_add_f32 v{t + 2}, v{t + 2}, v{t + 3}
    v_permlane16_swap_b32 v{t}, v{t + 2}
    v_add_f32 v{t}, v{t}, v{t + 2}''')
    for r in (8, 4, 2, 1):
        A(f'v_add_f32_dpp v{t}, v{t}, v{t} row_ror:{r} row_mask:0xf bank_mask:0xf')
    A(f'''v_mul_f32 v{t + 1}, {f2u(1.0 / 640)}, v{t}
    v_mul_f32 v{t + 2}, {f2u(1.0 / 640)}, v{t}
    v_permlane16_swap_b32 v{t + 1}, v{t + 2}
    v_fma_f32 v{t}, -v{t + 1}, v{t + 1}, v{t + 2}
    v_max_f32 v{t}, 0, v{t}
    v_add_f32 v{t}, {f2u(1e-5)}, v{t}
    v_rsq_f32 v{t}, v{t}
    v_mul_f32 v{t + 1}, v{t + 1}, v{t}''')


def k3_main(after_poll):
    t = TMP
    WA = t
    A(f'v_lshrrev_b32 v{t + 3}, 5, v0')
    A(f'v_mul_u32_u24 v{t + 3}, 144, v{t + 3}')
    for c in range(3):
        A(f'''v_add_u32 v{WA + c}, {13 * c}, v{vL31}
        v_and_b32 v{WA + c}, 31, v{WA + c}
        v_lshl_add_u32 v{WA + c}, v{WA + c}, 2, v{t + 3}
        v_add_u32 v{WA + c}, {L_K3I + 8 * 144 * c}, v{WA + c}''')
    A(f'''s_mul_i32 s{sT0}, s{sW}, {24 * 144}
    s_add_u32 s{sT0}, s{sT0}, {L_K3I}
    v_mul_u32_u24 v{t + 3}, 144, v{vL31}
    v_lshl_add_u32 v{t + 3}, v{vH}, 4, v{t + 3}
    v_add_u32 v{t + 3}, s{sT0}, v{t + 3}''')
    YA = t + 4
    A(f'''v_lshl_add_u32 v{t + 9}, v{vL31}, 2, s{sW}
    v_mul_u32_u24 v{t + 10}, 3, v{t + 9}
    v_lshlrev_b32 v{t + 9}, 2, v{t + 9}
    v_mul_u32_u24 v{t + 11}, 5120, v{vH}
    v_add3_u32 v{t + 9}, v{t + 9}, v{t + 11}, 0
    v_add_u32 v{t + 9}, {L_Y}, v{t + 9}''')
    for a in range(5):
        A(f'v_add_u32 v{t + 11}, {2 * a}, v{t + 10}')
        mod5(t + 11, t + 11, t + 12)
        A(f'v_lshl_add_u32 v{YA + a}, v{t + 11}, 9, v{t + 9}')
    poll_check('tp', k3_loads(), tagcheck([K3_IN + 4 * m + 3 for m in range(4)]))
    stamp('Tp')
    Z = 40
    P = 48
    Q = 56
    for c in range(3):
        if c == 0:
            src = [K3_IN + 4 * k for k in range(4)]
        else:
            r0 = 1 if c == 1 else 3
            for k in range(4):
                A(f'v_cndmask_b32 v{Q + k}, v{K3_IN + 4 * ((k + r0) % 4) + c}, v{K3_IN + 4 * ((k + r0 + 1) % 4) + c}, {sr(sM1 if c == 1 else sM2, 2)}')
            src = [Q + k for k in range(4)]
        z = Z + 20 * (c & 1)
        for k in range(4):
            unpack(z + 2 * k, z + 2 * k + 1, src[k])
        A(f'''v_pk_add_f32 {vr(P, 2)}, {vr(z, 2)}, {vr(z + 4, 2)}
        v_pk_add_f32 {vr(P + 2, 2)}, {vr(z, 2)}, {vr(z + 4, 2)} neg_lo:[0,1] neg_hi:[0,1]
        v_pk_add_f32 {vr(P + 4, 2)}, {vr(z + 2, 2)}, {vr(z + 6, 2)}
        v_pk_add_f32 {vr(P + 6, 2)}, {vr(z + 2, 2)}, {vr(z + 6, 2)} neg_lo:[0,1] neg_hi:[0,1]
        v_pk_add_f32 {vr(z, 2)}, {vr(P, 2)}, {vr(P + 4, 2)}
        v_pk_add_f32 {vr(z + 4, 2)}, {vr(P, 2)}, {vr(P + 4, 2)} neg_lo:[0,1] neg_hi:[0,1]
        v_pk_add_f32 {vr(z + 2, 2)}, {vr(P + 2, 2)}, {vr(P + 6, 2)} op_sel:[0,1] op_sel_hi:[1,0] neg_lo:[0,1]
        v_pk_add_f32 {vr(z + 6, 2)}, {vr(P + 2, 2)}, {vr(P + 6, 2)} op_sel:[0,1] op_sel_hi:[1,0] neg_hi:[0,1]''')
        for k in range(4):
            A(f'v_cvt_pk_bf16_f32 v{z + 2 * k}, v{z + 2 * k}, v{z + 2 * k + 1}')
            A(f'ds_write_b32 v{WA + c}, v{z + 2 * k} offset:{24 * 144 * k}')
    A('''s_waitcnt lgkmcnt(0)
    s_barrier''')
    OPA = 24
    DRE, DIM = 40, 56
    for u in range(4):
        A(f'ds_read_b128 {vr(OPA + 4 * u, 4)}, v{t + 3} offset:{32 * u}')
    after_poll()
    for u in range(4):
        A(f'v_mfma_f32_32x32x16_bf16 {vr(DRE, 16)}, {vr(OPA + 4 * u, 4)}, {vr(K3_MA + 4 * u, 4)}, {vr(DRE, 16) if u else 0}')
        A(f'v_mfma_f32_32x32x16_bf16 {vr(DIM, 16)}, {vr(OPA + 4 * u, 4)}, {vr(K3_MA + 16 + 4 * u, 4)}, {vr(DIM, 16) if u else 0}')
    OPB = 72
    E0, E1 = 100, 116
    for tau in range(3):
        for jj in range(4):
            A(f'v_cvt_pk_bf16_f32 v{OPB + 4 * tau + jj}, v{DRE + 4 * tau + jj}, v{DIM + 4 * tau + jj}')
        A(f'v_mfma_f32_32x32x16_bf16 {vr(E0, 16)}, {vr(K3_MB + 4 * tau, 4)}, {vr(OPB + 4 * tau, 4)}, {vr(E0, 16) if tau else 0}')
        A(f'v_mfma_f32_32x32x16_bf16 {vr(E1, 16)}, {vr(K3_MB + 12 + 4 * tau, 4)}, {vr(OPB + 4 * tau, 4)}, {vr(E1, 16) if tau else 0}')
    A(f'''s_mul_i32 s{sT0}, s{sW}, 2560
    s_add_u32 s{sT0}, s{sT0}, {L_Y}
    v_lshl_add_u32 v{t}, v{vL31}, 5, s{sT0}
    v_lshl_add_u32 v{t + 1}, v{vL31}, 4, s{sT0}
    v_mov_b32 v{t + 2}, 0x01000c0c
    v_mov_b32 v{t + 3}, 0x03020c0c
    v_cmp_eq_u32 vcc, 1, v{vH}
    v_cndmask_b32 v{t + 2}, v{t + 2}, v{t + 3}, vcc''')
    for a in range(5):
        e = E0 + 4 * a
        A(f'v_cvt_pk_bf16_f32 v{24 + 2 * a}, v{e}, v{e + 1}')
        A(f'v_cvt_pk_bf16_f32 v{25 + 2 * a}, v{e + 2}, v{e + 3}')
        A(f'ds_write2st64_b32 v{YA + a}, v{24 + 2 * a}, v{25 + 2 * a} offset0:0 offset1:10')
    A('''s_waitcnt lgkmcnt(0)
    s_barrier''')
    Y = 40
    for k in range(4):
        A(f'ds_read_b128 {vr(Y + 4 * k, 4)}, v{t} offset:{1024 * (k >> 1) + 16 * (k & 1)}')
    A(f'ds_read_b128 {vr(Y + 16, 4)}, v{t + 1} offset:2048')
    A(f'''s_mul_i32 s{sT0}, s{sME}, 10240
    s_mul_i32 s{sT1}, s{sW}, 2560
    s_add_u32 s{sT1}, s{sT1}, s{sT0}
    s_add_u32 s{sT1}, s{sT1}, {WS_X1}
    s_add_u32 s{sT0}, s{sT0}, {WS_Y2}
    v_mul_u32_u24 v{t + 5}, 1280, v{vH}
    v_lshl_add_u32 v{t + 4}, v{vL31}, 4, v{t + 5}
    v_lshl_add_u32 v{t + 5}, v{vL31}, 3, v{t + 5}''')
    PK = 24
    for k in range(10):
        A(f'v_perm_b32 v{Y + 2 * k}, v{Y + 2 * k}, v{Y + 2 * k}, v{t + 2}')
        A(f'v_perm_b32 v{Y + 2 * k + 1}, v{Y + 2 * k + 1}, v{Y + 2 * k + 1}, v{t + 2}')
        A(f'v_pk_fma_f32 {vr(Y + 2 * k, 2)}, {vr(Y + 2 * k, 2)}, {vr(K3_GA + 2 * k, 2)}, {vr(K3_X + 2 * k, 2)}')
        A(f'v_cvt_pk_bf16_f32 v{PK + k}, v{Y + 2 * k}, v{Y + 2 * k + 1}')
    A(f'''buffer_store_dwordx4 {vr(PK, 4)}, v{t + 4}, {srd(S_WS)}, s{sT1} offen sc1
    buffer_store_dwordx4 {vr(PK + 4, 4)}, v{t + 4}, {srd(S_WS)}, s{sT1} offen offset:512 sc1
    buffer_store_dwordx2 {vr(PK + 8, 2)}, v{t + 5}, {srd(S_WS)}, s{sT1} offen offset:1024 sc1''')
    ST = t + 8
    row_stats(Y, ST)
    nm = 'op_sel:[0,0,1] op_sel_hi:[1,0,1] neg_lo:[0,0,1] neg_hi:[0,0,1]'
    for k in range(10):
        A(f'v_pk_fma_f32 {vr(Y + 2 * k, 2)}, {vr(Y + 2 * k, 2)}, {vr(ST, 2)}, {vr(ST, 2)} {nm}')
        A(f'v_pk_fma_f32 {vr(Y + 2 * k, 2)}, {vr(Y + 2 * k, 2)}, {vr(K3_CB + 2 * k, 2)}, {vr(K3_SB + 2 * k, 2)}')
    row_stats(Y, ST)
    A(f'''s_lshl_b32 s{sT2}, s{sW}, 1
    v_add_u32 v{t}, s{sT2}, v{vH}
    v_xor_b32 v{t + 1}, v{t}, v{vL31}
    v_and_b32 v{t + 1}, 7, v{t + 1}
    v_lshlrev_b32 v{t + 1}, 4, v{t + 1}
    v_lshl_add_u32 v{t + 1}, v{vL31}, 7, v{t + 1}
    v_add_u32 v{t + 1}, {L_Y2}, v{t + 1}
    v_lshrrev_b32 v{t + 2}, 1, v{vL31}
    v_xor_b32 v{t + 3}, v{t}, v{t + 2}
    v_and_b32 v{t + 3}, 7, v{t + 3}
    v_lshlrev_b32 v{t + 3}, 4, v{t + 3}
    v_lshl_add_u32 v{t + 3}, v{t + 2}, 7, v{t + 3}
    v_and_b32 v{t + 2}, 1, v{vL}
    v_lshl_add_u32 v{t + 3}, v{t + 2}, 3, v{t + 3}
    v_add_u32 v{t + 3}, {L_Y2 + 64 * 128}, v{t + 3}
    v_lshrrev_b32 v{t + 2}, 3, v0
    v_xor_b32 v{t + 4}, v{t + 2}, v0
    v_and_b32 v{t + 4}, 7, v{t + 4}
    v_lshlrev_b32 v{t + 4}, 4, v{t + 4}
    v_lshl_add_u32 v{t + 4}, v{t + 2}, 7, v{t + 4}
    v_add_u32 v{t + 4}, {L_Y2}, v{t + 4}
    v_cmp_gt_u32 vcc, 128, v0
    v_mov_b32 v{t + 5}, {OOB}
    v_cndmask_b32 v{t + 5}, v{t + 5}, v{vT16}, vcc''')
    PK = 60
    for k in range(10):
        A(f'v_pk_fma_f32 {vr(Y + 2 * k, 2)}, {vr(Y + 2 * k, 2)}, {vr(ST, 2)}, {vr(ST, 2)} {nm}')
        A(f'v_cvt_pk_bf16_f32 v{PK + k}, v{Y + 2 * k}, v{Y + 2 * k + 1}')
        if k == 3:
            A(f'ds_write_b128 v{t + 1}, {vr(PK, 4)}')
        if k == 7:
            A(f'ds_write_b128 v{t + 1}, {vr(PK + 4, 4)} offset:4096')
    A(f'''ds_write_b64 v{t + 3}, {vr(PK + 8, 2)}
    s_add_u32 s{sT1}, s{sT0}, 4096
    s_add_u32 s{sT2}, s{sT0}, 8192
    s_waitcnt vmcnt(0) lgkmcnt(0)
    s_barrier''')
    for i in range(3):
        A(f'ds_read_b128 {vr(24 + 4 * i, 4)}, v{t + 4} offset:{4096 * i}')
    for i in range(3):
        A(f'buffer_store_dwordx4 {vr(24 + 4 * i, 4)}, v{vT16 if i < 2 else t + 5}, {srd(S_WS)}, s{sT0 + i} offen sc1')


G1_A = 24
G1_ACC = 184
G1_B = 232
vG1A = 20
sG1 = sU + 13
B1RAW = 24


def b1_issue():
    t = TMP + 14
    A(f'''s_mul_i32 s{sT0}, s{sJ}, 192
    v_lshlrev_b32 v{t}, 3, v{vH}''')
    for k in range(12):
        A(f'buffer_load_dwordx2 {vr(B1RAW + 12 + 2 * k, 2)}, v{t}, {srd(S_B1)}, s{sT0} offen offset:{16 * k}')


def b1_finish():
    for k in range(24):
        unpack(G1_ACC + 2 * k, G1_ACC + 2 * k + 1, B1RAW + 12 + k)


def g1_load(i):
    return f'buffer_load_dwordx4 {vr(G1_A + 4 * i, 4)}, v{vG1A}, {srd(S_WS)}, s{sG1 + i // 16} offen offset:{256 * (i % 16)} sc1\n'


def poischeck(regs, tmp):
    out = []
    for n, r in enumerate(regs):
        if n == 0:
            out.append(f'v_max3_u32 v{tmp}, v{r}, v{r + 1}, v{r + 2}')
            out.append(f'v_max_u32 v{tmp}, v{tmp}, v{r + 3}')
        else:
            out.append(f'v_max3_u32 v{tmp}, v{tmp}, v{r}, v{r + 1}')
            out.append(f'v_max3_u32 v{tmp}, v{tmp}, v{r + 2}, v{r + 3}')
    out.append(f'v_cmp_eq_u32 vcc, -1, v{tmp}')
    return out


G1_GROUPS = [(0, 4), (4, 10), (10, 20), (20, 30), (30, 40)]
G1_FIRST = 12


def g1_issue():
    t = TMP
    A(f'''v_lshrrev_b32 v{t}, 3, v{vL31}
    v_mul_u32_u24 v{t}, 10240, v{t}
    v_lshl_add_u32 v{t}, v{vH}, 7, v{t}
    v_and_b32 v{t + 1}, 7, v{vL}
    v_lshl_add_u32 v{vG1A}, v{t + 1}, 4, v{t}
    s_lshl_b32 s{sT0}, s{sCL}, 2
    s_add_u32 s{sT0}, s{sT0}, s{sW}
    s_mul_i32 s{sT0}, s{sT0}, 40960
    s_add_u32 s{sG1}, s{sT0}, {WS_Y2}
    s_add_u32 s{sG1 + 1}, s{sG1}, 4096
    s_add_u32 s{sG1 + 2}, s{sG1}, 8192''')
    for i in range(G1_FIRST):
        A(g1_load(i))


def g1_main():
    t = TMP
    A(f'''v_lshrrev_b32 v{t}, 2, v{vL15}
    v_lshl_add_u32 v{t}, v{vH}, 3, v{t}
    v_mul_u32_u24 v{t}, 192, v{t}
    v_and_b32 v{t + 1}, 1, v{vQ}
    v_lshl_add_u32 v{t}, v{t + 1}, 5, v{t}
    v_and_b32 v{t + 1}, 3, v{vL}
    v_lshl_add_u32 v{t}, v{t + 1}, 3, v{t}
    v_add_u32 v{t + 1}, {20 * 3072}, v{t}''')
    NS = 5

    def rd(n):
        ks, tl = divmod(n, 3)
        ad = t + ks // 20
        off = (ks % 20) * 3072 + 64 * tl
        s = G1_B + 4 * (n % NS)
        return [f'ds_read_b64_tr_b16 {vr(s, 2)}, v{ad} offset:{off}', f'ds_read_b64_tr_b16 {vr(s + 2, 2)}, v{ad} offset:{off + 768}']
    PRE = 4
    for n in range(PRE):
        for x in rd(n):
            A(x)
    for gi, (a, b) in enumerate(G1_GROUPS):
        chk = poischeck([G1_A + 4 * i for i in range(a, b)], t + 2)
        poll_check(f'g1_{gi}', ''.join(g1_load(i) for i in range(a, b)), '\n'.join(chk))
        if gi == 0:
            stamp('y2')
            for i in range(G1_FIRST, 40):
                A(g1_load(i))
        for ks in range(a, b):
            for tl in range(3):
                n = 3 * ks + tl
                A(f'v_mfma_f32_32x32x16_bf16 {vr(G1_ACC + 16 * tl, 16)}, {vr(G1_B + 4 * (n % NS), 4)}, {vr(G1_A + 4 * ks, 4)}, {vr(G1_ACC + 16 * tl, 16)}')
                if n + PRE < 120:
                    for x in rd(n + PRE):
                        A(x)
    A('s_barrier')
    stamp('g1')


def gelu_store():
    t = TMP
    A(f'''v_lshrrev_b32 v{t}, 4, v{vL31}
    v_mul_u32_u24 v{t}, {48 * 1024}, v{t}
    v_lshl_add_u32 v{t}, v{vH}, 8, v{t}
    v_lshl_add_u32 v{t}, v{vL15}, 4, v{t}
    s_mul_i32 s{sT0}, s{sCL}, 393216
    s_mul_i32 s{sT1}, s{sW}, {96 * 1024}
    s_add_u32 s{sT0}, s{sT0}, s{sT1}
    s_mul_i32 s{sT1}, s{sJ}, 3072
    s_add_u32 s{sT0}, s{sT0}, s{sT1}
    s_add_u32 s{sT0}, s{sT0}, {WS_H}''')
    k0 = -2.0 * 0.7978845608028654 * 1.4426950408889634
    A(f'''v_mov_b32 v{t + 2}, {f2u(k0 * 0.044715)}
    v_mov_b32 v{t + 3}, {f2u(k0)}''')
    E = 24
    for tl in range(3):
        for g in range(2):
            regs = [G1_ACC + 16 * tl + 4 * g, G1_ACC + 16 * tl + 4 * g + 2, G1_ACC + 16 * tl + 8 + 4 * g, G1_ACC + 16 * tl + 8 + 4 * g + 2]
            e = E + 12 * ((2 * tl + g) & 1)
            for k, r in enumerate(regs):
                A(f'v_pk_mul_f32 {vr(e + 2 * k, 2)}, {vr(r, 2)}, {vr(r, 2)}')
            for k, r in enumerate(regs):
                A(f'v_pk_fma_f32 {vr(e + 2 * k, 2)}, {vr(e + 2 * k, 2)}, {vr(t + 2, 2)}, {vr(t + 2, 2)} op_sel:[0,0,1] op_sel_hi:[1,0,1]')
            for k, r in enumerate(regs):
                A(f'v_pk_mul_f32 {vr(e + 2 * k, 2)}, {vr(e + 2 * k, 2)}, {vr(r, 2)}')
            for k in range(8):
                A(f'v_exp_f32 v{e + k}, v{e + k}')
            for k in range(4):
                A(f'v_pk_add_f32 {vr(e + 2 * k, 2)}, {vr(e + 2 * k, 2)}, 1.0 op_sel_hi:[1,0]')
            for k in range(8):
                A(f'v_rcp_f32 v{e + k}, v{e + k}')
            for k, r in enumerate(regs):
                A(f'v_pk_mul_f32 {vr(e + 2 * k, 2)}, {vr(e + 2 * k, 2)}, {vr(r, 2)}')
            for k in range(4):
                A(f'v_cvt_pk_bf16_f32 v{e + 8 + k}, v{e + 2 * k}, v{e + 2 * k + 1}')
            A(f'buffer_store_dwordx4 {vr(e + 8, 4)}, v{t}, {srd(S_WS)}, s{sT0} offen offset:{1024 * tl + 512 * g} sc1')


G2_H = 24
G2_ACC = 168
G2_BASE = 208
G2_GB = 228
sG2 = sU + 16
vOA, vOC = 248, 249
RS = 336
PS = 16 * RS


def fin_issue(R):
    t = TMP
    A(f'''v_lshrrev_b32 v{t}, 2, v{vL}
    v_and_b32 v{t + 1}, 3, v{vL}
    v_mul_u32_u24 v{t + 2}, 1280, v{t}
    v_lshl_add_u32 v{t + 3}, v{t + 1}, 4, v{t + 2}
    v_lshl_add_u32 v{t + 4}, v{t + 1}, 3, v{t + 2}
    s_lshr_b32 s{sT0}, s{sJ}, 3
    s_lshl_b32 s{sT0}, s{sT0}, 2
    s_add_u32 s{sT0}, s{sT0}, s{sW}
    s_lshl_b32 s{sT1}, s{sCL}, 3
    s_add_u32 s{sT0}, s{sT0}, s{sT1}
    s_and_b32 s{sT2}, s{sJ}, 7
    s_mul_i32 s{sT3}, s{sT2}, 160
    s_mul_i32 s{sT1}, s{sT0}, {16 * 1280}
    s_add_u32 s{sT1}, s{sT1}, s{sT3}
    s_add_u32 s{sT1}, s{sT1}, {WS_X1}
    buffer_load_dwordx4 {vr(R, 4)}, v{t + 3}, {srd(S_WS)}, s{sT1} offen sc1
    buffer_load_dwordx4 {vr(R + 4, 4)}, v{t + 3}, {srd(S_WS)}, s{sT1} offen offset:64 sc1
    buffer_load_dwordx2 {vr(R + 8, 2)}, v{t + 4}, {srd(S_WS)}, s{sT1} offen offset:128 sc1
    v_lshlrev_b32 v{t + 5}, 4, v{t + 1}
    v_lshlrev_b32 v{t + 6}, 3, v{t + 1}
    v_lshlrev_b32 v{t + 7}, 5, v{t + 1}
    buffer_load_dwordx4 {vr(R + 10, 4)}, v{t + 5}, {srd(S_B2)}, s{sT3} offen
    buffer_load_dwordx4 {vr(R + 14, 4)}, v{t + 5}, {srd(S_B2)}, s{sT3} offen offset:64
    buffer_load_dwordx2 {vr(R + 18, 2)}, v{t + 6}, {srd(S_B2)}, s{sT3} offen offset:128
    s_mul_i32 s{sT4}, s{sT2}, 320
    s_add_u32 s{sT4}, s{sT4}, {WS_MOD + 5 * 2560}''')
    for k in range(4):
        A(f'buffer_load_dwordx2 {vr(R + 20 + 2 * k, 2)}, v{t + 7}, {srd(S_WS)}, s{sT4} offen offset:{128 * (k >> 1) + 16 * (k & 1)} sc1')
    A(f'buffer_load_dwordx2 {vr(R + 28, 2)}, v{t + 5}, {srd(S_WS)}, s{sT4} offen offset:256 sc1')
    A(f'''v_and_b32 v{t + 2}, 7, v{t}
    v_lshlrev_b32 v{t + 2}, 8, v{t + 2}
    v_lshrrev_b32 v{t}, 3, v{t}
    s_lshl_b32 s{sT0}, s{sT0}, 1
    v_add3_u32 v{t}, v{t}, v{t + 2}, s{sT0}
    v_mul_u32_u24 v{t}, 1280, v{t}
    v_add_u32 v{t}, s{sT3}, v{t}
    v_add_u32 v{vOA}, v{t}, v{t + 5}
    v_add_u32 v{vOC}, v{t}, v{t + 6}''')


def fin_finish(R):
    t = TMP
    for k in range(10):
        unpack(G2_GB + 2 * k, G2_GB + 2 * k + 1, R + 20 + k)
        unpack(G2_BASE + 2 * k, G2_BASE + 2 * k + 1, R + k)
        unpack(t, t + 1, R + 10 + k)
        A(f'v_pk_fma_f32 {vr(G2_BASE + 2 * k, 2)}, {vr(G2_GB + 2 * k, 2)}, {vr(t, 2)}, {vr(G2_BASE + 2 * k, 2)}')


def g2_load(blk, kl):
    r = G2_H + 48 * (blk % 3) + 4 * kl
    so = sG2 + blk
    return f'buffer_load_dwordx4 {vr(r, 4)}, v{[vL16, 21, 22][kl // 4]}, {srd(S_WS)}, s{so} offen offset:{1024 * (kl % 4)} sc1\n'


def g2_issue():
    A(f'''v_add_u32 v21, 4096, v{vL16}
    v_add_u32 v22, 8192, v{vL16}
    s_mul_i32 s{sT0}, s{sCL}, 393216
    s_lshr_b32 s{sT1}, s{sJ}, 3
    s_mul_i32 s{sT1}, s{sT1}, {4 * 48 * 1024}
    s_add_u32 s{sT0}, s{sT0}, s{sT1}
    s_mul_i32 s{sT1}, s{sW}, {12 * 1024}
    s_add_u32 s{sT0}, s{sT0}, s{sT1}
    s_add_u32 s{sT0}, s{sT0}, {WS_H}''')
    for blk in range(4):
        A(f'''s_add_u32 s{sT1}, s{sW}, {blk + 1}
        s_and_b32 s{sT1}, s{sT1}, 3
        s_mul_i32 s{sT1}, s{sT1}, {48 * 1024}
        s_add_u32 s{sG2 + blk}, s{sT0}, s{sT1}''')
    for kl in range(12):
        A(g2_load(0, kl))


def g2_main():
    t = TMP
    A(f'''v_mul_u32_u24 v{t}, {RS}, v{vL15}
    v_lshl_add_u32 v{t}, v{vQ}, 4, v{t}
    s_mul_i32 s{sT0}, s{sW}, {PS}
    v_add_u32 v{t}, s{sT0}, v{t}
    v_lshrrev_b32 v{t + 5}, 2, v{vL}
    v_mul_u32_u24 v{t + 5}, {RS}, v{t + 5}
    s_mul_i32 s{sT0}, s{sW}, {4 * PS}
    v_add_u32 v{t + 5}, s{sT0}, v{t + 5}
    v_and_b32 v{t + 7}, 3, v{vL}
    v_lshl_add_u32 v{t + 6}, v{t + 7}, 4, v{t + 5}
    v_lshl_add_u32 v{t + 5}, v{t + 7}, 5, v{t + 5}''')
    for blk in range(4):
        A(f'''s_add_u32 s{sT1}, s{sW}, {blk + 1}
        s_and_b32 s{sT1}, s{sT1}, 3
        s_mul_i32 s{sT1}, s{sT1}, {4 * PS}
        v_add_u32 v{t + 1 + blk}, s{sT1}, v{t}''')
    groups = {0: [(0, 3), (3, 12)], 1: [(0, 12)], 2: [(0, 12)], 3: [(0, 12)]}

    def rdp(dst, src_off):
        out = []
        for k in range(4):
            out.append(f'ds_read_b128 {vr(dst + 4 * k, 4)}, v{t + 5} offset:{src_off + 128 * (k >> 1) + 16 * (k & 1)}')
        out.append(f'ds_read_b128 {vr(dst + 16, 4)}, v{t + 6} offset:{src_off + 256}')
        return out
    for blk in range(4):
        acc = G2_ACC + 20 * (blk & 1)
        hb = G2_H + 48 * (blk % 3)
        side = []
        if blk >= 1:
            pa = G2_ACC + 20 * ((blk - 1) & 1)
            side = [f'ds_write_b128 v{t + blk}, {vr(pa + 4 * nt, 4)} offset:{64 * nt}' for nt in range(5)]
        for gi, (a, b) in enumerate(groups[blk]):
            chk = poischeck([hb + 4 * i for i in range(a, b)], t + 8)
            poll_check(f'g2_{blk}_{gi}', ''.join(g2_load(blk, i) for i in range(a, b)), '\n'.join(chk))
            if blk == 0 and gi == 0:
                stamp('h')
                for b2 in (1, 2):
                    for kl in range(12):
                        A(g2_load(b2, kl))
            for kl in range(a, b):
                for nt in range(5):
                    A(f'v_mfma_f32_16x16x32_bf16 {vr(acc + 4 * nt, 4)}, {ar((kl * 5 + nt) * 4, 4)}, {vr(hb + 4 * kl, 4)}, {vr(acc + 4 * nt, 4) if kl else 0}')
                    if kl >= 2 and side:
                        A(side.pop(0))
                if blk == 1:
                    A(g2_load(3, kl))
    stamp('g2')
    pa = G2_ACC + 20
    for nt in range(5):
        A(f'ds_write_b128 v{t + 4}, {vr(pa + 4 * nt, 4)} offset:{64 * nt}')
    A('''s_waitcnt lgkmcnt(0)
    s_barrier''')
    R = 24
    for src in range(4):
        for x in rdp(R + 20 * src, src * PS):
            A(x)
    for k in range(10):
        A(f'v_pk_add_f32 {vr(R + 2 * k, 2)}, {vr(R + 2 * k, 2)}, {vr(R + 20 + 2 * k, 2)}')
    for k in range(10):
        A(f'v_pk_add_f32 {vr(R + 2 * k, 2)}, {vr(R + 2 * k, 2)}, {vr(R + 40 + 2 * k, 2)}')
    for k in range(10):
        A(f'v_pk_add_f32 {vr(R + 2 * k, 2)}, {vr(R + 2 * k, 2)}, {vr(R + 60 + 2 * k, 2)}')
        A(f'v_pk_fma_f32 {vr(R + 2 * k, 2)}, {vr(R + 2 * k, 2)}, {vr(G2_GB + 2 * k, 2)}, {vr(G2_BASE + 2 * k, 2)}')
        A(f'v_cvt_pk_bf16_f32 v{R + 20 + k}, v{R + 2 * k}, v{R + 2 * k + 1}')
    A(f'''buffer_store_dwordx4 {vr(R + 20, 4)}, v{vOA}, {srd(S_OUT)}, 0 offen
    buffer_store_dwordx4 {vr(R + 24, 4)}, v{vOA}, {srd(S_OUT)}, 0 offen offset:64
    buffer_store_dwordx2 {vr(R + 28, 2)}, v{vOC}, {srd(S_OUT)}, 0 offen offset:128''')


def program():
    setup()
    if OPT['stamps']:
        A('v_mov_b32 v255, 0')
    stamp('start')
    gemv_issue()
    x1_issue()
    w2_fmt_issue()
    code_prefetch(48 * 1024)
    filt_issue()
    pois_init()
    k1_const_a()
    stamp('constA')
    gemv_compute(9)
    stamp('gemv')
    w2_fmt_finish()
    fill_region(WS_T, 16384)
    fill_region(WS_TP, 16384)
    fill_region(WS_Y2, 10240)
    fill_region(WS_H, 24576)
    w1_dma()
    ln1()
    k1_addr()
    k1_const_b()
    filt_finish()
    stamp('pre')
    mod1_issue()
    k1_main()
    stamp('k1')
    k2_const()
    k2_issue()

    SIDE = 152

    def after_t2():
        epoch_store()
        k3_side_issue(SIDE)
        w2_load(0, 5)
    k2_main(after_t2)
    stamp('k2')
    for k in range(0, 40, 2):
        A(f'v_pk_mov_b32 {vr(60 + k, 2)}, {vr(SIDE + k, 2)}, {vr(SIDE + k, 2)} op_sel:[0,1]')
    k3_side_finish(60)
    k3_const()
    k3_issue()
    k3_main(lambda: w2_load(5, 12))
    stamp('k3')
    b1_issue()
    b1_finish()
    g1_issue()
    g1_main()
    fin_issue(60)
    gelu_store()
    stamp('gelu')
    fin_finish(60)
    g2_issue()
    g2_main()
    stamp('end')
    if OPT['stamps']:
        A(f'''s_lshl_b32 s{sT0}, s{sME}, 10
        s_lshl_b32 s{sT1}, s{sW}, 8
        s_add_u32 s{sT0}, s{sT0}, s{sT1}
        s_add_u32 s{sT0}, s{sT0}, {WS_STAMP}
        v_writelane_b32 v255, s{sCNT}, 63
        v_lshlrev_b32 v{TMP}, 2, v{vL}
        buffer_store_dword v255, v{TMP}, {srd(S_WS)}, s{sT0} offen''')
    A('L_end:')
    A('s_endpgm')


program()
hdr = open('cdna_kernels/%s.s.ref' % NAME).read().split('; Override launch')[0]
out = hdr
out += f'; @launch grid=(256,1,1) block=(256,1,1) lds={LDS_SIZE}\n'
out += f'''.amdgcn_target "amdgcn-amd-amdhsa--gfx950"
.text
.globl {NAME}_kernel
.p2align 8
.type {NAME}_kernel,@function
{NAME}_kernel:
'''
out += A.text()
out += RETRY.text()
out += f'''L_last:
    s_endpgm
.section .rodata,"a"
.p2align 6
.amdhsa_kernel {NAME}_kernel
  .amdhsa_next_free_vgpr 512
  .amdhsa_next_free_sgpr 102
  .amdhsa_accum_offset 256
  .amdhsa_group_segment_fixed_size 0
  .amdhsa_kernarg_size 104
  .amdhsa_user_sgpr_count 2
  .amdhsa_user_sgpr_kernarg_segment_ptr 1
  .amdhsa_system_sgpr_workgroup_id_x 1
.end_amdhsa_kernel
'''
open(sys.argv[1], 'w').write(out)
if OPT['stamps']:
    open(sys.argv[1] + '.stamps', 'w').write('\n'.join(STAMPS))
```

```python
import sys, os
sys.path.insert(0, os.path.dirname(os.path.abspath(__file__)))
from asmlib import Asm, vr, ar, sr, f2u

NAME = 'adaLN_cond__spectral_gfnet__mixer_channel_mlp__prompt'
OPT = dict(stamps=0, stop=99, map=0)
for a in sys.argv[2:]:
    k, v = a.split('=')
    OPT[k] = int(v)

WS_EPOCH = 0x0
WS_MOD = 0x1000
BS = 16384 + 256
WS_T = 0x100000
WS_TP = 0x520000
WS_Y2 = 0x940000
WS_X1 = 0xBC0000
WS_H = 0xE40000
WS_W2P = 0x1440000
WS_STAMP = 0x1800000
WS_SIZE = 268435456
OOB = 0x7ff00000

BIG = 0
SCR = 122880
L_X1E = SCR
L_H1 = SCR + 24576
L_K2I = SCR + 24576
L_K2O = SCR
L_K3I = SCR + 24576
L_Y = SCR
L_Y2 = SCR + 24576
L_RED = SCR + 39680
L_W2S = SCR
LDS_SIZE = 163840

S_X, S_WR, S_WI, S_W1, S_B1, S_W2, S_B2, S_C, S_WM, S_OUT, S_WS = [4 + 4 * i for i in range(11)]
sME, sW, sTAG, sXC, sG, sK1, sCL, sJ = range(48, 56)
sT0, sT1, sT2, sT3, sT4, sT5, sT6, sT7 = range(56, 64)
sCNT = 96
sM1, sM2 = 64, 66
sU = 68
sSTAMP = 98

A = Asm()
RETRY = Asm()
nstamp = [0]


def srd(s):
    return sr(s, 4)


def stamp(name):
    if not OPT['stamps']:
        return
    i = nstamp[0]
    nstamp[0] += 1
    A(f'''s_memrealtime {sr(sSTAMP, 2)}
    s_memtime {sr(sSTAMP + 2, 2)}
    s_waitcnt lgkmcnt(0)
    v_writelane_b32 v255, s{sSTAMP}, {i}
    v_writelane_b32 v255, s{sSTAMP + 2}, {i + 32}''')
    STAMPS.append(name)


STAMPS = []


def poll_check(label, loads, bad_cmp):
    A(f'L_chk_{label}:')
    A(bad_cmp)
    A(f's_cbranch_vccnz L_retry_{label}')
    A(f'L_ok_{label}:')
    RETRY('.segment')
    RETRY(f'''L_retry_{label}:
    s_sub_u32 s{sCNT}, s{sCNT}, 1
    s_cmp_lt_i32 s{sCNT}, 0
    s_cbranch_scc1 L_ok_{label}
    s_waitcnt vmcnt(0) lgkmcnt(0)
    s_nop 15''')
    RETRY(loads)
    RETRY(f'''s_waitcnt vmcnt(0)
    s_branch L_chk_{label}''')


def sincos(ang, c, s):
    A(f'v_cos_f32 v{c}, v{ang}')
    A(f'v_sin_f32 v{s}, v{ang}')


def fmamk(d, a, k, b):
    if k == 0:
        A(f'v_mov_b32 v{d}, v{b}')
    elif k == 1:
        A(f'v_add_f32 v{d}, v{a}, v{b}')
    else:
        A(f'v_fmamk_f32 v{d}, v{a}, {f2u(k)}, v{b}')


def unpack(lo, hi, src):
    A(f'v_lshlrev_b32 v{lo}, 16, v{src}')
    A(f'v_and_b32 v{hi}, 0xffff0000, v{src}')


def mod5(d, src, tmp):
    A(f'v_mul_u32_u24 v{tmp}, 205, v{src}')
    A(f'v_lshrrev_b32 v{tmp}, 10, v{tmp}')
    A(f'v_mul_u32_u24 v{tmp}, 5, v{tmp}')
    A(f'v_sub_u32 v{d}, v{src}, v{tmp}')


vT, vL = 0, 1
vL31, vH = 2, 3
vL15, vQ = 4, 5
vL16 = 6
vT16 = 7
TMP = 8


def setup():
    A(f'''s_cmp_ge_u32 s2, 256
    s_cbranch_scc1 L_end
    s_load_dwordx16 s[64:79], s[0:1], 0
    s_load_dwordx8 s[80:87], s[0:1], 64
    s_load_dwordx2 s[88:89], s[0:1], 96
    {f's_and_b32 s{sXC}, s2, 7' if not OPT['map'] else f's_lshr_b32 s{sXC}, s2, 5'}
    {f's_lshr_b32 s{sG}, s2, 3' if not OPT['map'] else f's_and_b32 s{sG}, s2, 31'}
    s_lshl_b32 s{sME}, s{sXC}, 5
    s_or_b32 s{sME}, s{sME}, s{sG}
    s_lshr_b32 s{sCL}, s{sME}, 4
    s_and_b32 s{sJ}, s{sME}, 15
    s_mov_b32 s{sCNT}, 20000
    v_and_b32 v{vL}, 63, v0
    v_lshrrev_b32 v{TMP}, 6, v0
    v_and_b32 v{vL31}, 31, v0
    v_readfirstlane_b32 s{sW}, v{TMP}
    v_lshrrev_b32 v{vH}, 5, v{vL}
    v_and_b32 v{vL15}, 15, v0
    v_lshrrev_b32 v{vQ}, 4, v{vL}
    v_lshlrev_b32 v{vL16}, 4, v{vL}
    v_lshlrev_b32 v{vT16}, 4, v0''')
    A(f'''s_sub_u32 s{sT0}, 8, s{sXC}
    s_and_b32 s{sT0}, s{sT0}, 7
    s_cmp_lt_u32 s{sG}, 16
    s_cselect_b32 s{sK1}, s{sXC}, s{sT0}''')
    sizes = {S_X: 2621440, S_WR: 1314816, S_WI: 1314816, S_W1: 1966080, S_B1: 3072, S_W2: 1966080, S_B2: 1280,
             S_C: 1280, S_WM: 4915200, S_OUT: 2621440, S_WS: WS_SIZE}
    src = {S_X: 64, S_WR: 66, S_WI: 68, S_W1: 72, S_B1: 74, S_W2: 76, S_B2: 78, S_C: 80, S_WM: 82, S_OUT: 84, S_WS: 88}
    for s in sizes:
        A(f's_mov_b32 s{s + 2}, {sizes[s]}')
        A(f's_mov_b32 s{s + 3}, 0x00020000')
    A('s_waitcnt lgkmcnt(0)')
    A(f's_load_dword s{sTAG}, s[88:89], {WS_EPOCH}')
    for s in (S_C, S_WM, S_X, S_WS, S_W2, S_WR, S_WI, S_W1, S_B1, S_B2, S_OUT):
        A(f's_mov_b64 {sr(s, 2)}, {sr(src[s], 2)}')


G_C = 24
G_W = 32
G_ACC = 52
sCB = sU
sMODST = sU + 1


def gemv_issue():
    A(f'''s_lshr_b32 s{sT0}, s{sG}, 2
    s_lshl_b32 s{sT0}, s{sT0}, 3
    s_add_u32 s{sT0}, s{sT0}, s{sXC}
    s_lshl_b32 s{sT1}, s{sT0}, 2
    s_and_b32 s{sT2}, s{sG}, 3
    s_add_u32 s{sCB}, s{sT1}, s{sT2}
    s_lshl_b32 s{sMODST}, s{sCB}, 6
    s_add_u32 s{sMODST}, s{sMODST}, {WS_MOD}
    s_cmp_lt_u32 s{sT0}, 60
    s_cselect_b32 s{sCB}, s{sCB}, 0
    s_cselect_b32 s{sMODST}, s{sMODST}, {OOB}
    s_lshl_b32 s{sT1}, s{sCB}, 5
    v_lshrrev_b32 v{TMP}, 1, v0
    v_lshlrev_b32 v{TMP + 1}, 1, v{TMP}
    v_mul_u32_u24 v{TMP}, 7680, v{TMP}
    v_and_b32 v{TMP + 2}, 1, v0
    v_lshl_add_u32 v{TMP}, v{TMP + 2}, 4, v{TMP}''')
    for i in range(5):
        A(f'buffer_load_ushort v{G_C + i}, v{TMP + 1}, {srd(S_C)}, 0 offen offset:{256 * i}')
    for i in range(5):
        A(f'buffer_load_dwordx4 {vr(G_W + 4 * i, 4)}, v{TMP}, {srd(S_WM)}, s{sT1} offen')
        if i < 4:
            A(f's_add_u32 s{sT1}, s{sT1}, {128 * 7680}')


def gemv_compute(younger):
    t = TMP
    for i in range(5):
        A(f'v_lshlrev_b32 v{G_C + i}, 16, v{G_C + i}')
    for i in range(5):
        A(f'v_mul_f32 v{t + i}, {f2u(-1.4426950408889634)}, v{G_C + i}')
    for i in range(5):
        A(f'v_exp_f32 v{t + i}, v{t + i}')
    for i in range(5):
        A(f'v_add_f32 v{t + i}, 1.0, v{t + i}')
    for i in range(5):
        A(f'v_rcp_f32 v{t + i}, v{t + i}')
    for i in range(5):
        A(f'v_mul_f32 v{t + i}, v{G_C + i}, v{t + i}')
    for i in range(5):
        A(f'v_cvt_pk_bf16_f32 v{t + i}, v{t + i}, v{t + i}')
    for i in range(5):
        A(f'v_lshlrev_b32 v{G_C + i}, 16, v{t + i}')
    for i in range(5):
        sp = (G_C + i) & ~1
        sel = (G_C + i) & 1
        for k in range(4):
            u = t + 2 * (k & 1)
            unpack(u, u + 1, G_W + 4 * i + k)
            if i == 0:
                A(f'v_pk_mul_f32 {vr(G_ACC + 2 * k, 2)}, {vr(u, 2)}, {vr(sp, 2)} op_sel:[0,{sel}] op_sel_hi:[1,{sel}]')
            else:
                A(f'v_pk_fma_f32 {vr(G_ACC + 2 * k, 2)}, {vr(u, 2)}, {vr(sp, 2)}, {vr(G_ACC + 2 * k, 2)} op_sel:[0,{sel},0] op_sel_hi:[1,{sel},1]')
    a = G_ACC
    A(f'''v_and_b32 v{t + 4}, 1, v{vL}
    v_lshlrev_b32 v{t + 4}, 5, v{t + 4}
    v_and_b32 v{t + 5}, 1, v{vQ}
    v_lshl_add_u32 v{t + 4}, v{t + 5}, 3, v{t + 4}
    v_lshl_add_u32 v{t + 4}, v{vH}, 2, v{t + 4}
    s_lshl_b32 s{sT0}, s{sW}, 6
    s_add_u32 s{sT0}, s{sT0}, {L_RED}
    v_add_u32 v{t + 4}, s{sT0}, v{t + 4}''')
    for k in range(4):
        A(f'v_permlane32_swap_b32 v{a + 2 * k}, v{a + 2 * k + 1}')
    for k in range(4):
        A(f'v_add_f32 v{a + 2 * k}, v{a + 2 * k}, v{a + 2 * k + 1}')
    A(f'v_permlane16_swap_b32 v{a}, v{a + 2}')
    A(f'v_permlane16_swap_b32 v{a + 4}, v{a + 6}')
    A(f'v_add_f32 v{a}, v{a}, v{a + 2}')
    A(f'v_add_f32 v{a + 4}, v{a + 4}, v{a + 6}')
    for r in (8, 4, 2):
        A(f'v_add_f32_dpp v{a}, v{a}, v{a} row_ror:{r} row_mask:0xf bank_mask:0xf')
        A(f'v_add_f32_dpp v{a + 4}, v{a + 4}, v{a + 4} row_ror:{r} row_mask:0xf bank_mask:0xf')
    A(f'''ds_write_b32 v{t + 4}, v{a}
    ds_write_b32 v{t + 4}, v{a + 4} offset:16
    v_and_b32 v{t + 5}, 3, v{vL}
    v_lshlrev_b32 v{t + 5}, 4, v{t + 5}
    v_add_u32 v{t + 6}, {L_RED}, v{t + 5}
    s_waitcnt vmcnt({younger}) lgkmcnt(0)
    s_barrier''')
    for w in range(4):
        A(f'ds_read_b128 {vr(G_W + 4 * w, 4)}, v{t + 6} offset:{64 * w}')
    A(f'''s_mul_i32 s{sTAG}, s{sTAG}, 0x9E3779B1
    s_add_u32 s{sTAG}, s{sTAG}, 0x7F4A7C15
    s_mul_i32 s{sT0}, s{sCB}, 205
    s_lshr_b32 s{sT0}, s{sT0}, 13
    s_cmp_eq_u32 s{sT0}, 1
    s_cselect_b32 s{sT1}, 1.0, 0
    s_cmp_eq_u32 s{sT0}, 4
    s_cselect_b32 s{sT1}, 1.0, s{sT1}
    v_cmp_gt_u32 vcc, 4, v0
    v_mov_b32 v{t + 7}, {OOB}
    v_cndmask_b32 v{t + 5}, v{t + 7}, v{t + 5}, vcc''')
    g = G_W
    for p in (0, 2):
        A(f'v_pk_add_f32 {vr(g + p, 2)}, {vr(g + p, 2)}, {vr(g + 4 + p, 2)}')
        A(f'v_pk_add_f32 {vr(g + 8 + p, 2)}, {vr(g + 8 + p, 2)}, {vr(g + 12 + p, 2)}')
    for p in (0, 2):
        A(f'v_pk_add_f32 {vr(g + p, 2)}, {vr(g + p, 2)}, {vr(g + 8 + p, 2)}')
    A(f'v_cvt_pk_bf16_f32 v{g + 4}, v{g}, v{g + 1}')
    A(f'v_cvt_pk_bf16_f32 v{g + 5}, v{g + 2}, v{g + 3}')
    unpack(g, g + 1, g + 4)
    unpack(g + 2, g + 3, g + 5)
    for k in range(4):
        A(f'v_add_f32 v{g + k}, s{sT1}, v{g + k}')
    A(f'''v_cvt_pk_bf16_f32 v{g + 4}, v{g}, v{g + 1}
    v_cvt_pk_bf16_f32 v{g + 5}, v{g + 2}, v{g + 3}
    v_mov_b32 v{g + 6}, s{sTAG}
    v_mov_b32 v{g + 7}, s{sTAG}
    buffer_store_dwordx4 {vr(g + 4, 4)}, v{t + 5}, {srd(S_WS)}, s{sMODST} offen sc1''')


def code_prefetch(nbytes):
    t = TMP
    per = ((nbytes + 32 * 128 - 1) // (32 * 128))
    assert per <= 64
    A(f'''s_getpc_b64 {sr(sT2, 2)}
    L_pc:
    s_mul_i32 s{sT0}, s{sG}, {per * 128}
    s_sub_u32 s{sT0}, s{sT0}, L_pc-{NAME}_kernel
    v_min_u32 v{t}, {per - 1}, v{vL}
    v_lshlrev_b32 v{t}, 7, v{t}
    v_add_u32 v{t}, s{sT0}, v{t}
    v_min_i32 v{t}, L_last-L_pc, v{t}
    v_ashrrev_i32 v{t + 1}, 31, v{t}
    v_mov_b32 v{t + 2}, s{sT3}
    v_add_co_u32 v{t}, vcc, s{sT2}, v{t}
    v_addc_co_u32 v{t + 1}, vcc, v{t + 2}, v{t + 1}, vcc
    global_load_dword v250, {vr(t, 2)}, off''')


POIS = 240


def fill_region(base, per_wg):
    n = per_wg // 4096
    rem = per_wg - n * 4096
    A(f's_mul_i32 s{sT0}, s{sME}, {per_wg if base not in (WS_T, WS_TP) else BS}')
    A(f's_add_u32 s{sT0}, s{sT0}, {base}')
    for i in range(n):
        A(f'buffer_store_dwordx4 {vr(POIS, 4)}, v{vT16}, {srd(S_WS)}, s{sT0} offen sc1')
        if i < n - 1 or rem:
            A(f's_add_u32 s{sT0}, s{sT0}, 4096')
    if rem:
        t = TMP
        A(f'''v_cmp_gt_u32 vcc, {rem // 16}, v0
        v_mov_b32 v{t}, {OOB}
        v_cndmask_b32 v{t}, v{t}, v{vT16}, vcc
        buffer_store_dwordx4 {vr(POIS, 4)}, v{t}, {srd(S_WS)}, s{sT0} offen sc1''')


def pois_init():
    for i in range(4):
        A(f'v_mov_b32 v{POIS + i}, -1')


def w1_dma():
    t = TMP
    for i in range(3):
        A(f'''v_add_u32 v{t + 3}, {64 * i}, v{vL}
        v_mul_u32_u24 v{t + 4}, 171, v{t + 3}
        v_lshrrev_b32 v{t + 4}, 11, v{t + 4}
        v_mul_u32_u24 v{t + 5}, 12, v{t + 4}
        v_sub_u32 v{t + 5}, v{t + 3}, v{t + 5}
        v_mul_u32_u24 v{t + 4}, 3072, v{t + 4}
        v_lshl_add_u32 v{t + i}, v{t + 5}, 4, v{t + 4}''')
    A(f'''s_mul_i32 s{sT0}, s{sW}, {160 * 3072}
    s_mul_i32 s{sT1}, s{sJ}, 192
    s_add_u32 s{sT0}, s{sT0}, s{sT1}
    s_mul_i32 s{sT1}, s{sW}, 30720
    s_add_u32 m0, s{sT1}, {BIG}''')
    for g in range(10):
        for i in range(3):
            A(f'buffer_load_dwordx4 v{t + i}, {srd(S_W1)}, s{sT0} offen lds')
            A('s_add_u32 m0, m0, 1024')
        A(f's_add_u32 s{sT0}, s{sT0}, {16 * 3072}')


sW2ST = sU + 2


def w2_fmt_issue():
    t = TMP
    A(f'''s_mul_i32 s{sT0}, s{sME}, 205
    s_lshr_b32 s{sT0}, s{sT0}, 10
    s_mul_i32 s{sT1}, s{sT0}, 5
    s_sub_u32 s{sT1}, s{sME}, s{sT1}
    s_mul_i32 s{sT2}, s{sT0}, {32 * 1280}
    s_lshl_b32 s{sT3}, s{sT1}, 8
    s_add_u32 s{sT2}, s{sT2}, s{sT3}
    s_mul_i32 s{sW2ST}, s{sT0}, 40960
    s_lshl_b32 s{sT3}, s{sT1}, 13
    s_add_u32 s{sW2ST}, s{sW2ST}, s{sT3}
    s_lshl_b32 s{sT3}, s{sW}, 11
    s_add_u32 s{sW2ST}, s{sW2ST}, s{sT3}
    s_add_u32 s{sW2ST}, s{sW2ST}, {WS_W2P}
    s_cmp_lt_u32 s{sME}, 240
    s_cselect_b32 s{sW2ST}, s{sW2ST}, {OOB}
    s_cselect_b32 s{sT2}, s{sT2}, 0
    v_lshrrev_b32 v{t}, 4, v0
    v_mul_u32_u24 v{t}, 1280, v{t}
    v_lshl_add_u32 v{t}, v{vL15}, 4, v{t}
    s_lshl_b32 s{sT3}, s{sW}, 10
    s_add_u32 m0, s{sT3}, {L_W2S}
    s_add_u32 s{sT4}, s{sT2}, {16 * 1280}
    buffer_load_dwordx4 v{t}, {srd(S_W2)}, s{sT2} offen lds
    s_add_u32 m0, m0, 4096
    s_nop 0
    buffer_load_dwordx4 v{t}, {srd(S_W2)}, s{sT4} offen lds''')


def w2_fmt_finish():
    t = TMP
    A(f'''v_lshrrev_b32 v{t}, 2, v{vL}
    v_lshlrev_b32 v{t}, 8, v{t}
    v_and_b32 v{t + 1}, 3, v{vL}
    v_lshl_add_u32 v{t}, v{t + 1}, 3, v{t}
    s_lshl_b32 s{sT0}, s{sW}, 6
    s_add_u32 s{sT0}, s{sT0}, {L_W2S}
    v_add_u32 v{t}, s{sT0}, v{t}''')
    for i in range(2):
        A(f'ds_read_b64_tr_b16 {vr(t + 4 + 4 * i, 2)}, v{t} offset:{32 * i}')
        A(f'ds_read_b64_tr_b16 {vr(t + 6 + 4 * i, 2)}, v{t} offset:{32 * i + 4096}')
    for i in range(2):
        A(f'buffer_store_dwordx4 {vr(t + 4 + 4 * i, 4)}, v{vL16}, {srd(S_WS)}, s{sW2ST} offen offset:{1024 * i} sc1')


def w2_load(k0, k1):
    A(f'''s_mul_i32 s{sT0}, s{sW}, {12 * 40960}
    s_and_b32 s{sT1}, s{sJ}, 7
    s_mul_i32 s{sT1}, s{sT1}, 5120
    s_add_u32 s{sT0}, s{sT0}, s{sT1}
    s_add_u32 s{sT0}, s{sT0}, {WS_W2P + k0 * 40960}''')
    for kl in range(k0, k1):
        A(f's_add_u32 s{sT1}, s{sT0}, 4096')
        for nt in range(5):
            so, off = (sT0, 1024 * nt) if nt < 4 else (sT1, 0)
            A(f'buffer_load_dwordx4 {ar((kl * 5 + nt) * 4, 4)}, v{vL16}, {srd(S_WS)}, s{so} offen offset:{off} sc1')
        A(f's_add_u32 s{sT0}, s{sT0}, 40960')


F_RAW = 200
F_SH = 216
F_W = 216


def filt_issue():
    t = TMP
    A(f'''s_mul_i32 s{sT0}, s{sG}, 20
    s_mul_i32 s{sT1}, s{sW}, 5
    s_add_u32 s{sT0}, s{sT0}, s{sT1}
    s_sub_u32 s{sT1}, 638, s{sT0}
    s_cmp_lt_u32 s{sG}, 16
    s_cselect_b32 s{sT0}, s{sT0}, s{sT1}
    s_cselect_b32 s{sT2}, 1, -1
    v_lshlrev_b32 v{t}, 9, v{vQ}
    v_lshl_add_u32 v{t}, v{vL15}, 3, v{t}
    v_add_u32 v{t}, s{sK1}, v{t}''')
    for j in range(4):
        A(f'''v_add_u32 v{t + 1}, {128 * j}, v{t}
        v_mul_i32_i24 v{t + 1}, s{sT2}, v{t + 1}
        v_and_b32 v{t + 1}, 2047, v{t + 1}
        v_mul_u32_u24 v{t + 1}, 321, v{t + 1}
        v_add_u32 v{t + 1}, s{sT0}, v{t + 1}
        v_and_b32 v{t + 2}, 1, v{t + 1}
        v_lshlrev_b32 v{196 + j}, 4, v{t + 2}
        v_lshrrev_b32 v{t + 1}, 1, v{t + 1}
        v_lshlrev_b32 v{t + 4 + j}, 2, v{t + 1}
        buffer_load_dwordx2 {vr(F_RAW + 4 * j, 2)}, v{t + 4 + j}, {srd(S_WR)}, 0 offen
        buffer_load_dwordx2 {vr(F_RAW + 4 * j + 2, 2)}, v{t + 4 + j}, {srd(S_WI)}, 0 offen''')


def filt_finish():
    t = TMP
    sc = 1.0 / (2048.0 * 640.0)
    A(f'''s_cmp_lt_u32 s{sG}, 16
    s_cselect_b64 vcc, -1, 0
    s_cselect_b32 s{sT3}, 0, 0x80000000
    s_mov_b32 s{sT0}, {f2u(sc)}
    s_mov_b32 s{sT1}, {f2u(2 * sc)}
    s_xor_b32 s{sT2}, s{sT0}, s{sT3}
    s_xor_b32 s{sT3}, s{sT1}, s{sT3}''')
    for j in range(4):
        for p in range(2):
            r = F_RAW + 4 * j + 2 * p
            A(f'v_lshrrev_b64 {vr(r, 2)}, v{196 + j}, {vr(r, 2)}')
            A(f'''v_lshlrev_b32 v{t}, 16, v{r}
            v_lshlrev_b32 v{t + 1}, 16, v{r + 1}
            v_and_b32 v{t + 2}, 0xffff0000, v{r}
            v_cndmask_b32 v{t + 3}, v{t + 1}, v{t}, vcc
            v_cndmask_b32 v{t + 4}, v{t}, v{t + 1}, vcc
            v_mul_f32 v{F_W + 8 + 4 * p + j}, s{sT1 + 2 * p}, v{t + 2}
            v_mul_f32 v{F_W + 4 * p + j}, s{sT0 + 2 * p}, v{t + 3}
            v_mul_f32 v{F_W + 16 + 4 * p + j}, s{sT1 + 2 * p}, v{t + 4}''')


X_RAW = 60
X_N = 72
K1_AD = 92
K1_M1 = 100
K1_M2 = 124
MODR = 24


def x1_issue():
    A(f'''s_lshl_b32 s{sT0}, s{sW}, 9
    s_add_u32 s{sT0}, s{sT0}, s{sME}
    s_mul_i32 s{sT0}, s{sT0}, 1280
    s_add_u32 s{sT1}, s{sT0}, {256 * 1280}
    v_lshlrev_b32 v{TMP + 3}, 2, v{vL}
    buffer_load_dwordx4 {vr(X_RAW, 4)}, v{vL16}, {srd(S_X)}, s{sT0} offen
    buffer_load_dwordx4 {vr(X_RAW + 4, 4)}, v{vL16}, {srd(S_X)}, s{sT1} offen
    buffer_load_dword v{X_RAW + 8}, v{TMP + 3}, {srd(S_X)}, s{sT0} offen offset:1024
    buffer_load_dword v{X_RAW + 9}, v{TMP + 3}, {srd(S_X)}, s{sT1} offen offset:1024''')


def k1_const_a():
    t = TMP
    A(f'''v_lshrrev_b32 v{t}, 3, v{vL31}
    v_cvt_f32_u32 v{t}, v{t}
    v_mul_f32 v{t}, {f2u(0.4)}, v{t}
    v_and_b32 v{t + 1}, 7, v{vL}
    v_cvt_f32_u32 v{t + 1}, v{t + 1}
    v_mul_f32 v{t + 1}, {f2u(0.125)}, v{t + 1}
    v_cvt_f32_u32 v{t + 2}, v{vH}
    v_mul_f32 v{t + 2}, v{t + 2}, v{t}''')
    for tau in range(3):
        fmamk(t + 3, t, 2 * tau, t + 2)
        for p in range(4):
            fmamk(t + 4, t + 1, 2 * p, t + 3)
            fmamk(t + 5, t + 1, 2 * p + 1, t + 3)
            sincos(t + 4, t + 6, t + 8)
            sincos(t + 5, t + 7, t + 9)
            A(f'v_cvt_pk_bf16_f32 v{K1_M1 + 4 * tau + p}, v{t + 6}, v{t + 7}')
            A(f'v_cvt_pk_bf16_f32 v{K1_M1 + 12 + 4 * tau + p}, -v{t + 8}, -v{t + 9}')
    A('s_mov_b32 exec_lo, 0')
    for p in range(4):
        A(f'v_mov_b32 v{K1_M1 + 8 + p}, 0')
        A(f'v_mov_b32 v{K1_M1 + 20 + p}, 0')
    A('s_mov_b32 exec_lo, -1')


def k1_const_b():
    t = TMP
    A(f'''v_cvt_f32_u32 v{t}, v{vL31}
    v_lshlrev_b32 v{t + 1}, 4, v{vH}
    v_add_u32 v{t + 1}, s{sW}, v{t + 1}
    v_cvt_f32_u32 v{t + 1}, v{t + 1}
    v_mul_f32 v{t}, {f2u(1.0 / 128)}, v{t}
    v_mul_f32 v{t + 1}, v{t + 1}, v{t}''')
    for u in range(4):
        for jj in range(4):
            e = 2 + 3 * (jj & 1)
            fmamk(t + e, t, 4 * (8 * u + jj), t + 1)
            sincos(t + e, t + e + 1, t + e + 2)
            A(f'v_cvt_pk_bf16_f32 v{K1_M2 + 4 * u + jj}, v{t + e + 1}, v{t + e + 2}')
            A(f'v_cvt_pk_bf16_f32 v{K1_M2 + 16 + 4 * u + jj}, -v{t + e + 2}, v{t + e + 1}')


def k1_addr():
    t = TMP
    A(f'''s_mul_i32 s{sT0}, s{sW}, 2560
    s_add_u32 s{sT0}, s{sT0}, {L_H1}
    v_mul_u32_u24 v{t}, 3, v{vL}
    v_lshlrev_b32 v{t + 1}, 3, v{vL15}
    v_add_u32 v{t + 1}, s{sT0}, v{t + 1}''')
    for k in range(5):
        A(f'v_add_u32 v{t + 2}, {k}, v{t}')
        mod5(t + 2, t + 2, t + 3)
        A(f'v_lshl_add_u32 v{K1_AD + k}, v{t + 2}, 9, v{t + 1}')
    A(f'''v_lshrrev_b32 v{t + 1}, 1, v{vL}
    v_lshlrev_b32 v{t + 1}, 2, v{t + 1}
    v_and_b32 v{t + 2}, 1, v{vL}
    v_lshl_add_u32 v{t + 1}, v{t + 2}, 8, v{t + 1}
    v_add_u32 v{t + 1}, s{sT0}, v{t + 1}''')
    for e in range(2):
        A(f'v_lshl_add_u32 v{t + 2}, v{vL}, 1, {2 + e}')
        mod5(t + 2, t + 2, t + 3)
        A(f'v_lshl_add_u32 v{K1_AD + 5 + e}, v{t + 2}, 9, v{t + 1}')
    A(f'''v_cmp_gt_u32 {sr(sM1, 2)}, 19, v{vL31}
    v_cmp_gt_u32 {sr(sM2, 2)}, 6, v{vL31}''')


def ln1():
    t = TMP
    for r in range(2):
        for k in range(4):
            unpack(X_N + 10 * r + 2 * k, X_N + 10 * r + 2 * k + 1, X_RAW + 4 * r + k)
        unpack(X_N + 10 * r + 8, X_N + 10 * r + 9, X_RAW + 8 + r)
    for r in range(2):
        b = X_N + 10 * r
        A(f'v_pk_add_f32 {vr(t + 2 * r, 2)}, {vr(b, 2)}, {vr(b + 2, 2)}')
        A(f'v_pk_mul_f32 {vr(t + 4 + 2 * r, 2)}, {vr(b, 2)}, {vr(b, 2)}')
        for k in range(1, 5):
            if k > 1:
                A(f'v_pk_add_f32 {vr(t + 2 * r, 2)}, {vr(t + 2 * r, 2)}, {vr(b + 2 * k, 2)}')
            A(f'v_pk_fma_f32 {vr(t + 4 + 2 * r, 2)}, {vr(b + 2 * k, 2)}, {vr(b + 2 * k, 2)}, {vr(t + 4 + 2 * r, 2)}')
    for k in range(4):
        A(f'v_add_f32 v{t + 2 * k}, v{t + 2 * k}, v{t + 2 * k + 1}')
    A(f'''v_permlane32_swap_b32 v{t}, v{t + 2}
    v_permlane32_swap_b32 v{t + 4}, v{t + 6}
    v_add_f32 v{t}, v{t}, v{t + 2}
    v_add_f32 v{t + 4}, v{t + 4}, v{t + 6}
    v_permlane16_swap_b32 v{t}, v{t + 4}
    v_add_f32 v{t}, v{t}, v{t + 4}''')
    for r in (8, 4, 2, 1):
        A(f'v_add_f32_dpp v{t}, v{t}, v{t} row_ror:{r} row_mask:0xf bank_mask:0xf')
    A(f'v_mul_f32 v{t}, {f2u(1.0 / 640)}, v{t}')
    for k in range(4):
        A(f'v_readlane_b32 s{sT0 + k}, v{t}, {16 * k}')
    for r in range(2):
        A(f'v_mov_b32 v{t + 4 + r}, s{sT0 + 2 * r}')
    for r in range(2):
        A(f'v_fma_f32 v{t + 2 * r}, -v{t + 4 + r}, v{t + 4 + r}, s{sT1 + 2 * r}')
    for r in range(2):
        A(f'v_max_f32 v{t + 2 * r}, 0, v{t + 2 * r}')
    for r in range(2):
        A(f'v_add_f32 v{t + 2 * r}, {f2u(1e-5)}, v{t + 2 * r}')
    for r in range(2):
        A(f'v_rsq_f32 v{t + 2 * r}, v{t + 2 * r}')
    for r in range(2):
        A(f'v_mul_f32 v{t + 2 * r + 1}, v{t + 4 + r}, v{t + 2 * r}')
    for r in range(2):
        for k in range(5):
            b = X_N + 10 * r + 2 * k
            A(f'v_pk_fma_f32 {vr(b, 2)}, {vr(b, 2)}, {vr(t + 2 * r, 2)}, {vr(t + 2 * r, 2)} op_sel:[0,0,1] op_sel_hi:[1,0,1] neg_lo:[0,0,1] neg_hi:[0,0,1]')


vMA, vMB = 48, 49


def mod1_loads():
    s = ''
    for v in range(2):
        o = v * 2560
        s += f'buffer_load_dwordx4 {vr(MODR + 12 * v, 4)}, v{vMA}, {srd(S_WS)}, 0 offen offset:{o} sc1\n'
        s += f'buffer_load_dwordx4 {vr(MODR + 12 * v + 4, 4)}, v{vMA}, {srd(S_WS)}, 0 offen offset:{o + 16} sc1\n'
        s += f'buffer_load_dwordx4 {vr(MODR + 12 * v + 8, 4)}, v{vMB}, {srd(S_WS)}, 0 offen offset:{o} sc1\n'
    return s


def tagcheck(regs):
    s = f'v_cmp_ne_u32 vcc, s{sTAG}, v{regs[0]}\n'
    for r in regs[1:]:
        s += f'v_cmp_ne_u32 {sr(sT6, 2)}, s{sTAG}, v{r}\n'
        s += f's_or_b64 vcc, vcc, {sr(sT6, 2)}\n'
    return s


def mod1_issue():
    A(f'''v_lshlrev_b32 v{vMA}, 5, v{vL}
    v_add_u32 v{vMA}, {WS_MOD}, v{vMA}
    v_lshrrev_b32 v{vMB}, 1, v{vL}
    v_lshlrev_b32 v{vMB}, 4, v{vMB}
    v_add_u32 v{vMB}, {WS_MOD + 2048}, v{vMB}''')
    A(mod1_loads())


K1_D = 24


def k1_main():
    t = TMP
    poll_check('mod1', mod1_loads(), tagcheck([MODR + 4 * i + 2 for i in range(6)]))
    stamp('mod1')
    A(f'''v_and_b32 v{t}, 1, v{vL}
    v_cmp_eq_u32 vcc, 1, v{t}
    v_cndmask_b32 v{MODR + 8}, v{MODR + 8}, v{MODR + 9}, vcc
    v_cndmask_b32 v{MODR + 20}, v{MODR + 20}, v{MODR + 21}, vcc''')
    srcs = [0, 1, 4, 5, 8]
    for k in range(5):
        u = t + 4 * (k & 1)
        unpack(u, u + 1, MODR + srcs[k])
        unpack(u + 2, u + 3, MODR + 12 + srcs[k])
        for r in range(2):
            b = X_N + 10 * r + 2 * k
            A(f'v_pk_fma_f32 {vr(b, 2)}, {vr(b, 2)}, {vr(u + 2, 2)}, {vr(u, 2)}')
        for e in (2 * k, 2 * k + 1):
            A(f'v_cvt_pk_bf16_f32 v{X_N + e}, v{X_N + e}, v{X_N + 10 + e}')
            if e < 8:
                A(f'ds_write_b32 v{K1_AD + e % 5}, v{X_N + e} offset:{(e & 3) * 128 + (e >> 2) * 4}')
            else:
                A(f'ds_write_b32 v{K1_AD + 5 + e - 8}, v{X_N + e} offset:{(e - 8) * 128}')
    A(f'''s_lshl_b32 s{sT0}, s{sW}, 7
    s_add_u32 s{sT0}, s{sT0}, {L_H1}
    v_lshl_add_u32 v{t + 1}, v{vL31}, 2, s{sT0}
    v_lshl_add_u32 v{t}, v{vH}, 9, v{t + 1}
    s_waitcnt lgkmcnt(0)
    s_barrier''')
    OPA = 60
    DRE, DIM = 24, 40
    for tau in range(3):
        ad = t if tau < 2 else t + 1
        for p in (0, 2):
            A(f'ds_read2st64_b32 {vr(OPA + 4 * tau + p, 2)}, v{ad} offset0:{4 * tau + 10 * p} offset1:{4 * tau + 10 * p + 10}')
    for tau in range(3):
        A(f'v_mfma_f32_32x32x16_bf16 {vr(DRE, 16)}, {vr(OPA + 4 * tau, 4)}, {vr(K1_M1 + 4 * tau, 4)}, {vr(DRE, 16) if tau else 0}')
        A(f'v_mfma_f32_32x32x16_bf16 {vr(DIM, 16)}, {vr(OPA + 4 * tau, 4)}, {vr(K1_M1 + 12 + 4 * tau, 4)}, {vr(DIM, 16) if tau else 0}')
    A(f'''s_mul_i32 s{sT0}, s{sW}, 6144
    s_add_u32 s{sT0}, s{sT0}, {L_X1E}
    v_lshl_add_u32 v{t}, v{vL31}, 3, s{sT0}
    v_lshl_add_u32 v{t}, v{vH}, 10, v{t}
    v_add_u32 v{t + 1}, 2048, v{t}
    v_add_u32 v{t + 2}, 4096, v{t}''')
    OPB = 72
    ERE, EIM = 156, 172
    for u in range(4):
        for jj in range(4):
            A(f'v_cvt_pk_bf16_f32 v{OPB + 4 * u + jj}, v{DRE + 4 * u + jj}, v{DIM + 4 * u + jj}')
        A(f'v_mfma_f32_32x32x16_bf16 {vr(ERE, 16)}, {vr(OPB + 4 * u, 4)}, {vr(K1_M2 + 4 * u, 4)}, {vr(ERE, 16) if u else 0}')
        A(f'v_mfma_f32_32x32x16_bf16 {vr(EIM, 16)}, {vr(OPB + 4 * u, 4)}, {vr(K1_M2 + 16 + 4 * u, 4)}, {vr(EIM, 16) if u else 0}')
    RA = t + 4
    A(f'v_lshrrev_b32 v{t + 3}, 5, v0')
    A(f'v_lshlrev_b32 v{t + 7}, 8, v{t + 3}')
    for c in range(3):
        A(f'''v_add_u32 v{RA + c}, {13 * c}, v{vL31}
        v_and_b32 v{RA + c}, 31, v{RA + c}
        v_lshl_add_u32 v{RA + c}, v{RA + c}, 3, v{t + 7}
        v_add_u32 v{RA + c}, {L_X1E + 2048 * c}, v{RA + c}''')
    A(f'''v_lshlrev_b32 v{t + 8}, 4, v{vL31}
    v_sub_u32 v{t + 9}, 8, v{t + 3}
    v_and_b32 v{t + 9}, 7, v{t + 9}
    v_lshl_add_u32 v{t + 9}, v{t + 9}, 11, v{t + 8}
    v_lshl_add_u32 v{t + 8}, v{t + 3}, 11, v{t + 8}
    s_mul_i32 s{sT1}, s{sME}, {BS}
    s_add_u32 s{sT1}, s{sT1}, {WS_T}''')
    for j in range(12):
        A(f'ds_write2_b32 v{t + (j >> 2)}, v{ERE + j}, v{EIM + j} offset0:{64 * (j & 3)} offset1:{64 * (j & 3) + 1}')
    A('''s_waitcnt lgkmcnt(0)
    s_barrier''')
    Z = 24
    for c in range(3):
        for b2 in range(4):
            A(f'ds_read_b64 {vr(Z + 8 * c + 2 * b2, 2)}, v{RA + c} offset:{6144 * b2}')
    O = 60
    P = 48
    for m in range(4):
        A(f'v_mov_b32 v{O + 4 * m + 3}, s{sTAG}')
    for c in range(3):
        z = Z + 8 * c
        A(f'''v_pk_add_f32 {vr(P, 2)}, {vr(z, 2)}, {vr(z + 4, 2)}
        v_pk_add_f32 {vr(P + 2, 2)}, {vr(z, 2)}, {vr(z + 4, 2)} neg_lo:[0,1] neg_hi:[0,1]
        v_pk_add_f32 {vr(P + 4, 2)}, {vr(z + 2, 2)}, {vr(z + 6, 2)}
        v_pk_add_f32 {vr(P + 6, 2)}, {vr(z + 2, 2)}, {vr(z + 6, 2)} neg_lo:[0,1] neg_hi:[0,1]
        v_pk_add_f32 {vr(z, 2)}, {vr(P, 2)}, {vr(P + 4, 2)}
        v_pk_add_f32 {vr(z + 4, 2)}, {vr(P, 2)}, {vr(P + 4, 2)} neg_lo:[0,1] neg_hi:[0,1]
        v_pk_add_f32 {vr(z + 2, 2)}, {vr(P + 2, 2)}, {vr(P + 6, 2)} op_sel:[0,1] op_sel_hi:[1,0] neg_hi:[0,1]
        v_pk_add_f32 {vr(z + 6, 2)}, {vr(P + 2, 2)}, {vr(P + 6, 2)} op_sel:[0,1] op_sel_hi:[1,0] neg_lo:[0,1]''')
        if c == 0:
            for k in range(4):
                A(f'v_cvt_pk_bf16_f32 v{O + 4 * k}, v{z + 2 * k}, v{z + 2 * k + 1}')
        else:
            for k in range(4):
                A(f'v_cvt_pk_bf16_f32 v{56 + k}, v{z + 2 * k}, v{z + 2 * k + 1}')
            r0 = 1 if c == 1 else 3
            for m in range(4):
                A(f'v_cndmask_b32 v{O + 4 * m + c}, v{56 + (m - r0) % 4}, v{56 + (m - r0 - 1) % 4}, {sr(sM1 if c == 1 else sM2, 2)}')
    A('s_waitcnt vmcnt(0)')
    for m in range(4):
        A(f'buffer_store_dwordx4 {vr(O + 4 * m, 4)}, v{t + 8 + (m >> 1)}, {srd(S_WS)}, s{sT1} offen offset:{512 * m} sc1')


K2C = 100
C_M1, C_TW1, C_M2, C_M3, C_TW2, C_M4 = [K2C + 8 * i for i in range(6)]
K2_IN = 24
vK2A = 148


def k2_const():
    t = TMP
    A(f'''v_cvt_f32_u32 v{t}, v{vL15}
    v_cvt_f32_u32 v{t + 1}, v{vQ}
    v_cvt_f32_u32 v{t + 2}, s{sK1}
    v_mul_f32 v{t + 1}, 4.0, v{t + 1}''')
    fmamk(t + 3, t, 8, t + 2)
    A(f'v_mul_f32 v{t + 3}, {f2u(1.0 / 128)}, v{t + 3}')
    A(f'v_mul_f32 v{t + 4}, {f2u(1.0 / 16)}, v{t}')
    A(f'v_mul_f32 v{t + 5}, {f2u(1.0 / 128)}, v{t}')
    A(f'v_mul_f32 v{t + 5}, v{t + 5}, v{t + 2}')
    for jj in range(4):
        A(f'v_add_f32 v{t + 6}, {f2u(float(jj))}, v{t + 1}')
        A(f'v_mul_f32 v{t + 7}, v{t + 6}, v{t + 3}')
        A(f'v_mul_f32 v{t + 8}, {f2u(1.0 / 16)}, v{t + 7}')
        A(f'v_mul_f32 v{t + 9}, v{t + 6}, v{t + 4}')
        A(f'v_add_f32 v{t + 10}, v{t + 9}, v{t + 5}')
        A(f'v_mul_f32 v{t + 11}, {f2u(1.0 / 16)}, v{t + 10}')
        sincos(t + 7, t + 12, t + 13)
        sincos(t + 8, C_TW1 + jj, C_TW1 + 4 + jj)
        A(f'v_cvt_pk_bf16_f32 v{C_M1 + jj}, v{t + 12}, v{t + 13}')
        A(f'v_cvt_pk_bf16_f32 v{C_M1 + 4 + jj}, -v{t + 13}, v{t + 12}')
        sincos(t + 9, t + 12, t + 13)
        sincos(t + 11, C_TW2 + jj, C_TW2 + 4 + jj)
        A(f'v_cvt_pk_bf16_f32 v{C_M2 + jj}, v{t + 12}, v{t + 13}')
        A(f'v_cvt_pk_bf16_f32 v{C_M2 + 4 + jj}, -v{t + 13}, v{t + 12}')
        A(f'v_cvt_pk_bf16_f32 v{C_M3 + jj}, v{t + 12}, -v{t + 13}')
        A(f'v_cvt_pk_bf16_f32 v{C_M3 + 4 + jj}, v{t + 13}, v{t + 12}')
        sincos(t + 10, t + 14, t + 15)
        A(f'v_cvt_pk_bf16_f32 v{C_M4 + jj}, v{t + 14}, -v{t + 15}')
        A(f'v_cvt_pk_bf16_f32 v{C_M4 + 4 + jj}, v{t + 15}, v{t + 14}')


sK2L = sU + 4


def k2_loads():
    s = ''
    for j in range(4):
        s += f'buffer_load_dwordx4 {vr(K2_IN + 4 * j, 4)}, v{vK2A}, {srd(S_WS)}, s{sK2L + j} offen sc1\n'
    return s


def k2_issue():
    t = TMP
    A(f'''v_lshrrev_b32 v{t}, 2, v{vL}
    v_mul_u32_u24 v{t}, {BS}, v{t}
    v_and_b32 v{t + 1}, 3, v{vL}
    v_lshl_add_u32 v{vK2A}, v{t + 1}, 4, v{t}
    s_mul_i32 s{sT0}, s{sW}, {64 * BS}
    s_lshl_b32 s{sT1}, s{sME}, 6
    s_add_u32 s{sT0}, s{sT0}, s{sT1}
    s_add_u32 s{sK2L}, s{sT0}, {WS_T}''')
    for j in range(1, 4):
        A(f's_add_u32 s{sK2L + j}, s{sK2L}, {16 * j * BS}')
    A(k2_loads())


def cmul(dre, dim, wr, wi, conj, tmp):
    for p in (0, 2):
        A(f'v_pk_mul_f32 {vr(tmp + p, 2)}, {vr(dre + p, 2)}, {vr(wr + p, 2)}')
        A(f'v_pk_mul_f32 {vr(tmp + 4 + p, 2)}, {vr(dim + p, 2)}, {vr(wr + p, 2)}')
    n1 = '' if conj else ' neg_lo:[1,0,0] neg_hi:[1,0,0]'
    n2 = ' neg_lo:[1,0,0] neg_hi:[1,0,0]' if conj else ''
    for p in (0, 2):
        A(f'v_pk_fma_f32 {vr(tmp + p, 2)}, {vr(dim + p, 2)}, {vr(wi + p, 2)}, {vr(tmp + p, 2)}{n1}')
        A(f'v_pk_fma_f32 {vr(tmp + 4 + p, 2)}, {vr(dre + p, 2)}, {vr(wi + p, 2)}, {vr(tmp + 4 + p, 2)}{n2}')


def k2_main(after_poll):
    t = TMP
    A(f'''v_and_b32 v{t}, 3, v{vL}
    v_mul_u32_u24 v{t}, 3104, v{t}
    v_lshrrev_b32 v{t + 1}, 2, v0
    v_lshl_add_u32 v{t}, v{t + 1}, 4, v{t}
    s_mul_i32 s{sT0}, s{sW}, 3104
    v_add_u32 v{t + 1}, s{sT0}, v{vL16}
    v_add_u32 v{t + 2}, {L_K2O}, v{t}
    v_add_u32 v{t + 3}, {L_K2O}, v{t + 1}
    v_add_u32 v{t}, {L_K2I}, v{t}
    v_add_u32 v{t + 1}, {L_K2I}, v{t + 1}''')
    poll_check('t', k2_loads(), tagcheck([K2_IN + 4 * j + 3 for j in range(4)]))
    stamp('T')
    X = 40
    for c in range(3):
        cb, cs = c & ~1, c & 1
        for p in (0, 2):
            A(f'v_pk_mov_b32 {vr(X + 4 * c + p, 2)}, {vr(K2_IN + 4 * p + cb, 2)}, {vr(K2_IN + 4 * p + 4 + cb, 2)} op_sel:[{cs},{cs}]')
        A(f'ds_write_b128 v{t}, {vr(X + 4 * c, 4)} offset:{1024 * c}')
    A('''s_waitcnt lgkmcnt(0)
    s_barrier''')
    OP = 24
    D = 40
    U = 64
    for c in range(3):
        A(f'ds_read_b128 {vr(OP + 4 * c, 4)}, v{t + 1} offset:{1024 * c}')
    after_poll()

    def stage(M, data_is_a):
        for c in range(3):
            for p in range(2):
                a, b = (vr(OP + 4 * c, 4), vr(M + 4 * p, 4)) if data_is_a else (vr(M + 4 * p, 4), vr(OP + 4 * c, 4))
                A(f'v_mfma_f32_16x16x32_bf16 {vr(D + 8 * c + 4 * p, 4)}, {a}, {b}, 0')

    def mid(wr, wi, conj, M, data_is_a):
        for c in range(3):
            cmul(D + 8 * c, D + 8 * c + 4, wr(c), wi(c), conj, U + 8 * c)
            for jj in range(4):
                A(f'v_cvt_pk_bf16_f32 v{OP + 4 * c + jj}, v{U + 8 * c + jj}, v{U + 8 * c + 4 + jj}')
            for p in range(2):
                a, b = (vr(OP + 4 * c, 4), vr(M + 4 * p, 4)) if data_is_a else (vr(M + 4 * p, 4), vr(OP + 4 * c, 4))
                A(f'v_mfma_f32_16x16x32_bf16 {vr(D + 8 * c + 4 * p, 4)}, {a}, {b}, 0')
    stage(C_M1, True)
    mid(lambda c: C_TW1, lambda c: C_TW1 + 4, True, C_M2, False)
    mid(lambda c: F_W + 8 * c, lambda c: F_W + 8 * c + 4, False, C_M3, True)
    mid(lambda c: C_TW2, lambda c: C_TW2 + 4, False, C_M4, False)
    for c in range(3):
        for jj in range(4):
            A(f'v_cvt_pk_bf16_f32 v{OP + 4 * c + jj}, v{D + 8 * c + jj}, v{D + 8 * c + 4 + jj}')
        A(f'ds_write_b128 v{t + 3}, {vr(OP + 4 * c, 4)} offset:{1024 * c}')
    A(f'''s_mul_i32 s{sT0}, s{sME}, {BS}
    s_lshl_b32 s{sT1}, s{sW}, 12
    s_add_u32 s{sT0}, s{sT0}, s{sT1}
    s_add_u32 s{sT0}, s{sT0}, {WS_TP}
    v_mov_b32 v{52}, s{sTAG}
    v_mov_b32 v{53}, s{sTAG}
    s_waitcnt lgkmcnt(0)
    s_barrier''')
    for c in range(3):
        A(f'ds_read_b128 {vr(X + 4 * c, 4)}, v{t + 2} offset:{1024 * c}')
    O = 64
    for j in range(4):
        jb, js = j & ~1, j & 1
        A(f'v_pk_mov_b32 {vr(O + 4 * j, 2)}, {vr(X + jb, 2)}, {vr(X + 4 + jb, 2)} op_sel:[{js},{js}]')
        A(f'v_pk_mov_b32 {vr(O + 4 * j + 2, 2)}, {vr(X + 8 + jb, 2)}, {vr(52, 2)} op_sel:[{js},0]')
        A(f'buffer_store_dwordx4 {vr(O + 4 * j, 4)}, v{vL16}, {srd(S_WS)}, s{sT0} offen offset:{1024 * j} sc1')


def epoch_store():
    t = TMP + 12
    A(f'''s_cmp_eq_u32 s{sME}, 0
    s_cselect_b32 s{sT0}, {WS_EPOCH}, {OOB}
    v_mov_b32 v{t}, s{sTAG}
    v_mov_b32 v{t + 1}, 0
    buffer_store_dword v{t}, v{t + 1}, {srd(S_WS)}, s{sT0} offen sc1''')


K3_MA = 100
K3_MB = 132
K3_X = 156
K3_GA = 176
K3_SB = 196
K3_CB = 216
K3_IN = 24
vK3A, vK3B = 236, 237
vXA, vXC = 22, 23
sK3 = sU + 8
RAW3 = 40


def k3_const():
    t = TMP
    A(f'''v_lshlrev_b32 v{t}, 2, v{vL31}
    v_add_u32 v{t}, s{sW}, v{t}
    v_cvt_f32_u32 v{t}, v{t}
    v_mul_f32 v{t}, {f2u(1.0 / 128)}, v{t}
    v_cvt_f32_u32 v{t + 8}, v{vH}
    v_mul_f32 v{t + 8}, 4.0, v{t + 8}
    v_mul_f32 v{t + 1}, v{t + 8}, v{t}''')
    for u in range(4):
        for jj in range(4):
            e = 2 + 3 * (jj & 1)
            fmamk(t + e, t, 8 * u + jj, t + 1)
            sincos(t + e, t + e + 1, t + e + 2)
            A(f'v_cvt_pk_bf16_f32 v{K3_MA + 4 * u + jj}, v{t + e + 1}, -v{t + e + 2}')
            A(f'v_cvt_pk_bf16_f32 v{K3_MA + 16 + 4 * u + jj}, v{t + e + 2}, v{t + e + 1}')
    A(f'''v_lshrrev_b32 v{t}, 3, v{vL31}
    v_cvt_f32_u32 v{t}, v{t}
    v_mul_f32 v{t}, {f2u(0.4)}, v{t}
    v_and_b32 v{t + 1}, 7, v{vL}
    v_cvt_f32_u32 v{t + 1}, v{t + 1}
    v_mul_f32 v{t + 1}, {f2u(0.125)}, v{t + 1}
    v_mul_f32 v{t + 9}, v{t + 8}, v{t + 1}''')
    for jj in range(4):
        fmamk(t + 10, t + 1, jj, t + 9)
        for tau in range(3):
            fmamk(t + 2, t, tau, t + 10)
            sincos(t + 2, t + 3, t + 4)
            if tau:
                A(f'v_add_f32 v{t + 5}, {f2u(1.6 * tau)}, v{t + 10}')
                sincos(t + 5, t + 6, t + 7)
            A(f'v_cvt_pk_bf16_f32 v{K3_MB + 4 * tau + jj}, v{t + 3}, -v{t + 4}')
            if tau:
                A(f'v_cvt_pk_bf16_f32 v{K3_MB + 12 + 4 * tau + jj}, v{t + 6}, -v{t + 7}')
            else:
                A(f'v_mov_b32 v{K3_MB + 12 + jj}, v{K3_MB + jj}')


def k3_loads():
    s = ''
    for m in range(4):
        s += f'buffer_load_dwordx4 {vr(K3_IN + 4 * m, 4)}, v{vK3A + (m >> 1)}, {srd(S_WS)}, s{sK3 + m} offen sc1\n'
    return s


def k3_issue():
    t = TMP
    A(f'''v_lshrrev_b32 v{t}, 5, v0
    v_sub_u32 v{t + 1}, 8, v{t}
    v_and_b32 v{t + 1}, 7, v{t + 1}
    v_lshrrev_b32 v{t + 2}, 2, v{vL31}
    v_lshl_add_u32 v{t}, v{t}, 5, v{t + 2}
    v_lshl_add_u32 v{t + 1}, v{t + 1}, 5, v{t + 2}
    v_mul_u32_u24 v{t}, {BS}, v{t}
    v_mul_u32_u24 v{t + 1}, {BS}, v{t + 1}
    v_and_b32 v{t + 2}, 3, v{vL}
    v_lshl_add_u32 v{vK3A}, v{t + 2}, 4, v{t}
    v_lshl_add_u32 v{vK3B}, v{t + 2}, 4, v{t + 1}
    s_lshl_b32 s{sT0}, s{sME}, 6
    s_add_u32 s{sK3}, s{sT0}, {WS_TP}''')
    for m in range(1, 4):
        A(f's_add_u32 s{sK3 + m}, s{sK3}, {8 * m * BS}')
    A(k3_loads())


sX3 = sU + 12


def k3_side_issue(R):
    t = TMP + 10
    A(f'''s_lshl_b32 s{sT0}, s{sW}, 9
    s_add_u32 s{sT0}, s{sT0}, s{sME}
    s_mul_i32 s{sX3}, s{sT0}, 1280
    v_mul_u32_u24 v{t}, {256 * 1280}, v{vH}
    v_lshl_add_u32 v{vXA}, v{vL31}, 4, v{t}
    v_lshl_add_u32 v{vXC}, v{vL31}, 3, v{t}
    buffer_load_dwordx4 {vr(R, 4)}, v{vXA}, {srd(S_X)}, s{sX3} offen
    buffer_load_dwordx4 {vr(R + 4, 4)}, v{vXA}, {srd(S_X)}, s{sX3} offen offset:512
    buffer_load_dwordx2 {vr(R + 8, 2)}, v{vXC}, {srd(S_X)}, s{sX3} offen offset:1024
    v_lshlrev_b32 v{t}, 5, v{vL31}
    v_lshlrev_b32 v{t + 1}, 4, v{vL31}''')
    for v in range(3):
        A(f's_mov_b32 s{sT0}, {WS_MOD + (2 + v) * 2560}')
        for k in range(4):
            A(f'buffer_load_dwordx2 {vr(R + 10 + 10 * v + 2 * k, 2)}, v{t}, {srd(S_WS)}, s{sT0} offen offset:{1024 * (k >> 1) + 16 * (k & 1)} sc1')
        A(f'buffer_load_dwordx2 {vr(R + 10 + 10 * v + 8, 2)}, v{t + 1}, {srd(S_WS)}, s{sT0} offen offset:2048 sc1')


def k3_side_finish(R):
    for i, dst in enumerate((K3_X, K3_GA, K3_SB, K3_CB)):
        for k in range(10):
            unpack(dst + 2 * k, dst + 2 * k + 1, R + 10 * i + k)


def row_stats(b, t):
    A(f'v_pk_add_f32 {vr(t, 2)}, {vr(b, 2)}, {vr(b + 2, 2)}')
    A(f'v_pk_mul_f32 {vr(t + 2, 2)}, {vr(b, 2)}, {vr(b, 2)}')
    for k in range(1, 10):
        if k > 1:
            A(f'v_pk_add_f32 {vr(t, 2)}, {vr(t, 2)}, {vr(b + 2 * k, 2)}')
        A(f'v_pk_fma_f32 {vr(t + 2, 2)}, {vr(b + 2 * k, 2)}, {vr(b + 2 * k, 2)}, {vr(t + 2, 2)}')
    A(f'''v_add_f32 v{t}, v{t}, v{t + 1}
    v_add_f32 v{t + 2}, v{t + 2}, v{t + 3}
    v_permlane16_swap_b32 v{t}, v{t + 2}
    v_add_f32 v{t}, v{t}, v{t + 2}''')
    for r in (8, 4, 2, 1):
        A(f'v_add_f32_dpp v{t}, v{t}, v{t} row_ror:{r} row_mask:0xf bank_mask:0xf')
    A(f'''v_mul_f32 v{t + 1}, {f2u(1.0 / 640)}, v{t}
    v_mul_f32 v{t + 2}, {f2u(1.0 / 640)}, v{t}
    v_permlane16_swap_b32 v{t + 1}, v{t + 2}
    v_fma_f32 v{t}, -v{t + 1}, v{t + 1}, v{t + 2}
    v_max_f32 v{t}, 0, v{t}
    v_add_f32 v{t}, {f2u(1e-5)}, v{t}
    v_rsq_f32 v{t}, v{t}
    v_mul_f32 v{t + 1}, v{t + 1}, v{t}''')


def k3_main(after_poll):
    t = TMP
    WA = t
    A(f'v_lshrrev_b32 v{t + 3}, 5, v0')
    A(f'v_mul_u32_u24 v{t + 3}, 144, v{t + 3}')
    for c in range(3):
        A(f'''v_add_u32 v{WA + c}, {13 * c}, v{vL31}
        v_and_b32 v{WA + c}, 31, v{WA + c}
        v_lshl_add_u32 v{WA + c}, v{WA + c}, 2, v{t + 3}
        v_add_u32 v{WA + c}, {L_K3I + 8 * 144 * c}, v{WA + c}''')
    A(f'''s_mul_i32 s{sT0}, s{sW}, {24 * 144}
    s_add_u32 s{sT0}, s{sT0}, {L_K3I}
    v_mul_u32_u24 v{t + 3}, 144, v{vL31}
    v_lshl_add_u32 v{t + 3}, v{vH}, 4, v{t + 3}
    v_add_u32 v{t + 3}, s{sT0}, v{t + 3}''')
    YA = t + 4
    A(f'''v_lshl_add_u32 v{t + 9}, v{vL31}, 2, s{sW}
    v_mul_u32_u24 v{t + 10}, 3, v{t + 9}
    v_lshlrev_b32 v{t + 9}, 2, v{t + 9}
    v_mul_u32_u24 v{t + 11}, 5120, v{vH}
    v_add3_u32 v{t + 9}, v{t + 9}, v{t + 11}, 0
    v_add_u32 v{t + 9}, {L_Y}, v{t + 9}''')
    for a in range(5):
        A(f'v_add_u32 v{t + 11}, {2 * a}, v{t + 10}')
        mod5(t + 11, t + 11, t + 12)
        A(f'v_lshl_add_u32 v{YA + a}, v{t + 11}, 9, v{t + 9}')
    poll_check('tp', k3_loads(), tagcheck([K3_IN + 4 * m + 3 for m in range(4)]))
    stamp('Tp')
    Z = 40
    P = 48
    Q = 56
    for c in range(3):
        if c == 0:
            src = [K3_IN + 4 * k for k in range(4)]
        else:
            r0 = 1 if c == 1 else 3
            for k in range(4):
                A(f'v_cndmask_b32 v{Q + k}, v{K3_IN + 4 * ((k + r0) % 4) + c}, v{K3_IN + 4 * ((k + r0 + 1) % 4) + c}, {sr(sM1 if c == 1 else sM2, 2)}')
            src = [Q + k for k in range(4)]
        z = Z + 20 * (c & 1)
        for k in range(4):
            unpack(z + 2 * k, z + 2 * k + 1, src[k])
        A(f'''v_pk_add_f32 {vr(P, 2)}, {vr(z, 2)}, {vr(z + 4, 2)}
        v_pk_add_f32 {vr(P + 2, 2)}, {vr(z, 2)}, {vr(z + 4, 2)} neg_lo:[0,1] neg_hi:[0,1]
        v_pk_add_f32 {vr(P + 4, 2)}, {vr(z + 2, 2)}, {vr(z + 6, 2)}
        v_pk_add_f32 {vr(P + 6, 2)}, {vr(z + 2, 2)}, {vr(z + 6, 2)} neg_lo:[0,1] neg_hi:[0,1]
        v_pk_add_f32 {vr(z, 2)}, {vr(P, 2)}, {vr(P + 4, 2)}
        v_pk_add_f32 {vr(z + 4, 2)}, {vr(P, 2)}, {vr(P + 4, 2)} neg_lo:[0,1] neg_hi:[0,1]
        v_pk_add_f32 {vr(z + 2, 2)}, {vr(P + 2, 2)}, {vr(P + 6, 2)} op_sel:[0,1] op_sel_hi:[1,0] neg_lo:[0,1]
        v_pk_add_f32 {vr(z + 6, 2)}, {vr(P + 2, 2)}, {vr(P + 6, 2)} op_sel:[0,1] op_sel_hi:[1,0] neg_hi:[0,1]''')
        for k in range(4):
            A(f'v_cvt_pk_bf16_f32 v{z + 2 * k}, v{z + 2 * k}, v{z + 2 * k + 1}')
            A(f'ds_write_b32 v{WA + c}, v{z + 2 * k} offset:{24 * 144 * k}')
    A('''s_waitcnt lgkmcnt(0)
    s_barrier''')
    OPA = 24
    DRE, DIM = 40, 56
    for u in range(4):
        A(f'ds_read_b128 {vr(OPA + 4 * u, 4)}, v{t + 3} offset:{32 * u}')
    after_poll()
    for u in range(4):
        A(f'v_mfma_f32_32x32x16_bf16 {vr(DRE, 16)}, {vr(OPA + 4 * u, 4)}, {vr(K3_MA + 4 * u, 4)}, {vr(DRE, 16) if u else 0}')
        A(f'v_mfma_f32_32x32x16_bf16 {vr(DIM, 16)}, {vr(OPA + 4 * u, 4)}, {vr(K3_MA + 16 + 4 * u, 4)}, {vr(DIM, 16) if u else 0}')
    OPB = 72
    E0, E1 = 100, 116
    for tau in range(3):
        for jj in range(4):
            A(f'v_cvt_pk_bf16_f32 v{OPB + 4 * tau + jj}, v{DRE + 4 * tau + jj}, v{DIM + 4 * tau + jj}')
        A(f'v_mfma_f32_32x32x16_bf16 {vr(E0, 16)}, {vr(K3_MB + 4 * tau, 4)}, {vr(OPB + 4 * tau, 4)}, {vr(E0, 16) if tau else 0}')
        A(f'v_mfma_f32_32x32x16_bf16 {vr(E1, 16)}, {vr(K3_MB + 12 + 4 * tau, 4)}, {vr(OPB + 4 * tau, 4)}, {vr(E1, 16) if tau else 0}')
    A(f'''s_mul_i32 s{sT0}, s{sW}, 2560
    s_add_u32 s{sT0}, s{sT0}, {L_Y}
    v_lshl_add_u32 v{t}, v{vL31}, 5, s{sT0}
    v_lshl_add_u32 v{t + 1}, v{vL31}, 4, s{sT0}
    v_mov_b32 v{t + 2}, 0x01000c0c
    v_mov_b32 v{t + 3}, 0x03020c0c
    v_cmp_eq_u32 vcc, 1, v{vH}
    v_cndmask_b32 v{t + 2}, v{t + 2}, v{t + 3}, vcc''')
    for a in range(5):
        e = E0 + 4 * a
        A(f'v_cvt_pk_bf16_f32 v{24 + 2 * a}, v{e}, v{e + 1}')
        A(f'v_cvt_pk_bf16_f32 v{25 + 2 * a}, v{e + 2}, v{e + 3}')
        A(f'ds_write2st64_b32 v{YA + a}, v{24 + 2 * a}, v{25 + 2 * a} offset0:0 offset1:10')
    A('''s_waitcnt lgkmcnt(0)
    s_barrier''')
    Y = 40
    for k in range(4):
        A(f'ds_read_b128 {vr(Y + 4 * k, 4)}, v{t} offset:{1024 * (k >> 1) + 16 * (k & 1)}')
    A(f'ds_read_b128 {vr(Y + 16, 4)}, v{t + 1} offset:2048')
    A(f'''s_mul_i32 s{sT0}, s{sME}, 10240
    s_mul_i32 s{sT1}, s{sW}, 2560
    s_add_u32 s{sT1}, s{sT1}, s{sT0}
    s_add_u32 s{sT1}, s{sT1}, {WS_X1}
    s_add_u32 s{sT0}, s{sT0}, {WS_Y2}
    v_mul_u32_u24 v{t + 5}, 1280, v{vH}
    v_lshl_add_u32 v{t + 4}, v{vL31}, 4, v{t + 5}
    v_lshl_add_u32 v{t + 5}, v{vL31}, 3, v{t + 5}''')
    PK = 24
    for k in range(10):
        A(f'v_perm_b32 v{Y + 2 * k}, v{Y + 2 * k}, v{Y + 2 * k}, v{t + 2}')
        A(f'v_perm_b32 v{Y + 2 * k + 1}, v{Y + 2 * k + 1}, v{Y + 2 * k + 1}, v{t + 2}')
        A(f'v_pk_fma_f32 {vr(Y + 2 * k, 2)}, {vr(Y + 2 * k, 2)}, {vr(K3_GA + 2 * k, 2)}, {vr(K3_X + 2 * k, 2)}')
        A(f'v_cvt_pk_bf16_f32 v{PK + k}, v{Y + 2 * k}, v{Y + 2 * k + 1}')
    A(f'''buffer_store_dwordx4 {vr(PK, 4)}, v{t + 4}, {srd(S_WS)}, s{sT1} offen sc1
    buffer_store_dwordx4 {vr(PK + 4, 4)}, v{t + 4}, {srd(S_WS)}, s{sT1} offen offset:512 sc1
    buffer_store_dwordx2 {vr(PK + 8, 2)}, v{t + 5}, {srd(S_WS)}, s{sT1} offen offset:1024 sc1''')
    ST = t + 8
    row_stats(Y, ST)
    nm = 'op_sel:[0,0,1] op_sel_hi:[1,0,1] neg_lo:[0,0,1] neg_hi:[0,0,1]'
    for k in range(10):
        A(f'v_pk_fma_f32 {vr(Y + 2 * k, 2)}, {vr(Y + 2 * k, 2)}, {vr(ST, 2)}, {vr(ST, 2)} {nm}')
        A(f'v_pk_fma_f32 {vr(Y + 2 * k, 2)}, {vr(Y + 2 * k, 2)}, {vr(K3_CB + 2 * k, 2)}, {vr(K3_SB + 2 * k, 2)}')
    row_stats(Y, ST)
    A(f'''s_lshl_b32 s{sT2}, s{sW}, 1
    v_add_u32 v{t}, s{sT2}, v{vH}
    v_xor_b32 v{t + 1}, v{t}, v{vL31}
    v_and_b32 v{t + 1}, 7, v{t + 1}
    v_lshlrev_b32 v{t + 1}, 4, v{t + 1}
    v_lshl_add_u32 v{t + 1}, v{vL31}, 7, v{t + 1}
    v_add_u32 v{t + 1}, {L_Y2}, v{t + 1}
    v_lshrrev_b32 v{t + 2}, 1, v{vL31}
    v_xor_b32 v{t + 3}, v{t}, v{t + 2}
    v_and_b32 v{t + 3}, 7, v{t + 3}
    v_lshlrev_b32 v{t + 3}, 4, v{t + 3}
    v_lshl_add_u32 v{t + 3}, v{t + 2}, 7, v{t + 3}
    v_and_b32 v{t + 2}, 1, v{vL}
    v_lshl_add_u32 v{t + 3}, v{t + 2}, 3, v{t + 3}
    v_add_u32 v{t + 3}, {L_Y2 + 64 * 128}, v{t + 3}
    v_lshrrev_b32 v{t + 2}, 3, v0
    v_xor_b32 v{t + 4}, v{t + 2}, v0
    v_and_b32 v{t + 4}, 7, v{t + 4}
    v_lshlrev_b32 v{t + 4}, 4, v{t + 4}
    v_lshl_add_u32 v{t + 4}, v{t + 2}, 7, v{t + 4}
    v_add_u32 v{t + 4}, {L_Y2}, v{t + 4}
    v_cmp_gt_u32 vcc, 128, v0
    v_mov_b32 v{t + 5}, {OOB}
    v_cndmask_b32 v{t + 5}, v{t + 5}, v{vT16}, vcc''')
    PK = 60
    for k in range(10):
        A(f'v_pk_fma_f32 {vr(Y + 2 * k, 2)}, {vr(Y + 2 * k, 2)}, {vr(ST, 2)}, {vr(ST, 2)} {nm}')
        A(f'v_cvt_pk_bf16_f32 v{PK + k}, v{Y + 2 * k}, v{Y + 2 * k + 1}')
        if k == 3:
            A(f'ds_write_b128 v{t + 1}, {vr(PK, 4)}')
        if k == 7:
            A(f'ds_write_b128 v{t + 1}, {vr(PK + 4, 4)} offset:4096')
    A(f'''ds_write_b64 v{t + 3}, {vr(PK + 8, 2)}
    s_add_u32 s{sT1}, s{sT0}, 4096
    s_add_u32 s{sT2}, s{sT0}, 8192
    s_waitcnt vmcnt(0) lgkmcnt(0)
    s_barrier''')
    for i in range(3):
        A(f'ds_read_b128 {vr(24 + 4 * i, 4)}, v{t + 4} offset:{4096 * i}')
    for i in range(3):
        A(f'buffer_store_dwordx4 {vr(24 + 4 * i, 4)}, v{vT16 if i < 2 else t + 5}, {srd(S_WS)}, s{sT0 + i} offen sc1')


G1_A = 24
G1_ACC = 184
G1_B = 232
vG1A = 20
sG1 = sU + 13
B1RAW = 24


def b1_issue():
    t = TMP + 14
    A(f'''s_mul_i32 s{sT0}, s{sJ}, 192
    v_lshlrev_b32 v{t}, 3, v{vH}''')
    for k in range(12):
        A(f'buffer_load_dwordx2 {vr(B1RAW + 12 + 2 * k, 2)}, v{t}, {srd(S_B1)}, s{sT0} offen offset:{16 * k}')


def b1_finish():
    for k in range(24):
        unpack(G1_ACC + 2 * k, G1_ACC + 2 * k + 1, B1RAW + 12 + k)


def g1_load(i):
    return f'buffer_load_dwordx4 {vr(G1_A + 4 * i, 4)}, v{vG1A}, {srd(S_WS)}, s{sG1 + i // 16} offen offset:{256 * (i % 16)} sc1\n'


def poischeck(regs, tmp):
    out = []
    for n, r in enumerate(regs):
        if n == 0:
            out.append(f'v_max3_u32 v{tmp}, v{r}, v{r + 1}, v{r + 2}')
            out.append(f'v_max_u32 v{tmp}, v{tmp}, v{r + 3}')
        else:
            out.append(f'v_max3_u32 v{tmp}, v{tmp}, v{r}, v{r + 1}')
            out.append(f'v_max3_u32 v{tmp}, v{tmp}, v{r + 2}, v{r + 3}')
    out.append(f'v_cmp_eq_u32 vcc, -1, v{tmp}')
    return out


G1_GROUPS = [(0, 4), (4, 10), (10, 20), (20, 30), (30, 40)]
G1_FIRST = 12


def g1_issue():
    t = TMP
    A(f'''v_lshrrev_b32 v{t}, 3, v{vL31}
    v_mul_u32_u24 v{t}, 10240, v{t}
    v_lshl_add_u32 v{t}, v{vH}, 7, v{t}
    v_and_b32 v{t + 1}, 7, v{vL}
    v_lshl_add_u32 v{vG1A}, v{t + 1}, 4, v{t}
    s_lshl_b32 s{sT0}, s{sCL}, 2
    s_add_u32 s{sT0}, s{sT0}, s{sW}
    s_mul_i32 s{sT0}, s{sT0}, 40960
    s_add_u32 s{sG1}, s{sT0}, {WS_Y2}
    s_add_u32 s{sG1 + 1}, s{sG1}, 4096
    s_add_u32 s{sG1 + 2}, s{sG1}, 8192''')
    for i in range(G1_FIRST):
        A(g1_load(i))


def g1_main():
    t = TMP
    A(f'''v_lshrrev_b32 v{t}, 2, v{vL15}
    v_lshl_add_u32 v{t}, v{vH}, 3, v{t}
    v_mul_u32_u24 v{t}, 192, v{t}
    v_and_b32 v{t + 1}, 1, v{vQ}
    v_lshl_add_u32 v{t}, v{t + 1}, 5, v{t}
    v_and_b32 v{t + 1}, 3, v{vL}
    v_lshl_add_u32 v{t}, v{t + 1}, 3, v{t}
    v_add_u32 v{t + 1}, {20 * 3072}, v{t}''')
    NS = 5

    def rd(n):
        ks, tl = divmod(n, 3)
        ad = t + ks // 20
        off = (ks % 20) * 3072 + 64 * tl
        s = G1_B + 4 * (n % NS)
        return [f'ds_read_b64_tr_b16 {vr(s, 2)}, v{ad} offset:{off}', f'ds_read_b64_tr_b16 {vr(s + 2, 2)}, v{ad} offset:{off + 768}']
    PRE = 4
    for n in range(PRE):
        for x in rd(n):
            A(x)
    for gi, (a, b) in enumerate(G1_GROUPS):
        chk = poischeck([G1_A + 4 * i for i in range(a, b)], t + 2)
        poll_check(f'g1_{gi}', ''.join(g1_load(i) for i in range(a, b)), '\n'.join(chk))
        if gi == 0:
            stamp('y2')
            for i in range(G1_FIRST, 40):
                A(g1_load(i))
        for ks in range(a, b):
            for tl in range(3):
                n = 3 * ks + tl
                A(f'v_mfma_f32_32x32x16_bf16 {vr(G1_ACC + 16 * tl, 16)}, {vr(G1_B + 4 * (n % NS), 4)}, {vr(G1_A + 4 * ks, 4)}, {vr(G1_ACC + 16 * tl, 16)}')
                if n + PRE < 120:
                    for x in rd(n + PRE):
                        A(x)
    A('s_barrier')
    stamp('g1')


def gelu_store():
    t = TMP
    A(f'''v_lshrrev_b32 v{t}, 4, v{vL31}
    v_mul_u32_u24 v{t}, {48 * 1024}, v{t}
    v_lshl_add_u32 v{t}, v{vH}, 8, v{t}
    v_lshl_add_u32 v{t}, v{vL15}, 4, v{t}
    s_mul_i32 s{sT0}, s{sCL}, 393216
    s_mul_i32 s{sT1}, s{sW}, {96 * 1024}
    s_add_u32 s{sT0}, s{sT0}, s{sT1}
    s_mul_i32 s{sT1}, s{sJ}, 3072
    s_add_u32 s{sT0}, s{sT0}, s{sT1}
    s_add_u32 s{sT0}, s{sT0}, {WS_H}''')
    k0 = -2.0 * 0.7978845608028654 * 1.4426950408889634
    A(f'''v_mov_b32 v{t + 2}, {f2u(k0 * 0.044715)}
    v_mov_b32 v{t + 3}, {f2u(k0)}''')
    E = 24
    for tl in range(3):
        for g in range(2):
            regs = [G1_ACC + 16 * tl + 4 * g, G1_ACC + 16 * tl + 4 * g + 2, G1_ACC + 16 * tl + 8 + 4 * g, G1_ACC + 16 * tl + 8 + 4 * g + 2]
            e = E + 12 * ((2 * tl + g) & 1)
            for k, r in enumerate(regs):
                A(f'v_pk_mul_f32 {vr(e + 2 * k, 2)}, {vr(r, 2)}, {vr(r, 2)}')
            for k, r in enumerate(regs):
                A(f'v_pk_fma_f32 {vr(e + 2 * k, 2)}, {vr(e + 2 * k, 2)}, {vr(t + 2, 2)}, {vr(t + 2, 2)} op_sel:[0,0,1] op_sel_hi:[1,0,1]')
            for k, r in enumerate(regs):
                A(f'v_pk_mul_f32 {vr(e + 2 * k, 2)}, {vr(e + 2 * k, 2)}, {vr(r, 2)}')
            for k in range(8):
                A(f'v_exp_f32 v{e + k}, v{e + k}')
            for k in range(4):
                A(f'v_pk_add_f32 {vr(e + 2 * k, 2)}, {vr(e + 2 * k, 2)}, 1.0 op_sel_hi:[1,0]')
            for k in range(8):
                A(f'v_rcp_f32 v{e + k}, v{e + k}')
            for k, r in enumerate(regs):
                A(f'v_pk_mul_f32 {vr(e + 2 * k, 2)}, {vr(e + 2 * k, 2)}, {vr(r, 2)}')
            for k in range(4):
                A(f'v_cvt_pk_bf16_f32 v{e + 8 + k}, v{e + 2 * k}, v{e + 2 * k + 1}')
            A(f'buffer_store_dwordx4 {vr(e + 8, 4)}, v{t}, {srd(S_WS)}, s{sT0} offen offset:{1024 * tl + 512 * g} sc1')


G2_H = 24
G2_ACC = 168
G2_BASE = 208
G2_GB = 228
sG2 = sU + 16
vOA, vOC = 248, 249
RS = 336
PS = 16 * RS


def fin_issue(R):
    t = TMP
    A(f'''v_lshrrev_b32 v{t}, 2, v{vL}
    v_and_b32 v{t + 1}, 3, v{vL}
    v_mul_u32_u24 v{t + 2}, 1280, v{t}
    v_lshl_add_u32 v{t + 3}, v{t + 1}, 4, v{t + 2}
    v_lshl_add_u32 v{t + 4}, v{t + 1}, 3, v{t + 2}
    s_lshr_b32 s{sT0}, s{sJ}, 3
    s_lshl_b32 s{sT0}, s{sT0}, 2
    s_add_u32 s{sT0}, s{sT0}, s{sW}
    s_lshl_b32 s{sT1}, s{sCL}, 3
    s_add_u32 s{sT0}, s{sT0}, s{sT1}
    s_and_b32 s{sT2}, s{sJ}, 7
    s_mul_i32 s{sT3}, s{sT2}, 160
    s_mul_i32 s{sT1}, s{sT0}, {16 * 1280}
    s_add_u32 s{sT1}, s{sT1}, s{sT3}
    s_add_u32 s{sT1}, s{sT1}, {WS_X1}
    buffer_load_dwordx4 {vr(R, 4)}, v{t + 3}, {srd(S_WS)}, s{sT1} offen sc1
    buffer_load_dwordx4 {vr(R + 4, 4)}, v{t + 3}, {srd(S_WS)}, s{sT1} offen offset:64 sc1
    buffer_load_dwordx2 {vr(R + 8, 2)}, v{t + 4}, {srd(S_WS)}, s{sT1} offen offset:128 sc1
    v_lshlrev_b32 v{t + 5}, 4, v{t + 1}
    v_lshlrev_b32 v{t + 6}, 3, v{t + 1}
    v_lshlrev_b32 v{t + 7}, 5, v{t + 1}
    buffer_load_dwordx4 {vr(R + 10, 4)}, v{t + 5}, {srd(S_B2)}, s{sT3} offen
    buffer_load_dwordx4 {vr(R + 14, 4)}, v{t + 5}, {srd(S_B2)}, s{sT3} offen offset:64
    buffer_load_dwordx2 {vr(R + 18, 2)}, v{t + 6}, {srd(S_B2)}, s{sT3} offen offset:128
    s_mul_i32 s{sT4}, s{sT2}, 320
    s_add_u32 s{sT4}, s{sT4}, {WS_MOD + 5 * 2560}''')
    for k in range(4):
        A(f'buffer_load_dwordx2 {vr(R + 20 + 2 * k, 2)}, v{t + 7}, {srd(S_WS)}, s{sT4} offen offset:{128 * (k >> 1) + 16 * (k & 1)} sc1')
    A(f'buffer_load_dwordx2 {vr(R + 28, 2)}, v{t + 5}, {srd(S_WS)}, s{sT4} offen offset:256 sc1')
    A(f'''v_and_b32 v{t + 2}, 7, v{t}
    v_lshlrev_b32 v{t + 2}, 8, v{t + 2}
    v_lshrrev_b32 v{t}, 3, v{t}
    s_lshl_b32 s{sT0}, s{sT0}, 1
    v_add3_u32 v{t}, v{t}, v{t + 2}, s{sT0}
    v_mul_u32_u24 v{t}, 1280, v{t}
    v_add_u32 v{t}, s{sT3}, v{t}
    v_add_u32 v{vOA}, v{t}, v{t + 5}
    v_add_u32 v{vOC}, v{t}, v{t + 6}''')


def fin_finish(R):
    t = TMP
    for k in range(10):
        unpack(G2_GB + 2 * k, G2_GB + 2 * k + 1, R + 20 + k)
        unpack(G2_BASE + 2 * k, G2_BASE + 2 * k + 1, R + k)
        unpack(t, t + 1, R + 10 + k)
        A(f'v_pk_fma_f32 {vr(G2_BASE + 2 * k, 2)}, {vr(G2_GB + 2 * k, 2)}, {vr(t, 2)}, {vr(G2_BASE + 2 * k, 2)}')


def g2_load(blk, kl):
    r = G2_H + 48 * (blk % 3) + 4 * kl
    so = sG2 + blk
    return f'buffer_load_dwordx4 {vr(r, 4)}, v{[vL16, 21, 22][kl // 4]}, {srd(S_WS)}, s{so} offen offset:{1024 * (kl % 4)} sc1\n'


def g2_issue():
    A(f'''v_add_u32 v21, 4096, v{vL16}
    v_add_u32 v22, 8192, v{vL16}
    s_mul_i32 s{sT0}, s{sCL}, 393216
    s_lshr_b32 s{sT1}, s{sJ}, 3
    s_mul_i32 s{sT1}, s{sT1}, {4 * 48 * 1024}
    s_add_u32 s{sT0}, s{sT0}, s{sT1}
    s_mul_i32 s{sT1}, s{sW}, {12 * 1024}
    s_add_u32 s{sT0}, s{sT0}, s{sT1}
    s_add_u32 s{sT0}, s{sT0}, {WS_H}''')
    for blk in range(4):
        A(f'''s_add_u32 s{sT1}, s{sW}, {blk + 1}
        s_and_b32 s{sT1}, s{sT1}, 3
        s_mul_i32 s{sT1}, s{sT1}, {48 * 1024}
        s_add_u32 s{sG2 + blk}, s{sT0}, s{sT1}''')
    for kl in range(12):
        A(g2_load(0, kl))


def g2_main():
    t = TMP
    A(f'''v_mul_u32_u24 v{t}, {RS}, v{vL15}
    v_lshl_add_u32 v{t}, v{vQ}, 4, v{t}
    s_mul_i32 s{sT0}, s{sW}, {PS}
    v_add_u32 v{t}, s{sT0}, v{t}
    v_lshrrev_b32 v{t + 5}, 2, v{vL}
    v_mul_u32_u24 v{t + 5}, {RS}, v{t + 5}
    s_mul_i32 s{sT0}, s{sW}, {4 * PS}
    v_add_u32 v{t + 5}, s{sT0}, v{t + 5}
    v_and_b32 v{t + 7}, 3, v{vL}
    v_lshl_add_u32 v{t + 6}, v{t + 7}, 4, v{t + 5}
    v_lshl_add_u32 v{t + 5}, v{t + 7}, 5, v{t + 5}''')
    for blk in range(4):
        A(f'''s_add_u32 s{sT1}, s{sW}, {blk + 1}
        s_and_b32 s{sT1}, s{sT1}, 3
        s_mul_i32 s{sT1}, s{sT1}, {4 * PS}
        v_add_u32 v{t + 1 + blk}, s{sT1}, v{t}''')
    groups = {0: [(0, 3), (3, 12)], 1: [(0, 12)], 2: [(0, 12)], 3: [(0, 12)]}

    def rdp(dst, src_off):
        out = []
        for k in range(4):
            out.append(f'ds_read_b128 {vr(dst + 4 * k, 4)}, v{t + 5} offset:{src_off + 128 * (k >> 1) + 16 * (k & 1)}')
        out.append(f'ds_read_b128 {vr(dst + 16, 4)}, v{t + 6} offset:{src_off + 256}')
        return out
    for blk in range(4):
        acc = G2_ACC + 20 * (blk & 1)
        hb = G2_H + 48 * (blk % 3)
        side = []
        if blk >= 1:
            pa = G2_ACC + 20 * ((blk - 1) & 1)
            side = [f'ds_write_b128 v{t + blk}, {vr(pa + 4 * nt, 4)} offset:{64 * nt}' for nt in range(5)]
        for gi, (a, b) in enumerate(groups[blk]):
            chk = poischeck([hb + 4 * i for i in range(a, b)], t + 8)
            poll_check(f'g2_{blk}_{gi}', ''.join(g2_load(blk, i) for i in range(a, b)), '\n'.join(chk))
            if blk == 0 and gi == 0:
                stamp('h')
                for b2 in (1, 2):
                    for kl in range(12):
                        A(g2_load(b2, kl))
            for kl in range(a, b):
                for nt in range(5):
                    A(f'v_mfma_f32_16x16x32_bf16 {vr(acc + 4 * nt, 4)}, {ar((kl * 5 + nt) * 4, 4)}, {vr(hb + 4 * kl, 4)}, {vr(acc + 4 * nt, 4) if kl else 0}')
                    if kl >= 2 and side:
                        A(side.pop(0))
                if blk == 1:
                    A(g2_load(3, kl))
    stamp('g2')
    pa = G2_ACC + 20
    for nt in range(5):
        A(f'ds_write_b128 v{t + 4}, {vr(pa + 4 * nt, 4)} offset:{64 * nt}')
    A('''s_waitcnt lgkmcnt(0)
    s_barrier''')
    R = 24
    for src in range(4):
        for x in rdp(R + 20 * src, src * PS):
            A(x)
    for k in range(10):
        A(f'v_pk_add_f32 {vr(R + 2 * k, 2)}, {vr(R + 2 * k, 2)}, {vr(R + 20 + 2 * k, 2)}')
    for k in range(10):
        A(f'v_pk_add_f32 {vr(R + 2 * k, 2)}, {vr(R + 2 * k, 2)}, {vr(R + 40 + 2 * k, 2)}')
    for k in range(10):
        A(f'v_pk_add_f32 {vr(R + 2 * k, 2)}, {vr(R + 2 * k, 2)}, {vr(R + 60 + 2 * k, 2)}')
        A(f'v_pk_fma_f32 {vr(R + 2 * k, 2)}, {vr(R + 2 * k, 2)}, {vr(G2_GB + 2 * k, 2)}, {vr(G2_BASE + 2 * k, 2)}')
        A(f'v_cvt_pk_bf16_f32 v{R + 20 + k}, v{R + 2 * k}, v{R + 2 * k + 1}')
    A(f'''buffer_store_dwordx4 {vr(R + 20, 4)}, v{vOA}, {srd(S_OUT)}, 0 offen
    buffer_store_dwordx4 {vr(R + 24, 4)}, v{vOA}, {srd(S_OUT)}, 0 offen offset:64
    buffer_store_dwordx2 {vr(R + 28, 2)}, v{vOC}, {srd(S_OUT)}, 0 offen offset:128''')


def program():
    setup()
    if OPT['stamps']:
        A('v_mov_b32 v255, 0')
    stamp('start')
    gemv_issue()
    x1_issue()
    w2_fmt_issue()
    code_prefetch(48 * 1024)
    filt_issue()
    pois_init()
    k1_const_a()
    stamp('constA')
    gemv_compute(9)
    stamp('gemv')
    w2_fmt_finish()
    fill_region(WS_T, 16384)
    fill_region(WS_TP, 16384)
    fill_region(WS_Y2, 10240)
    fill_region(WS_H, 24576)
    w1_dma()
    ln1()
    k1_addr()
    k1_const_b()
    filt_finish()
    stamp('pre')
    mod1_issue()
    k1_main()
    stamp('k1')
    k2_const()
    k2_issue()

    SIDE = 152

    def after_t2():
        epoch_store()
        k3_side_issue(SIDE)
        w2_load(0, 5)
    k2_main(after_t2)
    stamp('k2')
    for k in range(0, 40, 2):
        A(f'v_pk_mov_b32 {vr(60 + k, 2)}, {vr(SIDE + k, 2)}, {vr(SIDE + k, 2)} op_sel:[0,1]')
    k3_side_finish(60)
    k3_const()
    k3_issue()
    k3_main(lambda: w2_load(5, 12))
    stamp('k3')
    b1_issue()
    b1_finish()
    g1_issue()
    g1_main()
    fin_issue(60)
    gelu_store()
    stamp('gelu')
    fin_finish(60)
    g2_issue()
    g2_main()
    stamp('end')
    if OPT['stamps']:
        A(f'''s_lshl_b32 s{sT0}, s{sME}, 10
        s_lshl_b32 s{sT1}, s{sW}, 8
        s_add_u32 s{sT0}, s{sT0}, s{sT1}
        s_add_u32 s{sT0}, s{sT0}, {WS_STAMP}
        v_writelane_b32 v255, s{sCNT}, 63
        v_lshlrev_b32 v{TMP}, 2, v{vL}
        buffer_store_dword v255, v{TMP}, {srd(S_WS)}, s{sT0} offen''')
        if OPT['stamps'] == 2:
            A(f'''s_load_dwordx2 s[4:5], s[0:1], 88
            s_mov_b32 s6, 256
            s_or_b32 s{sT0}, s{sME}, s{sW}
            s_cmp_eq_u32 s{sT0}, 0
            s_cselect_b32 s{sT0}, 0, {OOB}
            v_readlane_b32 s{sT1}, v255, 0
            v_subrev_u32 v255, s{sT1}, v255
            s_waitcnt lgkmcnt(0)
            buffer_store_dword v255, v{TMP}, s[4:7], s{sT0} offen''')
    A('L_end:')
    A('s_endpgm')


program()
hdr = open('cdna_kernels/%s.s.ref' % NAME).read().split('; Override launch')[0]
out = hdr
out += f'; @launch grid=(256,1,1) block=(256,1,1) lds={LDS_SIZE}\n'
out += f'''.amdgcn_target "amdgcn-amd-amdhsa--gfx950"
.text
.globl {NAME}_kernel
.p2align 8
.type {NAME}_kernel,@function
{NAME}_kernel:
'''
out += A.text()
out += RETRY.text()
out += f'''L_last:
    s_endpgm
.section .rodata,"a"
.p2align 6
.amdhsa_kernel {NAME}_kernel
  .amdhsa_next_free_vgpr 512
  .amdhsa_next_free_sgpr 102
  .amdhsa_accum_offset 256
  .amdhsa_group_segment_fixed_size 0
  .amdhsa_kernarg_size 104
  .amdhsa_user_sgpr_count 2
  .amdhsa_user_sgpr_kernarg_segment_ptr 1
  .amdhsa_system_sgpr_workgroup_id_x 1
.end_amdhsa_kernel
'''
open(sys.argv[1], 'w').write(out)
if OPT['stamps']:
    open(sys.argv[1] + '.stamps', 'w').write('\n'.join(STAMPS))
```

```python
import re

REG_RE = re.compile(r'^(-|abs\()?([vas])(?:(\d+)|\[(\d+):(\d+)\])\)?$')
TRANS = ('v_exp_f32', 'v_log_f32', 'v_rcp_f32', 'v_rsq_f32', 'v_sqrt_f32', 'v_sin_f32', 'v_cos_f32')


def regs_of(tok):
    tok = tok.strip()
    if tok == 'vcc':
        return [('s', 'vcc')]
    if tok == 'exec':
        return [('s', 'exec')]
    if tok in ('exec_lo', 'exec_hi'):
        return [('s', 'exec')]
    if tok in ('vcc_lo', 'vcc_hi'):
        return [('s', 'vcc')]
    if tok == 'm0':
        return [('s', 'm0')]
    m = REG_RE.match(tok)
    if not m:
        return []
    k = m.group(2)
    if m.group(3) is not None:
        return [(k, int(m.group(3)))]
    return [(k, i) for i in range(int(m.group(4)), int(m.group(5)) + 1)]


class Ins:
    def __init__(self, text):
        self.text = text
        t = text.split(';')[0].strip()
        self.label = t.endswith(':')
        self.directive = t.startswith('.')
        self.defs = []
        self.uses = []
        self.kind = 'other'
        self.op = ''
        if self.label or self.directive or not t:
            self.kind = 'label' if self.label else 'dir'
            return
        parts = t.split(None, 1)
        op = parts[0]
        self.op = op
        rest = parts[1] if len(parts) > 1 else ''
        ops = []
        cur = ''
        depth = 0
        for ch in rest:
            if ch in '[(':
                depth += 1
            if ch in '])':
                depth -= 1
            if ch == ',' and depth == 0:
                ops.append(cur.strip())
                cur = ''
            else:
                cur += ch
        if cur.strip():
            ops.append(cur.strip())
        mods = ''
        if ops:
            last = ops[-1].split(None, 1)
            if len(last) > 1:
                ops[-1] = last[0]
                mods = last[1]
        self.ops = ops
        self.mods = mods
        R = [regs_of(o) for o in ops]
        flat = lambda l: [r for x in l for r in x]
        base = op.replace('_e32', '').replace('_e64', '').replace('_dpp', '').replace('_sdwa', '')
        self.base = base
        self.dpp = op.endswith('_dpp')
        if op.startswith('v_mfma'):
            self.kind = 'mfma'
            self.defs = R[0]
            self.srcA, self.srcB, self.srcC = R[1], R[2], R[3]
            self.uses = flat(R[1:])
            self.passes = 8 if '32x32' in op else 4
        elif op.startswith('v_'):
            self.kind = 'valu'
            if base.startswith('v_cmp'):
                self.defs = R[0]
                self.uses = flat(R[1:])
            elif base in ('v_swap_b32', 'v_permlane16_swap_b32', 'v_permlane32_swap_b32'):
                self.defs = flat(R)
                self.uses = flat(R)
            elif base in ('v_add_co_u32', 'v_addc_co_u32', 'v_sub_co_u32'):
                self.defs = R[0] + R[1]
                self.uses = flat(R[2:])
            elif base == 'v_nop':
                pass
            else:
                self.defs = R[0]
                self.uses = flat(R[1:])
                if base in ('v_fmac_f32', 'v_dot2c_f32_bf16', 'v_writelane_b32') or self.dpp or op.endswith('_sdwa'):
                    self.uses = self.uses + R[0]
        elif op.startswith('ds_'):
            self.kind = 'ds'
            if op.startswith('ds_read') or op.startswith('ds_bpermute') or op.startswith('ds_permute') or op.startswith('ds_swizzle'):
                self.defs = R[0]
                self.uses = flat(R[1:])
            else:
                self.uses = flat(R)
            if 'addtid' in op:
                self.uses = self.uses + [('s', 'm0')]
        elif op.startswith('buffer_') or op.startswith('global_'):
            self.kind = 'vmem'
            self.store = 'store' in op
            self.lds = ' lds' in (' ' + mods) or op.startswith('global_load_lds')
            if op in ('buffer_wbl2', 'buffer_inv'):
                pass
            elif self.lds:
                self.uses = flat(R) + [('s', 'm0')]
            elif self.store:
                self.uses = flat(R)
                if op.startswith('buffer_'):
                    self.data = R[0]
                else:
                    self.data = R[1]
            else:
                self.defs = R[0]
                self.uses = flat(R[1:])
                if 'd16' in op:
                    self.uses = self.uses + R[0]
        elif op.startswith('s_load') or op in ('s_memtime', 's_memrealtime'):
            self.kind = 'smem'
            self.defs = R[0]
            self.uses = flat(R[1:])
        elif op == 's_waitcnt':
            self.kind = 'wait'
        elif op == 's_nop':
            self.kind = 'nop'
            self.n = int(ops[0], 0) + 1
        elif op in ('s_barrier', 's_endpgm', 's_sleep', 's_setprio'):
            self.kind = 'sctl'
        elif op.startswith('s_cbranch') or op == 's_branch':
            self.kind = 'branch'
            if 'vcc' in op:
                self.uses = [('s', 'vcc')]
        elif op.startswith('s_cmp') or op.startswith('s_bitcmp'):
            self.kind = 'salu'
            self.uses = flat(R)
        elif op.startswith('s_'):
            self.kind = 'salu'
            self.defs = R[0]
            self.uses = flat(R[1:])
            if 'saveexec' in op:
                self.defs = self.defs + [('s', 'exec')]
            if base in ('s_addk_i32', 's_mulk_i32', 's_cmov_b32'):
                self.uses = self.uses + R[0]
        else:
            raise ValueError('unknown instruction ' + text)


class Asm:
    def __init__(self):
        self.items = []

    def __call__(self, text):
        for line in text.split('\n'):
            line = line.strip()
            if line:
                self.items.append(Ins(line))

    def capture(self, fn):
        old = self.items
        self.items = []
        fn()
        got = self.items
        self.items = old
        return got

    @staticmethod
    def cost(i):
        if i.kind in ('label', 'dir'):
            return 0
        if i.kind == 'mfma':
            return 4 * i.passes
        if i.kind == 'valu' and i.base in TRANS:
            return 8
        if i.op == 's_barrier':
            return 40
        return 4

    def weave(self, fg, bg, gap, start=0):
        bg = list(bg)
        t = 0
        nxt = start
        noins = False
        for k, i in enumerate(fg):
            reads_scc = i.op.startswith('s_cselect') or i.op.startswith('s_cbranch') or i.op.startswith('s_addc')
            if i.kind == 'label' and i.text.startswith('L_chk'):
                noins = True
            if bg and t >= nxt and not reads_scc and not noins and i.kind != 'label':
                self.items.extend(bg.pop(0))
                nxt = t + gap
            self.items.append(i)
            if i.kind == 'label' and i.text.startswith('L_ok'):
                noins = False
            if i.kind == 'salu' and ('s', 'exec') in i.defs:
                noins = not i.text.strip().endswith('-1')
            if i.kind == 'branch' and 'L_slow' in i.text:
                noins = True
            if i.kind == 'label' and i.text.startswith('L_join'):
                noins = False
            t += self.cost(i)
        return bg

    def groups(self, fn):
        out = []
        cur = []
        for i in self.capture(fn):
            cur.append(i)
            if i.kind == 'vmem':
                out.append(cur)
                cur = []
        if cur:
            out[-1].extend(cur)
        return out

    def emit(self, groups):
        for g in groups:
            self.items.extend(g)

    def finish(self):
        out = []
        vm = []
        lg = []
        hist = []
        pos = [0]

        def issue(ins):
            out.append(ins)
            if ins.kind in ('label', 'dir'):
                return
            hist.append((pos[0], ins))
            pos[0] += ins.n if ins.kind == 'nop' else 1
            while hist and pos[0] - hist[0][0] > 40:
                hist.pop(0)

        def parse_wait(ins):
            t = ins.text
            m = re.search(r'vmcnt\((\d+)\)', t)
            if m:
                n = int(m.group(1))
                del vm[:max(0, len(vm) - n)]
            m = re.search(r'lgkmcnt\((\d+)\)', t)
            if m:
                n = int(m.group(1))
                if n == 0:
                    del lg[:]
                elif all(k == 'ds' for k, _ in lg):
                    del lg[:max(0, len(lg) - n)]

        for ins in self.items:
            if ins.kind == 'dir' and ins.text.startswith('.segment'):
                del vm[:]
                del lg[:]
                del hist[:]
                continue
            if ins.kind in ('label', 'dir'):
                out.append(ins)
                continue
            if ins.kind == 'wait':
                parse_wait(ins)
                issue(ins)
                continue
            touched = set(ins.defs) | set(ins.uses)
            need_vm = None
            for i, d in enumerate(vm):
                if d & touched:
                    need_vm = len(vm) - 1 - i
            need_lg = None
            for i, (k, d) in enumerate(lg):
                if d & touched:
                    need_lg = len(lg) - 1 - i
            if need_lg is not None and any(k == 'smem' for k, _ in lg):
                need_lg = 0
            if need_vm is not None or need_lg is not None:
                w = 's_waitcnt'
                if need_vm is not None:
                    w += ' vmcnt(%d)' % min(need_vm, 63)
                if need_lg is not None:
                    w += ' lgkmcnt(%d)' % min(need_lg, 15)
                wi = Ins(w)
                parse_wait(wi)
                issue(wi)
            need = 0
            uses = set(ins.uses)
            defs = set(ins.defs)
            for p, h in hist:
                dist = pos[0] - p - 1
                req = 0
                hd = set(h.defs)
                if h.kind == 'valu':
                    vd = {r for r in hd if r[0] in 'va'}
                    sd = {r for r in hd if r[0] == 's'}
                    if ins.kind == 'mfma' and (vd & uses):
                        req = max(req, 2)
                    if ins.kind == 'valu':
                        if h.base in TRANS and (vd & uses):
                            req = max(req, 1)
                        if ins.dpp and (vd & uses):
                            req = max(req, 2)
                        if ins.base.startswith('v_permlane') and (vd & uses):
                            req = max(req, 2)
                        if ins.base in ('v_readlane_b32', 'v_readfirstlane_b32') and (vd & uses):
                            req = max(req, 1)
                        if sd & uses:
                            req = max(req, 4 if ins.base in ('v_readlane_b32', 'v_writelane_b32') else 2)
                        if (h.op.endswith('_sdwa') or 'op_sel' in h.mods) and (vd & (uses | defs)):
                            req = max(req, 1 if not h.base.startswith('v_pk_') else 0)
                    if ins.kind == 'vmem' and (sd & uses):
                        req = max(req, 5)
                    if ins.kind in ('salu', 'smem') and (sd & uses):
                        req = max(req, 1)
                if h.kind == 'mfma':
                    long = 12 if h.passes == 8 else 8
                    if ins.kind == 'mfma':
                        if hd & (set(ins.srcA) | set(ins.srcB)):
                            req = max(req, long)
                        c = set(ins.srcC)
                        if hd & c and not (ins.srcC == h.defs and ins.passes == h.passes):
                            req = max(req, long - 2)
                        if (hd & defs) and not (ins.srcC == h.defs and ins.defs == h.defs and ins.passes == h.passes):
                            req = max(req, long - 2)
                    elif ins.kind in ('valu', 'vmem', 'ds'):
                        if hd & (uses | defs):
                            req = max(req, long)
                        if set(h.srcC) & defs:
                            req = max(req, 7 if h.passes == 8 else 3)
                if h.kind == 'vmem' and getattr(h, 'store', False) and len(h.data) >= 3:
                    if set(h.data) & defs:
                        req = max(req, 2)
                if h.kind == 'ds' and not h.defs and ins.kind == 'valu' and (set(h.uses) & defs) and ('b128' in h.op or 'b96' in h.op or 'write2_b64' in h.op):
                    req = max(req, 2)
                if h.kind == 'salu' and ('s', 'm0') in hd and ('s', 'm0') in uses:
                    req = max(req, 1)
                if h.kind == 'salu' and ('s', 'exec') in hd and ins.kind == 'valu' and (ins.dpp or ins.base.startswith('v_permlane')):
                    req = max(req, 1)
                need = max(need, req - dist)
            while need > 0:
                n = min(need, 16)
                issue(Ins('s_nop %d' % (n - 1)))
                need -= n
            issue(ins)
            if ins.kind == 'vmem':
                vm.append(set(ins.defs))
            elif ins.kind == 'ds':
                lg.append(('ds', set(ins.defs)))
            elif ins.kind == 'smem':
                lg.append(('smem', set(ins.defs)))
        return out

    def text(self):
        lines = []
        for i in self.finish():
            lines.append(i.text if i.kind in ('label', 'dir') else '    ' + i.text)
        return '\n'.join(lines) + '\n'


def vr(a, n=1):
    return 'v%d' % a if n == 1 else 'v[%d:%d]' % (a, a + n - 1)


def ar(a, n=1):
    return 'a%d' % a if n == 1 else 'a[%d:%d]' % (a, a + n - 1)


def sr(a, n=1):
    return 's%d' % a if n == 1 else 's[%d:%d]' % (a, a + n - 1)


def f2u(x):
    import struct
    return '0x%08x' % struct.unpack('<I', struct.pack('<f', x))[0]
```

```python
import sys, os
sys.path.insert(0, os.path.dirname(os.path.abspath(__file__)))
from asmlib import Asm, vr, ar, sr, f2u

NAME = 'adaLN_cond__spectral_gfnet__mixer_channel_mlp__prompt'
OPT = dict(stamps=0, stop=99, map=0, fixed=0, slow=0, outsc1=0, la1=8, la2=10, w1a=10, gap0=100, gap1=110, gap2=60, gap3=90, gap4=80, w2a=6, w2b=20, w2c=24, gsc1=0, filt0=1, st1=1, probe=-1)
for a in sys.argv[2:]:
    k, v = a.split('=')
    OPT[k] = int(v)

WS_EPOCH = 0x0
WS_XID = 0x400
WS_MOD = 0x1000
WS_MODD = 0x5000
WS_FLAG = 0x8000
BS = 16384 + 256
WS_T = 0x100000
WS_TP = 0x520000
WS_Y2 = 0x940000
WS_X1 = 0xBC0000
WS_H = 0xE40000
WS_W2P = 0x1440000
WS_STAMP = 0x1800000
WS_SIZE = 268435456
OOB = 0x7ff00000

BIG = 0
SCR = 122880
L_X1E = SCR
L_H1 = SCR + 24576
L_K2I = SCR + 24576
L_K2O = SCR
L_K3I = SCR + 24576
L_Y = SCR
L_Y2 = SCR + 24576
L_RED = SCR + 39680
L_FILT = SCR
LDS_SIZE = 163840

S_X, S_WR, S_WI, S_W1, S_B1, S_W2, S_B2, S_C, S_WM, S_OUT, S_WS = [4 + 4 * i for i in range(11)]
sME, sW, sTAG, sXC, sG, sK1, sCL, sJ = range(48, 56)
sT0, sT1, sT2, sT3, sT4, sT5, sT6, sT7 = range(56, 64)
sCNT = 96
sM1, sM2 = 64, 66
sU = 68
sSTAMP = 98

GSC = ' sc1' if OPT['gsc1'] else ''
ST1 = ['', ' sc1', ' nt'][OPT['st1']]
A = Asm()
RETRY = Asm()
nstamp = [0]


def srd(s):
    return sr(s, 4)


def stamp(name):
    if not OPT['stamps']:
        if OPT['probe'] == nstamp[0]:
            A(f"""s_memrealtime s[100:101]
            s_waitcnt lgkmcnt(0)
            s_sub_u32 s97, s100, s98""")
        nstamp[0] += 1
        return
    i = nstamp[0]
    nstamp[0] += 1
    A(f'''s_memrealtime {sr(sSTAMP, 2)}
    s_memtime {sr(sSTAMP + 2, 2)}
    s_waitcnt lgkmcnt(0)
    v_writelane_b32 v255, s{sSTAMP}, {i}
    v_writelane_b32 v255, s{sSTAMP + 2}, {i + 32}''')
    STAMPS.append(name)


STAMPS = []


def poll_check(label, loads, bad_cmp):
    A(f'L_chk_{label}:')
    A(bad_cmp)
    A(f's_cbranch_vccnz L_retry_{label}')
    A(f'L_ok_{label}:')
    RETRY('.segment')
    RETRY(f'''L_retry_{label}:
    s_sub_u32 s{sCNT}, s{sCNT}, 1
    s_cmp_lt_i32 s{sCNT}, 0
    s_cbranch_scc1 L_ok_{label}
    s_waitcnt vmcnt(0) lgkmcnt(0)
    s_nop 15''')
    RETRY(loads)
    RETRY(f'''s_waitcnt vmcnt(0)
    s_branch L_chk_{label}''')


def sincos(ang, c, s):
    A(f'v_cos_f32 v{c}, v{ang}')
    A(f'v_sin_f32 v{s}, v{ang}')


def fmamk(d, a, k, b):
    if k == 0:
        A(f'v_mov_b32 v{d}, v{b}')
    elif k == 1:
        A(f'v_add_f32 v{d}, v{a}, v{b}')
    else:
        A(f'v_fmamk_f32 v{d}, v{a}, {f2u(k)}, v{b}')


def unpack(lo, hi, src):
    A(f'v_lshlrev_b32 v{lo}, 16, v{src}')
    A(f'v_and_b32 v{hi}, 0xffff0000, v{src}')


def mod5(d, src, tmp):
    A(f'v_mul_u32_u24 v{tmp}, 205, v{src}')
    A(f'v_lshrrev_b32 v{tmp}, 10, v{tmp}')
    A(f'v_mul_u32_u24 v{tmp}, 5, v{tmp}')
    A(f'v_sub_u32 v{d}, v{src}, v{tmp}')


vT, vL = 0, 1
vL31, vH = 2, 3
vL15, vQ = 4, 5
vL16 = 6
vT16 = 7
TMP = 8


def setup():
    A(f'''s_cmp_ge_u32 s2, 256
    s_cbranch_scc1 L_end
    s_load_dwordx16 s[64:79], s[0:1], 0
    s_load_dwordx8 s[80:87], s[0:1], 64
    s_load_dwordx2 s[88:89], s[0:1], 96
    {f's_and_b32 s{sXC}, s2, 7' if not OPT['map'] else f's_lshr_b32 s{sXC}, s2, 5'}
    {f's_lshr_b32 s{sG}, s2, 3' if not OPT['map'] else f's_and_b32 s{sG}, s2, 31'}
    s_lshl_b32 s{sME}, s{sXC}, 5
    s_or_b32 s{sME}, s{sME}, s{sG}
    s_lshr_b32 s{sCL}, s{sME}, 4
    s_and_b32 s{sJ}, s{sME}, 15
    s_mov_b32 s{sCNT}, 20000
    v_and_b32 v{vL}, 63, v0
    v_lshrrev_b32 v{TMP}, 6, v0
    v_and_b32 v{vL31}, 31, v0
    v_readfirstlane_b32 s{sW}, v{TMP}
    v_lshrrev_b32 v{vH}, 5, v{vL}
    v_and_b32 v{vL15}, 15, v0
    v_lshrrev_b32 v{vQ}, 4, v{vL}
    v_lshlrev_b32 v{vL16}, 4, v{vL}
    v_lshlrev_b32 v{vT16}, 4, v0''')
    A(f'''s_sub_u32 s{sT0}, 8, s{sXC}
    s_and_b32 s{sT0}, s{sT0}, 7
    s_cmp_lt_u32 s{sG}, 16
    s_cselect_b32 s{sK1}, s{sXC}, s{sT0}''')
    sizes = {S_X: 2621440, S_WR: 1314816, S_WI: 1314816, S_W1: 1966080, S_B1: 3072, S_W2: 1966080, S_B2: 1280,
             S_C: 1280, S_WM: 4915200, S_OUT: 2621440, S_WS: WS_SIZE}
    src = {S_X: 64, S_WR: 66, S_WI: 68, S_W1: 72, S_B1: 74, S_W2: 76, S_B2: 78, S_C: 80, S_WM: 82, S_OUT: 84, S_WS: 88}
    for s in sizes:
        A(f's_mov_b32 s{s + 2}, {sizes[s]}')
        A(f's_mov_b32 s{s + 3}, 0x00020000')
    A('s_waitcnt lgkmcnt(0)')
    A(f's_load_dword s{sTAG}, s[88:89], {WS_EPOCH}')
    for s in (S_C, S_WM, S_X, S_WS, S_W2, S_WR, S_WI, S_W1, S_B1, S_B2, S_OUT):
        A(f's_mov_b64 {sr(s, 2)}, {sr(src[s], 2)}')


G_C = 24
G_W = 32
G_ACC = 52
sCB = sU
sMODST = sU + 1


def gemv_issue():
    A(f'''s_lshr_b32 s{sT0}, s{sG}, 2
    s_lshl_b32 s{sT0}, s{sT0}, 3
    s_add_u32 s{sT0}, s{sT0}, s{sXC}
    s_lshl_b32 s{sT1}, s{sT0}, 2
    s_and_b32 s{sT2}, s{sG}, 3
    s_add_u32 s{sCB}, s{sT1}, s{sT2}
    s_lshl_b32 s{sMODST}, s{sCB}, 6
    s_add_u32 s{sMODST}, s{sMODST}, {WS_MOD}
    s_cmp_lt_u32 s{sT0}, 60
    s_cselect_b32 s{sCB}, s{sCB}, 0
    s_cselect_b32 s{sMODST}, s{sMODST}, {OOB}
    s_lshl_b32 s{sT1}, s{sCB}, 5
    v_lshrrev_b32 v{TMP}, 1, v0
    v_lshlrev_b32 v{TMP + 1}, 1, v{TMP}
    v_mul_u32_u24 v{TMP}, 7680, v{TMP}
    v_and_b32 v{TMP + 2}, 1, v0
    v_lshl_add_u32 v{TMP}, v{TMP + 2}, 4, v{TMP}''')
    for i in range(5):
        A(f'buffer_load_ushort v{G_C + i}, v{TMP + 1}, {srd(S_C)}, 0 offen offset:{256 * i}')
    for i in range(5):
        A(f'buffer_load_dwordx4 {vr(G_W + 4 * i, 4)}, v{TMP}, {srd(S_WM)}, s{sT1} offen')
        if i < 4:
            A(f's_add_u32 s{sT1}, s{sT1}, {128 * 7680}')


def gemv_compute():
    t = TMP
    for i in range(5):
        A(f'v_lshlrev_b32 v{G_C + i}, 16, v{G_C + i}')
    for i in range(5):
        A(f'v_mul_f32 v{t + i}, {f2u(-1.4426950408889634)}, v{G_C + i}')
    for i in range(5):
        A(f'v_exp_f32 v{t + i}, v{t + i}')
    for i in range(5):
        A(f'v_add_f32 v{t + i}, 1.0, v{t + i}')
    for i in range(5):
        A(f'v_rcp_f32 v{t + i}, v{t + i}')
    for i in range(5):
        A(f'v_mul_f32 v{t + i}, v{G_C + i}, v{t + i}')
    for i in range(5):
        A(f'v_cvt_pk_bf16_f32 v{t + i}, v{t + i}, v{t + i}')
    for i in range(5):
        A(f'v_lshlrev_b32 v{G_C + i}, 16, v{t + i}')
    for i in range(5):
        sp = (G_C + i) & ~1
        sel = (G_C + i) & 1
        for k in range(4):
            u = t + 2 * (k & 1)
            unpack(u, u + 1, G_W + 4 * i + k)
            if i == 0:
                A(f'v_pk_mul_f32 {vr(G_ACC + 2 * k, 2)}, {vr(u, 2)}, {vr(sp, 2)} op_sel:[0,{sel}] op_sel_hi:[1,{sel}]')
            else:
                A(f'v_pk_fma_f32 {vr(G_ACC + 2 * k, 2)}, {vr(u, 2)}, {vr(sp, 2)}, {vr(G_ACC + 2 * k, 2)} op_sel:[0,{sel},0] op_sel_hi:[1,{sel},1]')
    a = G_ACC
    A(f'''v_and_b32 v{t + 4}, 1, v{vL}
    v_lshlrev_b32 v{t + 4}, 5, v{t + 4}
    v_and_b32 v{t + 5}, 1, v{vQ}
    v_lshl_add_u32 v{t + 4}, v{t + 5}, 3, v{t + 4}
    v_lshl_add_u32 v{t + 4}, v{vH}, 2, v{t + 4}
    s_lshl_b32 s{sT0}, s{sW}, 6
    s_add_u32 s{sT0}, s{sT0}, {L_RED}
    v_add_u32 v{t + 4}, s{sT0}, v{t + 4}''')
    for k in range(4):
        A(f'v_permlane32_swap_b32 v{a + 2 * k}, v{a + 2 * k + 1}')
    for k in range(4):
        A(f'v_add_f32 v{a + 2 * k}, v{a + 2 * k}, v{a + 2 * k + 1}')
    A(f'v_permlane16_swap_b32 v{a}, v{a + 2}')
    A(f'v_permlane16_swap_b32 v{a + 4}, v{a + 6}')
    A(f'v_add_f32 v{a}, v{a}, v{a + 2}')
    A(f'v_add_f32 v{a + 4}, v{a + 4}, v{a + 6}')
    for r in (8, 4, 2):
        A(f'v_add_f32_dpp v{a}, v{a}, v{a} row_ror:{r} row_mask:0xf bank_mask:0xf')
        A(f'v_add_f32_dpp v{a + 4}, v{a + 4}, v{a + 4} row_ror:{r} row_mask:0xf bank_mask:0xf')
    A(f'''ds_write_b32 v{t + 4}, v{a}
    ds_write_b32 v{t + 4}, v{a + 4} offset:16
    v_and_b32 v{t + 5}, 3, v{vL}
    v_lshlrev_b32 v{t + 5}, 4, v{t + 5}
    v_add_u32 v{t + 6}, {L_RED}, v{t + 5}
    s_waitcnt lgkmcnt(0)
    s_barrier''')
    for w in range(4):
        A(f'ds_read_b128 {vr(G_W + 4 * w, 4)}, v{t + 6} offset:{64 * w}')
    A(f'''s_mul_i32 s{sTAG}, s{sTAG}, 0x9E3779B1
    s_add_u32 s{sTAG}, s{sTAG}, 0x7F4A7C15
    s_mul_i32 s{sT0}, s{sCB}, 205
    s_lshr_b32 s{sT0}, s{sT0}, 13
    s_cmp_eq_u32 s{sT0}, 1
    s_cselect_b32 s{sT1}, 1.0, 0
    s_cmp_eq_u32 s{sT0}, 4
    s_cselect_b32 s{sT1}, 1.0, s{sT1}
    v_cmp_gt_u32 vcc, 4, v0
    v_mov_b32 v{t + 7}, {OOB}
    v_cndmask_b32 v{t + 5}, v{t + 7}, v{t + 5}, vcc''')
    g = G_W
    for p in (0, 2):
        A(f'v_pk_add_f32 {vr(g + p, 2)}, {vr(g + p, 2)}, {vr(g + 4 + p, 2)}')
        A(f'v_pk_add_f32 {vr(g + 8 + p, 2)}, {vr(g + 8 + p, 2)}, {vr(g + 12 + p, 2)}')
    for p in (0, 2):
        A(f'v_pk_add_f32 {vr(g + p, 2)}, {vr(g + p, 2)}, {vr(g + 8 + p, 2)}')
    A(f'v_cvt_pk_bf16_f32 v{g + 4}, v{g}, v{g + 1}')
    A(f'v_cvt_pk_bf16_f32 v{g + 5}, v{g + 2}, v{g + 3}')
    unpack(g, g + 1, g + 4)
    unpack(g + 2, g + 3, g + 5)
    for k in range(4):
        A(f'v_add_f32 v{g + k}, s{sT1}, v{g + k}')
    A(f'''v_cvt_pk_bf16_f32 v{g + 4}, v{g}, v{g + 1}
    v_cvt_pk_bf16_f32 v{g + 5}, v{g + 2}, v{g + 3}
    v_mov_b32 v{g + 6}, s{sTAG}
    v_mov_b32 v{g + 7}, s{sTAG}
    buffer_store_dwordx4 {vr(g + 4, 4)}, v{t + 5}, {srd(S_WS)}, s{sMODST} offen sc1
    v_lshrrev_b32 v{t + 5}, 1, v{t + 5}
    s_sub_u32 s{sT0}, s{sMODST}, {WS_MOD}
    s_lshr_b32 s{sT0}, s{sT0}, 1
    s_add_u32 s{sT0}, s{sT0}, {WS_MODD}
    buffer_store_dwordx2 {vr(g + 4, 2)}, v{t + 5}, {srd(S_WS)}, s{sT0} offen sc1''')


def code_prefetch(nbytes):
    t = TMP
    per = ((nbytes + 32 * 128 - 1) // (32 * 128))
    assert per <= 64
    A(f'''s_getpc_b64 {sr(sT2, 2)}
    L_pc:
    s_mul_i32 s{sT0}, s{sG}, {per * 128}
    s_sub_u32 s{sT0}, s{sT0}, L_pc-{NAME}_kernel
    v_min_u32 v{t}, {per - 1}, v{vL}
    v_lshlrev_b32 v{t}, 7, v{t}
    v_add_u32 v{t}, s{sT0}, v{t}
    v_min_i32 v{t}, L_last-L_pc, v{t}
    v_ashrrev_i32 v{t + 1}, 31, v{t}
    v_mov_b32 v{t + 2}, s{sT3}
    v_add_co_u32 v{t}, vcc, s{sT2}, v{t}
    v_addc_co_u32 v{t + 1}, vcc, v{t + 2}, v{t + 1}, vcc
    global_load_dword v250, {vr(t, 2)}, off''')


vW1 = 240
sW1O, sW1M = 90, 91
sBGO, sBGM = 92, 93
sXID = 94
sFAST = 95


def xid_store():
    t = TMP
    A(f"""s_getreg_b32 s{sXID}, hwreg(HW_REG_XCC_ID, 0, 4)
    s_lshl_b32 s{sT0}, s{sME}, 2
    s_add_u32 s{sT0}, s{sT0}, {WS_XID}
    v_mov_b32 v{t}, s{sXID}
    v_cmp_eq_u32 vcc, 0, v0
    v_mov_b32 v{t + 1}, {OOB}
    v_cndmask_b32 v{t + 1}, v{t + 1}, v0, vcc
    buffer_store_dword v{t}, v{t + 1}, {srd(S_WS)}, s{sT0} offen sc1""")


vXID = 243


def xid_load():
    A(f"""s_lshl_b32 s{sBGO}, s{sCL}, 6
    s_add_u32 s{sBGO}, s{sBGO}, {WS_XID}
    v_lshlrev_b32 v{vXID}, 2, v{vL15}
    buffer_load_dword v{vXID}, v{vXID}, {srd(S_WS)}, s{sBGO} offen sc1
    s_lshl_b32 s{sBGO}, s{sCL}, 9
    s_add_u32 s{sBGO}, s{sBGO}, {WS_FLAG}
    v_lshlrev_b32 v244, 3, v{vL}
    buffer_load_dword v244, v244, {srd(S_WS)}, s{sBGO} offen sc1""")


def xid_check():
    A(f"""v_cmp_ne_u32 vcc, s{sXID}, v{vXID}
    s_cmp_eq_u64 vcc, 0
    s_cselect_b32 s{sFAST}, {0 if OPT['slow'] else 1}, 0""")


def flag_publish(which):
    t = TMP + 14
    A(f"""s_lshl_b32 s{sT4}, s{sCL}, 9
    s_lshl_b32 s{sT5}, s{sJ}, 4
    s_add_u32 s{sT4}, s{sT4}, s{sT5}
    s_lshl_b32 s{sT5}, s{sW}, 2
    s_add_u32 s{sT4}, s{sT4}, s{sT5}
    s_add_u32 s{sT4}, s{sT4}, {WS_FLAG + 256 * which}
    v_mov_b32 v{t}, s{sTAG}
    v_mov_b32 v{t + 1}, 0
    s_cmp_eq_u32 s{sFAST}, 0
    s_waitcnt vmcnt(0)
    s_cbranch_scc1 L_slow_pub{which}
    buffer_store_dword v{t}, v{t + 1}, {srd(S_WS)}, s{sT4} offen
    L_join_pub{which}:""")
    RETRY('.segment')
    RETRY(f"""L_slow_pub{which}:
    buffer_wbl2 sc1
    s_waitcnt vmcnt(0)
    buffer_store_dword v{t}, v{t + 1}, {srd(S_WS)}, s{sT4} offen sc1
    s_branch L_join_pub{which}""")


vFL = 250


def flag_addr(which):
    if which == 0:
        A(f"""s_lshl_b32 s{sT5}, s{sW}, 6
        v_lshl_add_u32 v{vFL}, v{vL15}, 2, s{sT5}""")
    else:
        A(f"""s_lshl_b32 s{sT5}, s{sW}, 6
        s_lshr_b32 s{sT4}, s{sJ}, 3
        s_lshl_b32 s{sT4}, s{sT4}, 3
        s_add_u32 s{sT5}, s{sT5}, s{sT4}
        v_and_b32 v{vFL}, 13, v{vL}
        v_lshl_add_u32 v{vFL}, v{vFL}, 2, s{sT5}""")
    A(f"""s_lshl_b32 s{sBGO}, s{sCL}, 9
    s_add_u32 s{sBGO}, s{sBGO}, {WS_FLAG + 256 * which}""")


def flag_wait(which):
    ld = f'buffer_load_dword v{vFL + 1}, v{vFL}, {srd(S_WS)}, s{sBGO} offen sc1'
    A(ld)
    poll_check(f'fl{which}', ld, tagcheck([vFL + 1]))
    A(f"""s_cmp_eq_u32 s{sFAST}, 0
    s_cbranch_scc1 L_slow_acq{which}
    L_join_acq{which}:""")
    RETRY('.segment')
    RETRY(f"""L_slow_acq{which}:
    buffer_inv sc1
    s_waitcnt vmcnt(0)
    s_branch L_join_acq{which}""")


def w1_prep():
    t = TMP
    for i in range(3):
        A(f"""v_add_u32 v{t + 3}, {64 * i}, v{vL}
        v_mul_u32_u24 v{t + 4}, 171, v{t + 3}
        v_lshrrev_b32 v{t + 4}, 11, v{t + 4}
        v_mul_u32_u24 v{t + 5}, 12, v{t + 4}
        v_sub_u32 v{t + 5}, v{t + 3}, v{t + 5}
        v_mul_u32_u24 v{t + 4}, 3072, v{t + 4}
        v_lshl_add_u32 v{vW1 + i}, v{t + 5}, 4, v{t + 4}""")
    A(f"""s_mul_i32 s{sW1O}, s{sW}, {160 * 3072}
    s_mul_i32 s{sT1}, s{sJ}, 192
    s_add_u32 s{sW1O}, s{sW1O}, s{sT1}
    s_mul_i32 s{sW1M}, s{sW}, 30720""")


def w1_dma():
    for g in range(10):
        for i in range(3):
            A(f's_add_u32 m0, s{sW1M}, {BIG + 1024 * (3 * g + i)}')
            if i == 0 and g:
                A(f's_add_u32 s{sW1O}, s{sW1O}, {16 * 3072}')
            A(f'buffer_load_dwordx4 v{vW1 + i}, {srd(S_W1)}, s{sW1O} offen lds')


sW2ST = sU + 2


def w2_fmt_issue():
    t = TMP
    A(f"""s_mul_i32 s{sT0}, s{sME}, 205
    s_lshr_b32 s{sT0}, s{sT0}, 10
    s_mul_i32 s{sT1}, s{sT0}, 5
    s_sub_u32 s{sT1}, s{sME}, s{sT1}
    s_lshl_b32 s{sT1}, s{sT1}, 2
    s_add_u32 s{sT1}, s{sT1}, s{sW}
    s_mul_i32 s{sT2}, s{sT0}, {32 * 1280}
    s_lshl_b32 s{sT3}, s{sT1}, 6
    s_add_u32 s{sT2}, s{sT2}, s{sT3}
    s_mul_i32 s{sW2ST}, s{sT0}, 40960
    s_lshl_b32 s{sT3}, s{sT1}, 11
    s_add_u32 s{sW2ST}, s{sW2ST}, s{sT3}
    s_add_u32 s{sW2ST}, s{sW2ST}, {WS_W2P}
    s_cmp_lt_u32 s{sME}, 240
    s_cselect_b32 s{sW2ST}, s{sW2ST}, {OOB}
    s_cselect_b32 s{sT2}, s{sT2}, 0
    v_lshrrev_b32 v{t}, 2, v{vL}
    v_mul_u32_u24 v{t}, 1280, v{t}
    v_and_b32 v{t + 1}, 3, v{vL}
    v_lshl_add_u32 v{t}, v{t + 1}, 4, v{t}
    s_mul_i32 s{sT3}, s{sW}, 2560
    s_add_u32 m0, s{sT3}, {L_H1}
    s_add_u32 s{sT4}, s{sT2}, {16 * 1280}
    buffer_load_dwordx4 v{t}, {srd(S_W2)}, s{sT2} offen lds
    s_add_u32 m0, m0, 1024
    s_nop 0
    buffer_load_dwordx4 v{t}, {srd(S_W2)}, s{sT4} offen lds""")


def w2_fmt_finish():
    t = TMP
    A(f"""v_lshrrev_b32 v{t}, 2, v{vL}
    v_lshlrev_b32 v{t}, 6, v{t}
    v_and_b32 v{t + 1}, 3, v{vL}
    v_lshl_add_u32 v{t}, v{t + 1}, 3, v{t}
    s_mul_i32 s{sT0}, s{sW}, 2560
    s_add_u32 s{sT0}, s{sT0}, {L_H1}
    v_add_u32 v{t}, s{sT0}, v{t}""")
    for i in range(2):
        A(f'ds_read_b64_tr_b16 {vr(t + 4 + 4 * i, 2)}, v{t} offset:{32 * i}')
        A(f'ds_read_b64_tr_b16 {vr(t + 6 + 4 * i, 2)}, v{t} offset:{32 * i + 1024}')
    for i in range(2):
        A(f'buffer_store_dwordx4 {vr(t + 4 + 4 * i, 4)}, v{vL16}, {srd(S_WS)}, s{sW2ST} offen offset:{1024 * i} sc1')


def w2_load():
    A(f"""s_mul_i32 s{sW1O}, s{sW}, {12 * 40960}
    s_and_b32 s{sW1M}, s{sJ}, 7
    s_mul_i32 s{sW1M}, s{sW1M}, 5120
    s_add_u32 s{sW1O}, s{sW1O}, s{sW1M}
    s_add_u32 s{sW1O}, s{sW1O}, {WS_W2P}""")
    for kl in range(12):
        for nt in range(5):
            if nt == 0 and kl:
                A(f's_add_u32 s{sW1O}, s{sW1O}, {40960 - 4096}')
            if nt == 4:
                A(f's_add_u32 s{sW1O}, s{sW1O}, 4096')
            A(f'buffer_load_dwordx4 {ar((kl * 5 + nt) * 4, 4)}, v{vL16}, {srd(S_WS)}, s{sW1O} offen offset:{1024 * (nt & 3)} sc1')


F_RAW = 200
F_W = 216
vFA = 196
sFSH = sU + 3


def filt_prep():
    t = TMP
    A(f"""s_mul_i32 s{sT0}, s{sG}, 20
    s_sub_u32 s{sT1}, 623, s{sT0}
    s_mul_i32 s{sT3}, s{sW}, 5
    s_sub_u32 s{sT4}, 15, s{sT3}
    s_cmp_lt_u32 s{sG}, 16
    s_cselect_b32 s{sT0}, s{sT0}, s{sT1}
    s_cselect_b32 s{sT2}, 1, -1
    s_cselect_b32 s{sT3}, s{sT3}, s{sT4}
    s_add_u32 s{sT4}, s{sT0}, s{sK1}
    s_and_b32 s{sT4}, s{sT4}, 1
    s_add_u32 s{sFSH}, s{sT3}, s{sT4}
    s_lshl_b32 s{sT5}, s{sW}, 9
    s_add_u32 s{sT5}, s{sT5}, s{sK1}""")
    for i in range(3):
        A(f"""v_add_u32 v{t}, {64 * i}, v{vL}
        v_mul_u32_u24 v{t + 1}, 171, v{t}
        v_lshrrev_b32 v{t + 1}, 9, v{t + 1}
        v_mul_u32_u24 v{t + 2}, 3, v{t + 1}
        v_sub_u32 v{t + 2}, v{t}, v{t + 2}
        v_lshl_add_u32 v{t + 1}, v{t + 1}, 3, s{sT5}
        v_mul_i32_i24 v{t + 1}, s{sT2}, v{t + 1}
        v_and_b32 v{t + 1}, 2047, v{t + 1}
        v_mul_u32_u24 v{t + 1}, 321, v{t + 1}
        v_add_u32 v{t + 1}, s{sT0}, v{t + 1}
        v_lshrrev_b32 v{t + 1}, 1, v{t + 1}
        v_lshlrev_b32 v{t + 1}, 2, v{t + 1}
        v_lshl_add_u32 v{vFA + i}, v{t + 2}, 4, v{t + 1}""")
    A(f's_mul_i32 s{sBGM}, s{sW}, 3072')


def filt_dma():
    for p, s_ in enumerate((S_WR, S_WI)):
        for i in range(3):
            A(f's_add_u32 m0, s{sBGM}, {L_FILT + 12288 * p + 1024 * i}')
            A(f'buffer_load_dwordx4 v{vFA + i}, {srd(s_)}, 0 offen lds')


def filt_addr():
    t = TMP
    A(f"""s_lshr_b32 s{sT0}, s{sFSH}, 1
    s_lshl_b32 s{sT0}, s{sT0}, 2
    s_add_u32 s{sT0}, s{sT0}, {L_FILT}
    s_and_b32 s{sFSH}, s{sFSH}, 1
    s_lshl_b32 s{sFSH}, s{sFSH}, 4
    v_lshl_add_u32 v{t}, v{vQ}, 6, v{vL15}
    v_mul_u32_u24 v{t}, 48, v{t}
    v_add_u32 v{vFA}, s{sT0}, v{t}
    v_add_u32 v{vFA + 1}, 1536, v{vFA}
    v_add_u32 v{vFA + 2}, 12288, v{vFA}
    v_add_u32 v{vFA + 3}, {12288 + 1536}, v{vFA}""")


def filt_read():
    out = []
    for j in range(4):
        for p in range(2):
            o = 192 * (j & 1)
            out.append(f'ds_read2_b32 {vr(F_RAW + 4 * j + 2 * p, 2)}, v{vFA + 2 * p + (j >> 1)} offset0:{o} offset1:{o + 1}')
    return out


def filt_finish():
    t = TMP
    sc = 1.0 / (2048.0 * 640.0)
    A(f"""s_cmp_lt_u32 s{sG}, 16
    s_cselect_b64 vcc, -1, 0
    s_cselect_b32 s{sT3}, 0, 0x80000000
    s_mov_b32 s{sT0}, {f2u(sc)}
    s_mov_b32 s{sT1}, {f2u(2 * sc)}
    s_xor_b32 s{sT2}, s{sT0}, s{sT3}
    s_xor_b32 s{sT3}, s{sT1}, s{sT3}""")
    for j in range(4):
        for p in range(2):
            r = F_RAW + 4 * j + 2 * p
            A(f'v_lshrrev_b64 {vr(r, 2)}, s{sFSH}, {vr(r, 2)}')
            A(f"""v_lshlrev_b32 v{t}, 16, v{r}
            v_lshlrev_b32 v{t + 1}, 16, v{r + 1}
            v_and_b32 v{t + 2}, 0xffff0000, v{r}
            v_cndmask_b32 v{t + 3}, v{t + 1}, v{t}, vcc
            v_cndmask_b32 v{t + 4}, v{t}, v{t + 1}, vcc
            v_mul_f32 v{F_W + 8 + 4 * p + j}, s{sT1 + 2 * p}, v{t + 2}
            v_mul_f32 v{F_W + 4 * p + j}, s{sT0 + 2 * p}, v{t + 3}
            v_mul_f32 v{F_W + 16 + 4 * p + j}, s{sT1 + 2 * p}, v{t + 4}""")


X_RAW = 60
X_N = 72
K1_AD = 92
K1_M1 = 100
K1_M2 = 124
MODR = 24


def x1_issue():
    A(f'''s_lshl_b32 s{sT0}, s{sW}, 9
    s_add_u32 s{sT0}, s{sT0}, s{sME}
    s_mul_i32 s{sT0}, s{sT0}, 1280
    s_add_u32 s{sT1}, s{sT0}, {256 * 1280}
    v_lshlrev_b32 v{TMP + 3}, 2, v{vL}
    buffer_load_dwordx4 {vr(X_RAW, 4)}, v{vL16}, {srd(S_X)}, s{sT0} offen
    buffer_load_dwordx4 {vr(X_RAW + 4, 4)}, v{vL16}, {srd(S_X)}, s{sT1} offen
    buffer_load_dword v{X_RAW + 8}, v{TMP + 3}, {srd(S_X)}, s{sT0} offen offset:1024
    buffer_load_dword v{X_RAW + 9}, v{TMP + 3}, {srd(S_X)}, s{sT1} offen offset:1024''')


def k1_const_a():
    t = TMP
    A(f'''v_lshrrev_b32 v{t}, 3, v{vL31}
    v_cvt_f32_u32 v{t}, v{t}
    v_mul_f32 v{t}, {f2u(0.4)}, v{t}
    v_and_b32 v{t + 1}, 7, v{vL}
    v_cvt_f32_u32 v{t + 1}, v{t + 1}
    v_mul_f32 v{t + 1}, {f2u(0.125)}, v{t + 1}
    v_cvt_f32_u32 v{t + 2}, v{vH}
    v_mul_f32 v{t + 2}, v{t + 2}, v{t}''')
    for tau in range(3):
        fmamk(t + 3, t, 2 * tau, t + 2)
        for p in range(4):
            fmamk(t + 4, t + 1, 2 * p, t + 3)
            fmamk(t + 5, t + 1, 2 * p + 1, t + 3)
            sincos(t + 4, t + 6, t + 8)
            sincos(t + 5, t + 7, t + 9)
            A(f'v_cvt_pk_bf16_f32 v{K1_M1 + 4 * tau + p}, v{t + 6}, v{t + 7}')
            A(f'v_cvt_pk_bf16_f32 v{K1_M1 + 12 + 4 * tau + p}, -v{t + 8}, -v{t + 9}')
    A('s_mov_b32 exec_lo, 0')
    for p in range(4):
        A(f'v_mov_b32 v{K1_M1 + 8 + p}, 0')
        A(f'v_mov_b32 v{K1_M1 + 20 + p}, 0')
    A('s_mov_b32 exec_lo, -1')


def k1_const_b():
    t = TMP
    A(f'''v_cvt_f32_u32 v{t}, v{vL31}
    v_lshlrev_b32 v{t + 1}, 4, v{vH}
    v_add_u32 v{t + 1}, s{sW}, v{t + 1}
    v_cvt_f32_u32 v{t + 1}, v{t + 1}
    v_mul_f32 v{t}, {f2u(1.0 / 128)}, v{t}
    v_mul_f32 v{t + 1}, v{t + 1}, v{t}''')
    for u in range(4):
        for jj in range(4):
            e = 2 + 3 * (jj & 1)
            fmamk(t + e, t, 4 * (8 * u + jj), t + 1)
            sincos(t + e, t + e + 1, t + e + 2)
            A(f'v_cvt_pk_bf16_f32 v{K1_M2 + 4 * u + jj}, v{t + e + 1}, v{t + e + 2}')
            A(f'v_cvt_pk_bf16_f32 v{K1_M2 + 16 + 4 * u + jj}, -v{t + e + 2}, v{t + e + 1}')


def k1_addr():
    t = TMP
    A(f'''s_mul_i32 s{sT0}, s{sW}, 2560
    s_add_u32 s{sT0}, s{sT0}, {L_H1}
    v_mul_u32_u24 v{t}, 3, v{vL}
    v_lshlrev_b32 v{t + 1}, 3, v{vL15}
    v_add_u32 v{t + 1}, s{sT0}, v{t + 1}''')
    for k in range(5):
        A(f'v_add_u32 v{t + 2}, {k}, v{t}')
        mod5(t + 2, t + 2, t + 3)
        A(f'v_lshl_add_u32 v{K1_AD + k}, v{t + 2}, 9, v{t + 1}')
    A(f'''v_lshrrev_b32 v{t + 1}, 1, v{vL}
    v_lshlrev_b32 v{t + 1}, 2, v{t + 1}
    v_and_b32 v{t + 2}, 1, v{vL}
    v_lshl_add_u32 v{t + 1}, v{t + 2}, 8, v{t + 1}
    v_add_u32 v{t + 1}, s{sT0}, v{t + 1}''')
    for e in range(2):
        A(f'v_lshl_add_u32 v{t + 2}, v{vL}, 1, {2 + e}')
        mod5(t + 2, t + 2, t + 3)
        A(f'v_lshl_add_u32 v{K1_AD + 5 + e}, v{t + 2}, 9, v{t + 1}')
    A(f'''v_cmp_gt_u32 {sr(sM1, 2)}, 19, v{vL31}
    v_cmp_gt_u32 {sr(sM2, 2)}, 6, v{vL31}''')


def ln1():
    t = TMP
    for r in range(2):
        for k in range(4):
            unpack(X_N + 10 * r + 2 * k, X_N + 10 * r + 2 * k + 1, X_RAW + 4 * r + k)
        unpack(X_N + 10 * r + 8, X_N + 10 * r + 9, X_RAW + 8 + r)
    for r in range(2):
        b = X_N + 10 * r
        A(f'v_pk_add_f32 {vr(t + 2 * r, 2)}, {vr(b, 2)}, {vr(b + 2, 2)}')
        A(f'v_pk_mul_f32 {vr(t + 4 + 2 * r, 2)}, {vr(b, 2)}, {vr(b, 2)}')
        for k in range(1, 5):
            if k > 1:
                A(f'v_pk_add_f32 {vr(t + 2 * r, 2)}, {vr(t + 2 * r, 2)}, {vr(b + 2 * k, 2)}')
            A(f'v_pk_fma_f32 {vr(t + 4 + 2 * r, 2)}, {vr(b + 2 * k, 2)}, {vr(b + 2 * k, 2)}, {vr(t + 4 + 2 * r, 2)}')
    for k in range(4):
        A(f'v_add_f32 v{t + 2 * k}, v{t + 2 * k}, v{t + 2 * k + 1}')
    A(f'''v_permlane32_swap_b32 v{t}, v{t + 2}
    v_permlane32_swap_b32 v{t + 4}, v{t + 6}
    v_add_f32 v{t}, v{t}, v{t + 2}
    v_add_f32 v{t + 4}, v{t + 4}, v{t + 6}
    v_permlane16_swap_b32 v{t}, v{t + 4}
    v_add_f32 v{t}, v{t}, v{t + 4}''')
    for r in (8, 4, 2, 1):
        A(f'v_add_f32_dpp v{t}, v{t}, v{t} row_ror:{r} row_mask:0xf bank_mask:0xf')
    A(f'v_mul_f32 v{t}, {f2u(1.0 / 640)}, v{t}')
    for k in range(4):
        A(f'v_readlane_b32 s{sT0 + k}, v{t}, {16 * k}')
    for r in range(2):
        A(f'v_mov_b32 v{t + 4 + r}, s{sT0 + 2 * r}')
    for r in range(2):
        A(f'v_fma_f32 v{t + 2 * r}, -v{t + 4 + r}, v{t + 4 + r}, s{sT1 + 2 * r}')
    for r in range(2):
        A(f'v_max_f32 v{t + 2 * r}, 0, v{t + 2 * r}')
    for r in range(2):
        A(f'v_add_f32 v{t + 2 * r}, {f2u(1e-5)}, v{t + 2 * r}')
    for r in range(2):
        A(f'v_rsq_f32 v{t + 2 * r}, v{t + 2 * r}')
    for r in range(2):
        A(f'v_mul_f32 v{t + 2 * r + 1}, v{t + 4 + r}, v{t + 2 * r}')
    for r in range(2):
        for k in range(5):
            b = X_N + 10 * r + 2 * k
            A(f'v_pk_fma_f32 {vr(b, 2)}, {vr(b, 2)}, {vr(t + 2 * r, 2)}, {vr(t + 2 * r, 2)} op_sel:[0,0,1] op_sel_hi:[1,0,1] neg_lo:[0,0,1] neg_hi:[0,0,1]')


vMA, vMB = 48, 49


def mod1_loads():
    s = ''
    for v in range(2):
        o = v * 2560
        s += f'buffer_load_dwordx4 {vr(MODR + 12 * v, 4)}, v{vMA}, {srd(S_WS)}, 0 offen offset:{o} sc1\n'
        s += f'buffer_load_dwordx4 {vr(MODR + 12 * v + 4, 4)}, v{vMA}, {srd(S_WS)}, 0 offen offset:{o + 16} sc1\n'
        s += f'buffer_load_dwordx4 {vr(MODR + 12 * v + 8, 4)}, v{vMB}, {srd(S_WS)}, 0 offen offset:{o} sc1\n'
    return s


def tagcheck(regs):
    s = f'v_cmp_ne_u32 vcc, s{sTAG}, v{regs[0]}\n'
    for r in regs[1:]:
        s += f'v_cmp_ne_u32 {sr(sT6, 2)}, s{sTAG}, v{r}\n'
        s += f's_or_b64 vcc, vcc, {sr(sT6, 2)}\n'
    return s


def mod1_issue():
    A(f'''v_lshlrev_b32 v{vMA}, 5, v{vL}
    v_add_u32 v{vMA}, {WS_MOD}, v{vMA}
    v_lshrrev_b32 v{vMB}, 1, v{vL}
    v_lshlrev_b32 v{vMB}, 4, v{vMB}
    v_add_u32 v{vMB}, {WS_MOD + 2048}, v{vMB}''')
    A(mod1_loads())


K1_D = 24


def k1_poll():
    poll_check('mod1', mod1_loads(), tagcheck([MODR + 4 * i + 2 for i in range(6)]))
    stamp('mod1')


def k1_main():
    t = TMP
    A(f'''v_and_b32 v{t}, 1, v{vL}
    v_cmp_eq_u32 vcc, 1, v{t}
    v_cndmask_b32 v{MODR + 8}, v{MODR + 8}, v{MODR + 9}, vcc
    v_cndmask_b32 v{MODR + 20}, v{MODR + 20}, v{MODR + 21}, vcc''')
    srcs = [0, 1, 4, 5, 8]
    for k in range(5):
        u = t + 4 * (k & 1)
        unpack(u, u + 1, MODR + srcs[k])
        unpack(u + 2, u + 3, MODR + 12 + srcs[k])
        for r in range(2):
            b = X_N + 10 * r + 2 * k
            A(f'v_pk_fma_f32 {vr(b, 2)}, {vr(b, 2)}, {vr(u + 2, 2)}, {vr(u, 2)}')
        for e in (2 * k, 2 * k + 1):
            A(f'v_cvt_pk_bf16_f32 v{X_N + e}, v{X_N + e}, v{X_N + 10 + e}')
            if e < 8:
                A(f'ds_write_b32 v{K1_AD + e % 5}, v{X_N + e} offset:{(e & 3) * 128 + (e >> 2) * 4}')
            else:
                A(f'ds_write_b32 v{K1_AD + 5 + e - 8}, v{X_N + e} offset:{(e - 8) * 128}')
    A(f'''s_lshl_b32 s{sT0}, s{sW}, 7
    s_add_u32 s{sT0}, s{sT0}, {L_H1}
    v_lshl_add_u32 v{t + 1}, v{vL31}, 2, s{sT0}
    v_lshl_add_u32 v{t}, v{vH}, 9, v{t + 1}
    s_waitcnt lgkmcnt(0)
    s_barrier''')
    OPA = 60
    DRE, DIM = 24, 40
    for tau in range(3):
        ad = t if tau < 2 else t + 1
        for p in (0, 2):
            A(f'ds_read2st64_b32 {vr(OPA + 4 * tau + p, 2)}, v{ad} offset0:{4 * tau + 10 * p} offset1:{4 * tau + 10 * p + 10}')
    for x in filt_read():
        A(x)
    for tau in range(3):
        A(f'v_mfma_f32_32x32x16_bf16 {vr(DRE, 16)}, {vr(OPA + 4 * tau, 4)}, {vr(K1_M1 + 4 * tau, 4)}, {vr(DRE, 16) if tau else 0}')
        A(f'v_mfma_f32_32x32x16_bf16 {vr(DIM, 16)}, {vr(OPA + 4 * tau, 4)}, {vr(K1_M1 + 12 + 4 * tau, 4)}, {vr(DIM, 16) if tau else 0}')
    A(f'''s_mul_i32 s{sT0}, s{sW}, 6144
    s_add_u32 s{sT0}, s{sT0}, {L_X1E}
    v_lshl_add_u32 v{t}, v{vL31}, 3, s{sT0}
    v_lshl_add_u32 v{t}, v{vH}, 10, v{t}
    v_add_u32 v{t + 1}, 2048, v{t}
    v_add_u32 v{t + 2}, 4096, v{t}''')
    OPB = 72
    ERE, EIM = 156, 172
    for u in range(4):
        for jj in range(4):
            A(f'v_cvt_pk_bf16_f32 v{OPB + 4 * u + jj}, v{DRE + 4 * u + jj}, v{DIM + 4 * u + jj}')
        A(f'v_mfma_f32_32x32x16_bf16 {vr(ERE, 16)}, {vr(OPB + 4 * u, 4)}, {vr(K1_M2 + 4 * u, 4)}, {vr(ERE, 16) if u else 0}')
        A(f'v_mfma_f32_32x32x16_bf16 {vr(EIM, 16)}, {vr(OPB + 4 * u, 4)}, {vr(K1_M2 + 16 + 4 * u, 4)}, {vr(EIM, 16) if u else 0}')
    RA = t + 4
    A(f'v_lshrrev_b32 v{t + 3}, 5, v0')
    A(f'v_lshlrev_b32 v{t + 7}, 8, v{t + 3}')
    for c in range(3):
        A(f'''v_add_u32 v{RA + c}, {13 * c}, v{vL31}
        v_and_b32 v{RA + c}, 31, v{RA + c}
        v_lshl_add_u32 v{RA + c}, v{RA + c}, 3, v{t + 7}
        v_add_u32 v{RA + c}, {L_X1E + 2048 * c}, v{RA + c}''')
    A(f'''v_lshlrev_b32 v{t + 8}, 4, v{vL31}
    v_sub_u32 v{t + 9}, 8, v{t + 3}
    v_and_b32 v{t + 9}, 7, v{t + 9}
    v_lshl_add_u32 v{t + 9}, v{t + 9}, 11, v{t + 8}
    v_lshl_add_u32 v{t + 8}, v{t + 3}, 11, v{t + 8}
    s_mul_i32 s{sT1}, s{sME}, {BS}
    s_add_u32 s{sT1}, s{sT1}, {WS_T}
    s_waitcnt lgkmcnt(0)
    s_barrier''')
    for j in range(12):
        A(f'ds_write2_b32 v{t + (j >> 2)}, v{ERE + j}, v{EIM + j} offset0:{64 * (j & 3)} offset1:{64 * (j & 3) + 1}')
    A('''s_waitcnt lgkmcnt(0)
    s_barrier''')
    Z = 24
    for c in range(3):
        for b2 in range(4):
            A(f'ds_read_b64 {vr(Z + 8 * c + 2 * b2, 2)}, v{RA + c} offset:{6144 * b2}')
    O = 60
    P = 48
    for m in range(4):
        A(f'v_mov_b32 v{O + 4 * m + 3}, s{sTAG}')
    for c in range(3):
        z = Z + 8 * c
        A(f'''v_pk_add_f32 {vr(P, 2)}, {vr(z, 2)}, {vr(z + 4, 2)}
        v_pk_add_f32 {vr(P + 2, 2)}, {vr(z, 2)}, {vr(z + 4, 2)} neg_lo:[0,1] neg_hi:[0,1]
        v_pk_add_f32 {vr(P + 4, 2)}, {vr(z + 2, 2)}, {vr(z + 6, 2)}
        v_pk_add_f32 {vr(P + 6, 2)}, {vr(z + 2, 2)}, {vr(z + 6, 2)} neg_lo:[0,1] neg_hi:[0,1]
        v_pk_add_f32 {vr(z, 2)}, {vr(P, 2)}, {vr(P + 4, 2)}
        v_pk_add_f32 {vr(z + 4, 2)}, {vr(P, 2)}, {vr(P + 4, 2)} neg_lo:[0,1] neg_hi:[0,1]
        v_pk_add_f32 {vr(z + 2, 2)}, {vr(P + 2, 2)}, {vr(P + 6, 2)} op_sel:[0,1] op_sel_hi:[1,0] neg_hi:[0,1]
        v_pk_add_f32 {vr(z + 6, 2)}, {vr(P + 2, 2)}, {vr(P + 6, 2)} op_sel:[0,1] op_sel_hi:[1,0] neg_lo:[0,1]''')
        if c == 0:
            for k in range(4):
                A(f'v_cvt_pk_bf16_f32 v{O + 4 * k}, v{z + 2 * k}, v{z + 2 * k + 1}')
        else:
            for k in range(4):
                A(f'v_cvt_pk_bf16_f32 v{56 + k}, v{z + 2 * k}, v{z + 2 * k + 1}')
            r0 = 1 if c == 1 else 3
            for m in range(4):
                A(f'v_cndmask_b32 v{O + 4 * m + c}, v{56 + (m - r0) % 4}, v{56 + (m - r0 - 1) % 4}, {sr(sM1 if c == 1 else sM2, 2)}')
    for m in range(4):
        A(f'buffer_store_dwordx4 {vr(O + 4 * m, 4)}, v{t + 8 + (m >> 1)}, {srd(S_WS)}, s{sT1} offen offset:{512 * m} sc1')


K2C = 100
C_M1, C_TW1, C_M2, C_M3, C_TW2, C_M4 = [K2C + 8 * i for i in range(6)]
K2_IN = 24
vK2A = 148


def k2_const():
    t = TMP
    A(f'''v_cvt_f32_u32 v{t}, v{vL15}
    v_cvt_f32_u32 v{t + 1}, v{vQ}
    v_cvt_f32_u32 v{t + 2}, s{sK1}
    v_mul_f32 v{t + 1}, 4.0, v{t + 1}''')
    fmamk(t + 3, t, 8, t + 2)
    A(f'v_mul_f32 v{t + 3}, {f2u(1.0 / 128)}, v{t + 3}')
    A(f'v_mul_f32 v{t + 4}, {f2u(1.0 / 16)}, v{t}')
    A(f'v_mul_f32 v{t + 5}, {f2u(1.0 / 128)}, v{t}')
    A(f'v_mul_f32 v{t + 5}, v{t + 5}, v{t + 2}')
    for jj in range(4):
        A(f'v_add_f32 v{t + 6}, {f2u(float(jj))}, v{t + 1}')
        A(f'v_mul_f32 v{t + 7}, v{t + 6}, v{t + 3}')
        A(f'v_mul_f32 v{t + 8}, {f2u(1.0 / 16)}, v{t + 7}')
        A(f'v_mul_f32 v{t + 9}, v{t + 6}, v{t + 4}')
        A(f'v_add_f32 v{t + 10}, v{t + 9}, v{t + 5}')
        A(f'v_mul_f32 v{t + 11}, {f2u(1.0 / 16)}, v{t + 10}')
        sincos(t + 7, t + 12, t + 13)
        sincos(t + 8, C_TW1 + jj, C_TW1 + 4 + jj)
        A(f'v_cvt_pk_bf16_f32 v{C_M1 + jj}, v{t + 12}, v{t + 13}')
        A(f'v_cvt_pk_bf16_f32 v{C_M1 + 4 + jj}, -v{t + 13}, v{t + 12}')
        sincos(t + 9, t + 12, t + 13)
        sincos(t + 11, C_TW2 + jj, C_TW2 + 4 + jj)
        A(f'v_cvt_pk_bf16_f32 v{C_M2 + jj}, v{t + 12}, v{t + 13}')
        A(f'v_cvt_pk_bf16_f32 v{C_M2 + 4 + jj}, -v{t + 13}, v{t + 12}')
        A(f'v_cvt_pk_bf16_f32 v{C_M3 + jj}, v{t + 12}, -v{t + 13}')
        A(f'v_cvt_pk_bf16_f32 v{C_M3 + 4 + jj}, v{t + 13}, v{t + 12}')
        sincos(t + 10, t + 14, t + 15)
        A(f'v_cvt_pk_bf16_f32 v{C_M4 + jj}, v{t + 14}, -v{t + 15}')
        A(f'v_cvt_pk_bf16_f32 v{C_M4 + 4 + jj}, v{t + 15}, v{t + 14}')


sK2L = sU + 4


def k2_loads():
    s = ''
    for j in range(4):
        s += f'buffer_load_dwordx4 {vr(K2_IN + 4 * j, 4)}, v{vK2A}, {srd(S_WS)}, s{sK2L + j} offen sc1\n'
    return s


def k2_issue():
    t = TMP
    A(f'''v_lshrrev_b32 v{t}, 2, v{vL}
    v_mul_u32_u24 v{t}, {BS}, v{t}
    v_and_b32 v{t + 1}, 3, v{vL}
    v_lshl_add_u32 v{vK2A}, v{t + 1}, 4, v{t}
    s_mul_i32 s{sT0}, s{sW}, {64 * BS}
    s_lshl_b32 s{sT1}, s{sME}, 6
    s_add_u32 s{sT0}, s{sT0}, s{sT1}
    s_add_u32 s{sK2L}, s{sT0}, {WS_T}''')
    for j in range(1, 4):
        A(f's_add_u32 s{sK2L + j}, s{sK2L}, {16 * j * BS}')
    A(k2_loads())


def cmul(dre, dim, wr, wi, conj, tmp):
    for p in (0, 2):
        A(f'v_pk_mul_f32 {vr(tmp + p, 2)}, {vr(dre + p, 2)}, {vr(wr + p, 2)}')
        A(f'v_pk_mul_f32 {vr(tmp + 4 + p, 2)}, {vr(dim + p, 2)}, {vr(wr + p, 2)}')
    n1 = '' if conj else ' neg_lo:[1,0,0] neg_hi:[1,0,0]'
    n2 = ' neg_lo:[1,0,0] neg_hi:[1,0,0]' if conj else ''
    for p in (0, 2):
        A(f'v_pk_fma_f32 {vr(tmp + p, 2)}, {vr(dim + p, 2)}, {vr(wi + p, 2)}, {vr(tmp + p, 2)}{n1}')
        A(f'v_pk_fma_f32 {vr(tmp + 4 + p, 2)}, {vr(dre + p, 2)}, {vr(wi + p, 2)}, {vr(tmp + 4 + p, 2)}{n2}')


def k2_pre():
    t = TMP
    A(f'''v_and_b32 v{t}, 3, v{vL}
    v_mul_u32_u24 v{t}, 3104, v{t}
    v_lshrrev_b32 v{t + 1}, 2, v0
    v_lshl_add_u32 v{t}, v{t + 1}, 4, v{t}
    s_mul_i32 s{sT0}, s{sW}, 3104
    v_add_u32 v{t + 1}, s{sT0}, v{vL16}
    v_add_u32 v{t + 2}, {L_K2O}, v{t}
    v_add_u32 v{t + 3}, {L_K2O}, v{t + 1}
    v_add_u32 v{t}, {L_K2I}, v{t}
    v_add_u32 v{t + 1}, {L_K2I}, v{t + 1}''')


def k2_poll():
    t = TMP
    poll_check('t', k2_loads(), tagcheck([K2_IN + 4 * j + 3 for j in range(4)]))
    stamp('T')
    X = 40
    for c in range(3):
        cb, cs = c & ~1, c & 1
        for p in (0, 2):
            A(f'v_pk_mov_b32 {vr(X + 4 * c + p, 2)}, {vr(K2_IN + 4 * p + cb, 2)}, {vr(K2_IN + 4 * p + 4 + cb, 2)} op_sel:[{cs},{cs}]')
        A(f'ds_write_b128 v{t}, {vr(X + 4 * c, 4)} offset:{1024 * c}')
    A('''s_waitcnt lgkmcnt(0)
    s_barrier''')


def k2_main():
    t = TMP
    X = 40
    OP = 24
    D = 40
    U = 64
    for c in range(3):
        A(f'ds_read_b128 {vr(OP + 4 * c, 4)}, v{t + 1} offset:{1024 * c}')

    def stage(M, data_is_a):
        for c in range(3):
            for p in range(2):
                a, b = (vr(OP + 4 * c, 4), vr(M + 4 * p, 4)) if data_is_a else (vr(M + 4 * p, 4), vr(OP + 4 * c, 4))
                A(f'v_mfma_f32_16x16x32_bf16 {vr(D + 8 * c + 4 * p, 4)}, {a}, {b}, 0')

    def mid(wr, wi, conj, M, data_is_a):
        for c in range(3):
            cmul(D + 8 * c, D + 8 * c + 4, wr(c), wi(c), conj, U + 8 * c)
            for jj in range(4):
                A(f'v_cvt_pk_bf16_f32 v{OP + 4 * c + jj}, v{U + 8 * c + jj}, v{U + 8 * c + 4 + jj}')
            for p in range(2):
                a, b = (vr(OP + 4 * c, 4), vr(M + 4 * p, 4)) if data_is_a else (vr(M + 4 * p, 4), vr(OP + 4 * c, 4))
                A(f'v_mfma_f32_16x16x32_bf16 {vr(D + 8 * c + 4 * p, 4)}, {a}, {b}, 0')
    stage(C_M1, True)
    mid(lambda c: C_TW1, lambda c: C_TW1 + 4, True, C_M2, False)
    mid(lambda c: F_W + 8 * c, lambda c: F_W + 8 * c + 4, False, C_M3, True)
    mid(lambda c: C_TW2, lambda c: C_TW2 + 4, False, C_M4, False)
    for c in range(3):
        for jj in range(4):
            A(f'v_cvt_pk_bf16_f32 v{OP + 4 * c + jj}, v{D + 8 * c + jj}, v{D + 8 * c + 4 + jj}')
        A(f'ds_write_b128 v{t + 3}, {vr(OP + 4 * c, 4)} offset:{1024 * c}')
    A(f'''s_mul_i32 s{sT0}, s{sME}, {BS}
    s_lshl_b32 s{sT1}, s{sW}, 12
    s_add_u32 s{sT0}, s{sT0}, s{sT1}
    s_add_u32 s{sT0}, s{sT0}, {WS_TP}
    v_mov_b32 v{52}, s{sTAG}
    v_mov_b32 v{53}, s{sTAG}
    s_waitcnt lgkmcnt(0)
    s_barrier''')
    for c in range(3):
        A(f'ds_read_b128 {vr(X + 4 * c, 4)}, v{t + 2} offset:{1024 * c}')
    O = 64
    for j in range(4):
        jb, js = j & ~1, j & 1
        A(f'v_pk_mov_b32 {vr(O + 4 * j, 2)}, {vr(X + jb, 2)}, {vr(X + 4 + jb, 2)} op_sel:[{js},{js}]')
        A(f'v_pk_mov_b32 {vr(O + 4 * j + 2, 2)}, {vr(X + 8 + jb, 2)}, {vr(52, 2)} op_sel:[{js},0]')
        A(f'buffer_store_dwordx4 {vr(O + 4 * j, 4)}, v{vL16}, {srd(S_WS)}, s{sT0} offen offset:{1024 * j} sc1')


def epoch_store():
    t = TMP + 12
    A(f'''s_cmp_eq_u32 s{sME}, 0
    s_cselect_b32 s{sBGO}, {WS_EPOCH}, {OOB}
    v_mov_b32 v{t}, s{sTAG}
    v_mov_b32 v{t + 1}, 0
    buffer_store_dword v{t}, v{t + 1}, {srd(S_WS)}, s{sBGO} offen sc1''')


K3_MA = 100
K3_MB = 132
K3_X = 156
K3_GA = 176
K3_SB = 196
K3_CB = 216
K3_IN = 24
vK3A, vK3B = 236, 237
vXA, vXC = 22, 23
sK3 = sU + 8
RAW3 = 40


def k3_const():
    t = TMP
    A(f'''v_lshlrev_b32 v{t}, 2, v{vL31}
    v_add_u32 v{t}, s{sW}, v{t}
    v_cvt_f32_u32 v{t}, v{t}
    v_mul_f32 v{t}, {f2u(1.0 / 128)}, v{t}
    v_cvt_f32_u32 v{t + 8}, v{vH}
    v_mul_f32 v{t + 8}, 4.0, v{t + 8}
    v_mul_f32 v{t + 1}, v{t + 8}, v{t}''')
    for u in range(4):
        for jj in range(4):
            e = 2 + 3 * (jj & 1)
            fmamk(t + e, t, 8 * u + jj, t + 1)
            sincos(t + e, t + e + 1, t + e + 2)
            A(f'v_cvt_pk_bf16_f32 v{K3_MA + 4 * u + jj}, v{t + e + 1}, -v{t + e + 2}')
            A(f'v_cvt_pk_bf16_f32 v{K3_MA + 16 + 4 * u + jj}, v{t + e + 2}, v{t + e + 1}')
    A(f'''v_lshrrev_b32 v{t}, 3, v{vL31}
    v_cvt_f32_u32 v{t}, v{t}
    v_mul_f32 v{t}, {f2u(0.4)}, v{t}
    v_and_b32 v{t + 1}, 7, v{vL}
    v_cvt_f32_u32 v{t + 1}, v{t + 1}
    v_mul_f32 v{t + 1}, {f2u(0.125)}, v{t + 1}
    v_mul_f32 v{t + 9}, v{t + 8}, v{t + 1}''')
    for jj in range(4):
        fmamk(t + 10, t + 1, jj, t + 9)
        for tau in range(3):
            fmamk(t + 2, t, tau, t + 10)
            sincos(t + 2, t + 3, t + 4)
            if tau:
                A(f'v_add_f32 v{t + 5}, {f2u(1.6 * tau)}, v{t + 10}')
                sincos(t + 5, t + 6, t + 7)
            A(f'v_cvt_pk_bf16_f32 v{K3_MB + 4 * tau + jj}, v{t + 3}, -v{t + 4}')
            if tau:
                A(f'v_cvt_pk_bf16_f32 v{K3_MB + 12 + 4 * tau + jj}, v{t + 6}, -v{t + 7}')
            else:
                A(f'v_mov_b32 v{K3_MB + 12 + jj}, v{K3_MB + jj}')


def k3_loads():
    s = ''
    for m in range(4):
        s += f'buffer_load_dwordx4 {vr(K3_IN + 4 * m, 4)}, v{vK3A + (m >> 1)}, {srd(S_WS)}, s{sK3 + m} offen sc1\n'
    return s


def k3_issue():
    t = TMP
    A(f'''v_lshrrev_b32 v{t}, 5, v0
    v_sub_u32 v{t + 1}, 8, v{t}
    v_and_b32 v{t + 1}, 7, v{t + 1}
    v_lshrrev_b32 v{t + 2}, 2, v{vL31}
    v_lshl_add_u32 v{t}, v{t}, 5, v{t + 2}
    v_lshl_add_u32 v{t + 1}, v{t + 1}, 5, v{t + 2}
    v_mul_u32_u24 v{t}, {BS}, v{t}
    v_mul_u32_u24 v{t + 1}, {BS}, v{t + 1}
    v_and_b32 v{t + 2}, 3, v{vL}
    v_lshl_add_u32 v{vK3A}, v{t + 2}, 4, v{t}
    v_lshl_add_u32 v{vK3B}, v{t + 2}, 4, v{t + 1}
    s_lshl_b32 s{sT0}, s{sME}, 6
    s_add_u32 s{sK3}, s{sT0}, {WS_TP}''')
    for m in range(1, 4):
        A(f's_add_u32 s{sK3 + m}, s{sK3}, {8 * m * BS}')
    A(k3_loads())


sX3 = sU + 12


def k3_side_issue(R):
    t = TMP + 10
    A(f"""s_lshl_b32 s{sX3}, s{sW}, 9
    s_add_u32 s{sX3}, s{sX3}, s{sME}
    s_mul_i32 s{sX3}, s{sX3}, 1280
    v_mul_u32_u24 v{t}, {256 * 1280}, v{vH}
    v_lshl_add_u32 v{vXA}, v{vL31}, 4, v{t}
    v_lshl_add_u32 v{vXC}, v{vL31}, 3, v{t}
    buffer_load_dwordx4 {vr(R, 4)}, v{vXA}, {srd(S_X)}, s{sX3} offen
    buffer_load_dwordx4 {vr(R + 4, 4)}, v{vXA}, {srd(S_X)}, s{sX3} offen offset:512
    buffer_load_dwordx2 {vr(R + 8, 2)}, v{vXC}, {srd(S_X)}, s{sX3} offen offset:1024
    v_lshlrev_b32 v{t}, 4, v{vL31}
    v_lshlrev_b32 v{t + 1}, 3, v{vL31}
    s_mov_b32 s{sX3}, {WS_MODD + 2 * 1280}""")
    for v in range(3):
        A(f"""buffer_load_dwordx4 {vr(R + 10 + 10 * v, 4)}, v{t}, {srd(S_WS)}, s{sX3} offen offset:{1280 * v} sc1
        buffer_load_dwordx4 {vr(R + 14 + 10 * v, 4)}, v{t}, {srd(S_WS)}, s{sX3} offen offset:{1280 * v + 512} sc1
        buffer_load_dwordx2 {vr(R + 18 + 10 * v, 2)}, v{t + 1}, {srd(S_WS)}, s{sX3} offen offset:{1280 * v + 1024} sc1""")


def k3_side_finish(R):
    for i, dst in enumerate((K3_X, K3_GA, K3_SB, K3_CB)):
        for k in range(10):
            unpack(dst + 2 * k, dst + 2 * k + 1, R + 10 * i + k)


def row_stats(b, t):
    A(f'v_pk_add_f32 {vr(t, 2)}, {vr(b, 2)}, {vr(b + 2, 2)}')
    A(f'v_pk_mul_f32 {vr(t + 2, 2)}, {vr(b, 2)}, {vr(b, 2)}')
    for k in range(1, 10):
        if k > 1:
            A(f'v_pk_add_f32 {vr(t, 2)}, {vr(t, 2)}, {vr(b + 2 * k, 2)}')
        A(f'v_pk_fma_f32 {vr(t + 2, 2)}, {vr(b + 2 * k, 2)}, {vr(b + 2 * k, 2)}, {vr(t + 2, 2)}')
    A(f'''v_add_f32 v{t}, v{t}, v{t + 1}
    v_add_f32 v{t + 2}, v{t + 2}, v{t + 3}
    v_permlane16_swap_b32 v{t}, v{t + 2}
    v_add_f32 v{t}, v{t}, v{t + 2}''')
    for r in (8, 4, 2, 1):
        A(f'v_add_f32_dpp v{t}, v{t}, v{t} row_ror:{r} row_mask:0xf bank_mask:0xf')
    A(f'''v_mul_f32 v{t + 1}, {f2u(1.0 / 640)}, v{t}
    v_mul_f32 v{t + 2}, {f2u(1.0 / 640)}, v{t}
    v_permlane16_swap_b32 v{t + 1}, v{t + 2}
    v_fma_f32 v{t}, -v{t + 1}, v{t + 1}, v{t + 2}
    v_max_f32 v{t}, 0, v{t}
    v_add_f32 v{t}, {f2u(1e-5)}, v{t}
    v_rsq_f32 v{t}, v{t}
    v_mul_f32 v{t + 1}, v{t + 1}, v{t}''')


def k3_pre():
    t = TMP
    WA = t
    A(f'v_lshrrev_b32 v{t + 3}, 5, v0')
    A(f'v_mul_u32_u24 v{t + 3}, 144, v{t + 3}')
    for c in range(3):
        A(f'''v_add_u32 v{WA + c}, {13 * c}, v{vL31}
        v_and_b32 v{WA + c}, 31, v{WA + c}
        v_lshl_add_u32 v{WA + c}, v{WA + c}, 2, v{t + 3}
        v_add_u32 v{WA + c}, {L_K3I + 8 * 144 * c}, v{WA + c}''')
    A(f'''s_mul_i32 s{sT0}, s{sW}, {24 * 144}
    s_add_u32 s{sT0}, s{sT0}, {L_K3I}
    v_mul_u32_u24 v{t + 3}, 144, v{vL31}
    v_lshl_add_u32 v{t + 3}, v{vH}, 4, v{t + 3}
    v_add_u32 v{t + 3}, s{sT0}, v{t + 3}''')
    YA = t + 4
    A(f'''v_lshl_add_u32 v{t + 9}, v{vL31}, 2, s{sW}
    v_mul_u32_u24 v{t + 10}, 3, v{t + 9}
    v_lshlrev_b32 v{t + 9}, 2, v{t + 9}
    v_mul_u32_u24 v{t + 11}, 5120, v{vH}
    v_add3_u32 v{t + 9}, v{t + 9}, v{t + 11}, 0
    v_add_u32 v{t + 9}, {L_Y}, v{t + 9}''')
    for a in range(5):
        A(f'v_add_u32 v{t + 11}, {2 * a}, v{t + 10}')
        mod5(t + 11, t + 11, t + 12)
        A(f'v_lshl_add_u32 v{YA + a}, v{t + 11}, 9, v{t + 9}')


def k3_poll():
    poll_check('tp', k3_loads(), tagcheck([K3_IN + 4 * m + 3 for m in range(4)]))
    stamp('Tp')


def k3_main():
    t = TMP
    WA = t
    YA = t + 4
    Z = 40
    P = 48
    Q = 56
    for c in range(3):
        if c == 0:
            src = [K3_IN + 4 * k for k in range(4)]
        else:
            r0 = 1 if c == 1 else 3
            for k in range(4):
                A(f'v_cndmask_b32 v{Q + k}, v{K3_IN + 4 * ((k + r0) % 4) + c}, v{K3_IN + 4 * ((k + r0 + 1) % 4) + c}, {sr(sM1 if c == 1 else sM2, 2)}')
            src = [Q + k for k in range(4)]
        z = Z + 20 * (c & 1)
        for k in range(4):
            unpack(z + 2 * k, z + 2 * k + 1, src[k])
        A(f'''v_pk_add_f32 {vr(P, 2)}, {vr(z, 2)}, {vr(z + 4, 2)}
        v_pk_add_f32 {vr(P + 2, 2)}, {vr(z, 2)}, {vr(z + 4, 2)} neg_lo:[0,1] neg_hi:[0,1]
        v_pk_add_f32 {vr(P + 4, 2)}, {vr(z + 2, 2)}, {vr(z + 6, 2)}
        v_pk_add_f32 {vr(P + 6, 2)}, {vr(z + 2, 2)}, {vr(z + 6, 2)} neg_lo:[0,1] neg_hi:[0,1]
        v_pk_add_f32 {vr(z, 2)}, {vr(P, 2)}, {vr(P + 4, 2)}
        v_pk_add_f32 {vr(z + 4, 2)}, {vr(P, 2)}, {vr(P + 4, 2)} neg_lo:[0,1] neg_hi:[0,1]
        v_pk_add_f32 {vr(z + 2, 2)}, {vr(P + 2, 2)}, {vr(P + 6, 2)} op_sel:[0,1] op_sel_hi:[1,0] neg_lo:[0,1]
        v_pk_add_f32 {vr(z + 6, 2)}, {vr(P + 2, 2)}, {vr(P + 6, 2)} op_sel:[0,1] op_sel_hi:[1,0] neg_hi:[0,1]''')
        for k in range(4):
            A(f'v_cvt_pk_bf16_f32 v{z + 2 * k}, v{z + 2 * k}, v{z + 2 * k + 1}')
            A(f'ds_write_b32 v{WA + c}, v{z + 2 * k} offset:{24 * 144 * k}')
    A('''s_waitcnt lgkmcnt(0)
    s_barrier''')
    OPA = 24
    DRE, DIM = 40, 56
    for u in range(4):
        A(f'ds_read_b128 {vr(OPA + 4 * u, 4)}, v{t + 3} offset:{32 * u}')
    for u in range(4):
        A(f'v_mfma_f32_32x32x16_bf16 {vr(DRE, 16)}, {vr(OPA + 4 * u, 4)}, {vr(K3_MA + 4 * u, 4)}, {vr(DRE, 16) if u else 0}')
        A(f'v_mfma_f32_32x32x16_bf16 {vr(DIM, 16)}, {vr(OPA + 4 * u, 4)}, {vr(K3_MA + 16 + 4 * u, 4)}, {vr(DIM, 16) if u else 0}')
    OPB = 72
    E0, E1 = 100, 116
    for tau in range(3):
        for jj in range(4):
            A(f'v_cvt_pk_bf16_f32 v{OPB + 4 * tau + jj}, v{DRE + 4 * tau + jj}, v{DIM + 4 * tau + jj}')
        A(f'v_mfma_f32_32x32x16_bf16 {vr(E0, 16)}, {vr(K3_MB + 4 * tau, 4)}, {vr(OPB + 4 * tau, 4)}, {vr(E0, 16) if tau else 0}')
        A(f'v_mfma_f32_32x32x16_bf16 {vr(E1, 16)}, {vr(K3_MB + 12 + 4 * tau, 4)}, {vr(OPB + 4 * tau, 4)}, {vr(E1, 16) if tau else 0}')
    A(f'''s_mul_i32 s{sT0}, s{sW}, 2560
    s_add_u32 s{sT0}, s{sT0}, {L_Y}
    v_lshl_add_u32 v{t}, v{vL31}, 5, s{sT0}
    v_lshl_add_u32 v{t + 1}, v{vL31}, 4, s{sT0}
    v_mov_b32 v{t + 2}, 0x01000c0c
    v_mov_b32 v{t + 3}, 0x03020c0c
    v_cmp_eq_u32 vcc, 1, v{vH}
    v_cndmask_b32 v{t + 2}, v{t + 2}, v{t + 3}, vcc''')
    for a in range(5):
        e = E0 + 4 * a
        A(f'v_cvt_pk_bf16_f32 v{24 + 2 * a}, v{e}, v{e + 1}')
        A(f'v_cvt_pk_bf16_f32 v{25 + 2 * a}, v{e + 2}, v{e + 3}')
        A(f'ds_write2st64_b32 v{YA + a}, v{24 + 2 * a}, v{25 + 2 * a} offset0:0 offset1:10')
    A('''s_waitcnt lgkmcnt(0)
    s_barrier''')
    Y = 40
    for k in range(4):
        A(f'ds_read_b128 {vr(Y + 4 * k, 4)}, v{t} offset:{1024 * (k >> 1) + 16 * (k & 1)}')
    A(f'ds_read_b128 {vr(Y + 16, 4)}, v{t + 1} offset:2048')
    A(f'''s_mul_i32 s{sT0}, s{sME}, 10240
    s_mul_i32 s{sT1}, s{sW}, 2560
    s_add_u32 s{sT1}, s{sT1}, s{sT0}
    s_add_u32 s{sT1}, s{sT1}, {WS_X1}
    s_add_u32 s{sT0}, s{sT0}, {WS_Y2}
    v_mul_u32_u24 v{t + 5}, 1280, v{vH}
    v_lshl_add_u32 v{t + 4}, v{vL31}, 4, v{t + 5}
    v_lshl_add_u32 v{t + 5}, v{vL31}, 3, v{t + 5}''')
    PK = 24
    for k in range(10):
        A(f'v_perm_b32 v{Y + 2 * k}, v{Y + 2 * k}, v{Y + 2 * k}, v{t + 2}')
        A(f'v_perm_b32 v{Y + 2 * k + 1}, v{Y + 2 * k + 1}, v{Y + 2 * k + 1}, v{t + 2}')
        A(f'v_pk_fma_f32 {vr(Y + 2 * k, 2)}, {vr(Y + 2 * k, 2)}, {vr(K3_GA + 2 * k, 2)}, {vr(K3_X + 2 * k, 2)}')
        A(f'v_cvt_pk_bf16_f32 v{PK + k}, v{Y + 2 * k}, v{Y + 2 * k + 1}')
    A(f'''buffer_store_dwordx4 {vr(PK, 4)}, v{t + 4}, {srd(S_WS)}, s{sT1} offen
    buffer_store_dwordx4 {vr(PK + 4, 4)}, v{t + 4}, {srd(S_WS)}, s{sT1} offen offset:512
    buffer_store_dwordx2 {vr(PK + 8, 2)}, v{t + 5}, {srd(S_WS)}, s{sT1} offen offset:1024''')
    ST = t + 8
    row_stats(Y, ST)
    nm = 'op_sel:[0,0,1] op_sel_hi:[1,0,1] neg_lo:[0,0,1] neg_hi:[0,0,1]'
    for k in range(10):
        A(f'v_pk_fma_f32 {vr(Y + 2 * k, 2)}, {vr(Y + 2 * k, 2)}, {vr(ST, 2)}, {vr(ST, 2)} {nm}')
        A(f'v_pk_fma_f32 {vr(Y + 2 * k, 2)}, {vr(Y + 2 * k, 2)}, {vr(K3_CB + 2 * k, 2)}, {vr(K3_SB + 2 * k, 2)}')
    row_stats(Y, ST)
    A(f'''s_lshl_b32 s{sT2}, s{sW}, 1
    v_add_u32 v{t}, s{sT2}, v{vH}
    v_xor_b32 v{t + 1}, v{t}, v{vL31}
    v_and_b32 v{t + 1}, 7, v{t + 1}
    v_lshlrev_b32 v{t + 1}, 4, v{t + 1}
    v_lshl_add_u32 v{t + 1}, v{vL31}, 7, v{t + 1}
    v_add_u32 v{t + 1}, {L_Y2}, v{t + 1}
    v_lshrrev_b32 v{t + 2}, 1, v{vL31}
    v_xor_b32 v{t + 3}, v{t}, v{t + 2}
    v_and_b32 v{t + 3}, 7, v{t + 3}
    v_lshlrev_b32 v{t + 3}, 4, v{t + 3}
    v_lshl_add_u32 v{t + 3}, v{t + 2}, 7, v{t + 3}
    v_and_b32 v{t + 2}, 1, v{vL}
    v_lshl_add_u32 v{t + 3}, v{t + 2}, 3, v{t + 3}
    v_add_u32 v{t + 3}, {L_Y2 + 64 * 128}, v{t + 3}
    v_lshrrev_b32 v{t + 2}, 3, v0
    v_xor_b32 v{t + 4}, v{t + 2}, v0
    v_and_b32 v{t + 4}, 7, v{t + 4}
    v_lshlrev_b32 v{t + 4}, 4, v{t + 4}
    v_lshl_add_u32 v{t + 4}, v{t + 2}, 7, v{t + 4}
    v_add_u32 v{t + 4}, {L_Y2}, v{t + 4}
    v_cmp_gt_u32 vcc, 128, v0
    v_mov_b32 v{t + 5}, {OOB}
    v_cndmask_b32 v{t + 5}, v{t + 5}, v{vT16}, vcc''')
    PK = 60
    for k in range(10):
        A(f'v_pk_fma_f32 {vr(Y + 2 * k, 2)}, {vr(Y + 2 * k, 2)}, {vr(ST, 2)}, {vr(ST, 2)} {nm}')
        A(f'v_cvt_pk_bf16_f32 v{PK + k}, v{Y + 2 * k}, v{Y + 2 * k + 1}')
        if k == 3:
            A(f'ds_write_b128 v{t + 1}, {vr(PK, 4)}')
        if k == 7:
            A(f'ds_write_b128 v{t + 1}, {vr(PK + 4, 4)} offset:4096')
    A(f'''ds_write_b64 v{t + 3}, {vr(PK + 8, 2)}
    s_add_u32 s{sT1}, s{sT0}, 4096
    s_add_u32 s{sT2}, s{sT0}, 8192
    s_waitcnt lgkmcnt(0)
    s_barrier''')
    for i in range(3):
        A(f'ds_read_b128 {vr(24 + 4 * i, 4)}, v{t + 4} offset:{4096 * i}')
    for i in range(3):
        A(f'buffer_store_dwordx4 {vr(24 + 4 * i, 4)}, v{vT16 if i < 2 else t + 5}, {srd(S_WS)}, s{sT0 + i} offen{ST1}')


G1_A = 24
G1_ACC = 184
G1_B = 232
vG1A = 20
sG1 = sU + 13
B1R = 252


def b1_issue():
    A(f"""s_mul_i32 s{sBGO}, s{sJ}, 192
    v_lshlrev_b32 v{B1R + 2}, 1, v{vL31}""")
    for k in range(3):
        A(f'buffer_load_ushort v{B1R + k}, v{B1R + 2}, {srd(S_B1)}, s{sBGO} offen offset:{64 * k}')


def b1_finish():
    Bq, Aq = 40, 44
    A(f"""v_cmp_eq_u32 vcc, 0, v{vH}
    v_mov_b32 v{Bq + 1}, 0x3f80
    v_mov_b32 v{Bq + 2}, 0
    v_cndmask_b32 v{Bq}, v{Bq + 2}, v{Bq + 1}, vcc
    v_mov_b32 v{Bq + 1}, 0
    v_mov_b32 v{Bq + 3}, 0""")
    for k in range(3):
        A(f"""v_mov_b32 v{Aq + 4 * k}, v{B1R + k}
        v_mov_b32 v{Aq + 4 * k + 1}, 0
        v_mov_b32 v{Aq + 4 * k + 2}, 0
        v_mov_b32 v{Aq + 4 * k + 3}, 0""")
    for k in range(3):
        A(f'v_mfma_f32_32x32x16_bf16 {vr(G1_ACC + 16 * k, 16)}, {vr(Aq + 4 * k, 4)}, {vr(Bq, 4)}, 0')


def g1_load(i):
    return f'buffer_load_dwordx4 {vr(G1_A + 4 * i, 4)}, v{vG1A}, {srd(S_WS)}, s{sG1 + i // 16} offen offset:{256 * (i % 16)}{GSC}\n'


NS = 5
PRE = 4


def g1_rd(n):
    t = TMP
    ks, tl = divmod(n, 3)
    ad = t + ks // 20
    off = (ks % 20) * 3072 + 64 * tl
    s = G1_B + 4 * (n % NS)
    return [f'ds_read_b64_tr_b16 {vr(s, 2)}, v{ad} offset:{off}', f'ds_read_b64_tr_b16 {vr(s + 2, 2)}, v{ad} offset:{off + 768}']


def g1_pre():
    t = TMP
    A(f"""v_lshrrev_b32 v{t}, 3, v{vL31}
    v_mul_u32_u24 v{t}, 10240, v{t}
    v_lshl_add_u32 v{t}, v{vH}, 7, v{t}
    v_and_b32 v{t + 1}, 7, v{vL}
    v_lshl_add_u32 v{vG1A}, v{t + 1}, 4, v{t}
    s_lshl_b32 s{sT0}, s{sCL}, 2
    s_add_u32 s{sT0}, s{sT0}, s{sW}
    s_mul_i32 s{sT0}, s{sT0}, 40960
    s_add_u32 s{sG1}, s{sT0}, {WS_Y2}
    s_add_u32 s{sG1 + 1}, s{sG1}, 4096
    s_add_u32 s{sG1 + 2}, s{sG1}, 8192""")
    A(f"""v_lshrrev_b32 v{t}, 2, v{vL15}
    v_lshl_add_u32 v{t}, v{vH}, 3, v{t}
    v_mul_u32_u24 v{t}, 192, v{t}
    v_and_b32 v{t + 1}, 1, v{vQ}
    v_lshl_add_u32 v{t}, v{t + 1}, 5, v{t}
    v_and_b32 v{t + 1}, 3, v{vL}
    v_lshl_add_u32 v{t}, v{t + 1}, 3, v{t}
    v_add_u32 v{t + 1}, {20 * 3072}, v{t}""")


def g1_main():
    LA = OPT['la1']
    for i in range(LA):
        A(g1_load(i))
    for n in range(PRE):
        for x in g1_rd(n):
            A(x)
    for ks in range(40):
        for tl in range(3):
            n = 3 * ks + tl
            A(f'v_mfma_f32_32x32x16_bf16 {vr(G1_ACC + 16 * tl, 16)}, {vr(G1_B + 4 * (n % NS), 4)}, {vr(G1_A + 4 * ks, 4)}, {vr(G1_ACC + 16 * tl, 16)}')
            if tl == 0 and ks + LA < 40:
                A(g1_load(ks + LA))
            if n + PRE < 120:
                for x in g1_rd(n + PRE):
                    A(x)
    A('s_barrier')
    stamp('g1')


def gelu_store():
    t = TMP
    A(f'''v_lshrrev_b32 v{t}, 4, v{vL31}
    v_mul_u32_u24 v{t}, {48 * 1024}, v{t}
    v_lshl_add_u32 v{t}, v{vH}, 8, v{t}
    v_lshl_add_u32 v{t}, v{vL15}, 4, v{t}
    s_mul_i32 s{sT0}, s{sCL}, 393216
    s_mul_i32 s{sT1}, s{sW}, {96 * 1024}
    s_add_u32 s{sT0}, s{sT0}, s{sT1}
    s_mul_i32 s{sT1}, s{sJ}, 3072
    s_add_u32 s{sT0}, s{sT0}, s{sT1}
    s_add_u32 s{sT0}, s{sT0}, {WS_H}''')
    k0 = -2.0 * 0.7978845608028654 * 1.4426950408889634
    A(f'''v_mov_b32 v{t + 2}, {f2u(k0 * 0.044715)}
    v_mov_b32 v{t + 3}, {f2u(k0)}''')
    E = 24
    for tl in range(3):
        for g in range(2):
            regs = [G1_ACC + 16 * tl + 4 * g, G1_ACC + 16 * tl + 4 * g + 2, G1_ACC + 16 * tl + 8 + 4 * g, G1_ACC + 16 * tl + 8 + 4 * g + 2]
            e = E + 12 * ((2 * tl + g) & 1)
            for k, r in enumerate(regs):
                A(f'v_pk_mul_f32 {vr(e + 2 * k, 2)}, {vr(r, 2)}, {vr(r, 2)}')
            for k, r in enumerate(regs):
                A(f'v_pk_fma_f32 {vr(e + 2 * k, 2)}, {vr(e + 2 * k, 2)}, {vr(t + 2, 2)}, {vr(t + 2, 2)} op_sel:[0,0,1] op_sel_hi:[1,0,1]')
            for k, r in enumerate(regs):
                A(f'v_pk_mul_f32 {vr(e + 2 * k, 2)}, {vr(e + 2 * k, 2)}, {vr(r, 2)}')
            for k in range(8):
                A(f'v_exp_f32 v{e + k}, v{e + k}')
            for k in range(4):
                A(f'v_pk_add_f32 {vr(e + 2 * k, 2)}, {vr(e + 2 * k, 2)}, 1.0 op_sel_hi:[1,0]')
            for k in range(8):
                A(f'v_rcp_f32 v{e + k}, v{e + k}')
            for k, r in enumerate(regs):
                A(f'v_pk_mul_f32 {vr(e + 2 * k, 2)}, {vr(e + 2 * k, 2)}, {vr(r, 2)}')
            for k in range(4):
                A(f'v_cvt_pk_bf16_f32 v{e + 8 + k}, v{e + 2 * k}, v{e + 2 * k + 1}')
            A(f'buffer_store_dwordx4 {vr(e + 8, 4)}, v{t}, {srd(S_WS)}, s{sT0} offen offset:{1024 * tl + 512 * g}{ST1}')


G2_H = 24
G2_ACC = 168
G2_BASE = 208
G2_GB = 228
sG2 = sU + 16
vOA, vOC = 248, 249
RS = 336
PS = 16 * RS


def fin_issue(R):
    t = TMP
    A(f'''v_lshrrev_b32 v{t}, 2, v{vL}
    v_and_b32 v{t + 1}, 3, v{vL}
    v_mul_u32_u24 v{t + 2}, 1280, v{t}
    v_lshl_add_u32 v{t + 3}, v{t + 1}, 4, v{t + 2}
    v_lshl_add_u32 v{t + 4}, v{t + 1}, 3, v{t + 2}
    s_lshr_b32 s{sT0}, s{sJ}, 3
    s_lshl_b32 s{sT0}, s{sT0}, 2
    s_add_u32 s{sT0}, s{sT0}, s{sW}
    s_lshl_b32 s{sT1}, s{sCL}, 3
    s_add_u32 s{sT0}, s{sT0}, s{sT1}
    s_and_b32 s{sT2}, s{sJ}, 7
    s_mul_i32 s{sT3}, s{sT2}, 160
    s_mul_i32 s{sT1}, s{sT0}, {16 * 1280}
    s_add_u32 s{sT1}, s{sT1}, s{sT3}
    s_add_u32 s{sT1}, s{sT1}, {WS_X1}
    buffer_load_dwordx4 {vr(R, 4)}, v{t + 3}, {srd(S_WS)}, s{sT1} offen sc1
    buffer_load_dwordx4 {vr(R + 4, 4)}, v{t + 3}, {srd(S_WS)}, s{sT1} offen offset:64 sc1
    buffer_load_dwordx2 {vr(R + 8, 2)}, v{t + 4}, {srd(S_WS)}, s{sT1} offen offset:128 sc1
    v_lshlrev_b32 v{t + 5}, 4, v{t + 1}
    v_lshlrev_b32 v{t + 6}, 3, v{t + 1}
    buffer_load_dwordx4 {vr(R + 10, 4)}, v{t + 5}, {srd(S_B2)}, s{sT3} offen
    buffer_load_dwordx4 {vr(R + 14, 4)}, v{t + 5}, {srd(S_B2)}, s{sT3} offen offset:64
    buffer_load_dwordx2 {vr(R + 18, 2)}, v{t + 6}, {srd(S_B2)}, s{sT3} offen offset:128
    s_add_u32 s{sT4}, s{sT3}, {WS_MODD + 5 * 1280}
    buffer_load_dwordx4 {vr(R + 20, 4)}, v{t + 5}, {srd(S_WS)}, s{sT4} offen sc1
    buffer_load_dwordx4 {vr(R + 24, 4)}, v{t + 5}, {srd(S_WS)}, s{sT4} offen offset:64 sc1
    buffer_load_dwordx2 {vr(R + 28, 2)}, v{t + 6}, {srd(S_WS)}, s{sT4} offen offset:128 sc1''')
    A(f'''v_and_b32 v{t + 2}, 7, v{t}
    v_lshlrev_b32 v{t + 2}, 8, v{t + 2}
    v_lshrrev_b32 v{t}, 3, v{t}
    s_lshl_b32 s{sT0}, s{sT0}, 1
    v_add3_u32 v{t}, v{t}, v{t + 2}, s{sT0}
    v_mul_u32_u24 v{t}, 1280, v{t}
    v_add_u32 v{t}, s{sT3}, v{t}
    v_add_u32 v{vOA}, v{t}, v{t + 5}
    v_add_u32 v{vOC}, v{t}, v{t + 6}''')


def fin_finish(R):
    t = TMP
    for k in range(10):
        unpack(G2_GB + 2 * k, G2_GB + 2 * k + 1, R + 20 + k)
        unpack(G2_BASE + 2 * k, G2_BASE + 2 * k + 1, R + k)
        unpack(t, t + 1, R + 10 + k)
        A(f'v_pk_fma_f32 {vr(G2_BASE + 2 * k, 2)}, {vr(G2_GB + 2 * k, 2)}, {vr(t, 2)}, {vr(G2_BASE + 2 * k, 2)}')


NH = 24
FR = G2_H + 4 * NH


def g2_load(n):
    blk, kl = divmod(n, 12)
    r = G2_H + 4 * (n % NH)
    return f'buffer_load_dwordx4 {vr(r, 4)}, v{[vL16, 21, 22][kl // 4]}, {srd(S_WS)}, s{sG2 + blk} offen offset:{1024 * (kl % 4)}{GSC}\n'


def g2_pre():
    t = TMP
    A(f"""v_add_u32 v21, 4096, v{vL16}
    v_add_u32 v22, 8192, v{vL16}
    s_mul_i32 s{sT0}, s{sCL}, 393216
    s_lshr_b32 s{sT1}, s{sJ}, 3
    s_mul_i32 s{sT1}, s{sT1}, {4 * 48 * 1024}
    s_add_u32 s{sT0}, s{sT0}, s{sT1}
    s_mul_i32 s{sT1}, s{sW}, {12 * 1024}
    s_add_u32 s{sT0}, s{sT0}, s{sT1}
    s_add_u32 s{sT0}, s{sT0}, {WS_H}""")
    A(f"""v_mul_u32_u24 v{t}, {RS}, v{vL15}
    v_lshl_add_u32 v{t}, v{vQ}, 4, v{t}
    v_lshrrev_b32 v{t + 5}, 2, v{vL}
    v_mul_u32_u24 v{t + 5}, {RS}, v{t + 5}
    s_mul_i32 s{sT2}, s{sW}, {4 * PS}
    v_add_u32 v{t + 5}, s{sT2}, v{t + 5}
    v_and_b32 v{t + 7}, 3, v{vL}
    v_lshl_add_u32 v{t + 6}, v{t + 7}, 4, v{t + 5}
    v_lshl_add_u32 v{t + 5}, v{t + 7}, 5, v{t + 5}""")
    for blk in range(4):
        A(f"""s_add_u32 s{sT1}, s{sW}, {blk + 1}
        s_and_b32 s{sT1}, s{sT1}, 3
        s_mul_i32 s{sT2}, s{sT1}, {48 * 1024}
        s_add_u32 s{sG2 + blk}, s{sT0}, s{sT2}
        s_mul_i32 s{sT1}, s{sT1}, {4 * PS}
        s_add_u32 s{sT1}, s{sT1}, {blk * PS}
        v_add_u32 v{t + 1 + blk}, s{sT1}, v{t}""")


def g2_main():
    t = TMP
    LA = OPT['la2']

    def rdp(dst, slot):
        out = []
        for k in range(4):
            out.append(f'ds_read_b128 {vr(dst + 4 * k, 4)}, v{t + 5} offset:{slot * PS + 128 * (k >> 1) + 16 * (k & 1)}')
        out.append(f'ds_read_b128 {vr(dst + 16, 4)}, v{t + 6} offset:{slot * PS + 256}')
        return out

    def fold(src):
        return [f'v_fmac_f32 v{G2_BASE + k}, v{G2_GB + k}, v{src + k}' for k in range(20)]
    for n in range(LA):
        A(g2_load(n))
    for blk in range(4):
        acc = G2_ACC + 20 * (blk & 1)
        side = {}
        if blk >= 1:
            pa = G2_ACC + 20 * ((blk - 1) & 1)
            for nt in range(5):
                side[5 + 2 * nt] = [f'ds_write_b128 v{t + blk}, {vr(pa + 4 * nt, 4)} offset:{64 * nt}']
            side[20] = ['s_waitcnt lgkmcnt(0)', 's_barrier']
            for k, x in enumerate(rdp(FR, blk - 1)):
                side[21 + k] = [x]
            for k, x in enumerate(fold(FR)):
                side[34 + k] = [x]
        for kl in range(12):
            n = 12 * blk + kl
            for nt in range(5):
                A(f'v_mfma_f32_16x16x32_bf16 {vr(acc + 4 * nt, 4)}, {ar((kl * 5 + nt) * 4, 4)}, {vr(G2_H + 4 * (n % NH), 4)}, {vr(acc + 4 * nt, 4) if kl else 0}')
                if nt == 0 and n + LA < 48:
                    A(g2_load(n + LA))
                for x in side.get(5 * kl + nt, []):
                    A(x)
    stamp('g2')
    pa = G2_ACC + 20
    for nt in range(5):
        A(f'ds_write_b128 v{t + 4}, {vr(pa + 4 * nt, 4)} offset:{64 * nt}')
    R = FR
    for x in rdp(R, 3):
        A(x)
    sc = ' sc1' if OPT['outsc1'] else ''
    for k in range(10):
        A(f'v_pk_fma_f32 {vr(R + 2 * k, 2)}, {vr(R + 2 * k, 2)}, {vr(G2_GB + 2 * k, 2)}, {vr(G2_BASE + 2 * k, 2)}')
        A(f'v_cvt_pk_bf16_f32 v{R + 20 + k}, v{R + 2 * k}, v{R + 2 * k + 1}')
        if k == 3:
            A(f'buffer_store_dwordx4 {vr(R + 20, 4)}, v{vOA}, {srd(S_OUT)}, 0 offen{sc}')
        if k == 7:
            A(f'buffer_store_dwordx4 {vr(R + 24, 4)}, v{vOA}, {srd(S_OUT)}, 0 offen offset:64{sc}')
    A(f'buffer_store_dwordx2 {vr(R + 28, 2)}, v{vOC}, {srd(S_OUT)}, 0 offen offset:128{sc}')


def seq(*fns):
    def f():
        for x in fns:
            x()
    return f


def program():
    if OPT['fixed']:
        A('s_memrealtime s[98:99]')
    if OPT['stamps']:
        A('v_mov_b32 v255, 0')
    stamp('start')
    setup()
    stamp('karg')
    gemv_issue()
    stamp('iss')
    x1_issue()
    code_prefetch(32 * 1024)
    w2_fmt_issue()
    xid_store()
    filt_prep()
    w1_prep()
    W1 = A.groups(w1_dma)
    FD = A.groups(filt_dma)
    bg = (FD if OPT['filt0'] else []) + W1[:OPT['w1a']]
    W1 = W1[OPT['w1a']:]
    nbg = len(bg)
    left = A.weave(A.capture(seq(k1_const_a, k1_const_b)), bg, OPT['gap0'])
    A.emit(left)
    stamp('const')
    gemv_compute()
    stamp('gemv')
    A(f's_waitcnt vmcnt({nbg + 3})')
    w2_fmt_finish()
    if not OPT['filt0']:
        A.emit(FD)
    ln1()
    k1_addr()
    filt_addr()
    stamp('pre')
    mod1_issue()
    k1_poll()
    W1 = A.weave(A.capture(k1_main), W1, OPT['gap1'])
    stamp('k1')
    k2_const()
    filt_finish()
    k2_issue()
    k2_pre()
    A.emit(W1)
    k2_poll()
    SIDE = 156
    W2 = A.groups(w2_load)
    bg = A.groups(seq(epoch_store, xid_load, lambda: k3_side_issue(SIDE), b1_issue))
    n2 = len(bg)
    left = A.weave(A.capture(k2_main), bg + W2[:OPT['w2a']], OPT['gap2'])
    A.emit(left)
    W2 = W2[OPT['w2a']:]
    stamp('k2')
    k3_const()
    for k in range(0, 40, 2):
        A(f'v_pk_mov_b32 {vr(60 + k, 2)}, {vr(SIDE + k, 2)}, {vr(SIDE + k, 2)} op_sel:[0,1]')
    k3_issue()
    k3_side_finish(60)
    xid_check()
    k3_pre()
    A.emit(W2[:OPT['w2b']])
    W2 = W2[OPT['w2b']:]
    k3_poll()
    W2 = A.weave(A.capture(k3_main), W2[:OPT['w2c']], OPT['gap3']) + W2[OPT['w2c']:]
    stamp('k3')
    flag_publish(0)
    flag_addr(0)
    b1_finish()
    g1_pre()
    flag_wait(0)
    stamp('y2')
    g1_main()
    fin_issue(60)
    W2 = A.weave(A.capture(gelu_store), W2, OPT['gap4'])
    A.emit(W2)
    stamp('gelu')
    flag_publish(1)
    flag_addr(1)
    fin_finish(60)
    g2_pre()
    flag_wait(1)
    stamp('h')
    g2_main()
    stamp('end')
    if OPT['stamps']:
        A(f"""s_lshl_b32 s{sT0}, s{sME}, 10
        s_lshl_b32 s{sT1}, s{sW}, 8
        s_add_u32 s{sT0}, s{sT0}, s{sT1}
        s_add_u32 s{sT0}, s{sT0}, {WS_STAMP}
        v_writelane_b32 v255, s{sCNT}, 63
        v_writelane_b32 v255, s{sFAST}, 31
        v_lshlrev_b32 v{TMP}, 2, v{vL}
        buffer_store_dword v255, v{TMP}, {srd(S_WS)}, s{sT0} offen""")
    if OPT['fixed']:
        if OPT['probe'] >= 0:
            A(f's_mul_i32 s97, s97, 4\ns_add_u32 s97, s97, {OPT["fixed"]}')
        else:
            A(f's_mov_b32 s97, {OPT["fixed"]}')
        A(f"""L_fix:
        s_memrealtime s[100:101]
        s_waitcnt lgkmcnt(0)
        s_sub_u32 s100, s100, s98
        s_cmp_lt_u32 s100, s97
        s_cbranch_scc1 L_fix""")
    A('L_end:')
    A('s_endpgm')


program()
hdr = open('cdna_kernels/%s.s.ref' % NAME).read().split('; Override launch')[0]
out = hdr
out += f'; @launch grid=(256,1,1) block=(256,1,1) lds={LDS_SIZE}\n'
out += f'''.amdgcn_target "amdgcn-amd-amdhsa--gfx950"
.text
.globl {NAME}_kernel
.p2align 8
.type {NAME}_kernel,@function
{NAME}_kernel:
'''
out += A.text()
out += RETRY.text()
out += f'''L_last:
    s_endpgm
.section .rodata,"a"
.p2align 6
.amdhsa_kernel {NAME}_kernel
  .amdhsa_next_free_vgpr 512
  .amdhsa_next_free_sgpr 102
  .amdhsa_accum_offset 256
  .amdhsa_group_segment_fixed_size 0
  .amdhsa_kernarg_size 104
  .amdhsa_user_sgpr_count 2
  .amdhsa_user_sgpr_kernarg_segment_ptr 1
  .amdhsa_system_sgpr_workgroup_id_x 1
.end_amdhsa_kernel
'''
open(sys.argv[1], 'w').write(out)
if OPT['stamps']:
    open(sys.argv[1] + '.stamps', 'w').write('\n'.join(STAMPS))
```

```python
import sys, os
sys.path.insert(0, os.path.dirname(os.path.abspath(__file__)))
from asmlib import Asm, vr, ar, sr, f2u

NAME = 'adaLN_cond__spectral_gfnet__mixer_channel_mlp__prompt'
OPT = dict(stamps=0, stop=99, map=0, fixed=0, slow=0, outsc1=0, la1=8, la2=10, w1a=10, gap0=100, gap1=110, gap2=60, gap3=90, gap4=80, w2a=6, w2b=20, w2c=24, gsc1=0, filt0=1, st1=1, probe=-1, ptest=0)
for a in sys.argv[2:]:
    k, v = a.split('=')
    OPT[k] = int(v)

WS_EPOCH = 0x0
WS_XID = 0x400
WS_MOD = 0x1000
WS_MODD = 0x5000
WS_FLAG = 0x8000
BS = 16384 + 256
WS_T = 0x100000
WS_TP = 0x520000
WS_Y2 = 0x940000
WS_X1 = 0xBC0000
WS_H = 0xE40000
WS_W2P = 0x1440000
WS_STAMP = 0x1800000
WS_SIZE = 268435456
OOB = 0x7ff00000

BIG = 0
SCR = 122880
L_X1E = SCR
L_H1 = SCR + 24576
L_K2I = SCR + 24576
L_K2O = SCR
L_K3I = SCR + 24576
L_Y = SCR
L_Y2 = SCR + 24576
L_RED = SCR + 39680
L_FILT = SCR
LDS_SIZE = 163840

S_X, S_WR, S_WI, S_W1, S_B1, S_W2, S_B2, S_C, S_WM, S_OUT, S_WS = [4 + 4 * i for i in range(11)]
sME, sW, sTAG, sXC, sG, sK1, sCL, sJ = range(48, 56)
sT0, sT1, sT2, sT3, sT4, sT5, sT6, sT7 = range(56, 64)
sCNT = 96
sM1, sM2 = 64, 66
sU = 68
sSTAMP = 98

GSC = ' sc1' if OPT['gsc1'] else ''
ST1 = ['', ' sc1', ' nt'][OPT['st1']]
A = Asm()
RETRY = Asm()
nstamp = [0]


def srd(s):
    return sr(s, 4)


def stamp(name):
    if not OPT['stamps']:
        if OPT['probe'] == nstamp[0]:
            A(f"""s_memrealtime s[100:101]
            s_waitcnt lgkmcnt(0)
            s_sub_u32 s97, s100, s98""")
        nstamp[0] += 1
        return
    i = nstamp[0]
    nstamp[0] += 1
    A(f'''s_memrealtime {sr(sSTAMP, 2)}
    s_memtime {sr(sSTAMP + 2, 2)}
    s_waitcnt lgkmcnt(0)
    v_writelane_b32 v255, s{sSTAMP}, {i}
    v_writelane_b32 v255, s{sSTAMP + 2}, {i + 32}''')
    STAMPS.append(name)


STAMPS = []


def poll_check(label, loads, bad_cmp):
    A(f'L_chk_{label}:')
    A(bad_cmp)
    A(f's_cbranch_vccnz L_retry_{label}')
    A(f'L_ok_{label}:')
    RETRY('.segment')
    RETRY(f'''L_retry_{label}:
    s_sub_u32 s{sCNT}, s{sCNT}, 1
    s_cmp_lt_i32 s{sCNT}, 0
    s_cbranch_scc1 L_ok_{label}
    s_waitcnt vmcnt(0) lgkmcnt(0)
    s_nop 15''')
    RETRY(loads)
    RETRY(f'''s_waitcnt vmcnt(0)
    s_branch L_chk_{label}''')


def sincos(ang, c, s):
    A(f'v_cos_f32 v{c}, v{ang}')
    A(f'v_sin_f32 v{s}, v{ang}')


def fmamk(d, a, k, b):
    if k == 0:
        A(f'v_mov_b32 v{d}, v{b}')
    elif k == 1:
        A(f'v_add_f32 v{d}, v{a}, v{b}')
    else:
        A(f'v_fmamk_f32 v{d}, v{a}, {f2u(k)}, v{b}')


def unpack(lo, hi, src):
    A(f'v_lshlrev_b32 v{lo}, 16, v{src}')
    A(f'v_and_b32 v{hi}, 0xffff0000, v{src}')


def mod5(d, src, tmp):
    A(f'v_mul_u32_u24 v{tmp}, 205, v{src}')
    A(f'v_lshrrev_b32 v{tmp}, 10, v{tmp}')
    A(f'v_mul_u32_u24 v{tmp}, 5, v{tmp}')
    A(f'v_sub_u32 v{d}, v{src}, v{tmp}')


vT, vL = 0, 1
vL31, vH = 2, 3
vL15, vQ = 4, 5
vL16 = 6
vT16 = 7
TMP = 8


def setup():
    A(f'''s_cmp_ge_u32 s2, 256
    s_cbranch_scc1 L_end
    s_load_dwordx16 s[64:79], s[0:1], 0
    s_load_dwordx8 s[80:87], s[0:1], 64
    s_load_dwordx2 s[88:89], s[0:1], 96
    {f's_and_b32 s{sXC}, s2, 7' if not OPT['map'] else f's_lshr_b32 s{sXC}, s2, 5'}
    {f's_lshr_b32 s{sG}, s2, 3' if not OPT['map'] else f's_and_b32 s{sG}, s2, 31'}
    s_lshl_b32 s{sME}, s{sXC}, 5
    s_or_b32 s{sME}, s{sME}, s{sG}
    s_lshr_b32 s{sCL}, s{sME}, 4
    s_and_b32 s{sJ}, s{sME}, 15
    s_mov_b32 s{sCNT}, 20000
    v_and_b32 v{vL}, 63, v0
    v_lshrrev_b32 v{TMP}, 6, v0
    v_and_b32 v{vL31}, 31, v0
    v_readfirstlane_b32 s{sW}, v{TMP}
    v_lshrrev_b32 v{vH}, 5, v{vL}
    v_and_b32 v{vL15}, 15, v0
    v_lshrrev_b32 v{vQ}, 4, v{vL}
    v_lshlrev_b32 v{vL16}, 4, v{vL}
    v_lshlrev_b32 v{vT16}, 4, v0''')
    A(f'''s_sub_u32 s{sT0}, 8, s{sXC}
    s_and_b32 s{sT0}, s{sT0}, 7
    s_cmp_lt_u32 s{sG}, 16
    s_cselect_b32 s{sK1}, s{sXC}, s{sT0}''')
    sizes = {S_X: 2621440, S_WR: 1314816, S_WI: 1314816, S_W1: 1966080, S_B1: 3072, S_W2: 1966080, S_B2: 1280,
             S_C: 1280, S_WM: 4915200, S_OUT: 2621440, S_WS: WS_SIZE}
    src = {S_X: 64, S_WR: 66, S_WI: 68, S_W1: 72, S_B1: 74, S_W2: 76, S_B2: 78, S_C: 80, S_WM: 82, S_OUT: 84, S_WS: 88}
    for s in sizes:
        A(f's_mov_b32 s{s + 2}, {sizes[s]}')
        A(f's_mov_b32 s{s + 3}, 0x00020000')
    A('s_waitcnt lgkmcnt(0)')
    A(f's_load_dword s{sTAG}, s[88:89], {WS_EPOCH}')
    for s in (S_C, S_WM, S_X, S_WS, S_W2, S_WR, S_WI, S_W1, S_B1, S_B2, S_OUT):
        A(f's_mov_b64 {sr(s, 2)}, {sr(src[s], 2)}')


G_C = 24
G_W = 32
G_ACC = 52
sCB = sU
sMODST = sU + 1


def gemv_issue():
    A(f'''s_lshr_b32 s{sT0}, s{sG}, 2
    s_lshl_b32 s{sT0}, s{sT0}, 3
    s_add_u32 s{sT0}, s{sT0}, s{sXC}
    s_lshl_b32 s{sT1}, s{sT0}, 2
    s_and_b32 s{sT2}, s{sG}, 3
    s_add_u32 s{sCB}, s{sT1}, s{sT2}
    s_lshl_b32 s{sMODST}, s{sCB}, 6
    s_add_u32 s{sMODST}, s{sMODST}, {WS_MOD}
    s_cmp_lt_u32 s{sT0}, 60
    s_cselect_b32 s{sCB}, s{sCB}, 0
    s_cselect_b32 s{sMODST}, s{sMODST}, {OOB}
    s_lshl_b32 s{sT1}, s{sCB}, 5
    v_lshrrev_b32 v{TMP}, 1, v0
    v_lshlrev_b32 v{TMP + 1}, 1, v{TMP}
    v_mul_u32_u24 v{TMP}, 7680, v{TMP}
    v_and_b32 v{TMP + 2}, 1, v0
    v_lshl_add_u32 v{TMP}, v{TMP + 2}, 4, v{TMP}''')
    for i in range(5):
        A(f'buffer_load_ushort v{G_C + i}, v{TMP + 1}, {srd(S_C)}, 0 offen offset:{256 * i}')
    for i in range(5):
        A(f'buffer_load_dwordx4 {vr(G_W + 4 * i, 4)}, v{TMP}, {srd(S_WM)}, s{sT1} offen')
        if i < 4:
            A(f's_add_u32 s{sT1}, s{sT1}, {128 * 7680}')


def gemv_compute():
    t = TMP
    for i in range(5):
        A(f'v_lshlrev_b32 v{G_C + i}, 16, v{G_C + i}')
    for i in range(5):
        A(f'v_mul_f32 v{t + i}, {f2u(-1.4426950408889634)}, v{G_C + i}')
    for i in range(5):
        A(f'v_exp_f32 v{t + i}, v{t + i}')
    for i in range(5):
        A(f'v_add_f32 v{t + i}, 1.0, v{t + i}')
    for i in range(5):
        A(f'v_rcp_f32 v{t + i}, v{t + i}')
    for i in range(5):
        A(f'v_mul_f32 v{t + i}, v{G_C + i}, v{t + i}')
    for i in range(5):
        A(f'v_cvt_pk_bf16_f32 v{t + i}, v{t + i}, v{t + i}')
    for i in range(5):
        A(f'v_lshlrev_b32 v{G_C + i}, 16, v{t + i}')
    for i in range(5):
        sp = (G_C + i) & ~1
        sel = (G_C + i) & 1
        for k in range(4):
            u = t + 2 * (k & 1)
            unpack(u, u + 1, G_W + 4 * i + k)
            if i == 0:
                A(f'v_pk_mul_f32 {vr(G_ACC + 2 * k, 2)}, {vr(u, 2)}, {vr(sp, 2)} op_sel:[0,{sel}] op_sel_hi:[1,{sel}]')
            else:
                A(f'v_pk_fma_f32 {vr(G_ACC + 2 * k, 2)}, {vr(u, 2)}, {vr(sp, 2)}, {vr(G_ACC + 2 * k, 2)} op_sel:[0,{sel},0] op_sel_hi:[1,{sel},1]')
    a = G_ACC
    A(f'''v_and_b32 v{t + 4}, 1, v{vL}
    v_lshlrev_b32 v{t + 4}, 5, v{t + 4}
    v_and_b32 v{t + 5}, 1, v{vQ}
    v_lshl_add_u32 v{t + 4}, v{t + 5}, 3, v{t + 4}
    v_lshl_add_u32 v{t + 4}, v{vH}, 2, v{t + 4}
    s_lshl_b32 s{sT0}, s{sW}, 6
    s_add_u32 s{sT0}, s{sT0}, {L_RED}
    v_add_u32 v{t + 4}, s{sT0}, v{t + 4}''')
    for k in range(4):
        A(f'v_permlane32_swap_b32 v{a + 2 * k}, v{a + 2 * k + 1}')
    for k in range(4):
        A(f'v_add_f32 v{a + 2 * k}, v{a + 2 * k}, v{a + 2 * k + 1}')
    A(f'v_permlane16_swap_b32 v{a}, v{a + 2}')
    A(f'v_permlane16_swap_b32 v{a + 4}, v{a + 6}')
    A(f'v_add_f32 v{a}, v{a}, v{a + 2}')
    A(f'v_add_f32 v{a + 4}, v{a + 4}, v{a + 6}')
    for r in (8, 4, 2):
        A(f'v_add_f32_dpp v{a}, v{a}, v{a} row_ror:{r} row_mask:0xf bank_mask:0xf')
        A(f'v_add_f32_dpp v{a + 4}, v{a + 4}, v{a + 4} row_ror:{r} row_mask:0xf bank_mask:0xf')
    A(f'''ds_write_b32 v{t + 4}, v{a}
    ds_write_b32 v{t + 4}, v{a + 4} offset:16
    v_and_b32 v{t + 5}, 3, v{vL}
    v_lshlrev_b32 v{t + 5}, 4, v{t + 5}
    v_add_u32 v{t + 6}, {L_RED}, v{t + 5}
    s_waitcnt lgkmcnt(0)
    s_barrier''')
    for w in range(4):
        A(f'ds_read_b128 {vr(G_W + 4 * w, 4)}, v{t + 6} offset:{64 * w}')
    A(f'''s_mul_i32 s{sTAG}, s{sTAG}, 0x9E3779B1
    s_add_u32 s{sTAG}, s{sTAG}, 0x7F4A7C15
    s_mul_i32 s{sT0}, s{sCB}, 205
    s_lshr_b32 s{sT0}, s{sT0}, 13
    s_cmp_eq_u32 s{sT0}, 1
    s_cselect_b32 s{sT1}, 1.0, 0
    s_cmp_eq_u32 s{sT0}, 4
    s_cselect_b32 s{sT1}, 1.0, s{sT1}
    v_cmp_gt_u32 vcc, 4, v0
    v_mov_b32 v{t + 7}, {OOB}
    v_cndmask_b32 v{t + 5}, v{t + 7}, v{t + 5}, vcc''')
    g = G_W
    for p in (0, 2):
        A(f'v_pk_add_f32 {vr(g + p, 2)}, {vr(g + p, 2)}, {vr(g + 4 + p, 2)}')
        A(f'v_pk_add_f32 {vr(g + 8 + p, 2)}, {vr(g + 8 + p, 2)}, {vr(g + 12 + p, 2)}')
    for p in (0, 2):
        A(f'v_pk_add_f32 {vr(g + p, 2)}, {vr(g + p, 2)}, {vr(g + 8 + p, 2)}')
    A(f'v_cvt_pk_bf16_f32 v{g + 4}, v{g}, v{g + 1}')
    A(f'v_cvt_pk_bf16_f32 v{g + 5}, v{g + 2}, v{g + 3}')
    unpack(g, g + 1, g + 4)
    unpack(g + 2, g + 3, g + 5)
    for k in range(4):
        A(f'v_add_f32 v{g + k}, s{sT1}, v{g + k}')
    A(f'''v_cvt_pk_bf16_f32 v{g + 4}, v{g}, v{g + 1}
    v_cvt_pk_bf16_f32 v{g + 5}, v{g + 2}, v{g + 3}
    v_mov_b32 v{g + 6}, s{sTAG}
    v_mov_b32 v{g + 7}, s{sTAG}
    buffer_store_dwordx4 {vr(g + 4, 4)}, v{t + 5}, {srd(S_WS)}, s{sMODST} offen sc1
    v_lshrrev_b32 v{t + 5}, 1, v{t + 5}
    s_sub_u32 s{sT0}, s{sMODST}, {WS_MOD}
    s_lshr_b32 s{sT0}, s{sT0}, 1
    s_add_u32 s{sT0}, s{sT0}, {WS_MODD}
    buffer_store_dwordx2 {vr(g + 4, 2)}, v{t + 5}, {srd(S_WS)}, s{sT0} offen sc1''')


def code_prefetch(nbytes):
    t = TMP
    per = ((nbytes + 32 * 128 - 1) // (32 * 128))
    assert per <= 64
    A(f'''s_getpc_b64 {sr(sT2, 2)}
    L_pc:
    s_mul_i32 s{sT0}, s{sG}, {per * 128}
    s_sub_u32 s{sT0}, s{sT0}, L_pc-{NAME}_kernel
    v_min_u32 v{t}, {per - 1}, v{vL}
    v_lshlrev_b32 v{t}, 7, v{t}
    v_add_u32 v{t}, s{sT0}, v{t}
    v_min_i32 v{t}, L_last-L_pc, v{t}
    v_ashrrev_i32 v{t + 1}, 31, v{t}
    v_mov_b32 v{t + 2}, s{sT3}
    v_add_co_u32 v{t}, vcc, s{sT2}, v{t}
    v_addc_co_u32 v{t + 1}, vcc, v{t + 2}, v{t + 1}, vcc
    global_load_dword v250, {vr(t, 2)}, off''')


vW1 = 240
sW1O, sW1M = 90, 91
sBGO, sBGM = 92, 93
sXID = 94
sFAST = 95


def xid_store():
    t = TMP
    A(f"""s_getreg_b32 s{sXID}, hwreg(HW_REG_XCC_ID, 0, 4)
    s_lshl_b32 s{sT0}, s{sME}, 2
    s_add_u32 s{sT0}, s{sT0}, {WS_XID}
    v_mov_b32 v{t}, s{sXID}
    v_cmp_eq_u32 vcc, 0, v0
    v_mov_b32 v{t + 1}, {OOB}
    v_cndmask_b32 v{t + 1}, v{t + 1}, v0, vcc
    buffer_store_dword v{t}, v{t + 1}, {srd(S_WS)}, s{sT0} offen sc1""")


vXID = 243


def xid_load():
    A(f"""s_lshl_b32 s{sBGO}, s{sCL}, 6
    s_add_u32 s{sBGO}, s{sBGO}, {WS_XID}
    v_lshlrev_b32 v{vXID}, 2, v{vL15}
    buffer_load_dword v{vXID}, v{vXID}, {srd(S_WS)}, s{sBGO} offen sc1
    s_lshl_b32 s{sBGO}, s{sCL}, 9
    s_add_u32 s{sBGO}, s{sBGO}, {WS_FLAG}
    v_lshlrev_b32 v244, 3, v{vL}
    buffer_load_dword v244, v244, {srd(S_WS)}, s{sBGO} offen sc1""")


def xid_check():
    A(f"""v_cmp_ne_u32 vcc, s{sXID}, v{vXID}
    s_cmp_eq_u64 vcc, 0
    s_cselect_b32 s{sFAST}, {0 if OPT['slow'] else 1}, 0""")


def flag_publish(which):
    t = TMP + 14
    A(f"""s_lshl_b32 s{sT4}, s{sCL}, 9
    s_lshl_b32 s{sT5}, s{sJ}, 4
    s_add_u32 s{sT4}, s{sT4}, s{sT5}
    s_lshl_b32 s{sT5}, s{sW}, 2
    s_add_u32 s{sT4}, s{sT4}, s{sT5}
    s_add_u32 s{sT4}, s{sT4}, {WS_FLAG + 256 * which}
    v_mov_b32 v{t}, s{sTAG}
    v_mov_b32 v{t + 1}, 0
    s_cmp_eq_u32 s{sFAST}, 0
    s_waitcnt vmcnt(0)
    s_cbranch_scc1 L_slow_pub{which}
    buffer_store_dword v{t}, v{t + 1}, {srd(S_WS)}, s{sT4} offen
    L_join_pub{which}:""")
    RETRY('.segment')
    RETRY(f"""L_slow_pub{which}:
    buffer_wbl2 sc1
    s_waitcnt vmcnt(0)
    buffer_store_dword v{t}, v{t + 1}, {srd(S_WS)}, s{sT4} offen sc1
    s_branch L_join_pub{which}""")


vFL = 250


def flag_addr(which):
    if which == 0:
        A(f"""s_lshl_b32 s{sT5}, s{sW}, 6
        v_lshl_add_u32 v{vFL}, v{vL15}, 2, s{sT5}""")
    else:
        A(f"""s_lshl_b32 s{sT5}, s{sW}, 6
        s_lshr_b32 s{sT4}, s{sJ}, 3
        s_lshl_b32 s{sT4}, s{sT4}, 3
        s_add_u32 s{sT5}, s{sT5}, s{sT4}
        v_and_b32 v{vFL}, 13, v{vL}
        v_lshl_add_u32 v{vFL}, v{vFL}, 2, s{sT5}""")
    A(f"""s_lshl_b32 s{sBGO}, s{sCL}, 9
    s_add_u32 s{sBGO}, s{sBGO}, {WS_FLAG + 256 * which}""")


def flag_wait(which):
    ld = f'buffer_load_dword v{vFL + 1}, v{vFL}, {srd(S_WS)}, s{sBGO} offen sc1'
    A(ld)
    poll_check(f'fl{which}', ld, tagcheck([vFL + 1]))
    A(f"""s_cmp_eq_u32 s{sFAST}, 0
    s_cbranch_scc1 L_slow_acq{which}
    L_join_acq{which}:""")
    RETRY('.segment')
    RETRY(f"""L_slow_acq{which}:
    buffer_inv sc1
    s_waitcnt vmcnt(0)
    s_branch L_join_acq{which}""")


def w1_prep():
    t = TMP
    for i in range(3):
        A(f"""v_add_u32 v{t + 3}, {64 * i}, v{vL}
        v_mul_u32_u24 v{t + 4}, 171, v{t + 3}
        v_lshrrev_b32 v{t + 4}, 11, v{t + 4}
        v_mul_u32_u24 v{t + 5}, 12, v{t + 4}
        v_sub_u32 v{t + 5}, v{t + 3}, v{t + 5}
        v_mul_u32_u24 v{t + 4}, 3072, v{t + 4}
        v_lshl_add_u32 v{vW1 + i}, v{t + 5}, 4, v{t + 4}""")
    A(f"""s_mul_i32 s{sW1O}, s{sW}, {160 * 3072}
    s_mul_i32 s{sT1}, s{sJ}, 192
    s_add_u32 s{sW1O}, s{sW1O}, s{sT1}
    s_mul_i32 s{sW1M}, s{sW}, 30720""")


def w1_dma():
    for g in range(10):
        for i in range(3):
            A(f's_add_u32 m0, s{sW1M}, {BIG + 1024 * (3 * g + i)}')
            if i == 0 and g:
                A(f's_add_u32 s{sW1O}, s{sW1O}, {16 * 3072}')
            A(f'buffer_load_dwordx4 v{vW1 + i}, {srd(S_W1)}, s{sW1O} offen lds')


sW2ST = sU + 2


def w2_fmt_issue():
    t = TMP
    A(f"""s_mul_i32 s{sT0}, s{sME}, 205
    s_lshr_b32 s{sT0}, s{sT0}, 10
    s_mul_i32 s{sT1}, s{sT0}, 5
    s_sub_u32 s{sT1}, s{sME}, s{sT1}
    s_lshl_b32 s{sT1}, s{sT1}, 2
    s_add_u32 s{sT1}, s{sT1}, s{sW}
    s_mul_i32 s{sT2}, s{sT0}, {32 * 1280}
    s_lshl_b32 s{sT3}, s{sT1}, 6
    s_add_u32 s{sT2}, s{sT2}, s{sT3}
    s_mul_i32 s{sW2ST}, s{sT0}, 40960
    s_lshl_b32 s{sT3}, s{sT1}, 11
    s_add_u32 s{sW2ST}, s{sW2ST}, s{sT3}
    s_add_u32 s{sW2ST}, s{sW2ST}, {WS_W2P}
    s_cmp_lt_u32 s{sME}, 240
    s_cselect_b32 s{sW2ST}, s{sW2ST}, {OOB}
    s_cselect_b32 s{sT2}, s{sT2}, 0
    v_lshrrev_b32 v{t}, 2, v{vL}
    v_mul_u32_u24 v{t}, 1280, v{t}
    v_and_b32 v{t + 1}, 3, v{vL}
    v_lshl_add_u32 v{t}, v{t + 1}, 4, v{t}
    s_mul_i32 s{sT3}, s{sW}, 2560
    s_add_u32 m0, s{sT3}, {L_H1}
    s_add_u32 s{sT4}, s{sT2}, {16 * 1280}
    buffer_load_dwordx4 v{t}, {srd(S_W2)}, s{sT2} offen lds
    s_add_u32 m0, m0, 1024
    s_nop 0
    buffer_load_dwordx4 v{t}, {srd(S_W2)}, s{sT4} offen lds""")


def w2_fmt_finish():
    t = TMP
    A(f"""v_lshrrev_b32 v{t}, 2, v{vL}
    v_lshlrev_b32 v{t}, 6, v{t}
    v_and_b32 v{t + 1}, 3, v{vL}
    v_lshl_add_u32 v{t}, v{t + 1}, 3, v{t}
    s_mul_i32 s{sT0}, s{sW}, 2560
    s_add_u32 s{sT0}, s{sT0}, {L_H1}
    v_add_u32 v{t}, s{sT0}, v{t}""")
    for i in range(2):
        A(f'ds_read_b64_tr_b16 {vr(t + 4 + 4 * i, 2)}, v{t} offset:{32 * i}')
        A(f'ds_read_b64_tr_b16 {vr(t + 6 + 4 * i, 2)}, v{t} offset:{32 * i + 1024}')
    for i in range(2):
        A(f'buffer_store_dwordx4 {vr(t + 4 + 4 * i, 4)}, v{vL16}, {srd(S_WS)}, s{sW2ST} offen offset:{1024 * i} sc1')


def w2_load():
    A(f"""s_mul_i32 s{sW1O}, s{sW}, {12 * 40960}
    s_and_b32 s{sW1M}, s{sJ}, 7
    s_mul_i32 s{sW1M}, s{sW1M}, 5120
    s_add_u32 s{sW1O}, s{sW1O}, s{sW1M}
    s_add_u32 s{sW1O}, s{sW1O}, {WS_W2P}""")
    for kl in range(12):
        for nt in range(5):
            if nt == 0 and kl:
                A(f's_add_u32 s{sW1O}, s{sW1O}, {40960 - 4096}')
            if nt == 4:
                A(f's_add_u32 s{sW1O}, s{sW1O}, 4096')
            A(f'buffer_load_dwordx4 {ar((kl * 5 + nt) * 4, 4)}, v{vL16}, {srd(S_WS)}, s{sW1O} offen offset:{1024 * (nt & 3)} sc1')


F_RAW = 200
F_W = 216
vFA = 196
sFSH = sU + 3


def filt_prep():
    t = TMP
    A(f"""s_mul_i32 s{sT0}, s{sG}, 20
    s_sub_u32 s{sT1}, 623, s{sT0}
    s_mul_i32 s{sT3}, s{sW}, 5
    s_sub_u32 s{sT4}, 15, s{sT3}
    s_cmp_lt_u32 s{sG}, 16
    s_cselect_b32 s{sT0}, s{sT0}, s{sT1}
    s_cselect_b32 s{sT2}, 1, -1
    s_cselect_b32 s{sT3}, s{sT3}, s{sT4}
    s_add_u32 s{sT4}, s{sT0}, s{sK1}
    s_and_b32 s{sT4}, s{sT4}, 1
    s_add_u32 s{sFSH}, s{sT3}, s{sT4}
    s_lshl_b32 s{sT5}, s{sW}, 9
    s_add_u32 s{sT5}, s{sT5}, s{sK1}""")
    for i in range(3):
        A(f"""v_add_u32 v{t}, {64 * i}, v{vL}
        v_mul_u32_u24 v{t + 1}, 171, v{t}
        v_lshrrev_b32 v{t + 1}, 9, v{t + 1}
        v_mul_u32_u24 v{t + 2}, 3, v{t + 1}
        v_sub_u32 v{t + 2}, v{t}, v{t + 2}
        v_lshl_add_u32 v{t + 1}, v{t + 1}, 3, s{sT5}
        v_mul_i32_i24 v{t + 1}, s{sT2}, v{t + 1}
        v_and_b32 v{t + 1}, 2047, v{t + 1}
        v_mul_u32_u24 v{t + 1}, 321, v{t + 1}
        v_add_u32 v{t + 1}, s{sT0}, v{t + 1}
        v_lshrrev_b32 v{t + 1}, 1, v{t + 1}
        v_lshlrev_b32 v{t + 1}, 2, v{t + 1}
        v_lshl_add_u32 v{vFA + i}, v{t + 2}, 4, v{t + 1}""")
    A(f's_mul_i32 s{sBGM}, s{sW}, 3072')


def filt_dma():
    for p, s_ in enumerate((S_WR, S_WI)):
        for i in range(3):
            A(f's_add_u32 m0, s{sBGM}, {L_FILT + 12288 * p + 1024 * i}')
            A(f'buffer_load_dwordx4 v{vFA + i}, {srd(s_)}, 0 offen lds')


def filt_addr():
    t = TMP
    A(f"""s_lshr_b32 s{sT0}, s{sFSH}, 1
    s_lshl_b32 s{sT0}, s{sT0}, 2
    s_add_u32 s{sT0}, s{sT0}, {L_FILT}
    s_and_b32 s{sFSH}, s{sFSH}, 1
    s_lshl_b32 s{sFSH}, s{sFSH}, 4
    v_lshl_add_u32 v{t}, v{vQ}, 6, v{vL15}
    v_mul_u32_u24 v{t}, 48, v{t}
    v_add_u32 v{vFA}, s{sT0}, v{t}
    v_add_u32 v{vFA + 1}, 1536, v{vFA}
    v_add_u32 v{vFA + 2}, 12288, v{vFA}
    v_add_u32 v{vFA + 3}, {12288 + 1536}, v{vFA}""")


def filt_read():
    out = []
    for j in range(4):
        for p in range(2):
            o = 192 * (j & 1)
            out.append(f'ds_read2_b32 {vr(F_RAW + 4 * j + 2 * p, 2)}, v{vFA + 2 * p + (j >> 1)} offset0:{o} offset1:{o + 1}')
    return out


def filt_finish():
    t = TMP
    sc = 1.0 / (2048.0 * 640.0)
    A(f"""s_cmp_lt_u32 s{sG}, 16
    s_cselect_b64 vcc, -1, 0
    s_cselect_b32 s{sT3}, 0, 0x80000000
    s_mov_b32 s{sT0}, {f2u(sc)}
    s_mov_b32 s{sT1}, {f2u(2 * sc)}
    s_xor_b32 s{sT2}, s{sT0}, s{sT3}
    s_xor_b32 s{sT3}, s{sT1}, s{sT3}""")
    for j in range(4):
        for p in range(2):
            r = F_RAW + 4 * j + 2 * p
            A(f'v_lshrrev_b64 {vr(r, 2)}, s{sFSH}, {vr(r, 2)}')
            A(f"""v_lshlrev_b32 v{t}, 16, v{r}
            v_lshlrev_b32 v{t + 1}, 16, v{r + 1}
            v_and_b32 v{t + 2}, 0xffff0000, v{r}
            v_cndmask_b32 v{t + 3}, v{t + 1}, v{t}, vcc
            v_cndmask_b32 v{t + 4}, v{t}, v{t + 1}, vcc
            v_mul_f32 v{F_W + 8 + 4 * p + j}, s{sT1 + 2 * p}, v{t + 2}
            v_mul_f32 v{F_W + 4 * p + j}, s{sT0 + 2 * p}, v{t + 3}
            v_mul_f32 v{F_W + 16 + 4 * p + j}, s{sT1 + 2 * p}, v{t + 4}""")


X_RAW = 60
X_N = 72
K1_AD = 92
K1_M1 = 100
K1_M2 = 124
MODR = 24


def x1_issue():
    A(f'''s_lshl_b32 s{sT0}, s{sW}, 9
    s_add_u32 s{sT0}, s{sT0}, s{sME}
    s_mul_i32 s{sT0}, s{sT0}, 1280
    s_add_u32 s{sT1}, s{sT0}, {256 * 1280}
    v_lshlrev_b32 v{TMP + 3}, 2, v{vL}
    buffer_load_dwordx4 {vr(X_RAW, 4)}, v{vL16}, {srd(S_X)}, s{sT0} offen
    buffer_load_dwordx4 {vr(X_RAW + 4, 4)}, v{vL16}, {srd(S_X)}, s{sT1} offen
    buffer_load_dword v{X_RAW + 8}, v{TMP + 3}, {srd(S_X)}, s{sT0} offen offset:1024
    buffer_load_dword v{X_RAW + 9}, v{TMP + 3}, {srd(S_X)}, s{sT1} offen offset:1024''')


def k1_const_a():
    t = TMP
    A(f'''v_lshrrev_b32 v{t}, 3, v{vL31}
    v_cvt_f32_u32 v{t}, v{t}
    v_mul_f32 v{t}, {f2u(0.4)}, v{t}
    v_and_b32 v{t + 1}, 7, v{vL}
    v_cvt_f32_u32 v{t + 1}, v{t + 1}
    v_mul_f32 v{t + 1}, {f2u(0.125)}, v{t + 1}
    v_cvt_f32_u32 v{t + 2}, v{vH}
    v_mul_f32 v{t + 2}, v{t + 2}, v{t}''')
    for tau in range(3):
        fmamk(t + 3, t, 2 * tau, t + 2)
        for p in range(4):
            fmamk(t + 4, t + 1, 2 * p, t + 3)
            fmamk(t + 5, t + 1, 2 * p + 1, t + 3)
            sincos(t + 4, t + 6, t + 8)
            sincos(t + 5, t + 7, t + 9)
            A(f'v_cvt_pk_bf16_f32 v{K1_M1 + 4 * tau + p}, v{t + 6}, v{t + 7}')
            A(f'v_cvt_pk_bf16_f32 v{K1_M1 + 12 + 4 * tau + p}, -v{t + 8}, -v{t + 9}')
    A('s_mov_b32 exec_lo, 0')
    for p in range(4):
        A(f'v_mov_b32 v{K1_M1 + 8 + p}, 0')
        A(f'v_mov_b32 v{K1_M1 + 20 + p}, 0')
    A('s_mov_b32 exec_lo, -1')


def k1_const_b():
    t = TMP
    A(f'''v_cvt_f32_u32 v{t}, v{vL31}
    v_lshlrev_b32 v{t + 1}, 4, v{vH}
    v_add_u32 v{t + 1}, s{sW}, v{t + 1}
    v_cvt_f32_u32 v{t + 1}, v{t + 1}
    v_mul_f32 v{t}, {f2u(1.0 / 128)}, v{t}
    v_mul_f32 v{t + 1}, v{t + 1}, v{t}''')
    for u in range(4):
        for jj in range(4):
            e = 2 + 3 * (jj & 1)
            fmamk(t + e, t, 4 * (8 * u + jj), t + 1)
            sincos(t + e, t + e + 1, t + e + 2)
            A(f'v_cvt_pk_bf16_f32 v{K1_M2 + 4 * u + jj}, v{t + e + 1}, v{t + e + 2}')
            A(f'v_cvt_pk_bf16_f32 v{K1_M2 + 16 + 4 * u + jj}, -v{t + e + 2}, v{t + e + 1}')


def k1_addr():
    t = TMP
    A(f'''s_mul_i32 s{sT0}, s{sW}, 2560
    s_add_u32 s{sT0}, s{sT0}, {L_H1}
    v_mul_u32_u24 v{t}, 3, v{vL}
    v_lshlrev_b32 v{t + 1}, 3, v{vL15}
    v_add_u32 v{t + 1}, s{sT0}, v{t + 1}''')
    for k in range(5):
        A(f'v_add_u32 v{t + 2}, {k}, v{t}')
        mod5(t + 2, t + 2, t + 3)
        A(f'v_lshl_add_u32 v{K1_AD + k}, v{t + 2}, 9, v{t + 1}')
    A(f'''v_lshrrev_b32 v{t + 1}, 1, v{vL}
    v_lshlrev_b32 v{t + 1}, 2, v{t + 1}
    v_and_b32 v{t + 2}, 1, v{vL}
    v_lshl_add_u32 v{t + 1}, v{t + 2}, 8, v{t + 1}
    v_add_u32 v{t + 1}, s{sT0}, v{t + 1}''')
    for e in range(2):
        A(f'v_lshl_add_u32 v{t + 2}, v{vL}, 1, {2 + e}')
        mod5(t + 2, t + 2, t + 3)
        A(f'v_lshl_add_u32 v{K1_AD + 5 + e}, v{t + 2}, 9, v{t + 1}')
    A(f'''v_cmp_gt_u32 {sr(sM1, 2)}, 19, v{vL31}
    v_cmp_gt_u32 {sr(sM2, 2)}, 6, v{vL31}''')


def ln1():
    t = TMP
    for r in range(2):
        for k in range(4):
            unpack(X_N + 10 * r + 2 * k, X_N + 10 * r + 2 * k + 1, X_RAW + 4 * r + k)
        unpack(X_N + 10 * r + 8, X_N + 10 * r + 9, X_RAW + 8 + r)
    for r in range(2):
        b = X_N + 10 * r
        A(f'v_pk_add_f32 {vr(t + 2 * r, 2)}, {vr(b, 2)}, {vr(b + 2, 2)}')
        A(f'v_pk_mul_f32 {vr(t + 4 + 2 * r, 2)}, {vr(b, 2)}, {vr(b, 2)}')
        for k in range(1, 5):
            if k > 1:
                A(f'v_pk_add_f32 {vr(t + 2 * r, 2)}, {vr(t + 2 * r, 2)}, {vr(b + 2 * k, 2)}')
            A(f'v_pk_fma_f32 {vr(t + 4 + 2 * r, 2)}, {vr(b + 2 * k, 2)}, {vr(b + 2 * k, 2)}, {vr(t + 4 + 2 * r, 2)}')
    for k in range(4):
        A(f'v_add_f32 v{t + 2 * k}, v{t + 2 * k}, v{t + 2 * k + 1}')
    A(f'''v_permlane32_swap_b32 v{t}, v{t + 2}
    v_permlane32_swap_b32 v{t + 4}, v{t + 6}
    v_add_f32 v{t}, v{t}, v{t + 2}
    v_add_f32 v{t + 4}, v{t + 4}, v{t + 6}
    v_permlane16_swap_b32 v{t}, v{t + 4}
    v_add_f32 v{t}, v{t}, v{t + 4}''')
    for r in (8, 4, 2, 1):
        A(f'v_add_f32_dpp v{t}, v{t}, v{t} row_ror:{r} row_mask:0xf bank_mask:0xf')
    A(f'v_mul_f32 v{t}, {f2u(1.0 / 640)}, v{t}')
    for k in range(4):
        A(f'v_readlane_b32 s{sT0 + k}, v{t}, {16 * k}')
    for r in range(2):
        A(f'v_mov_b32 v{t + 4 + r}, s{sT0 + 2 * r}')
    for r in range(2):
        A(f'v_fma_f32 v{t + 2 * r}, -v{t + 4 + r}, v{t + 4 + r}, s{sT1 + 2 * r}')
    for r in range(2):
        A(f'v_max_f32 v{t + 2 * r}, 0, v{t + 2 * r}')
    for r in range(2):
        A(f'v_add_f32 v{t + 2 * r}, {f2u(1e-5)}, v{t + 2 * r}')
    for r in range(2):
        A(f'v_rsq_f32 v{t + 2 * r}, v{t + 2 * r}')
    for r in range(2):
        A(f'v_mul_f32 v{t + 2 * r + 1}, v{t + 4 + r}, v{t + 2 * r}')
    for r in range(2):
        for k in range(5):
            b = X_N + 10 * r + 2 * k
            A(f'v_pk_fma_f32 {vr(b, 2)}, {vr(b, 2)}, {vr(t + 2 * r, 2)}, {vr(t + 2 * r, 2)} op_sel:[0,0,1] op_sel_hi:[1,0,1] neg_lo:[0,0,1] neg_hi:[0,0,1]')


vMA, vMB = 48, 49


def mod1_loads():
    s = ''
    for v in range(2):
        o = v * 2560
        s += f'buffer_load_dwordx4 {vr(MODR + 12 * v, 4)}, v{vMA}, {srd(S_WS)}, 0 offen offset:{o} sc1\n'
        s += f'buffer_load_dwordx4 {vr(MODR + 12 * v + 4, 4)}, v{vMA}, {srd(S_WS)}, 0 offen offset:{o + 16} sc1\n'
        s += f'buffer_load_dwordx4 {vr(MODR + 12 * v + 8, 4)}, v{vMB}, {srd(S_WS)}, 0 offen offset:{o} sc1\n'
    return s


def tagcheck(regs):
    s = f'v_cmp_ne_u32 vcc, s{sTAG}, v{regs[0]}\n'
    for r in regs[1:]:
        s += f'v_cmp_ne_u32 {sr(sT6, 2)}, s{sTAG}, v{r}\n'
        s += f's_or_b64 vcc, vcc, {sr(sT6, 2)}\n'
    return s


def mod1_issue():
    A(f'''v_lshlrev_b32 v{vMA}, 5, v{vL}
    v_add_u32 v{vMA}, {WS_MOD}, v{vMA}
    v_lshrrev_b32 v{vMB}, 1, v{vL}
    v_lshlrev_b32 v{vMB}, 4, v{vMB}
    v_add_u32 v{vMB}, {WS_MOD + 2048}, v{vMB}''')
    A(mod1_loads())


K1_D = 24


def k1_poll():
    poll_check('mod1', mod1_loads(), tagcheck([MODR + 4 * i + 2 for i in range(6)]))
    stamp('mod1')


def k1_main():
    t = TMP
    A(f'''v_and_b32 v{t}, 1, v{vL}
    v_cmp_eq_u32 vcc, 1, v{t}
    v_cndmask_b32 v{MODR + 8}, v{MODR + 8}, v{MODR + 9}, vcc
    v_cndmask_b32 v{MODR + 20}, v{MODR + 20}, v{MODR + 21}, vcc''')
    srcs = [0, 1, 4, 5, 8]
    for k in range(5):
        u = t + 4 * (k & 1)
        unpack(u, u + 1, MODR + srcs[k])
        unpack(u + 2, u + 3, MODR + 12 + srcs[k])
        for r in range(2):
            b = X_N + 10 * r + 2 * k
            A(f'v_pk_fma_f32 {vr(b, 2)}, {vr(b, 2)}, {vr(u + 2, 2)}, {vr(u, 2)}')
        for e in (2 * k, 2 * k + 1):
            A(f'v_cvt_pk_bf16_f32 v{X_N + e}, v{X_N + e}, v{X_N + 10 + e}')
            if e < 8:
                A(f'ds_write_b32 v{K1_AD + e % 5}, v{X_N + e} offset:{(e & 3) * 128 + (e >> 2) * 4}')
            else:
                A(f'ds_write_b32 v{K1_AD + 5 + e - 8}, v{X_N + e} offset:{(e - 8) * 128}')
    A(f'''s_lshl_b32 s{sT0}, s{sW}, 7
    s_add_u32 s{sT0}, s{sT0}, {L_H1}
    v_lshl_add_u32 v{t + 1}, v{vL31}, 2, s{sT0}
    v_lshl_add_u32 v{t}, v{vH}, 9, v{t + 1}
    s_waitcnt lgkmcnt(0)
    s_barrier''')
    OPA = 60
    DRE, DIM = 24, 40
    for tau in range(3):
        ad = t if tau < 2 else t + 1
        for p in (0, 2):
            A(f'ds_read2st64_b32 {vr(OPA + 4 * tau + p, 2)}, v{ad} offset0:{4 * tau + 10 * p} offset1:{4 * tau + 10 * p + 10}')
    for x in filt_read():
        A(x)
    for tau in range(3):
        A(f'v_mfma_f32_32x32x16_bf16 {vr(DRE, 16)}, {vr(OPA + 4 * tau, 4)}, {vr(K1_M1 + 4 * tau, 4)}, {vr(DRE, 16) if tau else 0}')
        A(f'v_mfma_f32_32x32x16_bf16 {vr(DIM, 16)}, {vr(OPA + 4 * tau, 4)}, {vr(K1_M1 + 12 + 4 * tau, 4)}, {vr(DIM, 16) if tau else 0}')
    A(f'''s_mul_i32 s{sT0}, s{sW}, 6144
    s_add_u32 s{sT0}, s{sT0}, {L_X1E}
    v_lshl_add_u32 v{t}, v{vL31}, 3, s{sT0}
    v_lshl_add_u32 v{t}, v{vH}, 10, v{t}
    v_add_u32 v{t + 1}, 2048, v{t}
    v_add_u32 v{t + 2}, 4096, v{t}''')
    OPB = 72
    ERE, EIM = 156, 172
    for u in range(4):
        for jj in range(4):
            A(f'v_cvt_pk_bf16_f32 v{OPB + 4 * u + jj}, v{DRE + 4 * u + jj}, v{DIM + 4 * u + jj}')
        A(f'v_mfma_f32_32x32x16_bf16 {vr(ERE, 16)}, {vr(OPB + 4 * u, 4)}, {vr(K1_M2 + 4 * u, 4)}, {vr(ERE, 16) if u else 0}')
        A(f'v_mfma_f32_32x32x16_bf16 {vr(EIM, 16)}, {vr(OPB + 4 * u, 4)}, {vr(K1_M2 + 16 + 4 * u, 4)}, {vr(EIM, 16) if u else 0}')
    RA = t + 4
    A(f'v_lshrrev_b32 v{t + 3}, 5, v0')
    A(f'v_lshlrev_b32 v{t + 7}, 8, v{t + 3}')
    for c in range(3):
        A(f'''v_add_u32 v{RA + c}, {13 * c}, v{vL31}
        v_and_b32 v{RA + c}, 31, v{RA + c}
        v_lshl_add_u32 v{RA + c}, v{RA + c}, 3, v{t + 7}
        v_add_u32 v{RA + c}, {L_X1E + 2048 * c}, v{RA + c}''')
    A(f'''v_lshlrev_b32 v{t + 8}, 4, v{vL31}
    v_sub_u32 v{t + 9}, 8, v{t + 3}
    v_and_b32 v{t + 9}, 7, v{t + 9}
    v_lshl_add_u32 v{t + 9}, v{t + 9}, 11, v{t + 8}
    v_lshl_add_u32 v{t + 8}, v{t + 3}, 11, v{t + 8}
    s_mul_i32 s{sT1}, s{sME}, {BS}
    s_add_u32 s{sT1}, s{sT1}, {WS_T}
    s_waitcnt lgkmcnt(0)
    s_barrier''')
    for j in range(12):
        A(f'ds_write2_b32 v{t + (j >> 2)}, v{ERE + j}, v{EIM + j} offset0:{64 * (j & 3)} offset1:{64 * (j & 3) + 1}')
    A('''s_waitcnt lgkmcnt(0)
    s_barrier''')
    Z = 24
    for c in range(3):
        for b2 in range(4):
            A(f'ds_read_b64 {vr(Z + 8 * c + 2 * b2, 2)}, v{RA + c} offset:{6144 * b2}')
    O = 60
    P = 48
    for m in range(4):
        A(f'v_mov_b32 v{O + 4 * m + 3}, s{sTAG}')
    for c in range(3):
        z = Z + 8 * c
        A(f'''v_pk_add_f32 {vr(P, 2)}, {vr(z, 2)}, {vr(z + 4, 2)}
        v_pk_add_f32 {vr(P + 2, 2)}, {vr(z, 2)}, {vr(z + 4, 2)} neg_lo:[0,1] neg_hi:[0,1]
        v_pk_add_f32 {vr(P + 4, 2)}, {vr(z + 2, 2)}, {vr(z + 6, 2)}
        v_pk_add_f32 {vr(P + 6, 2)}, {vr(z + 2, 2)}, {vr(z + 6, 2)} neg_lo:[0,1] neg_hi:[0,1]
        v_pk_add_f32 {vr(z, 2)}, {vr(P, 2)}, {vr(P + 4, 2)}
        v_pk_add_f32 {vr(z + 4, 2)}, {vr(P, 2)}, {vr(P + 4, 2)} neg_lo:[0,1] neg_hi:[0,1]
        v_pk_add_f32 {vr(z + 2, 2)}, {vr(P + 2, 2)}, {vr(P + 6, 2)} op_sel:[0,1] op_sel_hi:[1,0] neg_hi:[0,1]
        v_pk_add_f32 {vr(z + 6, 2)}, {vr(P + 2, 2)}, {vr(P + 6, 2)} op_sel:[0,1] op_sel_hi:[1,0] neg_lo:[0,1]''')
        if c == 0:
            for k in range(4):
                A(f'v_cvt_pk_bf16_f32 v{O + 4 * k}, v{z + 2 * k}, v{z + 2 * k + 1}')
        else:
            for k in range(4):
                A(f'v_cvt_pk_bf16_f32 v{56 + k}, v{z + 2 * k}, v{z + 2 * k + 1}')
            r0 = 1 if c == 1 else 3
            for m in range(4):
                A(f'v_cndmask_b32 v{O + 4 * m + c}, v{56 + (m - r0) % 4}, v{56 + (m - r0 - 1) % 4}, {sr(sM1 if c == 1 else sM2, 2)}')
    for m in range(4):
        A(f'buffer_store_dwordx4 {vr(O + 4 * m, 4)}, v{t + 8 + (m >> 1)}, {srd(S_WS)}, s{sT1} offen offset:{512 * m} sc1')


K2C = 100
C_M1, C_TW1, C_M2, C_M3, C_TW2, C_M4 = [K2C + 8 * i for i in range(6)]
K2_IN = 24
vK2A = 148


def k2_const():
    t = TMP
    A(f'''v_cvt_f32_u32 v{t}, v{vL15}
    v_cvt_f32_u32 v{t + 1}, v{vQ}
    v_cvt_f32_u32 v{t + 2}, s{sK1}
    v_mul_f32 v{t + 1}, 4.0, v{t + 1}''')
    fmamk(t + 3, t, 8, t + 2)
    A(f'v_mul_f32 v{t + 3}, {f2u(1.0 / 128)}, v{t + 3}')
    A(f'v_mul_f32 v{t + 4}, {f2u(1.0 / 16)}, v{t}')
    A(f'v_mul_f32 v{t + 5}, {f2u(1.0 / 128)}, v{t}')
    A(f'v_mul_f32 v{t + 5}, v{t + 5}, v{t + 2}')
    for jj in range(4):
        A(f'v_add_f32 v{t + 6}, {f2u(float(jj))}, v{t + 1}')
        A(f'v_mul_f32 v{t + 7}, v{t + 6}, v{t + 3}')
        A(f'v_mul_f32 v{t + 8}, {f2u(1.0 / 16)}, v{t + 7}')
        A(f'v_mul_f32 v{t + 9}, v{t + 6}, v{t + 4}')
        A(f'v_add_f32 v{t + 10}, v{t + 9}, v{t + 5}')
        A(f'v_mul_f32 v{t + 11}, {f2u(1.0 / 16)}, v{t + 10}')
        sincos(t + 7, t + 12, t + 13)
        sincos(t + 8, C_TW1 + jj, C_TW1 + 4 + jj)
        A(f'v_cvt_pk_bf16_f32 v{C_M1 + jj}, v{t + 12}, v{t + 13}')
        A(f'v_cvt_pk_bf16_f32 v{C_M1 + 4 + jj}, -v{t + 13}, v{t + 12}')
        sincos(t + 9, t + 12, t + 13)
        sincos(t + 11, C_TW2 + jj, C_TW2 + 4 + jj)
        A(f'v_cvt_pk_bf16_f32 v{C_M2 + jj}, v{t + 12}, v{t + 13}')
        A(f'v_cvt_pk_bf16_f32 v{C_M2 + 4 + jj}, -v{t + 13}, v{t + 12}')
        A(f'v_cvt_pk_bf16_f32 v{C_M3 + jj}, v{t + 12}, -v{t + 13}')
        A(f'v_cvt_pk_bf16_f32 v{C_M3 + 4 + jj}, v{t + 13}, v{t + 12}')
        sincos(t + 10, t + 14, t + 15)
        A(f'v_cvt_pk_bf16_f32 v{C_M4 + jj}, v{t + 14}, -v{t + 15}')
        A(f'v_cvt_pk_bf16_f32 v{C_M4 + 4 + jj}, v{t + 15}, v{t + 14}')


sK2L = sU + 4


def k2_loads():
    s = ''
    for j in range(4):
        s += f'buffer_load_dwordx4 {vr(K2_IN + 4 * j, 4)}, v{vK2A}, {srd(S_WS)}, s{sK2L + j} offen sc1\n'
    return s


def k2_issue():
    t = TMP
    A(f'''v_lshrrev_b32 v{t}, 2, v{vL}
    v_mul_u32_u24 v{t}, {BS}, v{t}
    v_and_b32 v{t + 1}, 3, v{vL}
    v_lshl_add_u32 v{vK2A}, v{t + 1}, 4, v{t}
    s_mul_i32 s{sT0}, s{sW}, {64 * BS}
    s_lshl_b32 s{sT1}, s{sME}, 6
    s_add_u32 s{sT0}, s{sT0}, s{sT1}
    s_add_u32 s{sK2L}, s{sT0}, {WS_T}''')
    for j in range(1, 4):
        A(f's_add_u32 s{sK2L + j}, s{sK2L}, {16 * j * BS}')
    A(k2_loads())


def cmul(dre, dim, wr, wi, conj, tmp):
    for p in (0, 2):
        A(f'v_pk_mul_f32 {vr(tmp + p, 2)}, {vr(dre + p, 2)}, {vr(wr + p, 2)}')
        A(f'v_pk_mul_f32 {vr(tmp + 4 + p, 2)}, {vr(dim + p, 2)}, {vr(wr + p, 2)}')
    n1 = '' if conj else ' neg_lo:[1,0,0] neg_hi:[1,0,0]'
    n2 = ' neg_lo:[1,0,0] neg_hi:[1,0,0]' if conj else ''
    for p in (0, 2):
        A(f'v_pk_fma_f32 {vr(tmp + p, 2)}, {vr(dim + p, 2)}, {vr(wi + p, 2)}, {vr(tmp + p, 2)}{n1}')
        A(f'v_pk_fma_f32 {vr(tmp + 4 + p, 2)}, {vr(dre + p, 2)}, {vr(wi + p, 2)}, {vr(tmp + 4 + p, 2)}{n2}')


def k2_pre():
    t = TMP
    A(f'''v_and_b32 v{t}, 3, v{vL}
    v_mul_u32_u24 v{t}, 3104, v{t}
    v_lshrrev_b32 v{t + 1}, 2, v0
    v_lshl_add_u32 v{t}, v{t + 1}, 4, v{t}
    s_mul_i32 s{sT0}, s{sW}, 3104
    v_add_u32 v{t + 1}, s{sT0}, v{vL16}
    v_add_u32 v{t + 2}, {L_K2O}, v{t}
    v_add_u32 v{t + 3}, {L_K2O}, v{t + 1}
    v_add_u32 v{t}, {L_K2I}, v{t}
    v_add_u32 v{t + 1}, {L_K2I}, v{t + 1}''')


def k2_poll():
    t = TMP
    poll_check('t', k2_loads(), tagcheck([K2_IN + 4 * j + 3 for j in range(4)]))
    stamp('T')
    X = 40
    for c in range(3):
        cb, cs = c & ~1, c & 1
        for p in (0, 2):
            A(f'v_pk_mov_b32 {vr(X + 4 * c + p, 2)}, {vr(K2_IN + 4 * p + cb, 2)}, {vr(K2_IN + 4 * p + 4 + cb, 2)} op_sel:[{cs},{cs}]')
        A(f'ds_write_b128 v{t}, {vr(X + 4 * c, 4)} offset:{1024 * c}')
    A('''s_waitcnt lgkmcnt(0)
    s_barrier''')


def k2_main():
    t = TMP
    X = 40
    OP = 24
    D = 40
    U = 64
    for c in range(3):
        A(f'ds_read_b128 {vr(OP + 4 * c, 4)}, v{t + 1} offset:{1024 * c}')

    def stage(M, data_is_a):
        for c in range(3):
            for p in range(2):
                a, b = (vr(OP + 4 * c, 4), vr(M + 4 * p, 4)) if data_is_a else (vr(M + 4 * p, 4), vr(OP + 4 * c, 4))
                A(f'v_mfma_f32_16x16x32_bf16 {vr(D + 8 * c + 4 * p, 4)}, {a}, {b}, 0')

    def mid(wr, wi, conj, M, data_is_a):
        for c in range(3):
            cmul(D + 8 * c, D + 8 * c + 4, wr(c), wi(c), conj, U + 8 * c)
            for jj in range(4):
                A(f'v_cvt_pk_bf16_f32 v{OP + 4 * c + jj}, v{U + 8 * c + jj}, v{U + 8 * c + 4 + jj}')
            for p in range(2):
                a, b = (vr(OP + 4 * c, 4), vr(M + 4 * p, 4)) if data_is_a else (vr(M + 4 * p, 4), vr(OP + 4 * c, 4))
                A(f'v_mfma_f32_16x16x32_bf16 {vr(D + 8 * c + 4 * p, 4)}, {a}, {b}, 0')
    stage(C_M1, True)
    mid(lambda c: C_TW1, lambda c: C_TW1 + 4, True, C_M2, False)
    mid(lambda c: F_W + 8 * c, lambda c: F_W + 8 * c + 4, False, C_M3, True)
    mid(lambda c: C_TW2, lambda c: C_TW2 + 4, False, C_M4, False)
    for c in range(3):
        for jj in range(4):
            A(f'v_cvt_pk_bf16_f32 v{OP + 4 * c + jj}, v{D + 8 * c + jj}, v{D + 8 * c + 4 + jj}')
        A(f'ds_write_b128 v{t + 3}, {vr(OP + 4 * c, 4)} offset:{1024 * c}')
    A(f'''s_mul_i32 s{sT0}, s{sME}, {BS}
    s_lshl_b32 s{sT1}, s{sW}, 12
    s_add_u32 s{sT0}, s{sT0}, s{sT1}
    s_add_u32 s{sT0}, s{sT0}, {WS_TP}
    v_mov_b32 v{52}, s{sTAG}
    v_mov_b32 v{53}, s{sTAG}
    s_waitcnt lgkmcnt(0)
    s_barrier''')
    for c in range(3):
        A(f'ds_read_b128 {vr(X + 4 * c, 4)}, v{t + 2} offset:{1024 * c}')
    O = 64
    for j in range(4):
        jb, js = j & ~1, j & 1
        A(f'v_pk_mov_b32 {vr(O + 4 * j, 2)}, {vr(X + jb, 2)}, {vr(X + 4 + jb, 2)} op_sel:[{js},{js}]')
        A(f'v_pk_mov_b32 {vr(O + 4 * j + 2, 2)}, {vr(X + 8 + jb, 2)}, {vr(52, 2)} op_sel:[{js},0]')
        A(f'buffer_store_dwordx4 {vr(O + 4 * j, 4)}, v{vL16}, {srd(S_WS)}, s{sT0} offen offset:{1024 * j} sc1')


def epoch_store():
    t = TMP + 12
    A(f'''s_cmp_eq_u32 s{sME}, 0
    s_cselect_b32 s{sBGO}, {WS_EPOCH}, {OOB}
    v_mov_b32 v{t}, s{sTAG}
    v_mov_b32 v{t + 1}, 0
    buffer_store_dword v{t}, v{t + 1}, {srd(S_WS)}, s{sBGO} offen sc1''')


K3_MA = 100
K3_MB = 132
K3_X = 156
K3_GA = 176
K3_SB = 196
K3_CB = 216
K3_IN = 24
vK3A, vK3B = 236, 237
vXA, vXC = 22, 23
sK3 = sU + 8
RAW3 = 40


def k3_const():
    t = TMP
    A(f'''v_lshlrev_b32 v{t}, 2, v{vL31}
    v_add_u32 v{t}, s{sW}, v{t}
    v_cvt_f32_u32 v{t}, v{t}
    v_mul_f32 v{t}, {f2u(1.0 / 128)}, v{t}
    v_cvt_f32_u32 v{t + 8}, v{vH}
    v_mul_f32 v{t + 8}, 4.0, v{t + 8}
    v_mul_f32 v{t + 1}, v{t + 8}, v{t}''')
    for u in range(4):
        for jj in range(4):
            e = 2 + 3 * (jj & 1)
            fmamk(t + e, t, 8 * u + jj, t + 1)
            sincos(t + e, t + e + 1, t + e + 2)
            A(f'v_cvt_pk_bf16_f32 v{K3_MA + 4 * u + jj}, v{t + e + 1}, -v{t + e + 2}')
            A(f'v_cvt_pk_bf16_f32 v{K3_MA + 16 + 4 * u + jj}, v{t + e + 2}, v{t + e + 1}')
    A(f'''v_lshrrev_b32 v{t}, 3, v{vL31}
    v_cvt_f32_u32 v{t}, v{t}
    v_mul_f32 v{t}, {f2u(0.4)}, v{t}
    v_and_b32 v{t + 1}, 7, v{vL}
    v_cvt_f32_u32 v{t + 1}, v{t + 1}
    v_mul_f32 v{t + 1}, {f2u(0.125)}, v{t + 1}
    v_mul_f32 v{t + 9}, v{t + 8}, v{t + 1}''')
    for jj in range(4):
        fmamk(t + 10, t + 1, jj, t + 9)
        for tau in range(3):
            fmamk(t + 2, t, tau, t + 10)
            sincos(t + 2, t + 3, t + 4)
            if tau:
                A(f'v_add_f32 v{t + 5}, {f2u(1.6 * tau)}, v{t + 10}')
                sincos(t + 5, t + 6, t + 7)
            A(f'v_cvt_pk_bf16_f32 v{K3_MB + 4 * tau + jj}, v{t + 3}, -v{t + 4}')
            if tau:
                A(f'v_cvt_pk_bf16_f32 v{K3_MB + 12 + 4 * tau + jj}, v{t + 6}, -v{t + 7}')
            else:
                A(f'v_mov_b32 v{K3_MB + 12 + jj}, v{K3_MB + jj}')


def k3_loads():
    s = ''
    for m in range(4):
        s += f'buffer_load_dwordx4 {vr(K3_IN + 4 * m, 4)}, v{vK3A + (m >> 1)}, {srd(S_WS)}, s{sK3 + m} offen sc1\n'
    return s


def k3_issue():
    t = TMP
    A(f'''v_lshrrev_b32 v{t}, 5, v0
    v_sub_u32 v{t + 1}, 8, v{t}
    v_and_b32 v{t + 1}, 7, v{t + 1}
    v_lshrrev_b32 v{t + 2}, 2, v{vL31}
    v_lshl_add_u32 v{t}, v{t}, 5, v{t + 2}
    v_lshl_add_u32 v{t + 1}, v{t + 1}, 5, v{t + 2}
    v_mul_u32_u24 v{t}, {BS}, v{t}
    v_mul_u32_u24 v{t + 1}, {BS}, v{t + 1}
    v_and_b32 v{t + 2}, 3, v{vL}
    v_lshl_add_u32 v{vK3A}, v{t + 2}, 4, v{t}
    v_lshl_add_u32 v{vK3B}, v{t + 2}, 4, v{t + 1}
    s_lshl_b32 s{sT0}, s{sME}, 6
    s_add_u32 s{sK3}, s{sT0}, {WS_TP}''')
    for m in range(1, 4):
        A(f's_add_u32 s{sK3 + m}, s{sK3}, {8 * m * BS}')
    A(k3_loads())


sX3 = sU + 12


def k3_side_issue(R):
    t = TMP + 10
    A(f"""s_lshl_b32 s{sX3}, s{sW}, 9
    s_add_u32 s{sX3}, s{sX3}, s{sME}
    s_mul_i32 s{sX3}, s{sX3}, 1280
    v_mul_u32_u24 v{t}, {256 * 1280}, v{vH}
    v_lshl_add_u32 v{vXA}, v{vL31}, 4, v{t}
    v_lshl_add_u32 v{vXC}, v{vL31}, 3, v{t}
    buffer_load_dwordx4 {vr(R, 4)}, v{vXA}, {srd(S_X)}, s{sX3} offen
    buffer_load_dwordx4 {vr(R + 4, 4)}, v{vXA}, {srd(S_X)}, s{sX3} offen offset:512
    buffer_load_dwordx2 {vr(R + 8, 2)}, v{vXC}, {srd(S_X)}, s{sX3} offen offset:1024
    v_lshlrev_b32 v{t}, 4, v{vL31}
    v_lshlrev_b32 v{t + 1}, 3, v{vL31}
    s_mov_b32 s{sX3}, {WS_MODD + 2 * 1280}""")
    for v in range(3):
        A(f"""buffer_load_dwordx4 {vr(R + 10 + 10 * v, 4)}, v{t}, {srd(S_WS)}, s{sX3} offen offset:{1280 * v} sc1
        buffer_load_dwordx4 {vr(R + 14 + 10 * v, 4)}, v{t}, {srd(S_WS)}, s{sX3} offen offset:{1280 * v + 512} sc1
        buffer_load_dwordx2 {vr(R + 18 + 10 * v, 2)}, v{t + 1}, {srd(S_WS)}, s{sX3} offen offset:{1280 * v + 1024} sc1""")


def k3_side_finish(R):
    for i, dst in enumerate((K3_X, K3_GA, K3_SB, K3_CB)):
        for k in range(10):
            unpack(dst + 2 * k, dst + 2 * k + 1, R + 10 * i + k)


def row_stats(b, t):
    A(f'v_pk_add_f32 {vr(t, 2)}, {vr(b, 2)}, {vr(b + 2, 2)}')
    A(f'v_pk_mul_f32 {vr(t + 2, 2)}, {vr(b, 2)}, {vr(b, 2)}')
    for k in range(1, 10):
        if k > 1:
            A(f'v_pk_add_f32 {vr(t, 2)}, {vr(t, 2)}, {vr(b + 2 * k, 2)}')
        A(f'v_pk_fma_f32 {vr(t + 2, 2)}, {vr(b + 2 * k, 2)}, {vr(b + 2 * k, 2)}, {vr(t + 2, 2)}')
    A(f'''v_add_f32 v{t}, v{t}, v{t + 1}
    v_add_f32 v{t + 2}, v{t + 2}, v{t + 3}
    v_permlane16_swap_b32 v{t}, v{t + 2}
    v_add_f32 v{t}, v{t}, v{t + 2}''')
    for r in (8, 4, 2, 1):
        A(f'v_add_f32_dpp v{t}, v{t}, v{t} row_ror:{r} row_mask:0xf bank_mask:0xf')
    A(f'''v_mul_f32 v{t + 1}, {f2u(1.0 / 640)}, v{t}
    v_mul_f32 v{t + 2}, {f2u(1.0 / 640)}, v{t}
    v_permlane16_swap_b32 v{t + 1}, v{t + 2}
    v_fma_f32 v{t}, -v{t + 1}, v{t + 1}, v{t + 2}
    v_max_f32 v{t}, 0, v{t}
    v_add_f32 v{t}, {f2u(1e-5)}, v{t}
    v_rsq_f32 v{t}, v{t}
    v_mul_f32 v{t + 1}, v{t + 1}, v{t}''')


def k3_pre():
    t = TMP
    WA = t
    A(f'v_lshrrev_b32 v{t + 3}, 5, v0')
    A(f'v_mul_u32_u24 v{t + 3}, 144, v{t + 3}')
    for c in range(3):
        A(f'''v_add_u32 v{WA + c}, {13 * c}, v{vL31}
        v_and_b32 v{WA + c}, 31, v{WA + c}
        v_lshl_add_u32 v{WA + c}, v{WA + c}, 2, v{t + 3}
        v_add_u32 v{WA + c}, {L_K3I + 8 * 144 * c}, v{WA + c}''')
    A(f'''s_mul_i32 s{sT0}, s{sW}, {24 * 144}
    s_add_u32 s{sT0}, s{sT0}, {L_K3I}
    v_mul_u32_u24 v{t + 3}, 144, v{vL31}
    v_lshl_add_u32 v{t + 3}, v{vH}, 4, v{t + 3}
    v_add_u32 v{t + 3}, s{sT0}, v{t + 3}''')
    YA = t + 4
    A(f'''v_lshl_add_u32 v{t + 9}, v{vL31}, 2, s{sW}
    v_mul_u32_u24 v{t + 10}, 3, v{t + 9}
    v_lshlrev_b32 v{t + 9}, 2, v{t + 9}
    v_mul_u32_u24 v{t + 11}, 5120, v{vH}
    v_add3_u32 v{t + 9}, v{t + 9}, v{t + 11}, 0
    v_add_u32 v{t + 9}, {L_Y}, v{t + 9}''')
    for a in range(5):
        A(f'v_add_u32 v{t + 11}, {2 * a}, v{t + 10}')
        mod5(t + 11, t + 11, t + 12)
        A(f'v_lshl_add_u32 v{YA + a}, v{t + 11}, 9, v{t + 9}')


def k3_poll():
    poll_check('tp', k3_loads(), tagcheck([K3_IN + 4 * m + 3 for m in range(4)]))
    stamp('Tp')


def k3_main():
    t = TMP
    WA = t
    YA = t + 4
    Z = 40
    P = 48
    Q = 56
    for c in range(3):
        if c == 0:
            src = [K3_IN + 4 * k for k in range(4)]
        else:
            r0 = 1 if c == 1 else 3
            for k in range(4):
                A(f'v_cndmask_b32 v{Q + k}, v{K3_IN + 4 * ((k + r0) % 4) + c}, v{K3_IN + 4 * ((k + r0 + 1) % 4) + c}, {sr(sM1 if c == 1 else sM2, 2)}')
            src = [Q + k for k in range(4)]
        z = Z + 20 * (c & 1)
        for k in range(4):
            unpack(z + 2 * k, z + 2 * k + 1, src[k])
        A(f'''v_pk_add_f32 {vr(P, 2)}, {vr(z, 2)}, {vr(z + 4, 2)}
        v_pk_add_f32 {vr(P + 2, 2)}, {vr(z, 2)}, {vr(z + 4, 2)} neg_lo:[0,1] neg_hi:[0,1]
        v_pk_add_f32 {vr(P + 4, 2)}, {vr(z + 2, 2)}, {vr(z + 6, 2)}
        v_pk_add_f32 {vr(P + 6, 2)}, {vr(z + 2, 2)}, {vr(z + 6, 2)} neg_lo:[0,1] neg_hi:[0,1]
        v_pk_add_f32 {vr(z, 2)}, {vr(P, 2)}, {vr(P + 4, 2)}
        v_pk_add_f32 {vr(z + 4, 2)}, {vr(P, 2)}, {vr(P + 4, 2)} neg_lo:[0,1] neg_hi:[0,1]
        v_pk_add_f32 {vr(z + 2, 2)}, {vr(P + 2, 2)}, {vr(P + 6, 2)} op_sel:[0,1] op_sel_hi:[1,0] neg_lo:[0,1]
        v_pk_add_f32 {vr(z + 6, 2)}, {vr(P + 2, 2)}, {vr(P + 6, 2)} op_sel:[0,1] op_sel_hi:[1,0] neg_hi:[0,1]''')
        for k in range(4):
            A(f'v_cvt_pk_bf16_f32 v{z + 2 * k}, v{z + 2 * k}, v{z + 2 * k + 1}')
            A(f'ds_write_b32 v{WA + c}, v{z + 2 * k} offset:{24 * 144 * k}')
    A('''s_waitcnt lgkmcnt(0)
    s_barrier''')
    OPA = 24
    DRE, DIM = 40, 56
    for u in range(4):
        A(f'ds_read_b128 {vr(OPA + 4 * u, 4)}, v{t + 3} offset:{32 * u}')
    for u in range(4):
        A(f'v_mfma_f32_32x32x16_bf16 {vr(DRE, 16)}, {vr(OPA + 4 * u, 4)}, {vr(K3_MA + 4 * u, 4)}, {vr(DRE, 16) if u else 0}')
        A(f'v_mfma_f32_32x32x16_bf16 {vr(DIM, 16)}, {vr(OPA + 4 * u, 4)}, {vr(K3_MA + 16 + 4 * u, 4)}, {vr(DIM, 16) if u else 0}')
    OPB = 72
    E0, E1 = 100, 116
    for tau in range(3):
        for jj in range(4):
            A(f'v_cvt_pk_bf16_f32 v{OPB + 4 * tau + jj}, v{DRE + 4 * tau + jj}, v{DIM + 4 * tau + jj}')
        A(f'v_mfma_f32_32x32x16_bf16 {vr(E0, 16)}, {vr(K3_MB + 4 * tau, 4)}, {vr(OPB + 4 * tau, 4)}, {vr(E0, 16) if tau else 0}')
        A(f'v_mfma_f32_32x32x16_bf16 {vr(E1, 16)}, {vr(K3_MB + 12 + 4 * tau, 4)}, {vr(OPB + 4 * tau, 4)}, {vr(E1, 16) if tau else 0}')
    A(f'''s_mul_i32 s{sT0}, s{sW}, 2560
    s_add_u32 s{sT0}, s{sT0}, {L_Y}
    v_lshl_add_u32 v{t}, v{vL31}, 5, s{sT0}
    v_lshl_add_u32 v{t + 1}, v{vL31}, 4, s{sT0}
    v_mov_b32 v{t + 2}, 0x01000c0c
    v_mov_b32 v{t + 3}, 0x03020c0c
    v_cmp_eq_u32 vcc, 1, v{vH}
    v_cndmask_b32 v{t + 2}, v{t + 2}, v{t + 3}, vcc''')
    for a in range(5):
        e = E0 + 4 * a
        A(f'v_cvt_pk_bf16_f32 v{24 + 2 * a}, v{e}, v{e + 1}')
        A(f'v_cvt_pk_bf16_f32 v{25 + 2 * a}, v{e + 2}, v{e + 3}')
        A(f'ds_write2st64_b32 v{YA + a}, v{24 + 2 * a}, v{25 + 2 * a} offset0:0 offset1:10')
    A('''s_waitcnt lgkmcnt(0)
    s_barrier''')
    Y = 40
    for k in range(4):
        A(f'ds_read_b128 {vr(Y + 4 * k, 4)}, v{t} offset:{1024 * (k >> 1) + 16 * (k & 1)}')
    A(f'ds_read_b128 {vr(Y + 16, 4)}, v{t + 1} offset:2048')
    A(f'''s_mul_i32 s{sT0}, s{sME}, 10240
    s_mul_i32 s{sT1}, s{sW}, 2560
    s_add_u32 s{sT1}, s{sT1}, s{sT0}
    s_add_u32 s{sT1}, s{sT1}, {WS_X1}
    s_add_u32 s{sT0}, s{sT0}, {WS_Y2}
    v_mul_u32_u24 v{t + 5}, 1280, v{vH}
    v_lshl_add_u32 v{t + 4}, v{vL31}, 4, v{t + 5}
    v_lshl_add_u32 v{t + 5}, v{vL31}, 3, v{t + 5}''')
    PK = 24
    for k in range(10):
        A(f'v_perm_b32 v{Y + 2 * k}, v{Y + 2 * k}, v{Y + 2 * k}, v{t + 2}')
        A(f'v_perm_b32 v{Y + 2 * k + 1}, v{Y + 2 * k + 1}, v{Y + 2 * k + 1}, v{t + 2}')
        A(f'v_pk_fma_f32 {vr(Y + 2 * k, 2)}, {vr(Y + 2 * k, 2)}, {vr(K3_GA + 2 * k, 2)}, {vr(K3_X + 2 * k, 2)}')
        A(f'v_cvt_pk_bf16_f32 v{PK + k}, v{Y + 2 * k}, v{Y + 2 * k + 1}')
    A(f'''buffer_store_dwordx4 {vr(PK, 4)}, v{t + 4}, {srd(S_WS)}, s{sT1} offen
    buffer_store_dwordx4 {vr(PK + 4, 4)}, v{t + 4}, {srd(S_WS)}, s{sT1} offen offset:512
    buffer_store_dwordx2 {vr(PK + 8, 2)}, v{t + 5}, {srd(S_WS)}, s{sT1} offen offset:1024''')
    ST = t + 8
    row_stats(Y, ST)
    nm = 'op_sel:[0,0,1] op_sel_hi:[1,0,1] neg_lo:[0,0,1] neg_hi:[0,0,1]'
    for k in range(10):
        A(f'v_pk_fma_f32 {vr(Y + 2 * k, 2)}, {vr(Y + 2 * k, 2)}, {vr(ST, 2)}, {vr(ST, 2)} {nm}')
        A(f'v_pk_fma_f32 {vr(Y + 2 * k, 2)}, {vr(Y + 2 * k, 2)}, {vr(K3_CB + 2 * k, 2)}, {vr(K3_SB + 2 * k, 2)}')
    row_stats(Y, ST)
    A(f'''s_lshl_b32 s{sT2}, s{sW}, 1
    v_add_u32 v{t}, s{sT2}, v{vH}
    v_xor_b32 v{t + 1}, v{t}, v{vL31}
    v_and_b32 v{t + 1}, 7, v{t + 1}
    v_lshlrev_b32 v{t + 1}, 4, v{t + 1}
    v_lshl_add_u32 v{t + 1}, v{vL31}, 7, v{t + 1}
    v_add_u32 v{t + 1}, {L_Y2}, v{t + 1}
    v_lshrrev_b32 v{t + 2}, 1, v{vL31}
    v_xor_b32 v{t + 3}, v{t}, v{t + 2}
    v_and_b32 v{t + 3}, 7, v{t + 3}
    v_lshlrev_b32 v{t + 3}, 4, v{t + 3}
    v_lshl_add_u32 v{t + 3}, v{t + 2}, 7, v{t + 3}
    v_and_b32 v{t + 2}, 1, v{vL}
    v_lshl_add_u32 v{t + 3}, v{t + 2}, 3, v{t + 3}
    v_add_u32 v{t + 3}, {L_Y2 + 64 * 128}, v{t + 3}
    v_lshrrev_b32 v{t + 2}, 3, v0
    v_xor_b32 v{t + 4}, v{t + 2}, v0
    v_and_b32 v{t + 4}, 7, v{t + 4}
    v_lshlrev_b32 v{t + 4}, 4, v{t + 4}
    v_lshl_add_u32 v{t + 4}, v{t + 2}, 7, v{t + 4}
    v_add_u32 v{t + 4}, {L_Y2}, v{t + 4}
    v_cmp_gt_u32 vcc, 128, v0
    v_mov_b32 v{t + 5}, {OOB}
    v_cndmask_b32 v{t + 5}, v{t + 5}, v{vT16}, vcc''')
    PK = 60
    for k in range(10):
        A(f'v_pk_fma_f32 {vr(Y + 2 * k, 2)}, {vr(Y + 2 * k, 2)}, {vr(ST, 2)}, {vr(ST, 2)} {nm}')
        A(f'v_cvt_pk_bf16_f32 v{PK + k}, v{Y + 2 * k}, v{Y + 2 * k + 1}')
        if k == 3:
            A(f'ds_write_b128 v{t + 1}, {vr(PK, 4)}')
        if k == 7:
            A(f'ds_write_b128 v{t + 1}, {vr(PK + 4, 4)} offset:4096')
    A(f'''ds_write_b64 v{t + 3}, {vr(PK + 8, 2)}
    s_add_u32 s{sT1}, s{sT0}, 4096
    s_add_u32 s{sT2}, s{sT0}, 8192
    s_waitcnt lgkmcnt(0)
    s_barrier''')
    for i in range(3):
        A(f'ds_read_b128 {vr(24 + 4 * i, 4)}, v{t + 4} offset:{4096 * i}')
    for i in range(3):
        A(f'buffer_store_dwordx4 {vr(24 + 4 * i, 4)}, v{vT16 if i < 2 else t + 5}, {srd(S_WS)}, s{sT0 + i} offen{ST1}')


G1_A = 24
G1_ACC = 184
G1_B = 232
vG1A = 20
sG1 = sU + 13
B1R = 252


def b1_issue():
    A(f"""s_mul_i32 s{sBGO}, s{sJ}, 192
    v_lshlrev_b32 v{B1R + 2}, 1, v{vL31}""")
    for k in range(3):
        A(f'buffer_load_ushort v{B1R + k}, v{B1R + 2}, {srd(S_B1)}, s{sBGO} offen offset:{64 * k}')


def b1_finish():
    Bq, Aq = 40, 44
    A(f"""v_cmp_eq_u32 vcc, 0, v{vH}
    v_mov_b32 v{Bq + 1}, 0x3f80
    v_mov_b32 v{Bq + 2}, 0
    v_cndmask_b32 v{Bq}, v{Bq + 2}, v{Bq + 1}, vcc
    v_mov_b32 v{Bq + 1}, 0
    v_mov_b32 v{Bq + 3}, 0""")
    for k in range(3):
        A(f"""v_mov_b32 v{Aq + 4 * k}, v{B1R + k}
        v_mov_b32 v{Aq + 4 * k + 1}, 0
        v_mov_b32 v{Aq + 4 * k + 2}, 0
        v_mov_b32 v{Aq + 4 * k + 3}, 0""")
    for k in range(3):
        A(f'v_mfma_f32_32x32x16_bf16 {vr(G1_ACC + 16 * k, 16)}, {vr(Aq + 4 * k, 4)}, {vr(Bq, 4)}, 0')


def g1_load(i):
    return f'buffer_load_dwordx4 {vr(G1_A + 4 * i, 4)}, v{vG1A}, {srd(S_WS)}, s{sG1 + i // 16} offen offset:{256 * (i % 16)}{GSC}\n'


NS = 5
PRE = 4


def g1_rd(n):
    t = TMP
    ks, tl = divmod(n, 3)
    ad = t + ks // 20
    off = (ks % 20) * 3072 + 64 * tl
    s = G1_B + 4 * (n % NS)
    return [f'ds_read_b64_tr_b16 {vr(s, 2)}, v{ad} offset:{off}', f'ds_read_b64_tr_b16 {vr(s + 2, 2)}, v{ad} offset:{off + 768}']


def g1_pre():
    t = TMP
    A(f"""v_lshrrev_b32 v{t}, 3, v{vL31}
    v_mul_u32_u24 v{t}, 10240, v{t}
    v_lshl_add_u32 v{t}, v{vH}, 7, v{t}
    v_and_b32 v{t + 1}, 7, v{vL}
    v_lshl_add_u32 v{vG1A}, v{t + 1}, 4, v{t}
    s_lshl_b32 s{sT0}, s{sCL}, 2
    s_add_u32 s{sT0}, s{sT0}, s{sW}
    s_mul_i32 s{sT0}, s{sT0}, 40960
    s_add_u32 s{sG1}, s{sT0}, {WS_Y2}
    s_add_u32 s{sG1 + 1}, s{sG1}, 4096
    s_add_u32 s{sG1 + 2}, s{sG1}, 8192""")
    A(f"""v_lshrrev_b32 v{t}, 2, v{vL15}
    v_lshl_add_u32 v{t}, v{vH}, 3, v{t}
    v_mul_u32_u24 v{t}, 192, v{t}
    v_and_b32 v{t + 1}, 1, v{vQ}
    v_lshl_add_u32 v{t}, v{t + 1}, 5, v{t}
    v_and_b32 v{t + 1}, 3, v{vL}
    v_lshl_add_u32 v{t}, v{t + 1}, 3, v{t}
    v_add_u32 v{t + 1}, {20 * 3072}, v{t}""")


def g1_main():
    LA = OPT['la1']
    for i in range(LA):
        A(g1_load(i))
    for n in range(PRE):
        for x in g1_rd(n):
            A(x)
    for ks in range(40):
        for tl in range(3):
            n = 3 * ks + tl
            A(f'v_mfma_f32_32x32x16_bf16 {vr(G1_ACC + 16 * tl, 16)}, {vr(G1_B + 4 * (n % NS), 4)}, {vr(G1_A + 4 * ks, 4)}, {vr(G1_ACC + 16 * tl, 16)}')
            if tl == 0 and ks + LA < 40:
                A(g1_load(ks + LA))
            if n + PRE < 120:
                for x in g1_rd(n + PRE):
                    A(x)
    A('s_barrier')
    stamp('g1')


def gelu_store():
    t = TMP
    A(f'''v_lshrrev_b32 v{t}, 4, v{vL31}
    v_mul_u32_u24 v{t}, {48 * 1024}, v{t}
    v_lshl_add_u32 v{t}, v{vH}, 8, v{t}
    v_lshl_add_u32 v{t}, v{vL15}, 4, v{t}
    s_mul_i32 s{sT0}, s{sCL}, 393216
    s_mul_i32 s{sT1}, s{sW}, {96 * 1024}
    s_add_u32 s{sT0}, s{sT0}, s{sT1}
    s_mul_i32 s{sT1}, s{sJ}, 3072
    s_add_u32 s{sT0}, s{sT0}, s{sT1}
    s_add_u32 s{sT0}, s{sT0}, {WS_H}''')
    k0 = -2.0 * 0.7978845608028654 * 1.4426950408889634
    A(f'''v_mov_b32 v{t + 2}, {f2u(k0 * 0.044715)}
    v_mov_b32 v{t + 3}, {f2u(k0)}''')
    E = 24
    for tl in range(3):
        for g in range(2):
            regs = [G1_ACC + 16 * tl + 4 * g, G1_ACC + 16 * tl + 4 * g + 2, G1_ACC + 16 * tl + 8 + 4 * g, G1_ACC + 16 * tl + 8 + 4 * g + 2]
            e = E + 12 * ((2 * tl + g) & 1)
            for k, r in enumerate(regs):
                A(f'v_pk_mul_f32 {vr(e + 2 * k, 2)}, {vr(r, 2)}, {vr(r, 2)}')
            for k, r in enumerate(regs):
                A(f'v_pk_fma_f32 {vr(e + 2 * k, 2)}, {vr(e + 2 * k, 2)}, {vr(t + 2, 2)}, {vr(t + 2, 2)} op_sel:[0,0,1] op_sel_hi:[1,0,1]')
            for k, r in enumerate(regs):
                A(f'v_pk_mul_f32 {vr(e + 2 * k, 2)}, {vr(e + 2 * k, 2)}, {vr(r, 2)}')
            for k in range(8):
                A(f'v_exp_f32 v{e + k}, v{e + k}')
            for k in range(4):
                A(f'v_pk_add_f32 {vr(e + 2 * k, 2)}, {vr(e + 2 * k, 2)}, 1.0 op_sel_hi:[1,0]')
            for k in range(8):
                A(f'v_rcp_f32 v{e + k}, v{e + k}')
            for k, r in enumerate(regs):
                A(f'v_pk_mul_f32 {vr(e + 2 * k, 2)}, {vr(e + 2 * k, 2)}, {vr(r, 2)}')
            for k in range(4):
                A(f'v_cvt_pk_bf16_f32 v{e + 8 + k}, v{e + 2 * k}, v{e + 2 * k + 1}')
            A(f'buffer_store_dwordx4 {vr(e + 8, 4)}, v{t}, {srd(S_WS)}, s{sT0} offen offset:{1024 * tl + 512 * g}{ST1}')


G2_H = 24
G2_ACC = 168
G2_BASE = 208
G2_GB = 228
sG2 = sU + 16
vOA, vOC = 248, 249
RS = 336
PS = 16 * RS


def fin_issue(R):
    t = TMP
    A(f'''v_lshrrev_b32 v{t}, 2, v{vL}
    v_and_b32 v{t + 1}, 3, v{vL}
    v_mul_u32_u24 v{t + 2}, 1280, v{t}
    v_lshl_add_u32 v{t + 3}, v{t + 1}, 4, v{t + 2}
    v_lshl_add_u32 v{t + 4}, v{t + 1}, 3, v{t + 2}
    s_lshr_b32 s{sT0}, s{sJ}, 3
    s_lshl_b32 s{sT0}, s{sT0}, 2
    s_add_u32 s{sT0}, s{sT0}, s{sW}
    s_lshl_b32 s{sT1}, s{sCL}, 3
    s_add_u32 s{sT0}, s{sT0}, s{sT1}
    s_and_b32 s{sT2}, s{sJ}, 7
    s_mul_i32 s{sT3}, s{sT2}, 160
    s_mul_i32 s{sT1}, s{sT0}, {16 * 1280}
    s_add_u32 s{sT1}, s{sT1}, s{sT3}
    s_add_u32 s{sT1}, s{sT1}, {WS_X1}
    buffer_load_dwordx4 {vr(R, 4)}, v{t + 3}, {srd(S_WS)}, s{sT1} offen sc1
    buffer_load_dwordx4 {vr(R + 4, 4)}, v{t + 3}, {srd(S_WS)}, s{sT1} offen offset:64 sc1
    buffer_load_dwordx2 {vr(R + 8, 2)}, v{t + 4}, {srd(S_WS)}, s{sT1} offen offset:128 sc1
    v_lshlrev_b32 v{t + 5}, 4, v{t + 1}
    v_lshlrev_b32 v{t + 6}, 3, v{t + 1}
    buffer_load_dwordx4 {vr(R + 10, 4)}, v{t + 5}, {srd(S_B2)}, s{sT3} offen
    buffer_load_dwordx4 {vr(R + 14, 4)}, v{t + 5}, {srd(S_B2)}, s{sT3} offen offset:64
    buffer_load_dwordx2 {vr(R + 18, 2)}, v{t + 6}, {srd(S_B2)}, s{sT3} offen offset:128
    s_add_u32 s{sT4}, s{sT3}, {WS_MODD + 5 * 1280}
    buffer_load_dwordx4 {vr(R + 20, 4)}, v{t + 5}, {srd(S_WS)}, s{sT4} offen sc1
    buffer_load_dwordx4 {vr(R + 24, 4)}, v{t + 5}, {srd(S_WS)}, s{sT4} offen offset:64 sc1
    buffer_load_dwordx2 {vr(R + 28, 2)}, v{t + 6}, {srd(S_WS)}, s{sT4} offen offset:128 sc1''')
    A(f'''v_and_b32 v{t + 2}, 7, v{t}
    v_lshlrev_b32 v{t + 2}, 8, v{t + 2}
    v_lshrrev_b32 v{t}, 3, v{t}
    s_lshl_b32 s{sT0}, s{sT0}, 1
    v_add3_u32 v{t}, v{t}, v{t + 2}, s{sT0}
    v_mul_u32_u24 v{t}, 1280, v{t}
    v_add_u32 v{t}, s{sT3}, v{t}
    v_add_u32 v{vOA}, v{t}, v{t + 5}
    v_add_u32 v{vOC}, v{t}, v{t + 6}''')


def fin_finish(R):
    t = TMP
    for k in range(10):
        unpack(G2_GB + 2 * k, G2_GB + 2 * k + 1, R + 20 + k)
        unpack(G2_BASE + 2 * k, G2_BASE + 2 * k + 1, R + k)
        unpack(t, t + 1, R + 10 + k)
        A(f'v_pk_fma_f32 {vr(G2_BASE + 2 * k, 2)}, {vr(G2_GB + 2 * k, 2)}, {vr(t, 2)}, {vr(G2_BASE + 2 * k, 2)}')


NH = 24
FR = G2_H + 4 * NH


def g2_load(n):
    blk, kl = divmod(n, 12)
    r = G2_H + 4 * (n % NH)
    return f'buffer_load_dwordx4 {vr(r, 4)}, v{[vL16, 21, 22][kl // 4]}, {srd(S_WS)}, s{sG2 + blk} offen offset:{1024 * (kl % 4)}{GSC}\n'


def g2_pre():
    t = TMP
    A(f"""v_add_u32 v21, 4096, v{vL16}
    v_add_u32 v22, 8192, v{vL16}
    s_mul_i32 s{sT0}, s{sCL}, 393216
    s_lshr_b32 s{sT1}, s{sJ}, 3
    s_mul_i32 s{sT1}, s{sT1}, {4 * 48 * 1024}
    s_add_u32 s{sT0}, s{sT0}, s{sT1}
    s_mul_i32 s{sT1}, s{sW}, {12 * 1024}
    s_add_u32 s{sT0}, s{sT0}, s{sT1}
    s_add_u32 s{sT0}, s{sT0}, {WS_H}""")
    A(f"""v_mul_u32_u24 v{t}, {RS}, v{vL15}
    v_lshl_add_u32 v{t}, v{vQ}, 4, v{t}
    v_lshrrev_b32 v{t + 5}, 2, v{vL}
    v_mul_u32_u24 v{t + 5}, {RS}, v{t + 5}
    s_mul_i32 s{sT2}, s{sW}, {4 * PS}
    v_add_u32 v{t + 5}, s{sT2}, v{t + 5}
    v_and_b32 v{t + 7}, 3, v{vL}
    v_lshl_add_u32 v{t + 6}, v{t + 7}, 4, v{t + 5}
    v_lshl_add_u32 v{t + 5}, v{t + 7}, 5, v{t + 5}""")
    for blk in range(4):
        A(f"""s_add_u32 s{sT1}, s{sW}, {blk + 1}
        s_and_b32 s{sT1}, s{sT1}, 3
        s_mul_i32 s{sT2}, s{sT1}, {48 * 1024}
        s_add_u32 s{sG2 + blk}, s{sT0}, s{sT2}
        s_mul_i32 s{sT1}, s{sT1}, {4 * PS}
        s_add_u32 s{sT1}, s{sT1}, {blk * PS}
        v_add_u32 v{t + 1 + blk}, s{sT1}, v{t}""")


def g2_main():
    t = TMP
    LA = OPT['la2']

    def rdp(dst, slot):
        out = []
        for k in range(4):
            out.append(f'ds_read_b128 {vr(dst + 4 * k, 4)}, v{t + 5} offset:{slot * PS + 128 * (k >> 1) + 16 * (k & 1)}')
        out.append(f'ds_read_b128 {vr(dst + 16, 4)}, v{t + 6} offset:{slot * PS + 256}')
        return out

    def fold(src):
        return [f'v_fmac_f32 v{G2_BASE + k}, v{G2_GB + k}, v{src + k}' for k in range(20)]
    for n in range(LA):
        A(g2_load(n))
    for blk in range(4):
        acc = G2_ACC + 20 * (blk & 1)
        side = {}
        if blk >= 1:
            pa = G2_ACC + 20 * ((blk - 1) & 1)
            for nt in range(5):
                side[5 + 2 * nt] = [f'ds_write_b128 v{t + blk}, {vr(pa + 4 * nt, 4)} offset:{64 * nt}']
            side[20] = ['s_waitcnt lgkmcnt(0)', 's_barrier']
            for k, x in enumerate(rdp(FR, blk - 1)):
                side[21 + k] = [x]
            for k, x in enumerate(fold(FR)):
                side[34 + k] = [x]
        for kl in range(12):
            n = 12 * blk + kl
            for nt in range(5):
                A(f'v_mfma_f32_16x16x32_bf16 {vr(acc + 4 * nt, 4)}, {ar((kl * 5 + nt) * 4, 4)}, {vr(G2_H + 4 * (n % NH), 4)}, {vr(acc + 4 * nt, 4) if kl else 0}')
                if nt == 0 and n + LA < 48:
                    A(g2_load(n + LA))
                for x in side.get(5 * kl + nt, []):
                    A(x)
    stamp('g2')
    pa = G2_ACC + 20
    for nt in range(5):
        A(f'ds_write_b128 v{t + 4}, {vr(pa + 4 * nt, 4)} offset:{64 * nt}')
    R = FR
    for x in rdp(R, 3):
        A(x)
    sc = ' sc1' if OPT['outsc1'] else ''
    for k in range(10):
        A(f'v_pk_fma_f32 {vr(R + 2 * k, 2)}, {vr(R + 2 * k, 2)}, {vr(G2_GB + 2 * k, 2)}, {vr(G2_BASE + 2 * k, 2)}')
        A(f'v_cvt_pk_bf16_f32 v{R + 20 + k}, v{R + 2 * k}, v{R + 2 * k + 1}')
        if k == 3:
            A(f'buffer_store_dwordx4 {vr(R + 20, 4)}, v{vOA}, {srd(S_OUT)}, 0 offen{sc}')
        if k == 7:
            A(f'buffer_store_dwordx4 {vr(R + 24, 4)}, v{vOA}, {srd(S_OUT)}, 0 offen offset:64{sc}')
    A(f'buffer_store_dwordx2 {vr(R + 28, 2)}, v{vOC}, {srd(S_OUT)}, 0 offen offset:128{sc}')


def seq(*fns):
    def f():
        for x in fns:
            x()
    return f


def program():
    if OPT['fixed']:
        A('s_memrealtime s[98:99]')
    if OPT['stamps']:
        A('v_mov_b32 v255, 0')
    stamp('start')
    setup()
    stamp('karg')
    if OPT['ptest']:
        kind = OPT['ptest']
        n, base, sd = {1: (2, 0, 90), 2: (16, 32 << 20, S_WS), 3: (16, 239 << 20, S_WS), 4: (2, 0, S_OUT), 5: (4, 0, S_WM), 6: (16, 128 << 20, S_WS)}[kind]
        if kind == 1:
            sd = 92
            A('s_mov_b64 s[92:93], s[70:71]\ns_mov_b32 s94, 2621440\ns_mov_b32 s95, 0x00020000')
        A(f's_waitcnt lgkmcnt(0)\ns_memrealtime s[100:101]\ns_waitcnt lgkmcnt(0)\ns_mov_b32 s97, s100')
        A(f's_mul_i32 s{sT0}, s{sME}, {4096 * n}\ns_add_u32 s{sT0}, s{sT0}, {base}')
        for i in range(n):
            A(f'buffer_load_dwordx4 {vr(64 + 4 * i, 4)}, v{vT16}, {srd(sd)}, s{sT0} offen\ns_add_u32 s{sT0}, s{sT0}, 4096')
        A(f's_waitcnt vmcnt(0)\ns_memrealtime s[100:101]\ns_waitcnt lgkmcnt(0)\ns_sub_u32 s97, s100, s97')
    gemv_issue()
    stamp('iss')
    x1_issue()
    code_prefetch(32 * 1024)
    w2_fmt_issue()
    xid_store()
    filt_prep()
    w1_prep()
    W1 = A.groups(w1_dma)
    FD = A.groups(filt_dma)
    bg = (FD if OPT['filt0'] else []) + W1[:OPT['w1a']]
    W1 = W1[OPT['w1a']:]
    nbg = len(bg)
    left = A.weave(A.capture(seq(k1_const_a, k1_const_b)), bg, OPT['gap0'])
    A.emit(left)
    stamp('const')
    gemv_compute()
    stamp('gemv')
    A(f's_waitcnt vmcnt({nbg + 3})')
    w2_fmt_finish()
    if not OPT['filt0']:
        A.emit(FD)
    ln1()
    k1_addr()
    filt_addr()
    stamp('pre')
    mod1_issue()
    k1_poll()
    W1 = A.weave(A.capture(k1_main), W1, OPT['gap1'])
    stamp('k1')
    k2_const()
    filt_finish()
    k2_issue()
    k2_pre()
    A.emit(W1)
    k2_poll()
    SIDE = 156
    W2 = A.groups(w2_load)
    bg = A.groups(seq(epoch_store, xid_load, lambda: k3_side_issue(SIDE), b1_issue))
    n2 = len(bg)
    left = A.weave(A.capture(k2_main), bg + W2[:OPT['w2a']], OPT['gap2'])
    A.emit(left)
    W2 = W2[OPT['w2a']:]
    stamp('k2')
    k3_const()
    for k in range(0, 40, 2):
        A(f'v_pk_mov_b32 {vr(60 + k, 2)}, {vr(SIDE + k, 2)}, {vr(SIDE + k, 2)} op_sel:[0,1]')
    k3_issue()
    k3_side_finish(60)
    xid_check()
    k3_pre()
    A.emit(W2[:OPT['w2b']])
    W2 = W2[OPT['w2b']:]
    k3_poll()
    W2 = A.weave(A.capture(k3_main), W2[:OPT['w2c']], OPT['gap3']) + W2[OPT['w2c']:]
    stamp('k3')
    flag_publish(0)
    flag_addr(0)
    b1_finish()
    g1_pre()
    flag_wait(0)
    stamp('y2')
    g1_main()
    fin_issue(60)
    W2 = A.weave(A.capture(gelu_store), W2, OPT['gap4'])
    A.emit(W2)
    stamp('gelu')
    flag_publish(1)
    flag_addr(1)
    fin_finish(60)
    g2_pre()
    flag_wait(1)
    stamp('h')
    g2_main()
    stamp('end')
    if OPT['stamps']:
        A(f"""s_lshl_b32 s{sT0}, s{sME}, 10
        s_lshl_b32 s{sT1}, s{sW}, 8
        s_add_u32 s{sT0}, s{sT0}, s{sT1}
        s_add_u32 s{sT0}, s{sT0}, {WS_STAMP}
        v_writelane_b32 v255, s{sCNT}, 63
        v_writelane_b32 v255, s{sFAST}, 31
        v_lshlrev_b32 v{TMP}, 2, v{vL}
        buffer_store_dword v255, v{TMP}, {srd(S_WS)}, s{sT0} offen""")
    if OPT['fixed']:
        if OPT['ptest']:
            A(f's_mul_i32 s97, s97, 10\ns_add_u32 s97, s97, {OPT["fixed"]}')
        elif OPT['probe'] >= 0:
            A(f's_mul_i32 s97, s97, 4\ns_add_u32 s97, s97, {OPT["fixed"]}')
        else:
            A(f's_mov_b32 s97, {OPT["fixed"]}')
        A(f"""L_fix:
        s_memrealtime s[100:101]
        s_waitcnt lgkmcnt(0)
        s_sub_u32 s100, s100, s98
        s_cmp_lt_u32 s100, s97
        s_cbranch_scc1 L_fix""")
    A('L_end:')
    A('s_endpgm')


program()
hdr = open('cdna_kernels/%s.s.ref' % NAME).read().split('; Override launch')[0]
out = hdr
out += f'; @launch grid=(256,1,1) block=(256,1,1) lds={LDS_SIZE}\n'
out += f'''.amdgcn_target "amdgcn-amd-amdhsa--gfx950"
.text
.globl {NAME}_kernel
.p2align 8
.type {NAME}_kernel,@function
{NAME}_kernel:
'''
out += A.text()
out += RETRY.text()
out += f'''L_last:
    s_endpgm
.section .rodata,"a"
.p2align 6
.amdhsa_kernel {NAME}_kernel
  .amdhsa_next_free_vgpr 512
  .amdhsa_next_free_sgpr 102
  .amdhsa_accum_offset 256
  .amdhsa_group_segment_fixed_size 0
  .amdhsa_kernarg_size 104
  .amdhsa_user_sgpr_count 2
  .amdhsa_user_sgpr_kernarg_segment_ptr 1
  .amdhsa_system_sgpr_workgroup_id_x 1
.end_amdhsa_kernel
'''
open(sys.argv[1], 'w').write(out)
if OPT['stamps']:
    open(sys.argv[1] + '.stamps', 'w').write('\n'.join(STAMPS))
```

```python
import re

REG_RE = re.compile(r'^(-|abs\()?([vas])(?:(\d+)|\[(\d+):(\d+)\])\)?$')
TRANS = ('v_exp_f32', 'v_log_f32', 'v_rcp_f32', 'v_rsq_f32', 'v_sqrt_f32', 'v_sin_f32', 'v_cos_f32')


def regs_of(tok):
    tok = tok.strip()
    if tok == 'vcc':
        return [('s', 'vcc')]
    if tok == 'exec':
        return [('s', 'exec')]
    if tok in ('exec_lo', 'exec_hi'):
        return [('s', 'exec')]
    if tok in ('vcc_lo', 'vcc_hi'):
        return [('s', 'vcc')]
    if tok == 'm0':
        return [('s', 'm0')]
    m = REG_RE.match(tok)
    if not m:
        return []
    k = m.group(2)
    if m.group(3) is not None:
        return [(k, int(m.group(3)))]
    return [(k, i) for i in range(int(m.group(4)), int(m.group(5)) + 1)]


class Ins:
    def __init__(self, text):
        self.text = text
        t = text.split(';')[0].strip()
        self.label = t.endswith(':')
        self.directive = t.startswith('.')
        self.defs = []
        self.uses = []
        self.kind = 'other'
        self.op = ''
        if self.label or self.directive or not t:
            self.kind = 'label' if self.label else 'dir'
            return
        parts = t.split(None, 1)
        op = parts[0]
        self.op = op
        rest = parts[1] if len(parts) > 1 else ''
        ops = []
        cur = ''
        depth = 0
        for ch in rest:
            if ch in '[(':
                depth += 1
            if ch in '])':
                depth -= 1
            if ch == ',' and depth == 0:
                ops.append(cur.strip())
                cur = ''
            else:
                cur += ch
        if cur.strip():
            ops.append(cur.strip())
        mods = ''
        if ops:
            last = ops[-1].split(None, 1)
            if len(last) > 1:
                ops[-1] = last[0]
                mods = last[1]
        self.ops = ops
        self.mods = mods
        R = [regs_of(o) for o in ops]
        flat = lambda l: [r for x in l for r in x]
        base = op.replace('_e32', '').replace('_e64', '').replace('_dpp', '').replace('_sdwa', '')
        self.base = base
        self.dpp = op.endswith('_dpp')
        if op.startswith('v_mfma'):
            self.kind = 'mfma'
            self.defs = R[0]
            self.srcA, self.srcB, self.srcC = R[1], R[2], R[3]
            self.uses = flat(R[1:])
            self.passes = 8 if '32x32' in op else 4
        elif op.startswith('v_'):
            self.kind = 'valu'
            if base.startswith('v_cmp'):
                self.defs = R[0]
                self.uses = flat(R[1:])
            elif base in ('v_swap_b32', 'v_permlane16_swap_b32', 'v_permlane32_swap_b32'):
                self.defs = flat(R)
                self.uses = flat(R)
            elif base in ('v_add_co_u32', 'v_addc_co_u32', 'v_sub_co_u32'):
                self.defs = R[0] + R[1]
                self.uses = flat(R[2:])
            elif base == 'v_nop':
                pass
            else:
                self.defs = R[0]
                self.uses = flat(R[1:])
                if base in ('v_fmac_f32', 'v_dot2c_f32_bf16', 'v_writelane_b32') or self.dpp or op.endswith('_sdwa'):
                    self.uses = self.uses + R[0]
        elif op.startswith('ds_'):
            self.kind = 'ds'
            if op.startswith('ds_read') or op.startswith('ds_bpermute') or op.startswith('ds_permute') or op.startswith('ds_swizzle'):
                self.defs = R[0]
                self.uses = flat(R[1:])
            else:
                self.uses = flat(R)
            if 'addtid' in op:
                self.uses = self.uses + [('s', 'm0')]
        elif op.startswith('buffer_') or op.startswith('global_'):
            self.kind = 'vmem'
            self.store = 'store' in op
            self.lds = ' lds' in (' ' + mods) or op.startswith('global_load_lds')
            if op in ('buffer_wbl2', 'buffer_inv'):
                pass
            elif self.lds:
                self.uses = flat(R) + [('s', 'm0')]
            elif self.store:
                self.uses = flat(R)
                if op.startswith('buffer_'):
                    self.data = R[0]
                else:
                    self.data = R[1]
            else:
                self.defs = R[0]
                self.uses = flat(R[1:])
                if 'd16' in op:
                    self.uses = self.uses + R[0]
        elif op.startswith('s_load') or op in ('s_memtime', 's_memrealtime'):
            self.kind = 'smem'
            self.defs = R[0]
            self.uses = flat(R[1:])
        elif op == 's_waitcnt':
            self.kind = 'wait'
        elif op == 's_nop':
            self.kind = 'nop'
            self.n = int(ops[0], 0) + 1
        elif op in ('s_barrier', 's_endpgm', 's_sleep', 's_setprio'):
            self.kind = 'sctl'
        elif op.startswith('s_cbranch') or op == 's_branch':
            self.kind = 'branch'
            if 'vcc' in op:
                self.uses = [('s', 'vcc')]
        elif op.startswith('s_cmp') or op.startswith('s_bitcmp'):
            self.kind = 'salu'
            self.uses = flat(R)
        elif op.startswith('s_'):
            self.kind = 'salu'
            self.defs = R[0]
            self.uses = flat(R[1:])
            if 'saveexec' in op:
                self.defs = self.defs + [('s', 'exec')]
            if base in ('s_addk_i32', 's_mulk_i32', 's_cmov_b32'):
                self.uses = self.uses + R[0]
        else:
            raise ValueError('unknown instruction ' + text)


class Asm:
    def __init__(self):
        self.items = []

    def __call__(self, text):
        for line in text.split('\n'):
            line = line.strip()
            if line:
                if line.startswith('v_cndmask_b32 '):
                    line = 'v_cndmask_b32_e64' + line[len('v_cndmask_b32'):]
                self.items.append(Ins(line))

    def capture(self, fn):
        old = self.items
        self.items = []
        fn()
        got = self.items
        self.items = old
        return got

    @staticmethod
    def cost(i):
        if i.kind in ('label', 'dir'):
            return 0
        if i.kind == 'mfma':
            return 4 * i.passes
        if i.kind == 'valu' and i.base in TRANS:
            return 8
        if i.op == 's_barrier':
            return 200
        if i.kind == 'ds':
            return 12
        return 4

    def weave(self, fg, bg, gap, start=0):
        bg = list(bg)
        t = 0
        nxt = start
        noins = False
        for k, i in enumerate(fg):
            reads_scc = i.op.startswith('s_cselect') or i.op.startswith('s_cbranch') or i.op.startswith('s_addc')
            if i.kind == 'label' and i.text.startswith('L_chk'):
                noins = True
            if bg and t >= nxt and not reads_scc and not noins and i.kind != 'label':
                self.items.extend(bg.pop(0))
                nxt = t + gap
            self.items.append(i)
            if i.kind == 'label' and i.text.startswith('L_ok'):
                noins = False
            if i.kind == 'salu' and ('s', 'exec') in i.defs:
                noins = not i.text.strip().endswith('-1')
            if i.kind == 'branch' and 'L_slow' in i.text:
                noins = True
            if i.kind == 'label' and i.text.startswith('L_join'):
                noins = False
            t += self.cost(i)
        return bg

    def spread(self, fg, bg, lo=0.0, hi=1.0):
        tot = sum(self.cost(i) for i in fg)
        n = len(bg)
        bg = list(bg)
        times = [tot * (lo + (hi - lo) * k / max(n, 1)) for k in range(n)]
        t = 0
        noins = False
        for i in fg:
            reads_scc = i.op.startswith('s_cselect') or i.op.startswith('s_cbranch') or i.op.startswith('s_addc')
            if i.kind == 'label' and i.text.startswith('L_chk'):
                noins = True
            if bg and t >= times[0] and not reads_scc and not noins and i.kind != 'label':
                self.items.extend(bg.pop(0))
                times.pop(0)
            self.items.append(i)
            if i.kind == 'label' and i.text.startswith('L_ok'):
                noins = False
            if i.kind == 'salu' and ('s', 'exec') in i.defs:
                noins = not i.text.strip().endswith('-1')
            t += self.cost(i)
        self.emit(bg)

    def groups(self, fn):
        out = []
        cur = []
        for i in self.capture(fn):
            cur.append(i)
            if i.kind == 'vmem':
                out.append(cur)
                cur = []
        if cur:
            out[-1].extend(cur)
        return out

    def emit(self, groups):
        for g in groups:
            self.items.extend(g)

    def finish(self):
        out = []
        vm = []
        lg = []
        hist = []
        pos = [0]

        def issue(ins):
            out.append(ins)
            if ins.kind in ('label', 'dir'):
                return
            hist.append((pos[0], ins))
            pos[0] += ins.n if ins.kind == 'nop' else 1
            while hist and pos[0] - hist[0][0] > 40:
                hist.pop(0)

        def parse_wait(ins):
            t = ins.text
            m = re.search(r'vmcnt\((\d+)\)', t)
            if m:
                n = int(m.group(1))
                del vm[:max(0, len(vm) - n)]
            m = re.search(r'lgkmcnt\((\d+)\)', t)
            if m:
                n = int(m.group(1))
                if n == 0:
                    del lg[:]
                elif all(k == 'ds' for k, _ in lg):
                    del lg[:max(0, len(lg) - n)]

        for ins in self.items:
            if ins.kind == 'dir' and ins.text.startswith('.segment'):
                del vm[:]
                del lg[:]
                del hist[:]
                continue
            if ins.kind in ('label', 'dir'):
                out.append(ins)
                continue
            if ins.kind == 'wait':
                parse_wait(ins)
                issue(ins)
                continue
            touched = set(ins.defs) | set(ins.uses)
            need_vm = None
            for i, d in enumerate(vm):
                if d & touched:
                    need_vm = len(vm) - 1 - i
            need_lg = None
            for i, (k, d) in enumerate(lg):
                if d & touched:
                    need_lg = len(lg) - 1 - i
            if need_lg is not None and any(k == 'smem' for k, _ in lg):
                need_lg = 0
            if need_vm is not None or need_lg is not None:
                w = 's_waitcnt'
                if need_vm is not None:
                    w += ' vmcnt(%d)' % min(need_vm, 63)
                if need_lg is not None:
                    w += ' lgkmcnt(%d)' % min(need_lg, 15)
                wi = Ins(w)
                parse_wait(wi)
                issue(wi)
            need = 0
            uses = set(ins.uses)
            defs = set(ins.defs)
            for p, h in hist:
                dist = pos[0] - p - 1
                req = 0
                hd = set(h.defs)
                if h.kind == 'valu':
                    vd = {r for r in hd if r[0] in 'va'}
                    sd = {r for r in hd if r[0] == 's'}
                    if ins.kind == 'mfma' and (vd & uses):
                        req = max(req, 2)
                    if ins.kind == 'valu':
                        if h.base in TRANS and (vd & uses):
                            req = max(req, 1)
                        if ins.dpp and (vd & uses):
                            req = max(req, 2)
                        if ins.base.startswith('v_permlane') and (vd & uses):
                            req = max(req, 2)
                        if ins.base in ('v_readlane_b32', 'v_readfirstlane_b32') and (vd & uses):
                            req = max(req, 1)
                        if sd & uses:
                            req = max(req, 4 if ins.base in ('v_readlane_b32', 'v_writelane_b32') else 2)
                        if (h.op.endswith('_sdwa') or 'op_sel' in h.mods) and (vd & (uses | defs)):
                            req = max(req, 1 if not h.base.startswith('v_pk_') else 0)
                    if ins.kind == 'vmem' and (sd & uses):
                        req = max(req, 5)
                    if ins.kind in ('salu', 'smem') and (sd & uses):
                        req = max(req, 1)
                if h.kind == 'mfma':
                    long = 12 if h.passes == 8 else 8
                    if ins.kind == 'mfma':
                        if hd & (set(ins.srcA) | set(ins.srcB)):
                            req = max(req, long)
                        c = set(ins.srcC)
                        if hd & c and not (ins.srcC == h.defs and ins.passes == h.passes):
                            req = max(req, long - 2)
                        if (hd & defs) and not (ins.srcC == h.defs and ins.defs == h.defs and ins.passes == h.passes):
                            req = max(req, long - 2)
                    elif ins.kind in ('valu', 'vmem', 'ds'):
                        if hd & (uses | defs):
                            req = max(req, long)
                        if set(h.srcC) & defs:
                            req = max(req, 7 if h.passes == 8 else 3)
                if h.kind == 'vmem' and getattr(h, 'store', False) and len(h.data) >= 3:
                    if set(h.data) & defs:
                        req = max(req, 2)
                if h.kind == 'ds' and not h.defs and ins.kind == 'valu' and (set(h.uses) & defs) and ('b128' in h.op or 'b96' in h.op or 'write2_b64' in h.op):
                    req = max(req, 2)
                if h.kind == 'salu' and ('s', 'm0') in hd and ('s', 'm0') in uses:
                    req = max(req, 1)
                if h.kind == 'salu' and ('s', 'exec') in hd and ins.kind == 'valu' and (ins.dpp or ins.base.startswith('v_permlane')):
                    req = max(req, 1)
                need = max(need, req - dist)
            while need > 0:
                n = min(need, 16)
                issue(Ins('s_nop %d' % (n - 1)))
                need -= n
            issue(ins)
            if ins.kind == 'vmem':
                vm.append(set(ins.defs))
            elif ins.kind == 'ds':
                lg.append(('ds', set(ins.defs)))
            elif ins.kind == 'smem':
                lg.append(('smem', set(ins.defs)))
        return out

    def text(self):
        lines = []
        for i in self.finish():
            lines.append(i.text if i.kind in ('label', 'dir') else '    ' + i.text)
        return '\n'.join(lines) + '\n'


def vr(a, n=1):
    return 'v%d' % a if n == 1 else 'v[%d:%d]' % (a, a + n - 1)


def ar(a, n=1):
    return 'a%d' % a if n == 1 else 'a[%d:%d]' % (a, a + n - 1)


def sr(a, n=1):
    return 's%d' % a if n == 1 else 's[%d:%d]' % (a, a + n - 1)


def f2u(x):
    import struct
    return '0x%08x' % struct.unpack('<I', struct.pack('<f', x))[0]
```

```python
import sys, os
sys.path.insert(0, os.path.dirname(os.path.abspath(__file__)))
from asmlib import Asm, vr, ar, sr, f2u

NAME = 'adaLN_cond__spectral_gfnet__mixer_channel_mlp__prompt'
OPT = dict(stamps=0, fixed=0, probe=-1, slow=0, spread=1, la1=8, la2=8, align=0, rot=0, touch=2, early=1, xlate=0,
           F='0,3,3,0', W1='0,0,8,4,0,8,4,0,6,0', W2='0,0,0,24,0,6,12,14,0,4', k3e=85, ge=85, r1=18, r2=50, nold=0, rotm=7, nobg=0, P='0,0,0,0', pre=0, wb=0, x1sc=1, hl2=0, w2late=0, mask=1, two=0, tt=0, lp=2, fine=0, pa=22, qa=34, ca=1, oa=4, pb=40, qb=62, cb=84, td=100, tpd=30, clean=0)
for a in sys.argv[2:]:
    k, v = a.split('=')
    assert k in OPT, k
    OPT[k] = v if ',' in v else int(v)
SF = [int(x) for x in OPT['F'].split(',')] + [0] * 11
SW1 = [int(x) for x in OPT['W1'].split(',')] + [0] * 5
SW2 = [0] * 5 + [int(x) for x in OPT['W2'].split(',')]
SP = [int(x) for x in OPT['P'].split(',')] + [0] * 11
assert OPT['spread'] == 1 and not (OPT['rot'] and OPT['rotm'] & 3)
assert sum(SF) == 6 and sum(SW1) == 30 and sum(SW2) == 60
assert SW2[14] <= 20
assert sum(SW1[:2]) <= 16 and sum(SW1[:5]) <= 24
assert not OPT['w2late'] or (sum(SW1[:4]) <= 21 and sum(SW2[:8]) == 0)

WS_EPOCH = 0x0
WS_XID = 0x400
WS_FLAG = 0x8000
WS_MOD = 0x10000
MP = 15360
BS = 16384 + 256
WS_T = 0x100000
WS_TP = WS_T + 256 * BS
WS_Y2 = WS_T
WS_H = 0xA00000
WS_W2P = 0x1440000
WS_STAMP = 0x1800000
WS_SIZE = 268435456
OOB = 0x7ff00000

BIG = 0
B_N, B_W2, B_F = 16384, 21504, 24576
SCR = 122880
L_X1E = SCR
L_M1 = SCR + 24576
L_K2I = SCR + 24576
L_K2O = SCR
L_M2 = SCR + 12416
L_K3I = SCR + 24576
L_Y = SCR
L_Y2 = SCR + 24576
LDS_SIZE = 163840

S_X, S_WR, S_WI, S_W1, S_B1, S_W2, S_B2, S_C, S_WM, S_OUT, S_WS = [4 + 4 * i for i in range(11)]
sME, sW, sTAG, sXC, sG, sK1, sCL, sJ = range(48, 56)
sT0, sT1, sT2, sT3, sT4, sT5, sT6, sT7 = range(56, 64)
sM1, sM2 = 64, 66
sMODST, sW2ST, sFSH, sPID = 68, 69, 70, 71
sTB = 72
sLD = 76
sST = 80
sW2O = 84
sWB = 85
sRHO, sSIG, sDW = 86, 87, 88
sW1O, sW1E = 90, 91
sBGO, sBG2 = 92, 93
sXID, sFAST, sCNT = 94, 95, 96
sSTAMP = 98

A = Asm()
RETRY = Asm()
nstamp = [0]
STAMPS = []


def srd(s):
    return sr(s, 4)


def stamp(name):
    if OPT['fine'] and name in ('silu', 'gemv', 'ln1', 'Tiss', 'Tpiss', 'pub0', 'y2', 'g1', 'gelu', 'pub1', 'h', 'g2'):
        return
    if not OPT['stamps']:
        if OPT['probe'] == nstamp[0]:
            A('s_memrealtime s[100:101]\ns_waitcnt lgkmcnt(0)\ns_sub_u32 s97, s100, s98')
        nstamp[0] += 1
        return
    i = nstamp[0]
    nstamp[0] += 1
    A(f'''s_memrealtime {sr(sSTAMP, 2)}
    s_memtime {sr(sSTAMP + 2, 2)}
    s_waitcnt lgkmcnt(0)
    v_writelane_b32 v255, s{sSTAMP}, {i}
    v_writelane_b32 v255, s{sSTAMP + 2}, {i + 32}
    v_writelane_b32 v254, s{sCNT}, {i}''')
    STAMPS.append(name)


def fine(ph, name):
    if OPT['fine'] == ph:
        stamp(name)


def masked(loads, tagregs):
    if not OPT['mask']:
        return loads
    out = ''
    for ld, r in zip(loads.strip().split('\n'), tagregs):
        nlab[0] += 1
        out += f'v_cmp_ne_u32 vcc, s{sTAG}, v{r}\ns_cbranch_vccz L_m{nlab[0]}\ns_mov_b64 exec, vcc\n{ld}\ns_mov_b64 exec, -1\nL_m{nlab[0]}:\n'
    return out


nlab = [0]


def poll_check(label, loads, bad_cmp):
    A(f'L_chk_{label}:')
    A(bad_cmp)
    A(f's_cbranch_vccnz L_retry_{label}')
    A(f'L_ok_{label}:')
    RETRY('.segment')
    RETRY(f'''L_retry_{label}:
    s_sub_u32 s{sCNT}, s{sCNT}, 1
    s_cmp_lt_i32 s{sCNT}, 0
    s_cbranch_scc1 L_ok_{label}''')
    RETRY(loads)
    RETRY(f'''s_waitcnt vmcnt(0)
    s_branch L_chk_{label}''')


def tagcheck(regs, tmp):
    if len(regs) == 1:
        return f'v_cmp_ne_u32 vcc, s{sTAG}, v{regs[0]}'
    s = f'v_min3_u32 v{tmp}, v{regs[0]}, v{regs[1]}, v{regs[2]}\n'
    s += f'v_max3_u32 v{tmp + 1}, v{regs[0]}, v{regs[1]}, v{regs[2]}\n'
    s += f'v_min3_u32 v{tmp}, v{tmp}, v{regs[3]}, s{sTAG}\n'
    s += f'v_max3_u32 v{tmp + 1}, v{tmp + 1}, v{regs[3]}, s{sTAG}\n'
    s += f'v_cmp_ne_u32 vcc, v{tmp}, v{tmp + 1}\n'
    return s


def sincos(ang, c, s):
    A(f'v_cos_f32 v{c}, v{ang}')
    A(f'v_sin_f32 v{s}, v{ang}')


def fmamk(d, a, k, b):
    if k == 0:
        A(f'v_mov_b32 v{d}, v{b}')
    elif k == 1:
        A(f'v_add_f32 v{d}, v{a}, v{b}')
    else:
        A(f'v_fmamk_f32 v{d}, v{a}, {f2u(k)}, v{b}')


def unpack(lo, hi, src):
    A(f'v_lshlrev_b32 v{lo}, 16, v{src}')
    A(f'v_and_b32 v{hi}, 0xffff0000, v{src}')


def mod5(d, src, tmp):
    A(f'v_mul_u32_u24 v{tmp}, 205, v{src}')
    A(f'v_lshrrev_b32 v{tmp}, 10, v{tmp}')
    A(f'v_mad_i32_i24 v{d}, v{tmp}, -5, v{src}')


def pk(op, d, *src, mods=''):
    A(f'v_pk_{op}_f32 {vr(d, 2)}, ' + ', '.join(vr(s, 2) if isinstance(s, int) else s for s in src) + (' ' + mods if mods else ''))


NEG1 = 'neg_lo:[0,1] neg_hi:[0,1]'

vL = 1
vL31, vH = 2, 3
vL15, vQ = 4, 5
vL16, vT16 = 6, 7
TMP = 8
vW1 = 240
vXID = 243
vBG = 244
vFL = 250


def setup():
    A(f'''s_cmp_ge_u32 s2, 256
    s_cbranch_scc1 L_end
    s_load_dwordx8 s[80:87], s[0:1], 64
    s_load_dwordx2 s[88:89], s[0:1], 96
    s_load_dwordx16 s[64:79], s[0:1], 0
    s_and_b32 s{sXC}, s2, 7
    s_lshr_b32 s{sG}, s2, 3
    s_lshl_b32 s{sME}, s{sXC}, 5
    s_or_b32 s{sME}, s{sME}, s{sG}
    s_mov_b32 s{sCNT}, 20000
    v_and_b32 v{vL}, 63, v0
    v_lshrrev_b32 v{TMP}, 6, v0
    v_and_b32 v{vL31}, 31, v0
    v_readfirstlane_b32 s{sW}, v{TMP}
    v_lshrrev_b32 v{vH}, 5, v{vL}
    v_and_b32 v{vL15}, 15, v0
    v_lshrrev_b32 v{vQ}, 4, v{vL}
    v_lshlrev_b32 v{vL16}, 4, v{vL}
    v_lshlrev_b32 v{vT16}, 4, v0''')
    sizes = {S_X: 2621440, S_WR: 1314816, S_WI: 1314816, S_W1: 1966080, S_B1: 3072, S_W2: 1966080, S_B2: 1280,
             S_C: 1280, S_WM: 4915200, S_OUT: 2621440, S_WS: WS_SIZE}
    for s in sizes:
        A(f's_mov_b32 s{s + 2}, {sizes[s]}')
        A(f's_mov_b32 s{s + 3}, 0x00020000')
    gemv_addr()
    A('s_waitcnt lgkmcnt(0)')
    src = {S_X: 64, S_WR: 66, S_WI: 68, S_W1: 72, S_B1: 74, S_W2: 76, S_B2: 78, S_C: 80, S_WM: 82, S_OUT: 84, S_WS: 88}
    for s in (S_WM, S_C):
        A(f's_mov_b64 {sr(s, 2)}, {sr(src[s], 2)}')
    gemv_issue()
    A(f's_load_dword s{sTAG}, s[88:89], {WS_EPOCH}')
    for s in (S_X, S_WS, S_W2, S_WR, S_WI, S_W1, S_B1, S_B2, S_OUT):
        A(f's_mov_b64 {sr(s, 2)}, {sr(src[s], 2)}')


def roles():
    A(f'''s_sub_u32 s{sT0}, 8, s{sXC}
    s_and_b32 s{sT0}, s{sT0}, 7
    s_cmp_lt_u32 s{sG}, 16
    s_cselect_b32 s{sK1}, s{sXC}, s{sT0}
    s_mul_i32 s{sWB}, s{sW}, 30720''')
    b = {1: 0, 2: 1, 4: 2, 8: 3}[OPT['spread']]
    A(f'''s_lshr_b32 s{sT0}, s{sXC}, {b}
    s_lshl_b32 s{sT0}, s{sT0}, {1 + b}
    s_lshr_b32 s{sT1}, s{sG}, {4 - b}
    s_or_b32 s{sCL}, s{sT0}, s{sT1}
    s_and_b32 s{sT0}, s{sXC}, {(1 << b) - 1}
    s_lshl_b32 s{sT0}, s{sT0}, {4 - b}
    s_and_b32 s{sT1}, s{sG}, {(1 << (4 - b)) - 1}
    s_or_b32 s{sJ}, s{sT0}, s{sT1}
    s_lshl_b32 s{sPID}, s{sCL}, 4
    s_or_b32 s{sPID}, s{sPID}, s{sJ}''')


def rotations():
    if not OPT['rot']:
        A(f's_mov_b32 s{sRHO}, 0\ns_mov_b32 s{sSIG}, 0\ns_mov_b32 s{sDW}, s{sW}')
        return
    A(f'''s_and_b32 s{sT0}, s{sCL}, 1
    s_lshl_b32 s{sT0}, s{sT0}, 1
    s_add_u32 s{sT1}, s{sT0}, s{sJ}
    s_mul_i32 s{sT2}, s{sT1}, 205
    s_lshr_b32 s{sT2}, s{sT2}, 10
    s_mul_i32 s{sT2}, s{sT2}, 5
    s_sub_u32 s{sRHO}, s{sT1}, s{sT2}
    s_lshr_b32 s{sT1}, s{sJ}, 3
    s_add_u32 s{sSIG}, s{sT0}, s{sT1}
    s_add_u32 s{sDW}, s{sW}, s{sJ}
    s_and_b32 s{sDW}, s{sDW}, 3''')
    if not OPT['rotm'] & 1:
        A(f's_mov_b32 s{sRHO}, 0')
    if not OPT['rotm'] & 2:
        A(f's_mov_b32 s{sSIG}, 0')
    if not OPT['rotm'] & 4:
        A(f's_mov_b32 s{sDW}, s{sW}')


def touch():
    t = TMP
    A(f'''s_lshl_b32 s{sT0}, s{sME}, 2
    s_add_u32 s{sT0}, s{sT0}, s{sW}
    s_mul_i32 s{sT0}, s{sT0}, 1920
    v_min_u32 v{t}, 14, v{vL}
    v_lshlrev_b32 v{t}, 7, v{t}
    buffer_load_dword v{vXID}, v{t}, {srd(S_W1)}, s{sT0} offen
    s_lshl_b32 s{sT0}, s{sG}, 2
    s_add_u32 s{sT0}, s{sT0}, s{sW}
    s_lshl_b32 s{sT0}, s{sT0}, 4
    s_add_u32 s{sT0}, s{sT0}, s{sXC}
    s_mul_i32 s{sT0}, s{sT0}, 642
    s_and_b32 s{sT0}, s{sT0}, -4
    v_min_u32 v{t}, 5, v{vL31}
    v_lshlrev_b32 v{t}, 7, v{t}
    v_mul_u32_u24 v{t + 1}, {8 * 642}, v{vH}
    v_add_u32 v{t}, v{t}, v{t + 1}
    buffer_load_dword v{vBG}, v{t}, {srd(S_WR)}, s{sT0} offen
    buffer_load_dword v{vBG + 1}, v{t}, {srd(S_WI)}, s{sT0} offen''')


def pid_to_me(d, p, t1):
    b = {1: 0, 2: 1, 4: 2, 8: 3}[OPT['spread']]
    if b == 0:
        A(f's_mov_b32 s{d}, s{p}')
        return
    A(f'''s_lshr_b32 s{d}, s{p}, {5 + b}
    s_lshl_b32 s{d}, s{d}, {5 + b}
    s_bfe_u32 s{t1}, s{p}, {(b << 16) | (4 - b)}
    s_lshl_b32 s{t1}, s{t1}, 5
    s_or_b32 s{d}, s{d}, s{t1}
    s_bfe_u32 s{t1}, s{p}, {((1 + b) << 16) | 4}
    s_lshl_b32 s{t1}, s{t1}, {4 - b}
    s_or_b32 s{d}, s{d}, s{t1}
    s_and_b32 s{t1}, s{p}, {(1 << (4 - b)) - 1}
    s_or_b32 s{d}, s{d}, s{t1}''')


G_C = 188
vGS, vGM, vGA = 194, 195, 236
G_W2 = 216
sGW, sMODS2 = 89, 97
G_W = 32
G_ACC = 52


def gemv_addr():
    A(f'''s_cmp_lt_u32 s2, 240
    s_cselect_b32 s{sT0}, s2, 0
    s_and_b32 s{sT1}, s{sT0}, 3
    s_lshr_b32 s{sT0}, s{sT0}, 2
    s_lshl_b32 s{sT0}, s{sT0}, 2
    s_add_u32 s{sT0}, s{sT0}, s{sW}
    s_mul_i32 s{sT2}, s{sT1}, {160 * 7680}
    s_lshl_b32 s{sT3}, s{sT0}, 5
    s_add_u32 s{sT2}, s{sT2}, s{sT3}
    s_mul_i32 s{sT4}, s{sT1}, 320
    s_mul_i32 s{sT1}, s{sT1}, {MP}
    s_lshl_b32 s{sT3}, s{sT0}, 6
    s_add_u32 s{sT5}, s{sT1}, s{sT3}
    v_lshrrev_b32 v{TMP}, 1, v{vL}
    v_lshlrev_b32 v{TMP + 1}, 1, v{TMP}
    v_mul_u32_u24 v{TMP}, 7680, v{TMP}
    v_and_b32 v{TMP + 2}, 1, v0
    v_lshl_add_u32 v{vGA}, v{TMP + 2}, 4, v{TMP}
    s_mov_b32 s{sT6}, s{sT2}''')
    if OPT['two']:
        A(f's_cmp_lt_u32 s2, 80\ns_cselect_b32 s{sT2}, s{sT2}, {OOB // 2}')


def gemv2_issue():
    for i in range(5):
        if i:
            A(f's_add_u32 s{sGW}, s{sGW}, {32 * 7680}')
        A(f'buffer_load_dwordx4 {vr(G_W2 + 4 * i, 4)}, v{vGA}, {srd(S_WM)}, s{sGW} offen')


def gemv_issue():
    for i in range(5):
        A(f'buffer_load_ushort v{G_C + i}, v{TMP + 1}, {srd(S_C)}, s{sT4} offen offset:{64 * i}')
    for i in range(5):
        A(f'buffer_load_dwordx4 {vr(G_W + 4 * i, 4)}, v{vGA}, {srd(S_WM)}, s{sT2} offen')
        if i < 4:
            A(f's_add_u32 s{sT2}, s{sT2}, {32 * 7680}')


def gemv_store_addr():
    A(f'''s_add_u32 s{sT5}, s{sT5}, {WS_MOD}
    s_cmp_lt_u32 s2, 240
    s_cselect_b32 s{sMODST}, s{sT5}, {OOB}''')
    if OPT['two']:
        A(f'''s_sub_u32 s{sT0}, s2, 80
        s_cmp_lt_u32 s{sT0}, 160
        s_cselect_b32 s{sMODS2}, s{sT5}, {OOB}
        s_cselect_b32 s{sMODST}, {OOB}, s{sMODST}
        s_cselect_b32 s{sW2O}, s{sT6}, {OOB // 2}''')


def silu():
    t = TMP
    for i in range(5):
        A(f'v_lshlrev_b32 v{G_C + i}, 16, v{G_C + i}')
    for i in range(5):
        A(f'v_mul_f32 v{t + i}, {f2u(-1.4426950408889634)}, v{G_C + i}')
    for i in range(5):
        A(f'v_exp_f32 v{t + i}, v{t + i}')
    for i in range(5):
        A(f'v_add_f32 v{t + i}, 1.0, v{t + i}')
    for i in range(5):
        A(f'v_rcp_f32 v{t + i}, v{t + i}')
    for i in range(5):
        A(f'v_mul_f32 v{t + i}, v{G_C + i}, v{t + i}')
    for i in range(5):
        A(f'v_cvt_pk_bf16_f32 v{t + i}, v{t + i}, v{t + i}')
    for i in range(5):
        A(f'v_lshlrev_b32 v{G_C + i}, 16, v{t + i}')
    A(f'''s_mul_i32 s{sTAG}, s{sTAG}, 0x9E3779B1
    s_add_u32 s{sTAG}, s{sTAG}, 0x7F4A7C15''')
    for k in range(4):
        A(f's_bfe_u32 s{sTB + k}, s{sTAG}, {(8 << 16) | (8 * k)}')
    A(f'''v_and_b32 v{t + 5}, 1, v{vL}
    v_lshlrev_b32 v{t + 5}, 5, v{t + 5}
    v_lshl_add_u32 v{t + 5}, v{vH}, 4, v{t + 5}
    v_mov_b32 v{t + 6}, {OOB}
    v_cmp_gt_u32 vcc, 2, v{vL31}
    v_cndmask_b32 v{vGS}, v{t + 6}, v{t + 5}, vcc
    v_mov_b32 v{vGM}, 0xffffff00
    s_mov_b32 s{sGW}, s{sW2O}''')


def gemv_compute(G_W, sdst):
    t = TMP
    for i in range(5):
        sp = (G_C + i) & ~1
        sel = (G_C + i) & 1
        for k in range(4):
            u = t + 2 * (k & 1)
            unpack(u, u + 1, G_W + 4 * i + k)
            if i == 0:
                pk('mul', G_ACC + 2 * k, u, sp, mods=f'op_sel:[0,{sel}] op_sel_hi:[1,{sel}]')
            else:
                pk('fma', G_ACC + 2 * k, u, sp, G_ACC + 2 * k, mods=f'op_sel:[0,{sel},0] op_sel_hi:[1,{sel},1]')
    a = G_ACC
    for k in range(4):
        A(f'v_permlane32_swap_b32 v{a + k}, v{a + k + 4}')
    pk('add', a, a, a + 4)
    pk('add', a + 2, a + 2, a + 6)
    A(f'''v_permlane16_swap_b32 v{a}, v{a + 1}
    v_permlane16_swap_b32 v{a + 2}, v{a + 3}
    v_add_f32 v{a}, v{a}, v{a + 1}
    v_add_f32 v{a + 2}, v{a + 2}, v{a + 3}''')
    for r in (8, 4):
        A(f'v_add_f32_dpp v{a}, v{a}, v{a} row_ror:{r} row_mask:0xf bank_mask:0xf')
        A(f'v_add_f32_dpp v{a + 2}, v{a + 2}, v{a + 2} row_ror:{r} row_mask:0xf bank_mask:0xf')
    for d in (1, 3, 0, 2):
        s_ = a + (d & 2)
        A(f'v_add_f32_dpp v{a + d}, v{s_}, v{s_} row_ror:2 row_mask:0xf bank_mask:0xf')
    A(f'''v_permlane16_swap_b32 v{a}, v{a + 1}
    v_permlane16_swap_b32 v{a + 2}, v{a + 3}''')
    for k in range(4):
        A(f'v_and_or_b32 v{a + k}, v{a + k}, v{vGM}, s{sTB + k}')
    A(f'buffer_store_dwordx4 {vr(a, 4)}, v{vGS}, {srd(S_WS)}, s{sdst} offen sc1')


def code_prefetch(nbytes):
    t = TMP + 4
    per = ((nbytes + 32 * 128 - 1) // (32 * 128))
    A(f'''s_getpc_b64 {sr(sT2, 2)}
    L_pc:
    s_mul_i32 s{sT0}, s{sG}, {per * 128}
    s_sub_u32 s{sT0}, s{sT0}, L_pc-{NAME}_kernel
    v_min_u32 v{t}, {per - 1}, v{vL}
    v_lshlrev_b32 v{t}, 7, v{t}
    v_add_u32 v{t}, s{sT0}, v{t}
    v_min_i32 v{t}, L_last-L_pc, v{t}
    v_ashrrev_i32 v{t + 1}, 31, v{t}
    v_mov_b32 v{t + 2}, s{sT3}
    v_add_co_u32 v{t}, vcc, s{sT2}, v{t}
    v_addc_co_u32 v{t + 1}, vcc, v{t + 2}, v{t + 1}, vcc
    global_load_dword v{vFL}, {vr(t, 2)}, off''')


def xid_store():
    t = TMP
    A(f'''s_getreg_b32 s{sXID}, hwreg(HW_REG_XCC_ID, 0, 4)
    s_lshl_b32 s{sT0}, s{sPID}, 2
    s_add_u32 s{sT0}, s{sT0}, {WS_XID}
    v_mov_b32 v{t}, s{sXID}
    v_cmp_eq_u32 vcc, 0, v0
    v_mov_b32 v{t + 1}, {OOB}
    v_cndmask_b32 v{t + 1}, v{t + 1}, v0, vcc
    buffer_store_dword v{t}, v{t + 1}, {srd(S_WS)}, s{sT0} offen sc1''')


def xid_load():
    A(f'''s_lshl_b32 s{sBGO}, s{sCL}, 6
    s_add_u32 s{sBGO}, s{sBGO}, {WS_XID}
    v_lshlrev_b32 v{vXID}, 2, v{vL15}
    buffer_load_dword v{vXID}, v{vXID}, {srd(S_WS)}, s{sBGO} offen sc1
    s_lshl_b32 s{sBGO}, s{sCL}, 10
    s_add_u32 s{sBGO}, s{sBGO}, {WS_FLAG}
    buffer_load_dword v{vFL}, v{vL16}, {srd(S_WS)}, s{sBGO} offen sc1''')


def xid_check():
    A(f'''v_cmp_ne_u32 vcc, s{sXID}, v{vXID}
    s_cmp_eq_u64 vcc, 0
    s_cselect_b32 s{sFAST}, {0 if OPT['slow'] else 1}, 0''')


def flag_prep(which):
    if which == 0:
        A(f"""s_lshl_b32 s{sBGO}, s{sCL}, 10
        s_add_u32 s{sBGO}, s{sBGO}, {WS_FLAG}
        s_lshl_b32 s{sBG2}, s{sJ}, 2
        s_add_u32 s{sBG2}, s{sBG2}, s{sW}
        s_lshl_b32 s{sBG2}, s{sBG2}, 2
        v_mov_b32 v{vFL + 2}, s{sBG2}
        v_mov_b32 v{vFL + 3}, s{sTAG}
        s_lshl_b32 s{sBG2}, s{sW}, 6
        v_lshl_add_u32 v{vFL}, v{vL15}, 2, s{sBG2}""")
    else:
        A(f"""s_lshl_b32 s{sBG2}, s{sW}, 6
        s_and_b32 s{sT7}, s{sJ}, 8
        s_add_u32 s{sBG2}, s{sBG2}, s{sT7}
        v_and_b32 v{vFL}, 13, v{vL}
        v_lshl_add_u32 v{vFL}, v{vFL}, 2, s{sBG2}""")


def nvm(items):
    return sum(1 for i in items if i.kind == 'vmem')


def after_last(pred):
    i = max([k for k, x in enumerate(A.items) if x.kind == 'vmem' and pred(x)] or [len(A.items) - 300])
    return nvm(A.items[i + 1:])


def flag_publish(which):
    younger = after_last(lambda x: 'store' in x.op or ' lds' in x.text)
    st = f'buffer_store_dword v{vFL + 3}, v{vFL + 2}, {srd(S_WS)}, s{sBGO} offen offset:{256 * which}'
    A(f"""s_cmp_eq_u32 s{sFAST}, 0
    s_waitcnt vmcnt({min(younger, 63)})
    s_cbranch_scc1 L_slow_pub{which}
    {st}
    L_join_pub{which}:""")
    RETRY('.segment')
    RETRY(f'L_slow_pub{which}:')
    if which == 0:
        RETRY('buffer_wbl2 sc1\ns_waitcnt vmcnt(0)')
    RETRY(f'{st} sc1\ns_branch L_join_pub{which}')


def flag_ld(which):
    return f'buffer_load_dword v{vFL + 1}, v{vFL}, {srd(S_WS)}, s{sBGO} offen offset:{256 * which} sc1'


def flag_check(which):
    poll_check(f'fl{which}', flag_ld(which), tagcheck([vFL + 1], 0))
    if which == 0:
        A(f"""s_cmp_eq_u32 s{sFAST}, 0
        s_cbranch_scc1 L_slow_acq{which}
        L_join_acq{which}:""")
        RETRY('.segment')
        RETRY(f"""L_slow_acq{which}:
        buffer_inv sc1
        s_waitcnt vmcnt(0)
        s_branch L_join_acq{which}""")


def w1_prep():
    t = TMP
    for i in range(3):
        A(f'''v_add_u32 v{t + 3}, {64 * i}, v{vL}
        v_mul_u32_u24 v{t + 4}, 171, v{t + 3}
        v_lshrrev_b32 v{t + 4}, 11, v{t + 4}
        v_mad_i32_i24 v{t + 5}, v{t + 4}, -12, v{t + 3}
        v_lshrrev_b32 v{t + 3}, 2, v{t + 4}
        v_and_b32 v{t + 3}, 2, v{t + 3}
        v_xor_b32 v{t + 5}, v{t + 5}, v{t + 3}
        v_mul_u32_u24 v{t + 4}, 3072, v{t + 4}
        v_lshl_add_u32 v{vW1 + i}, v{t + 5}, 4, v{t + 4}''')
    A(f'''s_mul_i32 s{sW1O}, s{sW}, {160 * 3072}
    s_mul_i32 s{sT1}, s{sRHO}, {128 * 3072}
    s_add_u32 s{sW1O}, s{sW1O}, s{sT1}
    s_mul_i32 s{sT1}, s{sJ}, 192
    s_add_u32 s{sW1O}, s{sW1O}, s{sT1}
    s_sub_u32 s{sW1E}, s{sW1O}, 1966080
    s_min_u32 s{sW1O}, s{sW1O}, s{sW1E}''')


def w1_dma():
    for g in range(10):
        for i in range(3):
            A(f's_add_u32 m0, s{sWB}, {BIG + 1024 * (3 * g + i)}')
            if i == 0 and g:
                A(f'''s_add_u32 s{sW1O}, s{sW1O}, {16 * 3072}
                s_sub_u32 s{sW1E}, s{sW1O}, 1966080
                s_min_u32 s{sW1O}, s{sW1O}, s{sW1E}''')
            A(f'buffer_load_dwordx4 v{vW1 + i}, {srd(S_W1)}, s{sW1O} offen lds')


def w2_fmt_prep():
    t = TMP
    A(f'''s_mul_i32 s{sT0}, s{sME}, 205
    s_lshr_b32 s{sT0}, s{sT0}, 10
    s_mul_i32 s{sT1}, s{sT0}, 5
    s_sub_u32 s{sT1}, s{sME}, s{sT1}
    s_lshl_b32 s{sT1}, s{sT1}, 2
    s_add_u32 s{sT1}, s{sT1}, s{sW}
    s_mul_i32 s{sT2}, s{sT0}, {32 * 1280}
    s_lshl_b32 s{sT3}, s{sT1}, 11
    s_add_u32 s{sW2ST}, s{sT2}, s{sT3}
    s_add_u32 s{sW2ST}, s{sW2ST}, {WS_W2P}
    s_lshl_b32 s{sT3}, s{sT1}, 6
    s_add_u32 s{sT2}, s{sT2}, s{sT3}
    s_cmp_lt_u32 s{sME}, 240
    s_cselect_b32 s{sW2ST}, s{sW2ST}, {OOB}
    s_cselect_b32 s{sBG2}, s{sT2}, 0
    v_lshrrev_b32 v{t}, 2, v{vL}
    v_mul_u32_u24 v{t}, 1280, v{t}
    v_and_b32 v{t + 1}, 3, v{vL}
    v_lshl_add_u32 v237, v{t + 1}, 4, v{t}''')


def w2_fmt_issue():
    A(f'''s_add_u32 m0, s{sWB}, {BIG + B_W2}
    buffer_load_dwordx4 v237, {srd(S_W2)}, s{sBG2} offen lds
    s_add_u32 m0, s{sWB}, {BIG + B_W2 + 1024}
    s_add_u32 s{sBG2}, s{sBG2}, {16 * 1280}
    buffer_load_dwordx4 v237, {srd(S_W2)}, s{sBG2} offen lds''')


def w2_fmt_finish():
    t = TMP
    A(f'''v_lshrrev_b32 v{t}, 2, v{vL}
    v_lshlrev_b32 v{t}, 6, v{t}
    v_and_b32 v{t + 1}, 3, v{vL}
    v_lshl_add_u32 v{t}, v{t + 1}, 3, v{t}
    v_add_u32 v{t}, s{sWB}, v{t}''')
    for i in range(2):
        A(f'ds_read_b64_tr_b16 {vr(t + 4 + 4 * i, 2)}, v{t} offset:{BIG + B_W2 + 32 * i}')
        A(f'ds_read_b64_tr_b16 {vr(t + 6 + 4 * i, 2)}, v{t} offset:{BIG + B_W2 + 32 * i + 1024}')
    for i in range(2):
        A(f'buffer_store_dwordx4 {vr(t + 4 + 4 * i, 4)}, v{vL16}, {srd(S_WS)}, s{sW2ST} offen offset:{1024 * i} sc1')


def w2_prep():
    A(f'''s_mul_i32 s{sW2O}, s{sW}, {12 * 40960}
    s_and_b32 s{sT0}, s{sJ}, 7
    s_mul_i32 s{sT0}, s{sT0}, 5120
    s_add_u32 s{sW2O}, s{sW2O}, s{sT0}
    s_add_u32 s{sW2ST}, s{sW2O}, {WS_W2P}''')


KA = [k for k in range(12) if k % 3 < 2]
KB = [k for k in range(12) if k % 3 == 2]


def w2_load():
    for kl in KA + KB:
        for nt in range(5):
            if nt in (0, 4):
                A(f's_add_u32 s{sW2O}, s{sW2ST}, {40960 * kl + 1024 * nt}')
            A(f'buffer_load_dwordx4 {ar((kl * 5 + nt) * 4, 4)}, v{vL16}, {srd(S_WS)}, s{sW2O} offen offset:{1024 * (nt & 3)} sc1')


sPW = 97


def prewarm():
    for k, base in enumerate((WS_T, WS_TP)):
        for i in range(4):
            if i == 0:
                A(f's_mul_i32 s{sPW}, s{sME}, {BS}\ns_add_u32 s{sPW}, s{sPW}, {base}')
            else:
                A(f's_add_u32 s{sPW}, s{sPW}, 4096')
            A(f'buffer_store_dwordx4 v[188:191], v{vT16}, {srd(S_WS)}, s{sPW} offen sc1')


F_RAW = 200
F_W = 216
vFA = 196


def filt_prep():
    t = TMP
    A(f'''s_mul_i32 s{sT0}, s{sG}, 20
    s_sub_u32 s{sT1}, 623, s{sT0}
    s_mul_i32 s{sT3}, s{sW}, 5
    s_sub_u32 s{sT4}, 15, s{sT3}
    s_cmp_lt_u32 s{sG}, 16
    s_cselect_b32 s{sT0}, s{sT0}, s{sT1}
    s_cselect_b32 s{sT2}, 1, -1
    s_cselect_b32 s{sT3}, s{sT3}, s{sT4}
    s_add_u32 s{sT4}, s{sT0}, s{sK1}
    s_and_b32 s{sT4}, s{sT4}, 1
    s_add_u32 s{sFSH}, s{sT3}, s{sT4}
    s_sub_u32 s{sT0}, s{sT0}, s{sT4}
    s_lshl_b32 s{sT5}, s{sW}, 9
    s_add_u32 s{sT5}, s{sT5}, s{sK1}
    s_movk_i32 s{sT6}, 321''')
    for i in range(3):
        A(f'''v_add_u32 v{t}, {64 * i}, v{vL}
        v_mul_u32_u24 v{t + 1}, 171, v{t}
        v_lshrrev_b32 v{t + 1}, 9, v{t + 1}
        v_mad_i32_i24 v{t + 2}, v{t + 1}, -3, v{t}
        v_lshl_add_u32 v{t + 1}, v{t + 1}, 3, s{sT5}
        v_mul_i32_i24 v{t + 1}, s{sT2}, v{t + 1}
        v_and_b32 v{t + 1}, 2047, v{t + 1}
        v_lshl_add_u32 v{t + 2}, v{t + 2}, 3, s{sT0}
        v_mad_u32_u24 v{t + 1}, v{t + 1}, s{sT6}, v{t + 2}
        v_lshlrev_b32 v{vFA + i}, 1, v{t + 1}''')


def filt_dma():
    for p, s_ in enumerate((S_WR, S_WI)):
        for i in range(3):
            A(f's_add_u32 m0, s{sWB}, {BIG + B_F + 3072 * p + 1024 * i}')
            A(f'buffer_load_dwordx4 v{vFA + i}, {srd(s_)}, 0 offen lds')


def filt_finish():
    t = TMP + 4
    sc = 1.0 / (2048.0 * 640.0)
    A(f'''s_lshr_b32 s{sT0}, s{sFSH}, 1
    s_lshl_b32 s{sT0}, s{sT0}, 2
    s_add_u32 s{sT0}, s{sT0}, {BIG + B_F}
    s_and_b32 s{sFSH}, s{sFSH}, 1
    s_lshl_b32 s{sFSH}, s{sFSH}, 4
    v_mul_u32_u24 v{t}, 30720, v{vQ}
    v_mul_u32_u24 v{t + 1}, 48, v{vL15}
    v_add3_u32 v{vFA}, v{t}, v{t + 1}, s{sT0}
    v_add_u32 v{vFA + 1}, 1536, v{vFA}
    v_add_u32 v{vFA + 2}, 3072, v{vFA}
    v_add_u32 v{vFA + 3}, {3072 + 1536}, v{vFA}''')
    for j in range(4):
        for p in range(2):
            o = 192 * (j & 1)
            A(f'ds_read2_b32 {vr(F_RAW + 4 * j + 2 * p, 2)}, v{vFA + 2 * p + (j >> 1)} offset0:{o} offset1:{o + 1}')
    A(f'''s_cmp_lt_u32 s{sG}, 16
    s_cselect_b64 vcc, -1, 0
    s_cselect_b32 s{sT3}, 0, 0x80000000
    s_mov_b32 s{sT0}, {f2u(sc)}
    s_mov_b32 s{sT1}, {f2u(2 * sc)}
    s_xor_b32 s{sT2}, s{sT0}, s{sT3}
    s_xor_b32 s{sT3}, s{sT1}, s{sT3}''')
    for j in range(4):
        for p in range(2):
            r = F_RAW + 4 * j + 2 * p
            A(f'''v_lshrrev_b64 {vr(r, 2)}, s{sFSH}, {vr(r, 2)}
            v_lshlrev_b32 v{t}, 16, v{r}
            v_lshlrev_b32 v{t + 1}, 16, v{r + 1}
            v_and_b32 v{t + 2}, 0xffff0000, v{r}
            v_cndmask_b32 v{t + 3}, v{t + 1}, v{t}, vcc
            v_cndmask_b32 v{t + 4}, v{t}, v{t + 1}, vcc
            v_mul_f32 v{F_W + 8 + 4 * p + j}, s{sT1 + 2 * p}, v{t + 2}
            v_mul_f32 v{F_W + 4 * p + j}, s{sT0 + 2 * p}, v{t + 3}
            v_mul_f32 v{F_W + 16 + 4 * p + j}, s{sT1 + 2 * p}, v{t + 4}''')


X_RAW = 60
X_N = 72
K1_M1 = 100
K1_M2 = 124
MODR = 24
K1A = 200
aMX, aMWX, aMW, aADD, aMR, aEW, aER, aST = K1A, K1A + 1, K1A + 2, K1A + 4, K1A + 5, K1A + 8, K1A + 11, K1A + 14


def x1_issue():
    A(f'''s_lshl_b32 s{sT0}, s{sW}, 9
    s_add_u32 s{sT0}, s{sT0}, s{sME}
    s_mul_i32 s{sT0}, s{sT0}, 1280
    s_add_u32 s{sT1}, s{sT0}, {256 * 1280}
    v_lshlrev_b32 v{TMP + 3}, 2, v{vH}
    v_lshl_add_u32 v{TMP + 3}, v{vL31}, 3, v{TMP + 3}
    buffer_load_dwordx4 {vr(X_RAW, 4)}, v{vL16}, {srd(S_X)}, s{sT0} offen
    buffer_load_dwordx4 {vr(X_RAW + 4, 4)}, v{vL16}, {srd(S_X)}, s{sT1} offen
    buffer_load_dword v{X_RAW + 8}, v{TMP + 3}, {srd(S_X)}, s{sT0} offen offset:1024
    buffer_load_dword v{X_RAW + 9}, v{TMP + 3}, {srd(S_X)}, s{sT1} offen offset:1024''')


def k1_const_a():
    t = TMP
    A(f'''v_lshrrev_b32 v{t}, 3, v{vL31}
    v_cvt_f32_u32 v{t}, v{t}
    v_mul_f32 v{t}, {f2u(0.4)}, v{t}
    v_and_b32 v{t + 1}, 7, v{vL}
    v_cvt_f32_u32 v{t + 1}, v{t + 1}
    v_mul_f32 v{t + 1}, {f2u(0.125)}, v{t + 1}
    v_cvt_f32_u32 v{t + 2}, v{vH}
    v_mul_f32 v{t + 2}, v{t + 2}, v{t}
    v_and_b32 v{t + 10}, 1, v{vL}
    v_mul_u32_u24 v{t + 10}, 0x8000, v{t + 10}
    v_lshl_or_b32 v{t + 10}, v{t + 10}, 16, v{t + 10}''')
    for tau in range(3):
        fmamk(t + 3, t, 2 * tau, t + 2)
        for p in range(2):
            fmamk(t + 4, t + 1, 2 * p, t + 3)
            fmamk(t + 5, t + 1, 2 * p + 1, t + 3)
            sincos(t + 4, t + 6, t + 8)
            sincos(t + 5, t + 7, t + 9)
            A(f'v_cvt_pk_bf16_f32 v{K1_M1 + 4 * tau + p}, v{t + 6}, v{t + 7}')
            A(f'v_cvt_pk_bf16_f32 v{K1_M1 + 12 + 4 * tau + p}, -v{t + 8}, -v{t + 9}')
    A('s_mov_b32 exec_lo, 0')
    for p in range(2):
        A(f'v_mov_b32 v{K1_M1 + 8 + p}, 0')
        A(f'v_mov_b32 v{K1_M1 + 20 + p}, 0')
    A('s_mov_b32 exec_lo, -1')
    for k in range(6):
        for p in range(2):
            A(f'v_xor_b32 v{K1_M1 + 4 * k + 2 + p}, v{t + 10}, v{K1_M1 + 4 * k + p}')


def k1_const_b():
    t = TMP
    A(f'''v_cvt_f32_u32 v{t}, v{vL31}
    v_lshlrev_b32 v{t + 1}, 4, v{vH}
    v_add_u32 v{t + 1}, s{sW}, v{t + 1}
    v_cvt_f32_u32 v{t + 1}, v{t + 1}
    v_mul_f32 v{t}, {f2u(1.0 / 128)}, v{t}
    v_mul_f32 v{t + 1}, v{t + 1}, v{t}
    v_and_b32 v{t + 10}, 1, v{vL}
    v_mul_u32_u24 v{t + 10}, 0x8000, v{t + 10}
    v_lshl_or_b32 v{t + 10}, v{t + 10}, 16, v{t + 10}''')
    for u in range(2):
        for jp in (0, 2):
            fmamk(t + 2, t, 4 * (8 * u + jp), t + 1)
            fmamk(t + 5, t, 4 * (8 * u + jp + 1), t + 1)
            sincos(t + 2, t + 3, t + 4)
            sincos(t + 5, t + 6, t + 7)
            for jj, e in ((jp, 3), (jp + 1, 6)):
                A(f'v_cvt_pk_bf16_f32 v{K1_M2 + 4 * u + jj}, v{t + e}, v{t + e + 1}')
                A(f'v_cvt_pk_bf16_f32 v{K1_M2 + 16 + 4 * u + jj}, -v{t + e + 1}, v{t + e}')
    for p in range(2):
        for k in range(8):
            A(f'v_xor_b32 v{K1_M2 + 16 * p + 8 + k}, v{t + 10}, v{K1_M2 + 16 * p + k}')


def ln1():
    t = TMP
    AD = 92
    A(f'''v_mul_u32_u24 v{t}, 3, v{vL}
    v_lshl_add_u32 v{t + 1}, v{vL15}, 4, s{sWB}''')
    for k in range(5):
        A(f'v_add_u32 v{t + 2}, {k}, v{t}')
        mod5(t + 2, t + 2, t + 3)
        A(f'v_lshl_add_u32 v{AD + k}, v{t + 2}, 10, v{t + 1}')
    A(f'''v_lshl_add_u32 v{t + 1}, v{vL31}, 3, s{sWB}
    v_lshl_add_u32 v{t + 1}, v{vH}, 9, v{t + 1}
    v_lshl_add_u32 v{t}, v{vL31}, 1, v{vH}''')
    for e in range(2):
        A(f'v_lshl_add_u32 v{t + 2}, v{t}, 1, {2 + e}')
        mod5(t + 2, t + 2, t + 3)
        A(f'v_lshl_add_u32 v{AD + 5 + e}, v{t + 2}, 10, v{t + 1}')
    for r in range(2):
        for k in range(4):
            unpack(X_N + 4 * k + r, X_N + 4 * k + 2 + r, X_RAW + 4 * r + k)
        unpack(X_N + 16 + r, X_N + 18 + r, X_RAW + 8 + r)
    pk('add', t, X_N, X_N + 2)
    pk('mul', t + 2, X_N, X_N)
    for e in range(1, 10):
        if e > 1:
            pk('add', t, t, X_N + 2 * e)
        pk('fma', t + 2, X_N + 2 * e, X_N + 2 * e, t + 2)
    A(f'''v_permlane32_swap_b32 v{t}, v{t + 1}
    v_permlane32_swap_b32 v{t + 2}, v{t + 3}
    v_add_f32 v{t}, v{t}, v{t + 1}
    v_add_f32 v{t + 2}, v{t + 2}, v{t + 3}
    v_permlane16_swap_b32 v{t}, v{t + 2}
    v_add_f32 v{t}, v{t}, v{t + 2}''')
    for r in (8, 4, 2, 1):
        A(f'v_add_f32_dpp v{t}, v{t}, v{t} row_ror:{r} row_mask:0xf bank_mask:0xf')
    A(f'v_mul_f32 v{t}, {f2u(1.0 / 640)}, v{t}')
    for k in range(4):
        A(f'v_readlane_b32 s{sT0 + k}, v{t}, {16 * k}')
    for r in range(2):
        A(f'v_mov_b32 v{t + 2 + r}, s{sT0 + 2 * r}')
    for r in range(2):
        A(f'v_fma_f32 v{t + r}, -v{t + 2 + r}, v{t + 2 + r}, s{sT1 + 2 * r}')
    for r in range(2):
        A(f'v_max_f32 v{t + r}, 0, v{t + r}')
    for r in range(2):
        A(f'v_add_f32 v{t + r}, {f2u(1e-5)}, v{t + r}')
    for r in range(2):
        A(f'v_rsq_f32 v{t + r}, v{t + r}')
    A(f'''s_lshl_b32 s{sT0}, s{sW}, 8
    s_add_u32 s{sT0}, s{sT0}, {BIG + B_N}''')
    pk('mul', t + 2, t + 2, t)
    for e in range(10):
        pk('fma', X_N + 2 * e, X_N + 2 * e, t, t + 2, mods='neg_lo:[0,0,1] neg_hi:[0,0,1]')
        if e < 8:
            A(f'ds_write_b64 v{AD + e % 5}, {vr(X_N + 2 * e, 2)} offset:{BIG + B_N + (e & 3) * 256 + (e >> 2) * 8}')
        else:
            A(f'ds_write_b64 v{AD + 5 + e - 8}, {vr(X_N + 2 * e, 2)} offset:{BIG + B_N + (e - 8) * 256}')
    A(f'''v_lshl_add_u32 v{t + 1}, v{vL31}, 3, s{sT0}
    v_lshl_add_u32 v{t}, v{vH}, 10, v{t + 1}
    s_waitcnt lgkmcnt(0)
    s_barrier''')
    for tau in range(3):
        ad = t if tau < 2 else t + 1
        for p in (0, 2):
            A(f'ds_read2st64_b64 {vr(X_N + 8 * tau + 2 * p, 4)}, v{ad} offset0:{4 * tau + 60 * p} offset1:{4 * tau + 60 * p + 60}')


def x_keep():
    for k in range(4):
        A(f'v_permlane32_swap_b32 v{X_RAW + k}, v{X_RAW + 4 + k}')
    A(f'v_permlane32_swap_b32 v{X_RAW + 8}, v{X_RAW + 9}')
    for k in range(10):
        A(f'v_accvgpr_write_b32 a{240 + k}, v{X_RAW + k}')


def k1_addr():
    t = TMP + 4
    A(f'''s_lshl_b32 s{sT0}, s{sW}, 8
    v_lshl_add_u32 v{t}, v{vL15}, 4, s{sT0}
    v_mul_u32_u24 v{t + 1}, {MP}, v{vQ}
    v_add3_u32 v{aMX}, v{t}, v{t + 1}, 0
    v_add_u32 v{aMX}, 4096, v{aMX}
    v_and_b32 v{t + 1}, 1, v{vQ}
    v_lshl_add_u32 v{t}, v{t + 1}, 3, v{t}
    v_lshl_add_u32 v{t}, v{vH}, 2, v{t}
    v_add_u32 v{aMWX}, {L_M1 + 4096}, v{t}
    v_add_u32 v{aMW}, {L_M1}, v{vT16}
    v_cmp_lt_u32 vcc, 159, v0
    v_cndmask_b32 v{aADD}, 0, 1.0, vcc
    v_lshl_add_u32 v{t}, v{vL31}, 2, s{sW}
    v_mul_u32_u24 v{t + 1}, 3, v{t}
    v_lshlrev_b32 v{t}, 2, v{t}
    v_add_u32 v{t}, {L_M1}, v{t}
    v_lshl_add_u32 v{t + 2}, v{vH}, 1, v{t + 1}''')
    for tau in range(3):
        A(f'v_add_u32 v{t + 3}, {4 * tau}, v{t + 2 if tau < 2 else t + 1}')
        mod5(t + 3, t + 3, t + 4)
        A(f'v_lshl_add_u32 v{aMR + tau}, v{t + 3}, 9, v{t}')
    for p in range(4):
        A(f's_mov_b32 s{sLD + p}, {WS_MOD + MP * p}')
    A(f'''s_mul_i32 s{sT0}, s{sW}, 6144
    s_add_u32 s{sT0}, s{sT0}, {L_X1E}
    v_lshl_add_u32 v{aEW}, v{vL31}, 3, s{sT0}
    v_lshl_add_u32 v{aEW}, v{vH}, 10, v{aEW}
    v_add_u32 v{aEW + 1}, 2048, v{aEW}
    v_add_u32 v{aEW + 2}, 4096, v{aEW}
    v_lshrrev_b32 v{t}, 5, v0
    v_lshlrev_b32 v{t + 1}, 8, v{t}''')
    for c in range(3):
        A(f'''v_add_u32 v{t + 2}, {13 * c}, v{vL31}
        v_and_b32 v{t + 2}, 31, v{t + 2}
        v_lshl_add_u32 v{t + 2}, v{t + 2}, 3, v{t + 1}
        v_add_u32 v{aER + c}, {L_X1E + 2048 * c}, v{t + 2}''')
    A(f'''v_lshlrev_b32 v{t + 1}, 4, v{vL31}
    v_sub_u32 v{t + 2}, 8, v{t}
    v_and_b32 v{t + 2}, 7, v{t + 2}
    v_lshl_add_u32 v{aST + 1}, v{t + 2}, 11, v{t + 1}
    v_lshl_add_u32 v{aST}, v{t}, 11, v{t + 1}
    s_mul_i32 s{sST}, s{sME}, {BS}
    s_add_u32 s{sST}, s{sST}, {WS_T}
    v_cmp_gt_u32 {sr(sM1, 2)}, 19, v{vL31}
    v_cmp_gt_u32 {sr(sM2, 2)}, 6, v{vL31}''')


def mod1_loads():
    s = ''
    for p in range(4):
        s += f'buffer_load_dwordx4 {vr(MODR + 4 * p, 4)}, v{vT16}, {srd(S_WS)}, s{sLD + p} offen sc1\n'
    s += f'buffer_load_dwordx4 {vr(MODR + 16, 4)}, v{aMX}, {srd(S_WS)}, s{sLD} offen sc1\n'
    return s


def bytecheck(base, n, t):
    c = ''
    for g in range(n):
        r = base + 4 * g
        for k in range(4):
            c += f'v_xor_b32 v{r + k}, s{sTB + k}, v{r + k}\n'
        if g == 0:
            c += f'v_or3_b32 v{t}, v{r}, v{r + 1}, v{r + 2}\nv_or_b32 v{t}, v{t}, v{r + 3}\n'
        else:
            c += f'v_or3_b32 v{t}, v{t}, v{r}, v{r + 1}\nv_or3_b32 v{t}, v{t}, v{r + 2}, v{r + 3}\n'
    return c + f'v_and_b32 v{t}, 0xff, v{t}\nv_cmp_ne_u32 vcc, 0, v{t}\n'


def k1_poll():
    poll_check('mod1', mod1_loads(), bytecheck(MODR, 5, TMP))
    stamp('mod1')


def round_add(r, add, t):
    A(f'v_cvt_pk_bf16_f32 v{t}, v{r}, v{r + 1}')
    A(f'v_cvt_pk_bf16_f32 v{t + 1}, v{r + 2}, v{r + 3}')
    unpack(r, r + 1, t)
    unpack(r + 2, r + 3, t + 1)
    if add is None:
        return
    for p in (0, 2):
        pk('add', r + p, r + p, add, mods='op_sel_hi:[1,0]')
    A(f'v_cvt_pk_bf16_f32 v{t}, v{r}, v{r + 1}')
    A(f'v_cvt_pk_bf16_f32 v{t + 1}, v{r + 2}, v{r + 3}')
    unpack(r, r + 1, t)
    unpack(r + 2, r + 3, t + 1)


def sum4(r):
    for p in (0, 2):
        pk('add', r + p, r + p, r + 4 + p)
        pk('add', r + 8 + p, r + 8 + p, r + 12 + p)
    for p in (0, 2):
        pk('add', r + p, r + p, r + 8 + p)


def radix4(z, P, inverse):
    pk('add', P, z, z + 4)
    pk('add', P + 2, z, z + 4, mods=NEG1)
    pk('add', P + 4, z + 2, z + 6)
    pk('add', P + 6, z + 2, z + 6, mods=NEG1)
    pk('add', z, P, P + 4)
    pk('add', z + 4, P, P + 4, mods=NEG1)
    a, b = ('neg_lo', 'neg_hi') if inverse else ('neg_hi', 'neg_lo')
    pk('add', z + 2, P + 2, P + 6, mods=f'op_sel:[0,1] op_sel_hi:[1,0] {a}:[0,1]')
    pk('add', z + 6, P + 2, P + 6, mods=f'op_sel:[0,1] op_sel_hi:[1,0] {b}:[0,1]')


def k1_head():
    t = TMP
    x = MODR + 16
    A(f'''v_permlane32_swap_b32 v{x}, v{x + 1}
    v_permlane32_swap_b32 v{x + 2}, v{x + 3}''')
    sum4(MODR)
    A(f'''v_add_f32 v{x}, v{x}, v{x + 1}
    v_add_f32 v{x + 2}, v{x + 2}, v{x + 3}''')
    round_add(MODR, aADD, t)
    A(f'''v_permlane16_swap_b32 v{x}, v{x + 2}
    ds_write_b128 v{aMW}, {vr(MODR, 4)}
    v_add_f32 v{x}, v{x}, v{x + 2}
    v_cvt_pk_bf16_f32 v{x}, v{x}, v{x}
    v_lshlrev_b32 v{x}, 16, v{x}
    v_add_f32 v{x}, 1.0, v{x}
    v_cvt_pk_bf16_f32 v{x}, v{x}, v{x}
    v_lshlrev_b32 v{x}, 16, v{x}
    ds_write_b32 v{aMWX}, v{x}''')
    fine(1, '1a_wr')
    A('s_waitcnt lgkmcnt(0)\ns_barrier')
    fine(1, '1b_bar')


def k1_main():
    t = TMP
    OPA = 60
    DRE, DIM = 24, 40
    for tau in range(3):
        A(f'ds_read2st64_b32 {vr(t + 2 * tau, 2)}, v{aMR + tau} offset0:0 offset1:10')
    for tau in range(3):
        for p in range(4):
            n = X_N + 8 * tau + 2 * p
            pk('fma', n, n, t + 2 * tau, t + 2 * tau, mods='op_sel:[0,1,0] op_sel_hi:[1,1,0]')
    O = 76

    def cva(tau):
        for p in range(4):
            n = X_N + 8 * tau + 2 * p
            A(f'v_cvt_pk_bf16_f32 v{OPA + 4 * tau + p}, v{n}, v{n + 1}')
    cva(0)
    for tau in range(3):
        A(f'v_mfma_f32_32x32x16_bf16 {vr(DRE, 16)}, {vr(OPA + 4 * tau, 4)}, {vr(K1_M1 + 4 * tau, 4)}, {vr(DRE, 16) if tau else 0}')
        if tau < 2:
            cva(tau + 1)
        A(f'v_mfma_f32_32x32x16_bf16 {vr(DIM, 16)}, {vr(OPA + 4 * tau, 4)}, {vr(K1_M1 + 12 + 4 * tau, 4)}, {vr(DIM, 16) if tau else 0}')
    fine(1, '1c_st1')
    for m in range(4):
        A(f'v_mov_b32 v{O + 4 * m + 3}, s{sTAG}')
    OPB = 60
    ERE, EIM = 156, 172

    def cvb(u):
        for jj in range(4):
            A(f'v_cvt_pk_bf16_f32 v{OPB + 4 * u + jj}, v{DRE + 4 * u + jj}, v{DIM + 4 * u + jj}')

    def wr(E, im):
        return [f'ds_write2_b32 v{aEW + (j >> 2)}, v{E + j}, v{E + j + 1} offset0:{64 * (j & 3) + im} offset1:{64 * (j & 3) + 64 + im}' for j in range(0, 12, 2)]
    cvb(0)
    for u in range(4):
        A(f'v_mfma_f32_32x32x16_bf16 {vr(ERE, 16)}, {vr(OPB + 4 * u, 4)}, {vr(K1_M2 + 4 * u, 4)}, {vr(ERE, 16) if u else 0}')
        if u < 3:
            cvb(u + 1)
            A('s_nop 1')
    w = wr(ERE, 0)
    for u in range(4):
        A(f'v_mfma_f32_32x32x16_bf16 {vr(EIM, 16)}, {vr(OPB + 4 * u, 4)}, {vr(K1_M2 + 16 + 4 * u, 4)}, {vr(EIM, 16) if u else 0}')
        if u == 0:
            A('s_nop 4')
        elif u == 1:
            A('s_nop 4')
            A(w.pop(0))
        elif u == 2:
            A(w.pop(0))
            A(w.pop(0))
    for x in w:
        A(x)
    fine(1, '1d_st2')
    for x in wr(EIM, 1):
        A(x)
    fine(1, '1e_wr')
    A('s_waitcnt lgkmcnt(0)\ns_barrier')
    fine(1, '1f_bar')
    Z = 24
    for c in (1, 2, 0):
        for b2 in (0, 2, 1, 3):
            A(f'ds_read_b64 {vr(Z + 8 * c + 2 * b2, 2)}, v{aER + c} offset:{6144 * b2}')
    fine(1, '1g_rd')
    P = 48
    for c in (1, 2, 0):
        z = Z + 8 * c
        radix4(z, P, False)
        if c == 0:
            fine(1, '1h_rx')
            for m in range(4):
                A(f'v_cvt_pk_bf16_f32 v{O + 4 * m}, v{z + 2 * m}, v{z + 2 * m + 1}')
                A(f'buffer_store_dwordx4 {vr(O + 4 * m, 4)}, v{aST + (m >> 1)}, {srd(S_WS)}, s{sST} offen offset:{512 * m} sc1')
        else:
            for k in range(4):
                A(f'v_cvt_pk_bf16_f32 v{56 + k}, v{z + 2 * k}, v{z + 2 * k + 1}')
            r0 = 1 if c == 1 else 3
            for m in range(4):
                A(f'v_cndmask_b32 v{O + 4 * m + c}, v{56 + (m - r0) % 4}, v{56 + (m - r0 - 1) % 4}, {sr(sM1 if c == 1 else sM2, 2)}')


K2C = 100
C_M1, C_TW1, C_M2, C_M3, C_TW2, C_M4 = [K2C + 8 * i for i in range(6)]
K2_IN = 24
vK2A, aIW, aIR, aOR, aOW, vTG = 148, 149, 150, 151, 152, 154


def k2_const():
    t = TMP
    A(f'''v_cvt_f32_u32 v{t}, v{vL15}
    v_cvt_f32_u32 v{t + 1}, v{vQ}
    v_cvt_f32_u32 v{t + 2}, s{sK1}
    v_mul_f32 v{t + 1}, 4.0, v{t + 1}''')
    fmamk(t + 3, t, 8, t + 2)
    A(f'v_mul_f32 v{t + 3}, {f2u(1.0 / 128)}, v{t + 3}')
    A(f'v_mul_f32 v{t + 4}, {f2u(1.0 / 16)}, v{t}')
    A(f'v_mul_f32 v{t + 5}, {f2u(1.0 / 128)}, v{t}')
    A(f'v_mul_f32 v{t + 5}, v{t + 5}, v{t + 2}')
    for jj in range(4):
        A(f'v_add_f32 v{t + 6}, {f2u(float(jj))}, v{t + 1}')
        A(f'v_mul_f32 v{t + 7}, v{t + 6}, v{t + 3}')
        A(f'v_mul_f32 v{t + 8}, {f2u(1.0 / 16)}, v{t + 7}')
        A(f'v_mul_f32 v{t + 9}, v{t + 6}, v{t + 4}')
        A(f'v_add_f32 v{t + 10}, v{t + 9}, v{t + 5}')
        A(f'v_mul_f32 v{t + 11}, {f2u(1.0 / 16)}, v{t + 10}')
        sincos(t + 7, t + 12, t + 13)
        sincos(t + 8, C_TW1 + jj, C_TW1 + 4 + jj)
        A(f'v_cvt_pk_bf16_f32 v{C_M1 + jj}, v{t + 12}, v{t + 13}')
        A(f'v_cvt_pk_bf16_f32 v{C_M1 + 4 + jj}, -v{t + 13}, v{t + 12}')
        sincos(t + 9, t + 12, t + 13)
        sincos(t + 10, t + 14, t + 15)
        sincos(t + 11, C_TW2 + jj, C_TW2 + 4 + jj)
        A(f'v_cvt_pk_bf16_f32 v{C_M2 + jj}, v{t + 12}, v{t + 13}')
        A(f'v_cvt_pk_bf16_f32 v{C_M2 + 4 + jj}, -v{t + 13}, v{t + 12}')
        A(f'v_cvt_pk_bf16_f32 v{C_M3 + jj}, v{t + 12}, -v{t + 13}')
        A(f'v_cvt_pk_bf16_f32 v{C_M3 + 4 + jj}, v{t + 13}, v{t + 12}')
        A(f'v_cvt_pk_bf16_f32 v{C_M4 + jj}, v{t + 14}, -v{t + 15}')
        A(f'v_cvt_pk_bf16_f32 v{C_M4 + 4 + jj}, v{t + 15}, v{t + 14}')


def k2_loads():
    return ''.join(f'buffer_load_dwordx4 {vr(K2_IN + 4 * j, 4)}, v{vK2A}, {srd(S_WS)}, s{sLD + j} offen sc1\n' for j in range(4))


def k2_addr():
    t = TMP
    A(f'''v_lshrrev_b32 v{t}, 2, v{vL}
    v_mul_u32_u24 v{t}, {BS}, v{t}
    v_and_b32 v{t + 1}, 3, v{vL}
    v_lshl_add_u32 v{vK2A}, v{t + 1}, 4, v{t}
    s_mul_i32 s{sT0}, s{sW}, {64 * BS}
    s_lshl_b32 s{sT1}, s{sME}, 6
    s_add_u32 s{sT0}, s{sT0}, s{sT1}
    s_add_u32 s{sLD}, s{sT0}, {WS_T}''')
    for j in range(1, 4):
        A(f's_add_u32 s{sLD + j}, s{sLD}, {16 * j * BS}')
    A(f'''v_mul_u32_u24 v{t}, 3104, v{t + 1}
    v_lshrrev_b32 v{t + 1}, 2, v0
    v_lshl_add_u32 v{t}, v{t + 1}, 4, v{t}
    s_mul_i32 s{sT0}, s{sW}, 3104
    v_add_u32 v{t + 1}, s{sT0}, v{vL16}
    v_add_u32 v{aOR}, {L_K2O}, v{t}
    v_add_u32 v{aOW}, {L_K2O}, v{t + 1}
    v_add_u32 v{aIW}, {L_K2I}, v{t}
    v_add_u32 v{aIR}, {L_K2I}, v{t + 1}
    s_mul_i32 s{sST}, s{sME}, {BS}
    s_lshl_b32 s{sT1}, s{sW}, 12
    s_add_u32 s{sST}, s{sST}, s{sT1}
    s_add_u32 s{sST}, s{sST}, {WS_TP}
    v_mov_b32 v{vTG}, s{sTAG}''')


def cmul(dre, dim, wr, wi, conj, tmp):
    for p in (0, 2):
        pk('mul', tmp + p, dre + p, wr + p)
        pk('mul', tmp + 4 + p, dim + p, wr + p)
    neg = 'neg_lo:[1,0,0] neg_hi:[1,0,0]'
    for p in (0, 2):
        pk('fma', tmp + p, dim + p, wi + p, tmp + p, mods='' if conj else neg)
        pk('fma', tmp + 4 + p, dre + p, wi + p, tmp + 4 + p, mods=neg if conj else '')


def k2_head():
    tg = [K2_IN + 4 * j + 3 for j in range(4)]
    poll_check('t', masked(k2_loads(), tg), tagcheck(tg, TMP))
    stamp('T')
    X = 40
    for c in range(3):
        cb, cs = c & ~1, c & 1
        for p in (0, 2):
            A(f'v_pk_mov_b32 {vr(X + 4 * c + p, 2)}, {vr(K2_IN + 4 * p + cb, 2)}, {vr(K2_IN + 4 * p + 4 + cb, 2)} op_sel:[{cs},{cs}]')
        A(f'ds_write_b128 v{aIW}, {vr(X + 4 * c, 4)} offset:{1024 * c}')
    fine(1, '2a_wr')
    A('s_waitcnt lgkmcnt(0)\ns_barrier')
    fine(1, '2b_bar')


def k2_main():
    X = 40
    OP = 24
    D = 40
    U = 64
    for c in range(3):
        A(f'ds_read_b128 {vr(OP + 4 * c, 4)}, v{aIR} offset:{1024 * c}')

    def mm(c, M, data_is_a):
        for p in range(2):
            a, b = (vr(OP + 4 * c, 4), vr(M + 4 * p, 4)) if data_is_a else (vr(M + 4 * p, 4), vr(OP + 4 * c, 4))
            A(f'v_mfma_f32_16x16x32_bf16 {vr(D + 8 * c + 4 * p, 4)}, {a}, {b}, 0')

    def mid(wr, wi, conj, M, data_is_a):
        for c in range(3):
            cmul(D + 8 * c, D + 8 * c + 4, wr(c), wi(c), conj, U + 8 * c)
        cv = [f'v_cvt_pk_bf16_f32 v{OP + 4 * c + jj}, v{U + 8 * c + jj}, v{U + 8 * c + 4 + jj}' for c in range(3) for jj in range(4)]
        for x in cv[:6]:
            A(x)
        cv = cv[6:]
        for c in range(3):
            for x in A.capture(lambda: mm(c, M, data_is_a)):
                A.items.append(x)
                for y in cv[:2]:
                    A(y)
                cv = cv[2:]
    fine(1, '2c_rd')
    for c in range(3):
        mm(c, C_M1, True)
    mid(lambda c: C_TW1, lambda c: C_TW1 + 4, True, C_M2, False)
    mid(lambda c: F_W + 8 * c, lambda c: F_W + 8 * c + 4, False, C_M3, True)
    mid(lambda c: C_TW2, lambda c: C_TW2 + 4, False, C_M4, False)
    fine(1, '2d_mm')
    for c in range(3):
        for jj in range(4):
            A(f'v_cvt_pk_bf16_f32 v{OP + 4 * c + jj}, v{D + 8 * c + jj}, v{D + 8 * c + 4 + jj}')
        A(f'ds_write_b128 v{aOW}, {vr(OP + 4 * c, 4)} offset:{1024 * c}')
    fine(1, '2e_wr')
    A('s_waitcnt lgkmcnt(0)\ns_barrier')
    fine(1, '2f_bar')
    for c in range(3):
        A(f'ds_read_b128 {vr(X + 4 * c, 4)}, v{aOR} offset:{1024 * c}')
    fine(1, '2g_rd')
    O = 64
    for j in range(4):
        jb, js = j & ~1, j & 1
        A(f'v_pk_mov_b32 {vr(O + 4 * j, 2)}, {vr(X + jb, 2)}, {vr(X + 4 + jb, 2)} op_sel:[{js},{js}]')
        A(f'v_pk_mov_b32 {vr(O + 4 * j + 2, 2)}, {vr(X + 8 + jb, 2)}, {vr(vTG, 2)} op_sel:[{js},0]')
        A(f'buffer_store_dwordx4 {vr(O + 4 * j, 4)}, v{vL16}, {srd(S_WS)}, s{sST} offen offset:{1024 * j} sc1')


def epoch_store():
    A(f'''s_cmp_eq_u32 s{sME}, 0
    s_cselect_b32 s{sBGO}, {WS_EPOCH}, {OOB}
    v_mov_b32 v{vBG}, 0
    v_mov_b32 v{vBG + 3}, s{sTAG}
    buffer_store_dword v{vBG + 3}, v{vBG}, {srd(S_WS)}, s{sBGO} offen sc1''')


K3_MA = 100
K3_MB = 132
K3_X = 156
K3_GA, K3_SB, K3_CB = 176, 196, 216
K3_IN = 24
vK3A, vK3B = 236, 237
M2R = 160
X3R = 88
B1R = 192


def side_loads():
    s = ''
    for p in range(4):
        s += f"""s_mov_b32 s{sBG2}, {WS_MOD + MP * p + 320 * 16}
        buffer_load_dwordx4 {vr(M2R + 4 * p, 4)}, v{vT16}, {srd(S_WS)}, s{sBG2} offen sc1
        buffer_load_dwordx4 {vr(M2R + 16 + 4 * p, 4)}, v{vBG + 2}, {srd(S_WS)}, s{sBG2} offen sc1
        """
    return s


def side_prep():
    t = TMP
    A(f"""s_and_b32 s{sT0}, s{sJ}, 7
    s_mul_i32 s{sT0}, s{sT0}, 320
    v_mov_b32 v{t}, s{sT0}
    v_cmp_lt_u32 vcc, 223, v0
    v_cndmask_b32 v{t}, 0, v{t}, vcc
    v_min_u32 v{t + 1}, {243 * 16}, v{vT16}
    v_add_u32 v{t}, v{t}, v{t + 1}
    v_add_u32 v{vBG + 2}, 4096, v{t}
    s_lshr_b32 s{sT0}, s{sT0}, 1
    v_lshl_add_u32 v{vBG + 1}, v{vL31}, 3, s{sT0}""")


def b2_issue():
    A(f'buffer_load_dwordx2 v[192:193], v{vBG + 1}, {srd(S_B2)}, 0 offen')


def side_finish():
    t = TMP
    poll_check('mod2', side_loads(), bytecheck(M2R, 8, t))
    A(f"""v_subrev_u32 v{t + 2}, 64, v0
    v_cmp_gt_u32 vcc, 160, v{t + 2}
    v_cndmask_b32 v{t + 2}, 0, 1.0, vcc
    v_add_u32 v{t + 5}, {L_M2}, v{vT16}""")
    for g in range(2):
        r = M2R + 16 * g
        sum4(r)
        round_add(r, t + 2 if g else None, t)
        if g:
            unpack(t + 6, t + 7, 192)
            unpack(t + 8, t + 9, 193)
            A(f'''v_mov_b32 v{t + 3}, {f2u(1.0 / GA)}
            v_cmp_lt_u32 vcc, 223, v0
            v_cndmask_b32 v{t + 2}, 1.0, v{t + 3}, vcc''')
            for p in (0, 2):
                pk('mul', t + 6 + p, t + 6 + p, r + p)
                pk('mul', r + p, r + p, t + 2, mods='op_sel_hi:[1,0]')
            A(f'''v_max_u32 v{t + 3}, {223 * 16}, v{vT16}
            v_add_u32 v{t + 3}, {L_M2 + 8192 - 223 * 16}, v{t + 3}
            ds_write_b128 v{t + 3}, {vr(t + 6, 4)}''')
        A(f'ds_write_b128 v{t + 5}, {vr(r, 4)} offset:{4096 * g}')
    for k in range(10):
        A(f'v_accvgpr_read_b32 v{X3R + k}, a{240 + k}')
    for k in range(10):
        unpack(K3_X + 2 * k, K3_X + 2 * k + 1, X3R + k)


def k3_const():
    t = TMP
    A(f'''v_lshlrev_b32 v{t}, 2, v{vL31}
    v_add_u32 v{t}, s{sW}, v{t}
    v_cvt_f32_u32 v{t}, v{t}
    v_mul_f32 v{t}, {f2u(1.0 / 128)}, v{t}
    v_cvt_f32_u32 v{t + 8}, v{vH}
    v_mul_f32 v{t + 8}, 4.0, v{t + 8}
    v_mul_f32 v{t + 1}, v{t + 8}, v{t}''')
    for u in range(4):
        for jp in (0, 2):
            fmamk(t + 2, t, 8 * u + jp, t + 1)
            fmamk(t + 5, t, 8 * u + jp + 1, t + 1)
            sincos(t + 2, t + 3, t + 4)
            sincos(t + 5, t + 6, t + 7)
            for jj, e in ((jp, 3), (jp + 1, 6)):
                A(f'v_cvt_pk_bf16_f32 v{K3_MA + 4 * u + jj}, v{t + e}, -v{t + e + 1}')
                A(f'v_cvt_pk_bf16_f32 v{K3_MA + 16 + 4 * u + jj}, v{t + e + 1}, v{t + e}')
    A(f'''v_lshrrev_b32 v{t}, 3, v{vL31}
    v_cvt_f32_u32 v{t}, v{t}
    v_mul_f32 v{t}, {f2u(0.4)}, v{t}
    v_and_b32 v{t + 1}, 7, v{vL}
    v_cvt_f32_u32 v{t + 1}, v{t + 1}
    v_mul_f32 v{t + 1}, {f2u(0.125)}, v{t + 1}
    v_mul_f32 v{t + 9}, v{t + 8}, v{t + 1}''')
    for jj in range(4):
        fmamk(t + 10, t + 1, jj, t + 9)
        for tau in range(3):
            fmamk(t + 2, t, tau, t + 10)
            sincos(t + 2, t + 3, t + 4)
            if tau:
                A(f'v_add_f32 v{t + 5}, {f2u(1.6 * tau)}, v{t + 10}')
                sincos(t + 5, t + 6, t + 7)
            A(f'v_cvt_pk_bf16_f32 v{K3_MB + 4 * tau + jj}, v{t + 3}, -v{t + 4}')
            if tau:
                A(f'v_cvt_pk_bf16_f32 v{K3_MB + 12 + 4 * tau + jj}, v{t + 6}, -v{t + 7}')
            else:
                A(f'v_mov_b32 v{K3_MB + 12 + jj}, v{K3_MB + jj}')


def k3_loads():
    return ''.join(f'buffer_load_dwordx4 {vr(K3_IN + 4 * m, 4)}, v{vK3A + (m >> 1)}, {srd(S_WS)}, s{sLD + m} offen sc1\n' for m in range(4))


def k3_ldaddr():
    t = TMP
    A(f'''v_lshrrev_b32 v{t}, 5, v0
    v_sub_u32 v{t + 1}, 8, v{t}
    v_and_b32 v{t + 1}, 7, v{t + 1}
    v_lshrrev_b32 v{t + 2}, 2, v{vL31}
    v_lshl_add_u32 v{t}, v{t}, 5, v{t + 2}
    v_lshl_add_u32 v{t + 1}, v{t + 1}, 5, v{t + 2}
    v_mul_u32_u24 v{t}, {BS}, v{t}
    v_mul_u32_u24 v{t + 1}, {BS}, v{t + 1}
    v_and_b32 v{t + 2}, 3, v{vL}
    v_lshl_add_u32 v{vK3A}, v{t + 2}, 4, v{t}
    v_lshl_add_u32 v{vK3B}, v{t + 2}, 4, v{t + 1}
    s_lshl_b32 s{sT0}, s{sME}, 6
    s_add_u32 s{sLD}, s{sT0}, {WS_TP}''')
    for m in range(1, 4):
        A(f's_add_u32 s{sLD + m}, s{sLD}, {8 * m * BS}')


aWA, aRA, aYA = 8, 11, 12
aYR, aSEL, aX1 = 84, 86, 87
aRW, aRR, aY2, aMO = 89, 91, 92, 93
ST3 = 18
vEPS = 22
GK = 2.0 * 0.7978845608028654 * 1.4426950408889634
GA = (GK * 0.044715) ** (1.0 / 3.0)


def k3_addr():
    t = 95
    A(f'v_lshrrev_b32 v{t}, 5, v0')
    A(f'v_mul_u32_u24 v{t}, 144, v{t}')
    for c in range(3):
        A(f'''v_add_u32 v{t + 1}, {13 * c}, v{vL31}
        v_and_b32 v{t + 1}, 31, v{t + 1}
        v_lshl_add_u32 v{t + 1}, v{t + 1}, 2, v{t}
        v_add_u32 v{aWA + c}, {L_K3I + 8 * 144 * c}, v{t + 1}''')
    A(f'''s_mul_i32 s{sT0}, s{sW}, 3584
    s_add_u32 s{sT0}, s{sT0}, {L_K3I}
    v_mul_u32_u24 v{t}, 144, v{vL31}
    v_lshl_add_u32 v{t}, v{vH}, 4, v{t}
    v_add_u32 v{aRA}, s{sT0}, v{t}''')
    A(f'''v_lshl_add_u32 v{t}, v{vL31}, 2, s{sW}
    v_mul_u32_u24 v{t + 1}, 3, v{t}
    v_mul_u32_u24 v{t + 2}, 5120, v{vH}
    v_lshl_add_u32 v{t}, v{t}, 2, v{t + 2}
    v_add_u32 v{t}, {L_Y}, v{t}''')
    for a in range(5):
        A(f'v_add_u32 v{t + 2}, {2 * a}, v{t + 1}')
        mod5(t + 2, t + 2, t + 3)
        A(f'v_lshl_add_u32 v{aYA + a}, v{t + 2}, 9, v{t}')
    A(f'''s_mul_i32 s{sT0}, s{sW}, 2560
    s_add_u32 s{sT1}, s{sT0}, {L_Y}
    v_lshl_add_u32 v{aYR}, v{vL31}, 5, s{sT1}
    v_lshl_add_u32 v{aYR + 1}, v{vL31}, 4, s{sT1}
    s_mov_b32 s{sT1}, {L_M2}
    v_lshl_add_u32 v{aMO}, v{vL31}, 5, s{sT1}
    v_lshl_add_u32 v{aMO + 1}, v{vL31}, 4, s{sT1}
    v_mov_b32 v{t}, 0x01000c0c
    v_mov_b32 v{t + 1}, 0x03020c0c
    v_cmp_eq_u32 vcc, 1, v{vH}
    v_cndmask_b32 v{aSEL}, v{t}, v{t + 1}, vcc
    s_lshl_b32 s{sST + 3}, s{sW}, 9
    s_add_u32 s{sST + 3}, s{sST + 3}, s{sME}
    s_mul_i32 s{sST + 3}, s{sST + 3}, 1280
    s_mul_i32 s{sST}, s{sJ}, 10
    s_add_u32 s{sST}, s{sST}, s{sW}
    s_mul_i32 s{sST}, s{sST}, {BS}
    s_lshl_b32 s{sT1}, s{sCL}, 10
    s_add_u32 s{sST}, s{sST}, s{sT1}
    s_add_u32 s{sST}, s{sST}, {WS_Y2}
    s_add_u32 s{sST + 1}, s{sST}, {4 * BS}
    s_add_u32 s{sST + 2}, s{sST}, {8 * BS}
    s_cmp_lt_u32 s{sW}, 2
    s_cselect_b32 s{sST + 2}, s{sST + 2}, {OOB}
    v_mul_u32_u24 v{t}, {256 * 1280}, v{vH}
    v_lshl_add_u32 v{aX1}, v{vL31}, 4, v{t}
    v_lshl_add_u32 v{aX1 + 1}, v{vL31}, 3, v{t}''')
    A(f'''s_lshl_b32 s{sT2}, s{sW}, 1
    v_add_u32 v{t}, s{sT2}, v{vH}
    v_xor_b32 v{t + 1}, v{t}, v{vL31}
    v_and_b32 v{t + 1}, 7, v{t + 1}
    v_lshlrev_b32 v{t + 1}, 4, v{t + 1}
    v_lshl_add_u32 v{t + 1}, v{vL31}, 7, v{t + 1}
    v_add_u32 v{aRW}, {L_Y2}, v{t + 1}
    v_lshrrev_b32 v{t + 2}, 1, v{vL31}
    v_xor_b32 v{t + 3}, v{t}, v{t + 2}
    v_and_b32 v{t + 3}, 7, v{t + 3}
    v_lshlrev_b32 v{t + 3}, 4, v{t + 3}
    v_lshl_add_u32 v{t + 3}, v{t + 2}, 7, v{t + 3}
    v_and_b32 v{t + 2}, 1, v{vL}
    v_lshl_add_u32 v{t + 3}, v{t + 2}, 3, v{t + 3}
    v_add_u32 v{aRW + 1}, {L_Y2 + 64 * 128}, v{t + 3}
    v_lshrrev_b32 v{t + 2}, 3, v0
    v_xor_b32 v{t + 4}, v{t + 2}, v0
    v_and_b32 v{t + 4}, 7, v{t + 4}
    v_lshlrev_b32 v{t + 4}, 4, v{t + 4}
    v_lshl_add_u32 v{t + 4}, v{t + 2}, 7, v{t + 4}
    v_add_u32 v{aRR}, {L_Y2}, v{t + 4}
    v_mov_b32 v{vEPS}, {f2u(1e-5 / GA ** 2)}''')


def row_stats(b, t, scale=None):
    pk('add', t, b, b + 2)
    pk('mul', t + 2, b, b)
    for k in range(1, 10):
        if k > 1:
            pk('add', t, t, b + 2 * k)
        pk('fma', t + 2, b + 2 * k, b + 2 * k, t + 2)
    A(f'''v_add_f32 v{t}, v{t}, v{t + 1}
    v_add_f32 v{t + 2}, v{t + 2}, v{t + 3}
    v_permlane16_swap_b32 v{t}, v{t + 2}
    v_add_f32 v{t}, v{t}, v{t + 2}''')
    for r in (8, 4, 2, 1):
        A(f'v_add_f32_dpp v{t}, v{t}, v{t} row_ror:{r} row_mask:0xf bank_mask:0xf')
    A(f'''v_mul_f32 v{t + 1}, {f2u(1.0 / 640)}, v{t}
    v_mul_f32 v{t + 2}, {f2u(1.0 / 640)}, v{t}
    v_permlane16_swap_b32 v{t + 1}, v{t + 2}
    v_fma_f32 v{t}, -v{t + 1}, v{t + 1}, v{t + 2}
    v_max_f32 v{t}, 0, v{t}''')
    if scale is None:
        A(f'v_add_f32 v{t}, {f2u(1e-5)}, v{t}')
    else:
        A(f'v_fmamk_f32 v{t}, v{t}, {f2u(1.0 / scale ** 2)}, v{vEPS}')
    A(f'''v_rsq_f32 v{t}, v{t}
    v_mul_f32 v{t + 1}, v{t + 1}, v{t}''')


def k3_poll():
    tg = [K3_IN + 4 * m + 3 for m in range(4)]
    poll_check('tp', masked(k3_loads(), tg), tagcheck(tg, ST3))
    stamp('Tp')


def k3_main():
    Z, P, Q = 40, 48, 56
    for c in range(3):
        if c == 0:
            src = [K3_IN + 4 * k for k in range(4)]
        else:
            r0 = 1 if c == 1 else 3
            for k in range(4):
                A(f'v_cndmask_b32 v{Q + k}, v{K3_IN + 4 * ((k + r0) % 4) + c}, v{K3_IN + 4 * ((k + r0 + 1) % 4) + c}, {sr(sM1 if c == 1 else sM2, 2)}')
            src = [Q + k for k in range(4)]
        z = Z + 20 * (c & 1)
        for k in range(4):
            unpack(z + 2 * k, z + 2 * k + 1, src[k])
        radix4(z, P, True)
        for k in (0, 1):
            A(f'v_cvt_pk_bf16_f32 v{z + 2 * k}, v{z + 2 * k}, v{z + 2 * k + 1}')
            A(f'v_cvt_pk_bf16_f32 v{z + 2 * k + 4}, v{z + 2 * k + 4}, v{z + 2 * k + 5}')
            A(f'ds_write2st64_b32 v{aWA + c}, v{z + 2 * k}, v{z + 2 * k + 4} offset0:{14 * k} offset1:{14 * k + 28}')
    fine(3, '3a_wr')
    A('s_waitcnt lgkmcnt(0)\ns_barrier')
    fine(3, '3b_bar')
    OPA = 24
    DRE, DIM = 40, 56
    for u in range(4):
        A(f'ds_read_b128 {vr(OPA + 4 * u, 4)}, v{aRA} offset:{32 * u}')
    mo = []
    for v, dst in enumerate((K3_GA, K3_SB, K3_CB)):
        for k in range(4):
            mo.append(f'ds_read_b128 {vr(dst + 4 * k, 4)}, v{aMO} offset:{2560 * v + 1024 * (k >> 1) + 16 * (k & 1)}')
        mo.append(f'ds_read_b128 {vr(dst + 16, 4)}, v{aMO + 1} offset:{2560 * v + 2048}')
    for u in range(4):
        A(f'v_mfma_f32_32x32x16_bf16 {vr(DRE, 16)}, {vr(OPA + 4 * u, 4)}, {vr(K3_MA + 4 * u, 4)}, {vr(DRE, 16) if u else 0}')
        A(mo.pop(0))
        A(mo.pop(0))
        A(f'v_mfma_f32_32x32x16_bf16 {vr(DIM, 16)}, {vr(OPA + 4 * u, 4)}, {vr(K3_MA + 16 + 4 * u, 4)}, {vr(DIM, 16) if u else 0}')
        if u:
            A(mo.pop(0))
            A(mo.pop(0))
    A(mo.pop(0))
    fine(3, '3c_stA')
    OPB = 72
    E0, E1 = 100, 116
    def cvb(tau):
        for jj in range(4):
            A(f'v_cvt_pk_bf16_f32 v{OPB + 4 * tau + jj}, v{DRE + 4 * tau + jj}, v{DIM + 4 * tau + jj}')
    cvb(0)
    for tau in range(3):
        A(f'v_mfma_f32_32x32x16_bf16 {vr(E0, 16)}, {vr(K3_MB + 4 * tau, 4)}, {vr(OPB + 4 * tau, 4)}, {vr(E0, 16) if tau else 0}')
        if tau < 2:
            cvb(tau + 1)
            A('s_nop 1')
    for tau in range(3):
        A(f'v_mfma_f32_32x32x16_bf16 {vr(E1, 16)}, {vr(K3_MB + 12 + 4 * tau, 4)}, {vr(OPB + 4 * tau, 4)}, {vr(E1, 16) if tau else 0}')
        if tau < 2:
            A('s_nop 4')
    fine(3, '3d_stB')
    for a in range(5):
        e = E0 + 4 * a
        A(f'v_cvt_pk_bf16_f32 v{24 + 2 * a}, v{e}, v{e + 1}')
        A(f'v_cvt_pk_bf16_f32 v{25 + 2 * a}, v{e + 2}, v{e + 3}')
        A(f'ds_write2st64_b32 v{aYA + a}, v{24 + 2 * a}, v{25 + 2 * a} offset0:0 offset1:10')
    fine(3, '3e_wr')
    A('s_waitcnt lgkmcnt(0)\ns_barrier')
    fine(3, '3f_bar')
    Y = 40
    for k in range(4):
        A(f'ds_read_b128 {vr(Y + 4 * k, 4)}, v{aYR} offset:{1024 * (k >> 1) + 16 * (k & 1)}')
    A(f'ds_read_b128 {vr(Y + 16, 4)}, v{aYR + 1} offset:2048')
    fine(3, '3g_rd')
    PK = 24
    for k in range(10):
        A(f'v_perm_b32 v{Y + 2 * k}, v{Y + 2 * k}, v{Y + 2 * k}, v{aSEL}')
        A(f'v_perm_b32 v{Y + 2 * k + 1}, v{Y + 2 * k + 1}, v{Y + 2 * k + 1}, v{aSEL}')
        pk('fma', Y + 2 * k, Y + 2 * k, K3_GA + 2 * k, K3_X + 2 * k)
    X1 = A.capture(lambda: [A(f'v_cvt_pk_bf16_f32 v{PK + k}, v{Y + 2 * k}, v{Y + 2 * k + 1}') for k in range(10)])
    st = A.capture(lambda: row_stats(Y, ST3))
    n0 = 21
    A.items.extend(st[:n0])
    for i in st[n0:]:
        if X1:
            A.items.append(X1.pop(0))
        A.items.append(i)
    A.items.extend(X1)
    fine(3, '3h_st1')
    xs = ' sc1' if OPT['x1sc'] else ''
    A(f'''buffer_store_dwordx4 {vr(PK, 4)}, v{aX1}, {srd(S_OUT)}, s{sST + 3} offen{xs}
    buffer_store_dwordx4 {vr(PK + 4, 4)}, v{aX1}, {srd(S_OUT)}, s{sST + 3} offen offset:512{xs}
    buffer_store_dwordx2 {vr(PK + 8, 2)}, v{aX1 + 1}, {srd(S_OUT)}, s{sST + 3} offen offset:1024{xs}''')
    fine(3, '3i_x1')
    nm = 'op_sel:[0,0,1] op_sel_hi:[1,0,1] neg_lo:[0,0,1] neg_hi:[0,0,1]'
    for k in range(10):
        pk('fma', Y + 2 * k, Y + 2 * k, ST3, ST3, mods=nm)
        pk('fma', Y + 2 * k, Y + 2 * k, K3_CB + 2 * k, K3_SB + 2 * k)
    row_stats(Y, ST3, GA)
    fine(3, '3j_st2')
    PK = 60
    for k in range(10):
        pk('fma', Y + 2 * k, Y + 2 * k, ST3, ST3, mods=nm)
        A(f'v_cvt_pk_bf16_f32 v{PK + k}, v{Y + 2 * k}, v{Y + 2 * k + 1}')
        if k == 3:
            A(f'ds_write_b128 v{aRW}, {vr(PK, 4)}')
        if k == 7:
            A(f'ds_write_b128 v{aRW}, {vr(PK + 4, 4)} offset:4096')
    A(f'ds_write_b64 v{aRW + 1}, {vr(PK + 8, 2)}')


def k3_tail():
    fine(3, '3k_wr')
    A('s_waitcnt lgkmcnt(0)\ns_barrier')
    fine(3, '3l_bar')
    for i in range(3):
        A(f'ds_read_b128 {vr(24 + 4 * i, 4)}, v{aRR} offset:{4096 * i}')
    for i in range(3):
        A(f'buffer_store_dwordx4 {vr(24 + 4 * i, 4)}, v{vL16}, {srd(S_WS)}, s{sST + i} offen')


G1_A = 24
G1_ACC = 184
G1_B = 232
NS, PRE = 4, 3
aB, aPW, aPR, vH4, vG1A, vGC, vT1 = 8, 12, 16, 18, 20, 22, 23
B1RAW = 132
sHB = 72
PARTS = [[(ks, tl) for ks in range(20) for tl in range(4)], [(ks, tl) for ks in range(20) for tl in (4, 5)]]


def b1_issue():
    A(f"""s_mul_i32 s{sBG2}, s{sJ}, 192
    v_lshlrev_b32 v{vBG}, 3, v{vQ}""")
    for k in range(6):
        A(f'buffer_load_dwordx2 {vr(B1RAW + 2 * k, 2)}, v{vBG}, {srd(S_B1)}, s{sBG2} offen offset:{32 * k}')


def g1_load(i):
    ks, r = divmod(i, 2)
    pre = f's_add_u32 s{sLD}, s{sLD}, {BS}\n' if i and i % 4 == 0 else ''
    return pre + f'buffer_load_dwordx4 {vr(G1_A + 4 * i, 4)}, v{vG1A + r}, {srd(S_WS)}, s{sLD} offen offset:{512 * (ks & 1)} sc1'


def g1_rd(part, n):
    ks, tl = PARTS[part][n]
    ad = aB + 2 * (ks // 10) + (tl & 1)
    off = (ks % 10) * 6144 + 64 * (tl >> 1)
    s = G1_B + 4 * (n % NS)
    return [f'ds_read_b64_tr_b16 {vr(s, 2)}, v{ad} offset:{off}', f'ds_read_b64_tr_b16 {vr(s + 2, 2)}, v{ad} offset:{off + 768}']


def g1_bias():
    A(f's_mov_b32 s{sT2}, {f2u(GA)}')
    for k in range(12):
        u = 12 + 2 * (k & 1)
        unpack(u, u + 1, B1RAW + k)
        for r in range(2):
            pk('mul', G1_ACC + 8 * (k >> 1) + 4 * r + 2 * (k & 1), u, sr(sT2, 2), mods='op_sel_hi:[1,0]')


def g1_pre():
    t = 12
    A(f"""v_lshrrev_b32 v{t}, 3, v{vL15}
    v_mul_u32_u24 v{t}, {10 * BS}, v{t}
    v_lshl_add_u32 v{t}, v{vQ}, 7, v{t}
    v_and_b32 v{t + 1}, 7, v{vL}
    v_lshl_add_u32 v{vG1A}, v{t + 1}, 4, v{t}
    v_add_u32 v{vG1A + 1}, {20 * BS}, v{vG1A}
    s_mul_i32 s{sT0}, s{sW}, {40 * BS}
    s_lshl_b32 s{sT1}, s{sCL}, 10
    s_add_u32 s{sT0}, s{sT0}, s{sT1}
    s_add_u32 s{sLD}, s{sT0}, {WS_Y2}""")
    A(f"""v_lshrrev_b32 v{t}, 2, v{vL15}
    v_lshl_add_u32 v{t}, v{vQ}, 3, v{t}
    v_mul_u32_u24 v{t}, 192, v{t}
    v_and_b32 v{t + 1}, 3, v{vL}
    v_lshl_add_u32 v{t}, v{t + 1}, 3, v{t}
    v_and_b32 v{t + 1}, 1, v{vQ}
    v_lshl_add_u32 v{aB}, v{t + 1}, 5, v{t}
    v_xor_b32 v{aB + 1}, 32, v{aB}
    v_add_u32 v{aB + 2}, 61440, v{aB}
    v_add_u32 v{aB + 3}, 61440, v{aB + 1}""")


def g1_part(part, side):
    fr = PARTS[part]
    for n, (ks, tl) in enumerate(fr):
        rd = g1_rd(part, n + PRE) if n + PRE < len(fr) else []
        for r in range(2):
            acc = vr(G1_ACC + 8 * tl + 4 * r, 4)
            A(f'v_mfma_f32_16x16x32_bf16 {acc}, {vr(G1_B + 4 * (n % NS), 4)}, {vr(G1_A + 4 * (2 * ks + r), 4)}, {acc}')
            if rd:
                A(rd[r])
        for x in side.get(n, []):
            if callable(x):
                x()
            else:
                A.items.extend(x)


def place(side, groups, lo, hi):
    for k, g in enumerate(groups):
        side.setdefault(lo + (hi - lo) * k // max(len(groups), 1), []).append(g)


def late_addr():
    t = vT1
    A(f"""s_mul_i32 s{sST}, s{sCL}, 393216
    s_add_u32 s{sST}, s{sST}, {WS_H}
    s_lshr_b32 s{sT0}, s{sJ}, 3
    s_mul_i32 s{sT0}, s{sT0}, {4 * 48 * 1024}
    s_add_u32 s{sT0}, s{sT0}, s{sST}
    s_mul_i32 s{sT1}, s{sW}, {12 * 1024}
    s_add_u32 s{sT0}, s{sT0}, s{sT1}
    s_mul_i32 s{sT1}, s{sW}, {96 * 1024}
    s_add_u32 s{sST}, s{sST}, s{sT1}
    s_mul_i32 s{sT1}, s{sJ}, 3072
    s_add_u32 s{sST}, s{sST}, s{sT1}
    s_add_u32 s{sST + 1}, s{sST}, {48 * 1024}
    v_mov_b32 v{vGC}, {f2u(GK / GA)}
    v_add_u32 v{vH4}, 4096, v{vL16}
    v_add_u32 v{vH4 + 1}, 8192, v{vL16}""")
    flag_prep(1)
    A(f"""v_mul_u32_u24 v{t}, {RS}, v{vL15}
    v_lshl_add_u32 v{t}, v{vQ}, 4, v{t}""")
    for blk in range(4):
        A(f"""s_add_u32 s{sT1}, s{sDW}, {blk + 1}
        s_and_b32 s{sT1}, s{sT1}, 3
        s_mul_i32 s{sT2}, s{sT1}, {48 * 1024}
        s_add_u32 s{sHB + blk}, s{sT0}, s{sT2}
        s_mul_i32 s{sT1}, s{sT1}, {4 * PS}
        s_add_u32 s{sT1}, s{sT1}, {blk * PS}
        v_add_u32 v{aPW + blk}, s{sT1}, v{t}""")
    A(f"""v_lshrrev_b32 v{aPR}, 2, v{vL}
    v_and_b32 v{vOA}, 7, v{aPR}
    v_mul_u32_u24 v{aPR}, {RS}, v{aPR}
    s_mul_i32 s{sT2}, s{sDW}, {4 * PS}
    v_add_u32 v{aPR}, s{sT2}, v{aPR}
    v_and_b32 v{t}, 3, v{vL}
    v_lshl_add_u32 v{aPR + 1}, v{t}, 4, v{aPR}
    v_lshl_add_u32 v{aPR}, v{t}, 5, v{aPR}
    s_and_b32 s{sT0}, s{sPID}, 0xf8
    s_lshl_b32 s{sT1}, s{sDW}, 1
    s_add_u32 s{sT0}, s{sT0}, s{sT1}
    s_and_b32 s{sT2}, s{sJ}, 7
    s_mul_i32 s{sT3}, s{sT2}, 160
    v_lshlrev_b32 v{vOA}, 8, v{vOA}
    v_add3_u32 v{vOA}, v{vH}, v{vOA}, s{sT0}
    v_mul_u32_u24 v{vOA}, 1280, v{vOA}
    v_add_u32 v{vOA}, s{sT3}, v{vOA}
    v_lshl_add_u32 v{vOC}, v{t}, 3, v{vOA}
    v_lshl_add_u32 v{vOA}, v{t}, 4, v{vOA}""")


def gelu_unit(u, r):
    b = G1_ACC + 16 * u + 4 * r
    regs = [b, b + 2, b + 8, b + 10]
    e = G1_B
    o = G1_B + 8 + 4 * r
    for k, x in enumerate(regs):
        pk('fma', e + 2 * k, x, x, vGC, mods='op_sel_hi:[1,1,0]')
    for k, x in enumerate(regs):
        pk('mul', e + 2 * k, e + 2 * k, x, mods=NEG1)
    for k in range(8):
        A(f'v_exp_f32 v{e + k}, v{e + k}')
    for k in range(4):
        pk('add', e + 2 * k, e + 2 * k, '1.0', mods='op_sel_hi:[1,0]')
    for k in range(8):
        A(f'v_rcp_f32 v{e + k}, v{e + k}')
    for k, x in enumerate(regs):
        pk('mul', e + 2 * k, e + 2 * k, x)
    for k in range(4):
        A(f'v_cvt_pk_bf16_f32 v{o + k}, v{e + 2 * k}, v{e + 2 * k + 1}')
    A(f'buffer_store_dwordx4 {vr(o, 4)}, v{vL16}, {srd(S_WS)}, s{sST + r} offen offset:{1024 * u} sc1')


G2_H = 24
NH = 20
FINR = 104
G2_ACC = 120
G2_BASE = 200
G2_GB = 220
vOA, vOC = 248, 249
RS = 336
PS = 16 * RS
OA = OPT['oa']
G2SEQ = [(b, k) for b in range(3) for k in KA] + [(3, k) for k in KA[:OA]] + [(b, k) for b in range(3) for k in KB] + [(3, k) for k in KA[OA:] + KB]
NGA = 24 + OA


def fin_issue():
    R = FINR
    A(f"""buffer_load_dwordx4 {vr(R, 4)}, v{vOA}, {srd(S_OUT)}, 0 offen sc1
    buffer_load_dwordx4 {vr(R + 4, 4)}, v{vOA}, {srd(S_OUT)}, 0 offen offset:64 sc1
    buffer_load_dwordx2 {vr(R + 8, 2)}, v{vOC}, {srd(S_OUT)}, 0 offen offset:128 sc1""")


def fin_finish():
    t = vG1A
    A(f"""v_and_b32 v{t}, 3, v{vL}
    v_lshlrev_b32 v{t + 1}, 4, v{t}
    v_add_u32 v{t + 1}, {L_M2 + 7680}, v{t + 1}
    v_lshl_add_u32 v{t}, v{t}, 4, v{t + 1}""")
    for dst, off in ((G2_BASE, 528), (G2_GB, 0)):
        for k in range(4):
            A(f'ds_read_b128 {vr(dst + 4 * k, 4)}, v{t} offset:{off + 128 * (k >> 1) + 16 * (k & 1)}')
        A(f'ds_read_b128 {vr(dst + 16, 4)}, v{t + 1} offset:{off + 256}')
    for k in range(10):
        unpack(114, 115, FINR + k)
        A(f'v_add_f32 v{G2_BASE + 2 * k}, v114, v{G2_BASE + 2 * k}')
        A(f'v_add_f32 v{G2_BASE + 2 * k + 1}, v115, v{G2_BASE + 2 * k + 1}')


def g2_load(n):
    blk, kl = G2SEQ[n]
    return f'buffer_load_dwordx4 {vr(G2_H + 4 * (n % NH), 4)}, v{[vL16, vH4, vH4 + 1][kl // 4]}, {srd(S_WS)}, s{sHB + blk} offen offset:{1024 * (kl % 4)} sc1'


def g2_main(nxt, bg):
    LA = OPT['la2']

    def rdp(dst, slot):
        out = [f'ds_read_b128 {vr(dst + 4 * k, 4)}, v{aPR} offset:{slot * PS + 128 * (k >> 1) + 16 * (k & 1)}' for k in range(4)]
        out.append(f'ds_read_b128 {vr(dst + 16, 4)}, v{aPR + 1} offset:{slot * PS + 256}')
        return out
    side = {}

    def put(pos, x):
        side.setdefault(pos, []).append(x)
    place(side, bg, 2, 5 * (NGA - 8))
    for k, x in enumerate(A.capture(fin_finish)):
        put(6 + k + k // 4, [x])
    put(OPT['pb'], lambda: flag_publish(2))
    put(OPT['qb'], lambda: A(flag_ld(2)))
    put(OPT['cb'], lambda: (flag_check(2), stamp('hb')))
    m0 = 5 * NGA
    for b in range(3):
        for nt in range(5):
            put(m0 + 20 * (b + 1) + 4 + 2 * nt, lambda b=b, nt=nt: A(f'ds_write_b128 v{aPW + b}, {vr(G2_ACC + 20 * b + 4 * nt, 4)} offset:{64 * nt}'))
    m1 = m0 + 60
    put(m1 + 15, lambda: A('s_waitcnt lgkmcnt(0)\ns_barrier'))
    pos = m1 + 15
    for sl in range(3):
        for x in rdp(G2_ACC + 20 * sl, sl):
            put(pos, lambda x=x: A(x))
            pos += 1 if sl else 0
        pos += 0 if sl else 1
    ops = [f'v_fmac_f32 v{G2_BASE + k}, v{G2_GB + k}, v{G2_ACC + 20 * sl + k}' for sl in range(3) for k in range(20)]
    for p_ in range(m1 + 21, 240):
        n_ = 1 if p_ < m1 + 26 else 2
        for x in ops[:n_]:
            put(p_, lambda x=x: A(x))
        ops = ops[n_:]
    seen = set()
    for n, (blk, kl) in enumerate(G2SEQ):
        acc = G2_ACC + 20 * blk
        for nt in range(5):
            A(f'v_mfma_f32_16x16x32_bf16 {vr(acc + 4 * nt, 4)}, {ar((kl * 5 + nt) * 4, 4)}, {vr(G2_H + 4 * (n % NH), 4)}, {vr(acc + 4 * nt, 4) if blk in seen else 0}')
            m = 5 * n + nt
            for x in side.get(m, []):
                if callable(x):
                    x()
                else:
                    A.items.extend(x)
            if nt in (0, 3) and nxt < 48 and nxt <= n + LA and nxt - NH < n and (nxt < NGA or m >= OPT['cb']):
                A(g2_load(nxt))
                nxt += 1
        seen.add(blk)
        assert nxt > n + 1 or nxt == 48, n
    stamp('g2')
    for x in ops:
        A(x)
    pa = G2_ACC + 60
    for nt in range(5):
        A(f'ds_write_b128 v{aPW + 3}, {vr(pa + 4 * nt, 4)} offset:{64 * nt}')
    R = G2_ACC
    for x in rdp(R, 3):
        A(x)
    for k in range(10):
        pk('fma', R + 2 * k, R + 2 * k, G2_GB + 2 * k, G2_BASE + 2 * k)
        A(f'v_cvt_pk_bf16_f32 v{R + 20 + k}, v{R + 2 * k}, v{R + 2 * k + 1}')
        if k == 3:
            A(f'buffer_store_dwordx4 {vr(R + 20, 4)}, v{vOA}, {srd(S_OUT)}, 0 offen')
        if k == 7:
            A(f'buffer_store_dwordx4 {vr(R + 24, 4)}, v{vOA}, {srd(S_OUT)}, 0 offen offset:64')
    A(f'buffer_store_dwordx2 {vr(R + 28, 2)}, v{vOC}, {srd(S_OUT)}, 0 offen offset:128')


def mlp(slot):
    A.spread(A.capture(g1_pre), slot(9), 0, 0.9)
    flag_publish(0)
    stamp('pub0')
    A(flag_ld(0))
    A('s_barrier')
    for n in range(PRE):
        for x in g1_rd(0, n):
            A(x)
    g1_bias()
    flag_check(0)
    stamp('y2')
    LA = OPT['la1']
    for i in range(LA):
        A(g1_load(i))
    side = {}
    for i in range(LA, 40):
        side.setdefault((i - LA) * OPT['r1'] // 10, []).append(lambda i=i: A(g1_load(i)))
    place(side, [[x] for x in A.capture(late_addr)], 0, 78)
    place(side, slot(10), 60, 80)
    g1_part(0, side)
    A('s_barrier')
    stamp('g1a')
    A.spread(A.capture(lambda: [gelu_unit(u, r) for u in range(2) for r in range(2)]), slot(11), 0, 0.9)
    stamp('gelua')
    for n in range(PRE):
        for x in g1_rd(1, n):
            A(x)
    side = {}
    place(side, slot(12), 0, OPT['qa'] - 4)
    place(side, A.groups(fin_issue), 24, 30)
    side.setdefault(OPT['pa'], []).append(lambda: flag_publish(1))
    side.setdefault(OPT['qa'], []).append(lambda: A(flag_ld(1)))
    g1_part(1, side)
    A('s_barrier')
    stamp('g1b')
    LA = OPT['la2']
    hl = [A.capture(lambda n=n: A(g2_load(n))) for n in range(LA)]
    bg = slot(13)
    for r in range(2):
        if OPT['ca'] == r:
            flag_check(1)
            stamp('ha')
        k = 0 if r < OPT['ca'] else (len(hl) if r else len(hl) // 2)
        A.spread(A.capture(lambda: gelu_unit(2, r)), (bg if r == 0 else []) + hl[:k], 0, 0.9)
        hl = hl[k:]
    if OPT['ca'] == 2:
        flag_check(1)
        stamp('ha')
        A.emit(hl)
    stamp('gelub')
    g2_main(LA, slot(14))


def seq(*fns):
    def f():
        for x in fns:
            x()
    return f


def program():
    if OPT['fixed']:
        A('s_memrealtime s[98:99]')
    if OPT['stamps']:
        A('v_mov_b32 v255, 0')
    stamp('start')
    setup()
    gemv_store_addr()
    code_prefetch(30 * 1024)
    Q = {}

    def slot(k):
        out = []
        for name, cnt in (('P', SP), ('F', SF), ('W1', SW1), ('W2', SW2)):
            if cnt[k]:
                if not (OPT['nobg'] >> ['F', 'W1', 'W2', 'P'].index(name)) & 1:
                    out += Q[name][:cnt[k]]
                Q[name] = Q[name][cnt[k]:]
        return out

    x1_issue()
    roles()
    w2_fmt_prep()
    if not OPT['w2late']:
        w2_fmt_issue()
    if OPT['touch'] == 1:
        touch()
    if OPT['early']:
        k1_const_a()
    silu()
    stamp('silu')
    gemv_compute(G_W, sMODST)
    stamp('gemv')
    if OPT['touch'] == 2:
        touch()
    rotations()
    xid_store()
    filt_prep()
    k1_addr()
    Q['F'] = A.groups(filt_dma)
    Q['W1'] = A.groups(w1_dma)
    Q['W2'] = A.groups(w2_load)
    if SW1[0]:
        w1_prep()
    if not OPT['w2late']:
        A(f's_waitcnt vmcnt({after_last(lambda x: srd(S_W2) in x.text)})')
        w2_fmt_finish()
    if OPT['tt']:
        A(mod1_loads())
    late = (A.groups(gemv2_issue) if OPT['two'] else []) + (A.groups(w2_fmt_issue) if OPT['w2late'] else [])
    LP = [late if OPT['lp'] == k else [] for k in range(3)]
    A.spread(A.capture(ln1), LP[0] + slot(0), 0, 0.6)
    stamp('ln1')
    if not OPT['tt']:
        A(mod1_loads())
    if not SW1[0]:
        w1_prep()
    A.spread(A.capture(seq(k1_const_b, x_keep) if OPT['early'] else seq(k1_const_a, k1_const_b, x_keep)), LP[1] + slot(1), 0.1, 0.9)
    k1_poll()
    k1_head()
    A.spread(A.capture(k1_main), LP[2] + slot(2), 0, 0.9)
    stamp('k1')
    A.spread(A.capture(seq(k2_const, k2_addr)), slot(3), 0, 0.4)
    if OPT['w2late']:
        A(f's_waitcnt vmcnt({after_last(lambda x: srd(S_W2) in x.text)})')
        w2_fmt_finish()
    A(f's_waitcnt vmcnt({after_last(lambda x: srd(S_WI) in x.text)})\ns_barrier')
    rest = A.capture(seq(*([lambda: gemv_compute(G_W2, sMODS2)] if OPT['two'] else []), filt_finish, w2_prep, side_prep))
    cutd = len(rest) * OPT['td'] // 100
    A.items.extend(rest[:cutd])
    stamp('Tiss')
    A(k2_loads())
    A.spread(rest[cutd:], slot(4), 0.2, 1.0)
    k2_head()
    A.spread(A.capture(k2_main), slot(5) + A.groups(seq(xid_load, epoch_store, b2_issue, lambda: A(side_loads()))), 0, 0.92)
    stamp('k2')
    A.spread(A.capture(seq(k3_const, k3_ldaddr)), slot(6), 0, 0.4)
    rest = A.capture(seq(side_finish, k3_addr, xid_check, lambda: flag_prep(0)))
    cutd = len(rest) * OPT['tpd'] // 100
    if cutd:
        cutd = max(cutd, max(k for k, x in enumerate(rest) if x.kind == 'label') + 1)
    A.items.extend(rest[:cutd])
    stamp('Tpiss')
    A(k3_loads())
    A.spread(rest[cutd:], slot(7), 0.3, 1.0)
    k3_poll()
    k3 = A.capture(k3_main)
    cut0 = min(i for i, x in enumerate(k3) if x.op == 's_barrier') + 1
    cut = max(i for i, x in enumerate(k3) if x.kind == 'mfma') + 1
    bg = slot(8)
    n0 = SW1[8] if OPT['w2late'] else len(bg) // 4
    nk = n0 + (len(bg) - n0 + 6) * 40 // 100
    A.spread(k3[:cut0], bg[:n0])
    A.spread(k3[cut0:cut], bg[n0:nk])
    A.spread(k3[cut:], A.groups(b1_issue) + bg[nk:], 0, OPT['k3e'] / 100)
    k3_tail()
    stamp('k3')
    mlp(slot)
    stamp('end')
    if OPT['stamps']:
        A(f'''s_lshl_b32 s{sT0}, s{sME}, 10
        s_lshl_b32 s{sT1}, s{sW}, 8
        s_add_u32 s{sT0}, s{sT0}, s{sT1}
        s_add_u32 s{sT0}, s{sT0}, {WS_STAMP}
        v_writelane_b32 v255, s{sCNT}, 63
        v_writelane_b32 v255, s{sFAST}, 31
        v_lshlrev_b32 v{TMP}, 2, v{vL}
        buffer_store_dword v255, v{TMP}, {srd(S_WS)}, s{sT0} offen
        s_add_u32 s{sT0}, s{sT0}, 0x40000
        buffer_store_dword v254, v{TMP}, {srd(S_WS)}, s{sT0} offen''')
    if OPT['fixed']:
        if OPT['clean']:
            A('s_waitcnt vmcnt(0)\ns_barrier\nbuffer_wbl2 sc1\ns_waitcnt vmcnt(0)')
        if OPT['probe'] >= 0:
            A(f's_mul_i32 s97, s97, 4\ns_add_u32 s97, s97, {OPT["fixed"]}')
        else:
            A(f's_mov_b32 s97, {OPT["fixed"]}')
        A('''L_fix:
        s_memrealtime s[100:101]
        s_waitcnt lgkmcnt(0)
        s_sub_u32 s100, s100, s98
        s_cmp_lt_u32 s100, s97
        s_cbranch_scc1 L_fix''')
    A('L_end:')
    A('s_endpgm')


program()
hdr = open('cdna_kernels/%s.s.ref' % NAME).read().split('; Override launch')[0]
out = hdr
out += f'; @launch grid=(256,1,1) block=(256,1,1) lds={LDS_SIZE}\n'
out += f'''.amdgcn_target "amdgcn-amd-amdhsa--gfx950"
.text
.globl {NAME}_kernel
.p2align 8
.type {NAME}_kernel,@function
{NAME}_kernel:
'''
out += A.text()
out += RETRY.text()
out += f'''L_last:
    s_endpgm
.section .rodata,"a"
.p2align 6
.amdhsa_kernel {NAME}_kernel
  .amdhsa_next_free_vgpr 512
  .amdhsa_next_free_sgpr 102
  .amdhsa_accum_offset 256
  .amdhsa_group_segment_fixed_size 0
  .amdhsa_kernarg_size 104
  .amdhsa_user_sgpr_count 2
  .amdhsa_user_sgpr_kernarg_segment_ptr 1
  .amdhsa_system_sgpr_workgroup_id_x 1
.end_amdhsa_kernel
'''
open(sys.argv[1], 'w').write(out)
if OPT['stamps']:
    open(sys.argv[1] + '.stamps', 'w').write('\n'.join(STAMPS))
```

```python
import re

REG_RE = re.compile(r'^(-|abs\()?([vas])(?:(\d+)|\[(\d+):(\d+)\])\)?$')
TRANS = ('v_exp_f32', 'v_log_f32', 'v_rcp_f32', 'v_rsq_f32', 'v_sqrt_f32', 'v_sin_f32', 'v_cos_f32')


def regs_of(tok):
    tok = tok.strip()
    if tok == 'vcc':
        return [('s', 'vcc')]
    if tok == 'exec':
        return [('s', 'exec')]
    if tok in ('exec_lo', 'exec_hi'):
        return [('s', 'exec')]
    if tok in ('vcc_lo', 'vcc_hi'):
        return [('s', 'vcc')]
    if tok == 'm0':
        return [('s', 'm0')]
    m = REG_RE.match(tok)
    if not m:
        return []
    k = m.group(2)
    if m.group(3) is not None:
        return [(k, int(m.group(3)))]
    return [(k, i) for i in range(int(m.group(4)), int(m.group(5)) + 1)]


class Ins:
    def __init__(self, text):
        self.text = text
        t = text.split(';')[0].strip()
        self.label = t.endswith(':')
        self.directive = t.startswith('.')
        self.defs = []
        self.uses = []
        self.kind = 'other'
        self.op = ''
        if self.label or self.directive or not t:
            self.kind = 'label' if self.label else 'dir'
            self.base = ''
            return
        parts = t.split(None, 1)
        op = parts[0]
        self.op = op
        rest = parts[1] if len(parts) > 1 else ''
        ops = []
        cur = ''
        depth = 0
        for ch in rest:
            if ch in '[(':
                depth += 1
            if ch in '])':
                depth -= 1
            if ch == ',' and depth == 0:
                ops.append(cur.strip())
                cur = ''
            else:
                cur += ch
        if cur.strip():
            ops.append(cur.strip())
        mods = ''
        if ops:
            last = ops[-1].split(None, 1)
            if len(last) > 1:
                ops[-1] = last[0]
                mods = last[1]
        self.ops = ops
        self.mods = mods
        R = [regs_of(o) for o in ops]
        flat = lambda l: [r for x in l for r in x]
        base = op.replace('_e32', '').replace('_e64', '').replace('_dpp', '').replace('_sdwa', '')
        self.base = base
        self.dpp = op.endswith('_dpp')
        if op.startswith('v_mfma'):
            self.kind = 'mfma'
            self.defs = R[0]
            self.srcA, self.srcB, self.srcC = R[1], R[2], R[3]
            self.uses = flat(R[1:])
            self.passes = 8 if '32x32' in op else 4
        elif op.startswith('v_'):
            self.kind = 'valu'
            if base.startswith('v_cmp'):
                self.defs = R[0]
                self.uses = flat(R[1:])
            elif base in ('v_swap_b32', 'v_permlane16_swap_b32', 'v_permlane32_swap_b32'):
                self.defs = flat(R)
                self.uses = flat(R)
            elif base in ('v_add_co_u32', 'v_addc_co_u32', 'v_sub_co_u32'):
                self.defs = R[0] + R[1]
                self.uses = flat(R[2:])
            elif base == 'v_nop':
                pass
            else:
                self.defs = R[0]
                self.uses = flat(R[1:])
                if base in ('v_fmac_f32', 'v_dot2c_f32_bf16', 'v_writelane_b32') or self.dpp or op.endswith('_sdwa'):
                    self.uses = self.uses + R[0]
        elif op.startswith('ds_'):
            self.kind = 'ds'
            if op.startswith('ds_read') or op.startswith('ds_bpermute') or op.startswith('ds_permute') or op.startswith('ds_swizzle'):
                self.defs = R[0]
                self.uses = flat(R[1:])
            else:
                self.uses = flat(R)
            if 'addtid' in op:
                self.uses = self.uses + [('s', 'm0')]
        elif op.startswith('buffer_') or op.startswith('global_'):
            self.kind = 'vmem'
            self.store = 'store' in op
            self.lds = ' lds' in (' ' + mods) or op.startswith('global_load_lds')
            if op in ('buffer_wbl2', 'buffer_inv'):
                pass
            elif self.lds:
                self.uses = flat(R) + [('s', 'm0')]
            elif self.store:
                self.uses = flat(R)
                if op.startswith('buffer_'):
                    self.data = R[0]
                else:
                    self.data = R[1]
            else:
                self.defs = R[0]
                self.uses = flat(R[1:])
                if 'd16' in op:
                    self.uses = self.uses + R[0]
        elif op.startswith('s_load') or op in ('s_memtime', 's_memrealtime'):
            self.kind = 'smem'
            self.defs = R[0]
            self.uses = flat(R[1:])
        elif op == 's_waitcnt':
            self.kind = 'wait'
        elif op == 's_nop':
            self.kind = 'nop'
            self.n = int(ops[0], 0) + 1
        elif op in ('s_barrier', 's_endpgm', 's_sleep', 's_setprio'):
            self.kind = 'sctl'
        elif op.startswith('s_cbranch') or op == 's_branch':
            self.kind = 'branch'
            if 'vcc' in op:
                self.uses = [('s', 'vcc')]
        elif op.startswith('s_cmp') or op.startswith('s_bitcmp'):
            self.kind = 'salu'
            self.uses = flat(R)
        elif op.startswith('s_'):
            self.kind = 'salu'
            self.defs = R[0]
            self.uses = flat(R[1:])
            if 'saveexec' in op:
                self.defs = self.defs + [('s', 'exec')]
            if base in ('s_addk_i32', 's_mulk_i32', 's_cmov_b32'):
                self.uses = self.uses + R[0]
        else:
            raise ValueError('unknown instruction ' + text)


class Asm:
    def __init__(self):
        self.items = []
        self.smart = False

    def __call__(self, text):
        for line in text.split('\n'):
            line = line.strip()
            if line:
                if line.startswith('v_cndmask_b32 '):
                    line = 'v_cndmask_b32_e64' + line[len('v_cndmask_b32'):]
                self.items.append(Ins(line))

    def blob(self, text):
        sub = Asm()
        sub(text)
        i = Ins('.blob')
        i.kind = 'blob'
        i.blob = sub.finish()
        self.items.append(i)

    def capture(self, fn):
        old = self.items
        self.items = []
        fn()
        got = self.items
        self.items = old
        return got

    @staticmethod
    def cost(i):
        if i.kind in ('label', 'dir', 'blob'):
            return 0
        if i.kind == 'mfma':
            return 4 * i.passes
        if i.kind == 'valu' and (i.base in TRANS or 'swap' in i.base):
            return 8
        if i.op == 's_barrier':
            return 200
        if i.kind == 'ds':
            return 12
        return 4

    def weave(self, fg, bg, gap, start=0):
        bg = list(bg)
        t = 0
        nxt = start
        noins = False
        for k, i in enumerate(fg):
            reads_scc = i.op.startswith('s_cselect') or i.op.startswith('s_cbranch') or i.op.startswith('s_addc')
            if i.kind == 'label' and i.text.startswith('L_chk'):
                noins = True
            if bg and t >= nxt and not reads_scc and not noins and i.kind != 'label':
                self.items.extend(bg.pop(0))
                nxt = t + gap
            self.items.append(i)
            if i.kind == 'label' and i.text.startswith('L_ok'):
                noins = False
            if i.kind == 'salu' and ('s', 'exec') in i.defs:
                noins = not i.text.strip().endswith('-1')
            if i.kind == 'branch' and 'L_slow' in i.text:
                noins = True
            if i.kind == 'label' and i.text.startswith('L_join'):
                noins = False
            t += self.cost(i)
        return bg

    def spread(self, fg, bg, lo=0.0, hi=1.0):
        tot = sum(self.cost(i) for i in fg)
        n = len(bg)
        bg = list(bg)
        times = [tot * (lo + (hi - lo) * k / max(n, 1)) for k in range(n)]
        t = 0
        noins = False
        prev = ''
        for i in fg:
            reads_scc = i.op.startswith('s_cselect') or i.op.startswith('s_cbranch') or i.op.startswith('s_addc')
            if i.kind == 'label' and i.text.startswith('L_chk'):
                noins = True
            ok = not reads_scc and not noins and i.kind not in ('label', 'blob')
            if self.smart and (i.kind in ('ds', 'mfma') or i.op == 's_barrier'):
                ok = False
            while bg and t >= times[0] and ok:
                self.items.extend(bg.pop(0))
                times.pop(0)
                if not (self.smart and prev in ('ds',)):
                    break
            prev = i.kind
            self.items.append(i)
            if i.kind == 'label' and i.text.startswith('L_ok'):
                noins = False
            if i.kind == 'salu' and ('s', 'exec') in i.defs:
                noins = not i.text.strip().endswith('-1')
            t += self.cost(i)
        self.emit(bg)

    def gaps(self, fg, bg, lo=0.0, hi=1.0, slack=250):
        n = len(bg)
        t = 0
        times = []
        cap = {}
        for k, i in enumerate(fg):
            times.append(t)
            prev = fg[k - 1] if k else None
            c = 0
            if prev is not None:
                if prev.kind == 'mfma':
                    c = 1 if prev.passes == 8 or i.kind != 'valu' or i.base.startswith('v_pk') else 0
                    if i.kind != 'mfma' and (i.kind == 'valu' and set(i.uses) & set(prev.defs) or i.base.startswith('v_pk') if i.kind == 'valu' else False):
                        c = 2
                elif i.kind == 'wait' and 'lgkmcnt(0)' in i.text:
                    c = 2
                elif prev.kind == 'ds' and prev.defs and i.kind in ('valu', 'mfma', 'vmem') and fg[k - 3].kind == 'ds':
                    c = 2 if i.kind == 'valu' else 1
                elif i.kind == 'valu' and (i.dpp or 'swap' in i.base) and prev.kind == 'valu' and set(prev.defs) & set(i.uses):
                    c = 1
            if c:
                cap[k] = c
            t += self.cost(i)
        tot = t
        marks = [k for k in sorted(cap) for _ in range(cap[k]) if lo * tot <= times[k] <= hi * tot]
        if n <= len(marks):
            pos = [marks[(2 * j + 1) * len(marks) // (2 * n)] for j in range(n)]
        else:
            pos = list(marks)
            for _ in range(n - len(marks)):
                edges = [0] + sorted(pos) + [max(k for k in range(len(fg)) if times[k] <= hi * tot)]
                a, b = max(zip(edges, edges[1:]), key=lambda e: times[e[1]] - times[e[0]])
                mid = (times[a] + times[b]) / 2 if a else times[b] / 3
                ok = [k for k in range(a, b + 1) if times[k] >= mid and fg[k].kind == 'valu']
                pos.append(ok[0] if ok else b)
            pos.sort()
        at = {}
        for j in range(n):
            at.setdefault(pos[j], []).append(bg[j])
        for k, i in enumerate(fg):
            self.emit(at.get(k, []))
            self.items.append(i)
        self.emit(at.get(len(fg), []))

    def merge(self, fg, fq):
        out = []
        fq = list(fq)
        for i in fg:
            if i.kind == 'dir' and i.text.startswith('.fill'):
                p = i.text.split()
                n = int(p[1])
                k = 0
                while fq and n >= self.cost(fq[0]):
                    n -= self.cost(fq[0])
                    out.append(fq.pop(0))
                    k += 1
                if len(p) > 2 and int(p[2]) > k:
                    out.append(Ins('s_nop %d' % (int(p[2]) - k - 1)))
                continue
            u, d = set(i.uses), set(i.defs)
            last = -1
            for k, x in enumerate(fq):
                if set(x.defs) & (u | d) or set(x.uses) & d:
                    last = k
            out += fq[:last + 1]
            fq = fq[last + 1:]
            out.append(i)
        return out + fq

    def groups(self, fn):
        out = []
        cur = []
        for i in self.capture(fn):
            cur.append(i)
            if i.kind == 'vmem':
                out.append(cur)
                cur = []
        if cur:
            out[-1].extend(cur)
        return out

    def emit(self, groups):
        for g in groups:
            self.items.extend(g)

    def finish(self):
        out = []
        vm = []
        lg = []
        hist = []
        pos = [0]

        def issue(ins):
            out.append(ins)
            if ins.kind in ('label', 'dir'):
                return
            hist.append((pos[0], ins))
            pos[0] += ins.n if ins.kind == 'nop' else 1
            while hist and pos[0] - hist[0][0] > 40:
                hist.pop(0)

        def parse_wait(ins):
            t = ins.text
            m = re.search(r'vmcnt\((\d+)\)', t)
            if m:
                n = int(m.group(1))
                del vm[:max(0, len(vm) - n)]
            m = re.search(r'lgkmcnt\((\d+)\)', t)
            if m:
                n = int(m.group(1))
                if n == 0:
                    del lg[:]
                elif all(k == 'ds' for k, _ in lg):
                    del lg[:max(0, len(lg) - n)]

        for ins in self.items:
            if ins.kind == 'dir' and ins.text.startswith('.segment'):
                del vm[:]
                del lg[:]
                del hist[:]
                continue
            if ins.kind == 'blob':
                out.extend(ins.blob)
                continue
            if ins.kind in ('label', 'dir'):
                out.append(ins)
                continue
            if ins.kind == 'wait':
                parse_wait(ins)
                issue(ins)
                continue
            touched = set(ins.defs) | set(ins.uses)
            need_vm = None
            for i, d in enumerate(vm):
                if d & touched:
                    need_vm = len(vm) - 1 - i
            need_lg = None
            for i, (k, d) in enumerate(lg):
                if d & touched:
                    need_lg = len(lg) - 1 - i
            if need_lg is not None and any(k == 'smem' for k, _ in lg):
                need_lg = 0
            if need_vm is not None or need_lg is not None:
                w = 's_waitcnt'
                if need_vm is not None:
                    w += ' vmcnt(%d)' % min(need_vm, 63)
                if need_lg is not None:
                    w += ' lgkmcnt(%d)' % min(need_lg, 15)
                wi = Ins(w)
                parse_wait(wi)
                issue(wi)
            need = 0
            uses = set(ins.uses)
            defs = set(ins.defs)
            for p, h in hist:
                dist = pos[0] - p - 1
                req = 0
                hd = set(h.defs)
                if h.kind == 'valu':
                    vd = {r for r in hd if r[0] in 'va'}
                    sd = {r for r in hd if r[0] == 's'}
                    if ins.kind == 'mfma' and (vd & uses):
                        req = max(req, 2)
                    if ins.kind == 'valu':
                        if h.base in TRANS and (vd & uses):
                            req = max(req, 1)
                        if ins.dpp and (vd & uses):
                            req = max(req, 2)
                        if ins.base.startswith('v_permlane') and (vd & uses):
                            req = max(req, 2)
                        if ins.base in ('v_readlane_b32', 'v_readfirstlane_b32') and (vd & uses):
                            req = max(req, 1)
                        if sd & uses:
                            req = max(req, 4 if ins.base in ('v_readlane_b32', 'v_writelane_b32') else 2)
                        if (h.op.endswith('_sdwa') or 'op_sel' in h.mods) and (vd & (uses | defs)):
                            req = max(req, 1 if not h.base.startswith('v_pk_') else 0)
                    if ins.kind == 'vmem' and (sd & uses):
                        req = max(req, 5)
                    if ins.kind in ('salu', 'smem') and (sd & uses):
                        req = max(req, 1)
                if h.kind == 'mfma':
                    long = 12 if h.passes == 8 else 8
                    if ins.kind == 'mfma':
                        if hd & (set(ins.srcA) | set(ins.srcB)):
                            req = max(req, long)
                        c = set(ins.srcC)
                        if hd & c and not (ins.srcC == h.defs and ins.passes == h.passes):
                            req = max(req, long - 2)
                        if (hd & defs) and not (ins.srcC == h.defs and ins.defs == h.defs and ins.passes == h.passes):
                            req = max(req, long - 2)
                    elif ins.kind in ('valu', 'vmem', 'ds'):
                        if hd & (uses | defs):
                            req = max(req, long)
                        if set(h.srcC) & defs:
                            req = max(req, 7 if h.passes == 8 else 3)
                if h.kind == 'vmem' and getattr(h, 'store', False) and len(h.data) >= 3:
                    if set(h.data) & defs:
                        req = max(req, 2)
                if h.kind == 'ds' and not h.defs and ins.kind == 'valu' and (set(h.uses) & defs) and ('b128' in h.op or 'b96' in h.op or 'write2_b64' in h.op):
                    req = max(req, 2)
                if h.kind == 'salu' and ('s', 'm0') in hd and ('s', 'm0') in uses:
                    req = max(req, 1)
                if h.kind == 'salu' and ('s', 'exec') in hd and ins.kind == 'valu' and (ins.dpp or ins.base.startswith('v_permlane')):
                    req = max(req, 1)
                need = max(need, req - dist)
            while need > 0:
                n = min(need, 16)
                issue(Ins('s_nop %d' % (n - 1)))
                need -= n
            issue(ins)
            if ins.kind == 'vmem':
                vm.append(set(ins.defs))
            elif ins.kind == 'ds':
                lg.append(('ds', set(ins.defs)))
            elif ins.kind == 'smem':
                lg.append(('smem', set(ins.defs)))
        return out

    def text(self):
        lines = []
        for i in self.finish():
            lines.append(i.text if i.kind in ('label', 'dir') else '    ' + i.text)
        return '\n'.join(lines) + '\n'


def vr(a, n=1):
    return 'v%d' % a if n == 1 else 'v[%d:%d]' % (a, a + n - 1)


def ar(a, n=1):
    return 'a%d' % a if n == 1 else 'a[%d:%d]' % (a, a + n - 1)


def sr(a, n=1):
    return 's%d' % a if n == 1 else 's[%d:%d]' % (a, a + n - 1)


def f2u(x):
    import struct
    return '0x%08x' % struct.unpack('<I', struct.pack('<f', x))[0]
```

```python
import sys, os
sys.path.insert(0, os.path.dirname(os.path.abspath(__file__)))
from asmlib import Asm, vr, ar, sr, f2u

NAME = 'adaLN_cond__spectral_gfnet__mixer_channel_mlp__prompt'
OPT = dict(stamps=0, fixed=0, probe=-1, slow=0, fine=0, clean=0, nobg=0, mask=1, x1sc=1, bs=128, xfirst=0, um=0,
           p0='XRUSGTIfKFLMA', m2=2, late=0, fk=0, g1=56, g2=56, g3=40, smart=0, tc=0, k1s=0, tw=0, lf=0, osc=0, ysc=0, inl=0, bo=0, bf=0, now=0, fp=45, uf=1, ua=1, sk=0, cutx=0, hr=0, dslot=-1, dn=0, gp=0, gs=250,
           F='0,3,2,1', W1='0,0,4,4,0,8,4,0,0,0', WB='0,0,0,0,0,10,0', W2='6,4,0,32,4,0,6,6,2,0',
           td=50, tpd=80, la1=9, la2=8, k1e=90, k2e=82, k3e=85, s3e=40, s6e=40, g1s=40, gae=100, fq=28,
           pa=22, qa=32, oa=2, pb=24, qb=62, cb=92, r1=16, ca=1)
for a in sys.argv[2:]:
    k, v = a.split('=')
    assert k in OPT, k
    OPT[k] = v if isinstance(OPT[k], str) else int(v)
SF = [int(x) for x in OPT['F'].split(',')] + [0] * 11
SW1 = [int(x) for x in OPT['W1'].split(',')] + [0] * 5
SWB = [0] * 5 + [int(x) for x in OPT['WB'].split(',')] + [0] * 3
SW2 = [0] * 5 + [int(x) for x in OPT['W2'].split(',')]
assert sum(SF) == 6 and sum(SW1) == 20 and sum(SWB) == 10 and sum(SW2) == 60
assert OPT['bs'] % 8 == 0 or not OPT['sk'] & 6
assert SW2[14] <= 20 and sum(SW1[:2]) <= 14
assert not OPT['late'] or sum(SW2[:8]) + sum(SWB[:8]) == 0
OPT.update(spread=1, two=0, ub=0, rot=0)

WS_EPOCH = 0x0
WS_XID = 0x400
WS_FLAG = 0x8000
WS_MOD = 0x10000
MP = 15360
BS = 128 * OPT['bs']
WS_T = 0x100000
WS_TP = WS_T + 256 * BS
WS_Y2 = WS_T
WS_H = 0xA00000
WS_W1P = 0x1200000
WS_W2P = 0x1440000
WS_STAMP = 0x1800000
WS_SIZE = 268435456
SKIP = 0x2000000 + 128
OOB = 0x7ff00000

BIG = 0
B_N, B_W1, B_W2, B_F = 15360, 20480, 22528, 24576
SCR = 122880
L_X1E = SCR
L_M1 = SCR + 24576
L_K2I = SCR + 24576
L_K2O = SCR
L_M2 = SCR + 12416
L_B1 = L_M2 + 9216
L_K3I = SCR + 24576
L_Y = SCR
L_Y2 = SCR + 24576
LDS_SIZE = 163840

S_X, S_WR, S_WI, S_W1, S_B1, S_W2, S_B2, S_C, S_WM, S_OUT, S_WS = [4 + 4 * i for i in range(11)]
sME, sW, sTAG, sXC, sG, sK1, sCL, sJ = range(48, 56)
sT0, sT1, sT2, sT3, sT4, sT5, sT6, sT7 = range(56, 64)
sM1, sM2 = 64, 66
sMODST, sW2ST, sFSH, sPID = 68, 69, 70, 71
sTB = 72
sLD = 76
sST = 80
sW2O = 84
sWB = 85
sDW = 70 if OPT['hr'] else 49
sW1O, sW1E = 90, 91
sBGO, sBG2 = 92, 93
sXID, sFAST, sCNT = 94, 95, 96
sSTAMP = 98

OSC = ['', ' sc1', ' nt', ' sc0 sc1'][OPT['osc']]
YSC = ['', ' sc1', ' nt'][OPT['ysc']]
A = Asm()
A.smart = bool(OPT['smart'])
RETRY = Asm()
nstamp = [0]
STAMPS = []


def srd(s):
    return sr(s, 4)


def stamp(name):
    if OPT['fine'] and name in ('silu', 'gemv', 'ln1', 'Tiss', 'Tpiss', 'pub0', 'y2', 'g1', 'gelu', 'pub1', 'h', 'g2'):
        return
    if not OPT['stamps']:
        if OPT['probe'] == nstamp[0]:
            A('s_memrealtime s[100:101]\ns_waitcnt lgkmcnt(0)\ns_sub_u32 s97, s100, s98')
        nstamp[0] += 1
        return
    i = nstamp[0]
    nstamp[0] += 1
    A(f'''s_memrealtime {sr(sSTAMP, 2)}
    s_memtime {sr(sSTAMP + 2, 2)}
    s_waitcnt lgkmcnt(0)
    v_writelane_b32 v255, s{sSTAMP}, {i}
    v_writelane_b32 v255, s{sSTAMP + 2}, {i + 32}''')
    STAMPS.append(name)


def fine(ph, name):
    if OPT['fine'] == ph:
        stamp(name)


def masked(loads, tagregs):
    if not OPT['mask']:
        return loads
    out = ''
    for ld, r in zip(loads.strip().split('\n'), tagregs):
        nlab[0] += 1
        out += f'v_cmp_ne_u32 vcc, s{sTAG}, v{r}\ns_cbranch_vccz L_m{nlab[0]}\ns_mov_b64 exec, vcc\n{ld}\ns_mov_b64 exec, -1\nL_m{nlab[0]}:\n'
    return out


nlab = [0]


def poll_check(label, loads, bad_cmp):
    if OPT['inl'] and label not in ('mod2', 'fl2'):
        A(f'L_pre_{label}:\ns_branch L_chk_{label}')
        A.blob(f'''L_retry_{label}:
        s_sub_u32 s{sCNT}, s{sCNT}, 1
        s_cmp_lt_i32 s{sCNT}, 0
        s_cbranch_scc1 L_ok_{label}
        {loads}
        s_waitcnt vmcnt(0)''')
        A(f'L_chk_{label}:')
        A(bad_cmp)
        A(f's_cbranch_vccnz L_retry_{label}')
        A(f'L_ok_{label}:')
        return
    A(f'L_chk_{label}:')
    A(bad_cmp)
    A(f's_cbranch_vccnz L_retry_{label}')
    A(f'L_ok_{label}:')
    RETRY('.segment')
    RETRY(f'''L_retry_{label}:
    s_sub_u32 s{sCNT}, s{sCNT}, 1
    s_cmp_lt_i32 s{sCNT}, 0
    s_cbranch_scc1 L_ok_{label}''')
    bo = OPT['bf'] if label.startswith('fl') else OPT['bo']
    if bo:
        RETRY(f's_sleep {bo}')
    RETRY(loads)
    RETRY(f'''s_waitcnt vmcnt(0)
    s_branch L_chk_{label}''')


def tagcheck(regs, tmp):
    if len(regs) == 1:
        return f'v_cmp_ne_u32 vcc, s{sTAG}, v{regs[0]}'
    s = f'v_min3_u32 v{tmp}, v{regs[0]}, v{regs[1]}, v{regs[2]}\n'
    s += f'v_max3_u32 v{tmp + 1}, v{regs[0]}, v{regs[1]}, v{regs[2]}\n'
    s += f'v_min3_u32 v{tmp}, v{tmp}, v{regs[3]}, s{sTAG}\n'
    s += f'v_max3_u32 v{tmp + 1}, v{tmp + 1}, v{regs[3]}, s{sTAG}\n'
    s += f'v_cmp_ne_u32 vcc, v{tmp}, v{tmp + 1}\n'
    return s


def sincos(ang, c, s):
    A(f'v_cos_f32 v{c}, v{ang}')
    A(f'v_sin_f32 v{s}, v{ang}')


def fmamk(d, a, k, b):
    if k == 0:
        A(f'v_mov_b32 v{d}, v{b}')
    elif k == 1:
        A(f'v_add_f32 v{d}, v{a}, v{b}')
    else:
        A(f'v_fmamk_f32 v{d}, v{a}, {f2u(k)}, v{b}')


def unpack(lo, hi, src):
    A(f'v_lshlrev_b32 v{lo}, 16, v{src}')
    A(f'v_and_b32 v{hi}, 0xffff0000, v{src}')


def mod5(d, src, tmp):
    A(f'v_mul_u32_u24 v{tmp}, 205, v{src}')
    A(f'v_lshrrev_b32 v{tmp}, 10, v{tmp}')
    A(f'v_mad_i32_i24 v{d}, v{tmp}, -5, v{src}')


def pk(op, d, *src, mods=''):
    A(f'v_pk_{op}_f32 {vr(d, 2)}, ' + ', '.join(vr(s, 2) if isinstance(s, int) else s for s in src) + (' ' + mods if mods else ''))


NEG1 = 'neg_lo:[0,1] neg_hi:[0,1]'

vL = 1
vL31, vH = 2, 3
vL15, vQ = 4, 5
vL16, vT16 = 6, 7
vLX = 254
vLW = vLX if OPT['sk'] & 1 else vL16
vLT = vLX if OPT['sk'] & 2 else vL16
vLY = vLX if OPT['sk'] & 4 else vL16
TMP = 8
vW1 = 240
vXID = 243
vBG = 244
vFL = 250


def setup():
    A(f'''s_cmp_ge_u32 s2, 256
    s_cbranch_scc1 L_end
    s_load_dwordx8 s[80:87], s[0:1], 64
    s_load_dwordx2 s[88:89], s[0:1], 96
    s_load_dwordx16 s[64:79], s[0:1], 0
    s_and_b32 s{sXC}, s2, 7
    s_lshr_b32 s{sG}, s2, 3
    s_lshl_b32 s{sME}, s{sXC}, 5
    s_or_b32 s{sME}, s{sME}, s{sG}
    s_mov_b32 s{sCNT}, 200000
    v_and_b32 v{vL}, 63, v0
    v_lshrrev_b32 v{TMP}, 6, v0
    v_and_b32 v{vL31}, 31, v0
    v_readfirstlane_b32 s{sW}, v{TMP}
    v_lshrrev_b32 v{vH}, 5, v{vL}
    v_and_b32 v{vL15}, 15, v0
    v_lshrrev_b32 v{vQ}, 4, v{vL}
    v_lshlrev_b32 v{vL16}, 4, v{vL}
    v_lshlrev_b32 v{vT16}, 4, v0''')
    sizes = {S_X: 2621440, S_WR: 1314816, S_WI: 1314816, S_W1: 1966080, S_B1: 3072, S_W2: 1966080, S_B2: 1280,
             S_C: 1280, S_WM: 4915200, S_OUT: 2621440, S_WS: WS_SIZE}
    for s in sizes:
        A(f's_mov_b32 s{s + 2}, {sizes[s]}')
        A(f's_mov_b32 s{s + 3}, 0x00020000')
    gemv_addr()
    A('s_waitcnt lgkmcnt(0)')
    src = {S_X: 64, S_WR: 66, S_WI: 68, S_W1: 72, S_B1: 74, S_W2: 76, S_B2: 78, S_C: 80, S_WM: 82, S_OUT: 84, S_WS: 88}
    for s in (S_WM, S_C):
        A(f's_mov_b64 {sr(s, 2)}, {sr(src[s], 2)}')
    if OPT['xfirst']:
        A(f's_mov_b64 {sr(S_X, 2)}, {sr(src[S_X], 2)}')
        x1_issue()
    gemv_issue()
    A(f's_mov_b64 {sr(S_WS, 2)}, s[88:89]')
    A(f's_load_dword s{sTAG}, {sr(S_WS, 2)}, {WS_EPOCH}')
    for s in (S_X, S_W2, S_WR, S_WI, S_W1, S_B1, S_B2, S_OUT):
        A(f's_mov_b64 {sr(s, 2)}, {sr(src[s], 2)}')


def roles():
    A(f'''s_sub_u32 s{sT0}, 8, s{sXC}
    s_and_b32 s{sT0}, s{sT0}, 7
    s_cmp_lt_u32 s{sG}, 16
    s_cselect_b32 s{sK1}, s{sXC}, s{sT0}
    s_mul_i32 s{sWB}, s{sW}, 30720''')
    b = {1: 0, 2: 1, 4: 2, 8: 3}[OPT['spread']]
    A(f'''s_lshr_b32 s{sT0}, s{sXC}, {b}
    s_lshl_b32 s{sT0}, s{sT0}, {1 + b}
    s_lshr_b32 s{sT1}, s{sG}, {4 - b}
    s_or_b32 s{sCL}, s{sT0}, s{sT1}
    s_and_b32 s{sT0}, s{sXC}, {(1 << b) - 1}
    s_lshl_b32 s{sT0}, s{sT0}, {4 - b}
    s_and_b32 s{sT1}, s{sG}, {(1 << (4 - b)) - 1}
    s_or_b32 s{sJ}, s{sT0}, s{sT1}
    s_lshl_b32 s{sPID}, s{sCL}, 4
    s_or_b32 s{sPID}, s{sPID}, s{sJ}''')
    cols(sCA, sCB, sJ)
    A(f'''v_add_u32 v{vLX}, {SKIP}, v{vL16}
    s_mov_b64 vcc, 0xff000000
    v_cndmask_b32 v{vLX}, v{vL16}, v{vLX}, vcc''')


sCA, sCB = 88, 89
POS = sum(p << (2 * i) for i, p in enumerate([1, 0, 1, 2, 1, 1, 1, 1]))


def cols(da, db, j):
    A(f'''s_and_b32 s{sT5}, s{j}, 14
    s_lshr_b32 s{sT6}, {POS}, s{sT5}
    s_and_b32 s{sT6}, s{sT6}, 3
    s_mul_i32 s{sT5}, s{sT5}, 3
    s_and_b32 s{sT7}, s{j}, 1
    s_lshl_b32 s{db}, s{sT6}, 1
    s_add_u32 s{db}, s{db}, s{sT5}
    s_add_u32 s{db}, s{db}, s{sT7}
    s_lshl_b32 s{sT7}, s{sT7}, 1
    s_cmp_eq_u32 s{sT6}, s{sT7}
    s_cselect_b32 s{sT7}, 1, s{sT7}
    s_lshl_b32 s{sT7}, s{sT7}, 1
    s_add_u32 s{da}, s{sT5}, s{sT7}''')


def touch_w():
    if OPT['now'] & 2:
        return
    d = 247
    if OPT['tc'] == 0:
        A(f"""s_lshl_b32 s{sBGO}, s{sCL}, 2
        s_add_u32 s{sBGO}, s{sBGO}, s{sW}
        s_mul_i32 s{sBGO}, s{sBGO}, {10 * 48}
        s_add_u32 s{sBGO}, s{sBGO}, s{sCA}
        s_lshl_b32 s{sBGO}, s{sBGO}, 6
        v_min_u32 v{d}, 9, v{vL}
        v_mul_u32_u24 v{d}, 3072, v{d}
        buffer_load_dword v{vXID}, v{d}, {srd(S_W1)}, s{sBGO} offen""")
    else:
        A(f"""s_lshl_b32 s{sBGO}, s{sME}, 2
        s_add_u32 s{sBGO}, s{sBGO}, s{sW}
        s_mul_i32 s{sBGO}, s{sBGO}, 1920
        v_min_u32 v{d}, 14, v{vL}
        v_lshlrev_b32 v{d}, 7, v{d}
        buffer_load_dword v{vXID}, v{d}, {srd(S_W1)}, s{sBGO} offen""")
        if OPT['tc'] == 2:
            A(f'buffer_load_dword v{d}, v{d}, {srd(S_W2)}, s{sBGO} offen')


def touch():
    t = TMP
    if OPT['tw'] == 0:
        touch_w()
    A(f'''s_lshl_b32 s{sT0}, s{sG}, 2
    s_add_u32 s{sT0}, s{sT0}, s{sW}
    s_lshl_b32 s{sT0}, s{sT0}, 4
    s_add_u32 s{sT0}, s{sT0}, s{sXC}
    s_mul_i32 s{sT0}, s{sT0}, 642
    s_and_b32 s{sT0}, s{sT0}, -4
    v_min_u32 v{t}, 5, v{vL31}
    v_lshlrev_b32 v{t}, 7, v{t}
    v_mul_u32_u24 v{t + 1}, {8 * 642}, v{vH}
    v_add_u32 v{t}, v{t}, v{t + 1}
    buffer_load_dword v248, v{t}, {srd(S_WR)}, s{sT0} offen
    buffer_load_dword v249, v{t}, {srd(S_WI)}, s{sT0} offen''')


def pid_to_me(d, p, t1):
    b = {1: 0, 2: 1, 4: 2, 8: 3}[OPT['spread']]
    if b == 0:
        A(f's_mov_b32 s{d}, s{p}')
        return
    A(f'''s_lshr_b32 s{d}, s{p}, {5 + b}
    s_lshl_b32 s{d}, s{d}, {5 + b}
    s_bfe_u32 s{t1}, s{p}, {(b << 16) | (4 - b)}
    s_lshl_b32 s{t1}, s{t1}, 5
    s_or_b32 s{d}, s{d}, s{t1}
    s_bfe_u32 s{t1}, s{p}, {((1 + b) << 16) | 4}
    s_lshl_b32 s{t1}, s{t1}, {4 - b}
    s_or_b32 s{d}, s{d}, s{t1}
    s_and_b32 s{t1}, s{p}, {(1 << (4 - b)) - 1}
    s_or_b32 s{d}, s{d}, s{t1}''')


G_C = 188
vGS, vGM, vGA = 194, 195, 236
G_W2 = 216
sGW, sMODS2 = 89, 97
G_W = 32
G_ACC = 52


def gemv_addr():
    A(f'''s_cmp_lt_u32 s2, 240
    s_cselect_b32 s{sT0}, s2, 0
    s_and_b32 s{sT1}, s{sT0}, 3''')
    if OPT['um']:
        A(f'''s_bfe_u32 s{sT2}, s{sT0}, 0x10002
        s_mul_i32 s{sT2}, s{sT2}, 30
        s_lshr_b32 s{sT0}, s{sT0}, 3
        s_add_u32 s{sT0}, s{sT0}, s{sT2}''')
    else:
        A(f's_lshr_b32 s{sT0}, s{sT0}, 2')
    A(f'''    s_lshl_b32 s{sT0}, s{sT0}, 2
    s_add_u32 s{sT0}, s{sT0}, s{sW}
    s_mul_i32 s{sT2}, s{sT1}, {160 * 7680}
    s_lshl_b32 s{sT3}, s{sT0}, 5
    s_add_u32 s{sT2}, s{sT2}, s{sT3}
    s_mul_i32 s{sT4}, s{sT1}, 320
    s_mul_i32 s{sT1}, s{sT1}, {MP}
    s_lshl_b32 s{sT3}, s{sT0}, 6
    s_add_u32 s{sT5}, s{sT1}, s{sT3}
    v_lshrrev_b32 v{TMP}, 1, v{vL}
    v_lshlrev_b32 v{TMP + 1}, 1, v{TMP}
    v_lshlrev_b32 v{TMP + 3}, 3, v{TMP}
    v_mul_u32_u24 v{TMP}, 7680, v{TMP}
    v_and_b32 v{TMP + 2}, 1, v0
    v_lshlrev_b32 v{TMP + 2}, 4, v{TMP + 2}
    v_lshl_add_u32 v{vGA}, v{TMP}, 2, v{TMP + 2}
    v_add_u32 v{vGA + 2}, v{TMP}, v{TMP + 2}
    s_mov_b32 s{sT6}, s{sT2}''')
    if OPT['two'] or OPT['ub']:
        A(f's_cmp_lt_u32 s2, 80\ns_cselect_b32 s{sT2}, s{sT2}, {OOB // 2}')


def gemv2_issue():
    for i in range(5):
        if i:
            A(f's_add_u32 s{sGW}, s{sGW}, {7680 if i < 4 else 125 * 7680}')
        A(f'buffer_load_dwordx4 {vr(G_W2 + 4 * i, 4)}, v{vGA + 2 * (i // 4)}, {srd(S_WM)}, s{sGW} offen')


def gemv_issue():
    A(f'buffer_load_dwordx2 {vr(G_C + 2, 2)}, v{TMP + 3}, {srd(S_C)}, s{sT4} offen')
    A(f'buffer_load_ushort v{G_C + 4}, v{TMP + 1}, {srd(S_C)}, s{sT4} offen offset:256')
    for i in range(5):
        A(f'buffer_load_dwordx4 {vr(G_W + 4 * i, 4)}, v{vGA + 2 * (i // 4)}, {srd(S_WM)}, s{sT2} offen')
        if i < 4:
            A(f's_add_u32 s{sT2}, s{sT2}, {7680 if i < 3 else 125 * 7680}')


def gemv_store_addr():
    A(f'''s_add_u32 s{sT5}, s{sT5}, {WS_MOD}
    s_cmp_lt_u32 s2, 240
    s_cselect_b32 s{sMODST}, s{sT5}, {OOB}''')
    if OPT['two']:
        A(f'''s_sub_u32 s{sT0}, s2, 80
        s_cmp_lt_u32 s{sT0}, 160
        s_cselect_b32 s{sMODS2}, s{sT5}, {OOB}
        s_cselect_b32 s{sMODST}, {OOB}, s{sMODST}
        s_cselect_b32 s{sW2O}, s{sT6}, {OOB // 2}''')


def silu():
    t = TMP
    unpack(G_C, G_C + 1, G_C + 2)
    unpack(G_C + 2, G_C + 3, G_C + 3)
    A(f'v_lshlrev_b32 v{G_C + 4}, 16, v{G_C + 4}')
    for i in range(5):
        A(f'v_mul_f32 v{t + i}, {f2u(-1.4426950408889634)}, v{G_C + i}')
    for i in range(5):
        A(f'v_exp_f32 v{t + i}, v{t + i}')
    for i in range(5):
        A(f'v_add_f32 v{t + i}, 1.0, v{t + i}')
    for i in range(5):
        A(f'v_rcp_f32 v{t + i}, v{t + i}')
    for i in range(5):
        A(f'v_mul_f32 v{t + i}, v{G_C + i}, v{t + i}')
    for i in range(5):
        A(f'v_cvt_pk_bf16_f32 v{t + i}, v{t + i}, v{t + i}')
    for i in range(5):
        A(f'v_lshlrev_b32 v{G_C + i}, 16, v{t + i}')
    A(f'''s_mul_i32 s{sTAG}, s{sTAG}, 0x9E3779B1
    s_add_u32 s{sTAG}, s{sTAG}, 0x7F4A7C15''')
    for k in range(4):
        A(f's_bfe_u32 s{sTB + k}, s{sTAG}, {(8 << 16) | (8 * k)}')
    A(f'''v_and_b32 v{t + 5}, 1, v{vL}
    v_lshlrev_b32 v{t + 5}, 5, v{t + 5}
    v_lshl_add_u32 v{t + 5}, v{vH}, 4, v{t + 5}
    v_mov_b32 v{t + 6}, {OOB}
    v_cmp_gt_u32 vcc, 2, v{vL31}
    v_cndmask_b32 v{vGS}, v{t + 6}, v{t + 5}, vcc
    v_mov_b32 v{vGM}, 0xffffff00''')


def gemv_compute(G_W, sdst):
    t = TMP
    for i in range(5):
        sp = (G_C + i) & ~1
        sel = (G_C + i) & 1
        for k in range(4):
            u = t + 2 * (k & 1)
            unpack(u, u + 1, G_W + 4 * i + k)
            if i == 0:
                pk('mul', G_ACC + 2 * k, u, sp, mods=f'op_sel:[0,{sel}] op_sel_hi:[1,{sel}]')
            else:
                pk('fma', G_ACC + 2 * k, u, sp, G_ACC + 2 * k, mods=f'op_sel:[0,{sel},0] op_sel_hi:[1,{sel},1]')
    a = G_ACC
    for k in range(4):
        A(f'v_permlane32_swap_b32 v{a + k}, v{a + k + 4}')
    pk('add', a, a, a + 4)
    pk('add', a + 2, a + 2, a + 6)
    A(f'''v_permlane16_swap_b32 v{a}, v{a + 1}
    v_permlane16_swap_b32 v{a + 2}, v{a + 3}
    v_add_f32 v{a}, v{a}, v{a + 1}
    v_add_f32 v{a + 2}, v{a + 2}, v{a + 3}''')
    for r in (8, 4):
        A(f'v_add_f32_dpp v{a}, v{a}, v{a} row_ror:{r} row_mask:0xf bank_mask:0xf')
        A(f'v_add_f32_dpp v{a + 2}, v{a + 2}, v{a + 2} row_ror:{r} row_mask:0xf bank_mask:0xf')
    for d in (1, 3, 0, 2):
        s_ = a + (d & 2)
        A(f'v_add_f32_dpp v{a + d}, v{s_}, v{s_} row_ror:2 row_mask:0xf bank_mask:0xf')
    A(f'''v_permlane16_swap_b32 v{a}, v{a + 1}
    v_permlane16_swap_b32 v{a + 2}, v{a + 3}''')
    for k in range(4):
        A(f'v_and_or_b32 v{a + k}, v{a + k}, v{vGM}, s{sTB + k}')
    A(f'buffer_store_dwordx4 {vr(a, 4)}, v{vGS}, {srd(S_WS)}, s{sdst} offen sc1')


def code_prefetch(nbytes):
    t = TMP + 4
    per = ((nbytes + 32 * 128 - 1) // (32 * 128))
    A(f'''s_getpc_b64 {sr(sT2, 2)}
    L_pc:
    s_mul_i32 s{sT0}, s{sG}, {per * 128}
    s_sub_u32 s{sT0}, s{sT0}, L_pc-{NAME}_kernel
    v_min_u32 v{t}, {per - 1}, v{vL}
    v_lshlrev_b32 v{t}, 7, v{t}
    v_add_u32 v{t}, s{sT0}, v{t}
    v_min_i32 v{t}, L_last-L_pc, v{t}
    v_ashrrev_i32 v{t + 1}, 31, v{t}
    v_mov_b32 v{t + 2}, s{sT3}
    v_add_co_u32 v{t}, vcc, s{sT2}, v{t}
    v_addc_co_u32 v{t + 1}, vcc, v{t + 2}, v{t + 1}, vcc
    global_load_dword v{vFL}, {vr(t, 2)}, off''')


def xid_store():
    t = TMP
    A(f'''s_getreg_b32 s{sXID}, hwreg(HW_REG_XCC_ID, 0, 4)
    s_lshl_b32 s{sT0}, s{sPID}, 2
    s_add_u32 s{sT0}, s{sT0}, {WS_XID}
    v_mov_b32 v{t}, s{sXID}
    v_cmp_eq_u32 vcc, 0, v0
    v_mov_b32 v{t + 1}, {OOB}
    v_cndmask_b32 v{t + 1}, v{t + 1}, v0, vcc
    buffer_store_dword v{t}, v{t + 1}, {srd(S_WS)}, s{sT0} offen sc1''')


def xid_load():
    A(f'''s_lshl_b32 s{sBGO}, s{sCL}, 6
    s_add_u32 s{sBGO}, s{sBGO}, {WS_XID}
    v_lshlrev_b32 v{vXID}, 2, v{vL15}
    buffer_load_dword v{vXID}, v{vXID}, {srd(S_WS)}, s{sBGO} offen sc1
    s_lshl_b32 s{sBGO}, s{sCL}, 10
    s_add_u32 s{sBGO}, s{sBGO}, {WS_FLAG}
    buffer_load_dword v{vFL}, v{vL16}, {srd(S_WS)}, s{sBGO} offen sc1''')


def xid_check():
    A(f'''v_cmp_ne_u32 vcc, s{sXID}, v{vXID}
    s_cmp_eq_u64 vcc, 0
    s_cselect_b32 s{sFAST}, {0 if OPT['slow'] else 1}, 0''')


def flag_prep(which):
    if which == 0:
        A(f"""s_lshl_b32 s{sBGO}, s{sCL}, 10
        s_add_u32 s{sBGO}, s{sBGO}, {WS_FLAG}
        s_lshl_b32 s{sBG2}, s{sJ}, 2
        s_add_u32 s{sBG2}, s{sBG2}, s{sW}
        s_lshl_b32 s{sBG2}, s{sBG2}, 2
        v_mov_b32 v{vFL + 2}, s{sBG2}
        v_mov_b32 v{vFL + 3}, s{sTAG}
        s_lshl_b32 s{sBG2}, s{sW}, 6
        v_lshl_add_u32 v{vFL}, v{vL15}, 2, s{sBG2}""")
    else:
        A(f"""s_lshl_b32 s{sBG2}, s{sW}, 6
        s_and_b32 s{sT7}, s{sJ}, 8
        s_add_u32 s{sBG2}, s{sBG2}, s{sT7}
        v_and_b32 v{vFL}, 13, v{vL}
        v_lshl_add_u32 v{vFL}, v{vFL}, 2, s{sBG2}""")


def nvm(items):
    return sum(1 for i in items if i.kind == 'vmem')


def after_last(pred):
    i = max([k for k, x in enumerate(A.items) if x.kind == 'vmem' and pred(x)] or [len(A.items) - 300])
    return min(63, nvm(A.items[i + 1:]))


def flag_publish(which):
    younger = after_last(lambda x: 'store' in x.op or ' lds' in x.text)
    st = f'buffer_store_dword v{vFL + 3}, v{vFL + 2}, {srd(S_WS)}, s{sBGO} offen offset:{256 * which}'
    A(f"""s_cmp_eq_u32 s{sFAST}, 0
    s_waitcnt vmcnt({min(younger, 63)})
    s_cbranch_scc1 L_slow_pub{which}
    {st}
    L_join_pub{which}:""")
    RETRY('.segment')
    RETRY(f'L_slow_pub{which}:')
    if which == 0:
        RETRY('buffer_wbl2 sc1\ns_waitcnt vmcnt(0)')
    RETRY(f'{st} sc1\ns_branch L_join_pub{which}')


def flag_ld(which):
    return f'buffer_load_dword v{vFL + 1}, v{vFL}, {srd(S_WS)}, s{sBGO} offen offset:{256 * which} sc1'


def flag_check(which):
    poll_check(f'fl{which}', flag_ld(which), tagcheck([vFL + 1], 0))
    if which == 0:
        A(f"""s_cmp_eq_u32 s{sFAST}, 0
        s_cbranch_scc1 L_slow_acq{which}
        L_join_acq{which}:""")
        RETRY('.segment')
        RETRY(f"""L_slow_acq{which}:
        buffer_inv sc1
        s_waitcnt vmcnt(0)
        s_branch L_join_acq{which}""")


sW1ST, sW1S = 86, 87
vU1, vU2 = 251, 252


def fmt_prep():
    t = TMP
    A(f"""s_mul_i32 s{sT0}, s{sME}, 205
    s_lshr_b32 s{sT0}, s{sT0}, 10
    s_mul_i32 s{sT1}, s{sT0}, 5
    s_sub_u32 s{sT1}, s{sME}, s{sT1}
    s_lshl_b32 s{sT1}, s{sT1}, 2
    s_add_u32 s{sT1}, s{sT1}, s{sW}
    s_mul_i32 s{sT2}, s{sT0}, 40960
    s_lshl_b32 s{sT3}, s{sT1}, 11
    s_add_u32 s{sW2ST}, s{sT2}, s{sT3}
    s_add_u32 s{sW2ST}, s{sW2ST}, {WS_W2P}
    s_mul_i32 s{sT2}, s{sT0}, 171
    s_lshr_b32 s{sT2}, s{sT2}, 9
    s_mul_i32 s{sT3}, s{sT2}, 3
    s_sub_u32 s{sT0}, s{sT0}, s{sT3}""")
    cols(sT3, sT4, sT2)
    if OPT['ua']:
        UA = f'''s_sub_u32 s{sT0}, 30, s{sG}
        s_lshl_b32 s{sT0}, s{sT0}, 2
        s_add_u32 s{sT0}, s{sT0}, s{sXC}
        s_bitcmp1_b32 s{sG}, 0
        s_cselect_b32 s{sT0}, 255, s{sT0}'''
    else:
        UA = f's_sub_u32 s{sT0}, 255, s2'
    A(f"""s_add_u32 s{sT3}, s{sT3}, s{sT0}
    s_cmp_lt_u32 s{sT0}, 2
    s_cselect_b32 s{sT3}, s{sT3}, s{sT4}
    s_mul_i32 s{sT3}, s{sT3}, 40960
    s_lshl_b32 s{sT1}, s{sT1}, 6
    s_add_u32 s{sW2O}, s{sT3}, s{sT1}
    s_cmp_lt_u32 s{sME}, 240
    s_cselect_b32 s{sW2ST}, s{sW2ST}, {OOB}
    s_cselect_b32 s{sW2O}, s{sW2O}, {OOB // 2}
    {UA}
    s_and_b32 s{sT1}, s{sT0}, 3
    s_lshl_b32 s{sT1}, s{sT1}, 2
    s_add_u32 s{sT1}, s{sT1}, s{sW}
    s_lshr_b32 s{sT0}, s{sT0}, 2""")
    cols(sT3, sT4, sT1)
    A(f"""s_mul_i32 s{sT2}, s{sT0}, {32 * 3072}
    s_lshl_b32 s{sT4}, s{sT4}, 6
    s_add_u32 s{sW1S}, s{sT2}, s{sT4}
    s_mul_i32 s{sT1}, s{sT1}, 20
    s_add_u32 s{sT1}, s{sT1}, s{sT0}
    s_lshl_b32 s{sT1}, s{sT1}, 11
    s_add_u32 s{sW1ST}, s{sT1}, {WS_W1P}
    s_cmp_lt_u32 s{sT0}, 20
    s_cselect_b32 s{sW1ST}, s{sW1ST}, {OOB}
    {f's_mov_b32 s{sW1ST}, {OOB}' if OPT['now'] & 4 else ''}
    {f's_mov_b32 s{sW2ST}, {OOB}' if OPT['now'] & 8 else ''}
    {f's_mov_b32 s{sW1S}, {OOB // 2}' if OPT['now'] & 16 else ''}
    {f's_mov_b32 s{sW2O}, {OOB // 2}' if OPT['now'] & 32 else ''}
    v_lshrrev_b32 v{t}, 2, v{vL}
    v_and_b32 v{t + 1}, 3, v{vL}
    v_lshlrev_b32 v{t + 1}, 4, v{t + 1}
    v_mul_u32_u24 v{t + 2}, 1280, v{t}
    v_add_u32 v{vU2}, v{t + 1}, v{t + 2}
    v_mul_u32_u24 v{t + 2}, 3072, v{t}
    v_add_u32 v{vU1}, v{t + 1}, v{t + 2}""")


def fmt_issue():
    if OPT['now'] & 1:
        return
    for sd, so, v, pitch, lds in ((S_W1, sW1S, vU1, 3072, B_W1), (S_W2, sW2O, vU2, 1280, B_W2)):
        A(f"""s_add_u32 m0, s{sWB}, {BIG + lds}
        buffer_load_dwordx4 v{v}, {srd(sd)}, s{so} offen lds
        s_add_u32 m0, s{sWB}, {BIG + lds + 1024}
        s_add_u32 s{so}, s{so}, {16 * pitch}
        buffer_load_dwordx4 v{v}, {srd(sd)}, s{so} offen lds""")


def fmt_finish():
    if OPT['now'] & 1:
        return
    A(f's_waitcnt vmcnt({min(63, after_last(lambda x: srd(S_W2) in x.text and x.lds))})')
    fmt_body()


def fmt_addr():
    t = 96
    A(f"""v_lshrrev_b32 v{t}, 2, v{vL}
    v_lshlrev_b32 v{t}, 6, v{t}
    v_and_b32 v99, 3, v{vL}
    v_lshl_add_u32 v{t}, v99, 3, v{t}
    v_add_u32 v242, s{sWB}, v{t}
    v_lshl_add_u32 v99, v{vQ}, 8, v242""")


def fmt_body():
    for i in range(2):
        A(f'ds_read_b64_tr_b16 {ar(4 * i, 2)}, v99 offset:{BIG + B_W1 + 32 * i}')
        A(f'ds_read_b64_tr_b16 {ar(2 + 4 * i, 2)}, v99 offset:{BIG + B_W1 + 32 * i + 256}')
    for i in range(2):
        A(f'ds_read_b64_tr_b16 {ar(8 + 4 * i, 2)}, v242 offset:{BIG + B_W2 + 32 * i}')
        A(f'ds_read_b64_tr_b16 {ar(10 + 4 * i, 2)}, v242 offset:{BIG + B_W2 + 32 * i + 1024}')
    for i in range(4):
        A(f'buffer_store_dwordx4 {ar(4 * i, 4)}, v{vLW}, {srd(S_WS)}, s{sW1ST if i < 2 else sW2ST} offen offset:{1024 * (i & 1)} sc1')


def w_prep():
    A(f"""s_mul_i32 s{sW2O}, s{sW}, {12 * 40960}
    s_and_b32 s{sT0}, s{sJ}, 7
    s_mul_i32 s{sT0}, s{sT0}, 5120
    s_add_u32 s{sW2O}, s{sW2O}, s{sT0}
    s_add_u32 s{sW2ST}, s{sW2O}, {WS_W2P}
    s_mul_i32 s{sW1ST}, s{sJ}, 40960
    s_mul_i32 s{sT0}, s{sW}, 10240
    s_add_u32 s{sW1ST}, s{sW1ST}, s{sT0}
    s_add_u32 s{sW1ST}, s{sW1ST}, {WS_W1P}""")


def w1_prep():
    t = TMP
    A(f"""v_lshrrev_b32 v{t}, 3, v{vL}
    v_and_b32 v{t + 1}, 2, v{t}
    v_and_b32 v{t + 2}, 7, v{vL}
    v_xor_b32 v{t + 1}, v{t + 1}, v{t + 2}
    v_mul_u32_u24 v{t}, 3072, v{t}
    v_lshl_add_u32 v{vW1}, v{t + 1}, 4, v{t}
    v_xor_b32 v{vW1 + 1}, 64, v{vW1}
    v_add_u32 v{vW1 + 1}, {8 * 3072}, v{vW1 + 1}
    s_mul_i32 s{sW1O}, s{sW}, {160 * 3072}
    s_lshl_b32 s{sT1}, s{sCA}, 6
    s_add_u32 s{sW1O}, s{sW1O}, s{sT1}""")


def w1_dma():
    for n in range(20):
        A(f's_add_u32 m0, s{sWB}, {BIG + 1024 * n}')
        if n and n % 2 == 0:
            A(f's_add_u32 s{sW1O}, s{sW1O}, {16 * 3072}')
        A(f'buffer_load_dwordx4 v{vW1 + (n & 1)}, {srd(S_W1)}, s{sW1O} offen lds')


def wb_dma():
    for n in range(10):
        A(f's_add_u32 m0, s{sWB}, {BIG + 20480 + 1024 * n}')
        A(f's_add_u32 s{sW1E}, s{sW1ST}, {1024 * n}')
        A(f'buffer_load_dwordx4 v{vLW}, {srd(S_WS)}, s{sW1E} offen sc1 lds')


KA = [k for k in range(12) if k % 3 < 2]
KB = [k for k in range(12) if k % 3 == 2]


def w2_load():
    for kl in KA + KB:
        for nt in range(5):
            if nt in (0, 4):
                A(f's_add_u32 s{sW2O}, s{sW2ST}, {40960 * kl + 1024 * nt}')
            A(f'buffer_load_dwordx4 {ar((kl * 5 + nt) * 4, 4)}, v{vLW}, {srd(S_WS)}, s{sW2O} offen offset:{1024 * (nt & 3)} sc1')


F_RAW = 200
F_W = 216
vFA = 196


def filt_prep():
    t = TMP
    A(f'''s_mul_i32 s{sT0}, s{sG}, 20
    s_sub_u32 s{sT1}, 623, s{sT0}
    s_mul_i32 s{sT3}, s{sW}, 5
    s_sub_u32 s{sT4}, 15, s{sT3}
    s_cmp_lt_u32 s{sG}, 16
    s_cselect_b32 s{sT0}, s{sT0}, s{sT1}
    s_cselect_b32 s{sT2}, 1, -1
    s_cselect_b32 s{sT3}, s{sT3}, s{sT4}
    s_add_u32 s{sT4}, s{sT0}, s{sK1}
    s_and_b32 s{sT4}, s{sT4}, 1
    s_add_u32 s{sFSH}, s{sT3}, s{sT4}
    s_sub_u32 s{sT0}, s{sT0}, s{sT4}
    s_lshl_b32 s{sT5}, s{sW}, 9
    s_add_u32 s{sT5}, s{sT5}, s{sK1}
    s_movk_i32 s{sT6}, 321''')
    for i in range(3):
        A(f'''v_add_u32 v{t}, {64 * i}, v{vL}
        v_mul_u32_u24 v{t + 1}, 171, v{t}
        v_lshrrev_b32 v{t + 1}, 9, v{t + 1}
        v_mad_i32_i24 v{t + 2}, v{t + 1}, -3, v{t}
        v_lshl_add_u32 v{t + 1}, v{t + 1}, 3, s{sT5}
        v_mul_i32_i24 v{t + 1}, s{sT2}, v{t + 1}
        v_and_b32 v{t + 1}, 2047, v{t + 1}
        v_lshl_add_u32 v{t + 2}, v{t + 2}, 3, s{sT0}
        v_mad_u32_u24 v{t + 1}, v{t + 1}, s{sT6}, v{t + 2}
        v_lshlrev_b32 v{vFA + i}, 1, v{t + 1}''')


def filt_dma():
    for p, s_ in enumerate((S_WR, S_WI)):
        for i in range(3):
            A(f's_add_u32 m0, s{sWB}, {BIG + B_F + 3072 * p + 1024 * i}')
            A(f'buffer_load_dwordx4 v{vFA + i}, {srd(s_)}, 0 offen lds')


def filt_finish():
    t = TMP + 4
    sc = 1.0 / (2048.0 * 640.0)
    A(f'''s_lshr_b32 s{sT0}, s{sFSH}, 1
    s_lshl_b32 s{sT0}, s{sT0}, 2
    s_add_u32 s{sT0}, s{sT0}, {BIG + B_F}
    s_and_b32 s{sFSH}, s{sFSH}, 1
    s_lshl_b32 s{sFSH}, s{sFSH}, 4
    v_mul_u32_u24 v{t}, 30720, v{vQ}
    v_mul_u32_u24 v{t + 1}, 48, v{vL15}
    v_add3_u32 v{vFA}, v{t}, v{t + 1}, s{sT0}
    v_add_u32 v{vFA + 1}, 1536, v{vFA}
    v_add_u32 v{vFA + 2}, 3072, v{vFA}
    v_add_u32 v{vFA + 3}, {3072 + 1536}, v{vFA}''')
    for j in range(4):
        for p in range(2):
            o = 192 * (j & 1)
            A(f'ds_read2_b32 {vr(F_RAW + 4 * j + 2 * p, 2)}, v{vFA + 2 * p + (j >> 1)} offset0:{o} offset1:{o + 1}')
    A(f'''s_cmp_lt_u32 s{sG}, 16
    s_cselect_b64 vcc, -1, 0
    s_cselect_b32 s{sT3}, 0, 0x80000000
    s_mov_b32 s{sT0}, {f2u(sc)}
    s_mov_b32 s{sT1}, {f2u(2 * sc)}
    s_xor_b32 s{sT2}, s{sT0}, s{sT3}
    s_xor_b32 s{sT3}, s{sT1}, s{sT3}''')
    for j in range(4):
        for p in range(2):
            r = F_RAW + 4 * j + 2 * p
            A(f'''v_lshrrev_b64 {vr(r, 2)}, s{sFSH}, {vr(r, 2)}
            v_lshlrev_b32 v{t}, 16, v{r}
            v_lshlrev_b32 v{t + 1}, 16, v{r + 1}
            v_and_b32 v{t + 2}, 0xffff0000, v{r}
            v_cndmask_b32 v{t + 3}, v{t + 1}, v{t}, vcc
            v_cndmask_b32 v{t + 4}, v{t}, v{t + 1}, vcc
            v_mul_f32 v{F_W + 8 + 4 * p + j}, s{sT1 + 2 * p}, v{t + 2}
            v_mul_f32 v{F_W + 4 * p + j}, s{sT0 + 2 * p}, v{t + 3}
            v_mul_f32 v{F_W + 16 + 4 * p + j}, s{sT1 + 2 * p}, v{t + 4}''')


X_RAW = 60
X_N = 72
K1_M1 = 100
K1_M2 = 124
MODR = 24
K1A = 200
aMX, aMWX, aMW, aADD, aMR, aEW, aER, aST = K1A, K1A + 1, K1A + 2, K1A + 4, K1A + 5, K1A + 8, K1A + 11, K1A + 14


def x1_issue():
    A(f'''s_lshl_b32 s{sT0}, s{sW}, 9
    s_add_u32 s{sT0}, s{sT0}, s{sME}
    s_mul_i32 s{sT0}, s{sT0}, 1280
    s_add_u32 s{sT1}, s{sT0}, {256 * 1280}
    v_lshlrev_b32 v{TMP + 7}, 2, v{vH}
    v_lshl_add_u32 v{TMP + 7}, v{vL31}, 3, v{TMP + 7}
    buffer_load_dwordx4 {vr(X_RAW, 4)}, v{vL16}, {srd(S_X)}, s{sT0} offen
    buffer_load_dwordx4 {vr(X_RAW + 4, 4)}, v{vL16}, {srd(S_X)}, s{sT1} offen
    buffer_load_dword v{X_RAW + 8}, v{TMP + 7}, {srd(S_X)}, s{sT0} offen offset:1024
    buffer_load_dword v{X_RAW + 9}, v{TMP + 7}, {srd(S_X)}, s{sT1} offen offset:1024''')


def k1_const_a():
    t = TMP
    A(f'''v_lshrrev_b32 v{t}, 3, v{vL31}
    v_cvt_f32_u32 v{t}, v{t}
    v_mul_f32 v{t}, {f2u(0.4)}, v{t}
    v_and_b32 v{t + 1}, 7, v{vL}
    v_cvt_f32_u32 v{t + 1}, v{t + 1}
    v_mul_f32 v{t + 1}, {f2u(0.125)}, v{t + 1}
    v_cvt_f32_u32 v{t + 2}, v{vH}
    v_mul_f32 v{t + 2}, v{t + 2}, v{t}
    v_and_b32 v{t + 10}, 1, v{vL}
    v_mul_u32_u24 v{t + 10}, 0x8000, v{t + 10}
    v_lshl_or_b32 v{t + 10}, v{t + 10}, 16, v{t + 10}''')
    for tau in range(3):
        fmamk(t + 3, t, 2 * tau, t + 2)
        for p in range(2):
            fmamk(t + 4, t + 1, 2 * p, t + 3)
            fmamk(t + 5, t + 1, 2 * p + 1, t + 3)
            sincos(t + 4, t + 6, t + 8)
            sincos(t + 5, t + 7, t + 9)
            A(f'v_cvt_pk_bf16_f32 v{K1_M1 + 4 * tau + p}, v{t + 6}, v{t + 7}')
            A(f'v_cvt_pk_bf16_f32 v{K1_M1 + 12 + 4 * tau + p}, -v{t + 8}, -v{t + 9}')
    A('s_mov_b32 exec_lo, 0')
    for p in range(2):
        A(f'v_mov_b32 v{K1_M1 + 8 + p}, 0')
        A(f'v_mov_b32 v{K1_M1 + 20 + p}, 0')
    A('s_mov_b32 exec_lo, -1')
    for k in range(6):
        for p in range(2):
            A(f'v_xor_b32 v{K1_M1 + 4 * k + 2 + p}, v{t + 10}, v{K1_M1 + 4 * k + p}')


def k1_const_b():
    t = 216
    A(f'''v_cvt_f32_u32 v{t}, v{vL31}
    v_lshlrev_b32 v{t + 1}, 4, v{vH}
    v_add_u32 v{t + 1}, s{sW}, v{t + 1}
    v_cvt_f32_u32 v{t + 1}, v{t + 1}
    v_mul_f32 v{t}, {f2u(1.0 / 128)}, v{t}
    v_mul_f32 v{t + 1}, v{t + 1}, v{t}
    v_and_b32 v{t + 10}, 1, v{vL}
    v_mul_u32_u24 v{t + 10}, 0x8000, v{t + 10}
    v_lshl_or_b32 v{t + 10}, v{t + 10}, 16, v{t + 10}''')
    for u in range(2):
        for jp in (0, 2):
            fmamk(t + 2, t, 4 * (8 * u + jp), t + 1)
            fmamk(t + 5, t, 4 * (8 * u + jp + 1), t + 1)
            sincos(t + 2, t + 3, t + 4)
            sincos(t + 5, t + 6, t + 7)
            for jj, e in ((jp, 3), (jp + 1, 6)):
                A(f'v_cvt_pk_bf16_f32 v{K1_M2 + 4 * u + jj}, v{t + e}, v{t + e + 1}')
                A(f'v_cvt_pk_bf16_f32 v{K1_M2 + 16 + 4 * u + jj}, -v{t + e + 1}, v{t + e}')
    for p in range(2):
        for k in range(8):
            A(f'v_xor_b32 v{K1_M2 + 16 * p + 8 + k}, v{t + 10}, v{K1_M2 + 16 * p + k}')


def ln1():
    t = TMP
    AD = 92
    A(f'''v_mul_u32_u24 v{t}, 3, v{vL}
    v_lshl_add_u32 v{t + 1}, v{vL15}, 4, s{sWB}''')
    for k in range(5):
        A(f'v_add_u32 v{t + 2}, {k}, v{t}')
        mod5(t + 2, t + 2, t + 3)
        A(f'v_lshl_add_u32 v{AD + k}, v{t + 2}, 10, v{t + 1}')
    A(f'''v_lshl_add_u32 v{t + 1}, v{vL31}, 3, s{sWB}
    v_lshl_add_u32 v{t + 1}, v{vH}, 9, v{t + 1}
    v_lshl_add_u32 v{t}, v{vL31}, 1, v{vH}''')
    for e in range(2):
        A(f'v_lshl_add_u32 v{t + 2}, v{t}, 1, {2 + e}')
        mod5(t + 2, t + 2, t + 3)
        A(f'v_lshl_add_u32 v{AD + 5 + e}, v{t + 2}, 10, v{t + 1}')
    for r in range(2):
        for k in range(4):
            unpack(X_N + 4 * k + r, X_N + 4 * k + 2 + r, X_RAW + 4 * r + k)
        unpack(X_N + 16 + r, X_N + 18 + r, X_RAW + 8 + r)
    pk('add', t, X_N, X_N + 2)
    pk('mul', t + 2, X_N, X_N)
    for e in range(1, 10):
        if e > 1:
            pk('add', t, t, X_N + 2 * e)
        pk('fma', t + 2, X_N + 2 * e, X_N + 2 * e, t + 2)
    A(f'''v_permlane32_swap_b32 v{t}, v{t + 1}
    v_permlane32_swap_b32 v{t + 2}, v{t + 3}
    v_add_f32 v{t}, v{t}, v{t + 1}
    v_add_f32 v{t + 2}, v{t + 2}, v{t + 3}
    v_permlane16_swap_b32 v{t}, v{t + 2}
    v_add_f32 v{t}, v{t}, v{t + 2}''')
    for r in (8, 4, 2, 1):
        A(f'v_add_f32_dpp v{t}, v{t}, v{t} row_ror:{r} row_mask:0xf bank_mask:0xf')
    A(f'v_mul_f32 v{t}, {f2u(1.0 / 640)}, v{t}')
    for k in range(4):
        A(f'v_readlane_b32 s{sT0 + k}, v{t}, {16 * k}')
    for r in range(2):
        A(f'v_mov_b32 v{t + 2 + r}, s{sT0 + 2 * r}')
    for r in range(2):
        A(f'v_fma_f32 v{t + r}, -v{t + 2 + r}, v{t + 2 + r}, s{sT1 + 2 * r}')
    for r in range(2):
        A(f'v_max_f32 v{t + r}, 0, v{t + r}')
    for r in range(2):
        A(f'v_add_f32 v{t + r}, {f2u(1e-5)}, v{t + r}')
    for r in range(2):
        A(f'v_rsq_f32 v{t + r}, v{t + r}')
    A(f'''s_lshl_b32 s{sT0}, s{sW}, 8
    s_add_u32 s{sT0}, s{sT0}, {BIG + B_N}''')
    pk('mul', t + 2, t + 2, t)
    for e in range(10):
        pk('fma', X_N + 2 * e, X_N + 2 * e, t, t + 2, mods='neg_lo:[0,0,1] neg_hi:[0,0,1]')
        if e < 8:
            A(f'ds_write_b64 v{AD + e % 5}, {vr(X_N + 2 * e, 2)} offset:{BIG + B_N + (e & 3) * 256 + (e >> 2) * 8}')
        else:
            A(f'ds_write_b64 v{AD + 5 + e - 8}, {vr(X_N + 2 * e, 2)} offset:{BIG + B_N + (e - 8) * 256}')
    A(f'''v_lshl_add_u32 v{t + 1}, v{vL31}, 3, s{sT0}
    v_lshl_add_u32 v{t}, v{vH}, 10, v{t + 1}
    s_waitcnt lgkmcnt(0)
    s_barrier''')
    for tau in range(3):
        ad = t if tau < 2 else t + 1
        for p in (0, 2):
            A(f'ds_read2st64_b64 {vr(X_N + 8 * tau + 2 * p, 4)}, v{ad} offset0:{4 * tau + 60 * p} offset1:{4 * tau + 60 * p + 60}')


def x_keep():
    for k in range(4):
        A(f'v_permlane32_swap_b32 v{X_RAW + k}, v{X_RAW + 4 + k}')
    A(f'v_permlane32_swap_b32 v{X_RAW + 8}, v{X_RAW + 9}')
    for k in range(10):
        A(f'v_accvgpr_write_b32 a{240 + k}, v{X_RAW + k}')


def k1_addr():
    t = TMP + 4
    A(f'''s_lshl_b32 s{sT0}, s{sW}, 8
    v_lshl_add_u32 v{t}, v{vL15}, 4, s{sT0}
    v_mul_u32_u24 v{t + 1}, {MP}, v{vQ}
    v_add3_u32 v{aMX}, v{t}, v{t + 1}, 0
    v_add_u32 v{aMX}, 4096, v{aMX}
    v_and_b32 v{t + 1}, 1, v{vQ}
    v_lshl_add_u32 v{t}, v{t + 1}, 3, v{t}
    v_lshl_add_u32 v{t}, v{vH}, 2, v{t}
    v_add_u32 v{aMWX}, {L_M1 + 4096}, v{t}
    v_add_u32 v{aMW}, {L_M1}, v{vT16}
    v_cmp_lt_u32 vcc, 159, v0
    v_cndmask_b32 v{aADD}, 0, 1.0, vcc
    v_lshl_add_u32 v{t}, v{vL31}, 2, s{sW}
    v_mul_u32_u24 v{t + 1}, 3, v{t}
    v_lshlrev_b32 v{t}, 2, v{t}
    v_add_u32 v{t}, {L_M1}, v{t}
    v_lshl_add_u32 v{t + 2}, v{vH}, 1, v{t + 1}''')
    for tau in range(3):
        A(f'v_add_u32 v{t + 3}, {4 * tau}, v{t + 2 if tau < 2 else t + 1}')
        mod5(t + 3, t + 3, t + 4)
        A(f'v_lshl_add_u32 v{aMR + tau}, v{t + 3}, 9, v{t}')
    for p in range(4):
        A(f's_mov_b32 s{sLD + p}, {WS_MOD + MP * p}')


aSX, sSK, sCH = 232, 81, 97


def k1_addr2():
    t = 228
    A(f's_mov_b32 s{sSK}, {SKIP if OPT["sk"] & 2 else 0}')
    A(f'''s_mul_i32 s{sT0}, s{sW}, 6144
    s_add_u32 s{sT0}, s{sT0}, {L_X1E}
    v_lshl_add_u32 v{aEW}, v{vL31}, 3, s{sT0}
    v_lshl_add_u32 v{aEW}, v{vH}, 10, v{aEW}
    v_add_u32 v{aEW + 1}, 2048, v{aEW}
    v_add_u32 v{aEW + 2}, 4096, v{aEW}
    v_lshrrev_b32 v{t}, 5, v0
    v_lshlrev_b32 v{t + 1}, 8, v{t}''')
    for c in range(3):
        A(f'''v_add_u32 v{t + 2}, {13 * c}, v{vL31}
        v_and_b32 v{t + 2}, 31, v{t + 2}
        v_lshl_add_u32 v{t + 2}, v{t + 2}, 3, v{t + 1}
        v_add_u32 v{aER + c}, {L_X1E + 2048 * c}, v{t + 2}''')
    A(f'''v_lshlrev_b32 v{t + 1}, 4, v{vL31}
    v_sub_u32 v{t + 2}, 8, v{t}
    v_and_b32 v{t + 2}, 7, v{t + 2}
    v_lshl_add_u32 v{aST + 1}, v{t + 2}, 11, v{t + 1}
    v_lshl_add_u32 v{aST}, v{t}, 11, v{t + 1}
    v_lshrrev_b32 v{t + 1}, 3, v{vL31}
    v_add_u32 v{t + 1}, 1, v{t + 1}
    v_lshrrev_b32 v{t + 1}, 2, v{t + 1}
    v_mul_lo_u32 v{t + 1}, v{t + 1}, s{sSK}
    v_add_u32 v{aSX}, v{aST}, v{t + 1}
    v_add_u32 v{aSX + 1}, v{aST + 1}, v{t + 1}
    s_mul_i32 s{sST}, s{sME}, {BS}
    s_add_u32 s{sST}, s{sST}, {WS_T}
    v_cmp_gt_u32 {sr(sM1, 2)}, 19, v{vL31}
    v_cmp_gt_u32 {sr(sM2, 2)}, 6, v{vL31}''')


def mod1_loads():
    s = ''
    for p in range(4):
        s += f'buffer_load_dwordx4 {vr(MODR + 4 * p, 4)}, v{vT16}, {srd(S_WS)}, s{sLD + p} offen sc1\n'
    s += f'buffer_load_dwordx4 {vr(MODR + 16, 4)}, v{aMX}, {srd(S_WS)}, s{sLD} offen sc1\n'
    return s


def bytecheck(base, n, t):
    c = ''
    for g in range(n):
        r = base + 4 * g
        for k in range(4):
            c += f'v_xor_b32 v{r + k}, s{sTB + k}, v{r + k}\n'
        if g == 0:
            c += f'v_or3_b32 v{t}, v{r}, v{r + 1}, v{r + 2}\nv_or_b32 v{t}, v{t}, v{r + 3}\n'
        else:
            c += f'v_or3_b32 v{t}, v{t}, v{r}, v{r + 1}\nv_or3_b32 v{t}, v{t}, v{r + 2}, v{r + 3}\n'
    return c + f'v_and_b32 v{t}, 0xff, v{t}\nv_cmp_ne_u32 vcc, 0, v{t}\n'


def k1_poll():
    poll_check('mod1', mod1_loads(), bytecheck(MODR, 5, TMP))
    stamp('mod1')


def round_add(r, add, t):
    A(f'v_cvt_pk_bf16_f32 v{t}, v{r}, v{r + 1}')
    A(f'v_cvt_pk_bf16_f32 v{t + 1}, v{r + 2}, v{r + 3}')
    unpack(r, r + 1, t)
    unpack(r + 2, r + 3, t + 1)
    if add is None:
        return
    for p in (0, 2):
        pk('add', r + p, r + p, add, mods='op_sel_hi:[1,0]')
    A(f'v_cvt_pk_bf16_f32 v{t}, v{r}, v{r + 1}')
    A(f'v_cvt_pk_bf16_f32 v{t + 1}, v{r + 2}, v{r + 3}')
    unpack(r, r + 1, t)
    unpack(r + 2, r + 3, t + 1)


def sum4(r):
    for p in (0, 2):
        pk('add', r + p, r + p, r + 4 + p)
        pk('add', r + 8 + p, r + 8 + p, r + 12 + p)
    for p in (0, 2):
        pk('add', r + p, r + p, r + 8 + p)


def radix4(z, P, inverse):
    pk('add', P, z, z + 4)
    pk('add', P + 2, z, z + 4, mods=NEG1)
    pk('add', P + 4, z + 2, z + 6)
    pk('add', P + 6, z + 2, z + 6, mods=NEG1)
    pk('add', z, P, P + 4)
    pk('add', z + 4, P, P + 4, mods=NEG1)
    a, b = ('neg_lo', 'neg_hi') if inverse else ('neg_hi', 'neg_lo')
    pk('add', z + 2, P + 2, P + 6, mods=f'op_sel:[0,1] op_sel_hi:[1,0] {a}:[0,1]')
    pk('add', z + 6, P + 2, P + 6, mods=f'op_sel:[0,1] op_sel_hi:[1,0] {b}:[0,1]')


def k1_head():
    t = TMP
    x = MODR + 16
    A(f'''v_permlane32_swap_b32 v{x}, v{x + 1}
    v_permlane32_swap_b32 v{x + 2}, v{x + 3}''')
    sum4(MODR)
    A(f'''v_add_f32 v{x}, v{x}, v{x + 1}
    v_add_f32 v{x + 2}, v{x + 2}, v{x + 3}''')
    round_add(MODR, aADD, t)
    A(f'''v_permlane16_swap_b32 v{x}, v{x + 2}
    ds_write_b128 v{aMW}, {vr(MODR, 4)}
    v_add_f32 v{x}, v{x}, v{x + 2}
    v_cvt_pk_bf16_f32 v{x}, v{x}, v{x}
    v_lshlrev_b32 v{x}, 16, v{x}
    v_add_f32 v{x}, 1.0, v{x}
    v_cvt_pk_bf16_f32 v{x}, v{x}, v{x}
    v_lshlrev_b32 v{x}, 16, v{x}
    ds_write_b32 v{aMWX}, v{x}
    .fill {OPT['g1']}''')
    fine(1, '1a_wr')
    A('s_waitcnt lgkmcnt(0)\ns_barrier')
    fine(1, '1b_bar')


def k1_main():
    t = TMP
    OPA = 60
    DRE, DIM = 24, 40
    for tau in range(3):
        A(f'ds_read2st64_b32 {vr(t + 2 * tau, 2)}, v{aMR + tau} offset0:0 offset1:10')
    A(f'.fill {OPT["g2"]}')
    for tau in range(3):
        for p in range(4):
            n = X_N + 8 * tau + 2 * p
            pk('fma', n, n, t + 2 * tau, t + 2 * tau, mods='op_sel:[0,1,0] op_sel_hi:[1,1,0]')
    O = 76

    def cva(tau):
        for p in range(4):
            n = X_N + 8 * tau + 2 * p
            A(f'v_cvt_pk_bf16_f32 v{OPA + 4 * tau + p}, v{n}, v{n + 1}')
    cva(0)
    A('.fill 8')
    for tau in range(3):
        A(f'v_mfma_f32_32x32x16_bf16 {vr(DRE, 16)}, {vr(OPA + 4 * tau, 4)}, {vr(K1_M1 + 4 * tau, 4)}, {vr(DRE, 16) if tau else 0}')
        if tau < 2:
            cva(tau + 1)
        A(f'.fill {8 if tau < 2 else 24}')
        A(f'v_mfma_f32_32x32x16_bf16 {vr(DIM, 16)}, {vr(OPA + 4 * tau, 4)}, {vr(K1_M1 + 12 + 4 * tau, 4)}, {vr(DIM, 16) if tau else 0}')
        A(f'.fill {24 if tau < 2 else 32}')
    fine(1, '1c_st1')
    for m in range(4):
        A(f'v_mov_b32 v{O + 4 * m + 3}, s{sTAG}')
    OPB = 60
    ERE, EIM = 100, 24

    def cvb(u):
        for jj in range(4):
            A(f'v_cvt_pk_bf16_f32 v{OPB + 4 * u + jj}, v{DRE + 4 * u + jj}, v{DIM + 4 * u + jj}')

    def wr(E, im):
        return [f'ds_write2_b32 v{aEW + (j >> 2)}, v{E + j}, v{E + j + 1} offset0:{64 * (j & 3) + im} offset1:{64 * (j & 3) + 64 + im}' for j in range(0, 12, 2)]
    cvb(0)
    A('.fill 8')
    for u in range(4):
        A(f'v_mfma_f32_32x32x16_bf16 {vr(ERE, 16)}, {vr(OPB + 4 * u, 4)}, {vr(K1_M2 + 4 * u, 4)}, {vr(ERE, 16) if u else 0}')
        if u < 3:
            cvb(u + 1)
        A('.fill 8' if u < 3 else '.fill 24 5')
    w = wr(ERE, 0)
    for u in range(4):
        A(f'v_mfma_f32_32x32x16_bf16 {vr(EIM, 16)}, {vr(OPB + 4 * u, 4)}, {vr(K1_M2 + 16 + 4 * u, 4)}, {vr(EIM, 16) if u else 0}')
        if u == 0:
            A('.fill 24 5')
        else:
            A(w.pop(0))
            A(w.pop(0))
            A('.fill 12' if u < 3 else '.fill 40')
    fine(1, '1d_st2')
    for x in wr(EIM, 1)[:1 if OPT['cutx'] & 8 else 6]:
        A(x)
    A(f'.fill {OPT["g3"]}')
    fine(1, '1e_wr')
    A('s_waitcnt lgkmcnt(0)\ns_barrier')
    fine(1, '1f_bar')
    Z = 24
    for c in (1, 2, 0):
        for b2 in (0, 2, 1, 3):
            A(f'ds_read_b64 {vr(Z + 8 * c + 2 * b2, 2)}, v{aER + c} offset:{6144 * b2}')
    fine(1, '1g_rd')
    P = 48
    for c in (1, 2, 0):
        z = Z + 8 * c
        if not OPT['cutx'] & 8:
            radix4(z, P, False)
        if c == 0:
            fine(1, '1h_rx')
            for m in range(4):
                A(f'v_cvt_pk_bf16_f32 v{O + 4 * m}, v{z + 2 * m}, v{z + 2 * m + 1}')
                A(f'buffer_store_dwordx4 {vr(O + 4 * m, 4)}, v{(aST if m & 1 else aSX) + (m >> 1)}, {srd(S_WS)}, s{sST} offen offset:{512 * m} sc1')
        else:
            for k in range(4):
                A(f'v_cvt_pk_bf16_f32 v{56 + k}, v{z + 2 * k}, v{z + 2 * k + 1}')
            r0 = 1 if c == 1 else 3
            for m in range(4):
                A(f'v_cndmask_b32 v{O + 4 * m + c}, v{56 + (m - r0) % 4}, v{56 + (m - r0 - 1) % 4}, {sr(sM1 if c == 1 else sM2, 2)}')


K2C = 100
C_M1, C_TW1, C_M2, C_M3, C_TW2, C_M4 = [K2C + 8 * i for i in range(6)]
K2_IN = 24
vK2A, aIW, aIR, aOR, aOW, vTG = 148, 149, 150, 151, 152, 154


def k2_const():
    t = TMP
    A(f'''v_cvt_f32_u32 v{t}, v{vL15}
    v_cvt_f32_u32 v{t + 1}, v{vQ}
    v_cvt_f32_u32 v{t + 2}, s{sK1}
    v_mul_f32 v{t + 1}, 4.0, v{t + 1}''')
    fmamk(t + 3, t, 8, t + 2)
    A(f'v_mul_f32 v{t + 3}, {f2u(1.0 / 128)}, v{t + 3}')
    A(f'v_mul_f32 v{t + 4}, {f2u(1.0 / 16)}, v{t}')
    A(f'v_mul_f32 v{t + 5}, {f2u(1.0 / 128)}, v{t}')
    A(f'v_mul_f32 v{t + 5}, v{t + 5}, v{t + 2}')
    for jj in range(4):
        A(f'v_add_f32 v{t + 6}, {f2u(float(jj))}, v{t + 1}')
        A(f'v_mul_f32 v{t + 7}, v{t + 6}, v{t + 3}')
        A(f'v_mul_f32 v{t + 8}, {f2u(1.0 / 16)}, v{t + 7}')
        A(f'v_mul_f32 v{t + 9}, v{t + 6}, v{t + 4}')
        A(f'v_add_f32 v{t + 10}, v{t + 9}, v{t + 5}')
        A(f'v_mul_f32 v{t + 11}, {f2u(1.0 / 16)}, v{t + 10}')
        sincos(t + 7, t + 12, t + 13)
        sincos(t + 8, C_TW1 + jj, C_TW1 + 4 + jj)
        A(f'v_cvt_pk_bf16_f32 v{C_M1 + jj}, v{t + 12}, v{t + 13}')
        A(f'v_cvt_pk_bf16_f32 v{C_M1 + 4 + jj}, -v{t + 13}, v{t + 12}')
        sincos(t + 9, t + 12, t + 13)
        sincos(t + 10, t + 14, t + 15)
        sincos(t + 11, C_TW2 + jj, C_TW2 + 4 + jj)
        A(f'v_cvt_pk_bf16_f32 v{C_M2 + jj}, v{t + 12}, v{t + 13}')
        A(f'v_cvt_pk_bf16_f32 v{C_M2 + 4 + jj}, -v{t + 13}, v{t + 12}')
        A(f'v_cvt_pk_bf16_f32 v{C_M3 + jj}, v{t + 12}, -v{t + 13}')
        A(f'v_cvt_pk_bf16_f32 v{C_M3 + 4 + jj}, v{t + 13}, v{t + 12}')
        A(f'v_cvt_pk_bf16_f32 v{C_M4 + jj}, v{t + 14}, -v{t + 15}')
        A(f'v_cvt_pk_bf16_f32 v{C_M4 + 4 + jj}, v{t + 15}, v{t + 14}')


def k2_loads():
    return ''.join(f'buffer_load_dwordx4 {vr(K2_IN + 4 * j, 4)}, v{vK2A}, {srd(S_WS)}, s{sLD + j} offen sc1\n' for j in range(4))


def k2_addr():
    t = TMP
    A(f'''v_lshrrev_b32 v{t}, 2, v{vL}
    v_mul_u32_u24 v{t}, {BS}, v{t}
    v_and_b32 v{t + 1}, 3, v{vL}
    v_lshl_add_u32 v{vK2A}, v{t + 1}, 4, v{t}
    s_mul_i32 s{sT0}, s{sW}, {64 * BS}
    s_and_b32 s{sT1}, s{sME}, 14
    s_cmp_eq_u32 s{sT1}, 6
    s_cselect_b32 s{sT2}, {SKIP if OPT['sk'] & 2 else 0}, 0
    s_lshl_b32 s{sT1}, s{sME}, 6
    s_add_u32 s{sMODST}, s{sT1}, s{sT2}
    s_add_u32 s{sT0}, s{sT0}, s{sMODST}
    s_add_u32 s{sLD}, s{sT0}, {WS_T}''')
    for j in range(1, 4):
        A(f's_add_u32 s{sLD + j}, s{sLD}, {16 * j * BS}')
    A(f'''v_mul_u32_u24 v{t}, 3104, v{t + 1}
    v_lshrrev_b32 v{t + 1}, 2, v0
    v_lshl_add_u32 v{t}, v{t + 1}, 4, v{t}
    s_mul_i32 s{sT0}, s{sW}, 3104
    v_add_u32 v{t + 1}, s{sT0}, v{vL16}
    v_add_u32 v{aOR}, {L_K2O}, v{t}
    v_add_u32 v{aOW}, {L_K2O}, v{t + 1}
    v_add_u32 v{aIW}, {L_K2I}, v{t}
    v_add_u32 v{aIR}, {L_K2I}, v{t + 1}
    s_mul_i32 s{sST}, s{sME}, {BS}
    s_lshl_b32 s{sT1}, s{sW}, 12
    s_add_u32 s{sST}, s{sST}, s{sT1}
    s_add_u32 s{sST}, s{sST}, {WS_TP}
    v_mov_b32 v{vTG}, s{sTAG}''')


def cmul(dre, dim, wr, wi, conj, tmp):
    for p in (0, 2):
        pk('mul', tmp + p, dre + p, wr + p)
        pk('mul', tmp + 4 + p, dim + p, wr + p)
    neg = 'neg_lo:[1,0,0] neg_hi:[1,0,0]'
    for p in (0, 2):
        pk('fma', tmp + p, dim + p, wi + p, tmp + p, mods='' if conj else neg)
        pk('fma', tmp + 4 + p, dre + p, wi + p, tmp + 4 + p, mods=neg if conj else '')


def k2_head():
    tg = [K2_IN + 4 * j + 3 for j in range(4)]
    poll_check('t', masked(k2_loads(), tg), tagcheck(tg, TMP))
    stamp('T')
    X = 40
    for c in range(3):
        cb, cs = c & ~1, c & 1
        for p in (0, 2):
            A(f'v_pk_mov_b32 {vr(X + 4 * c + p, 2)}, {vr(K2_IN + 4 * p + cb, 2)}, {vr(K2_IN + 4 * p + 4 + cb, 2)} op_sel:[{cs},{cs}]')
        A(f'ds_write_b128 v{aIW}, {vr(X + 4 * c, 4)} offset:{1024 * c}')
    fine(1, '2a_wr')
    A('s_waitcnt lgkmcnt(0)\ns_barrier')
    fine(1, '2b_bar')


def k2_main():
    X = 40
    OP = 24
    D = 40
    U = 64
    for c in range(3):
        A(f'ds_read_b128 {vr(OP + 4 * c, 4)}, v{aIR} offset:{1024 * c}')

    def mm(c, M, data_is_a):
        for p in range(2):
            a, b = (vr(OP + 4 * c, 4), vr(M + 4 * p, 4)) if data_is_a else (vr(M + 4 * p, 4), vr(OP + 4 * c, 4))
            A(f'v_mfma_f32_16x16x32_bf16 {vr(D + 8 * c + 4 * p, 4)}, {a}, {b}, 0')

    def mid(wr, wi, conj, M, data_is_a):
        for c in range(3):
            cmul(D + 8 * c, D + 8 * c + 4, wr(c), wi(c), conj, U + 8 * c)
        cv = [f'v_cvt_pk_bf16_f32 v{OP + 4 * c + jj}, v{U + 8 * c + jj}, v{U + 8 * c + 4 + jj}' for c in range(3) for jj in range(4)]
        for x in cv[:6]:
            A(x)
        cv = cv[6:]
        for c in range(3):
            for x in A.capture(lambda: mm(c, M, data_is_a)):
                A.items.append(x)
                for y in cv[:2]:
                    A(y)
                cv = cv[2:]
    fine(1, '2c_rd')
    for c in range(3):
        mm(c, C_M1, True)
    if not OPT['cutx'] & 1:
        mid(lambda c: C_TW1, lambda c: C_TW1 + 4, True, C_M2, False)
    mid(lambda c: F_W + 8 * c, lambda c: F_W + 8 * c + 4, False, C_M3, True)
    if not OPT['cutx'] & 1:
        mid(lambda c: C_TW2, lambda c: C_TW2 + 4, False, C_M4, False)
    fine(1, '2d_mm')
    for c in range(3):
        for jj in range(4):
            A(f'v_cvt_pk_bf16_f32 v{OP + 4 * c + jj}, v{D + 8 * c + jj}, v{D + 8 * c + 4 + jj}')
        A(f'ds_write_b128 v{aOW}, {vr(OP + 4 * c, 4)} offset:{1024 * c}')
    fine(1, '2e_wr')
    A('s_waitcnt lgkmcnt(0)\ns_barrier')
    fine(1, '2f_bar')
    for c in range(3):
        A(f'ds_read_b128 {vr(X + 4 * c, 4)}, v{aOR} offset:{1024 * c}')
    fine(1, '2g_rd')
    O = 64
    for j in range(4):
        jb, js = j & ~1, j & 1
        A(f'v_pk_mov_b32 {vr(O + 4 * j, 2)}, {vr(X + jb, 2)}, {vr(X + 4 + jb, 2)} op_sel:[{js},{js}]')
        A(f'v_pk_mov_b32 {vr(O + 4 * j + 2, 2)}, {vr(X + 8 + jb, 2)}, {vr(vTG, 2)} op_sel:[{js},0]')
        A(f'buffer_store_dwordx4 {vr(O + 4 * j, 4)}, v{vLT}, {srd(S_WS)}, s{sST} offen offset:{1024 * j} sc1')


def epoch_store():
    A(f'''s_cmp_eq_u32 s{sME}, 0
    s_cselect_b32 s{sBGO}, {WS_EPOCH}, {OOB}
    v_mov_b32 v{vBG + 3}, s{sTAG}
    buffer_store_dword v{vBG + 3}, off, {srd(S_WS)}, s{sBGO} sc1''')


K3_MA = 100
K3_MB = 132
K3_X = 156
K3_GA, K3_SB, K3_CB = 176, 196, 216
K3_IN = 24
vK3A, vK3B = 236, 237
M2R = 160
X3R = 88
B1R = 192


def side_loads():
    s = ''
    for p in range(4):
        s += f"""s_mov_b32 s{sBG2}, {WS_MOD + MP * p + 320 * 16}
        buffer_load_dwordx4 {vr(M2R + 4 * p, 4)}, v{vT16}, {srd(S_WS)}, s{sBG2} offen sc1
        buffer_load_dwordx4 {vr(M2R + 16 + 4 * p, 4)}, v{vBG + 2}, {srd(S_WS)}, s{sBG2} offen sc1
        """
    return s


def side_prep():
    t = TMP
    A(f"""s_and_b32 s{sT0}, s{sJ}, 7
    s_mul_i32 s{sT0}, s{sT0}, 320
    v_mov_b32 v{t}, s{sT0}
    v_cmp_lt_u32 vcc, 223, v0
    v_cndmask_b32 v{t}, 0, v{t}, vcc
    v_min_u32 v{t + 1}, {243 * 16}, v{vT16}
    v_add_u32 v{t}, v{t}, v{t + 1}
    v_add_u32 v{vBG + 2}, 4096, v{t}
    s_lshr_b32 s{sT0}, s{sT0}, 1
    v_lshl_add_u32 v{vBG + 1}, v{vL31}, 3, s{sT0}
    s_lshl_b32 s{sT0}, s{sCA}, 6
    s_lshl_b32 s{sT1}, s{sCB}, 6
    v_mov_b32 v{t}, s{sT0}
    v_mov_b32 v{t + 1}, s{sT1}
    v_cmp_gt_u32 vcc, 16, v{vL31}
    v_cndmask_b32 v{t}, v{t + 1}, v{t}, vcc
    v_lshl_add_u32 v{vBG}, v{vL15}, 3, v{t}""")


def b2_issue():
    A(f"""buffer_load_dwordx2 v[192:193], v{vBG + 1}, {srd(S_B2)}, 0 offen
    buffer_load_dwordx2 v[194:195], v{vBG}, {srd(S_B1)}, 0 offen""")


def side_finish():
    t = TMP
    poll_check('mod2', side_loads(), bytecheck(M2R, 8, t))
    A(f"""v_subrev_u32 v{t + 2}, 64, v0
    v_cmp_gt_u32 vcc, 160, v{t + 2}
    v_cndmask_b32 v{t + 2}, 0, 1.0, vcc
    v_add_u32 v{t + 5}, {L_M2}, v{vT16}""")
    for g in range(2):
        r = M2R + 16 * g
        sum4(r)
        round_add(r, t + 2 if g else None, t)
        if g:
            unpack(t + 6, t + 7, 192)
            unpack(t + 8, t + 9, 193)
            A(f'''v_mov_b32 v{t + 3}, {f2u(1.0 / GA)}
            v_cmp_lt_u32 vcc, 223, v0
            v_cndmask_b32 v{t + 2}, 1.0, v{t + 3}, vcc''')
            for p in (0, 2):
                pk('mul', t + 6 + p, t + 6 + p, r + p)
                pk('mul', r + p, r + p, t + 2, mods='op_sel_hi:[1,0]')
            A(f'''v_max_u32 v{t + 3}, {223 * 16}, v{vT16}
            v_add_u32 v{t + 3}, {L_M2 + 8192 - 223 * 16}, v{t + 3}
            ds_write_b128 v{t + 3}, {vr(t + 6, 4)}''')
        A(f'ds_write_b128 v{t + 5}, {vr(r, 4)} offset:{4096 * g}')
    unpack(t + 6, t + 7, 194)
    unpack(t + 8, t + 9, 195)
    A(f's_mov_b32 s{sT2}, {f2u(GA)}\ns_mov_b32 s{sT0}, {L_B1}')
    for p in (0, 2):
        pk('mul', t + 6 + p, t + 6 + p, sr(sT2, 2), mods='op_sel_hi:[1,0]')
    A(f'''v_lshl_add_u32 v{t + 3}, v{vL31}, 4, s{sT0}
    ds_write_b128 v{t + 3}, {vr(t + 6, 4)}''')
    for k in range(10):
        A(f'v_accvgpr_read_b32 v{X3R + k}, a{240 + k}')
    for k in range(10):
        unpack(K3_X + 2 * k, K3_X + 2 * k + 1, X3R + k)


def k3_const():
    t = TMP
    A(f'''v_lshlrev_b32 v{t}, 2, v{vL31}
    v_add_u32 v{t}, s{sW}, v{t}
    v_cvt_f32_u32 v{t}, v{t}
    v_mul_f32 v{t}, {f2u(1.0 / 128)}, v{t}
    v_cvt_f32_u32 v{t + 8}, v{vH}
    v_mul_f32 v{t + 8}, 4.0, v{t + 8}
    v_mul_f32 v{t + 1}, v{t + 8}, v{t}''')
    for u in range(4):
        for jp in (0, 2):
            fmamk(t + 2, t, 8 * u + jp, t + 1)
            fmamk(t + 5, t, 8 * u + jp + 1, t + 1)
            sincos(t + 2, t + 3, t + 4)
            sincos(t + 5, t + 6, t + 7)
            for jj, e in ((jp, 3), (jp + 1, 6)):
                A(f'v_cvt_pk_bf16_f32 v{K3_MA + 4 * u + jj}, v{t + e}, -v{t + e + 1}')
                A(f'v_cvt_pk_bf16_f32 v{K3_MA + 16 + 4 * u + jj}, v{t + e + 1}, v{t + e}')
    A(f'''v_lshrrev_b32 v{t}, 3, v{vL31}
    v_cvt_f32_u32 v{t}, v{t}
    v_mul_f32 v{t}, {f2u(0.4)}, v{t}
    v_and_b32 v{t + 1}, 7, v{vL}
    v_cvt_f32_u32 v{t + 1}, v{t + 1}
    v_mul_f32 v{t + 1}, {f2u(0.125)}, v{t + 1}
    v_mul_f32 v{t + 9}, v{t + 8}, v{t + 1}''')
    for jj in range(4):
        fmamk(t + 10, t + 1, jj, t + 9)
        for tau in range(3):
            fmamk(t + 2, t, tau, t + 10)
            sincos(t + 2, t + 3, t + 4)
            if tau:
                A(f'v_add_f32 v{t + 5}, {f2u(1.6 * tau)}, v{t + 10}')
                sincos(t + 5, t + 6, t + 7)
            A(f'v_cvt_pk_bf16_f32 v{K3_MB + 4 * tau + jj}, v{t + 3}, -v{t + 4}')
            if tau:
                A(f'v_cvt_pk_bf16_f32 v{K3_MB + 12 + 4 * tau + jj}, v{t + 6}, -v{t + 7}')
            else:
                A(f'v_mov_b32 v{K3_MB + 12 + jj}, v{K3_MB + jj}')


def k3_loads():
    return ''.join(f'buffer_load_dwordx4 {vr(K3_IN + 4 * m, 4)}, v{vK3A + (m >> 1)}, {srd(S_WS)}, s{sLD + m} offen sc1\n' for m in range(4))


def k3_ldaddr():
    t = TMP
    A(f'''v_lshrrev_b32 v{t}, 5, v0
    v_sub_u32 v{t + 1}, 8, v{t}
    v_and_b32 v{t + 1}, 7, v{t + 1}
    v_lshrrev_b32 v{t + 2}, 2, v{vL31}
    v_lshl_add_u32 v{t}, v{t}, 5, v{t + 2}
    v_lshl_add_u32 v{t + 1}, v{t + 1}, 5, v{t + 2}
    v_mul_u32_u24 v{t}, {BS}, v{t}
    v_mul_u32_u24 v{t + 1}, {BS}, v{t + 1}
    v_and_b32 v{t + 2}, 3, v{vL}
    v_lshl_add_u32 v{vK3A}, v{t + 2}, 4, v{t}
    v_lshl_add_u32 v{vK3B}, v{t + 2}, 4, v{t + 1}
    s_add_u32 s{sLD}, s{sMODST}, {WS_TP}''')
    for m in range(1, 4):
        A(f's_add_u32 s{sLD + m}, s{sLD}, {8 * m * BS}')


aWA, aRA, aYA = 8, 11, 12
aYR, aSEL, aX1 = 84, 86, 87
aRW, aRR, aY2, aMO = 89, 91, 92, 93
ST3 = 18
vEPS = 22
GK = 2.0 * 0.7978845608028654 * 1.4426950408889634
GA = (GK * 0.044715) ** (1.0 / 3.0)


def k3_addr():
    t = 95
    A(f'v_lshrrev_b32 v{t}, 5, v0')
    A(f'v_mul_u32_u24 v{t}, 144, v{t}')
    for c in range(3):
        A(f'''v_add_u32 v{t + 1}, {13 * c}, v{vL31}
        v_and_b32 v{t + 1}, 31, v{t + 1}
        v_lshl_add_u32 v{t + 1}, v{t + 1}, 2, v{t}
        v_add_u32 v{aWA + c}, {L_K3I + 8 * 144 * c}, v{t + 1}''')
    A(f'''s_mul_i32 s{sT0}, s{sW}, 3584
    s_add_u32 s{sT0}, s{sT0}, {L_K3I}
    v_mul_u32_u24 v{t}, 144, v{vL31}
    v_lshl_add_u32 v{t}, v{vH}, 4, v{t}
    v_add_u32 v{aRA}, s{sT0}, v{t}''')
    A(f'''v_lshl_add_u32 v{t}, v{vL31}, 2, s{sW}
    v_mul_u32_u24 v{t + 1}, 3, v{t}
    v_mul_u32_u24 v{t + 2}, 5120, v{vH}
    v_lshl_add_u32 v{t}, v{t}, 2, v{t + 2}
    v_add_u32 v{t}, {L_Y}, v{t}''')
    for a in range(5):
        A(f'v_add_u32 v{t + 2}, {2 * a}, v{t + 1}')
        mod5(t + 2, t + 2, t + 3)
        A(f'v_lshl_add_u32 v{aYA + a}, v{t + 2}, 9, v{t}')
    A(f'''s_mul_i32 s{sT0}, s{sW}, 2560
    s_add_u32 s{sT1}, s{sT0}, {L_Y}
    v_lshl_add_u32 v{aYR}, v{vL31}, 5, s{sT1}
    v_lshl_add_u32 v{aYR + 1}, v{vL31}, 4, s{sT1}
    s_mov_b32 s{sT1}, {L_M2}
    v_lshl_add_u32 v{aMO}, v{vL31}, 5, s{sT1}
    v_lshl_add_u32 v{aMO + 1}, v{vL31}, 4, s{sT1}
    v_mov_b32 v{t}, 0x01000c0c
    v_mov_b32 v{t + 1}, 0x03020c0c
    v_cmp_eq_u32 vcc, 1, v{vH}
    v_cndmask_b32 v{aSEL}, v{t}, v{t + 1}, vcc
    s_lshl_b32 s{sST + 3}, s{sW}, 9
    s_add_u32 s{sST + 3}, s{sST + 3}, s{sME}
    s_mul_i32 s{sST + 3}, s{sST + 3}, 1280
    s_mul_i32 s{sST}, s{sJ}, 10
    s_add_u32 s{sST}, s{sST}, s{sW}
    s_mul_i32 s{sST}, s{sST}, {BS}
    s_lshl_b32 s{sT1}, s{sCL}, 10
    s_add_u32 s{sST}, s{sST}, s{sT1}
    s_add_u32 s{sST}, s{sST}, {WS_Y2}
    s_add_u32 s{sST + 1}, s{sST}, {4 * BS}
    s_add_u32 s{sST + 2}, s{sST}, {8 * BS}
    s_cmp_lt_u32 s{sW}, 2
    s_cselect_b32 s{sST + 2}, s{sST + 2}, {OOB}
    v_mul_u32_u24 v{t}, {256 * 1280}, v{vH}
    v_lshl_add_u32 v{aX1}, v{vL31}, 4, v{t}
    v_lshl_add_u32 v{aX1 + 1}, v{vL31}, 3, v{t}''')
    A(f'''s_lshl_b32 s{sT2}, s{sW}, 1
    v_add_u32 v{t}, s{sT2}, v{vH}
    v_xor_b32 v{t + 1}, v{t}, v{vL31}
    v_and_b32 v{t + 1}, 7, v{t + 1}
    v_lshlrev_b32 v{t + 1}, 4, v{t + 1}
    v_lshl_add_u32 v{t + 1}, v{vL31}, 7, v{t + 1}
    v_add_u32 v{aRW}, {L_Y2}, v{t + 1}
    v_lshrrev_b32 v{t + 2}, 1, v{vL31}
    v_xor_b32 v{t + 3}, v{t}, v{t + 2}
    v_and_b32 v{t + 3}, 7, v{t + 3}
    v_lshlrev_b32 v{t + 3}, 4, v{t + 3}
    v_lshl_add_u32 v{t + 3}, v{t + 2}, 7, v{t + 3}
    v_and_b32 v{t + 2}, 1, v{vL}
    v_lshl_add_u32 v{t + 3}, v{t + 2}, 3, v{t + 3}
    v_add_u32 v{aRW + 1}, {L_Y2 + 64 * 128}, v{t + 3}
    v_lshrrev_b32 v{t + 2}, 3, v0
    v_xor_b32 v{t + 4}, v{t + 2}, v0
    v_and_b32 v{t + 4}, 7, v{t + 4}
    v_lshlrev_b32 v{t + 4}, 4, v{t + 4}
    v_lshl_add_u32 v{t + 4}, v{t + 2}, 7, v{t + 4}
    v_add_u32 v{aRR}, {L_Y2}, v{t + 4}
    v_mov_b32 v{vEPS}, {f2u(1e-5 / GA ** 2)}''')


def row_stats(b, t, scale=None):
    pk('add', t, b, b + 2)
    pk('mul', t + 2, b, b)
    for k in range(1, 10):
        if k > 1:
            pk('add', t, t, b + 2 * k)
        pk('fma', t + 2, b + 2 * k, b + 2 * k, t + 2)
    A(f'''v_add_f32 v{t}, v{t}, v{t + 1}
    v_add_f32 v{t + 2}, v{t + 2}, v{t + 3}
    v_permlane16_swap_b32 v{t}, v{t + 2}
    v_add_f32 v{t}, v{t}, v{t + 2}''')
    for r in (8, 4, 2, 1):
        A(f'v_add_f32_dpp v{t}, v{t}, v{t} row_ror:{r} row_mask:0xf bank_mask:0xf')
    A(f'''v_mul_f32 v{t + 1}, {f2u(1.0 / 640)}, v{t}
    v_mul_f32 v{t + 2}, {f2u(1.0 / 640)}, v{t}
    v_permlane16_swap_b32 v{t + 1}, v{t + 2}
    v_fma_f32 v{t}, -v{t + 1}, v{t + 1}, v{t + 2}
    v_max_f32 v{t}, 0, v{t}''')
    if scale is None:
        A(f'v_add_f32 v{t}, {f2u(1e-5)}, v{t}')
    else:
        A(f'v_fmamk_f32 v{t}, v{t}, {f2u(1.0 / scale ** 2)}, v{vEPS}')
    A(f'''v_rsq_f32 v{t}, v{t}
    v_mul_f32 v{t + 1}, v{t + 1}, v{t}''')


def k3_poll():
    tg = [K3_IN + 4 * m + 3 for m in range(4)]
    poll_check('tp', masked(k3_loads(), tg), tagcheck(tg, ST3))
    stamp('Tp')


def k3_main():
    Z, P, Q = 40, 48, 56
    for c in range(3):
        if c == 0:
            src = [K3_IN + 4 * k for k in range(4)]
        else:
            r0 = 1 if c == 1 else 3
            for k in range(4):
                A(f'v_cndmask_b32 v{Q + k}, v{K3_IN + 4 * ((k + r0) % 4) + c}, v{K3_IN + 4 * ((k + r0 + 1) % 4) + c}, {sr(sM1 if c == 1 else sM2, 2)}')
            src = [Q + k for k in range(4)]
        z = Z + 20 * (c & 1)
        for k in range(4):
            unpack(z + 2 * k, z + 2 * k + 1, src[k])
        radix4(z, P, True)
        for k in (0, 1):
            A(f'v_cvt_pk_bf16_f32 v{z + 2 * k}, v{z + 2 * k}, v{z + 2 * k + 1}')
            A(f'v_cvt_pk_bf16_f32 v{z + 2 * k + 4}, v{z + 2 * k + 4}, v{z + 2 * k + 5}')
            A(f'ds_write2st64_b32 v{aWA + c}, v{z + 2 * k}, v{z + 2 * k + 4} offset0:{14 * k} offset1:{14 * k + 28}')
    fine(3, '3a_wr')
    A('s_waitcnt lgkmcnt(0)\ns_barrier')
    fine(3, '3b_bar')
    OPA = 24
    DRE, DIM = 40, 56
    for u in range(4):
        A(f'ds_read_b128 {vr(OPA + 4 * u, 4)}, v{aRA} offset:{32 * u}')
    mo = []
    for v, dst in enumerate((K3_GA, K3_SB, K3_CB)):
        for k in range(4):
            mo.append(f'ds_read_b128 {vr(dst + 4 * k, 4)}, v{aMO} offset:{2560 * v + 1024 * (k >> 1) + 16 * (k & 1)}')
        mo.append(f'ds_read_b128 {vr(dst + 16, 4)}, v{aMO + 1} offset:{2560 * v + 2048}')
    for u in range(4):
        A(f'v_mfma_f32_32x32x16_bf16 {vr(DRE, 16)}, {vr(OPA + 4 * u, 4)}, {vr(K3_MA + 4 * u, 4)}, {vr(DRE, 16) if u else 0}')
        A(mo.pop(0))
        A(mo.pop(0))
        A(f'v_mfma_f32_32x32x16_bf16 {vr(DIM, 16)}, {vr(OPA + 4 * u, 4)}, {vr(K3_MA + 16 + 4 * u, 4)}, {vr(DIM, 16) if u else 0}')
        if u:
            A(mo.pop(0))
            A(mo.pop(0))
    A(mo.pop(0))
    fine(3, '3c_stA')
    OPB = 72
    E0, E1 = 100, 116
    def cvb(tau):
        for jj in range(4):
            A(f'v_cvt_pk_bf16_f32 v{OPB + 4 * tau + jj}, v{DRE + 4 * tau + jj}, v{DIM + 4 * tau + jj}')
    cvb(0)
    for tau in range(3):
        A(f'v_mfma_f32_32x32x16_bf16 {vr(E0, 16)}, {vr(K3_MB + 4 * tau, 4)}, {vr(OPB + 4 * tau, 4)}, {vr(E0, 16) if tau else 0}')
        if tau < 2:
            cvb(tau + 1)
            A('s_nop 1')
    for tau in range(3):
        A(f'v_mfma_f32_32x32x16_bf16 {vr(E1, 16)}, {vr(K3_MB + 12 + 4 * tau, 4)}, {vr(OPB + 4 * tau, 4)}, {vr(E1, 16) if tau else 0}')
        if tau < 2:
            A('s_nop 4')
    fine(3, '3d_stB')
    for a in range(5):
        e = E0 + 4 * a
        A(f'v_cvt_pk_bf16_f32 v{24 + 2 * a}, v{e}, v{e + 1}')
        A(f'v_cvt_pk_bf16_f32 v{25 + 2 * a}, v{e + 2}, v{e + 3}')
        A(f'ds_write2st64_b32 v{aYA + a}, v{24 + 2 * a}, v{25 + 2 * a} offset0:0 offset1:10')
    fine(3, '3e_wr')
    A('s_waitcnt lgkmcnt(0)\ns_barrier')
    fine(3, '3f_bar')
    Y = 40
    for k in range(4):
        A(f'ds_read_b128 {vr(Y + 4 * k, 4)}, v{aYR} offset:{1024 * (k >> 1) + 16 * (k & 1)}')
    A(f'ds_read_b128 {vr(Y + 16, 4)}, v{aYR + 1} offset:2048')
    fine(3, '3g_rd')
    PK = 24
    for k in range(10):
        A(f'v_perm_b32 v{Y + 2 * k}, v{Y + 2 * k}, v{Y + 2 * k}, v{aSEL}')
        A(f'v_perm_b32 v{Y + 2 * k + 1}, v{Y + 2 * k + 1}, v{Y + 2 * k + 1}, v{aSEL}')
        pk('fma', Y + 2 * k, Y + 2 * k, K3_GA + 2 * k, K3_X + 2 * k)
    X1 = A.capture(lambda: [A(f'v_cvt_pk_bf16_f32 v{PK + k}, v{Y + 2 * k}, v{Y + 2 * k + 1}') for k in range(10)])
    st = A.capture(lambda: row_stats(Y, ST3))
    n0 = 21
    A.items.extend(st[:n0])
    for i in st[n0:]:
        if X1:
            A.items.append(X1.pop(0))
        A.items.append(i)
    A.items.extend(X1)
    fine(3, '3h_st1')
    xs = ' sc1' if OPT['x1sc'] else ''
    A(f'''buffer_store_dwordx4 {vr(PK, 4)}, v{aX1}, {srd(S_OUT)}, s{sST + 3} offen{xs}
    buffer_store_dwordx4 {vr(PK + 4, 4)}, v{aX1}, {srd(S_OUT)}, s{sST + 3} offen offset:512{xs}
    buffer_store_dwordx2 {vr(PK + 8, 2)}, v{aX1 + 1}, {srd(S_OUT)}, s{sST + 3} offen offset:1024{xs}''')
    fine(3, '3i_x1')
    nm = 'op_sel:[0,0,1] op_sel_hi:[1,0,1] neg_lo:[0,0,1] neg_hi:[0,0,1]'
    if not OPT['cutx'] & 2:
        for k in range(10):
            pk('fma', Y + 2 * k, Y + 2 * k, ST3, ST3, mods=nm)
            pk('fma', Y + 2 * k, Y + 2 * k, K3_CB + 2 * k, K3_SB + 2 * k)
        row_stats(Y, ST3, GA)
    fine(3, '3j_st2')
    PK = 60
    for k in range(10):
        pk('fma', Y + 2 * k, Y + 2 * k, ST3, ST3, mods=nm)
        A(f'v_cvt_pk_bf16_f32 v{PK + k}, v{Y + 2 * k}, v{Y + 2 * k + 1}')
        if k == 3:
            A(f'ds_write_b128 v{aRW}, {vr(PK, 4)}')
        if k == 7:
            A(f'ds_write_b128 v{aRW}, {vr(PK + 4, 4)} offset:4096')
    A(f'ds_write_b64 v{aRW + 1}, {vr(PK + 8, 2)}')


def k3_tail():
    fine(3, '3k_wr')
    A('s_waitcnt lgkmcnt(0)\ns_barrier')
    fine(3, '3l_bar')
    for i in range(3):
        A(f'ds_read_b128 {vr(24 + 4 * i, 4)}, v{aRR} offset:{4096 * i}')
    for i in range(3):
        A(f'buffer_store_dwordx4 {vr(24 + 4 * i, 4)}, v{vLY}, {srd(S_WS)}, s{sST + i} offen{YSC}')


G1_A = 24
G1_ACC = 184
G1_B = 232
NS, PRE = 4, 3
aB, aPW, aPR, vH4, vG1A, vGC, vT1 = 8, 12, 16, 18, 20, 22, 23
vG1X = 18
B1RAW = 132
sHB = 72
PARTS = [[(ks, tl) for ks in range(20) for tl in range(4)], [(ks, tl) for ks in range(20) for tl in (4, 5)]]


def b1_issue():
    A(f"""s_mul_i32 s{sBG2}, s{sJ}, 192
    v_lshlrev_b32 v{vBG}, 3, v{vQ}""")
    for k in range(6):
        A(f'buffer_load_dwordx2 {vr(B1RAW + 2 * k, 2)}, v{vBG}, {srd(S_B1)}, s{sBG2} offen offset:{32 * k}')


def g1_load(i):
    ks, r = divmod(i, 2)
    pre = f's_add_u32 s{sLD}, s{sLD}, {BS}\n' if i and i % 4 == 0 else ''
    return pre + f'buffer_load_dwordx4 {vr(G1_A + 4 * i, 4)}, v{(vG1A if ks & 1 else vG1X) + r}, {srd(S_WS)}, s{sLD} offen offset:{512 * (ks & 1)} sc1'


def g1_rd(part, n):
    ks, tl = PARTS[part][n]
    s = G1_B + 4 * (n % NS)
    off = BIG + 30720 * ((ks // 5) & 1)
    if part:
        return [f'ds_read_b128 {vr(s, 4)}, v{vL16 if ks < 10 else aB} offset:{off + 20480 + 1024 * (n % 10)}']
    off += 4096 * (ks % 5)
    out = [f'ds_read_b64_tr_b16 {vr(s, 2)}, v{aB + tl} offset:{off}', f'ds_read_b64_tr_b16 {vr(s + 2, 2)}, v{aB + tl} offset:{off + 512}']
    if ks == 9:
        out[1] += f'\nv_add_u32 v{aB + tl}, 61440, v{aB + tl}'
    return out


def g1_bias():
    A(f's_mov_b32 s{sT2}, {L_B1}\nv_lshl_add_u32 v14, v{vQ}, 4, s{sT2}')
    for tl in range(6):
        for r in range(2):
            A(f'ds_read_b128 {vr(G1_ACC + 8 * tl + 4 * r, 4)}, v14 offset:{64 * tl}')


def g1_pre():
    t = 12
    A(f"""v_lshrrev_b32 v{t}, 3, v{vL15}
    v_mul_u32_u24 v{t}, {10 * BS}, v{t}
    v_lshl_add_u32 v{t}, v{vQ}, 7, v{t}
    v_and_b32 v{t + 1}, 7, v{vL}
    v_lshl_add_u32 v{vG1A}, v{t + 1}, 4, v{t}
    v_add_u32 v{vG1A + 1}, {20 * BS}, v{vG1A}
    v_mov_b32 v{t}, {SKIP if OPT['sk'] & 4 else 0}
    v_cmp_eq_u32 vcc, 3, v{vQ}
    v_cndmask_b32 v{t}, 0, v{t}, vcc
    v_add_u32 v{vG1X}, v{t}, v{vG1A}
    v_add_u32 v{vG1X + 1}, v{t}, v{vG1A + 1}
    s_mul_i32 s{sT0}, s{sW}, {40 * BS}
    s_lshl_b32 s{sT1}, s{sCL}, 10
    s_add_u32 s{sT0}, s{sT0}, s{sT1}
    s_add_u32 s{sLD}, s{sT0}, {WS_Y2}""")
    A(f"""v_lshrrev_b32 v{t}, 2, v{vL15}
    v_lshl_add_u32 v{t}, v{vQ}, 3, v{t}
    v_lshlrev_b32 v{t}, 7, v{t}
    v_and_b32 v{t + 1}, 3, v{vL}
    v_lshl_add_u32 v{t}, v{t + 1}, 3, v{t}
    v_bfe_u32 v{t + 1}, v{vL}, 3, 2
    v_lshl_add_u32 v{aB}, v{t + 1}, 5, v{t}
    v_xor_b32 v{aB + 1}, 32, v{aB}
    v_xor_b32 v{aB + 2}, 64, v{aB}
    v_xor_b32 v{aB + 3}, 96, v{aB}""")


def g1_part(part, side):
    fr = PARTS[part]
    for n, (ks, tl) in enumerate(fr):
        rd = g1_rd(part, n + PRE) if n + PRE < len(fr) else []
        for r in range(2):
            acc = vr(G1_ACC + 8 * tl + 4 * r, 4)
            A(f'v_mfma_f32_16x16x32_bf16 {acc}, {vr(G1_B + 4 * (n % NS), 4)}, {vr(G1_A + 4 * (2 * ks + r), 4)}, {acc}')
            if r < len(rd):
                A(rd[r])
        for x in side.get(n, []):
            if callable(x):
                x()
            else:
                A.items.extend(x)


def place(side, groups, lo, hi):
    for k, g in enumerate(groups):
        side.setdefault(lo + (hi - lo) * k // max(len(groups), 1), []).append(g)


def late_addr():
    t = vT1
    if OPT['hr']:
        A(f'''s_and_b32 s{sDW}, s{sJ}, {[0, 1, 1, 3][OPT['hr']]}
        s_lshl_b32 s{sDW}, s{sDW}, {[0, 1, 0, 0][OPT['hr']]}
        s_add_u32 s{sDW}, s{sDW}, s{sW}
        s_and_b32 s{sDW}, s{sDW}, 3''')
    A(f"""s_mul_i32 s{sST}, s{sCL}, 393216
    s_add_u32 s{sST}, s{sST}, {WS_H}
    s_lshr_b32 s{sT0}, s{sJ}, 3
    s_mul_i32 s{sT0}, s{sT0}, {4 * 48 * 1024}
    s_add_u32 s{sT0}, s{sT0}, s{sST}
    s_mul_i32 s{sT1}, s{sW}, {12 * 1024}
    s_add_u32 s{sT0}, s{sT0}, s{sT1}
    s_mul_i32 s{sT1}, s{sW}, {96 * 1024}
    s_add_u32 s{sST}, s{sST}, s{sT1}
    s_mul_i32 s{sT1}, s{sJ}, 3072
    s_add_u32 s{sST}, s{sST}, s{sT1}
    s_add_u32 s{sST + 1}, s{sST}, {48 * 1024}
    v_mov_b32 v{vGC}, {f2u(GK / GA)}""")
    flag_prep(1)
    A(f"""v_mul_u32_u24 v{t}, {RS}, v{vL15}
    v_lshl_add_u32 v{t}, v{vQ}, 4, v{t}""")
    for blk in range(4):
        A(f"""s_add_u32 s{sT1}, s{sDW}, {blk + 1}
        s_and_b32 s{sT1}, s{sT1}, 3
        s_mul_i32 s{sT2}, s{sT1}, {48 * 1024}
        s_add_u32 s{sHB + blk}, s{sT0}, s{sT2}
        s_mul_i32 s{sT1}, s{sT1}, {4 * PS}
        s_add_u32 s{sT1}, s{sT1}, {blk * PS}
        v_add_u32 v{aPW + blk}, s{sT1}, v{t}""")
    A(f"""v_lshrrev_b32 v{aPR}, 2, v{vL}
    v_and_b32 v{vOA}, 7, v{aPR}
    v_mul_u32_u24 v{aPR}, {RS}, v{aPR}
    s_mul_i32 s{sT2}, s{sDW}, {4 * PS}
    v_add_u32 v{aPR}, s{sT2}, v{aPR}
    v_and_b32 v{t}, 3, v{vL}
    v_lshl_add_u32 v{aPR + 1}, v{t}, 4, v{aPR}
    v_lshl_add_u32 v{aPR}, v{t}, 5, v{aPR}
    s_and_b32 s{sT0}, s{sPID}, 0xf8
    s_lshl_b32 s{sT1}, s{sDW}, 1
    s_add_u32 s{sT0}, s{sT0}, s{sT1}
    s_and_b32 s{sT2}, s{sJ}, 7
    s_mul_i32 s{sT3}, s{sT2}, 160
    v_lshlrev_b32 v{vOA}, 8, v{vOA}
    v_add3_u32 v{vOA}, v{vH}, v{vOA}, s{sT0}
    v_mul_u32_u24 v{vOA}, 1280, v{vOA}
    v_add_u32 v{vOA}, s{sT3}, v{vOA}
    v_lshl_add_u32 v{vOC}, v{t}, 3, v{vOA}
    v_lshl_add_u32 v{vOA}, v{t}, 4, v{vOA}""")


def gelu_unit(u, r):
    b = G1_ACC + 16 * u + 4 * r
    regs = [b, b + 2, b + 8, b + 10]
    e = G1_B
    o = G1_B + 8 + 4 * r
    for k, x in enumerate(regs):
        pk('fma', e + 2 * k, x, x, vGC, mods='op_sel_hi:[1,1,0]')
    for k, x in enumerate(regs):
        pk('mul', e + 2 * k, e + 2 * k, x, mods=NEG1)
    for k in range(0 if OPT['cutx'] & 4 else 8):
        A(f'v_exp_f32 v{e + k}, v{e + k}')
    for k in range(4):
        pk('add', e + 2 * k, e + 2 * k, '1.0', mods='op_sel_hi:[1,0]')
    for k in range(8):
        A(f'v_rcp_f32 v{e + k}, v{e + k}')
    for k, x in enumerate(regs):
        pk('mul', e + 2 * k, e + 2 * k, x)
    for k in range(4):
        A(f'v_cvt_pk_bf16_f32 v{o + k}, v{e + 2 * k}, v{e + 2 * k + 1}')
    A(f'buffer_store_dwordx4 {vr(o, 4)}, v{vLW}, {srd(S_WS)}, s{sST + r} offen offset:{1024 * u} sc1')


G2_H = 24
NH = 20
FINR = 104
G2_ACC = 120
G2_BASE = 200
G2_GB = 220
vOA, vOC = 248, 249
RS = 336
PS = 16 * RS
OA = OPT['oa']
G2SEQ = [(b, k) for b in range(3) for k in KA] + [(3, k) for k in KA[:OA]] + [(b, k) for b in range(3) for k in KB] + [(3, k) for k in KA[OA:] + KB]
NGA = 24 + OA


def fin_issue():
    R = FINR
    A(f"""buffer_load_dwordx4 {vr(R, 4)}, v{vOA}, {srd(S_OUT)}, 0 offen sc1
    buffer_load_dwordx4 {vr(R + 4, 4)}, v{vOA}, {srd(S_OUT)}, 0 offen offset:64 sc1
    buffer_load_dwordx2 {vr(R + 8, 2)}, v{vOC}, {srd(S_OUT)}, 0 offen offset:128 sc1""")


def fin_finish():
    t = vG1A
    A(f"""v_and_b32 v{t}, 3, v{vL}
    v_lshlrev_b32 v{t + 1}, 4, v{t}
    v_add_u32 v{t + 1}, {L_M2 + 7680}, v{t + 1}
    v_lshl_add_u32 v{t}, v{t}, 4, v{t + 1}""")
    for dst, off in ((G2_BASE, 528), (G2_GB, 0)):
        for k in range(4):
            A(f'ds_read_b128 {vr(dst + 4 * k, 4)}, v{t} offset:{off + 128 * (k >> 1) + 16 * (k & 1)}')
        A(f'ds_read_b128 {vr(dst + 16, 4)}, v{t + 1} offset:{off + 256}')
    for k in range(10):
        unpack(114, 115, FINR + k)
        A(f'v_add_f32 v{G2_BASE + 2 * k}, v114, v{G2_BASE + 2 * k}')
        A(f'v_add_f32 v{G2_BASE + 2 * k + 1}, v115, v{G2_BASE + 2 * k + 1}')


def g2_load(n):
    blk, kl = G2SEQ[n]
    return f'buffer_load_dwordx4 {vr(G2_H + 4 * (n % NH), 4)}, v{[vLW, vH4, vH4 + 1][kl // 4]}, {srd(S_WS)}, s{sHB + blk} offen offset:{1024 * (kl % 4)} sc1'


def g2_main(nxt, bg):
    LA = OPT['la2']

    def rdp(dst, slot):
        out = [f'ds_read_b128 {vr(dst + 4 * k, 4)}, v{aPR} offset:{slot * PS + 128 * (k >> 1) + 16 * (k & 1)}' for k in range(4)]
        out.append(f'ds_read_b128 {vr(dst + 16, 4)}, v{aPR + 1} offset:{slot * PS + 256}')
        return out
    side = {}

    def put(pos, x):
        side.setdefault(pos, []).append(x)
    place(side, bg, 2, 5 * (NGA - 8))
    for k, x in enumerate(A.capture(fin_finish)):
        put(6 + k + k // 4, [x])
    put(OPT['pb'], lambda: flag_publish(2))
    put(OPT['qb'], lambda: A(flag_ld(2)))
    put(OPT['cb'], lambda: (flag_check(2), stamp('hb')))
    m0 = 5 * NGA
    for b in range(3):
        for nt in range(5):
            put(m0 + 20 * (b + 1) + 4 + 2 * nt, lambda b=b, nt=nt: A(f'ds_write_b128 v{aPW + b}, {vr(G2_ACC + 20 * b + 4 * nt, 4)} offset:{64 * nt}'))
    m1 = m0 + 60
    put(m1 + 15, lambda: A('s_waitcnt lgkmcnt(0)\ns_barrier'))
    pos = m1 + 15
    for sl in range(3):
        for x in rdp(G2_ACC + 20 * sl, sl):
            put(pos, lambda x=x: A(x))
            pos += 1 if sl else 0
        pos += 0 if sl else 1
    ops = [f'v_fmac_f32 v{G2_BASE + k}, v{G2_GB + k}, v{G2_ACC + 20 * sl + k}' for sl in range(3) for k in range(20)]
    for p_ in range(m1 + 21, 240):
        n_ = 1 if p_ < m1 + 26 else 2
        for x in ops[:n_]:
            put(p_, lambda x=x: A(x))
        ops = ops[n_:]
    seen = set()
    for n, (blk, kl) in enumerate(G2SEQ):
        acc = G2_ACC + 20 * blk
        for nt in range(5):
            A(f'v_mfma_f32_16x16x32_bf16 {vr(acc + 4 * nt, 4)}, {ar((kl * 5 + nt) * 4, 4)}, {vr(G2_H + 4 * (n % NH), 4)}, {vr(acc + 4 * nt, 4) if blk in seen else 0}')
            m = 5 * n + nt
            for x in side.get(m, []):
                if callable(x):
                    x()
                else:
                    A.items.extend(x)
            if nt in (0, 3) and nxt < 48 and nxt <= n + LA and nxt - NH < n and (nxt < NGA or m >= OPT['cb']):
                A(g2_load(nxt))
                nxt += 1
        seen.add(blk)
        assert nxt > n + 1 or nxt == 48, n
    stamp('g2')
    for x in ops:
        A(x)
    pa = G2_ACC + 60
    for nt in range(5):
        A(f'ds_write_b128 v{aPW + 3}, {vr(pa + 4 * nt, 4)} offset:{64 * nt}')
    R = G2_ACC
    for x in rdp(R, 3):
        A(x)
    for k in range(10):
        pk('fma', R + 2 * k, R + 2 * k, G2_GB + 2 * k, G2_BASE + 2 * k)
        A(f'v_cvt_pk_bf16_f32 v{R + 20 + k}, v{R + 2 * k}, v{R + 2 * k + 1}')
        if k == 3:
            A(f'buffer_store_dwordx4 {vr(R + 20, 4)}, v{vOA}, {srd(S_OUT)}, 0 offen{OSC}')
        if k == 7:
            A(f'buffer_store_dwordx4 {vr(R + 24, 4)}, v{vOA}, {srd(S_OUT)}, 0 offen offset:64{OSC}')
    A(f'buffer_store_dwordx2 {vr(R + 28, 2)}, v{vOC}, {srd(S_OUT)}, 0 offen offset:128{OSC}')


def mlp(slot):
    A.spread(A.capture(seq(g1_bias, g1_pre)), slot(9), 0, 0.9)
    flag_publish(0)
    stamp('pub0')
    A(flag_ld(0))
    A('s_barrier')
    for n in range(PRE):
        A('\n'.join(g1_rd(0, n)))
    flag_check(0)
    stamp('y2')
    LA = OPT['la1']
    for i in range(LA):
        A(g1_load(i))
    side = {}
    for i in range(LA, 40):
        side.setdefault((i - LA) * OPT['r1'] // 10, []).append(lambda i=i: A(g1_load(i)))
    place(side, [[x] for x in A.capture(late_addr)], 0, 78)
    place(side, slot(10), OPT['g1s'], 80)
    g1_part(0, side)
    A('s_barrier')
    stamp('g1a')
    A.spread(A.capture(lambda: [gelu_unit(u, r) for u in range(2) for r in range(2)]), slot(11), 0, OPT['gae'] / 100)
    stamp('gelua')
    A(f'''v_add_u32 v{aB}, 61440, v{vL16}
    v_add_u32 v{vH4}, 4096, v{vLW}
    v_add_u32 v{vH4 + 1}, 8192, v{vLW}''')
    if SWB[10] + SWB[11]:
        A(f"s_waitcnt vmcnt({after_last(lambda x: ' lds' in x.text)})\ns_barrier")
    for n in range(PRE):
        A(g1_rd(1, n)[0])
    side = {}
    place(side, slot(12), 0, OPT['qa'] - 4)
    place(side, A.groups(fin_issue), OPT['fq'], min(OPT['fq'] + 6, 40))
    side.setdefault(OPT['pa'], []).append(lambda: flag_publish(1))
    side.setdefault(OPT['qa'], []).append(lambda: A(flag_ld(1)))
    g1_part(1, side)
    A('s_barrier')
    stamp('g1b')
    LA = OPT['la2']
    hl = [A.capture(lambda n=n: A(g2_load(n))) for n in range(LA)]
    bg = slot(13)
    for r in range(2):
        if OPT['ca'] == r:
            flag_check(1)
            stamp('ha')
        k = 0 if r < OPT['ca'] else (len(hl) if r else len(hl) // 2)
        A.spread(A.capture(lambda: gelu_unit(2, r)), (bg if r == 0 else []) + hl[:k], 0, 0.9)
        hl = hl[k:]
    if OPT['ca'] == 2:
        flag_check(1)
        stamp('ha')
        A.emit(hl)
    stamp('gelub')
    g2_main(LA, slot(14))


def seq(*fns):
    def f():
        for x in fns:
            x()
    return f


def weave(bit, fg, bg, lo, hi):
    if OPT['gp'] & bit:
        A.gaps(fg, bg, lo, hi, OPT['gs'])
    else:
        A.spread(fg, bg, lo, hi)


def program():
    if OPT['fixed']:
        A('s_memrealtime s[98:99]')
    if OPT['stamps']:
        A('v_mov_b32 v255, 0')
    stamp('start')
    setup()
    gemv_store_addr()
    code_prefetch(30 * 1024)
    Q = {}

    def slot(k):
        out = []
        for name, cnt in (('F', SF), ('W1', SW1), ('WB', SWB), ('W2', SW2)):
            if cnt[k]:
                if not (OPT['nobg'] >> ['F', 'W1', 'W2', 'WB'].index(name)) & 1:
                    out += Q[name][:cnt[k]]
                Q[name] = Q[name][cnt[k]:]
        if k == OPT['dslot']:
            out = [g if n < len(out) - OPT['dn'] else [x for x in g if x.kind != 'vmem'] for n, g in enumerate(out)]
            out = out[:len(out) - OPT['dn']] + [sum(out[len(out) - OPT['dn']:], [])]
        return out
    Q['F'] = A.groups(filt_dma)
    Q['W1'] = A.groups(w1_dma)
    Q['WB'] = A.groups(wb_dma)
    Q['W2'] = A.groups(w2_load)
    steps = dict(X=x1_issue, R=roles if OPT['late'] in (3, 4) else seq(roles, fmt_prep, fmt_addr), U=fmt_issue, T=touch, A=(lambda: None) if OPT['cutx'] & 16 else k1_const_a, B=k1_const_b, S=seq(silu, lambda: stamp('silu')),
                 G=seq(lambda: gemv_compute(G_W, sMODST), lambda: stamp('gemv')), I=xid_store, f=seq(filt_prep, w1_prep), K=seq(k1_addr, side_prep), F=fmt_finish,
                 L=lambda: A.spread(A.capture(ln1), slot(0), 0, 0.6), Y=x_keep)
    p0a, p0b = OPT['p0'].split('M')
    assert SF[0] + SW1[0] == 0 or p0a.index('f') < p0a.index('L')
    assert sorted(OPT['p0']) == sorted('XRUASGTIfKFLM') and all(c in p0a for c in 'RUSGIKF')
    for c in p0a:
        if not (c == 'X' and OPT['xfirst']) and not (c == 'F' and OPT['late']) and not (c == 'U' and 0 < OPT['late'] < 9):
            steps[c]()
    LU = [A.groups(fmt_issue) if OPT['late'] == k else [] for k in range(4)]
    TW = [A.groups(touch_w) if OPT['tw'] == k else [] for k in range(4)]
    stamp('Miss')
    A(mod1_loads())
    m2 = A.groups(seq(b2_issue, lambda: A(side_loads())))
    M2 = [m2 if OPT['m2'] == k else [] for k in range(7)]
    fq = A.capture(seq(x_keep, k1_const_b, k1_addr2))
    nf = len(fq) * OPT['fk'] // 100
    A.spread(A.capture(seq(*[steps[c] for c in p0b])) + fq[:nf], (LU[1] + slot(1) if OPT['uf'] else slot(1) + LU[1]) + TW[1] + M2[1], 0.1, 0.9)
    k1_poll()
    k1 = A.merge(A.capture(seq(k1_head, k1_main)), fq[nf:])
    cut0 = min(i for i, x in enumerate(k1) if x.op == 's_barrier') + 1
    A.items.extend(k1[:cut0])
    k0 = len(A.items)
    weave(1, k1[cut0:], slot(2) + TW[2] + LU[2] + M2[2], OPT['k1s'] / 100, OPT['k1e'] / 100)
    if OPT['lf'] == 2:
        tail = A.items[k0:]
        mf = [k for k, x in enumerate(tail) if x.kind == 'mfma']
        body = A.capture(fmt_body)
        p1 = OPT['fp'] // 10
        A.items = A.items[:k0] + tail[:mf[p1] + 1]
        A(f's_waitcnt vmcnt({after_last(lambda x: srd(S_W2) in x.text and x.lds)})')
        parts = [body[0:4], body[4:8], [], body[8:9], body[9:10], body[10:11], body[11:12]]
        for n, part in enumerate(parts):
            A.items.extend(part)
            A.items.extend(tail[mf[p1 + n] + 1:mf[p1 + n + 1] + 1])
        A.items.extend(tail[mf[p1 + len(parts)] + 1:])
    stamp('k1')
    if OPT['late'] in (3, 4):
        fmt_prep()
        fmt_addr()
    A.spread(A.capture(seq(k2_const, k2_addr)), LU[3] + slot(3) + TW[3] + M2[3], 0, OPT['s3e'] / 100)
    if OPT['late'] and not OPT['lf']:
        fmt_finish()
    A(f's_waitcnt vmcnt({after_last(lambda x: srd(S_WI) in x.text and x.lds)})\ns_barrier')

    def cut_at(rest, pct):
        c = len(rest) * pct // 100
        lab = [k for k, x in enumerate(rest) if x.kind == 'label']
        if lab and lab[0] < c <= lab[-1]:
            c = lab[-1] + 1
        return c
    early = OPT['m2'] < 5
    rest = A.capture(seq(filt_finish, *([side_finish] if early else [])))
    cutd = cut_at(rest, OPT['td'])
    A.items.extend(rest[:cutd])
    stamp('Tiss')
    A(k2_loads())
    if OPT['late'] == 4:
        fmt_issue()
    A.items.extend(rest[cutd:])
    if OPT['lf'] == 1:
        fmt_finish()
    mark = len(A.items)
    if OPT['lf'] != 3:
        w_prep()
    A.emit(slot(4))
    k2_head()
    k2 = A.capture(k2_main)
    if OPT['lf'] == 3:
        mf = [k for k, x in enumerate(k2) if x.kind == 'mfma']
        body = A.capture(fmt_body)
        A.items.extend(k2[:mf[0] + 1])
        A(f's_waitcnt vmcnt({after_last(lambda x: srd(S_W2) in x.text and x.lds)})')
        for n in range(4):
            A.items.extend(body[2 * n:2 * n + 2] + k2[mf[n] + 1:mf[n + 1] + 1])
        A.spread(k2[mf[4] + 1:mf[7]], [[x] for x in body[8:]], 0.2, 1.0)
        mark = len(A.items)
        w_prep()
        k2 = k2[mf[7]:]
    weave(2, k2, slot(5) + A.groups(seq(xid_load, epoch_store)) + M2[5], 0, OPT['k2e'] / 100)
    if OPT['lf'] in (1, 3):
        ib = max(k for k, x in enumerate(A.items) if x.op == 's_barrier')
        A.items[ib:ib] = A.capture(lambda n=nvm(A.items[mark:ib]): A(f's_waitcnt vmcnt({n})'))
    stamp('k2')
    A.spread(A.capture(seq(k3_const, k3_ldaddr)), slot(6) + M2[6], 0, OPT['s6e'] / 100)
    rest = A.capture(seq(*([] if early else [side_finish]), k3_addr, xid_check, lambda: flag_prep(0)))
    cutd = cut_at(rest, OPT['tpd'])
    A.items.extend(rest[:cutd])
    stamp('Tpiss')
    A(k3_loads())
    A.spread(rest[cutd:], slot(7), 0.3, 1.0)
    k3_poll()
    k3 = A.capture(k3_main)
    bg = slot(8)
    if OPT['late']:
        cut0 = min(i for i, x in enumerate(k3) if x.op == 's_barrier') + 1
        n0 = min(SW1[8], len(bg) // 4)
        A.spread(k3[:cut0], bg[:n0])
        A.spread(k3[cut0:], bg[n0:], 0, OPT['k3e'] / 100)
    else:
        weave(4, k3, bg, 0, OPT['k3e'] / 100)
    k3_tail()
    stamp('k3')
    mlp(slot)
    stamp('end')
    if OPT['stamps']:
        A(f'''s_lshl_b32 s{sT0}, s{sME}, 10
        s_lshl_b32 s{sT1}, s{sW}, 8
        s_add_u32 s{sT0}, s{sT0}, s{sT1}
        s_add_u32 s{sT0}, s{sT0}, {WS_STAMP}
        v_writelane_b32 v255, s{sCNT}, 63
        v_writelane_b32 v255, s{sFAST}, 31
        v_lshlrev_b32 v{TMP}, 2, v{vL}
        buffer_store_dword v255, v{TMP}, {srd(S_WS)}, s{sT0} offen
        ''')
    if OPT['fixed']:
        if OPT['clean']:
            A('s_waitcnt vmcnt(0)\ns_barrier\nbuffer_wbl2 sc1\ns_waitcnt vmcnt(0)')
        if OPT['probe'] >= 0:
            A(f's_mul_i32 s97, s97, 4\ns_add_u32 s97, s97, {OPT["fixed"]}')
        else:
            A(f's_mov_b32 s97, {OPT["fixed"]}')
        A('''L_fix:
        s_memrealtime s[100:101]
        s_waitcnt lgkmcnt(0)
        s_sub_u32 s100, s100, s98
        s_cmp_lt_u32 s100, s97
        s_cbranch_scc1 L_fix''')
    A('L_end:')
    A('s_endpgm')


program()
hdr = open('cdna_kernels/%s.s.ref' % NAME).read().split('; Override launch')[0]
out = hdr
out += f'; @launch grid=(256,1,1) block=(256,1,1) lds={LDS_SIZE}\n'
out += f'''.amdgcn_target "amdgcn-amd-amdhsa--gfx950"
.text
.globl {NAME}_kernel
.p2align 8
.type {NAME}_kernel,@function
{NAME}_kernel:
'''
out += A.text()
out += RETRY.text()
out += f'''L_last:
    s_endpgm
.section .rodata,"a"
.p2align 6
.amdhsa_kernel {NAME}_kernel
  .amdhsa_next_free_vgpr 512
  .amdhsa_next_free_sgpr 102
  .amdhsa_accum_offset 256
  .amdhsa_group_segment_fixed_size 0
  .amdhsa_kernarg_size 104
  .amdhsa_user_sgpr_count 2
  .amdhsa_user_sgpr_kernarg_segment_ptr 1
  .amdhsa_system_sgpr_workgroup_id_x 1
.end_amdhsa_kernel
'''
open(sys.argv[1], 'w').write(out)
if OPT['stamps']:
    open(sys.argv[1] + '.stamps', 'w').write('\n'.join(STAMPS))
```

```python
import sys, os
sys.path.insert(0, os.path.dirname(os.path.abspath(__file__)))
from asmlib import Asm, vr, ar, sr, f2u

NAME = 'adaLN_cond__spectral_gfnet__mixer_channel_mlp__prompt'
OPT = dict(stamps=0, fixed=0, probe=-1, slow=0, spread=1, la1=8, la2=8, align=0, rot=0, touch=2, early=1, xlate=0,
           F='0,3,3,0', W1='0,0,8,4,0,8,4,0,6,0', W2='0,0,0,24,0,6,12,14,0,4', k3e=85, ge=85, r1=18, r2=50, nold=0, rotm=7, nobg=0, P='0,0,0,0', pre=0, wb=0, x1sc=1, hl2=0, w2late=0, mask=1, two=0, tt=0, lp=2, fine=0, pa=22, qa=34, ca=1, oa=4, pb=40, qb=62, cb=84, td=100, tpd=30, clean=0, k1e=90, k2e=92, s3e=40, s6e=40, g1s=60, gae=90, fq=24, n1=0, n2=0, ub=0, um=0)
BEST = 'F=0,3,2,1 W1=0,0,8,4,0,8,4,0,6,0 W2=0,0,0,24,0,9,8,11,4,4 td=85 tpd=45 la1=9 la2=8 k1e=90 k2e=82 k3e=85 s3e=40 s6e=40 g1s=70 gae=100 fq=28 pa=22 qa=32 oa=2 pb=24 qb=62 cb=92 r1=16 ca=1'
for a in BEST.split() + sys.argv[2:]:
    k, v = a.split('=')
    assert k in OPT, k
    OPT[k] = v if ',' in v else int(v)
SF = [int(x) for x in OPT['F'].split(',')] + [0] * 11
SW1 = [int(x) for x in OPT['W1'].split(',')] + [0] * 5
SW2 = [0] * 5 + [int(x) for x in OPT['W2'].split(',')]
SP = [int(x) for x in OPT['P'].split(',')] + [0] * 11
assert OPT['spread'] == 1 and not (OPT['rot'] and OPT['rotm'] & 3)
assert sum(SF) == 6 and sum(SW1) == 30 and sum(SW2) == 60
assert SW2[14] <= 20
assert sum(SW1[:2]) <= 16 and sum(SW1[:5]) <= 24
assert not OPT['w2late'] or (sum(SW1[:4]) <= 21 and sum(SW2[:8]) == 0)

WS_EPOCH = 0x0
WS_XID = 0x400
WS_FLAG = 0x8000
WS_MOD = 0x10000
MP = 15360
BS = 16384 + 256
WS_T = 0x100000
WS_TP = WS_T + 256 * BS
WS_Y2 = WS_T
WS_H = 0xA00000
WS_W2P = 0x1440000
WS_STAMP = 0x1800000
WS_SIZE = 268435456
OOB = 0x7ff00000

BIG = 0
B_N, B_W2, B_F = 16384, 21504, 24576
SCR = 122880
L_X1E = SCR
L_M1 = SCR + 24576
L_K2I = SCR + 24576
L_K2O = SCR
L_M2 = SCR + 12416
L_B1 = L_M2 + 9216
L_K3I = SCR + 24576
L_Y = SCR
L_Y2 = SCR + 24576
LDS_SIZE = 163840

S_X, S_WR, S_WI, S_W1, S_B1, S_W2, S_B2, S_C, S_WM, S_OUT, S_WS = [4 + 4 * i for i in range(11)]
sME, sW, sTAG, sXC, sG, sK1, sCL, sJ = range(48, 56)
sT0, sT1, sT2, sT3, sT4, sT5, sT6, sT7 = range(56, 64)
sM1, sM2 = 64, 66
sMODST, sW2ST, sFSH, sPID = 68, 69, 70, 71
sTB = 72
sLD = 76
sST = 80
sW2O = 84
sWB = 85
sRHO, sSIG, sDW = 86, 87, 88
sW1O, sW1E = 90, 91
sBGO, sBG2 = 92, 93
sXID, sFAST, sCNT = 94, 95, 96
sSTAMP = 98

A = Asm()
RETRY = Asm()
nstamp = [0]
STAMPS = []


def srd(s):
    return sr(s, 4)


def stamp(name):
    if OPT['fine'] and name in ('silu', 'gemv', 'ln1', 'Tiss', 'Tpiss', 'pub0', 'y2', 'g1', 'gelu', 'pub1', 'h', 'g2'):
        return
    if not OPT['stamps']:
        if OPT['probe'] == nstamp[0]:
            A('s_memrealtime s[100:101]\ns_waitcnt lgkmcnt(0)\ns_sub_u32 s97, s100, s98')
        nstamp[0] += 1
        return
    i = nstamp[0]
    nstamp[0] += 1
    A(f'''s_memrealtime {sr(sSTAMP, 2)}
    s_memtime {sr(sSTAMP + 2, 2)}
    s_waitcnt lgkmcnt(0)
    v_writelane_b32 v255, s{sSTAMP}, {i}
    v_writelane_b32 v255, s{sSTAMP + 2}, {i + 32}
    v_writelane_b32 v254, s{sCNT}, {i}''')
    STAMPS.append(name)


def fine(ph, name):
    if OPT['fine'] == ph:
        stamp(name)


def masked(loads, tagregs):
    if not OPT['mask']:
        return loads
    out = ''
    for ld, r in zip(loads.strip().split('\n'), tagregs):
        nlab[0] += 1
        out += f'v_cmp_ne_u32 vcc, s{sTAG}, v{r}\ns_cbranch_vccz L_m{nlab[0]}\ns_mov_b64 exec, vcc\n{ld}\ns_mov_b64 exec, -1\nL_m{nlab[0]}:\n'
    return out


nlab = [0]


def poll_check(label, loads, bad_cmp):
    A(f'L_chk_{label}:')
    A(bad_cmp)
    A(f's_cbranch_vccnz L_retry_{label}')
    A(f'L_ok_{label}:')
    RETRY('.segment')
    RETRY(f'''L_retry_{label}:
    s_sub_u32 s{sCNT}, s{sCNT}, 1
    s_cmp_lt_i32 s{sCNT}, 0
    s_cbranch_scc1 L_ok_{label}''')
    RETRY(loads)
    RETRY(f'''s_waitcnt vmcnt(0)
    s_branch L_chk_{label}''')


def tagcheck(regs, tmp):
    if len(regs) == 1:
        return f'v_cmp_ne_u32 vcc, s{sTAG}, v{regs[0]}'
    s = f'v_min3_u32 v{tmp}, v{regs[0]}, v{regs[1]}, v{regs[2]}\n'
    s += f'v_max3_u32 v{tmp + 1}, v{regs[0]}, v{regs[1]}, v{regs[2]}\n'
    s += f'v_min3_u32 v{tmp}, v{tmp}, v{regs[3]}, s{sTAG}\n'
    s += f'v_max3_u32 v{tmp + 1}, v{tmp + 1}, v{regs[3]}, s{sTAG}\n'
    s += f'v_cmp_ne_u32 vcc, v{tmp}, v{tmp + 1}\n'
    return s


def sincos(ang, c, s):
    A(f'v_cos_f32 v{c}, v{ang}')
    A(f'v_sin_f32 v{s}, v{ang}')


def fmamk(d, a, k, b):
    if k == 0:
        A(f'v_mov_b32 v{d}, v{b}')
    elif k == 1:
        A(f'v_add_f32 v{d}, v{a}, v{b}')
    else:
        A(f'v_fmamk_f32 v{d}, v{a}, {f2u(k)}, v{b}')


def unpack(lo, hi, src):
    A(f'v_lshlrev_b32 v{lo}, 16, v{src}')
    A(f'v_and_b32 v{hi}, 0xffff0000, v{src}')


def mod5(d, src, tmp):
    A(f'v_mul_u32_u24 v{tmp}, 205, v{src}')
    A(f'v_lshrrev_b32 v{tmp}, 10, v{tmp}')
    A(f'v_mad_i32_i24 v{d}, v{tmp}, -5, v{src}')


def pk(op, d, *src, mods=''):
    A(f'v_pk_{op}_f32 {vr(d, 2)}, ' + ', '.join(vr(s, 2) if isinstance(s, int) else s for s in src) + (' ' + mods if mods else ''))


NEG1 = 'neg_lo:[0,1] neg_hi:[0,1]'

vL = 1
vL31, vH = 2, 3
vL15, vQ = 4, 5
vL16, vT16 = 6, 7
TMP = 8
vW1 = 240
vXID = 243
vBG = 244
vFL = 250


def setup():
    A(f'''s_cmp_ge_u32 s2, 256
    s_cbranch_scc1 L_end
    s_load_dwordx8 s[80:87], s[0:1], 64
    s_load_dwordx2 s[88:89], s[0:1], 96
    s_load_dwordx16 s[64:79], s[0:1], 0
    s_and_b32 s{sXC}, s2, 7
    s_lshr_b32 s{sG}, s2, 3
    s_lshl_b32 s{sME}, s{sXC}, 5
    s_or_b32 s{sME}, s{sME}, s{sG}
    s_mov_b32 s{sCNT}, 20000
    v_and_b32 v{vL}, 63, v0
    v_lshrrev_b32 v{TMP}, 6, v0
    v_and_b32 v{vL31}, 31, v0
    v_readfirstlane_b32 s{sW}, v{TMP}
    v_lshrrev_b32 v{vH}, 5, v{vL}
    v_and_b32 v{vL15}, 15, v0
    v_lshrrev_b32 v{vQ}, 4, v{vL}
    v_lshlrev_b32 v{vL16}, 4, v{vL}
    v_lshlrev_b32 v{vT16}, 4, v0''')
    sizes = {S_X: 2621440, S_WR: 1314816, S_WI: 1314816, S_W1: 1966080, S_B1: 3072, S_W2: 1966080, S_B2: 1280,
             S_C: 1280, S_WM: 4915200, S_OUT: 2621440, S_WS: WS_SIZE}
    for s in sizes:
        A(f's_mov_b32 s{s + 2}, {sizes[s]}')
        A(f's_mov_b32 s{s + 3}, 0x00020000')
    gemv_addr()
    A('s_waitcnt lgkmcnt(0)')
    src = {S_X: 64, S_WR: 66, S_WI: 68, S_W1: 72, S_B1: 74, S_W2: 76, S_B2: 78, S_C: 80, S_WM: 82, S_OUT: 84, S_WS: 88}
    for s in (S_WM, S_C):
        A(f's_mov_b64 {sr(s, 2)}, {sr(src[s], 2)}')
    gemv_issue()
    A(f's_load_dword s{sTAG}, s[88:89], {WS_EPOCH}')
    for s in (S_X, S_WS, S_W2, S_WR, S_WI, S_W1, S_B1, S_B2, S_OUT):
        A(f's_mov_b64 {sr(s, 2)}, {sr(src[s], 2)}')


def roles():
    A(f'''s_sub_u32 s{sT0}, 8, s{sXC}
    s_and_b32 s{sT0}, s{sT0}, 7
    s_cmp_lt_u32 s{sG}, 16
    s_cselect_b32 s{sK1}, s{sXC}, s{sT0}
    s_mul_i32 s{sWB}, s{sW}, 30720''')
    b = {1: 0, 2: 1, 4: 2, 8: 3}[OPT['spread']]
    A(f'''s_lshr_b32 s{sT0}, s{sXC}, {b}
    s_lshl_b32 s{sT0}, s{sT0}, {1 + b}
    s_lshr_b32 s{sT1}, s{sG}, {4 - b}
    s_or_b32 s{sCL}, s{sT0}, s{sT1}
    s_and_b32 s{sT0}, s{sXC}, {(1 << b) - 1}
    s_lshl_b32 s{sT0}, s{sT0}, {4 - b}
    s_and_b32 s{sT1}, s{sG}, {(1 << (4 - b)) - 1}
    s_or_b32 s{sJ}, s{sT0}, s{sT1}
    s_lshl_b32 s{sPID}, s{sCL}, 4
    s_or_b32 s{sPID}, s{sPID}, s{sJ}''')


def rotations():
    if not OPT['rot']:
        A(f's_mov_b32 s{sRHO}, 0\ns_mov_b32 s{sSIG}, 0\ns_mov_b32 s{sDW}, s{sW}')
        return
    A(f'''s_and_b32 s{sT0}, s{sCL}, 1
    s_lshl_b32 s{sT0}, s{sT0}, 1
    s_add_u32 s{sT1}, s{sT0}, s{sJ}
    s_mul_i32 s{sT2}, s{sT1}, 205
    s_lshr_b32 s{sT2}, s{sT2}, 10
    s_mul_i32 s{sT2}, s{sT2}, 5
    s_sub_u32 s{sRHO}, s{sT1}, s{sT2}
    s_lshr_b32 s{sT1}, s{sJ}, 3
    s_add_u32 s{sSIG}, s{sT0}, s{sT1}
    s_add_u32 s{sDW}, s{sW}, s{sJ}
    s_and_b32 s{sDW}, s{sDW}, 3''')
    if not OPT['rotm'] & 1:
        A(f's_mov_b32 s{sRHO}, 0')
    if not OPT['rotm'] & 2:
        A(f's_mov_b32 s{sSIG}, 0')
    if not OPT['rotm'] & 4:
        A(f's_mov_b32 s{sDW}, s{sW}')


def touch():
    t = TMP
    A(f'''s_lshl_b32 s{sT0}, s{sME}, 2
    s_add_u32 s{sT0}, s{sT0}, s{sW}
    s_mul_i32 s{sT0}, s{sT0}, 1920
    v_min_u32 v{t}, 14, v{vL}
    v_lshlrev_b32 v{t}, 7, v{t}
    buffer_load_dword v{vXID}, v{t}, {srd(S_W1)}, s{sT0} offen
    s_lshl_b32 s{sT0}, s{sG}, 2
    s_add_u32 s{sT0}, s{sT0}, s{sW}
    s_lshl_b32 s{sT0}, s{sT0}, 4
    s_add_u32 s{sT0}, s{sT0}, s{sXC}
    s_mul_i32 s{sT0}, s{sT0}, 642
    s_and_b32 s{sT0}, s{sT0}, -4
    v_min_u32 v{t}, 5, v{vL31}
    v_lshlrev_b32 v{t}, 7, v{t}
    v_mul_u32_u24 v{t + 1}, {8 * 642}, v{vH}
    v_add_u32 v{t}, v{t}, v{t + 1}
    buffer_load_dword v{vBG}, v{t}, {srd(S_WR)}, s{sT0} offen
    buffer_load_dword v{vBG + 1}, v{t}, {srd(S_WI)}, s{sT0} offen''')


def pid_to_me(d, p, t1):
    b = {1: 0, 2: 1, 4: 2, 8: 3}[OPT['spread']]
    if b == 0:
        A(f's_mov_b32 s{d}, s{p}')
        return
    A(f'''s_lshr_b32 s{d}, s{p}, {5 + b}
    s_lshl_b32 s{d}, s{d}, {5 + b}
    s_bfe_u32 s{t1}, s{p}, {(b << 16) | (4 - b)}
    s_lshl_b32 s{t1}, s{t1}, 5
    s_or_b32 s{d}, s{d}, s{t1}
    s_bfe_u32 s{t1}, s{p}, {((1 + b) << 16) | 4}
    s_lshl_b32 s{t1}, s{t1}, {4 - b}
    s_or_b32 s{d}, s{d}, s{t1}
    s_and_b32 s{t1}, s{p}, {(1 << (4 - b)) - 1}
    s_or_b32 s{d}, s{d}, s{t1}''')


G_C = 188
vGS, vGM, vGA = 194, 195, 236
G_W2 = 216
sGW, sMODS2 = 89, 97
G_W = 32
G_ACC = 52


def gemv_addr():
    A(f'''s_cmp_lt_u32 s2, 240
    s_cselect_b32 s{sT0}, s2, 0
    s_and_b32 s{sT1}, s{sT0}, 3''')
    if OPT['um']:
        A(f'''s_bfe_u32 s{sT2}, s{sT0}, 0x10002
        s_mul_i32 s{sT2}, s{sT2}, 30
        s_lshr_b32 s{sT0}, s{sT0}, 3
        s_add_u32 s{sT0}, s{sT0}, s{sT2}''')
    else:
        A(f's_lshr_b32 s{sT0}, s{sT0}, 2')
    A(f'''    s_lshl_b32 s{sT0}, s{sT0}, 2
    s_add_u32 s{sT0}, s{sT0}, s{sW}
    s_mul_i32 s{sT2}, s{sT1}, {160 * 7680}
    s_lshl_b32 s{sT3}, s{sT0}, 5
    s_add_u32 s{sT2}, s{sT2}, s{sT3}
    s_mul_i32 s{sT4}, s{sT1}, 320
    s_mul_i32 s{sT1}, s{sT1}, {MP}
    s_lshl_b32 s{sT3}, s{sT0}, 6
    s_add_u32 s{sT5}, s{sT1}, s{sT3}
    v_lshrrev_b32 v{TMP}, 1, v{vL}
    v_lshlrev_b32 v{TMP + 1}, 1, v{TMP}
    v_lshlrev_b32 v{TMP + 3}, 3, v{TMP}
    v_mul_u32_u24 v{TMP}, 7680, v{TMP}
    v_and_b32 v{TMP + 2}, 1, v0
    v_lshlrev_b32 v{TMP + 2}, 4, v{TMP + 2}
    v_lshl_add_u32 v{vGA}, v{TMP}, 2, v{TMP + 2}
    v_add_u32 v{vGA + 2}, v{TMP}, v{TMP + 2}
    s_mov_b32 s{sT6}, s{sT2}''')
    if OPT['two'] or OPT['ub']:
        A(f's_cmp_lt_u32 s2, 80\ns_cselect_b32 s{sT2}, s{sT2}, {OOB // 2}')


def gemv2_issue():
    for i in range(5):
        if i:
            A(f's_add_u32 s{sGW}, s{sGW}, {7680 if i < 4 else 125 * 7680}')
        A(f'buffer_load_dwordx4 {vr(G_W2 + 4 * i, 4)}, v{vGA + 2 * (i // 4)}, {srd(S_WM)}, s{sGW} offen')


def gemv_issue():
    A(f'buffer_load_dwordx2 {vr(G_C + 2, 2)}, v{TMP + 3}, {srd(S_C)}, s{sT4} offen')
    A(f'buffer_load_ushort v{G_C + 4}, v{TMP + 1}, {srd(S_C)}, s{sT4} offen offset:256')
    for i in range(5):
        A(f'buffer_load_dwordx4 {vr(G_W + 4 * i, 4)}, v{vGA + 2 * (i // 4)}, {srd(S_WM)}, s{sT2} offen')
        if i < 4:
            A(f's_add_u32 s{sT2}, s{sT2}, {7680 if i < 3 else 125 * 7680}')


def gemv_store_addr():
    A(f'''s_add_u32 s{sT5}, s{sT5}, {WS_MOD}
    s_cmp_lt_u32 s2, 240
    s_cselect_b32 s{sMODST}, s{sT5}, {OOB}''')
    if OPT['two']:
        A(f'''s_sub_u32 s{sT0}, s2, 80
        s_cmp_lt_u32 s{sT0}, 160
        s_cselect_b32 s{sMODS2}, s{sT5}, {OOB}
        s_cselect_b32 s{sMODST}, {OOB}, s{sMODST}
        s_cselect_b32 s{sW2O}, s{sT6}, {OOB // 2}''')


def silu():
    t = TMP
    unpack(G_C, G_C + 1, G_C + 2)
    unpack(G_C + 2, G_C + 3, G_C + 3)
    A(f'v_lshlrev_b32 v{G_C + 4}, 16, v{G_C + 4}')
    for i in range(5):
        A(f'v_mul_f32 v{t + i}, {f2u(-1.4426950408889634)}, v{G_C + i}')
    for i in range(5):
        A(f'v_exp_f32 v{t + i}, v{t + i}')
    for i in range(5):
        A(f'v_add_f32 v{t + i}, 1.0, v{t + i}')
    for i in range(5):
        A(f'v_rcp_f32 v{t + i}, v{t + i}')
    for i in range(5):
        A(f'v_mul_f32 v{t + i}, v{G_C + i}, v{t + i}')
    for i in range(5):
        A(f'v_cvt_pk_bf16_f32 v{t + i}, v{t + i}, v{t + i}')
    for i in range(5):
        A(f'v_lshlrev_b32 v{G_C + i}, 16, v{t + i}')
    A(f'''s_mul_i32 s{sTAG}, s{sTAG}, 0x9E3779B1
    s_add_u32 s{sTAG}, s{sTAG}, 0x7F4A7C15''')
    for k in range(4):
        A(f's_bfe_u32 s{sTB + k}, s{sTAG}, {(8 << 16) | (8 * k)}')
    A(f'''v_and_b32 v{t + 5}, 1, v{vL}
    v_lshlrev_b32 v{t + 5}, 5, v{t + 5}
    v_lshl_add_u32 v{t + 5}, v{vH}, 4, v{t + 5}
    v_mov_b32 v{t + 6}, {OOB}
    v_cmp_gt_u32 vcc, 2, v{vL31}
    v_cndmask_b32 v{vGS}, v{t + 6}, v{t + 5}, vcc
    v_mov_b32 v{vGM}, 0xffffff00
    s_mov_b32 s{sGW}, s{sW2O}''')


def gemv_compute(G_W, sdst):
    t = TMP
    for i in range(5):
        sp = (G_C + i) & ~1
        sel = (G_C + i) & 1
        for k in range(4):
            u = t + 2 * (k & 1)
            unpack(u, u + 1, G_W + 4 * i + k)
            if i == 0:
                pk('mul', G_ACC + 2 * k, u, sp, mods=f'op_sel:[0,{sel}] op_sel_hi:[1,{sel}]')
            else:
                pk('fma', G_ACC + 2 * k, u, sp, G_ACC + 2 * k, mods=f'op_sel:[0,{sel},0] op_sel_hi:[1,{sel},1]')
    a = G_ACC
    for k in range(4):
        A(f'v_permlane32_swap_b32 v{a + k}, v{a + k + 4}')
    pk('add', a, a, a + 4)
    pk('add', a + 2, a + 2, a + 6)
    A(f'''v_permlane16_swap_b32 v{a}, v{a + 1}
    v_permlane16_swap_b32 v{a + 2}, v{a + 3}
    v_add_f32 v{a}, v{a}, v{a + 1}
    v_add_f32 v{a + 2}, v{a + 2}, v{a + 3}''')
    for r in (8, 4):
        A(f'v_add_f32_dpp v{a}, v{a}, v{a} row_ror:{r} row_mask:0xf bank_mask:0xf')
        A(f'v_add_f32_dpp v{a + 2}, v{a + 2}, v{a + 2} row_ror:{r} row_mask:0xf bank_mask:0xf')
    for d in (1, 3, 0, 2):
        s_ = a + (d & 2)
        A(f'v_add_f32_dpp v{a + d}, v{s_}, v{s_} row_ror:2 row_mask:0xf bank_mask:0xf')
    A(f'''v_permlane16_swap_b32 v{a}, v{a + 1}
    v_permlane16_swap_b32 v{a + 2}, v{a + 3}''')
    for k in range(4):
        A(f'v_and_or_b32 v{a + k}, v{a + k}, v{vGM}, s{sTB + k}')
    A(f'buffer_store_dwordx4 {vr(a, 4)}, v{vGS}, {srd(S_WS)}, s{sdst} offen sc1')


def code_prefetch(nbytes):
    t = TMP + 4
    per = ((nbytes + 32 * 128 - 1) // (32 * 128))
    A(f'''s_getpc_b64 {sr(sT2, 2)}
    L_pc:
    s_mul_i32 s{sT0}, s{sG}, {per * 128}
    s_sub_u32 s{sT0}, s{sT0}, L_pc-{NAME}_kernel
    v_min_u32 v{t}, {per - 1}, v{vL}
    v_lshlrev_b32 v{t}, 7, v{t}
    v_add_u32 v{t}, s{sT0}, v{t}
    v_min_i32 v{t}, L_last-L_pc, v{t}
    v_ashrrev_i32 v{t + 1}, 31, v{t}
    v_mov_b32 v{t + 2}, s{sT3}
    v_add_co_u32 v{t}, vcc, s{sT2}, v{t}
    v_addc_co_u32 v{t + 1}, vcc, v{t + 2}, v{t + 1}, vcc
    global_load_dword v{vFL}, {vr(t, 2)}, off''')


def xid_store():
    t = TMP
    A(f'''s_getreg_b32 s{sXID}, hwreg(HW_REG_XCC_ID, 0, 4)
    s_lshl_b32 s{sT0}, s{sPID}, 2
    s_add_u32 s{sT0}, s{sT0}, {WS_XID}
    v_mov_b32 v{t}, s{sXID}
    v_cmp_eq_u32 vcc, 0, v0
    v_mov_b32 v{t + 1}, {OOB}
    v_cndmask_b32 v{t + 1}, v{t + 1}, v0, vcc
    buffer_store_dword v{t}, v{t + 1}, {srd(S_WS)}, s{sT0} offen sc1''')


def xid_load():
    A(f'''s_lshl_b32 s{sBGO}, s{sCL}, 6
    s_add_u32 s{sBGO}, s{sBGO}, {WS_XID}
    v_lshlrev_b32 v{vXID}, 2, v{vL15}
    buffer_load_dword v{vXID}, v{vXID}, {srd(S_WS)}, s{sBGO} offen sc1
    s_lshl_b32 s{sBGO}, s{sCL}, 10
    s_add_u32 s{sBGO}, s{sBGO}, {WS_FLAG}
    buffer_load_dword v{vFL}, v{vL16}, {srd(S_WS)}, s{sBGO} offen sc1''')


def xid_check():
    A(f'''v_cmp_ne_u32 vcc, s{sXID}, v{vXID}
    s_cmp_eq_u64 vcc, 0
    s_cselect_b32 s{sFAST}, {0 if OPT['slow'] else 1}, 0''')


def flag_prep(which):
    if which == 0:
        A(f"""s_lshl_b32 s{sBGO}, s{sCL}, 10
        s_add_u32 s{sBGO}, s{sBGO}, {WS_FLAG}
        s_lshl_b32 s{sBG2}, s{sJ}, 2
        s_add_u32 s{sBG2}, s{sBG2}, s{sW}
        s_lshl_b32 s{sBG2}, s{sBG2}, 2
        v_mov_b32 v{vFL + 2}, s{sBG2}
        v_mov_b32 v{vFL + 3}, s{sTAG}
        s_lshl_b32 s{sBG2}, s{sW}, 6
        v_lshl_add_u32 v{vFL}, v{vL15}, 2, s{sBG2}""")
    else:
        A(f"""s_lshl_b32 s{sBG2}, s{sW}, 6
        s_and_b32 s{sT7}, s{sJ}, 8
        s_add_u32 s{sBG2}, s{sBG2}, s{sT7}
        v_and_b32 v{vFL}, 13, v{vL}
        v_lshl_add_u32 v{vFL}, v{vFL}, 2, s{sBG2}""")


def nvm(items):
    return sum(1 for i in items if i.kind == 'vmem')


def after_last(pred):
    i = max([k for k, x in enumerate(A.items) if x.kind == 'vmem' and pred(x)] or [len(A.items) - 300])
    return nvm(A.items[i + 1:])


def flag_publish(which):
    younger = after_last(lambda x: 'store' in x.op or ' lds' in x.text)
    st = f'buffer_store_dword v{vFL + 3}, v{vFL + 2}, {srd(S_WS)}, s{sBGO} offen offset:{256 * which}'
    A(f"""s_cmp_eq_u32 s{sFAST}, 0
    s_waitcnt vmcnt({min(younger, 63)})
    s_cbranch_scc1 L_slow_pub{which}
    {st}
    L_join_pub{which}:""")
    RETRY('.segment')
    RETRY(f'L_slow_pub{which}:')
    if which == 0:
        RETRY('buffer_wbl2 sc1\ns_waitcnt vmcnt(0)')
    RETRY(f'{st} sc1\ns_branch L_join_pub{which}')


def flag_ld(which):
    return f'buffer_load_dword v{vFL + 1}, v{vFL}, {srd(S_WS)}, s{sBGO} offen offset:{256 * which} sc1'


def flag_check(which):
    poll_check(f'fl{which}', flag_ld(which), tagcheck([vFL + 1], 0))
    if which == 0:
        A(f"""s_cmp_eq_u32 s{sFAST}, 0
        s_cbranch_scc1 L_slow_acq{which}
        L_join_acq{which}:""")
        RETRY('.segment')
        RETRY(f"""L_slow_acq{which}:
        buffer_inv sc1
        s_waitcnt vmcnt(0)
        s_branch L_join_acq{which}""")


def w1_prep():
    t = TMP
    for i in range(3):
        A(f'''v_add_u32 v{t + 3}, {64 * i}, v{vL}
        v_mul_u32_u24 v{t + 4}, 171, v{t + 3}
        v_lshrrev_b32 v{t + 4}, 11, v{t + 4}
        v_mad_i32_i24 v{t + 5}, v{t + 4}, -12, v{t + 3}
        v_lshrrev_b32 v{t + 3}, 2, v{t + 4}
        v_and_b32 v{t + 3}, 2, v{t + 3}
        v_xor_b32 v{t + 5}, v{t + 5}, v{t + 3}
        v_mul_u32_u24 v{t + 4}, 3072, v{t + 4}
        v_lshl_add_u32 v{vW1 + i}, v{t + 5}, 4, v{t + 4}''')
    A(f'''s_mul_i32 s{sW1O}, s{sW}, {160 * 3072}
    s_mul_i32 s{sT1}, s{sRHO}, {128 * 3072}
    s_add_u32 s{sW1O}, s{sW1O}, s{sT1}
    s_mul_i32 s{sT1}, s{sJ}, 192
    s_add_u32 s{sW1O}, s{sW1O}, s{sT1}
    s_sub_u32 s{sW1E}, s{sW1O}, 1966080
    s_min_u32 s{sW1O}, s{sW1O}, s{sW1E}''')


def w1_dma():
    for g in range(10):
        for i in range(3):
            A(f's_add_u32 m0, s{sWB}, {BIG + 1024 * (3 * g + i)}')
            if i == 0 and g:
                A(f'''s_add_u32 s{sW1O}, s{sW1O}, {16 * 3072}
                s_sub_u32 s{sW1E}, s{sW1O}, 1966080
                s_min_u32 s{sW1O}, s{sW1O}, s{sW1E}''')
            A(f'buffer_load_dwordx4 v{vW1 + i}, {srd(S_W1)}, s{sW1O} offen lds')


def w2_fmt_prep():
    t = TMP
    A(f'''s_mul_i32 s{sT0}, s{sME}, 205
    s_lshr_b32 s{sT0}, s{sT0}, 10
    s_mul_i32 s{sT1}, s{sT0}, 5
    s_sub_u32 s{sT1}, s{sME}, s{sT1}
    s_lshl_b32 s{sT1}, s{sT1}, 2
    s_add_u32 s{sT1}, s{sT1}, s{sW}
    s_mul_i32 s{sT2}, s{sT0}, {32 * 1280}
    s_lshl_b32 s{sT3}, s{sT1}, 11
    s_add_u32 s{sW2ST}, s{sT2}, s{sT3}
    s_add_u32 s{sW2ST}, s{sW2ST}, {WS_W2P}
    s_lshl_b32 s{sT3}, s{sT1}, 6
    s_add_u32 s{sT2}, s{sT2}, s{sT3}
    s_cmp_lt_u32 s{sME}, 240
    s_cselect_b32 s{sW2ST}, s{sW2ST}, {OOB}
    s_cselect_b32 s{sBG2}, s{sT2}, 0
    v_lshrrev_b32 v{t}, 2, v{vL}
    v_mul_u32_u24 v{t}, 1280, v{t}
    v_and_b32 v{t + 1}, 3, v{vL}
    v_lshl_add_u32 v237, v{t + 1}, 4, v{t}''')


def w2_fmt_issue():
    A(f'''s_add_u32 m0, s{sWB}, {BIG + B_W2}
    buffer_load_dwordx4 v237, {srd(S_W2)}, s{sBG2} offen lds
    s_add_u32 m0, s{sWB}, {BIG + B_W2 + 1024}
    s_add_u32 s{sBG2}, s{sBG2}, {16 * 1280}
    buffer_load_dwordx4 v237, {srd(S_W2)}, s{sBG2} offen lds''')


def w2_fmt_finish():
    t = TMP
    A(f'''v_lshrrev_b32 v{t}, 2, v{vL}
    v_lshlrev_b32 v{t}, 6, v{t}
    v_and_b32 v{t + 1}, 3, v{vL}
    v_lshl_add_u32 v{t}, v{t + 1}, 3, v{t}
    v_add_u32 v{t}, s{sWB}, v{t}''')
    for i in range(2):
        A(f'ds_read_b64_tr_b16 {vr(t + 4 + 4 * i, 2)}, v{t} offset:{BIG + B_W2 + 32 * i}')
        A(f'ds_read_b64_tr_b16 {vr(t + 6 + 4 * i, 2)}, v{t} offset:{BIG + B_W2 + 32 * i + 1024}')
    for i in range(2):
        A(f'buffer_store_dwordx4 {vr(t + 4 + 4 * i, 4)}, v{vL16}, {srd(S_WS)}, s{sW2ST} offen offset:{1024 * i} sc1')


def w2_prep():
    A(f'''s_mul_i32 s{sW2O}, s{sW}, {12 * 40960}
    s_and_b32 s{sT0}, s{sJ}, 7
    s_mul_i32 s{sT0}, s{sT0}, 5120
    s_add_u32 s{sW2O}, s{sW2O}, s{sT0}
    s_add_u32 s{sW2ST}, s{sW2O}, {WS_W2P}''')


KA = [k for k in range(12) if k % 3 < 2]
KB = [k for k in range(12) if k % 3 == 2]


def w2_load():
    for kl in KA + KB:
        for nt in range(5):
            if nt in (0, 4):
                A(f's_add_u32 s{sW2O}, s{sW2ST}, {40960 * kl + 1024 * nt}')
            A(f'buffer_load_dwordx4 {ar((kl * 5 + nt) * 4, 4)}, v{vL16}, {srd(S_WS)}, s{sW2O} offen offset:{1024 * (nt & 3)} sc1')


sPW = 97


def prewarm():
    for k, base in enumerate((WS_T, WS_TP)):
        for i in range(4):
            if i == 0:
                A(f's_mul_i32 s{sPW}, s{sME}, {BS}\ns_add_u32 s{sPW}, s{sPW}, {base}')
            else:
                A(f's_add_u32 s{sPW}, s{sPW}, 4096')
            A(f'buffer_store_dwordx4 v[188:191], v{vT16}, {srd(S_WS)}, s{sPW} offen sc1')


F_RAW = 200
F_W = 216
vFA = 196


def filt_prep():
    t = TMP
    A(f'''s_mul_i32 s{sT0}, s{sG}, 20
    s_sub_u32 s{sT1}, 623, s{sT0}
    s_mul_i32 s{sT3}, s{sW}, 5
    s_sub_u32 s{sT4}, 15, s{sT3}
    s_cmp_lt_u32 s{sG}, 16
    s_cselect_b32 s{sT0}, s{sT0}, s{sT1}
    s_cselect_b32 s{sT2}, 1, -1
    s_cselect_b32 s{sT3}, s{sT3}, s{sT4}
    s_add_u32 s{sT4}, s{sT0}, s{sK1}
    s_and_b32 s{sT4}, s{sT4}, 1
    s_add_u32 s{sFSH}, s{sT3}, s{sT4}
    s_sub_u32 s{sT0}, s{sT0}, s{sT4}
    s_lshl_b32 s{sT5}, s{sW}, 9
    s_add_u32 s{sT5}, s{sT5}, s{sK1}
    s_movk_i32 s{sT6}, 321''')
    for i in range(3):
        A(f'''v_add_u32 v{t}, {64 * i}, v{vL}
        v_mul_u32_u24 v{t + 1}, 171, v{t}
        v_lshrrev_b32 v{t + 1}, 9, v{t + 1}
        v_mad_i32_i24 v{t + 2}, v{t + 1}, -3, v{t}
        v_lshl_add_u32 v{t + 1}, v{t + 1}, 3, s{sT5}
        v_mul_i32_i24 v{t + 1}, s{sT2}, v{t + 1}
        v_and_b32 v{t + 1}, 2047, v{t + 1}
        v_lshl_add_u32 v{t + 2}, v{t + 2}, 3, s{sT0}
        v_mad_u32_u24 v{t + 1}, v{t + 1}, s{sT6}, v{t + 2}
        v_lshlrev_b32 v{vFA + i}, 1, v{t + 1}''')


def filt_dma():
    for p, s_ in enumerate((S_WR, S_WI)):
        for i in range(3):
            A(f's_add_u32 m0, s{sWB}, {BIG + B_F + 3072 * p + 1024 * i}')
            A(f'buffer_load_dwordx4 v{vFA + i}, {srd(s_)}, 0 offen lds')


def filt_finish():
    t = TMP + 4
    sc = 1.0 / (2048.0 * 640.0)
    A(f'''s_lshr_b32 s{sT0}, s{sFSH}, 1
    s_lshl_b32 s{sT0}, s{sT0}, 2
    s_add_u32 s{sT0}, s{sT0}, {BIG + B_F}
    s_and_b32 s{sFSH}, s{sFSH}, 1
    s_lshl_b32 s{sFSH}, s{sFSH}, 4
    v_mul_u32_u24 v{t}, 30720, v{vQ}
    v_mul_u32_u24 v{t + 1}, 48, v{vL15}
    v_add3_u32 v{vFA}, v{t}, v{t + 1}, s{sT0}
    v_add_u32 v{vFA + 1}, 1536, v{vFA}
    v_add_u32 v{vFA + 2}, 3072, v{vFA}
    v_add_u32 v{vFA + 3}, {3072 + 1536}, v{vFA}''')
    for j in range(4):
        for p in range(2):
            o = 192 * (j & 1)
            A(f'ds_read2_b32 {vr(F_RAW + 4 * j + 2 * p, 2)}, v{vFA + 2 * p + (j >> 1)} offset0:{o} offset1:{o + 1}')
    A(f'''s_cmp_lt_u32 s{sG}, 16
    s_cselect_b64 vcc, -1, 0
    s_cselect_b32 s{sT3}, 0, 0x80000000
    s_mov_b32 s{sT0}, {f2u(sc)}
    s_mov_b32 s{sT1}, {f2u(2 * sc)}
    s_xor_b32 s{sT2}, s{sT0}, s{sT3}
    s_xor_b32 s{sT3}, s{sT1}, s{sT3}''')
    for j in range(4):
        for p in range(2):
            r = F_RAW + 4 * j + 2 * p
            A(f'''v_lshrrev_b64 {vr(r, 2)}, s{sFSH}, {vr(r, 2)}
            v_lshlrev_b32 v{t}, 16, v{r}
            v_lshlrev_b32 v{t + 1}, 16, v{r + 1}
            v_and_b32 v{t + 2}, 0xffff0000, v{r}
            v_cndmask_b32 v{t + 3}, v{t + 1}, v{t}, vcc
            v_cndmask_b32 v{t + 4}, v{t}, v{t + 1}, vcc
            v_mul_f32 v{F_W + 8 + 4 * p + j}, s{sT1 + 2 * p}, v{t + 2}
            v_mul_f32 v{F_W + 4 * p + j}, s{sT0 + 2 * p}, v{t + 3}
            v_mul_f32 v{F_W + 16 + 4 * p + j}, s{sT1 + 2 * p}, v{t + 4}''')


X_RAW = 60
X_N = 72
K1_M1 = 100
K1_M2 = 124
MODR = 24
K1A = 200
aMX, aMWX, aMW, aADD, aMR, aEW, aER, aST = K1A, K1A + 1, K1A + 2, K1A + 4, K1A + 5, K1A + 8, K1A + 11, K1A + 14


def x1_issue():
    A(f'''s_lshl_b32 s{sT0}, s{sW}, 9
    s_add_u32 s{sT0}, s{sT0}, s{sME}
    s_mul_i32 s{sT0}, s{sT0}, 1280
    s_add_u32 s{sT1}, s{sT0}, {256 * 1280}
    v_lshlrev_b32 v{TMP + 3}, 2, v{vH}
    v_lshl_add_u32 v{TMP + 3}, v{vL31}, 3, v{TMP + 3}
    buffer_load_dwordx4 {vr(X_RAW, 4)}, v{vL16}, {srd(S_X)}, s{sT0} offen
    buffer_load_dwordx4 {vr(X_RAW + 4, 4)}, v{vL16}, {srd(S_X)}, s{sT1} offen
    buffer_load_dword v{X_RAW + 8}, v{TMP + 3}, {srd(S_X)}, s{sT0} offen offset:1024
    buffer_load_dword v{X_RAW + 9}, v{TMP + 3}, {srd(S_X)}, s{sT1} offen offset:1024''')


def k1_const_a():
    t = TMP
    A(f'''v_lshrrev_b32 v{t}, 3, v{vL31}
    v_cvt_f32_u32 v{t}, v{t}
    v_mul_f32 v{t}, {f2u(0.4)}, v{t}
    v_and_b32 v{t + 1}, 7, v{vL}
    v_cvt_f32_u32 v{t + 1}, v{t + 1}
    v_mul_f32 v{t + 1}, {f2u(0.125)}, v{t + 1}
    v_cvt_f32_u32 v{t + 2}, v{vH}
    v_mul_f32 v{t + 2}, v{t + 2}, v{t}
    v_and_b32 v{t + 10}, 1, v{vL}
    v_mul_u32_u24 v{t + 10}, 0x8000, v{t + 10}
    v_lshl_or_b32 v{t + 10}, v{t + 10}, 16, v{t + 10}''')
    for tau in range(3):
        fmamk(t + 3, t, 2 * tau, t + 2)
        for p in range(2):
            fmamk(t + 4, t + 1, 2 * p, t + 3)
            fmamk(t + 5, t + 1, 2 * p + 1, t + 3)
            sincos(t + 4, t + 6, t + 8)
            sincos(t + 5, t + 7, t + 9)
            A(f'v_cvt_pk_bf16_f32 v{K1_M1 + 4 * tau + p}, v{t + 6}, v{t + 7}')
            A(f'v_cvt_pk_bf16_f32 v{K1_M1 + 12 + 4 * tau + p}, -v{t + 8}, -v{t + 9}')
    A('s_mov_b32 exec_lo, 0')
    for p in range(2):
        A(f'v_mov_b32 v{K1_M1 + 8 + p}, 0')
        A(f'v_mov_b32 v{K1_M1 + 20 + p}, 0')
    A('s_mov_b32 exec_lo, -1')
    for k in range(6):
        for p in range(2):
            A(f'v_xor_b32 v{K1_M1 + 4 * k + 2 + p}, v{t + 10}, v{K1_M1 + 4 * k + p}')


def k1_const_b():
    t = TMP
    A(f'''v_cvt_f32_u32 v{t}, v{vL31}
    v_lshlrev_b32 v{t + 1}, 4, v{vH}
    v_add_u32 v{t + 1}, s{sW}, v{t + 1}
    v_cvt_f32_u32 v{t + 1}, v{t + 1}
    v_mul_f32 v{t}, {f2u(1.0 / 128)}, v{t}
    v_mul_f32 v{t + 1}, v{t + 1}, v{t}
    v_and_b32 v{t + 10}, 1, v{vL}
    v_mul_u32_u24 v{t + 10}, 0x8000, v{t + 10}
    v_lshl_or_b32 v{t + 10}, v{t + 10}, 16, v{t + 10}''')
    for u in range(2):
        for jp in (0, 2):
            fmamk(t + 2, t, 4 * (8 * u + jp), t + 1)
            fmamk(t + 5, t, 4 * (8 * u + jp + 1), t + 1)
            sincos(t + 2, t + 3, t + 4)
            sincos(t + 5, t + 6, t + 7)
            for jj, e in ((jp, 3), (jp + 1, 6)):
                A(f'v_cvt_pk_bf16_f32 v{K1_M2 + 4 * u + jj}, v{t + e}, v{t + e + 1}')
                A(f'v_cvt_pk_bf16_f32 v{K1_M2 + 16 + 4 * u + jj}, -v{t + e + 1}, v{t + e}')
    for p in range(2):
        for k in range(8):
            A(f'v_xor_b32 v{K1_M2 + 16 * p + 8 + k}, v{t + 10}, v{K1_M2 + 16 * p + k}')


def ln1():
    t = TMP
    AD = 92
    A(f'''v_mul_u32_u24 v{t}, 3, v{vL}
    v_lshl_add_u32 v{t + 1}, v{vL15}, 4, s{sWB}''')
    for k in range(5):
        A(f'v_add_u32 v{t + 2}, {k}, v{t}')
        mod5(t + 2, t + 2, t + 3)
        A(f'v_lshl_add_u32 v{AD + k}, v{t + 2}, 10, v{t + 1}')
    A(f'''v_lshl_add_u32 v{t + 1}, v{vL31}, 3, s{sWB}
    v_lshl_add_u32 v{t + 1}, v{vH}, 9, v{t + 1}
    v_lshl_add_u32 v{t}, v{vL31}, 1, v{vH}''')
    for e in range(2):
        A(f'v_lshl_add_u32 v{t + 2}, v{t}, 1, {2 + e}')
        mod5(t + 2, t + 2, t + 3)
        A(f'v_lshl_add_u32 v{AD + 5 + e}, v{t + 2}, 10, v{t + 1}')
    for r in range(2):
        for k in range(4):
            unpack(X_N + 4 * k + r, X_N + 4 * k + 2 + r, X_RAW + 4 * r + k)
        unpack(X_N + 16 + r, X_N + 18 + r, X_RAW + 8 + r)
    pk('add', t, X_N, X_N + 2)
    pk('mul', t + 2, X_N, X_N)
    for e in range(1, 10):
        if e > 1:
            pk('add', t, t, X_N + 2 * e)
        pk('fma', t + 2, X_N + 2 * e, X_N + 2 * e, t + 2)
    A(f'''v_permlane32_swap_b32 v{t}, v{t + 1}
    v_permlane32_swap_b32 v{t + 2}, v{t + 3}
    v_add_f32 v{t}, v{t}, v{t + 1}
    v_add_f32 v{t + 2}, v{t + 2}, v{t + 3}
    v_permlane16_swap_b32 v{t}, v{t + 2}
    v_add_f32 v{t}, v{t}, v{t + 2}''')
    for r in (8, 4, 2, 1):
        A(f'v_add_f32_dpp v{t}, v{t}, v{t} row_ror:{r} row_mask:0xf bank_mask:0xf')
    A(f'v_mul_f32 v{t}, {f2u(1.0 / 640)}, v{t}')
    for k in range(4):
        A(f'v_readlane_b32 s{sT0 + k}, v{t}, {16 * k}')
    for r in range(2):
        A(f'v_mov_b32 v{t + 2 + r}, s{sT0 + 2 * r}')
    for r in range(2):
        A(f'v_fma_f32 v{t + r}, -v{t + 2 + r}, v{t + 2 + r}, s{sT1 + 2 * r}')
    for r in range(2):
        A(f'v_max_f32 v{t + r}, 0, v{t + r}')
    for r in range(2):
        A(f'v_add_f32 v{t + r}, {f2u(1e-5)}, v{t + r}')
    for r in range(2):
        A(f'v_rsq_f32 v{t + r}, v{t + r}')
    A(f'''s_lshl_b32 s{sT0}, s{sW}, 8
    s_add_u32 s{sT0}, s{sT0}, {BIG + B_N}''')
    pk('mul', t + 2, t + 2, t)
    for e in range(10):
        pk('fma', X_N + 2 * e, X_N + 2 * e, t, t + 2, mods='neg_lo:[0,0,1] neg_hi:[0,0,1]')
        if e < 8:
            A(f'ds_write_b64 v{AD + e % 5}, {vr(X_N + 2 * e, 2)} offset:{BIG + B_N + (e & 3) * 256 + (e >> 2) * 8}')
        else:
            A(f'ds_write_b64 v{AD + 5 + e - 8}, {vr(X_N + 2 * e, 2)} offset:{BIG + B_N + (e - 8) * 256}')
    A(f'''v_lshl_add_u32 v{t + 1}, v{vL31}, 3, s{sT0}
    v_lshl_add_u32 v{t}, v{vH}, 10, v{t + 1}
    s_waitcnt lgkmcnt(0)
    s_barrier''')
    for tau in range(3):
        ad = t if tau < 2 else t + 1
        for p in (0, 2):
            A(f'ds_read2st64_b64 {vr(X_N + 8 * tau + 2 * p, 4)}, v{ad} offset0:{4 * tau + 60 * p} offset1:{4 * tau + 60 * p + 60}')


def x_keep():
    for k in range(4):
        A(f'v_permlane32_swap_b32 v{X_RAW + k}, v{X_RAW + 4 + k}')
    A(f'v_permlane32_swap_b32 v{X_RAW + 8}, v{X_RAW + 9}')
    for k in range(10):
        A(f'v_accvgpr_write_b32 a{240 + k}, v{X_RAW + k}')


def k1_addr():
    t = TMP + 4
    A(f'''s_lshl_b32 s{sT0}, s{sW}, 8
    v_lshl_add_u32 v{t}, v{vL15}, 4, s{sT0}
    v_mul_u32_u24 v{t + 1}, {MP}, v{vQ}
    v_add3_u32 v{aMX}, v{t}, v{t + 1}, 0
    v_add_u32 v{aMX}, 4096, v{aMX}
    v_and_b32 v{t + 1}, 1, v{vQ}
    v_lshl_add_u32 v{t}, v{t + 1}, 3, v{t}
    v_lshl_add_u32 v{t}, v{vH}, 2, v{t}
    v_add_u32 v{aMWX}, {L_M1 + 4096}, v{t}
    v_add_u32 v{aMW}, {L_M1}, v{vT16}
    v_cmp_lt_u32 vcc, 159, v0
    v_cndmask_b32 v{aADD}, 0, 1.0, vcc
    v_lshl_add_u32 v{t}, v{vL31}, 2, s{sW}
    v_mul_u32_u24 v{t + 1}, 3, v{t}
    v_lshlrev_b32 v{t}, 2, v{t}
    v_add_u32 v{t}, {L_M1}, v{t}
    v_lshl_add_u32 v{t + 2}, v{vH}, 1, v{t + 1}''')
    for tau in range(3):
        A(f'v_add_u32 v{t + 3}, {4 * tau}, v{t + 2 if tau < 2 else t + 1}')
        mod5(t + 3, t + 3, t + 4)
        A(f'v_lshl_add_u32 v{aMR + tau}, v{t + 3}, 9, v{t}')
    for p in range(4):
        A(f's_mov_b32 s{sLD + p}, {WS_MOD + MP * p}')
    A(f'''s_mul_i32 s{sT0}, s{sW}, 6144
    s_add_u32 s{sT0}, s{sT0}, {L_X1E}
    v_lshl_add_u32 v{aEW}, v{vL31}, 3, s{sT0}
    v_lshl_add_u32 v{aEW}, v{vH}, 10, v{aEW}
    v_add_u32 v{aEW + 1}, 2048, v{aEW}
    v_add_u32 v{aEW + 2}, 4096, v{aEW}
    v_lshrrev_b32 v{t}, 5, v0
    v_lshlrev_b32 v{t + 1}, 8, v{t}''')
    for c in range(3):
        A(f'''v_add_u32 v{t + 2}, {13 * c}, v{vL31}
        v_and_b32 v{t + 2}, 31, v{t + 2}
        v_lshl_add_u32 v{t + 2}, v{t + 2}, 3, v{t + 1}
        v_add_u32 v{aER + c}, {L_X1E + 2048 * c}, v{t + 2}''')
    A(f'''v_lshlrev_b32 v{t + 1}, 4, v{vL31}
    v_sub_u32 v{t + 2}, 8, v{t}
    v_and_b32 v{t + 2}, 7, v{t + 2}
    v_lshl_add_u32 v{aST + 1}, v{t + 2}, 11, v{t + 1}
    v_lshl_add_u32 v{aST}, v{t}, 11, v{t + 1}
    s_mul_i32 s{sST}, s{sME}, {BS}
    s_add_u32 s{sST}, s{sST}, {WS_T}
    v_cmp_gt_u32 {sr(sM1, 2)}, 19, v{vL31}
    v_cmp_gt_u32 {sr(sM2, 2)}, 6, v{vL31}''')


def mod1_loads():
    s = ''
    for p in range(4):
        s += f'buffer_load_dwordx4 {vr(MODR + 4 * p, 4)}, v{vT16}, {srd(S_WS)}, s{sLD + p} offen sc1\n'
    s += f'buffer_load_dwordx4 {vr(MODR + 16, 4)}, v{aMX}, {srd(S_WS)}, s{sLD} offen sc1\n'
    return s


def bytecheck(base, n, t):
    c = ''
    for g in range(n):
        r = base + 4 * g
        for k in range(4):
            c += f'v_xor_b32 v{r + k}, s{sTB + k}, v{r + k}\n'
        if g == 0:
            c += f'v_or3_b32 v{t}, v{r}, v{r + 1}, v{r + 2}\nv_or_b32 v{t}, v{t}, v{r + 3}\n'
        else:
            c += f'v_or3_b32 v{t}, v{t}, v{r}, v{r + 1}\nv_or3_b32 v{t}, v{t}, v{r + 2}, v{r + 3}\n'
    return c + f'v_and_b32 v{t}, 0xff, v{t}\nv_cmp_ne_u32 vcc, 0, v{t}\n'


def k1_poll():
    poll_check('mod1', mod1_loads(), bytecheck(MODR, 5, TMP))
    stamp('mod1')


def round_add(r, add, t):
    A(f'v_cvt_pk_bf16_f32 v{t}, v{r}, v{r + 1}')
    A(f'v_cvt_pk_bf16_f32 v{t + 1}, v{r + 2}, v{r + 3}')
    unpack(r, r + 1, t)
    unpack(r + 2, r + 3, t + 1)
    if add is None:
        return
    for p in (0, 2):
        pk('add', r + p, r + p, add, mods='op_sel_hi:[1,0]')
    A(f'v_cvt_pk_bf16_f32 v{t}, v{r}, v{r + 1}')
    A(f'v_cvt_pk_bf16_f32 v{t + 1}, v{r + 2}, v{r + 3}')
    unpack(r, r + 1, t)
    unpack(r + 2, r + 3, t + 1)


def sum4(r):
    for p in (0, 2):
        pk('add', r + p, r + p, r + 4 + p)
        pk('add', r + 8 + p, r + 8 + p, r + 12 + p)
    for p in (0, 2):
        pk('add', r + p, r + p, r + 8 + p)


def radix4(z, P, inverse):
    pk('add', P, z, z + 4)
    pk('add', P + 2, z, z + 4, mods=NEG1)
    pk('add', P + 4, z + 2, z + 6)
    pk('add', P + 6, z + 2, z + 6, mods=NEG1)
    pk('add', z, P, P + 4)
    pk('add', z + 4, P, P + 4, mods=NEG1)
    a, b = ('neg_lo', 'neg_hi') if inverse else ('neg_hi', 'neg_lo')
    pk('add', z + 2, P + 2, P + 6, mods=f'op_sel:[0,1] op_sel_hi:[1,0] {a}:[0,1]')
    pk('add', z + 6, P + 2, P + 6, mods=f'op_sel:[0,1] op_sel_hi:[1,0] {b}:[0,1]')


def k1_head():
    t = TMP
    x = MODR + 16
    A(f'''v_permlane32_swap_b32 v{x}, v{x + 1}
    v_permlane32_swap_b32 v{x + 2}, v{x + 3}''')
    sum4(MODR)
    A(f'''v_add_f32 v{x}, v{x}, v{x + 1}
    v_add_f32 v{x + 2}, v{x + 2}, v{x + 3}''')
    round_add(MODR, aADD, t)
    A(f'''v_permlane16_swap_b32 v{x}, v{x + 2}
    ds_write_b128 v{aMW}, {vr(MODR, 4)}
    v_add_f32 v{x}, v{x}, v{x + 2}
    v_cvt_pk_bf16_f32 v{x}, v{x}, v{x}
    v_lshlrev_b32 v{x}, 16, v{x}
    v_add_f32 v{x}, 1.0, v{x}
    v_cvt_pk_bf16_f32 v{x}, v{x}, v{x}
    v_lshlrev_b32 v{x}, 16, v{x}
    ds_write_b32 v{aMWX}, v{x}''')
    fine(1, '1a_wr')
    A('s_waitcnt lgkmcnt(0)\ns_barrier')
    fine(1, '1b_bar')


def k1_main():
    t = TMP
    OPA = 60
    DRE, DIM = 24, 40
    for tau in range(3):
        A(f'ds_read2st64_b32 {vr(t + 2 * tau, 2)}, v{aMR + tau} offset0:0 offset1:10')
    for tau in range(3):
        for p in range(4):
            n = X_N + 8 * tau + 2 * p
            pk('fma', n, n, t + 2 * tau, t + 2 * tau, mods='op_sel:[0,1,0] op_sel_hi:[1,1,0]')
    O = 76

    def cva(tau):
        for p in range(4):
            n = X_N + 8 * tau + 2 * p
            A(f'v_cvt_pk_bf16_f32 v{OPA + 4 * tau + p}, v{n}, v{n + 1}')
    cva(0)
    for tau in range(3):
        A(f'v_mfma_f32_32x32x16_bf16 {vr(DRE, 16)}, {vr(OPA + 4 * tau, 4)}, {vr(K1_M1 + 4 * tau, 4)}, {vr(DRE, 16) if tau else 0}')
        if tau < 2:
            cva(tau + 1)
        A(f'v_mfma_f32_32x32x16_bf16 {vr(DIM, 16)}, {vr(OPA + 4 * tau, 4)}, {vr(K1_M1 + 12 + 4 * tau, 4)}, {vr(DIM, 16) if tau else 0}')
    fine(1, '1c_st1')
    for m in range(4):
        A(f'v_mov_b32 v{O + 4 * m + 3}, s{sTAG}')
    OPB = 60
    ERE, EIM = 156, 172

    def cvb(u):
        for jj in range(4):
            A(f'v_cvt_pk_bf16_f32 v{OPB + 4 * u + jj}, v{DRE + 4 * u + jj}, v{DIM + 4 * u + jj}')

    def wr(E, im):
        return [f'ds_write2_b32 v{aEW + (j >> 2)}, v{E + j}, v{E + j + 1} offset0:{64 * (j & 3) + im} offset1:{64 * (j & 3) + 64 + im}' for j in range(0, 12, 2)]
    cvb(0)
    for u in range(4):
        A(f'v_mfma_f32_32x32x16_bf16 {vr(ERE, 16)}, {vr(OPB + 4 * u, 4)}, {vr(K1_M2 + 4 * u, 4)}, {vr(ERE, 16) if u else 0}')
        if u < 3:
            cvb(u + 1)
            A('s_nop 1')
    w = wr(ERE, 0)
    for u in range(4):
        A(f'v_mfma_f32_32x32x16_bf16 {vr(EIM, 16)}, {vr(OPB + 4 * u, 4)}, {vr(K1_M2 + 16 + 4 * u, 4)}, {vr(EIM, 16) if u else 0}')
        if u == 0:
            A('s_nop 4')
        elif u == 1:
            A('s_nop 4')
            A(w.pop(0))
        elif u == 2:
            A(w.pop(0))
            A(w.pop(0))
    for x in w:
        A(x)
    fine(1, '1d_st2')
    for x in wr(EIM, 1):
        A(x)
    fine(1, '1e_wr')
    A('s_waitcnt lgkmcnt(0)\ns_barrier')
    fine(1, '1f_bar')
    Z = 24
    for c in (1, 2, 0):
        for b2 in (0, 2, 1, 3):
            A(f'ds_read_b64 {vr(Z + 8 * c + 2 * b2, 2)}, v{aER + c} offset:{6144 * b2}')
    fine(1, '1g_rd')
    P = 48
    for c in (1, 2, 0):
        z = Z + 8 * c
        radix4(z, P, False)
        if c == 0:
            fine(1, '1h_rx')
            for m in range(4):
                A(f'v_cvt_pk_bf16_f32 v{O + 4 * m}, v{z + 2 * m}, v{z + 2 * m + 1}')
                A(f'buffer_store_dwordx4 {vr(O + 4 * m, 4)}, v{aST + (m >> 1)}, {srd(S_WS)}, s{sST} offen offset:{512 * m} sc1')
        else:
            for k in range(4):
                A(f'v_cvt_pk_bf16_f32 v{56 + k}, v{z + 2 * k}, v{z + 2 * k + 1}')
            r0 = 1 if c == 1 else 3
            for m in range(4):
                A(f'v_cndmask_b32 v{O + 4 * m + c}, v{56 + (m - r0) % 4}, v{56 + (m - r0 - 1) % 4}, {sr(sM1 if c == 1 else sM2, 2)}')


K2C = 100
C_M1, C_TW1, C_M2, C_M3, C_TW2, C_M4 = [K2C + 8 * i for i in range(6)]
K2_IN = 24
vK2A, aIW, aIR, aOR, aOW, vTG = 148, 149, 150, 151, 152, 154


def k2_const():
    t = TMP
    A(f'''v_cvt_f32_u32 v{t}, v{vL15}
    v_cvt_f32_u32 v{t + 1}, v{vQ}
    v_cvt_f32_u32 v{t + 2}, s{sK1}
    v_mul_f32 v{t + 1}, 4.0, v{t + 1}''')
    fmamk(t + 3, t, 8, t + 2)
    A(f'v_mul_f32 v{t + 3}, {f2u(1.0 / 128)}, v{t + 3}')
    A(f'v_mul_f32 v{t + 4}, {f2u(1.0 / 16)}, v{t}')
    A(f'v_mul_f32 v{t + 5}, {f2u(1.0 / 128)}, v{t}')
    A(f'v_mul_f32 v{t + 5}, v{t + 5}, v{t + 2}')
    for jj in range(4):
        A(f'v_add_f32 v{t + 6}, {f2u(float(jj))}, v{t + 1}')
        A(f'v_mul_f32 v{t + 7}, v{t + 6}, v{t + 3}')
        A(f'v_mul_f32 v{t + 8}, {f2u(1.0 / 16)}, v{t + 7}')
        A(f'v_mul_f32 v{t + 9}, v{t + 6}, v{t + 4}')
        A(f'v_add_f32 v{t + 10}, v{t + 9}, v{t + 5}')
        A(f'v_mul_f32 v{t + 11}, {f2u(1.0 / 16)}, v{t + 10}')
        sincos(t + 7, t + 12, t + 13)
        sincos(t + 8, C_TW1 + jj, C_TW1 + 4 + jj)
        A(f'v_cvt_pk_bf16_f32 v{C_M1 + jj}, v{t + 12}, v{t + 13}')
        A(f'v_cvt_pk_bf16_f32 v{C_M1 + 4 + jj}, -v{t + 13}, v{t + 12}')
        sincos(t + 9, t + 12, t + 13)
        sincos(t + 10, t + 14, t + 15)
        sincos(t + 11, C_TW2 + jj, C_TW2 + 4 + jj)
        A(f'v_cvt_pk_bf16_f32 v{C_M2 + jj}, v{t + 12}, v{t + 13}')
        A(f'v_cvt_pk_bf16_f32 v{C_M2 + 4 + jj}, -v{t + 13}, v{t + 12}')
        A(f'v_cvt_pk_bf16_f32 v{C_M3 + jj}, v{t + 12}, -v{t + 13}')
        A(f'v_cvt_pk_bf16_f32 v{C_M3 + 4 + jj}, v{t + 13}, v{t + 12}')
        A(f'v_cvt_pk_bf16_f32 v{C_M4 + jj}, v{t + 14}, -v{t + 15}')
        A(f'v_cvt_pk_bf16_f32 v{C_M4 + 4 + jj}, v{t + 15}, v{t + 14}')


def k2_loads():
    return ''.join(f'buffer_load_dwordx4 {vr(K2_IN + 4 * j, 4)}, v{vK2A}, {srd(S_WS)}, s{sLD + j} offen sc1\n' for j in range(4))


def k2_addr():
    t = TMP
    A(f'''v_lshrrev_b32 v{t}, 2, v{vL}
    v_mul_u32_u24 v{t}, {BS}, v{t}
    v_and_b32 v{t + 1}, 3, v{vL}
    v_lshl_add_u32 v{vK2A}, v{t + 1}, 4, v{t}
    s_mul_i32 s{sT0}, s{sW}, {64 * BS}
    s_lshl_b32 s{sT1}, s{sME}, 6
    s_add_u32 s{sT0}, s{sT0}, s{sT1}
    s_add_u32 s{sLD}, s{sT0}, {WS_T}''')
    for j in range(1, 4):
        A(f's_add_u32 s{sLD + j}, s{sLD}, {16 * j * BS}')
    A(f'''v_mul_u32_u24 v{t}, 3104, v{t + 1}
    v_lshrrev_b32 v{t + 1}, 2, v0
    v_lshl_add_u32 v{t}, v{t + 1}, 4, v{t}
    s_mul_i32 s{sT0}, s{sW}, 3104
    v_add_u32 v{t + 1}, s{sT0}, v{vL16}
    v_add_u32 v{aOR}, {L_K2O}, v{t}
    v_add_u32 v{aOW}, {L_K2O}, v{t + 1}
    v_add_u32 v{aIW}, {L_K2I}, v{t}
    v_add_u32 v{aIR}, {L_K2I}, v{t + 1}
    s_mul_i32 s{sST}, s{sME}, {BS}
    s_lshl_b32 s{sT1}, s{sW}, 12
    s_add_u32 s{sST}, s{sST}, s{sT1}
    s_add_u32 s{sST}, s{sST}, {WS_TP}
    v_mov_b32 v{vTG}, s{sTAG}''')


def cmul(dre, dim, wr, wi, conj, tmp):
    for p in (0, 2):
        pk('mul', tmp + p, dre + p, wr + p)
        pk('mul', tmp + 4 + p, dim + p, wr + p)
    neg = 'neg_lo:[1,0,0] neg_hi:[1,0,0]'
    for p in (0, 2):
        pk('fma', tmp + p, dim + p, wi + p, tmp + p, mods='' if conj else neg)
        pk('fma', tmp + 4 + p, dre + p, wi + p, tmp + 4 + p, mods=neg if conj else '')


def k2_head():
    tg = [K2_IN + 4 * j + 3 for j in range(4)]
    poll_check('t', masked(k2_loads(), tg), tagcheck(tg, TMP))
    stamp('T')
    X = 40
    for c in range(3):
        cb, cs = c & ~1, c & 1
        for p in (0, 2):
            A(f'v_pk_mov_b32 {vr(X + 4 * c + p, 2)}, {vr(K2_IN + 4 * p + cb, 2)}, {vr(K2_IN + 4 * p + 4 + cb, 2)} op_sel:[{cs},{cs}]')
        A(f'ds_write_b128 v{aIW}, {vr(X + 4 * c, 4)} offset:{1024 * c}')
    fine(1, '2a_wr')
    A('s_waitcnt lgkmcnt(0)\ns_barrier')
    fine(1, '2b_bar')


def k2_main():
    X = 40
    OP = 24
    D = 40
    U = 64
    for c in range(3):
        A(f'ds_read_b128 {vr(OP + 4 * c, 4)}, v{aIR} offset:{1024 * c}')

    def mm(c, M, data_is_a):
        for p in range(2):
            a, b = (vr(OP + 4 * c, 4), vr(M + 4 * p, 4)) if data_is_a else (vr(M + 4 * p, 4), vr(OP + 4 * c, 4))
            A(f'v_mfma_f32_16x16x32_bf16 {vr(D + 8 * c + 4 * p, 4)}, {a}, {b}, 0')

    def mid(wr, wi, conj, M, data_is_a):
        for c in range(3):
            cmul(D + 8 * c, D + 8 * c + 4, wr(c), wi(c), conj, U + 8 * c)
        cv = [f'v_cvt_pk_bf16_f32 v{OP + 4 * c + jj}, v{U + 8 * c + jj}, v{U + 8 * c + 4 + jj}' for c in range(3) for jj in range(4)]
        for x in cv[:6]:
            A(x)
        cv = cv[6:]
        for c in range(3):
            for x in A.capture(lambda: mm(c, M, data_is_a)):
                A.items.append(x)
                for y in cv[:2]:
                    A(y)
                cv = cv[2:]
    fine(1, '2c_rd')
    for c in range(3):
        mm(c, C_M1, True)
    mid(lambda c: C_TW1, lambda c: C_TW1 + 4, True, C_M2, False)
    mid(lambda c: F_W + 8 * c, lambda c: F_W + 8 * c + 4, False, C_M3, True)
    mid(lambda c: C_TW2, lambda c: C_TW2 + 4, False, C_M4, False)
    fine(1, '2d_mm')
    for c in range(3):
        for jj in range(4):
            A(f'v_cvt_pk_bf16_f32 v{OP + 4 * c + jj}, v{D + 8 * c + jj}, v{D + 8 * c + 4 + jj}')
        A(f'ds_write_b128 v{aOW}, {vr(OP + 4 * c, 4)} offset:{1024 * c}')
    fine(1, '2e_wr')
    A('s_waitcnt lgkmcnt(0)\ns_barrier')
    fine(1, '2f_bar')
    for c in range(3):
        A(f'ds_read_b128 {vr(X + 4 * c, 4)}, v{aOR} offset:{1024 * c}')
    fine(1, '2g_rd')
    O = 64
    for j in range(4):
        jb, js = j & ~1, j & 1
        A(f'v_pk_mov_b32 {vr(O + 4 * j, 2)}, {vr(X + jb, 2)}, {vr(X + 4 + jb, 2)} op_sel:[{js},{js}]')
        A(f'v_pk_mov_b32 {vr(O + 4 * j + 2, 2)}, {vr(X + 8 + jb, 2)}, {vr(vTG, 2)} op_sel:[{js},0]')
        A(f'buffer_store_dwordx4 {vr(O + 4 * j, 4)}, v{vL16}, {srd(S_WS)}, s{sST} offen offset:{1024 * j} sc1')


def epoch_store():
    A(f'''s_cmp_eq_u32 s{sME}, 0
    s_cselect_b32 s{sBGO}, {WS_EPOCH}, {OOB}
    v_mov_b32 v{vBG}, 0
    v_mov_b32 v{vBG + 3}, s{sTAG}
    buffer_store_dword v{vBG + 3}, v{vBG}, {srd(S_WS)}, s{sBGO} offen sc1''')


K3_MA = 100
K3_MB = 132
K3_X = 156
K3_GA, K3_SB, K3_CB = 176, 196, 216
K3_IN = 24
vK3A, vK3B = 236, 237
M2R = 160
X3R = 88
B1R = 192


def side_loads():
    s = ''
    for p in range(4):
        s += f"""s_mov_b32 s{sBG2}, {WS_MOD + MP * p + 320 * 16}
        buffer_load_dwordx4 {vr(M2R + 4 * p, 4)}, v{vT16}, {srd(S_WS)}, s{sBG2} offen sc1
        buffer_load_dwordx4 {vr(M2R + 16 + 4 * p, 4)}, v{vBG + 2}, {srd(S_WS)}, s{sBG2} offen sc1
        """
    return s


def side_prep():
    t = TMP
    A(f"""s_and_b32 s{sT0}, s{sJ}, 7
    s_mul_i32 s{sT0}, s{sT0}, 320
    v_mov_b32 v{t}, s{sT0}
    v_cmp_lt_u32 vcc, 223, v0
    v_cndmask_b32 v{t}, 0, v{t}, vcc
    v_min_u32 v{t + 1}, {243 * 16}, v{vT16}
    v_add_u32 v{t}, v{t}, v{t + 1}
    v_add_u32 v{vBG + 2}, 4096, v{t}
    s_lshr_b32 s{sT0}, s{sT0}, 1
    v_lshl_add_u32 v{vBG + 1}, v{vL31}, 3, s{sT0}""")


def b2_issue():
    A(f"""buffer_load_dwordx2 v[192:193], v{vBG + 1}, {srd(S_B2)}, 0 offen
    s_mul_i32 s{sBG2}, s{sJ}, 192
    v_lshlrev_b32 v194, 3, v{vL31}
    buffer_load_dwordx2 v[194:195], v194, {srd(S_B1)}, s{sBG2} offen""")


def side_finish():
    t = TMP
    poll_check('mod2', side_loads(), bytecheck(M2R, 8, t))
    A(f"""v_subrev_u32 v{t + 2}, 64, v0
    v_cmp_gt_u32 vcc, 160, v{t + 2}
    v_cndmask_b32 v{t + 2}, 0, 1.0, vcc
    v_add_u32 v{t + 5}, {L_M2}, v{vT16}""")
    for g in range(2):
        r = M2R + 16 * g
        sum4(r)
        round_add(r, t + 2 if g else None, t)
        if g:
            unpack(t + 6, t + 7, 192)
            unpack(t + 8, t + 9, 193)
            A(f'''v_mov_b32 v{t + 3}, {f2u(1.0 / GA)}
            v_cmp_lt_u32 vcc, 223, v0
            v_cndmask_b32 v{t + 2}, 1.0, v{t + 3}, vcc''')
            for p in (0, 2):
                pk('mul', t + 6 + p, t + 6 + p, r + p)
                pk('mul', r + p, r + p, t + 2, mods='op_sel_hi:[1,0]')
            A(f'''v_max_u32 v{t + 3}, {223 * 16}, v{vT16}
            v_add_u32 v{t + 3}, {L_M2 + 8192 - 223 * 16}, v{t + 3}
            ds_write_b128 v{t + 3}, {vr(t + 6, 4)}''')
        A(f'ds_write_b128 v{t + 5}, {vr(r, 4)} offset:{4096 * g}')
    unpack(t + 6, t + 7, 194)
    unpack(t + 8, t + 9, 195)
    A(f's_mov_b32 s{sT2}, {f2u(GA)}\ns_mov_b32 s{sT0}, {L_B1}')
    for p in (0, 2):
        pk('mul', t + 6 + p, t + 6 + p, sr(sT2, 2), mods='op_sel_hi:[1,0]')
    A(f'''v_lshl_add_u32 v{t + 3}, v{vL31}, 4, s{sT0}
    ds_write_b128 v{t + 3}, {vr(t + 6, 4)}''')
    for k in range(10):
        A(f'v_accvgpr_read_b32 v{X3R + k}, a{240 + k}')
    for k in range(10):
        unpack(K3_X + 2 * k, K3_X + 2 * k + 1, X3R + k)


def k3_const():
    t = TMP
    A(f'''v_lshlrev_b32 v{t}, 2, v{vL31}
    v_add_u32 v{t}, s{sW}, v{t}
    v_cvt_f32_u32 v{t}, v{t}
    v_mul_f32 v{t}, {f2u(1.0 / 128)}, v{t}
    v_cvt_f32_u32 v{t + 8}, v{vH}
    v_mul_f32 v{t + 8}, 4.0, v{t + 8}
    v_mul_f32 v{t + 1}, v{t + 8}, v{t}''')
    for u in range(4):
        for jp in (0, 2):
            fmamk(t + 2, t, 8 * u + jp, t + 1)
            fmamk(t + 5, t, 8 * u + jp + 1, t + 1)
            sincos(t + 2, t + 3, t + 4)
            sincos(t + 5, t + 6, t + 7)
            for jj, e in ((jp, 3), (jp + 1, 6)):
                A(f'v_cvt_pk_bf16_f32 v{K3_MA + 4 * u + jj}, v{t + e}, -v{t + e + 1}')
                A(f'v_cvt_pk_bf16_f32 v{K3_MA + 16 + 4 * u + jj}, v{t + e + 1}, v{t + e}')
    A(f'''v_lshrrev_b32 v{t}, 3, v{vL31}
    v_cvt_f32_u32 v{t}, v{t}
    v_mul_f32 v{t}, {f2u(0.4)}, v{t}
    v_and_b32 v{t + 1}, 7, v{vL}
    v_cvt_f32_u32 v{t + 1}, v{t + 1}
    v_mul_f32 v{t + 1}, {f2u(0.125)}, v{t + 1}
    v_mul_f32 v{t + 9}, v{t + 8}, v{t + 1}''')
    for jj in range(4):
        fmamk(t + 10, t + 1, jj, t + 9)
        for tau in range(3):
            fmamk(t + 2, t, tau, t + 10)
            sincos(t + 2, t + 3, t + 4)
            if tau:
                A(f'v_add_f32 v{t + 5}, {f2u(1.6 * tau)}, v{t + 10}')
                sincos(t + 5, t + 6, t + 7)
            A(f'v_cvt_pk_bf16_f32 v{K3_MB + 4 * tau + jj}, v{t + 3}, -v{t + 4}')
            if tau:
                A(f'v_cvt_pk_bf16_f32 v{K3_MB + 12 + 4 * tau + jj}, v{t + 6}, -v{t + 7}')
            else:
                A(f'v_mov_b32 v{K3_MB + 12 + jj}, v{K3_MB + jj}')


def k3_loads():
    return ''.join(f'buffer_load_dwordx4 {vr(K3_IN + 4 * m, 4)}, v{vK3A + (m >> 1)}, {srd(S_WS)}, s{sLD + m} offen sc1\n' for m in range(4))


def k3_ldaddr():
    t = TMP
    A(f'''v_lshrrev_b32 v{t}, 5, v0
    v_sub_u32 v{t + 1}, 8, v{t}
    v_and_b32 v{t + 1}, 7, v{t + 1}
    v_lshrrev_b32 v{t + 2}, 2, v{vL31}
    v_lshl_add_u32 v{t}, v{t}, 5, v{t + 2}
    v_lshl_add_u32 v{t + 1}, v{t + 1}, 5, v{t + 2}
    v_mul_u32_u24 v{t}, {BS}, v{t}
    v_mul_u32_u24 v{t + 1}, {BS}, v{t + 1}
    v_and_b32 v{t + 2}, 3, v{vL}
    v_lshl_add_u32 v{vK3A}, v{t + 2}, 4, v{t}
    v_lshl_add_u32 v{vK3B}, v{t + 2}, 4, v{t + 1}
    s_lshl_b32 s{sT0}, s{sME}, 6
    s_add_u32 s{sLD}, s{sT0}, {WS_TP}''')
    for m in range(1, 4):
        A(f's_add_u32 s{sLD + m}, s{sLD}, {8 * m * BS}')


aWA, aRA, aYA = 8, 11, 12
aYR, aSEL, aX1 = 84, 86, 87
aRW, aRR, aY2, aMO = 89, 91, 92, 93
ST3 = 18
vEPS = 22
GK = 2.0 * 0.7978845608028654 * 1.4426950408889634
GA = (GK * 0.044715) ** (1.0 / 3.0)


def k3_addr():
    t = 95
    A(f'v_lshrrev_b32 v{t}, 5, v0')
    A(f'v_mul_u32_u24 v{t}, 144, v{t}')
    for c in range(3):
        A(f'''v_add_u32 v{t + 1}, {13 * c}, v{vL31}
        v_and_b32 v{t + 1}, 31, v{t + 1}
        v_lshl_add_u32 v{t + 1}, v{t + 1}, 2, v{t}
        v_add_u32 v{aWA + c}, {L_K3I + 8 * 144 * c}, v{t + 1}''')
    A(f'''s_mul_i32 s{sT0}, s{sW}, 3584
    s_add_u32 s{sT0}, s{sT0}, {L_K3I}
    v_mul_u32_u24 v{t}, 144, v{vL31}
    v_lshl_add_u32 v{t}, v{vH}, 4, v{t}
    v_add_u32 v{aRA}, s{sT0}, v{t}''')
    A(f'''v_lshl_add_u32 v{t}, v{vL31}, 2, s{sW}
    v_mul_u32_u24 v{t + 1}, 3, v{t}
    v_mul_u32_u24 v{t + 2}, 5120, v{vH}
    v_lshl_add_u32 v{t}, v{t}, 2, v{t + 2}
    v_add_u32 v{t}, {L_Y}, v{t}''')
    for a in range(5):
        A(f'v_add_u32 v{t + 2}, {2 * a}, v{t + 1}')
        mod5(t + 2, t + 2, t + 3)
        A(f'v_lshl_add_u32 v{aYA + a}, v{t + 2}, 9, v{t}')
    A(f'''s_mul_i32 s{sT0}, s{sW}, 2560
    s_add_u32 s{sT1}, s{sT0}, {L_Y}
    v_lshl_add_u32 v{aYR}, v{vL31}, 5, s{sT1}
    v_lshl_add_u32 v{aYR + 1}, v{vL31}, 4, s{sT1}
    s_mov_b32 s{sT1}, {L_M2}
    v_lshl_add_u32 v{aMO}, v{vL31}, 5, s{sT1}
    v_lshl_add_u32 v{aMO + 1}, v{vL31}, 4, s{sT1}
    v_mov_b32 v{t}, 0x01000c0c
    v_mov_b32 v{t + 1}, 0x03020c0c
    v_cmp_eq_u32 vcc, 1, v{vH}
    v_cndmask_b32 v{aSEL}, v{t}, v{t + 1}, vcc
    s_lshl_b32 s{sST + 3}, s{sW}, 9
    s_add_u32 s{sST + 3}, s{sST + 3}, s{sME}
    s_mul_i32 s{sST + 3}, s{sST + 3}, 1280
    s_mul_i32 s{sST}, s{sJ}, 10
    s_add_u32 s{sST}, s{sST}, s{sW}
    s_mul_i32 s{sST}, s{sST}, {BS}
    s_lshl_b32 s{sT1}, s{sCL}, 10
    s_add_u32 s{sST}, s{sST}, s{sT1}
    s_add_u32 s{sST}, s{sST}, {WS_Y2}
    s_add_u32 s{sST + 1}, s{sST}, {4 * BS}
    s_add_u32 s{sST + 2}, s{sST}, {8 * BS}
    s_cmp_lt_u32 s{sW}, 2
    s_cselect_b32 s{sST + 2}, s{sST + 2}, {OOB}
    v_mul_u32_u24 v{t}, {256 * 1280}, v{vH}
    v_lshl_add_u32 v{aX1}, v{vL31}, 4, v{t}
    v_lshl_add_u32 v{aX1 + 1}, v{vL31}, 3, v{t}''')
    A(f'''s_lshl_b32 s{sT2}, s{sW}, 1
    v_add_u32 v{t}, s{sT2}, v{vH}
    v_xor_b32 v{t + 1}, v{t}, v{vL31}
    v_and_b32 v{t + 1}, 7, v{t + 1}
    v_lshlrev_b32 v{t + 1}, 4, v{t + 1}
    v_lshl_add_u32 v{t + 1}, v{vL31}, 7, v{t + 1}
    v_add_u32 v{aRW}, {L_Y2}, v{t + 1}
    v_lshrrev_b32 v{t + 2}, 1, v{vL31}
    v_xor_b32 v{t + 3}, v{t}, v{t + 2}
    v_and_b32 v{t + 3}, 7, v{t + 3}
    v_lshlrev_b32 v{t + 3}, 4, v{t + 3}
    v_lshl_add_u32 v{t + 3}, v{t + 2}, 7, v{t + 3}
    v_and_b32 v{t + 2}, 1, v{vL}
    v_lshl_add_u32 v{t + 3}, v{t + 2}, 3, v{t + 3}
    v_add_u32 v{aRW + 1}, {L_Y2 + 64 * 128}, v{t + 3}
    v_lshrrev_b32 v{t + 2}, 3, v0
    v_xor_b32 v{t + 4}, v{t + 2}, v0
    v_and_b32 v{t + 4}, 7, v{t + 4}
    v_lshlrev_b32 v{t + 4}, 4, v{t + 4}
    v_lshl_add_u32 v{t + 4}, v{t + 2}, 7, v{t + 4}
    v_add_u32 v{aRR}, {L_Y2}, v{t + 4}
    v_mov_b32 v{vEPS}, {f2u(1e-5 / GA ** 2)}''')


def row_stats(b, t, scale=None):
    pk('add', t, b, b + 2)
    pk('mul', t + 2, b, b)
    for k in range(1, 10):
        if k > 1:
            pk('add', t, t, b + 2 * k)
        pk('fma', t + 2, b + 2 * k, b + 2 * k, t + 2)
    A(f'''v_add_f32 v{t}, v{t}, v{t + 1}
    v_add_f32 v{t + 2}, v{t + 2}, v{t + 3}
    v_permlane16_swap_b32 v{t}, v{t + 2}
    v_add_f32 v{t}, v{t}, v{t + 2}''')
    for r in (8, 4, 2, 1):
        A(f'v_add_f32_dpp v{t}, v{t}, v{t} row_ror:{r} row_mask:0xf bank_mask:0xf')
    A(f'''v_mul_f32 v{t + 1}, {f2u(1.0 / 640)}, v{t}
    v_mul_f32 v{t + 2}, {f2u(1.0 / 640)}, v{t}
    v_permlane16_swap_b32 v{t + 1}, v{t + 2}
    v_fma_f32 v{t}, -v{t + 1}, v{t + 1}, v{t + 2}
    v_max_f32 v{t}, 0, v{t}''')
    if scale is None:
        A(f'v_add_f32 v{t}, {f2u(1e-5)}, v{t}')
    else:
        A(f'v_fmamk_f32 v{t}, v{t}, {f2u(1.0 / scale ** 2)}, v{vEPS}')
    A(f'''v_rsq_f32 v{t}, v{t}
    v_mul_f32 v{t + 1}, v{t + 1}, v{t}''')


def k3_poll():
    tg = [K3_IN + 4 * m + 3 for m in range(4)]
    poll_check('tp', masked(k3_loads(), tg), tagcheck(tg, ST3))
    stamp('Tp')


def k3_main():
    Z, P, Q = 40, 48, 56
    for c in range(3):
        if c == 0:
            src = [K3_IN + 4 * k for k in range(4)]
        else:
            r0 = 1 if c == 1 else 3
            for k in range(4):
                A(f'v_cndmask_b32 v{Q + k}, v{K3_IN + 4 * ((k + r0) % 4) + c}, v{K3_IN + 4 * ((k + r0 + 1) % 4) + c}, {sr(sM1 if c == 1 else sM2, 2)}')
            src = [Q + k for k in range(4)]
        z = Z + 20 * (c & 1)
        for k in range(4):
            unpack(z + 2 * k, z + 2 * k + 1, src[k])
        radix4(z, P, True)
        for k in (0, 1):
            A(f'v_cvt_pk_bf16_f32 v{z + 2 * k}, v{z + 2 * k}, v{z + 2 * k + 1}')
            A(f'v_cvt_pk_bf16_f32 v{z + 2 * k + 4}, v{z + 2 * k + 4}, v{z + 2 * k + 5}')
            A(f'ds_write2st64_b32 v{aWA + c}, v{z + 2 * k}, v{z + 2 * k + 4} offset0:{14 * k} offset1:{14 * k + 28}')
    fine(3, '3a_wr')
    A('s_waitcnt lgkmcnt(0)\ns_barrier')
    fine(3, '3b_bar')
    OPA = 24
    DRE, DIM = 40, 56
    for u in range(4):
        A(f'ds_read_b128 {vr(OPA + 4 * u, 4)}, v{aRA} offset:{32 * u}')
    mo = []
    for v, dst in enumerate((K3_GA, K3_SB, K3_CB)):
        for k in range(4):
            mo.append(f'ds_read_b128 {vr(dst + 4 * k, 4)}, v{aMO} offset:{2560 * v + 1024 * (k >> 1) + 16 * (k & 1)}')
        mo.append(f'ds_read_b128 {vr(dst + 16, 4)}, v{aMO + 1} offset:{2560 * v + 2048}')
    for u in range(4):
        A(f'v_mfma_f32_32x32x16_bf16 {vr(DRE, 16)}, {vr(OPA + 4 * u, 4)}, {vr(K3_MA + 4 * u, 4)}, {vr(DRE, 16) if u else 0}')
        A(mo.pop(0))
        A(mo.pop(0))
        A(f'v_mfma_f32_32x32x16_bf16 {vr(DIM, 16)}, {vr(OPA + 4 * u, 4)}, {vr(K3_MA + 16 + 4 * u, 4)}, {vr(DIM, 16) if u else 0}')
        if u:
            A(mo.pop(0))
            A(mo.pop(0))
    A(mo.pop(0))
    fine(3, '3c_stA')
    OPB = 72
    E0, E1 = 100, 116
    def cvb(tau):
        for jj in range(4):
            A(f'v_cvt_pk_bf16_f32 v{OPB + 4 * tau + jj}, v{DRE + 4 * tau + jj}, v{DIM + 4 * tau + jj}')
    cvb(0)
    for tau in range(3):
        A(f'v_mfma_f32_32x32x16_bf16 {vr(E0, 16)}, {vr(K3_MB + 4 * tau, 4)}, {vr(OPB + 4 * tau, 4)}, {vr(E0, 16) if tau else 0}')
        if tau < 2:
            cvb(tau + 1)
            A('s_nop 1')
    for tau in range(3):
        A(f'v_mfma_f32_32x32x16_bf16 {vr(E1, 16)}, {vr(K3_MB + 12 + 4 * tau, 4)}, {vr(OPB + 4 * tau, 4)}, {vr(E1, 16) if tau else 0}')
        if tau < 2:
            A('s_nop 4')
    fine(3, '3d_stB')
    for a in range(5):
        e = E0 + 4 * a
        A(f'v_cvt_pk_bf16_f32 v{24 + 2 * a}, v{e}, v{e + 1}')
        A(f'v_cvt_pk_bf16_f32 v{25 + 2 * a}, v{e + 2}, v{e + 3}')
        A(f'ds_write2st64_b32 v{aYA + a}, v{24 + 2 * a}, v{25 + 2 * a} offset0:0 offset1:10')
    fine(3, '3e_wr')
    A('s_waitcnt lgkmcnt(0)\ns_barrier')
    fine(3, '3f_bar')
    Y = 40
    for k in range(4):
        A(f'ds_read_b128 {vr(Y + 4 * k, 4)}, v{aYR} offset:{1024 * (k >> 1) + 16 * (k & 1)}')
    A(f'ds_read_b128 {vr(Y + 16, 4)}, v{aYR + 1} offset:2048')
    fine(3, '3g_rd')
    PK = 24
    for k in range(10):
        A(f'v_perm_b32 v{Y + 2 * k}, v{Y + 2 * k}, v{Y + 2 * k}, v{aSEL}')
        A(f'v_perm_b32 v{Y + 2 * k + 1}, v{Y + 2 * k + 1}, v{Y + 2 * k + 1}, v{aSEL}')
        pk('fma', Y + 2 * k, Y + 2 * k, K3_GA + 2 * k, K3_X + 2 * k)
    X1 = A.capture(lambda: [A(f'v_cvt_pk_bf16_f32 v{PK + k}, v{Y + 2 * k}, v{Y + 2 * k + 1}') for k in range(10)])
    st = A.capture(lambda: row_stats(Y, ST3))
    n0 = 21
    A.items.extend(st[:n0])
    for i in st[n0:]:
        if X1:
            A.items.append(X1.pop(0))
        A.items.append(i)
    A.items.extend(X1)
    fine(3, '3h_st1')
    xs = ' sc1' if OPT['x1sc'] else ''
    A(f'''buffer_store_dwordx4 {vr(PK, 4)}, v{aX1}, {srd(S_OUT)}, s{sST + 3} offen{xs}
    buffer_store_dwordx4 {vr(PK + 4, 4)}, v{aX1}, {srd(S_OUT)}, s{sST + 3} offen offset:512{xs}
    buffer_store_dwordx2 {vr(PK + 8, 2)}, v{aX1 + 1}, {srd(S_OUT)}, s{sST + 3} offen offset:1024{xs}''')
    fine(3, '3i_x1')
    nm = 'op_sel:[0,0,1] op_sel_hi:[1,0,1] neg_lo:[0,0,1] neg_hi:[0,0,1]'
    for k in range(10):
        pk('fma', Y + 2 * k, Y + 2 * k, ST3, ST3, mods=nm)
        pk('fma', Y + 2 * k, Y + 2 * k, K3_CB + 2 * k, K3_SB + 2 * k)
    row_stats(Y, ST3, GA)
    fine(3, '3j_st2')
    PK = 60
    for k in range(10):
        pk('fma', Y + 2 * k, Y + 2 * k, ST3, ST3, mods=nm)
        A(f'v_cvt_pk_bf16_f32 v{PK + k}, v{Y + 2 * k}, v{Y + 2 * k + 1}')
        if k == 3:
            A(f'ds_write_b128 v{aRW}, {vr(PK, 4)}')
        if k == 7:
            A(f'ds_write_b128 v{aRW}, {vr(PK + 4, 4)} offset:4096')
    A(f'ds_write_b64 v{aRW + 1}, {vr(PK + 8, 2)}')


def k3_tail():
    fine(3, '3k_wr')
    A('s_waitcnt lgkmcnt(0)\ns_barrier')
    fine(3, '3l_bar')
    for i in range(3):
        A(f'ds_read_b128 {vr(24 + 4 * i, 4)}, v{aRR} offset:{4096 * i}')
    for i in range(3):
        A(f'buffer_store_dwordx4 {vr(24 + 4 * i, 4)}, v{vL16}, {srd(S_WS)}, s{sST + i} offen')


G1_A = 24
G1_ACC = 184
G1_B = 232
NS, PRE = 4, 3
aB, aPW, aPR, vH4, vG1A, vGC, vT1 = 8, 12, 16, 18, 20, 22, 23
B1RAW = 132
sHB = 72
PARTS = [[(ks, tl) for ks in range(20) for tl in range(4)], [(ks, tl) for ks in range(20) for tl in (4, 5)]]


def b1_issue():
    A(f"""s_mul_i32 s{sBG2}, s{sJ}, 192
    v_lshlrev_b32 v{vBG}, 3, v{vQ}""")
    for k in range(6):
        A(f'buffer_load_dwordx2 {vr(B1RAW + 2 * k, 2)}, v{vBG}, {srd(S_B1)}, s{sBG2} offen offset:{32 * k}')


def g1_load(i):
    ks, r = divmod(i, 2)
    pre = f's_add_u32 s{sLD}, s{sLD}, {BS}\n' if i and i % 4 == 0 else ''
    return pre + f'buffer_load_dwordx4 {vr(G1_A + 4 * i, 4)}, v{vG1A + r}, {srd(S_WS)}, s{sLD} offen offset:{512 * (ks & 1)} sc1'


def g1_rd(part, n):
    ks, tl = PARTS[part][n]
    ad = aB + 2 * (ks // 10) + (tl & 1)
    off = (ks % 10) * 6144 + 64 * (tl >> 1)
    s = G1_B + 4 * (n % NS)
    return [f'ds_read_b64_tr_b16 {vr(s, 2)}, v{ad} offset:{off}', f'ds_read_b64_tr_b16 {vr(s + 2, 2)}, v{ad} offset:{off + 768}']


def g1_bias():
    A(f's_mov_b32 s{sT2}, {L_B1}\nv_lshl_add_u32 v14, v{vQ}, 4, s{sT2}')
    for tl in range(6):
        for r in range(2):
            A(f'ds_read_b128 {vr(G1_ACC + 8 * tl + 4 * r, 4)}, v14 offset:{64 * tl}')


def g1_pre():
    t = 12
    A(f"""v_lshrrev_b32 v{t}, 3, v{vL15}
    v_mul_u32_u24 v{t}, {10 * BS}, v{t}
    v_lshl_add_u32 v{t}, v{vQ}, 7, v{t}
    v_and_b32 v{t + 1}, 7, v{vL}
    v_lshl_add_u32 v{vG1A}, v{t + 1}, 4, v{t}
    v_add_u32 v{vG1A + 1}, {20 * BS}, v{vG1A}
    s_mul_i32 s{sT0}, s{sW}, {40 * BS}
    s_lshl_b32 s{sT1}, s{sCL}, 10
    s_add_u32 s{sT0}, s{sT0}, s{sT1}
    s_add_u32 s{sLD}, s{sT0}, {WS_Y2}""")
    A(f"""v_lshrrev_b32 v{t}, 2, v{vL15}
    v_lshl_add_u32 v{t}, v{vQ}, 3, v{t}
    v_mul_u32_u24 v{t}, 192, v{t}
    v_and_b32 v{t + 1}, 3, v{vL}
    v_lshl_add_u32 v{t}, v{t + 1}, 3, v{t}
    v_and_b32 v{t + 1}, 1, v{vQ}
    v_lshl_add_u32 v{aB}, v{t + 1}, 5, v{t}
    v_xor_b32 v{aB + 1}, 32, v{aB}
    v_add_u32 v{aB + 2}, 61440, v{aB}
    v_add_u32 v{aB + 3}, 61440, v{aB + 1}""")


def g1_part(part, side):
    fr = PARTS[part]
    for n, (ks, tl) in enumerate(fr):
        rd = g1_rd(part, n + PRE) if n + PRE < len(fr) else []
        for r in range(2):
            acc = vr(G1_ACC + 8 * tl + 4 * r, 4)
            A(f'v_mfma_f32_16x16x32_bf16 {acc}, {vr(G1_B + 4 * (n % NS), 4)}, {vr(G1_A + 4 * (2 * ks + r), 4)}, {acc}')
            if rd:
                A(rd[r])
        for x in side.get(n, []):
            if callable(x):
                x()
            else:
                A.items.extend(x)


def place(side, groups, lo, hi):
    for k, g in enumerate(groups):
        side.setdefault(lo + (hi - lo) * k // max(len(groups), 1), []).append(g)


def late_addr():
    t = vT1
    A(f"""s_mul_i32 s{sST}, s{sCL}, 393216
    s_add_u32 s{sST}, s{sST}, {WS_H}
    s_lshr_b32 s{sT0}, s{sJ}, 3
    s_mul_i32 s{sT0}, s{sT0}, {4 * 48 * 1024}
    s_add_u32 s{sT0}, s{sT0}, s{sST}
    s_mul_i32 s{sT1}, s{sW}, {12 * 1024}
    s_add_u32 s{sT0}, s{sT0}, s{sT1}
    s_mul_i32 s{sT1}, s{sW}, {96 * 1024}
    s_add_u32 s{sST}, s{sST}, s{sT1}
    s_mul_i32 s{sT1}, s{sJ}, 3072
    s_add_u32 s{sST}, s{sST}, s{sT1}
    s_add_u32 s{sST + 1}, s{sST}, {48 * 1024}
    v_mov_b32 v{vGC}, {f2u(GK / GA)}
    v_add_u32 v{vH4}, 4096, v{vL16}
    v_add_u32 v{vH4 + 1}, 8192, v{vL16}""")
    flag_prep(1)
    A(f"""v_mul_u32_u24 v{t}, {RS}, v{vL15}
    v_lshl_add_u32 v{t}, v{vQ}, 4, v{t}""")
    for blk in range(4):
        A(f"""s_add_u32 s{sT1}, s{sDW}, {blk + 1}
        s_and_b32 s{sT1}, s{sT1}, 3
        s_mul_i32 s{sT2}, s{sT1}, {48 * 1024}
        s_add_u32 s{sHB + blk}, s{sT0}, s{sT2}
        s_mul_i32 s{sT1}, s{sT1}, {4 * PS}
        s_add_u32 s{sT1}, s{sT1}, {blk * PS}
        v_add_u32 v{aPW + blk}, s{sT1}, v{t}""")
    A(f"""v_lshrrev_b32 v{aPR}, 2, v{vL}
    v_and_b32 v{vOA}, 7, v{aPR}
    v_mul_u32_u24 v{aPR}, {RS}, v{aPR}
    s_mul_i32 s{sT2}, s{sDW}, {4 * PS}
    v_add_u32 v{aPR}, s{sT2}, v{aPR}
    v_and_b32 v{t}, 3, v{vL}
    v_lshl_add_u32 v{aPR + 1}, v{t}, 4, v{aPR}
    v_lshl_add_u32 v{aPR}, v{t}, 5, v{aPR}
    s_and_b32 s{sT0}, s{sPID}, 0xf8
    s_lshl_b32 s{sT1}, s{sDW}, 1
    s_add_u32 s{sT0}, s{sT0}, s{sT1}
    s_and_b32 s{sT2}, s{sJ}, 7
    s_mul_i32 s{sT3}, s{sT2}, 160
    v_lshlrev_b32 v{vOA}, 8, v{vOA}
    v_add3_u32 v{vOA}, v{vH}, v{vOA}, s{sT0}
    v_mul_u32_u24 v{vOA}, 1280, v{vOA}
    v_add_u32 v{vOA}, s{sT3}, v{vOA}
    v_lshl_add_u32 v{vOC}, v{t}, 3, v{vOA}
    v_lshl_add_u32 v{vOA}, v{t}, 4, v{vOA}""")


def gelu_unit(u, r):
    b = G1_ACC + 16 * u + 4 * r
    regs = [b, b + 2, b + 8, b + 10]
    e = G1_B
    o = G1_B + 8 + 4 * r
    for k, x in enumerate(regs):
        pk('fma', e + 2 * k, x, x, vGC, mods='op_sel_hi:[1,1,0]')
    for k, x in enumerate(regs):
        pk('mul', e + 2 * k, e + 2 * k, x, mods=NEG1)
    for k in range(8):
        A(f'v_exp_f32 v{e + k}, v{e + k}')
    for k in range(4):
        pk('add', e + 2 * k, e + 2 * k, '1.0', mods='op_sel_hi:[1,0]')
    for k in range(8):
        A(f'v_rcp_f32 v{e + k}, v{e + k}')
    for k, x in enumerate(regs):
        pk('mul', e + 2 * k, e + 2 * k, x)
    for k in range(4):
        A(f'v_cvt_pk_bf16_f32 v{o + k}, v{e + 2 * k}, v{e + 2 * k + 1}')
    A(f'buffer_store_dwordx4 {vr(o, 4)}, v{vL16}, {srd(S_WS)}, s{sST + r} offen offset:{1024 * u} sc1')


G2_H = 24
NH = 20
FINR = 104
G2_ACC = 120
G2_BASE = 200
G2_GB = 220
vOA, vOC = 248, 249
RS = 336
PS = 16 * RS
OA = OPT['oa']
G2SEQ = [(b, k) for b in range(3) for k in KA] + [(3, k) for k in KA[:OA]] + [(b, k) for b in range(3) for k in KB] + [(3, k) for k in KA[OA:] + KB]
NGA = 24 + OA


def fin_issue():
    R = FINR
    A(f"""buffer_load_dwordx4 {vr(R, 4)}, v{vOA}, {srd(S_OUT)}, 0 offen sc1
    buffer_load_dwordx4 {vr(R + 4, 4)}, v{vOA}, {srd(S_OUT)}, 0 offen offset:64 sc1
    buffer_load_dwordx2 {vr(R + 8, 2)}, v{vOC}, {srd(S_OUT)}, 0 offen offset:128 sc1""")


def fin_finish():
    t = vG1A
    A(f"""v_and_b32 v{t}, 3, v{vL}
    v_lshlrev_b32 v{t + 1}, 4, v{t}
    v_add_u32 v{t + 1}, {L_M2 + 7680}, v{t + 1}
    v_lshl_add_u32 v{t}, v{t}, 4, v{t + 1}""")
    for dst, off in ((G2_BASE, 528), (G2_GB, 0)):
        for k in range(4):
            A(f'ds_read_b128 {vr(dst + 4 * k, 4)}, v{t} offset:{off + 128 * (k >> 1) + 16 * (k & 1)}')
        A(f'ds_read_b128 {vr(dst + 16, 4)}, v{t + 1} offset:{off + 256}')
    for k in range(10):
        unpack(114, 115, FINR + k)
        A(f'v_add_f32 v{G2_BASE + 2 * k}, v114, v{G2_BASE + 2 * k}')
        A(f'v_add_f32 v{G2_BASE + 2 * k + 1}, v115, v{G2_BASE + 2 * k + 1}')


def g2_load(n):
    blk, kl = G2SEQ[n]
    return f'buffer_load_dwordx4 {vr(G2_H + 4 * (n % NH), 4)}, v{[vL16, vH4, vH4 + 1][kl // 4]}, {srd(S_WS)}, s{sHB + blk} offen offset:{1024 * (kl % 4)} sc1'


def g2_main(nxt, bg):
    LA = OPT['la2']

    def rdp(dst, slot):
        out = [f'ds_read_b128 {vr(dst + 4 * k, 4)}, v{aPR} offset:{slot * PS + 128 * (k >> 1) + 16 * (k & 1)}' for k in range(4)]
        out.append(f'ds_read_b128 {vr(dst + 16, 4)}, v{aPR + 1} offset:{slot * PS + 256}')
        return out
    side = {}

    def put(pos, x):
        side.setdefault(pos, []).append(x)
    place(side, bg, 2, 5 * (NGA - 8))
    for k, x in enumerate(A.capture(fin_finish)):
        put(6 + k + k // 4, [x])
    put(OPT['pb'], lambda: flag_publish(2))
    put(OPT['qb'], lambda: A(flag_ld(2)))
    put(OPT['cb'], lambda: (flag_check(2), stamp('hb')))
    m0 = 5 * NGA
    for b in range(3):
        for nt in range(5):
            put(m0 + 20 * (b + 1) + 4 + 2 * nt, lambda b=b, nt=nt: A(f'ds_write_b128 v{aPW + b}, {vr(G2_ACC + 20 * b + 4 * nt, 4)} offset:{64 * nt}'))
    m1 = m0 + 60
    put(m1 + 15, lambda: A('s_waitcnt lgkmcnt(0)\ns_barrier'))
    pos = m1 + 15
    for sl in range(3):
        for x in rdp(G2_ACC + 20 * sl, sl):
            put(pos, lambda x=x: A(x))
            pos += 1 if sl else 0
        pos += 0 if sl else 1
    ops = [f'v_fmac_f32 v{G2_BASE + k}, v{G2_GB + k}, v{G2_ACC + 20 * sl + k}' for sl in range(3) for k in range(20)]
    for p_ in range(m1 + 21, 240):
        n_ = 1 if p_ < m1 + 26 else 2
        for x in ops[:n_]:
            put(p_, lambda x=x: A(x))
        ops = ops[n_:]
    seen = set()
    for n, (blk, kl) in enumerate(G2SEQ):
        acc = G2_ACC + 20 * blk
        for nt in range(5):
            A(f'v_mfma_f32_16x16x32_bf16 {vr(acc + 4 * nt, 4)}, {ar((kl * 5 + nt) * 4, 4)}, {vr(G2_H + 4 * (n % NH), 4)}, {vr(acc + 4 * nt, 4) if blk in seen else 0}')
            m = 5 * n + nt
            for x in side.get(m, []):
                if callable(x):
                    x()
                else:
                    A.items.extend(x)
            if nt in (0, 3) and nxt < 48 and nxt <= n + LA and nxt - NH < n and (nxt < NGA or m >= OPT['cb']):
                A(g2_load(nxt))
                nxt += 1
        seen.add(blk)
        assert nxt > n + 1 or nxt == 48, n
    stamp('g2')
    for x in ops:
        A(x)
    pa = G2_ACC + 60
    for nt in range(5):
        A(f'ds_write_b128 v{aPW + 3}, {vr(pa + 4 * nt, 4)} offset:{64 * nt}')
    R = G2_ACC
    for x in rdp(R, 3):
        A(x)
    for k in range(10):
        pk('fma', R + 2 * k, R + 2 * k, G2_GB + 2 * k, G2_BASE + 2 * k)
        A(f'v_cvt_pk_bf16_f32 v{R + 20 + k}, v{R + 2 * k}, v{R + 2 * k + 1}')
        if k == 3:
            A(f'buffer_store_dwordx4 {vr(R + 20, 4)}, v{vOA}, {srd(S_OUT)}, 0 offen')
        if k == 7:
            A(f'buffer_store_dwordx4 {vr(R + 24, 4)}, v{vOA}, {srd(S_OUT)}, 0 offen offset:64')
    A(f'buffer_store_dwordx2 {vr(R + 28, 2)}, v{vOC}, {srd(S_OUT)}, 0 offen offset:128')


def mlp(slot):
    A.spread(A.capture(seq(g1_bias, g1_pre)), slot(9), 0, 0.9)
    flag_publish(0)
    stamp('pub0')
    A(flag_ld(0))
    A('s_barrier')
    for n in range(PRE):
        for x in g1_rd(0, n):
            A(x)
    flag_check(0)
    stamp('y2')
    LA = OPT['la1']
    for i in range(LA):
        A(g1_load(i))
    side = {}
    for i in range(LA, 40):
        side.setdefault((i - LA) * OPT['r1'] // 10, []).append(lambda i=i: A(g1_load(i)))
    place(side, [[x] for x in A.capture(late_addr)], 0, 78)
    place(side, slot(10), OPT['g1s'], 80)
    g1_part(0, side)
    A('s_barrier')
    stamp('g1a')
    A.spread(A.capture(lambda: [gelu_unit(u, r) for u in range(2) for r in range(2)]), slot(11), 0, OPT['gae'] / 100)
    stamp('gelua')
    for n in range(PRE):
        for x in g1_rd(1, n):
            A(x)
    side = {}
    place(side, slot(12), 0, OPT['qa'] - 4)
    place(side, A.groups(fin_issue), OPT['fq'], min(OPT['fq'] + 6, 40))
    side.setdefault(OPT['pa'], []).append(lambda: flag_publish(1))
    side.setdefault(OPT['qa'], []).append(lambda: A(flag_ld(1)))
    g1_part(1, side)
    A('s_barrier')
    stamp('g1b')
    LA = OPT['la2']
    hl = [A.capture(lambda n=n: A(g2_load(n))) for n in range(LA)]
    bg = slot(13)
    for r in range(2):
        if OPT['ca'] == r:
            flag_check(1)
            stamp('ha')
        k = 0 if r < OPT['ca'] else (len(hl) if r else len(hl) // 2)
        A.spread(A.capture(lambda: gelu_unit(2, r)), (bg if r == 0 else []) + hl[:k], 0, 0.9)
        hl = hl[k:]
    if OPT['ca'] == 2:
        flag_check(1)
        stamp('ha')
        A.emit(hl)
    stamp('gelub')
    g2_main(LA, slot(14))


def seq(*fns):
    def f():
        for x in fns:
            x()
    return f


def program():
    if OPT['fixed']:
        A('s_memrealtime s[98:99]')
    if OPT['stamps']:
        A('v_mov_b32 v255, 0')
    stamp('start')
    setup()
    gemv_store_addr()
    code_prefetch(30 * 1024)
    Q = {}

    def slot(k):
        out = []
        for name, cnt in (('P', SP), ('F', SF), ('W1', SW1), ('W2', SW2)):
            if cnt[k]:
                if not (OPT['nobg'] >> ['F', 'W1', 'W2', 'P'].index(name)) & 1:
                    out += Q[name][:cnt[k]]
                Q[name] = Q[name][cnt[k]:]
        return out

    x1_issue()
    roles()
    w2_fmt_prep()
    if not OPT['w2late']:
        w2_fmt_issue()
    if OPT['touch'] == 1:
        touch()
    if OPT['early']:
        k1_const_a()
    silu()
    stamp('silu')
    gemv_compute(G_W, sMODST)
    stamp('gemv')
    if OPT['touch'] == 2:
        touch()
    rotations()
    xid_store()
    filt_prep()
    k1_addr()
    Q['F'] = A.groups(filt_dma)
    Q['W1'] = A.groups(w1_dma)
    Q['W2'] = A.groups(w2_load)
    if SW1[0]:
        w1_prep()
    if not OPT['w2late']:
        A(f's_waitcnt vmcnt({after_last(lambda x: srd(S_W2) in x.text)})')
        w2_fmt_finish()
    if OPT['tt']:
        A(mod1_loads())
    late = (A.groups(gemv2_issue) if OPT['two'] else []) + (A.groups(w2_fmt_issue) if OPT['w2late'] else [])
    LP = [late if OPT['lp'] == k else [] for k in range(3)]
    A.spread(A.capture(ln1), LP[0] + slot(0), 0, 0.6)
    stamp('ln1')
    if not OPT['tt']:
        A(mod1_loads())
    if not SW1[0]:
        w1_prep()
    A.spread(A.capture(seq(k1_const_b, x_keep) if OPT['early'] else seq(k1_const_a, k1_const_b, x_keep)), LP[1] + slot(1), 0.1, 0.9)
    k1_poll()
    k1_head()
    A.spread(A.capture(k1_main), LP[2] + slot(2), 0, OPT['k1e'] / 100)
    stamp('k1')
    A.spread(A.capture(seq(k2_const, k2_addr)), slot(3), 0, OPT['s3e'] / 100)
    if OPT['w2late']:
        A(f's_waitcnt vmcnt({after_last(lambda x: srd(S_W2) in x.text)})')
        w2_fmt_finish()
    A(f's_waitcnt vmcnt({after_last(lambda x: srd(S_WI) in x.text)})\ns_barrier')
    rest = A.capture(seq(*([lambda: gemv_compute(G_W2, sMODS2)] if OPT['two'] else []), filt_finish, w2_prep, side_prep))
    cutd = len(rest) * OPT['td'] // 100
    A.items.extend(rest[:cutd])
    stamp('Tiss')
    A(k2_loads())
    A.spread(rest[cutd:], slot(4), 0.2, 1.0)
    k2_head()
    A.spread(A.capture(k2_main), slot(5) + A.groups(seq(xid_load, epoch_store, b2_issue, lambda: A(side_loads()))), 0, OPT['k2e'] / 100)
    stamp('k2')
    A.spread(A.capture(seq(k3_const, k3_ldaddr)), slot(6), 0, OPT['s6e'] / 100)
    rest = A.capture(seq(side_finish, k3_addr, xid_check, lambda: flag_prep(0)))
    cutd = len(rest) * OPT['tpd'] // 100
    if cutd:
        cutd = max(cutd, max(k for k, x in enumerate(rest) if x.kind == 'label') + 1)
    A.items.extend(rest[:cutd])
    stamp('Tpiss')
    A(k3_loads())
    A.spread(rest[cutd:], slot(7), 0.3, 1.0)
    k3_poll()
    k3 = A.capture(k3_main)
    cut0 = min(i for i, x in enumerate(k3) if x.op == 's_barrier') + 1
    cut = max(i for i, x in enumerate(k3) if x.kind == 'mfma') + 1
    bg = slot(8)
    if OPT['w2late']:
        n0 = min(SW1[8], len(bg) // 4)
        A.spread(k3[:cut0], bg[:n0])
        A.spread(k3[cut0:], bg[n0:], 0, OPT['k3e'] / 100)
    else:
        A.spread(k3, bg, 0, OPT['k3e'] / 100)
    k3_tail()
    stamp('k3')
    mlp(slot)
    stamp('end')
    if OPT['stamps']:
        A(f'''s_lshl_b32 s{sT0}, s{sME}, 10
        s_lshl_b32 s{sT1}, s{sW}, 8
        s_add_u32 s{sT0}, s{sT0}, s{sT1}
        s_add_u32 s{sT0}, s{sT0}, {WS_STAMP}
        v_writelane_b32 v255, s{sCNT}, 63
        v_writelane_b32 v255, s{sFAST}, 31
        v_lshlrev_b32 v{TMP}, 2, v{vL}
        buffer_store_dword v255, v{TMP}, {srd(S_WS)}, s{sT0} offen
        s_add_u32 s{sT0}, s{sT0}, 0x40000
        buffer_store_dword v254, v{TMP}, {srd(S_WS)}, s{sT0} offen''')
    if OPT['fixed']:
        if OPT['clean']:
            A('s_waitcnt vmcnt(0)\ns_barrier\nbuffer_wbl2 sc1\ns_waitcnt vmcnt(0)')
        if OPT['probe'] >= 0:
            A(f's_mul_i32 s97, s97, 4\ns_add_u32 s97, s97, {OPT["fixed"]}')
        else:
            A(f's_mov_b32 s97, {OPT["fixed"]}')
        A('''L_fix:
        s_memrealtime s[100:101]
        s_waitcnt lgkmcnt(0)
        s_sub_u32 s100, s100, s98
        s_cmp_lt_u32 s100, s97
        s_cbranch_scc1 L_fix''')
    A('L_end:')
    A('s_endpgm')


program()
if OPT['n1'] or OPT['n2']:
    from asmlib import Ins
    it = A.items
    a0 = max(k for k, x in enumerate(it) if x.text.startswith('L_ok_mod1'))
    a1 = max(k for k, x in enumerate(it) if x.text.startswith('L_join_pub0'))
    out_ = []
    st_ = 0
    for k, x in enumerate(it):
        if a0 < k < a1:
            if x.kind == 'wait' and 'lgkmcnt(0)' in x.text:
                out_ += [Ins('v_mov_b32 v249, v248')] * OPT['n1']
            if x.op == 's_barrier':
                st_ = 1
            elif st_ == 1 and x.kind == 'ds':
                st_ = 2
            elif st_ == 2 and x.kind in ('valu', 'mfma'):
                out_ += [Ins('v_mov_b32 v249, v248')] * OPT['n2']
                st_ = 0
        out_.append(x)
    A.items = out_
hdr = open('cdna_kernels/%s.s.ref' % NAME).read().split('; Override launch')[0]
out = hdr
out += f'; @launch grid=(256,1,1) block=(256,1,1) lds={LDS_SIZE}\n'
out += f'''.amdgcn_target "amdgcn-amd-amdhsa--gfx950"
.text
.globl {NAME}_kernel
.p2align 8
.type {NAME}_kernel,@function
{NAME}_kernel:
'''
out += A.text()
out += RETRY.text()
out += f'''L_last:
    s_endpgm
.section .rodata,"a"
.p2align 6
.amdhsa_kernel {NAME}_kernel
  .amdhsa_next_free_vgpr 512
  .amdhsa_next_free_sgpr 102
  .amdhsa_accum_offset 256
  .amdhsa_group_segment_fixed_size 0
  .amdhsa_kernarg_size 104
  .amdhsa_user_sgpr_count 2
  .amdhsa_user_sgpr_kernarg_segment_ptr 1
  .amdhsa_system_sgpr_workgroup_id_x 1
.end_amdhsa_kernel
'''
open(sys.argv[1], 'w').write(out)
if OPT['stamps']:
    open(sys.argv[1] + '.stamps', 'w').write('\n'.join(STAMPS))
```

```python
import sys, os
sys.path.insert(0, os.path.dirname(os.path.abspath(__file__)))
from asmlib import Asm, vr, ar, sr, f2u

NAME = 'adaLN_cond__spectral_gfnet__mixer_channel_mlp__prompt'
OPT = dict(stamps=0, fixed=0, probe=-1, slow=0, fine=0, clean=0, nobg=0, mask=1, x1sc=1, bs=128, xfirst=0, um=0,
           p0='XRUSGTIfKFLMA', m2=2, late=0, fk=30, g1=56, g2=72, g3=40, smart=0, tc=0, k1s=0, tw=0, lf=0, osc=0, ysc=0, inl=0, bo=0, bf=0, now=0, fp=45, uf=1, ua=1, sk=0, cutx=0, hr=0, dslot=-1, dn=0, gp=0, gs=250, xl=0, wsp=2, pt=1, gpre=0, cpf=0, lean=1, nb=0, t3=0, p3=10, q3=17, c3=25, n3=8, xq=0,
           F='1,3,2,0', W1='0,0,4,4,0,8,0,4,0,0', WB='0,0,0,0,0,10,0', W2='8,4,0,32,4,0,3,6,0,3',
           td=50, tpd=50, la1=9, la2=8, k1e=80, k2e=82, k3e=85, s3e=55, s6e=40, g1s=50, gae=100, fq=28,
           pa=22, qa=32, oa=0, pb=24, qb=46, cb=78, r1=16, ca=1)
for a in sys.argv[2:]:
    k, v = a.split('=')
    assert k in OPT, k
    OPT[k] = v if isinstance(OPT[k], str) else int(v)
SF = [int(x) for x in OPT['F'].split(',')] + [0] * 11
SW1 = [int(x) for x in OPT['W1'].split(',')] + [0] * 5
SWB = [0] * 5 + [int(x) for x in OPT['WB'].split(',')] + [0] * 3
SW2 = [0] * 5 + [int(x) for x in OPT['W2'].split(',')]
assert sum(SF) == 6 and sum(SW1) == 20 and sum(SWB) == 10 and sum(SW2) == 60
assert OPT['bs'] % 8 == 0 or not OPT['sk'] & 6
assert OPT['sk'] == 0 and OPT['pa'] < OPT['qa'] < 40 - 8 * OPT['nb']
assert SW2[14] <= 20 and sum(SW1[:2]) <= 14
assert not OPT['late'] or sum(SW2[:8]) + sum(SWB[:8]) == 0
OPT.update(spread=1, two=0, ub=0, rot=0)

WS_EPOCH = 0x0
WS_XID = 0x400
WS_FLAG = 0x8000
WS_MOD = 0x10000
MP = 15360
BS = 128 * OPT['bs']
WS_T = 0x100000
WS_TP = WS_T + 256 * BS
WS_Y2 = WS_T
WS_H = 0xA00000
WS_W1P = 0x1200000
WS_W2P = 0x1440000
WS_STAMP = 0x1800000
WS_SIZE = 268435456
SKIP = 0x2000000 + 128
OOB = 0x7ff00000

BIG = 0
B_N, B_W1, B_W2, B_F = 15360, 20480, 22528, 24576
SCR = 122880
L_X1E = SCR
L_M1 = SCR + 24576
L_K2I = SCR + 24576
L_K2O = SCR
L_M2 = SCR + 12416
L_B1 = L_M2 + 9216
L_K3I = SCR + 24576
L_Y = SCR
L_Y2 = SCR + 24576
LDS_SIZE = 163840

S_X, S_WR, S_WI, S_W1, S_B1, S_W2, S_B2, S_C, S_WM, S_OUT, S_WS = [4 + 4 * i for i in range(11)]
sME, sW, sTAG, sXC, sG, sK1, sCL, sJ = range(48, 56)
sT0, sT1, sT2, sT3, sT4, sT5, sT6, sT7 = range(56, 64)
sM1, sM2 = 64, 66
sMODST, sW2ST, sFSH = 68, 69, 70
sPID = sME
sTB = 72
sLD = 76
sST = 80
sW2O = 84
sWB = 85
sDW = 70 if OPT['hr'] else 49
sW1O, sW1E = 90, 91
sBGO, sBG2 = 92, 93
sXID, sFAST, sCNT = 94, 95, 96
sSTAMP = 98

OSC = ['', ' sc1', ' nt', ' sc0 sc1'][OPT['osc']]
YSC = ['', ' sc1', ' nt'][OPT['ysc']]
A = Asm()
A.smart = bool(OPT['smart'])
RETRY = Asm()
nstamp = [0]
STAMPS = []


def srd(s):
    return sr(s, 4)


def stamp(name):
    if OPT['stamps'] == 3 and name not in ('start', 'end'):
        return
    if OPT['fine'] and name in ('silu', 'gemv', 'ln1', 'Tiss', 'Tpiss', 'pub0', 'y2', 'g1', 'gelu', 'pub1', 'h', 'g2'):
        return
    if not OPT['stamps']:
        if OPT['probe'] == nstamp[0]:
            A('s_memrealtime s[100:101]\ns_waitcnt lgkmcnt(0)\ns_sub_u32 s97, s100, s98')
        nstamp[0] += 1
        return
    i = nstamp[0]
    nstamp[0] += 1
    A(f'''s_memrealtime {sr(sSTAMP, 2)}
    s_memtime {sr(sSTAMP + 2, 2)}
    s_waitcnt lgkmcnt(0)
    v_writelane_b32 v255, s{sSTAMP}, {i}
    v_writelane_b32 v255, s{sSTAMP + 2}, {i + 32}''')
    STAMPS.append(name)


def fine(ph, name):
    if OPT['fine'] == ph:
        stamp(name)


def masked(loads, tagregs):
    if not OPT['mask']:
        return loads
    out = ''
    for ld, r in zip(loads.strip().split('\n'), tagregs):
        nlab[0] += 1
        out += f'v_cmp_ne_u32 vcc, s{sTAG}, v{r}\ns_cbranch_vccz L_m{nlab[0]}\ns_mov_b64 exec, vcc\n{ld}\ns_mov_b64 exec, -1\nL_m{nlab[0]}:\n'
    return out


nlab = [0]


def poll_check(label, loads, bad_cmp):
    if OPT['inl'] and label not in ('mod2', 'fl2'):
        A(f'L_pre_{label}:\ns_branch L_chk_{label}')
        A.blob(f'''L_retry_{label}:
        s_sub_u32 s{sCNT}, s{sCNT}, 1
        s_cmp_lt_i32 s{sCNT}, 0
        s_cbranch_scc1 L_ok_{label}
        {loads}
        s_waitcnt vmcnt(0)''')
        A(f'L_chk_{label}:')
        A(bad_cmp)
        A(f's_cbranch_vccnz L_retry_{label}')
        A(f'L_ok_{label}:')
        return
    A(f'L_chk_{label}:')
    A(bad_cmp)
    A(f's_cbranch_vccnz L_retry_{label}')
    A(f'L_ok_{label}:')
    RETRY('.segment')
    RETRY(f'''L_retry_{label}:
    s_sub_u32 s{sCNT}, s{sCNT}, 1
    s_cmp_lt_i32 s{sCNT}, 0
    s_cbranch_scc1 L_ok_{label}''')
    bo = OPT['bf'] if label.startswith('fl') else OPT['bo']
    if bo:
        RETRY(f's_sleep {bo}')
    RETRY(loads)
    RETRY(f'''s_waitcnt vmcnt(0)
    s_branch L_chk_{label}''')


def tagcheck(regs, tmp):
    if len(regs) == 1:
        return f'v_cmp_ne_u32 vcc, s{sTAG}, v{regs[0]}'
    s = f'v_min3_u32 v{tmp}, v{regs[0]}, v{regs[1]}, v{regs[2]}\n'
    s += f'v_max3_u32 v{tmp + 1}, v{regs[0]}, v{regs[1]}, v{regs[2]}\n'
    s += f'v_min3_u32 v{tmp}, v{tmp}, v{regs[3]}, s{sTAG}\n'
    s += f'v_max3_u32 v{tmp + 1}, v{tmp + 1}, v{regs[3]}, s{sTAG}\n'
    s += f'v_cmp_ne_u32 vcc, v{tmp}, v{tmp + 1}\n'
    return s


def sincos(ang, c, s):
    A(f'v_cos_f32 v{c}, v{ang}')
    A(f'v_sin_f32 v{s}, v{ang}')


def fmamk(d, a, k, b):
    if k == 0:
        A(f'v_mov_b32 v{d}, v{b}')
    elif k == 1:
        A(f'v_add_f32 v{d}, v{a}, v{b}')
    else:
        A(f'v_fmamk_f32 v{d}, v{a}, {f2u(k)}, v{b}')


def unpack(lo, hi, src):
    A(f'v_lshlrev_b32 v{lo}, 16, v{src}')
    A(f'v_and_b32 v{hi}, 0xffff0000, v{src}')


def mod5(d, src, tmp):
    A(f'v_mul_u32_u24 v{tmp}, 205, v{src}')
    A(f'v_lshrrev_b32 v{tmp}, 10, v{tmp}')
    A(f'v_mad_i32_i24 v{d}, v{tmp}, -5, v{src}')


def pk(op, d, *src, mods=''):
    A(f'v_pk_{op}_f32 {vr(d, 2)}, ' + ', '.join(vr(s, 2) if isinstance(s, int) else s for s in src) + (' ' + mods if mods else ''))


NEG1 = 'neg_lo:[0,1] neg_hi:[0,1]'

vL = 1
vL31, vH = 2, 3
vL15, vQ = 4, 5
vL16, vT16 = 6, 7
vLX = 254
vLW = vLX if OPT['sk'] & 1 else vL16
vLT = vLX if OPT['sk'] & 2 else vL16
vLY = vLX if OPT['sk'] & 4 else vL16
TMP = 8
vW1 = 240
vXID = 243
vBG = 244
vFL = 250


SIZES = {S_X: 2621440, S_WR: 1314816, S_WI: 1314816, S_W1: 1966080, S_B1: 3072, S_W2: 1966080, S_B2: 1280,
         S_C: 1280, S_WM: 4915200, S_OUT: 2621440, S_WS: WS_SIZE}
KSRC = {S_X: 64, S_WR: 66, S_WI: 68, S_W1: 72, S_B1: 74, S_W2: 76, S_B2: 78, S_C: 80, S_WM: 82, S_OUT: 84, S_WS: 88}


def srd_tail(*ss):
    for s in ss:
        A(f's_mov_b32 s{s + 2}, {SIZES[s]}')
        A(f's_mov_b32 s{s + 3}, 0x00020000')


def setup_lean():
    A(f"""s_cmp_ge_u32 s2, 256
    s_cbranch_scc1 L_end
    s_load_dwordx2 {sr(S_C, 2)}, s[0:1], 64
    s_load_dwordx2 {sr(S_WM, 2)}, s[0:1], 72
    s_load_dwordx2 {sr(S_WS, 2)}, s[0:1], 96
    s_load_dwordx2 {sr(S_OUT, 2)}, s[0:1], 80
    s_load_dwordx16 s[64:79], s[0:1], 0
    v_lshrrev_b32 v{TMP}, 6, v0
    v_and_b32 v{vL}, 63, v0
    v_readfirstlane_b32 s{sW}, v{TMP}""")
    srd_tail(S_C, S_WM)
    gemv_addr()
    A('s_waitcnt lgkmcnt(0)')
    gemv_issue()
    A(f"""s_load_dword s{sTAG}, {sr(S_WS, 2)}, {WS_EPOCH}
    s_mov_b64 {sr(S_X, 2)}, s[64:65]
    s_and_b32 s{sXC}, s2, 7
    s_lshr_b32 s{sG}, s2, 3
    s_lshl_b32 s{sME}, s{sXC}, 5
    s_or_b32 s{sME}, s{sME}, s{sG}
    v_and_b32 v{vL31}, 31, v0
    v_lshrrev_b32 v{vH}, 5, v{vL}
    v_lshlrev_b32 v{vL16}, 4, v{vL}""")
    srd_tail(S_X)
    if OPT['lean'] == 2:
        code_prefetch(0)
    x1_issue()
    if OPT['lean'] == 1:
        code_prefetch(0)
    A(f"""s_mov_b32 s{sCNT}, 200000
    v_and_b32 v{vL15}, 15, v0
    v_lshrrev_b32 v{vQ}, 4, v{vL}
    v_lshlrev_b32 v{vT16}, 4, v0""")
    for s in (S_W2, S_W1, S_WR, S_WI, S_B1, S_B2):
        A(f's_mov_b64 {sr(s, 2)}, {sr(KSRC[s], 2)}')
    srd_tail(S_W2, S_W1, S_WS, S_WR, S_WI)


def setup():
    A(f'''s_cmp_ge_u32 s2, 256
    s_cbranch_scc1 L_end
    s_load_dwordx8 s[80:87], s[0:1], 64
    s_load_dwordx2 s[88:89], s[0:1], 96
    s_load_dwordx16 s[64:79], s[0:1], 0
    s_lshr_b32 s{sG}, s2, 3''')
    if OPT['cpf']:
        code_prefetch(30 * 1024)
    A(f'''s_and_b32 s{sXC}, s2, 7
    s_lshl_b32 s{sME}, s{sXC}, 5
    s_or_b32 s{sME}, s{sME}, s{sG}
    s_mov_b32 s{sCNT}, 200000
    v_and_b32 v{vL}, 63, v0
    v_lshrrev_b32 v{TMP}, 6, v0
    v_and_b32 v{vL31}, 31, v0
    v_readfirstlane_b32 s{sW}, v{TMP}
    v_lshrrev_b32 v{vH}, 5, v{vL}
    v_and_b32 v{vL15}, 15, v0
    v_lshrrev_b32 v{vQ}, 4, v{vL}
    v_lshlrev_b32 v{vL16}, 4, v{vL}
    v_lshlrev_b32 v{vT16}, 4, v0''')
    sizes = {S_X: 2621440, S_WR: 1314816, S_WI: 1314816, S_W1: 1966080, S_B1: 3072, S_W2: 1966080, S_B2: 1280,
             S_C: 1280, S_WM: 4915200, S_OUT: 2621440, S_WS: WS_SIZE}
    for s in sizes:
        A(f's_mov_b32 s{s + 2}, {sizes[s]}')
        A(f's_mov_b32 s{s + 3}, 0x00020000')
    gemv_addr()
    A('s_waitcnt lgkmcnt(0)')
    src = {S_X: 64, S_WR: 66, S_WI: 68, S_W1: 72, S_B1: 74, S_W2: 76, S_B2: 78, S_C: 80, S_WM: 82, S_OUT: 84, S_WS: 88}
    for s in (S_WM, S_C):
        A(f's_mov_b64 {sr(s, 2)}, {sr(src[s], 2)}')
    if OPT['xfirst']:
        A(f's_mov_b64 {sr(S_X, 2)}, {sr(src[S_X], 2)}')
        x1_issue()
    gemv_issue()
    A(f's_mov_b64 {sr(S_WS, 2)}, s[88:89]')
    A(f's_load_dword s{sTAG}, {sr(S_WS, 2)}, {WS_EPOCH}')
    for s in (S_X, S_W2, S_WR, S_WI, S_W1, S_B1, S_B2, S_OUT):
        A(f's_mov_b64 {sr(s, 2)}, {sr(src[s], 2)}')


def roles():
    A(f'''s_sub_u32 s{sT0}, 8, s{sXC}
    s_and_b32 s{sT0}, s{sT0}, 7
    s_cmp_lt_u32 s{sG}, 16
    s_cselect_b32 s{sK1}, s{sXC}, s{sT0}
    s_mul_i32 s{sWB}, s{sW}, 30720''')
    A(f's_lshr_b32 s{sCL}, s{sME}, 4\ns_and_b32 s{sJ}, s{sME}, 15')
    cols(sCA, sCB, sJ)
    if OPT['sk']:
        A(f'''v_add_u32 v{vLX}, {SKIP}, v{vL16}
        s_mov_b64 vcc, 0xff000000
        v_cndmask_b32 v{vLX}, v{vL16}, v{vLX}, vcc''')


sCA, sCB = 88, 89
POS = sum(p << (2 * i) for i, p in enumerate([1, 0, 1, 2, 1, 1, 1, 1]))


def cols(da, db, j):
    A(f'''s_and_b32 s{sT5}, s{j}, 14
    s_lshr_b32 s{sT6}, {POS}, s{sT5}
    s_and_b32 s{sT6}, s{sT6}, 3
    s_mul_i32 s{sT5}, s{sT5}, 3
    s_and_b32 s{sT7}, s{j}, 1
    s_lshl_b32 s{db}, s{sT6}, 1
    s_add_u32 s{db}, s{db}, s{sT5}
    s_add_u32 s{db}, s{db}, s{sT7}
    s_lshl_b32 s{sT7}, s{sT7}, 1
    s_cmp_eq_u32 s{sT6}, s{sT7}
    s_cselect_b32 s{sT7}, 1, s{sT7}
    s_lshl_b32 s{sT7}, s{sT7}, 1
    s_add_u32 s{da}, s{sT5}, s{sT7}''')


def touch_w():
    if OPT['now'] & 2:
        return
    d = 247
    if OPT['tc'] == 0:
        A(f"""s_lshl_b32 s{sBGO}, s{sCL}, 2
        s_add_u32 s{sBGO}, s{sBGO}, s{sW}
        s_mul_i32 s{sBGO}, s{sBGO}, {10 * 48}
        s_add_u32 s{sBGO}, s{sBGO}, s{sCA}
        s_lshl_b32 s{sBGO}, s{sBGO}, 6
        v_min_u32 v{d}, 9, v{vL}
        v_mul_u32_u24 v{d}, 3072, v{d}
        buffer_load_dword v{vXID}, v{d}, {srd(S_W1)}, s{sBGO} offen""")
    else:
        A(f"""s_lshl_b32 s{sBGO}, s{sME}, 2
        s_add_u32 s{sBGO}, s{sBGO}, s{sW}
        s_mul_i32 s{sBGO}, s{sBGO}, 1920
        v_min_u32 v{d}, 14, v{vL}
        v_lshlrev_b32 v{d}, 7, v{d}
        buffer_load_dword v{vXID}, v{d}, {srd(S_W1)}, s{sBGO} offen""")
        if OPT['tc'] == 2:
            A(f'buffer_load_dword v{d}, v{d}, {srd(S_W2)}, s{sBGO} offen')


def touch():
    t = TMP
    if OPT['tw'] == 0:
        touch_w()
    A(f'''s_lshl_b32 s{sT0}, s{sG}, 2
    s_add_u32 s{sT0}, s{sT0}, s{sW}
    s_lshl_b32 s{sT0}, s{sT0}, 4
    s_add_u32 s{sT0}, s{sT0}, s{sXC}
    s_mul_i32 s{sT0}, s{sT0}, 642
    s_and_b32 s{sT0}, s{sT0}, -4
    v_min_u32 v{t}, 5, v{vL31}
    v_lshlrev_b32 v{t}, 7, v{t}
    v_mul_u32_u24 v{t + 1}, {8 * 642}, v{vH}
    v_add_u32 v{t}, v{t}, v{t + 1}
    buffer_load_dword v248, v{t}, {srd(S_WR)}, s{sT0} offen
    buffer_load_dword v249, v{t}, {srd(S_WI)}, s{sT0} offen''')


def pid_to_me(d, p, t1):
    b = {1: 0, 2: 1, 4: 2, 8: 3}[OPT['spread']]
    if b == 0:
        A(f's_mov_b32 s{d}, s{p}')
        return
    A(f'''s_lshr_b32 s{d}, s{p}, {5 + b}
    s_lshl_b32 s{d}, s{d}, {5 + b}
    s_bfe_u32 s{t1}, s{p}, {(b << 16) | (4 - b)}
    s_lshl_b32 s{t1}, s{t1}, 5
    s_or_b32 s{d}, s{d}, s{t1}
    s_bfe_u32 s{t1}, s{p}, {((1 + b) << 16) | 4}
    s_lshl_b32 s{t1}, s{t1}, {4 - b}
    s_or_b32 s{d}, s{d}, s{t1}
    s_and_b32 s{t1}, s{p}, {(1 << (4 - b)) - 1}
    s_or_b32 s{d}, s{d}, s{t1}''')


G_C = 188
vGS, vGM, vGA = 194, 195, 236
G_W2 = 216
sGW, sMODS2 = 89, 97
G_W = 32
G_ACC = 52


def gemv_addr():
    A(f'''s_cmp_lt_u32 s2, 240
    s_cselect_b32 s{sT0}, s2, 0
    s_and_b32 s{sT1}, s{sT0}, 3''')
    if OPT['um']:
        A(f'''s_bfe_u32 s{sT2}, s{sT0}, 0x10002
        s_mul_i32 s{sT2}, s{sT2}, 30
        s_lshr_b32 s{sT0}, s{sT0}, 3
        s_add_u32 s{sT0}, s{sT0}, s{sT2}''')
    else:
        A(f's_lshr_b32 s{sT0}, s{sT0}, 2')
    A(f'''    s_lshl_b32 s{sT0}, s{sT0}, 2
    s_add_u32 s{sT0}, s{sT0}, s{sW}
    s_mul_i32 s{sT2}, s{sT1}, {160 * 7680}
    s_lshl_b32 s{sT3}, s{sT0}, 5
    s_add_u32 s{sT2}, s{sT2}, s{sT3}
    s_mul_i32 s{sT4}, s{sT1}, 320
    s_mul_i32 s{sT1}, s{sT1}, {MP}
    s_lshl_b32 s{sT3}, s{sT0}, 6
    s_add_u32 s{sT5}, s{sT1}, s{sT3}
    v_lshrrev_b32 v{TMP}, 1, v{vL}
    v_lshlrev_b32 v{TMP + 1}, 1, v{TMP}
    v_lshlrev_b32 v{TMP + 3}, 3, v{TMP}
    v_mul_u32_u24 v{TMP}, 7680, v{TMP}
    v_and_b32 v{TMP + 2}, 1, v0
    v_lshlrev_b32 v{TMP + 2}, 4, v{TMP + 2}
    v_lshl_add_u32 v{vGA}, v{TMP}, 2, v{TMP + 2}
    v_add_u32 v{vGA + 2}, v{TMP}, v{TMP + 2}''')
    if OPT['two'] or OPT['ub']:
        A(f's_cmp_lt_u32 s2, 80\ns_cselect_b32 s{sT2}, s{sT2}, {OOB // 2}')


def gemv2_issue():
    for i in range(5):
        if i:
            A(f's_add_u32 s{sGW}, s{sGW}, {7680 if i < 4 else 125 * 7680}')
        A(f'buffer_load_dwordx4 {vr(G_W2 + 4 * i, 4)}, v{vGA + 2 * (i // 4)}, {srd(S_WM)}, s{sGW} offen')


def gemv_issue():
    A(f'buffer_load_dwordx2 {vr(G_C + 2, 2)}, v{TMP + 3}, {srd(S_C)}, s{sT4} offen')
    A(f'buffer_load_ushort v{G_C + 4}, v{TMP + 1}, {srd(S_C)}, s{sT4} offen offset:256')
    for i in range(5):
        A(f'buffer_load_dwordx4 {vr(G_W + 4 * i, 4)}, v{vGA + 2 * (i // 4)}, {srd(S_WM)}, s{sT2} offen')
        if i < 4:
            A(f's_add_u32 s{sT2}, s{sT2}, {7680 if i < 3 else 125 * 7680}')


def gemv_store_addr():
    A(f'''s_add_u32 s{sT5}, s{sT5}, {WS_MOD}
    s_cmp_lt_u32 s2, 240
    s_cselect_b32 s{sMODST}, s{sT5}, {OOB}''')
    if OPT['two']:
        A(f'''s_sub_u32 s{sT0}, s2, 80
        s_cmp_lt_u32 s{sT0}, 160
        s_cselect_b32 s{sMODS2}, s{sT5}, {OOB}
        s_cselect_b32 s{sMODST}, {OOB}, s{sMODST}
        s_cselect_b32 s{sW2O}, s{sT6}, {OOB // 2}''')


def silu():
    t = TMP
    unpack(G_C, G_C + 1, G_C + 2)
    unpack(G_C + 2, G_C + 3, G_C + 3)
    A(f'v_lshlrev_b32 v{G_C + 4}, 16, v{G_C + 4}')
    for i in range(5):
        A(f'v_mul_f32 v{t + i}, {f2u(-1.4426950408889634)}, v{G_C + i}')
    for i in range(5):
        A(f'v_exp_f32 v{t + i}, v{t + i}')
    for i in range(5):
        A(f'v_add_f32 v{t + i}, 1.0, v{t + i}')
    for i in range(5):
        A(f'v_rcp_f32 v{t + i}, v{t + i}')
    for i in range(5):
        A(f'v_mul_f32 v{t + i}, v{G_C + i}, v{t + i}')
    for i in range(5):
        A(f'v_cvt_pk_bf16_f32 v{t + i}, v{t + i}, v{t + i}')
    for i in range(5):
        A(f'v_lshlrev_b32 v{G_C + i}, 16, v{t + i}')
    A(f'''s_mul_i32 s{sTAG}, s{sTAG}, 0x9E3779B1
    s_add_u32 s{sTAG}, s{sTAG}, 0x7F4A7C15''')
    for k in range(4):
        A(f's_bfe_u32 s{sTB + k}, s{sTAG}, {(8 << 16) | (8 * k)}')
    A(f'''v_and_b32 v{t + 5}, 1, v{vL}
    v_lshlrev_b32 v{t + 5}, 5, v{t + 5}
    v_lshl_add_u32 v{t + 5}, v{vH}, 4, v{t + 5}
    v_mov_b32 v{t + 6}, {OOB}
    v_cmp_gt_u32 vcc, 2, v{vL31}
    v_cndmask_b32 v{vGS}, v{t + 6}, v{t + 5}, vcc
    v_mov_b32 v{vGM}, 0xffffff00''')


def gemv_compute(G_W, sdst):
    t = TMP
    for i in range(5):
        sp = (G_C + i) & ~1
        sel = (G_C + i) & 1
        for k in range(4):
            u = t + 2 * (k & 1)
            unpack(u, u + 1, G_W + 4 * i + k)
            if i == 0:
                pk('mul', G_ACC + 2 * k, u, sp, mods=f'op_sel:[0,{sel}] op_sel_hi:[1,{sel}]')
            else:
                pk('fma', G_ACC + 2 * k, u, sp, G_ACC + 2 * k, mods=f'op_sel:[0,{sel},0] op_sel_hi:[1,{sel},1]')
    a = G_ACC
    for k in range(4):
        A(f'v_permlane32_swap_b32 v{a + k}, v{a + k + 4}')
    pk('add', a, a, a + 4)
    pk('add', a + 2, a + 2, a + 6)
    A(f'''v_permlane16_swap_b32 v{a}, v{a + 1}
    v_permlane16_swap_b32 v{a + 2}, v{a + 3}
    v_add_f32 v{a}, v{a}, v{a + 1}
    v_add_f32 v{a + 2}, v{a + 2}, v{a + 3}''')
    for r in (8, 4):
        A(f'v_add_f32_dpp v{a}, v{a}, v{a} row_ror:{r} row_mask:0xf bank_mask:0xf')
        A(f'v_add_f32_dpp v{a + 2}, v{a + 2}, v{a + 2} row_ror:{r} row_mask:0xf bank_mask:0xf')
    for d in (1, 3, 0, 2):
        s_ = a + (d & 2)
        A(f'v_add_f32_dpp v{a + d}, v{s_}, v{s_} row_ror:2 row_mask:0xf bank_mask:0xf')
    A(f'''v_permlane16_swap_b32 v{a}, v{a + 1}
    v_permlane16_swap_b32 v{a + 2}, v{a + 3}''')
    for k in range(4):
        A(f'v_and_or_b32 v{a + k}, v{a + k}, v{vGM}, s{sTB + k}')
    A(f'buffer_store_dwordx4 {vr(a, 4)}, v{vGS}, {srd(S_WS)}, s{sdst} offen sc1')


def code_prefetch(nbytes):
    t = TMP + 4
    A(f"""s_getpc_b64 {sr(sT2, 2)}
    L_pc:
    v_and_b32 v{t}, 7, v0
    v_lshl_add_u32 v{t}, v{t}, 5, s{sG}
    v_lshlrev_b32 v{t}, 7, v{t}
    v_min_u32 v{t}, L_last-L_pc, v{t}
    v_mov_b32 v{t + 1}, s{sT3}
    v_add_co_u32 v{t}, vcc, s{sT2}, v{t}
    v_addc_co_u32 v{t + 1}, vcc, 0, v{t + 1}, vcc
    global_load_dword v{vFL}, {vr(t, 2)}, off""")


def xid_store():
    t = TMP
    A(f'''s_getreg_b32 s{sXID}, hwreg(HW_REG_XCC_ID, 0, 4)
    s_lshl_b32 s{sT0}, s{sPID}, 2
    s_add_u32 s{sT0}, s{sT0}, {WS_XID}
    v_mov_b32 v{t}, s{sXID}
    v_cmp_eq_u32 vcc, 0, v0
    v_mov_b32 v{t + 1}, {OOB}
    v_cndmask_b32 v{t + 1}, v{t + 1}, v0, vcc
    buffer_store_dword v{t}, v{t + 1}, {srd(S_WS)}, s{sT0} offen sc1''')


def xid_load():
    A(f'''s_lshl_b32 s{sBGO}, s{sCL}, 6
    s_add_u32 s{sBGO}, s{sBGO}, {WS_XID}
    v_lshlrev_b32 v{vXID}, 2, v{vL15}
    buffer_load_dword v{vXID}, v{vXID}, {srd(S_WS)}, s{sBGO} offen sc1
    s_lshl_b32 s{sBGO}, s{sCL}, 10
    s_add_u32 s{sBGO}, s{sBGO}, {WS_FLAG}
    buffer_load_dword v{vFL}, v{vL16}, {srd(S_WS)}, s{sBGO} offen sc1''')


def xid_check():
    A(f'''v_cmp_ne_u32 vcc, s{sXID}, v{vXID}
    s_cmp_eq_u64 vcc, 0
    s_cselect_b32 s{sFAST}, {0 if OPT['slow'] else 1}, 0''')


def flag_prep(which):
    if which == 0:
        A(f"""s_lshl_b32 s{sBGO}, s{sCL}, 10
        s_add_u32 s{sBGO}, s{sBGO}, {WS_FLAG}
        s_lshl_b32 s{sBG2}, s{sJ}, 2
        s_add_u32 s{sBG2}, s{sBG2}, s{sW}
        s_lshl_b32 s{sBG2}, s{sBG2}, 2
        v_mov_b32 v{vFL + 2}, s{sBG2}
        v_mov_b32 v{vFL + 3}, s{sTAG}
        s_lshl_b32 s{sBG2}, s{sW}, 6
        v_lshl_add_u32 v{vFL}, v{vL15}, 2, s{sBG2}""")
    else:
        A(f"""s_lshl_b32 s{sBG2}, s{sW}, 6
        s_and_b32 s{sT7}, s{sJ}, 8
        s_add_u32 s{sBG2}, s{sBG2}, s{sT7}
        v_and_b32 v{vFL}, 13, v{vL}
        v_lshl_add_u32 v{vFL}, v{vFL}, 2, s{sBG2}""")
        if OPT['xl']:
            A(f"""s_lshl_b32 s{sBG2}, s{sDW}, 1
            s_add_u32 s{sBG2}, s{sBG2}, s{sT7}
            s_lshl_b32 s{sBG2}, s{sBG2}, 4
            v_writelane_b32 v{vFL}, s{sBG2}, 62
            s_add_u32 s{sBG2}, s{sBG2}, 16
            v_writelane_b32 v{vFL}, s{sBG2}, 63""")


def nvm(items):
    return sum(1 for i in items if i.kind == 'vmem')


def after_last(pred):
    i = max([k for k, x in enumerate(A.items) if x.kind == 'vmem' and pred(x)] or [len(A.items) - 300])
    return min(63, nvm(A.items[i + 1:]))


def flag_publish(which):
    if which == 3:
        younger = after_last(lambda x: 'store_dwordx4' in x.op and 'offset:0 sc1' in x.text)
    elif which:
        younger = after_last(lambda x: 'store_dwordx4' in x.op)
    else:
        younger = after_last(lambda x: 'store' in x.op or ' lds' in x.text)
    st = f'buffer_store_dword v{vFL + 3}, v{vFL + 2}, {srd(S_WS)}, s{sBGO} offen offset:{256 * which}'
    A(f"""s_cmp_eq_u32 s{sFAST}, 0
    s_waitcnt vmcnt({min(younger, 63)})
    s_cbranch_scc1 L_slow_pub{which}
    {st}
    L_join_pub{which}:""")
    RETRY('.segment')
    RETRY(f'L_slow_pub{which}:')
    if which == 0:
        RETRY('buffer_wbl2 sc1\ns_waitcnt vmcnt(0)')
    RETRY(f'{st} sc1\ns_branch L_join_pub{which}')


def flag_ld(which):
    return f'buffer_load_dword v{vFL + 1}, v{vFL}, {srd(S_WS)}, s{sBGO} offen offset:{256 * which} sc1'


def flag_check(which):
    poll_check(f'fl{which}', flag_ld(which), tagcheck([vFL + 1], 0))
    if which == 0:
        A(f"""s_cmp_eq_u32 s{sFAST}, 0
        s_cbranch_scc1 L_slow_acq{which}
        L_join_acq{which}:""")
        RETRY('.segment')
        RETRY(f"""L_slow_acq{which}:
        buffer_inv sc1
        s_waitcnt vmcnt(0)
        s_branch L_join_acq{which}""")


sW1ST, sW1S = 86, 87
vU1, vU2 = 251, 252


def fmt_prep():
    t = TMP
    A(f"""s_mul_i32 s{sT0}, s{sME}, 205
    s_lshr_b32 s{sT0}, s{sT0}, 10
    s_mul_i32 s{sT1}, s{sT0}, 5
    s_sub_u32 s{sT1}, s{sME}, s{sT1}
    s_lshl_b32 s{sT1}, s{sT1}, 2
    s_add_u32 s{sT1}, s{sT1}, s{sW}
    s_mul_i32 s{sT2}, s{sT0}, 40960
    s_lshl_b32 s{sT3}, s{sT1}, 11
    s_add_u32 s{sW2ST}, s{sT2}, s{sT3}
    s_add_u32 s{sW2ST}, s{sW2ST}, {WS_W2P}
    s_mul_i32 s{sT2}, s{sT0}, 171
    s_lshr_b32 s{sT2}, s{sT2}, 9
    s_mul_i32 s{sT3}, s{sT2}, 3
    s_sub_u32 s{sT0}, s{sT0}, s{sT3}""")
    cols(sT3, sT4, sT2)
    if OPT['ua']:
        UA = f'''s_sub_u32 s{sT0}, 30, s{sG}
        s_lshl_b32 s{sT0}, s{sT0}, 2
        s_add_u32 s{sT0}, s{sT0}, s{sXC}
        s_bitcmp1_b32 s{sG}, 0
        s_cselect_b32 s{sT0}, 255, s{sT0}'''
    else:
        UA = f's_sub_u32 s{sT0}, 255, s2'
    A(f"""s_add_u32 s{sT3}, s{sT3}, s{sT0}
    s_cmp_lt_u32 s{sT0}, 2
    s_cselect_b32 s{sT3}, s{sT3}, s{sT4}
    s_mul_i32 s{sT3}, s{sT3}, 40960
    s_lshl_b32 s{sT1}, s{sT1}, 6
    s_add_u32 s{sW2O}, s{sT3}, s{sT1}
    s_cmp_lt_u32 s{sME}, 240
    s_cselect_b32 s{sW2ST}, s{sW2ST}, {OOB}
    s_cselect_b32 s{sW2O}, s{sW2O}, {OOB // 2}
    {UA}
    s_and_b32 s{sT1}, s{sT0}, 3
    s_lshl_b32 s{sT1}, s{sT1}, 2
    s_add_u32 s{sT1}, s{sT1}, s{sW}
    s_lshr_b32 s{sT0}, s{sT0}, 2""")
    cols(sT3, sT4, sT1)
    A(f"""s_mul_i32 s{sT2}, s{sT0}, {32 * 3072}
    s_lshl_b32 s{sT4}, s{sT4}, 6
    s_add_u32 s{sW1S}, s{sT2}, s{sT4}
    s_mul_i32 s{sT1}, s{sT1}, 20
    s_add_u32 s{sT1}, s{sT1}, s{sT0}
    s_lshl_b32 s{sT1}, s{sT1}, 11
    s_add_u32 s{sW1ST}, s{sT1}, {WS_W1P}
    s_cmp_lt_u32 s{sT0}, 20
    s_cselect_b32 s{sW1ST}, s{sW1ST}, {OOB}
    {f's_mov_b32 s{sW1ST}, {OOB}' if OPT['now'] & 4 else ''}
    {f's_mov_b32 s{sW2ST}, {OOB}' if OPT['now'] & 8 else ''}
    {f's_mov_b32 s{sW1S}, {OOB // 2}' if OPT['now'] & 16 else ''}
    {f's_mov_b32 s{sW2O}, {OOB // 2}' if OPT['now'] & 32 else ''}
    v_lshrrev_b32 v{t}, 2, v{vL}
    v_and_b32 v{t + 1}, 3, v{vL}
    v_lshlrev_b32 v{t + 1}, 4, v{t + 1}
    v_mul_u32_u24 v{t + 2}, 1280, v{t}
    v_add_u32 v{vU2}, v{t + 1}, v{t + 2}
    v_mul_u32_u24 v{t + 2}, 3072, v{t}
    v_add_u32 v{vU1}, v{t + 1}, v{t + 2}""")


def fmt_issue():
    if OPT['now'] & 1:
        return
    for sd, so, v, pitch, lds in ((S_W1, sW1S, vU1, 3072, B_W1), (S_W2, sW2O, vU2, 1280, B_W2)):
        A(f"""s_add_u32 m0, s{sWB}, {BIG + lds}
        buffer_load_dwordx4 v{v}, {srd(sd)}, s{so} offen lds
        s_add_u32 m0, s{sWB}, {BIG + lds + 1024}
        s_add_u32 s{so}, s{so}, {16 * pitch}
        buffer_load_dwordx4 v{v}, {srd(sd)}, s{so} offen lds""")


def fmt_finish():
    if OPT['now'] & 1:
        return
    A(f's_waitcnt vmcnt({min(63, after_last(lambda x: srd(S_W2) in x.text and x.lds))})')
    fmt_body()


def fmt_addr():
    t = 96
    A(f"""v_lshrrev_b32 v{t}, 2, v{vL}
    v_lshlrev_b32 v{t}, 6, v{t}
    v_and_b32 v99, 3, v{vL}
    v_lshl_add_u32 v{t}, v99, 3, v{t}
    v_add_u32 v242, s{sWB}, v{t}
    v_lshl_add_u32 v99, v{vQ}, 8, v242""")


def fmt_body():
    for i in range(2):
        A(f'ds_read_b64_tr_b16 {ar(4 * i, 2)}, v99 offset:{BIG + B_W1 + 32 * i}')
        A(f'ds_read_b64_tr_b16 {ar(2 + 4 * i, 2)}, v99 offset:{BIG + B_W1 + 32 * i + 256}')
    for i in range(2):
        A(f'ds_read_b64_tr_b16 {ar(8 + 4 * i, 2)}, v242 offset:{BIG + B_W2 + 32 * i}')
        A(f'ds_read_b64_tr_b16 {ar(10 + 4 * i, 2)}, v242 offset:{BIG + B_W2 + 32 * i + 1024}')
    for i in range(4):
        A(f'buffer_store_dwordx4 {ar(4 * i, 4)}, v{vLW}, {srd(S_WS)}, s{sW1ST if i < 2 else sW2ST} offen offset:{1024 * (i & 1)} sc1')


def w_prep():
    A(f"""s_mul_i32 s{sW2O}, s{sW}, {12 * 40960}
    s_and_b32 s{sT0}, s{sJ}, 7
    s_mul_i32 s{sT0}, s{sT0}, 5120
    s_add_u32 s{sW2O}, s{sW2O}, s{sT0}
    s_add_u32 s{sW2ST}, s{sW2O}, {WS_W2P}
    s_mul_i32 s{sW1ST}, s{sJ}, 40960
    s_mul_i32 s{sT0}, s{sW}, 10240
    s_add_u32 s{sW1ST}, s{sW1ST}, s{sT0}
    s_add_u32 s{sW1ST}, s{sW1ST}, {WS_W1P}""")


def w1_prep():
    t = TMP
    A(f"""v_lshrrev_b32 v{t}, 3, v{vL}
    v_and_b32 v{t + 1}, 2, v{t}
    v_and_b32 v{t + 2}, 7, v{vL}
    v_xor_b32 v{t + 1}, v{t + 1}, v{t + 2}
    v_mul_u32_u24 v{t}, 3072, v{t}
    v_lshl_add_u32 v{vW1}, v{t + 1}, 4, v{t}
    v_xor_b32 v{vW1 + 1}, 64, v{vW1}
    v_add_u32 v{vW1 + 1}, {8 * 3072}, v{vW1 + 1}
    s_mul_i32 s{sW1O}, s{sW}, {160 * 3072}
    s_lshl_b32 s{sT1}, s{sCA}, 6
    s_add_u32 s{sW1O}, s{sW1O}, s{sT1}""")


def w1_dma():
    for n in range(20):
        A(f's_add_u32 m0, s{sWB}, {BIG + 1024 * n}')
        if n and n % 2 == 0:
            A(f's_add_u32 s{sW1O}, s{sW1O}, {16 * 3072}')
        A(f'buffer_load_dwordx4 v{vW1 + (n & 1)}, {srd(S_W1)}, s{sW1O} offen lds')


def wb_dma():
    for n in range(10):
        A(f's_add_u32 m0, s{sWB}, {BIG + 20480 + 1024 * n}')
        A(f's_add_u32 s{sW1E}, s{sW1ST}, {1024 * n}')
        A(f'buffer_load_dwordx4 v{vLW}, {srd(S_WS)}, s{sW1E} offen sc1 lds')


KA = [k for u in range(2) for k in range(12) if k % 3 == u] if OPT['t3'] else [k for k in range(12) if k % 3 < 2]
KB = [k for k in range(12) if k % 3 == 2]


def w2_load():
    for kl in KA + KB:
        for nt in range(5):
            if nt in (0, 4):
                A(f's_add_u32 s{sW2O}, s{sW2ST}, {40960 * kl + 1024 * nt}')
            A(f'buffer_load_dwordx4 {ar((kl * 5 + nt) * 4, 4)}, v{vLW}, {srd(S_WS)}, s{sW2O} offen offset:{1024 * (nt & 3)} sc1')


F_RAW = 200
F_W = 216
vFA = 196


def filt_prep():
    t = TMP
    A(f'''s_mul_i32 s{sT0}, s{sG}, 20
    s_sub_u32 s{sT1}, 623, s{sT0}
    s_mul_i32 s{sT3}, s{sW}, 5
    s_sub_u32 s{sT4}, 15, s{sT3}
    s_cmp_lt_u32 s{sG}, 16
    s_cselect_b32 s{sT0}, s{sT0}, s{sT1}
    s_cselect_b32 s{sT2}, 1, -1
    s_cselect_b32 s{sT3}, s{sT3}, s{sT4}
    s_add_u32 s{sT4}, s{sT0}, s{sK1}
    s_and_b32 s{sT4}, s{sT4}, 1
    s_add_u32 s{sFSH}, s{sT3}, s{sT4}
    s_sub_u32 s{sT0}, s{sT0}, s{sT4}
    s_lshl_b32 s{sT5}, s{sW}, 9
    s_add_u32 s{sT5}, s{sT5}, s{sK1}
    s_movk_i32 s{sT6}, 321''')
    for i in range(3):
        A(f'''v_add_u32 v{t}, {64 * i}, v{vL}
        v_mul_u32_u24 v{t + 1}, 171, v{t}
        v_lshrrev_b32 v{t + 1}, 9, v{t + 1}
        v_mad_i32_i24 v{t + 2}, v{t + 1}, -3, v{t}
        v_lshl_add_u32 v{t + 1}, v{t + 1}, 3, s{sT5}
        v_mul_i32_i24 v{t + 1}, s{sT2}, v{t + 1}
        v_and_b32 v{t + 1}, 2047, v{t + 1}
        v_lshl_add_u32 v{t + 2}, v{t + 2}, 3, s{sT0}
        v_mad_u32_u24 v{t + 1}, v{t + 1}, s{sT6}, v{t + 2}
        v_lshlrev_b32 v{vFA + i}, 1, v{t + 1}''')


def filt_dma():
    for p, s_ in enumerate((S_WR, S_WI)):
        for i in range(3):
            A(f's_add_u32 m0, s{sWB}, {BIG + B_F + 3072 * p + 1024 * i}')
            A(f'buffer_load_dwordx4 v{vFA + i}, {srd(s_)}, 0 offen lds')


def filt_finish():
    t = TMP + 4
    sc = 1.0 / (2048.0 * 640.0)
    A(f'''s_lshr_b32 s{sT0}, s{sFSH}, 1
    s_lshl_b32 s{sT0}, s{sT0}, 2
    s_add_u32 s{sT0}, s{sT0}, {BIG + B_F}
    s_and_b32 s{sFSH}, s{sFSH}, 1
    s_lshl_b32 s{sFSH}, s{sFSH}, 4
    v_mul_u32_u24 v{t}, 30720, v{vQ}
    v_mul_u32_u24 v{t + 1}, 48, v{vL15}
    v_add3_u32 v{vFA}, v{t}, v{t + 1}, s{sT0}
    v_add_u32 v{vFA + 1}, 1536, v{vFA}
    v_add_u32 v{vFA + 2}, 3072, v{vFA}
    v_add_u32 v{vFA + 3}, {3072 + 1536}, v{vFA}''')
    for j in range(4):
        for p in range(2):
            o = 192 * (j & 1)
            A(f'ds_read2_b32 {vr(F_RAW + 4 * j + 2 * p, 2)}, v{vFA + 2 * p + (j >> 1)} offset0:{o} offset1:{o + 1}')
    A(f'''s_cmp_lt_u32 s{sG}, 16
    s_cselect_b64 vcc, -1, 0
    s_cselect_b32 s{sT3}, 0, 0x80000000
    s_mov_b32 s{sT0}, {f2u(sc)}
    s_mov_b32 s{sT1}, {f2u(2 * sc)}
    s_xor_b32 s{sT2}, s{sT0}, s{sT3}
    s_xor_b32 s{sT3}, s{sT1}, s{sT3}''')
    for j in range(4):
        for p in range(2):
            r = F_RAW + 4 * j + 2 * p
            A(f'''v_lshrrev_b64 {vr(r, 2)}, s{sFSH}, {vr(r, 2)}
            v_lshlrev_b32 v{t}, 16, v{r}
            v_lshlrev_b32 v{t + 1}, 16, v{r + 1}
            v_and_b32 v{t + 2}, 0xffff0000, v{r}
            v_cndmask_b32 v{t + 3}, v{t + 1}, v{t}, vcc
            v_cndmask_b32 v{t + 4}, v{t}, v{t + 1}, vcc
            v_mul_f32 v{F_W + 8 + 4 * p + j}, s{sT1 + 2 * p}, v{t + 2}
            v_mul_f32 v{F_W + 4 * p + j}, s{sT0 + 2 * p}, v{t + 3}
            v_mul_f32 v{F_W + 16 + 4 * p + j}, s{sT1 + 2 * p}, v{t + 4}''')


X_RAW = 60
X_N = 72
K1_M1 = 100
K1_M2 = 124
MODR = 24
K1A = 200
aMX, aMWX, aMW, aADD, aMR, aEW, aER, aST = K1A, K1A + 1, K1A + 2, K1A + 4, K1A + 5, K1A + 8, K1A + 11, K1A + 14


def x1_issue():
    A(f'''s_lshl_b32 s{sT0}, s{sW}, 9
    s_add_u32 s{sT0}, s{sT0}, s{sME}
    s_mul_i32 s{sT0}, s{sT0}, 1280
    s_add_u32 s{sT1}, s{sT0}, {256 * 1280}
    v_lshlrev_b32 v{TMP + 7}, 2, v{vH}
    v_lshl_add_u32 v{TMP + 7}, v{vL31}, 3, v{TMP + 7}
    buffer_load_dwordx4 {vr(X_RAW, 4)}, v{vL16}, {srd(S_X)}, s{sT0} offen
    buffer_load_dwordx4 {vr(X_RAW + 4, 4)}, v{vL16}, {srd(S_X)}, s{sT1} offen
    buffer_load_dword v{X_RAW + 8}, v{TMP + 7}, {srd(S_X)}, s{sT0} offen offset:1024
    buffer_load_dword v{X_RAW + 9}, v{TMP + 7}, {srd(S_X)}, s{sT1} offen offset:1024''')


def k1_const_a():
    t = TMP
    A(f'''v_lshrrev_b32 v{t}, 3, v{vL31}
    v_cvt_f32_u32 v{t}, v{t}
    v_mul_f32 v{t}, {f2u(0.4)}, v{t}
    v_and_b32 v{t + 1}, 7, v{vL}
    v_cvt_f32_u32 v{t + 1}, v{t + 1}
    v_mul_f32 v{t + 1}, {f2u(0.125)}, v{t + 1}
    v_cvt_f32_u32 v{t + 2}, v{vH}
    v_mul_f32 v{t + 2}, v{t + 2}, v{t}
    v_and_b32 v{t + 10}, 1, v{vL}
    v_mul_u32_u24 v{t + 10}, 0x8000, v{t + 10}
    v_lshl_or_b32 v{t + 10}, v{t + 10}, 16, v{t + 10}''')
    for tau in range(3):
        fmamk(t + 3, t, 2 * tau, t + 2)
        for p in range(2):
            fmamk(t + 4, t + 1, 2 * p, t + 3)
            fmamk(t + 5, t + 1, 2 * p + 1, t + 3)
            sincos(t + 4, t + 6, t + 8)
            sincos(t + 5, t + 7, t + 9)
            A(f'v_cvt_pk_bf16_f32 v{K1_M1 + 4 * tau + p}, v{t + 6}, v{t + 7}')
            A(f'v_cvt_pk_bf16_f32 v{K1_M1 + 12 + 4 * tau + p}, -v{t + 8}, -v{t + 9}')
    A('s_mov_b32 exec_lo, 0')
    for p in range(2):
        A(f'v_mov_b32 v{K1_M1 + 8 + p}, 0')
        A(f'v_mov_b32 v{K1_M1 + 20 + p}, 0')
    A('s_mov_b32 exec_lo, -1')
    for k in range(6):
        for p in range(2):
            A(f'v_xor_b32 v{K1_M1 + 4 * k + 2 + p}, v{t + 10}, v{K1_M1 + 4 * k + p}')


def k1_const_b():
    t = 216
    A(f'''v_cvt_f32_u32 v{t}, v{vL31}
    v_lshlrev_b32 v{t + 1}, 4, v{vH}
    v_add_u32 v{t + 1}, s{sW}, v{t + 1}
    v_cvt_f32_u32 v{t + 1}, v{t + 1}
    v_mul_f32 v{t}, {f2u(1.0 / 128)}, v{t}
    v_mul_f32 v{t + 1}, v{t + 1}, v{t}
    v_and_b32 v{t + 10}, 1, v{vL}
    v_mul_u32_u24 v{t + 10}, 0x8000, v{t + 10}
    v_lshl_or_b32 v{t + 10}, v{t + 10}, 16, v{t + 10}''')
    for u in range(2):
        for jp in (0, 2):
            fmamk(t + 2, t, 4 * (8 * u + jp), t + 1)
            fmamk(t + 5, t, 4 * (8 * u + jp + 1), t + 1)
            sincos(t + 2, t + 3, t + 4)
            sincos(t + 5, t + 6, t + 7)
            for jj, e in ((jp, 3), (jp + 1, 6)):
                A(f'v_cvt_pk_bf16_f32 v{K1_M2 + 4 * u + jj}, v{t + e}, v{t + e + 1}')
                A(f'v_cvt_pk_bf16_f32 v{K1_M2 + 16 + 4 * u + jj}, -v{t + e + 1}, v{t + e}')
    for p in range(2):
        for k in range(8):
            A(f'v_xor_b32 v{K1_M2 + 16 * p + 8 + k}, v{t + 10}, v{K1_M2 + 16 * p + k}')


def ln1():
    t = TMP
    AD = 92
    A(f'''v_mul_u32_u24 v{t}, 3, v{vL}
    v_lshl_add_u32 v{t + 1}, v{vL15}, 4, s{sWB}''')
    for k in range(5):
        A(f'v_add_u32 v{t + 2}, {k}, v{t}')
        mod5(t + 2, t + 2, t + 3)
        A(f'v_lshl_add_u32 v{AD + k}, v{t + 2}, 10, v{t + 1}')
    A(f'''v_lshl_add_u32 v{t + 1}, v{vL31}, 3, s{sWB}
    v_lshl_add_u32 v{t + 1}, v{vH}, 9, v{t + 1}
    v_lshl_add_u32 v{t}, v{vL31}, 1, v{vH}''')
    for e in range(2):
        A(f'v_lshl_add_u32 v{t + 2}, v{t}, 1, {2 + e}')
        mod5(t + 2, t + 2, t + 3)
        A(f'v_lshl_add_u32 v{AD + 5 + e}, v{t + 2}, 10, v{t + 1}')
    for r in range(2):
        for k in range(4):
            unpack(X_N + 4 * k + r, X_N + 4 * k + 2 + r, X_RAW + 4 * r + k)
        unpack(X_N + 16 + r, X_N + 18 + r, X_RAW + 8 + r)
    pk('add', t, X_N, X_N + 2)
    pk('mul', t + 2, X_N, X_N)
    for e in range(1, 10):
        if e > 1:
            pk('add', t, t, X_N + 2 * e)
        pk('fma', t + 2, X_N + 2 * e, X_N + 2 * e, t + 2)
    A(f'''v_permlane32_swap_b32 v{t}, v{t + 1}
    v_permlane32_swap_b32 v{t + 2}, v{t + 3}
    v_add_f32 v{t}, v{t}, v{t + 1}
    v_add_f32 v{t + 2}, v{t + 2}, v{t + 3}
    v_permlane16_swap_b32 v{t}, v{t + 2}
    v_add_f32 v{t}, v{t}, v{t + 2}''')
    for r in (8, 4, 2, 1):
        A(f'v_add_f32_dpp v{t}, v{t}, v{t} row_ror:{r} row_mask:0xf bank_mask:0xf')
    A(f'v_mul_f32 v{t}, {f2u(1.0 / 640)}, v{t}')
    for k in range(4):
        A(f'v_readlane_b32 s{sT0 + k}, v{t}, {16 * k}')
    for r in range(2):
        A(f'v_mov_b32 v{t + 2 + r}, s{sT0 + 2 * r}')
    for r in range(2):
        A(f'v_fma_f32 v{t + r}, -v{t + 2 + r}, v{t + 2 + r}, s{sT1 + 2 * r}')
    for r in range(2):
        A(f'v_max_f32 v{t + r}, 0, v{t + r}')
    for r in range(2):
        A(f'v_add_f32 v{t + r}, {f2u(1e-5)}, v{t + r}')
    for r in range(2):
        A(f'v_rsq_f32 v{t + r}, v{t + r}')
    A(f'''s_lshl_b32 s{sT0}, s{sW}, 8
    s_add_u32 s{sT0}, s{sT0}, {BIG + B_N}''')
    pk('mul', t + 2, t + 2, t)
    for e in range(10):
        pk('fma', X_N + 2 * e, X_N + 2 * e, t, t + 2, mods='neg_lo:[0,0,1] neg_hi:[0,0,1]')
        if e < 8:
            A(f'ds_write_b64 v{AD + e % 5}, {vr(X_N + 2 * e, 2)} offset:{BIG + B_N + (e & 3) * 256 + (e >> 2) * 8}')
        else:
            A(f'ds_write_b64 v{AD + 5 + e - 8}, {vr(X_N + 2 * e, 2)} offset:{BIG + B_N + (e - 8) * 256}')
    A(f'''v_lshl_add_u32 v{t + 1}, v{vL31}, 3, s{sT0}
    v_lshl_add_u32 v{t}, v{vH}, 10, v{t + 1}
    s_waitcnt lgkmcnt(0)
    s_barrier''')
    for tau in range(3):
        ad = t if tau < 2 else t + 1
        for p in (0, 2):
            A(f'ds_read2st64_b64 {vr(X_N + 8 * tau + 2 * p, 4)}, v{ad} offset0:{4 * tau + 60 * p} offset1:{4 * tau + 60 * p + 60}')


def x_keep():
    for k in range(4):
        A(f'v_permlane32_swap_b32 v{X_RAW + k}, v{X_RAW + 4 + k}')
    A(f'v_permlane32_swap_b32 v{X_RAW + 8}, v{X_RAW + 9}')
    for k in range(10):
        A(f'v_accvgpr_write_b32 a{240 + k}, v{X_RAW + k}')


def k1_addr():
    t = TMP + 4
    A(f'''s_lshl_b32 s{sT0}, s{sW}, 8
    v_lshl_add_u32 v{t}, v{vL15}, 4, s{sT0}
    v_mul_u32_u24 v{t + 1}, {MP}, v{vQ}
    v_add3_u32 v{aMX}, v{t}, v{t + 1}, 0
    v_add_u32 v{aMX}, 4096, v{aMX}
    v_and_b32 v{t + 1}, 1, v{vQ}
    v_lshl_add_u32 v{t}, v{t + 1}, 3, v{t}
    v_lshl_add_u32 v{t}, v{vH}, 2, v{t}
    v_add_u32 v{aMWX}, {L_M1 + 4096}, v{t}
    v_add_u32 v{aMW}, {L_M1}, v{vT16}
    v_cmp_lt_u32 vcc, 159, v0
    v_cndmask_b32 v{aADD}, 0, 1.0, vcc
    v_lshl_add_u32 v{t}, v{vL31}, 2, s{sW}
    v_mul_u32_u24 v{t + 1}, 3, v{t}
    v_lshlrev_b32 v{t}, 2, v{t}
    v_add_u32 v{t}, {L_M1}, v{t}
    v_lshl_add_u32 v{t + 2}, v{vH}, 1, v{t + 1}''')
    for tau in range(3):
        A(f'v_add_u32 v{t + 3}, {4 * tau}, v{t + 2 if tau < 2 else t + 1}')
        mod5(t + 3, t + 3, t + 4)
        A(f'v_lshl_add_u32 v{aMR + tau}, v{t + 3}, 9, v{t}')
    for p in range(4):
        A(f's_mov_b32 s{sLD + p}, {WS_MOD + MP * p}')


aSX, sSK, sCH = 232, 81, 97


def k1_addr2():
    t = 228
    A(f's_mov_b32 s{sSK}, {SKIP if OPT["sk"] & 2 else 0}')
    A(f'''s_mul_i32 s{sT0}, s{sW}, 6144
    s_add_u32 s{sT0}, s{sT0}, {L_X1E}
    v_lshl_add_u32 v{aEW}, v{vL31}, 3, s{sT0}
    v_lshl_add_u32 v{aEW}, v{vH}, 10, v{aEW}
    v_add_u32 v{aEW + 1}, 2048, v{aEW}
    v_add_u32 v{aEW + 2}, 4096, v{aEW}
    v_lshrrev_b32 v{t}, 5, v0
    v_lshlrev_b32 v{t + 1}, 8, v{t}''')
    for c in range(3):
        A(f'''v_add_u32 v{t + 2}, {13 * c}, v{vL31}
        v_and_b32 v{t + 2}, 31, v{t + 2}
        v_lshl_add_u32 v{t + 2}, v{t + 2}, 3, v{t + 1}
        v_add_u32 v{aER + c}, {L_X1E + 2048 * c}, v{t + 2}''')
    A(f'''v_lshlrev_b32 v{t + 1}, 4, v{vL31}
    v_sub_u32 v{t + 2}, 8, v{t}
    v_and_b32 v{t + 2}, 7, v{t + 2}
    v_lshl_add_u32 v{aST + 1}, v{t + 2}, 11, v{t + 1}
    v_lshl_add_u32 v{aST}, v{t}, 11, v{t + 1}
    v_lshrrev_b32 v{t + 1}, 3, v{vL31}
    v_add_u32 v{t + 1}, 1, v{t + 1}
    v_lshrrev_b32 v{t + 1}, 2, v{t + 1}
    v_mul_lo_u32 v{t + 1}, v{t + 1}, s{sSK}
    v_add_u32 v{aSX}, v{aST}, v{t + 1}
    v_add_u32 v{aSX + 1}, v{aST + 1}, v{t + 1}
    s_mul_i32 s{sST}, s{sME}, {BS}
    s_add_u32 s{sST}, s{sST}, {WS_T}
    v_cmp_gt_u32 {sr(sM1, 2)}, 19, v{vL31}
    v_cmp_gt_u32 {sr(sM2, 2)}, 6, v{vL31}''')


def mod1_loads():
    s = ''
    for p in range(4):
        s += f'buffer_load_dwordx4 {vr(MODR + 4 * p, 4)}, v{vT16}, {srd(S_WS)}, s{sLD + p} offen sc1\n'
    s += f'buffer_load_dwordx4 {vr(MODR + 16, 4)}, v{aMX}, {srd(S_WS)}, s{sLD} offen sc1\n'
    return s


def bytecheck(base, n, t):
    c = ''
    for g in range(n):
        r = base + 4 * g
        for k in range(4):
            c += f'v_xor_b32 v{r + k}, s{sTB + k}, v{r + k}\n'
        if g == 0:
            c += f'v_or3_b32 v{t}, v{r}, v{r + 1}, v{r + 2}\nv_or_b32 v{t}, v{t}, v{r + 3}\n'
        else:
            c += f'v_or3_b32 v{t}, v{t}, v{r}, v{r + 1}\nv_or3_b32 v{t}, v{t}, v{r + 2}, v{r + 3}\n'
    return c + f'v_and_b32 v{t}, 0xff, v{t}\nv_cmp_ne_u32 vcc, 0, v{t}\n'


def k1_poll():
    poll_check('mod1', mod1_loads(), bytecheck(MODR, 5, TMP))
    stamp('mod1')


def round_add(r, add, t):
    A(f'v_cvt_pk_bf16_f32 v{t}, v{r}, v{r + 1}')
    A(f'v_cvt_pk_bf16_f32 v{t + 1}, v{r + 2}, v{r + 3}')
    unpack(r, r + 1, t)
    unpack(r + 2, r + 3, t + 1)
    if add is None:
        return
    for p in (0, 2):
        pk('add', r + p, r + p, add, mods='op_sel_hi:[1,0]')
    A(f'v_cvt_pk_bf16_f32 v{t}, v{r}, v{r + 1}')
    A(f'v_cvt_pk_bf16_f32 v{t + 1}, v{r + 2}, v{r + 3}')
    unpack(r, r + 1, t)
    unpack(r + 2, r + 3, t + 1)


def sum4(r):
    for p in (0, 2):
        pk('add', r + p, r + p, r + 4 + p)
        pk('add', r + 8 + p, r + 8 + p, r + 12 + p)
    for p in (0, 2):
        pk('add', r + p, r + p, r + 8 + p)


def radix4(z, P, inverse):
    pk('add', P, z, z + 4)
    pk('add', P + 2, z, z + 4, mods=NEG1)
    pk('add', P + 4, z + 2, z + 6)
    pk('add', P + 6, z + 2, z + 6, mods=NEG1)
    pk('add', z, P, P + 4)
    pk('add', z + 4, P, P + 4, mods=NEG1)
    a, b = ('neg_lo', 'neg_hi') if inverse else ('neg_hi', 'neg_lo')
    pk('add', z + 2, P + 2, P + 6, mods=f'op_sel:[0,1] op_sel_hi:[1,0] {a}:[0,1]')
    pk('add', z + 6, P + 2, P + 6, mods=f'op_sel:[0,1] op_sel_hi:[1,0] {b}:[0,1]')


def k1_head():
    t = TMP
    x = MODR + 16
    A(f'''v_permlane32_swap_b32 v{x}, v{x + 1}
    v_permlane32_swap_b32 v{x + 2}, v{x + 3}''')
    sum4(MODR)
    A(f'''v_add_f32 v{x}, v{x}, v{x + 1}
    v_add_f32 v{x + 2}, v{x + 2}, v{x + 3}''')
    round_add(MODR, aADD, t)
    A(f'''v_permlane16_swap_b32 v{x}, v{x + 2}
    ds_write_b128 v{aMW}, {vr(MODR, 4)}
    v_add_f32 v{x}, v{x}, v{x + 2}
    v_cvt_pk_bf16_f32 v{x}, v{x}, v{x}
    v_lshlrev_b32 v{x}, 16, v{x}
    v_add_f32 v{x}, 1.0, v{x}
    v_cvt_pk_bf16_f32 v{x}, v{x}, v{x}
    v_lshlrev_b32 v{x}, 16, v{x}
    ds_write_b32 v{aMWX}, v{x}
    .fill {OPT['g1']}''')
    fine(1, '1a_wr')
    A('s_waitcnt lgkmcnt(0)\ns_barrier')
    fine(1, '1b_bar')


def k1_main():
    t = TMP
    OPA = 60
    DRE, DIM = 24, 40
    for tau in range(3):
        A(f'ds_read2st64_b32 {vr(t + 2 * tau, 2)}, v{aMR + tau} offset0:0 offset1:10')
    A(f'.fill {OPT["g2"]}')
    for tau in range(3):
        for p in range(4):
            n = X_N + 8 * tau + 2 * p
            pk('fma', n, n, t + 2 * tau, t + 2 * tau, mods='op_sel:[0,1,0] op_sel_hi:[1,1,0]')
    O = 76

    def cva(tau):
        for p in range(4):
            n = X_N + 8 * tau + 2 * p
            A(f'v_cvt_pk_bf16_f32 v{OPA + 4 * tau + p}, v{n}, v{n + 1}')
    cva(0)
    A('.fill 8')
    for tau in range(3):
        A(f'v_mfma_f32_32x32x16_bf16 {vr(DRE, 16)}, {vr(OPA + 4 * tau, 4)}, {vr(K1_M1 + 4 * tau, 4)}, {vr(DRE, 16) if tau else 0}')
        if tau < 2:
            cva(tau + 1)
        A(f'.fill {8 if tau < 2 else 24}')
        A(f'v_mfma_f32_32x32x16_bf16 {vr(DIM, 16)}, {vr(OPA + 4 * tau, 4)}, {vr(K1_M1 + 12 + 4 * tau, 4)}, {vr(DIM, 16) if tau else 0}')
        A(f'.fill {24 if tau < 2 else 32}')
    fine(1, '1c_st1')
    for m in range(4):
        A(f'v_mov_b32 v{O + 4 * m + 3}, s{sTAG}')
    OPB = 60
    ERE, EIM = 100, 24

    def cvb(u):
        for jj in range(4):
            A(f'v_cvt_pk_bf16_f32 v{OPB + 4 * u + jj}, v{DRE + 4 * u + jj}, v{DIM + 4 * u + jj}')

    def wr(E, im):
        return [f'ds_write2_b32 v{aEW + (j >> 2)}, v{E + j}, v{E + j + 1} offset0:{64 * (j & 3) + im} offset1:{64 * (j & 3) + 64 + im}' for j in range(0, 12, 2)]
    cvb(0)
    A('.fill 8')
    for u in range(4):
        A(f'v_mfma_f32_32x32x16_bf16 {vr(ERE, 16)}, {vr(OPB + 4 * u, 4)}, {vr(K1_M2 + 4 * u, 4)}, {vr(ERE, 16) if u else 0}')
        if u < 3:
            cvb(u + 1)
        A('.fill 8' if u < 3 else '.fill 24 5')
    w = wr(ERE, 0)
    for u in range(4):
        A(f'v_mfma_f32_32x32x16_bf16 {vr(EIM, 16)}, {vr(OPB + 4 * u, 4)}, {vr(K1_M2 + 16 + 4 * u, 4)}, {vr(EIM, 16) if u else 0}')
        if u == 0:
            A('.fill 24 5')
        else:
            A(w.pop(0))
            A(w.pop(0))
            A('.fill 12' if u < 3 else '.fill 40')
    fine(1, '1d_st2')
    for x in wr(EIM, 1)[:1 if OPT['cutx'] & 8 else 6]:
        A(x)
    A(f'.fill {OPT["g3"]}')
    fine(1, '1e_wr')
    A('s_waitcnt lgkmcnt(0)\ns_barrier')
    fine(1, '1f_bar')
    Z = 24
    for c in (1, 2, 0):
        for b2 in (0, 2, 1, 3):
            A(f'ds_read_b64 {vr(Z + 8 * c + 2 * b2, 2)}, v{aER + c} offset:{6144 * b2}')
    fine(1, '1g_rd')
    P = 48
    for c in (1, 2, 0):
        z = Z + 8 * c
        if not OPT['cutx'] & 8:
            radix4(z, P, False)
        if c == 0:
            fine(1, '1h_rx')
            for m in range(4):
                A(f'v_cvt_pk_bf16_f32 v{O + 4 * m}, v{z + 2 * m}, v{z + 2 * m + 1}')
                A(f'buffer_store_dwordx4 {vr(O + 4 * m, 4)}, v{(aST if m & 1 else aSX) + (m >> 1)}, {srd(S_WS)}, s{sST} offen offset:{512 * m} sc1')
        else:
            for k in range(4):
                A(f'v_cvt_pk_bf16_f32 v{56 + k}, v{z + 2 * k}, v{z + 2 * k + 1}')
            r0 = 1 if c == 1 else 3
            for m in range(4):
                A(f'v_cndmask_b32 v{O + 4 * m + c}, v{56 + (m - r0) % 4}, v{56 + (m - r0 - 1) % 4}, {sr(sM1 if c == 1 else sM2, 2)}')


K2C = 100
C_M1, C_TW1, C_M2, C_M3, C_TW2, C_M4 = [K2C + 8 * i for i in range(6)]
K2_IN = 24
vK2A, aIW, aIR, aOR, aOW, vTG = 148, 149, 150, 151, 152, 154


def k2_const():
    t = TMP
    A(f'''v_cvt_f32_u32 v{t}, v{vL15}
    v_cvt_f32_u32 v{t + 1}, v{vQ}
    v_cvt_f32_u32 v{t + 2}, s{sK1}
    v_mul_f32 v{t + 1}, 4.0, v{t + 1}''')
    fmamk(t + 3, t, 8, t + 2)
    A(f'v_mul_f32 v{t + 3}, {f2u(1.0 / 128)}, v{t + 3}')
    A(f'v_mul_f32 v{t + 4}, {f2u(1.0 / 16)}, v{t}')
    A(f'v_mul_f32 v{t + 5}, {f2u(1.0 / 128)}, v{t}')
    A(f'v_mul_f32 v{t + 5}, v{t + 5}, v{t + 2}')
    for jj in range(4):
        A(f'v_add_f32 v{t + 6}, {f2u(float(jj))}, v{t + 1}')
        A(f'v_mul_f32 v{t + 7}, v{t + 6}, v{t + 3}')
        A(f'v_mul_f32 v{t + 8}, {f2u(1.0 / 16)}, v{t + 7}')
        A(f'v_mul_f32 v{t + 9}, v{t + 6}, v{t + 4}')
        A(f'v_add_f32 v{t + 10}, v{t + 9}, v{t + 5}')
        A(f'v_mul_f32 v{t + 11}, {f2u(1.0 / 16)}, v{t + 10}')
        sincos(t + 7, t + 12, t + 13)
        sincos(t + 8, C_TW1 + jj, C_TW1 + 4 + jj)
        A(f'v_cvt_pk_bf16_f32 v{C_M1 + jj}, v{t + 12}, v{t + 13}')
        A(f'v_cvt_pk_bf16_f32 v{C_M1 + 4 + jj}, -v{t + 13}, v{t + 12}')
        sincos(t + 9, t + 12, t + 13)
        sincos(t + 10, t + 14, t + 15)
        sincos(t + 11, C_TW2 + jj, C_TW2 + 4 + jj)
        A(f'v_cvt_pk_bf16_f32 v{C_M2 + jj}, v{t + 12}, v{t + 13}')
        A(f'v_cvt_pk_bf16_f32 v{C_M2 + 4 + jj}, -v{t + 13}, v{t + 12}')
        A(f'v_cvt_pk_bf16_f32 v{C_M3 + jj}, v{t + 12}, -v{t + 13}')
        A(f'v_cvt_pk_bf16_f32 v{C_M3 + 4 + jj}, v{t + 13}, v{t + 12}')
        A(f'v_cvt_pk_bf16_f32 v{C_M4 + jj}, v{t + 14}, -v{t + 15}')
        A(f'v_cvt_pk_bf16_f32 v{C_M4 + 4 + jj}, v{t + 15}, v{t + 14}')


def k2_loads():
    return ''.join(f'buffer_load_dwordx4 {vr(K2_IN + 4 * j, 4)}, v{vK2A}, {srd(S_WS)}, s{sLD + j} offen sc1\n' for j in range(4))


def k2_addr():
    t = TMP
    A(f'''v_lshrrev_b32 v{t}, 2, v{vL}
    v_mul_u32_u24 v{t}, {BS}, v{t}
    v_and_b32 v{t + 1}, 3, v{vL}
    v_lshl_add_u32 v{vK2A}, v{t + 1}, 4, v{t}
    s_mul_i32 s{sT0}, s{sW}, {64 * BS}
    s_and_b32 s{sT1}, s{sME}, 14
    s_cmp_eq_u32 s{sT1}, 6
    s_cselect_b32 s{sT2}, {SKIP if OPT['sk'] & 2 else 0}, 0
    s_lshl_b32 s{sT1}, s{sME}, 6
    s_add_u32 s{sMODST}, s{sT1}, s{sT2}
    s_add_u32 s{sT0}, s{sT0}, s{sMODST}
    s_add_u32 s{sLD}, s{sT0}, {WS_T}''')
    for j in range(1, 4):
        A(f's_add_u32 s{sLD + j}, s{sLD}, {16 * j * BS}')
    A(f'''v_mul_u32_u24 v{t}, 3104, v{t + 1}
    v_lshrrev_b32 v{t + 1}, 2, v0
    v_lshl_add_u32 v{t}, v{t + 1}, 4, v{t}
    s_mul_i32 s{sT0}, s{sW}, 3104
    v_add_u32 v{t + 1}, s{sT0}, v{vL16}
    v_add_u32 v{aOR}, {L_K2O}, v{t}
    v_add_u32 v{aOW}, {L_K2O}, v{t + 1}
    v_add_u32 v{aIW}, {L_K2I}, v{t}
    v_add_u32 v{aIR}, {L_K2I}, v{t + 1}
    s_mul_i32 s{sST}, s{sME}, {BS}
    s_lshl_b32 s{sT1}, s{sW}, 12
    s_add_u32 s{sST}, s{sST}, s{sT1}
    s_add_u32 s{sST}, s{sST}, {WS_TP}
    v_mov_b32 v{vTG}, s{sTAG}''')


def cmul(dre, dim, wr, wi, conj, tmp):
    for p in (0, 2):
        pk('mul', tmp + p, dre + p, wr + p)
        pk('mul', tmp + 4 + p, dim + p, wr + p)
    neg = 'neg_lo:[1,0,0] neg_hi:[1,0,0]'
    for p in (0, 2):
        pk('fma', tmp + p, dim + p, wi + p, tmp + p, mods='' if conj else neg)
        pk('fma', tmp + 4 + p, dre + p, wi + p, tmp + 4 + p, mods=neg if conj else '')


def k2_head():
    tg = [K2_IN + 4 * j + 3 for j in range(4)]
    poll_check('t', masked(k2_loads(), tg), tagcheck(tg, TMP))
    stamp('T')
    X = 40
    for c in range(3):
        cb, cs = c & ~1, c & 1
        for p in (0, 2):
            A(f'v_pk_mov_b32 {vr(X + 4 * c + p, 2)}, {vr(K2_IN + 4 * p + cb, 2)}, {vr(K2_IN + 4 * p + 4 + cb, 2)} op_sel:[{cs},{cs}]')
        A(f'ds_write_b128 v{aIW}, {vr(X + 4 * c, 4)} offset:{1024 * c}')
    fine(1, '2a_wr')
    A('s_waitcnt lgkmcnt(0)\ns_barrier')
    fine(1, '2b_bar')


def k2_main():
    X = 40
    OP = 24
    D = 40
    U = 64
    for c in range(3):
        A(f'ds_read_b128 {vr(OP + 4 * c, 4)}, v{aIR} offset:{1024 * c}')

    def mm(c, M, data_is_a):
        for p in range(2):
            a, b = (vr(OP + 4 * c, 4), vr(M + 4 * p, 4)) if data_is_a else (vr(M + 4 * p, 4), vr(OP + 4 * c, 4))
            A(f'v_mfma_f32_16x16x32_bf16 {vr(D + 8 * c + 4 * p, 4)}, {a}, {b}, 0')

    def mid(wr, wi, conj, M, data_is_a):
        for c in range(3):
            cmul(D + 8 * c, D + 8 * c + 4, wr(c), wi(c), conj, U + 8 * c)
        cv = [f'v_cvt_pk_bf16_f32 v{OP + 4 * c + jj}, v{U + 8 * c + jj}, v{U + 8 * c + 4 + jj}' for c in range(3) for jj in range(4)]
        for x in cv[:6]:
            A(x)
        cv = cv[6:]
        for c in range(3):
            for x in A.capture(lambda: mm(c, M, data_is_a)):
                A.items.append(x)
                for y in cv[:2]:
                    A(y)
                cv = cv[2:]
    fine(1, '2c_rd')
    for c in range(3):
        mm(c, C_M1, True)
    if not OPT['cutx'] & 1:
        mid(lambda c: C_TW1, lambda c: C_TW1 + 4, True, C_M2, False)
    mid(lambda c: F_W + 8 * c, lambda c: F_W + 8 * c + 4, False, C_M3, True)
    if not OPT['cutx'] & 1:
        mid(lambda c: C_TW2, lambda c: C_TW2 + 4, False, C_M4, False)
    fine(1, '2d_mm')
    for c in range(3):
        for jj in range(4):
            A(f'v_cvt_pk_bf16_f32 v{OP + 4 * c + jj}, v{D + 8 * c + jj}, v{D + 8 * c + 4 + jj}')
        A(f'ds_write_b128 v{aOW}, {vr(OP + 4 * c, 4)} offset:{1024 * c}')
    fine(1, '2e_wr')
    A('s_waitcnt lgkmcnt(0)\ns_barrier')
    fine(1, '2f_bar')
    for c in range(3):
        A(f'ds_read_b128 {vr(X + 4 * c, 4)}, v{aOR} offset:{1024 * c}')
    fine(1, '2g_rd')
    O = 64
    for j in range(4):
        jb, js = j & ~1, j & 1
        A(f'v_pk_mov_b32 {vr(O + 4 * j, 2)}, {vr(X + jb, 2)}, {vr(X + 4 + jb, 2)} op_sel:[{js},{js}]')
        A(f'v_pk_mov_b32 {vr(O + 4 * j + 2, 2)}, {vr(X + 8 + jb, 2)}, {vr(vTG, 2)} op_sel:[{js},0]')
        A(f'buffer_store_dwordx4 {vr(O + 4 * j, 4)}, v{vLT}, {srd(S_WS)}, s{sST} offen offset:{1024 * j} sc1')


def epoch_store():
    A(f'''s_cmp_eq_u32 s{sME}, 0
    s_cselect_b32 s{sBGO}, {WS_EPOCH}, {OOB}
    v_mov_b32 v{vBG + 3}, s{sTAG}
    buffer_store_dword v{vBG + 3}, off, {srd(S_WS)}, s{sBGO} sc1''')


K3_MA = 100
K3_MB = 132
K3_X = 156
K3_GA, K3_SB, K3_CB = 176, 196, 216
K3_IN = 24
vK3A, vK3B = 236, 237
M2R = 160
X3R = 88
B1R = 192


def side_loads():
    s = ''
    for p in range(4):
        s += f"""s_mov_b32 s{sBG2}, {WS_MOD + MP * p + 320 * 16}
        buffer_load_dwordx4 {vr(M2R + 4 * p, 4)}, v{vT16}, {srd(S_WS)}, s{sBG2} offen sc1
        buffer_load_dwordx4 {vr(M2R + 16 + 4 * p, 4)}, v{vBG + 2}, {srd(S_WS)}, s{sBG2} offen sc1
        """
    return s


def side_prep():
    t = TMP
    A(f"""s_and_b32 s{sT0}, s{sJ}, 7
    s_mul_i32 s{sT0}, s{sT0}, 320
    v_mov_b32 v{t}, s{sT0}
    v_cmp_lt_u32 vcc, 223, v0
    v_cndmask_b32 v{t}, 0, v{t}, vcc
    v_min_u32 v{t + 1}, {243 * 16}, v{vT16}
    v_add_u32 v{t}, v{t}, v{t + 1}
    v_add_u32 v{vBG + 2}, 4096, v{t}
    s_lshr_b32 s{sT0}, s{sT0}, 1
    v_lshl_add_u32 v{vBG + 1}, v{vL31}, 3, s{sT0}
    s_lshl_b32 s{sT0}, s{sCA}, 6
    s_lshl_b32 s{sT1}, s{sCB}, 6
    v_mov_b32 v{t}, s{sT0}
    v_mov_b32 v{t + 1}, s{sT1}
    v_cmp_gt_u32 vcc, 16, v{vL31}
    v_cndmask_b32 v{t}, v{t + 1}, v{t}, vcc
    v_lshl_add_u32 v{vBG}, v{vL15}, 3, v{t}""")


def b2_issue():
    A(f"""buffer_load_dwordx2 v[192:193], v{vBG + 1}, {srd(S_B2)}, 0 offen
    buffer_load_dwordx2 v[194:195], v{vBG}, {srd(S_B1)}, 0 offen""")


def side_finish():
    t = TMP
    poll_check('mod2', side_loads(), bytecheck(M2R, 8, t))
    A(f"""v_subrev_u32 v{t + 2}, 64, v0
    v_cmp_gt_u32 vcc, 160, v{t + 2}
    v_cndmask_b32 v{t + 2}, 0, 1.0, vcc
    v_add_u32 v{t + 5}, {L_M2}, v{vT16}""")
    for g in range(2):
        r = M2R + 16 * g
        sum4(r)
        round_add(r, t + 2 if g else None, t)
        if g:
            unpack(t + 6, t + 7, 192)
            unpack(t + 8, t + 9, 193)
            A(f'''v_mov_b32 v{t + 3}, {f2u(1.0 / GA)}
            v_cmp_lt_u32 vcc, 223, v0
            v_cndmask_b32 v{t + 2}, 1.0, v{t + 3}, vcc''')
            for p in (0, 2):
                pk('mul', t + 6 + p, t + 6 + p, r + p)
                pk('mul', r + p, r + p, t + 2, mods='op_sel_hi:[1,0]')
            A(f'''v_max_u32 v{t + 3}, {223 * 16}, v{vT16}
            v_add_u32 v{t + 3}, {L_M2 + 8192 - 223 * 16}, v{t + 3}
            ds_write_b128 v{t + 3}, {vr(t + 6, 4)}''')
        A(f'ds_write_b128 v{t + 5}, {vr(r, 4)} offset:{4096 * g}')
    unpack(t + 6, t + 7, 194)
    unpack(t + 8, t + 9, 195)
    A(f's_mov_b32 s{sT2}, {f2u(GA)}\ns_mov_b32 s{sT0}, {L_B1}')
    for p in (0, 2):
        pk('mul', t + 6 + p, t + 6 + p, sr(sT2, 2), mods='op_sel_hi:[1,0]')
    A(f'''v_lshl_add_u32 v{t + 3}, v{vL31}, 4, s{sT0}
    ds_write_b128 v{t + 3}, {vr(t + 6, 4)}''')
    for k in range(10):
        A(f'v_accvgpr_read_b32 v{X3R + k}, a{240 + k}')
    for k in range(10):
        unpack(K3_X + 2 * k, K3_X + 2 * k + 1, X3R + k)


def k3_const():
    t = TMP
    A(f'''v_lshlrev_b32 v{t}, 2, v{vL31}
    v_add_u32 v{t}, s{sW}, v{t}
    v_cvt_f32_u32 v{t}, v{t}
    v_mul_f32 v{t}, {f2u(1.0 / 128)}, v{t}
    v_cvt_f32_u32 v{t + 8}, v{vH}
    v_mul_f32 v{t + 8}, 4.0, v{t + 8}
    v_mul_f32 v{t + 1}, v{t + 8}, v{t}''')
    for u in range(4):
        for jp in (0, 2):
            fmamk(t + 2, t, 8 * u + jp, t + 1)
            fmamk(t + 5, t, 8 * u + jp + 1, t + 1)
            sincos(t + 2, t + 3, t + 4)
            sincos(t + 5, t + 6, t + 7)
            for jj, e in ((jp, 3), (jp + 1, 6)):
                A(f'v_cvt_pk_bf16_f32 v{K3_MA + 4 * u + jj}, v{t + e}, -v{t + e + 1}')
                A(f'v_cvt_pk_bf16_f32 v{K3_MA + 16 + 4 * u + jj}, v{t + e + 1}, v{t + e}')
    A(f'''v_lshrrev_b32 v{t}, 3, v{vL31}
    v_cvt_f32_u32 v{t}, v{t}
    v_mul_f32 v{t}, {f2u(0.4)}, v{t}
    v_and_b32 v{t + 1}, 7, v{vL}
    v_cvt_f32_u32 v{t + 1}, v{t + 1}
    v_mul_f32 v{t + 1}, {f2u(0.125)}, v{t + 1}
    v_mul_f32 v{t + 9}, v{t + 8}, v{t + 1}''')
    for jj in range(4):
        fmamk(t + 10, t + 1, jj, t + 9)
        for tau in range(3):
            fmamk(t + 2, t, tau, t + 10)
            sincos(t + 2, t + 3, t + 4)
            if tau:
                A(f'v_add_f32 v{t + 5}, {f2u(1.6 * tau)}, v{t + 10}')
                sincos(t + 5, t + 6, t + 7)
            A(f'v_cvt_pk_bf16_f32 v{K3_MB + 4 * tau + jj}, v{t + 3}, -v{t + 4}')
            if tau:
                A(f'v_cvt_pk_bf16_f32 v{K3_MB + 12 + 4 * tau + jj}, v{t + 6}, -v{t + 7}')
            else:
                A(f'v_mov_b32 v{K3_MB + 12 + jj}, v{K3_MB + jj}')


def k3_loads():
    return ''.join(f'buffer_load_dwordx4 {vr(K3_IN + 4 * m, 4)}, v{vK3A + (m >> 1)}, {srd(S_WS)}, s{sLD + m} offen sc1\n' for m in range(4))


def k3_ldaddr():
    t = TMP
    A(f'''v_lshrrev_b32 v{t}, 5, v0
    v_sub_u32 v{t + 1}, 8, v{t}
    v_and_b32 v{t + 1}, 7, v{t + 1}
    v_lshrrev_b32 v{t + 2}, 2, v{vL31}
    v_lshl_add_u32 v{t}, v{t}, 5, v{t + 2}
    v_lshl_add_u32 v{t + 1}, v{t + 1}, 5, v{t + 2}
    v_mul_u32_u24 v{t}, {BS}, v{t}
    v_mul_u32_u24 v{t + 1}, {BS}, v{t + 1}
    v_and_b32 v{t + 2}, 3, v{vL}
    v_lshl_add_u32 v{vK3A}, v{t + 2}, 4, v{t}
    v_lshl_add_u32 v{vK3B}, v{t + 2}, 4, v{t + 1}
    s_add_u32 s{sLD}, s{sMODST}, {WS_TP}''')
    for m in range(1, 4):
        A(f's_add_u32 s{sLD + m}, s{sLD}, {8 * m * BS}')


aWA, aRA, aYA = 8, 11, 12
aYR, aSEL, aX1 = 84, 86, 87
aRW, aRR, aY2, aMO = 89, 91, 92, 93
ST3 = 18
vEPS = 22
GK = 2.0 * 0.7978845608028654 * 1.4426950408889634
GA = (GK * 0.044715) ** (1.0 / 3.0)


def k3_addr():
    t = 95
    A(f'v_lshrrev_b32 v{t}, 5, v0')
    A(f'v_mul_u32_u24 v{t}, 144, v{t}')
    for c in range(3):
        A(f'''v_add_u32 v{t + 1}, {13 * c}, v{vL31}
        v_and_b32 v{t + 1}, 31, v{t + 1}
        v_lshl_add_u32 v{t + 1}, v{t + 1}, 2, v{t}
        v_add_u32 v{aWA + c}, {L_K3I + 8 * 144 * c}, v{t + 1}''')
    A(f'''s_mul_i32 s{sT0}, s{sW}, 3584
    s_add_u32 s{sT0}, s{sT0}, {L_K3I}
    v_mul_u32_u24 v{t}, 144, v{vL31}
    v_lshl_add_u32 v{t}, v{vH}, 4, v{t}
    v_add_u32 v{aRA}, s{sT0}, v{t}''')
    A(f'''v_lshl_add_u32 v{t}, v{vL31}, 2, s{sW}
    v_mul_u32_u24 v{t + 1}, 3, v{t}
    v_mul_u32_u24 v{t + 2}, 5120, v{vH}
    v_lshl_add_u32 v{t}, v{t}, 2, v{t + 2}
    v_add_u32 v{t}, {L_Y}, v{t}''')
    for a in range(5):
        A(f'v_add_u32 v{t + 2}, {2 * a}, v{t + 1}')
        mod5(t + 2, t + 2, t + 3)
        A(f'v_lshl_add_u32 v{aYA + a}, v{t + 2}, 9, v{t}')
    A(f'''s_mul_i32 s{sT0}, s{sW}, 2560
    s_add_u32 s{sT1}, s{sT0}, {L_Y}
    v_lshl_add_u32 v{aYR}, v{vL31}, 5, s{sT1}
    v_lshl_add_u32 v{aYR + 1}, v{vL31}, 4, s{sT1}
    s_mov_b32 s{sT1}, {L_M2}
    v_lshl_add_u32 v{aMO}, v{vL31}, 5, s{sT1}
    v_lshl_add_u32 v{aMO + 1}, v{vL31}, 4, s{sT1}
    v_mov_b32 v{t}, 0x01000c0c
    v_mov_b32 v{t + 1}, 0x03020c0c
    v_cmp_eq_u32 vcc, 1, v{vH}
    v_cndmask_b32 v{aSEL}, v{t}, v{t + 1}, vcc
    s_lshl_b32 s{sST + 3}, s{sW}, 9
    s_add_u32 s{sST + 3}, s{sST + 3}, s{sME}
    s_mul_i32 s{sST + 3}, s{sST + 3}, 1280
    s_mul_i32 s{sST}, s{sJ}, 10
    s_add_u32 s{sST}, s{sST}, s{sW}
    s_mul_i32 s{sST}, s{sST}, {BS}
    s_lshl_b32 s{sT1}, s{sCL}, 10
    s_add_u32 s{sST}, s{sST}, s{sT1}
    s_add_u32 s{sST}, s{sST}, {WS_Y2}
    s_add_u32 s{sST + 1}, s{sST}, {4 * BS}
    s_add_u32 s{sST + 2}, s{sST}, {8 * BS}
    s_cmp_lt_u32 s{sW}, 2
    s_cselect_b32 s{sST + 2}, s{sST + 2}, {OOB}
    v_mul_u32_u24 v{t}, {256 * 1280}, v{vH}
    v_lshl_add_u32 v{aX1}, v{vL31}, 4, v{t}
    v_lshl_add_u32 v{aX1 + 1}, v{vL31}, 3, v{t}''')
    A(f'''s_lshl_b32 s{sT2}, s{sW}, 1
    v_add_u32 v{t}, s{sT2}, v{vH}
    v_xor_b32 v{t + 1}, v{t}, v{vL31}
    v_and_b32 v{t + 1}, 7, v{t + 1}
    v_lshlrev_b32 v{t + 1}, 4, v{t + 1}
    v_lshl_add_u32 v{t + 1}, v{vL31}, 7, v{t + 1}
    v_add_u32 v{aRW}, {L_Y2}, v{t + 1}
    v_lshrrev_b32 v{t + 2}, 1, v{vL31}
    v_xor_b32 v{t + 3}, v{t}, v{t + 2}
    v_and_b32 v{t + 3}, 7, v{t + 3}
    v_lshlrev_b32 v{t + 3}, 4, v{t + 3}
    v_lshl_add_u32 v{t + 3}, v{t + 2}, 7, v{t + 3}
    v_and_b32 v{t + 2}, 1, v{vL}
    v_lshl_add_u32 v{t + 3}, v{t + 2}, 3, v{t + 3}
    v_add_u32 v{aRW + 1}, {L_Y2 + 64 * 128}, v{t + 3}
    v_lshrrev_b32 v{t + 2}, 3, v0
    v_xor_b32 v{t + 4}, v{t + 2}, v0
    v_and_b32 v{t + 4}, 7, v{t + 4}
    v_lshlrev_b32 v{t + 4}, 4, v{t + 4}
    v_lshl_add_u32 v{t + 4}, v{t + 2}, 7, v{t + 4}
    v_add_u32 v{aRR}, {L_Y2}, v{t + 4}
    v_mov_b32 v{vEPS}, {f2u(1e-5 / GA ** 2)}''')


def row_stats(b, t, scale=None):
    pk('add', t, b, b + 2)
    pk('mul', t + 2, b, b)
    for k in range(1, 10):
        if k > 1:
            pk('add', t, t, b + 2 * k)
        pk('fma', t + 2, b + 2 * k, b + 2 * k, t + 2)
    A(f'''v_add_f32 v{t}, v{t}, v{t + 1}
    v_add_f32 v{t + 2}, v{t + 2}, v{t + 3}
    v_permlane16_swap_b32 v{t}, v{t + 2}
    v_add_f32 v{t}, v{t}, v{t + 2}''')
    for r in (8, 4, 2, 1):
        A(f'v_add_f32_dpp v{t}, v{t}, v{t} row_ror:{r} row_mask:0xf bank_mask:0xf')
    A(f'''v_mul_f32 v{t + 1}, {f2u(1.0 / 640)}, v{t}
    v_mul_f32 v{t + 2}, {f2u(1.0 / 640)}, v{t}
    v_permlane16_swap_b32 v{t + 1}, v{t + 2}
    v_fma_f32 v{t}, -v{t + 1}, v{t + 1}, v{t + 2}
    v_max_f32 v{t}, 0, v{t}''')
    if scale is None:
        A(f'v_add_f32 v{t}, {f2u(1e-5)}, v{t}')
    else:
        A(f'v_fmamk_f32 v{t}, v{t}, {f2u(1.0 / scale ** 2)}, v{vEPS}')
    A(f'''v_rsq_f32 v{t}, v{t}
    v_mul_f32 v{t + 1}, v{t + 1}, v{t}''')


X1P = 72


def x1_store():
    A(f'''buffer_store_dwordx4 {vr(X1P, 4)}, v{aX1}, {srd(S_OUT)}, s{sST + 3} offen sc1
    buffer_store_dwordx4 {vr(X1P + 4, 4)}, v{aX1}, {srd(S_OUT)}, s{sST + 3} offen offset:512 sc1
    buffer_store_dwordx2 {vr(X1P + 8, 2)}, v{aX1 + 1}, {srd(S_OUT)}, s{sST + 3} offen offset:1024 sc1''')


def k3_poll():
    tg = [K3_IN + 4 * m + 3 for m in range(4)]
    poll_check('tp', masked(k3_loads(), tg), tagcheck(tg, ST3))
    stamp('Tp')


def k3_main():
    Z, P, Q = 40, 48, 56
    for c in range(3):
        if c == 0:
            src = [K3_IN + 4 * k for k in range(4)]
        else:
            r0 = 1 if c == 1 else 3
            for k in range(4):
                A(f'v_cndmask_b32 v{Q + k}, v{K3_IN + 4 * ((k + r0) % 4) + c}, v{K3_IN + 4 * ((k + r0 + 1) % 4) + c}, {sr(sM1 if c == 1 else sM2, 2)}')
            src = [Q + k for k in range(4)]
        z = Z + 20 * (c & 1)
        for k in range(4):
            unpack(z + 2 * k, z + 2 * k + 1, src[k])
        radix4(z, P, True)
        for k in (0, 1):
            A(f'v_cvt_pk_bf16_f32 v{z + 2 * k}, v{z + 2 * k}, v{z + 2 * k + 1}')
            A(f'v_cvt_pk_bf16_f32 v{z + 2 * k + 4}, v{z + 2 * k + 4}, v{z + 2 * k + 5}')
            A(f'ds_write2st64_b32 v{aWA + c}, v{z + 2 * k}, v{z + 2 * k + 4} offset0:{14 * k} offset1:{14 * k + 28}')
    fine(3, '3a_wr')
    A('s_waitcnt lgkmcnt(0)\ns_barrier')
    fine(3, '3b_bar')
    OPA = 24
    DRE, DIM = 40, 56
    for u in range(4):
        A(f'ds_read_b128 {vr(OPA + 4 * u, 4)}, v{aRA} offset:{32 * u}')
    mo = []
    for v, dst in enumerate((K3_GA, K3_SB, K3_CB)):
        for k in range(4):
            mo.append(f'ds_read_b128 {vr(dst + 4 * k, 4)}, v{aMO} offset:{2560 * v + 1024 * (k >> 1) + 16 * (k & 1)}')
        mo.append(f'ds_read_b128 {vr(dst + 16, 4)}, v{aMO + 1} offset:{2560 * v + 2048}')
    for u in range(4):
        A(f'v_mfma_f32_32x32x16_bf16 {vr(DRE, 16)}, {vr(OPA + 4 * u, 4)}, {vr(K3_MA + 4 * u, 4)}, {vr(DRE, 16) if u else 0}')
        A(mo.pop(0))
        A(mo.pop(0))
        A(f'v_mfma_f32_32x32x16_bf16 {vr(DIM, 16)}, {vr(OPA + 4 * u, 4)}, {vr(K3_MA + 16 + 4 * u, 4)}, {vr(DIM, 16) if u else 0}')
        if u:
            A(mo.pop(0))
            A(mo.pop(0))
    A(mo.pop(0))
    fine(3, '3c_stA')
    OPB = 72
    E0, E1 = 100, 116
    def cvb(tau):
        for jj in range(4):
            A(f'v_cvt_pk_bf16_f32 v{OPB + 4 * tau + jj}, v{DRE + 4 * tau + jj}, v{DIM + 4 * tau + jj}')
    cvb(0)
    for tau in range(3):
        A(f'v_mfma_f32_32x32x16_bf16 {vr(E0, 16)}, {vr(K3_MB + 4 * tau, 4)}, {vr(OPB + 4 * tau, 4)}, {vr(E0, 16) if tau else 0}')
        if tau < 2:
            cvb(tau + 1)
            A('s_nop 1')
    for tau in range(3):
        A(f'v_mfma_f32_32x32x16_bf16 {vr(E1, 16)}, {vr(K3_MB + 12 + 4 * tau, 4)}, {vr(OPB + 4 * tau, 4)}, {vr(E1, 16) if tau else 0}')
        if tau < 2:
            A('s_nop 4')
    fine(3, '3d_stB')
    for a in range(5):
        e = E0 + 4 * a
        A(f'v_cvt_pk_bf16_f32 v{24 + 2 * a}, v{e}, v{e + 1}')
        A(f'v_cvt_pk_bf16_f32 v{25 + 2 * a}, v{e + 2}, v{e + 3}')
        A(f'ds_write2st64_b32 v{aYA + a}, v{24 + 2 * a}, v{25 + 2 * a} offset0:0 offset1:10')
    fine(3, '3e_wr')
    A('s_waitcnt lgkmcnt(0)\ns_barrier')
    fine(3, '3f_bar')
    Y = 40
    for k in range(4):
        A(f'ds_read_b128 {vr(Y + 4 * k, 4)}, v{aYR} offset:{1024 * (k >> 1) + 16 * (k & 1)}')
    A(f'ds_read_b128 {vr(Y + 16, 4)}, v{aYR + 1} offset:2048')
    fine(3, '3g_rd')
    PK = X1P
    for k in range(10):
        A(f'v_perm_b32 v{Y + 2 * k}, v{Y + 2 * k}, v{Y + 2 * k}, v{aSEL}')
        A(f'v_perm_b32 v{Y + 2 * k + 1}, v{Y + 2 * k + 1}, v{Y + 2 * k + 1}, v{aSEL}')
        pk('fma', Y + 2 * k, Y + 2 * k, K3_GA + 2 * k, K3_X + 2 * k)
    X1 = A.capture(lambda: [A(f'v_cvt_pk_bf16_f32 v{PK + k}, v{Y + 2 * k}, v{Y + 2 * k + 1}') for k in range(10)])
    st = A.capture(lambda: row_stats(Y, ST3))
    n0 = 21
    A.items.extend(st[:n0])
    for i in st[n0:]:
        if X1:
            A.items.append(X1.pop(0))
        A.items.append(i)
    A.items.extend(X1)
    fine(3, '3h_st1')
    if not OPT['xl']:
        x1_store()
    fine(3, '3i_x1')
    nm = 'op_sel:[0,0,1] op_sel_hi:[1,0,1] neg_lo:[0,0,1] neg_hi:[0,0,1]'
    if not OPT['cutx'] & 2:
        for k in range(10):
            pk('fma', Y + 2 * k, Y + 2 * k, ST3, ST3, mods=nm)
            pk('fma', Y + 2 * k, Y + 2 * k, K3_CB + 2 * k, K3_SB + 2 * k)
        row_stats(Y, ST3, GA)
    fine(3, '3j_st2')
    PK = 60
    for k in range(10):
        pk('fma', Y + 2 * k, Y + 2 * k, ST3, ST3, mods=nm)
        A(f'v_cvt_pk_bf16_f32 v{PK + k}, v{Y + 2 * k}, v{Y + 2 * k + 1}')
        if k == 3:
            A(f'ds_write_b128 v{aRW}, {vr(PK, 4)}')
        if k == 7:
            A(f'ds_write_b128 v{aRW}, {vr(PK + 4, 4)} offset:4096')
    A(f'ds_write_b64 v{aRW + 1}, {vr(PK + 8, 2)}')


def k3_tail():
    fine(3, '3k_wr')
    A('s_waitcnt lgkmcnt(0)\ns_barrier')
    fine(3, '3l_bar')
    for i in range(3):
        A(f'ds_read_b128 {vr(24 + 4 * i, 4)}, v{aRR} offset:{4096 * i}')
    for i in range(3):
        A(f'buffer_store_dwordx4 {vr(24 + 4 * i, 4)}, v{vLY}, {srd(S_WS)}, s{sST + i} offen{YSC}')


G1_A = 24
G1_ACC = 184
G1_B = 232
NS, PRE = 4, 3
aB, aPW, aPR, vH4, vG1A, vGC, vT1 = 8, 12, 16, 18, 20, 22, 23
vG1X = 18
B1RAW = 132
sHB = 72
NB = OPT['nb']
PARTS = [[(ks, tl) for ks in range(20) for tl in range(6 if ks % 5 < NB else 4)], [(ks, tl) for ks in range(20) if ks % 5 >= NB for tl in (4, 5)]]
assert sum(SWB[:10]) >= 2 * NB
aBB = 254


def b1_issue():
    A(f"""s_mul_i32 s{sBG2}, s{sJ}, 192
    v_lshlrev_b32 v{vBG}, 3, v{vQ}""")
    for k in range(6):
        A(f'buffer_load_dwordx2 {vr(B1RAW + 2 * k, 2)}, v{vBG}, {srd(S_B1)}, s{sBG2} offen offset:{32 * k}')


def g1_load(i):
    ks, r = divmod(i, 2)
    pre = f's_add_u32 s{sLD}, s{sLD}, {BS}\n' if i and i % 4 == 0 else ''
    return pre + f'buffer_load_dwordx4 {vr(G1_A + 4 * i, 4)}, v{(vG1A if ks & 1 else vG1X) + r}, {srd(S_WS)}, s{sLD} offen offset:{512 * (ks & 1)} sc1'


def g1_rd(part, n):
    ks, tl = PARTS[part][n]
    s = G1_B + 4 * (n % NS)
    off = BIG + 30720 * ((ks // 5) & 1)
    if tl >= 4:
        return [f'ds_read_b128 {vr(s, 4)}, v{vL16 if ks < 10 else aBB} offset:{off + 20480 + 1024 * (2 * (ks % 5) + tl - 4)}']
    off += 4096 * (ks % 5)
    out = [f'ds_read_b64_tr_b16 {vr(s, 2)}, v{aB + tl} offset:{off}', f'ds_read_b64_tr_b16 {vr(s + 2, 2)}, v{aB + tl} offset:{off + 512}']
    if ks == 9:
        out[1] += f'\nv_add_u32 v{aB + tl}, 61440, v{aB + tl}'
    return out


def g1_bias():
    A(f's_mov_b32 s{sT2}, {L_B1}\nv_lshl_add_u32 v14, v{vQ}, 4, s{sT2}')
    for tl in range(6):
        for r in range(2):
            A(f'ds_read_b128 {vr(G1_ACC + 8 * tl + 4 * r, 4)}, v14 offset:{64 * tl}')


def g1_pre():
    t = 12
    A(f"""v_lshrrev_b32 v{t}, 3, v{vL15}
    v_mul_u32_u24 v{t}, {10 * BS}, v{t}
    v_lshl_add_u32 v{t}, v{vQ}, 7, v{t}
    v_and_b32 v{t + 1}, 7, v{vL}
    v_lshl_add_u32 v{vG1A}, v{t + 1}, 4, v{t}
    v_add_u32 v{vG1A + 1}, {20 * BS}, v{vG1A}
    v_mov_b32 v{t}, {SKIP if OPT['sk'] & 4 else 0}
    v_cmp_eq_u32 vcc, 3, v{vQ}
    v_cndmask_b32 v{t}, 0, v{t}, vcc
    v_add_u32 v{vG1X}, v{t}, v{vG1A}
    v_add_u32 v{vG1X + 1}, v{t}, v{vG1A + 1}
    s_mul_i32 s{sT0}, s{sW}, {40 * BS}
    s_lshl_b32 s{sT1}, s{sCL}, 10
    s_add_u32 s{sT0}, s{sT0}, s{sT1}
    s_add_u32 s{sLD}, s{sT0}, {WS_Y2}""")
    A(f"""v_lshrrev_b32 v{t}, 2, v{vL15}
    v_lshl_add_u32 v{t}, v{vQ}, 3, v{t}
    v_lshlrev_b32 v{t}, 7, v{t}
    v_and_b32 v{t + 1}, 3, v{vL}
    v_lshl_add_u32 v{t}, v{t + 1}, 3, v{t}
    v_bfe_u32 v{t + 1}, v{vL}, 3, 2
    v_lshl_add_u32 v{aB}, v{t + 1}, 5, v{t}
    v_xor_b32 v{aB + 1}, 32, v{aB}
    v_xor_b32 v{aB + 2}, 64, v{aB}
    v_xor_b32 v{aB + 3}, 96, v{aB}
    v_add_u32 v{aBB}, 61440, v{vL16}""")


def g1_part(part, side):
    fr = PARTS[part]
    for n, (ks, tl) in enumerate(fr):
        rd = g1_rd(part, n + PRE) if n + PRE < len(fr) else []
        for r in range(2):
            acc = vr(G1_ACC + 8 * tl + 4 * r, 4)
            A(f'v_mfma_f32_16x16x32_bf16 {acc}, {vr(G1_B + 4 * (n % NS), 4)}, {vr(G1_A + 4 * (2 * ks + r), 4)}, {acc}')
            if r < len(rd):
                A(rd[r])
        for x in side.get(n, []):
            if callable(x):
                x()
            else:
                A.items.extend(x)


def place(side, groups, lo, hi):
    for k, g in enumerate(groups):
        side.setdefault(lo + (hi - lo) * k // max(len(groups), 1), []).append(g)


def late_addr():
    t = vT1
    if OPT['hr']:
        A(f'''s_and_b32 s{sDW}, s{sJ}, {[0, 1, 1, 3][OPT['hr']]}
        s_lshl_b32 s{sDW}, s{sDW}, {[0, 1, 0, 0][OPT['hr']]}
        s_add_u32 s{sDW}, s{sDW}, s{sW}
        s_and_b32 s{sDW}, s{sDW}, 3''')
    A(f"""s_mul_i32 s{sST}, s{sCL}, 393216
    s_add_u32 s{sST}, s{sST}, {WS_H}
    s_lshr_b32 s{sT0}, s{sJ}, 3
    s_mul_i32 s{sT0}, s{sT0}, {4 * 48 * 1024}
    s_add_u32 s{sT0}, s{sT0}, s{sST}
    s_mul_i32 s{sT1}, s{sW}, {12 * 1024}
    s_add_u32 s{sT0}, s{sT0}, s{sT1}
    s_mul_i32 s{sT1}, s{sW}, {96 * 1024}
    s_add_u32 s{sST}, s{sST}, s{sT1}
    s_mul_i32 s{sT1}, s{sJ}, 3072
    s_add_u32 s{sST}, s{sST}, s{sT1}
    s_add_u32 s{sST + 1}, s{sST}, {48 * 1024}
    v_mov_b32 v{vGC}, {f2u(GK / GA)}""")
    flag_prep(1)
    A(f"""v_mul_u32_u24 v{t}, {RS}, v{vL15}
    v_lshl_add_u32 v{t}, v{vQ}, 4, v{t}""")
    for blk in range(4):
        A(f"""s_add_u32 s{sT1}, s{sDW}, {blk + 1}
        s_and_b32 s{sT1}, s{sT1}, 3
        s_mul_i32 s{sT2}, s{sT1}, {48 * 1024}
        s_add_u32 s{sHB + blk}, s{sT0}, s{sT2}
        s_mul_i32 s{sT1}, s{sT1}, {4 * PS}
        s_add_u32 s{sT1}, s{sT1}, {blk * PS}
        v_add_u32 v{aPW + blk}, s{sT1}, v{t}""")
    A(f"""v_lshrrev_b32 v{aPR}, 2, v{vL}
    v_and_b32 v{vOA}, 7, v{aPR}
    v_mul_u32_u24 v{aPR}, {RS}, v{aPR}
    s_mul_i32 s{sT2}, s{sDW}, {4 * PS}
    v_add_u32 v{aPR}, s{sT2}, v{aPR}
    v_and_b32 v{t}, 3, v{vL}
    v_lshl_add_u32 v{aPR + 1}, v{t}, 4, v{aPR}
    v_lshl_add_u32 v{aPR}, v{t}, 5, v{aPR}
    s_and_b32 s{sT0}, s{sPID}, 0xf8
    s_lshl_b32 s{sT1}, s{sDW}, 1
    s_add_u32 s{sT0}, s{sT0}, s{sT1}
    s_and_b32 s{sT2}, s{sJ}, 7
    s_mul_i32 s{sT3}, s{sT2}, 160
    v_lshlrev_b32 v{vOA}, 8, v{vOA}
    v_add3_u32 v{vOA}, v{vH}, v{vOA}, s{sT0}
    v_mul_u32_u24 v{vOA}, 1280, v{vOA}
    v_add_u32 v{vOA}, s{sT3}, v{vOA}
    v_lshl_add_u32 v{vOC}, v{t}, 3, v{vOA}
    v_lshl_add_u32 v{vOA}, v{t}, 4, v{vOA}""")


def gelu_unit(u, r):
    b = G1_ACC + 16 * u + 4 * r
    regs = [b, b + 2, b + 8, b + 10]
    e = G1_B
    o = G1_B + 8 + 4 * r
    if OPT['gpre'] and u >= 1:
        e = G1_ACC
        o = G1_ACC + 8 + 4 * r
    for k, x in enumerate(regs):
        pk('fma', e + 2 * k, x, x, vGC, mods='op_sel_hi:[1,1,0]')
    for k, x in enumerate(regs):
        pk('mul', e + 2 * k, e + 2 * k, x, mods=NEG1)
    for k in range(0 if OPT['cutx'] & 4 else 8):
        A(f'v_exp_f32 v{e + k}, v{e + k}')
    for k in range(4):
        pk('add', e + 2 * k, e + 2 * k, '1.0', mods='op_sel_hi:[1,0]')
    for k in range(8):
        A(f'v_rcp_f32 v{e + k}, v{e + k}')
    for k, x in enumerate(regs):
        pk('mul', e + 2 * k, e + 2 * k, x)
    for k in range(4):
        A(f'v_cvt_pk_bf16_f32 v{o + k}, v{e + 2 * k}, v{e + 2 * k + 1}')
    A(f'buffer_store_dwordx4 {vr(o, 4)}, v{vLW}, {srd(S_WS)}, s{sST + r} offen offset:{1024 * u} sc1')


G2_H = 24
NH = 20
FINR = 104
G2_ACC = 120
G2_BASE = 200
G2_GB = 220
vOA, vOC = 248, 249
RS = 336
PS = 16 * RS
OA = OPT['oa']
G2SEQ = [(b, k) for b in range(3) for k in KA] + [(3, k) for k in KA[:OA]] + [(b, k) for b in range(3) for k in KB] + [(3, k) for k in KA[OA:] + KB]
NGA = 24 + OA
if OPT['t3']:
    assert OA <= 4
    G2SEQ = [(b, k) for b in range(3) for k in KA[:4]] + [(3, k) for k in KA[:OA]] + [(b, k) for b in range(3) for k in KA[4:]] + G2SEQ[NGA:]


def fin_issue():
    R = FINR
    A(f"""buffer_load_dwordx4 {vr(R, 4)}, v{vOA}, {srd(S_OUT)}, 0 offen sc1
    buffer_load_dwordx4 {vr(R + 4, 4)}, v{vOA}, {srd(S_OUT)}, 0 offen offset:64 sc1
    buffer_load_dwordx2 {vr(R + 8, 2)}, v{vOC}, {srd(S_OUT)}, 0 offen offset:128 sc1""")


def fin_finish():
    t = vG1A
    A(f"""v_and_b32 v{t}, 3, v{vL}
    v_lshlrev_b32 v{t + 1}, 4, v{t}
    v_add_u32 v{t + 1}, {L_M2 + 7680}, v{t + 1}
    v_lshl_add_u32 v{t}, v{t}, 4, v{t + 1}""")
    for dst, off in ((G2_BASE, 528), (G2_GB, 0)):
        for k in range(4):
            A(f'ds_read_b128 {vr(dst + 4 * k, 4)}, v{t} offset:{off + 128 * (k >> 1) + 16 * (k & 1)}')
        A(f'ds_read_b128 {vr(dst + 16, 4)}, v{t + 1} offset:{off + 256}')
    for k in range(10):
        unpack(114, 115, FINR + k)
        A(f'v_add_f32 v{G2_BASE + 2 * k}, v114, v{G2_BASE + 2 * k}')
        A(f'v_add_f32 v{G2_BASE + 2 * k + 1}, v115, v{G2_BASE + 2 * k + 1}')


def g2_load(n):
    blk, kl = G2SEQ[n]
    return f'buffer_load_dwordx4 {vr(G2_H + 4 * (n % NH), 4)}, v{[vLW, vH4, vH4 + 1][kl // 4]}, {srd(S_WS)}, s{sHB + blk} offen offset:{1024 * (kl % 4)} sc1'


def g2_main(nxt, bg):
    LA = OPT['la2']

    def rdp(dst, slot):
        out = [f'ds_read_b128 {vr(dst + 4 * k, 4)}, v{aPR} offset:{slot * PS + 128 * (k >> 1) + 16 * (k & 1)}' for k in range(4)]
        out.append(f'ds_read_b128 {vr(dst + 16, 4)}, v{aPR + 1} offset:{slot * PS + 256}')
        return out
    side = {}

    def put(pos, x):
        side.setdefault(pos, []).append(x)
    place(side, bg, 2, 5 * (NGA - 8))
    f0 = 30 if OPT['xq'] else 6
    if OPT['xl']:
        place(side, A.groups(fin_issue), 7, 37)
        f0 = 66
    for k, x in enumerate(A.capture(fin_finish)):
        put(f0 + k + k // 4, [x])
    put(OPT['pb'], lambda: flag_publish(2))
    put(OPT['qb'], lambda: A(flag_ld(2)))
    put(OPT['cb'], lambda: (flag_check(2), stamp('hb')))
    m0 = 5 * NGA
    sp = OPT['wsp']
    for b in range(3):
        for nt in range(5):
            put(m0 + 20 * (b + 1) + 3 + sp * nt, lambda b=b, nt=nt: A(f'ds_write_b128 v{aPW + b}, {vr(G2_ACC + 20 * b + 4 * nt, 4)} offset:{64 * nt}'))
    m1 = m0 + 60 + 4 * sp + 7
    put(m1, lambda: A('s_waitcnt lgkmcnt(0)\ns_barrier'))
    pos = m1
    for sl in range(3):
        for x in rdp(G2_ACC + 20 * sl, sl):
            put(min(pos, 239), lambda x=x: A(x))
            pos += 1 if sl else 0
        pos += 0 if sl else 1
    ops = [f'v_fmac_f32 v{G2_BASE + k}, v{G2_GB + k}, v{G2_ACC + 20 * sl + k}' for sl in range(3) for k in range(20)]
    for p_ in range(m1 + 6, 240):
        n_ = 1 if p_ < m1 + 11 else 2
        for x in ops[:n_]:
            put(p_, lambda x=x: A(x))
        ops = ops[n_:]
    pa = G2_ACC + 60
    own = [f'ds_write_b128 v{aPW + 3}, {vr(pa + 4 * nt, 4)} offset:{64 * nt}' for nt in range(5)]
    order = [(n, nt) for n in range(48) for nt in range(5)]
    if OPT['pt']:
        order = order[:220] + [(n, nt) for nt in range(5) for n in range(44, 48)]
        for nt in range(3):
            put(227 + 4 * nt + 3, lambda x=own[nt]: A(x))
        own = own[3:]
    seen = set()
    for m, (n, nt) in enumerate(order):
        blk, kl = G2SEQ[n]
        acc = G2_ACC + 20 * blk
        assert nxt > n
        A(f'v_mfma_f32_16x16x32_bf16 {vr(acc + 4 * nt, 4)}, {ar((kl * 5 + nt) * 4, 4)}, {vr(G2_H + 4 * (n % NH), 4)}, {vr(acc + 4 * nt, 4) if (blk, nt) in seen else 0}')
        seen.add((blk, nt))
        for x in side.get(m, []):
            if callable(x):
                x()
            else:
                A.items.extend(x)
        if nt in (0, 3) and nxt < 48 and nxt <= n + LA and nxt - NH < n and (nxt < NGA or m >= OPT['cb']):
            A(g2_load(nxt))
            nxt += 1
    stamp('g2')
    A(own.pop(0))
    for x in ops:
        A(x)
    for x in own:
        A(x)
    R = G2_ACC
    for x in rdp(R, 3):
        A(x)
    for k in range(10):
        pk('fma', R + 2 * k, R + 2 * k, G2_GB + 2 * k, G2_BASE + 2 * k)
        A(f'v_cvt_pk_bf16_f32 v{R + 20 + k}, v{R + 2 * k}, v{R + 2 * k + 1}')
        if k == 3:
            A(f'buffer_store_dwordx4 {vr(R + 20, 4)}, v{vOA}, {srd(S_OUT)}, 0 offen{OSC}')
        if k == 7:
            A(f'buffer_store_dwordx4 {vr(R + 24, 4)}, v{vOA}, {srd(S_OUT)}, 0 offen offset:64{OSC}')
    A(f'buffer_store_dwordx2 {vr(R + 28, 2)}, v{vOC}, {srd(S_OUT)}, 0 offen offset:128{OSC}')


def mlp(slot):
    A.spread(A.capture(seq(g1_bias, g1_pre)), slot(9), 0, 0.9)
    flag_publish(0)
    stamp('pub0')
    A(flag_ld(0))
    if OPT['xl']:
        x1_store()
    A('s_barrier')
    for n in range(PRE):
        A('\n'.join(g1_rd(0, n)))
    flag_check(0)
    stamp('y2')
    LA = OPT['la1']
    for i in range(LA):
        A(g1_load(i))
    side = {}
    n0, n1 = len(PARTS[0]), len(PARTS[1])
    for i in range(LA, 40):
        side.setdefault((i - LA) * OPT['r1'] * n0 // 800, []).append(lambda i=i: A(g1_load(i)))
    place(side, [[x] for x in A.capture(late_addr)], 0, n0 - 2)
    place(side, slot(10), OPT['g1s'] * n0 // 80, n0)
    g1_part(0, side)
    A('s_barrier')
    stamp('g1a')
    A.spread(A.capture(lambda: [gelu_unit(u, r) for u in range(2) for r in range(2)]), slot(11), 0, OPT['gae'] / 100)
    held = []
    if OPT['gpre']:
        cutg = len(A.items) - 22
        assert not any(x.kind == 'vmem' and x.lds for x in A.items[cutg:])
        held = A.items[cutg:]
        del A.items[cutg:]
    A(f'''v_add_u32 v{vH4}, 4096, v{vLW}
    v_add_u32 v{vH4 + 1}, 8192, v{vLW}''')
    if SWB[10] + SWB[11]:
        A(f"s_waitcnt vmcnt({after_last(lambda x: ' lds' in x.text)})\ns_barrier")
    for n in range(PRE):
        A(g1_rd(1, n)[0])
    A.items.extend(held)
    stamp('gelua')
    side = {}
    LA = OPT['la2']
    hl = [A.capture(lambda n=n: A(g2_load(n))) for n in range(max(LA, OPT['n3'] if OPT['t3'] else 0))]
    nh = len(hl)
    if OPT['t3']:
        assert OPT['p3'] < OPT['q3'] < OPT['c3'] < OPT['qa'] and OPT['n3'] <= 12 + OA
        side.setdefault(OPT['p3'], []).append(lambda: flag_publish(3))
        side.setdefault(OPT['q3'], []).append(lambda: A(flag_ld(3)))
        side.setdefault(OPT['c3'], []).append(lambda: flag_check(3))
        place(side, hl[:OPT['n3']], OPT['c3'] + 1, n1)
        hl = hl[OPT['n3']:]
    place(side, slot(12), 0, (OPT['q3'] if OPT['t3'] else OPT['qa']) - 4)
    if not OPT['xl'] and not OPT['xq']:
        place(side, A.groups(fin_issue), max(OPT['fq'] * n1 // 40, max(k for k, x in enumerate(PARTS[1]) if x[0] <= 11) + 1), n1 - 2)
    side.setdefault(OPT['pa'], []).append(lambda: flag_publish(1))
    side.setdefault(OPT['qa'], []).append(lambda: A(flag_ld(1)))
    g1_part(1, side)
    A('s_barrier')
    stamp('g1b')
    bg = slot(13) + (A.groups(fin_issue) if OPT['xq'] else [])
    for r in range(2):
        if OPT['ca'] == r:
            flag_check(1)
            stamp('ha')
        k = 0 if r < OPT['ca'] else (len(hl) if r else len(hl) // 2)
        A.spread(A.capture(lambda: gelu_unit(2, r)), (bg if r == 0 else []) + hl[:k], 0, 0.9)
        hl = hl[k:]
    if OPT['ca'] == 2:
        flag_check(1)
        stamp('ha')
        A.emit(hl)
    stamp('gelub')
    g2_main(nh, slot(14))


def seq(*fns):
    def f():
        for x in fns:
            x()
    return f


def weave(bit, fg, bg, lo, hi):
    if OPT['gp'] & bit:
        A.gaps(fg, bg, lo, hi, OPT['gs'])
    else:
        A.spread(fg, bg, lo, hi)


def program():
    if OPT['fixed']:
        A('s_memrealtime s[98:99]')
    if OPT['stamps']:
        A('v_mov_b32 v255, 0')
    stamp('start')
    if OPT['lean']:
        setup_lean()
    else:
        setup()
    gemv_store_addr()
    if not OPT['cpf'] and not OPT['lean']:
        code_prefetch(30 * 1024)
    Q = {}

    def slot(k):
        out = []
        for name, cnt in (('F', SF), ('W1', SW1), ('WB', SWB), ('W2', SW2)):
            if cnt[k]:
                if not (OPT['nobg'] >> ['F', 'W1', 'W2', 'WB'].index(name)) & 1:
                    out += Q[name][:cnt[k]]
                Q[name] = Q[name][cnt[k]:]
        if k == OPT['dslot']:
            out = [g if n < len(out) - OPT['dn'] else [x for x in g if x.kind != 'vmem'] for n, g in enumerate(out)]
            out = out[:len(out) - OPT['dn']] + [sum(out[len(out) - OPT['dn']:], [])]
        return out
    Q['F'] = A.groups(filt_dma)
    Q['W1'] = A.groups(w1_dma)
    Q['WB'] = A.groups(wb_dma)
    Q['W2'] = A.groups(w2_load)
    steps = dict(X=x1_issue, R=roles if OPT['late'] in (3, 4) else seq(roles, fmt_prep, fmt_addr), U=fmt_issue, T=touch, A=(lambda: None) if OPT['cutx'] & 16 else k1_const_a, B=k1_const_b, S=seq(silu, lambda: stamp('silu')),
                 G=seq(lambda: gemv_compute(G_W, sMODST), lambda: stamp('gemv')), I=xid_store, f=seq(filt_prep, w1_prep), K=seq(k1_addr, side_prep, lambda: srd_tail(S_B1, S_B2, S_OUT) if OPT['lean'] else None), F=fmt_finish,
                 L=lambda: A.spread(A.capture(ln1), slot(0), 0, 0.6), Y=x_keep)
    p0a, p0b = OPT['p0'].split('M')
    assert SF[0] + SW1[0] == 0 or p0a.index('f') < p0a.index('L')
    assert sorted(OPT['p0']) == sorted('XRUASGTIfKFLM') and all(c in p0a for c in 'RUSGIKF')
    for c in p0a:
        if not (c == 'X' and (OPT['xfirst'] or OPT['lean'])) and not (c == 'F' and OPT['late']) and not (c == 'U' and 0 < OPT['late'] < 9):
            steps[c]()
    LU = [A.groups(fmt_issue) if OPT['late'] == k else [] for k in range(4)]
    TW = [A.groups(touch_w) if OPT['tw'] == k else [] for k in range(4)]
    stamp('Miss')
    A(mod1_loads())
    m2 = A.groups(seq(b2_issue, lambda: A(side_loads())))
    M2 = [m2 if OPT['m2'] == k else [] for k in range(7)]
    fq = A.capture(seq(x_keep, k1_const_b, k1_addr2))
    nf = len(fq) * OPT['fk'] // 100
    A.spread(A.capture(seq(*[steps[c] for c in p0b])) + fq[:nf], (LU[1] + slot(1) if OPT['uf'] else slot(1) + LU[1]) + TW[1] + M2[1], 0.1, 0.9)
    k1_poll()
    k1 = A.merge(A.capture(seq(k1_head, k1_main)), fq[nf:])
    cut0 = min(i for i, x in enumerate(k1) if x.op == 's_barrier') + 1
    A.items.extend(k1[:cut0])
    k0 = len(A.items)
    weave(1, k1[cut0:], slot(2) + TW[2] + LU[2] + M2[2], OPT['k1s'] / 100, OPT['k1e'] / 100)
    if OPT['lf'] == 2:
        tail = A.items[k0:]
        mf = [k for k, x in enumerate(tail) if x.kind == 'mfma']
        body = A.capture(fmt_body)
        p1 = OPT['fp'] // 10
        A.items = A.items[:k0] + tail[:mf[p1] + 1]
        A(f's_waitcnt vmcnt({after_last(lambda x: srd(S_W2) in x.text and x.lds)})')
        parts = [body[0:4], body[4:8], [], body[8:9], body[9:10], body[10:11], body[11:12]]
        for n, part in enumerate(parts):
            A.items.extend(part)
            A.items.extend(tail[mf[p1 + n] + 1:mf[p1 + n + 1] + 1])
        A.items.extend(tail[mf[p1 + len(parts)] + 1:])
    stamp('k1')
    if OPT['late'] in (3, 4):
        fmt_prep()
        fmt_addr()
    A.spread(A.capture(seq(k2_const, k2_addr)), LU[3] + slot(3) + TW[3] + M2[3], 0, OPT['s3e'] / 100)
    if OPT['late'] and not OPT['lf']:
        fmt_finish()
    A(f's_waitcnt vmcnt({after_last(lambda x: srd(S_WI) in x.text and x.lds)})\ns_barrier')

    def cut_at(rest, pct):
        c = len(rest) * pct // 100
        lab = [k for k, x in enumerate(rest) if x.kind == 'label']
        if lab and lab[0] < c <= lab[-1]:
            c = lab[-1] + 1
        return c
    early = OPT['m2'] < 5
    rest = A.capture(seq(filt_finish, *([side_finish] if early else [])))
    cutd = cut_at(rest, OPT['td'])
    A.items.extend(rest[:cutd])
    stamp('Tiss')
    A(k2_loads())
    if OPT['late'] == 4:
        fmt_issue()
    A.items.extend(rest[cutd:])
    if OPT['lf'] == 1:
        fmt_finish()
    mark = len(A.items)
    if OPT['lf'] != 3:
        w_prep()
    A.emit(slot(4))
    k2_head()
    k2 = A.capture(k2_main)
    if OPT['lf'] == 3:
        mf = [k for k, x in enumerate(k2) if x.kind == 'mfma']
        body = A.capture(fmt_body)
        A.items.extend(k2[:mf[0] + 1])
        A(f's_waitcnt vmcnt({after_last(lambda x: srd(S_W2) in x.text and x.lds)})')
        for n in range(4):
            A.items.extend(body[2 * n:2 * n + 2] + k2[mf[n] + 1:mf[n + 1] + 1])
        A.spread(k2[mf[4] + 1:mf[7]], [[x] for x in body[8:]], 0.2, 1.0)
        mark = len(A.items)
        w_prep()
        k2 = k2[mf[7]:]
    weave(2, k2, slot(5) + A.groups(seq(xid_load, epoch_store)) + M2[5], 0, OPT['k2e'] / 100)
    if OPT['lf'] in (1, 3):
        ib = max(k for k, x in enumerate(A.items) if x.op == 's_barrier')
        A.items[ib:ib] = A.capture(lambda n=nvm(A.items[mark:ib]): A(f's_waitcnt vmcnt({n})'))
    stamp('k2')
    A.spread(A.capture(seq(k3_const, k3_ldaddr)), slot(6) + M2[6], 0, OPT['s6e'] / 100)
    rest = A.capture(seq(*([] if early else [side_finish]), k3_addr, xid_check, lambda: flag_prep(0)))
    cutd = cut_at(rest, OPT['tpd'])
    A.items.extend(rest[:cutd])
    stamp('Tpiss')
    A(k3_loads())
    A.spread(rest[cutd:], slot(7), 0.3, 1.0)
    k3_poll()
    k3 = A.capture(k3_main)
    bg = slot(8)
    if OPT['late']:
        cut0 = min(i for i, x in enumerate(k3) if x.op == 's_barrier') + 1
        n0 = min(SW1[8], len(bg) // 4)
        A.spread(k3[:cut0], bg[:n0])
        A.spread(k3[cut0:], bg[n0:], 0, OPT['k3e'] / 100)
    else:
        weave(4, k3, bg, 0, OPT['k3e'] / 100)
    k3_tail()
    stamp('k3')
    mlp(slot)
    stamp('end')
    if OPT['stamps']:
        A(f'''s_lshl_b32 s{sT0}, s{sME}, 10
        s_lshl_b32 s{sT1}, s{sW}, 8
        s_add_u32 s{sT0}, s{sT0}, s{sT1}
        s_add_u32 s{sT0}, s{sT0}, {WS_STAMP}
        v_writelane_b32 v255, s{sCNT}, 63
        v_writelane_b32 v255, s{sFAST}, 31
        v_lshlrev_b32 v{TMP}, 2, v{vL}
        buffer_store_dword v255, v{TMP}, {srd(S_WS)}, s{sT0} offen
        ''')
    if OPT['fixed']:
        if OPT['clean']:
            A('s_waitcnt vmcnt(0)\ns_barrier\nbuffer_wbl2 sc1\ns_waitcnt vmcnt(0)')
        if OPT['probe'] >= 0:
            A(f's_mul_i32 s97, s97, 4\ns_add_u32 s97, s97, {OPT["fixed"]}')
        else:
            A(f's_mov_b32 s97, {OPT["fixed"]}')
        A('''L_fix:
        s_memrealtime s[100:101]
        s_waitcnt lgkmcnt(0)
        s_sub_u32 s100, s100, s98
        s_cmp_lt_u32 s100, s97
        s_cbranch_scc1 L_fix''')
    A('L_end:')
    A('s_endpgm')


program()
hdr = open('cdna_kernels/%s.s.ref' % NAME).read().split('; Override launch')[0]
out = hdr
out += f'; @launch grid=(256,1,1) block=(256,1,1) lds={LDS_SIZE}\n'
out += f'''.amdgcn_target "amdgcn-amd-amdhsa--gfx950"
.text
.globl {NAME}_kernel
.p2align 8
.type {NAME}_kernel,@function
{NAME}_kernel:
'''
out += A.text()
out += RETRY.text()
out += f'''L_last:
    s_endpgm
.section .rodata,"a"
.p2align 6
.amdhsa_kernel {NAME}_kernel
  .amdhsa_next_free_vgpr 512
  .amdhsa_next_free_sgpr 102
  .amdhsa_accum_offset 256
  .amdhsa_group_segment_fixed_size 0
  .amdhsa_kernarg_size 104
  .amdhsa_user_sgpr_count 2
  .amdhsa_user_sgpr_kernarg_segment_ptr 1
  .amdhsa_system_sgpr_workgroup_id_x 1
.end_amdhsa_kernel
'''
open(sys.argv[1], 'w').write(out)
if OPT['stamps']:
    open(sys.argv[1] + '.stamps', 'w').write('\n'.join(STAMPS))
```

```python
import sys, os
sys.path.insert(0, os.path.dirname(os.path.abspath(__file__)))
from asmlib import Asm, vr, ar, sr, f2u

NAME = 'adaLN_cond__spectral_gfnet__mixer_channel_mlp__prompt'
OPT = dict(stamps=0, fixed=0, probe=-1, slow=0, fine=0, clean=0, nobg=0, mask=1, x1sc=1, bs=128, xfirst=0, um=0,
           p0='XRUSGTIfKFLMA', m2=2, late=0, fk=30, g1=56, g2=48, g3=40, smart=0, tc=0, k1s=0, tw=0, lf=0, osc=0, ysc=0, inl=0, bo=0, bf=0, now=0, fp=45, uf=1, ua=1, sk=0, cutx=0, hr=0, dslot=-1, dn=0, gp=0, gs=250, xl=0, wsp=2, pt=1, gpre=0, cpf=0, lean=1, nb=0, t3=0, p3=10, q3=17, c3=25, n3=8, xq=0, mc=1, mo=1, ys=1, sn=0, sd=0, ht=0, hs=0, hl=60, hs2=0, hl2=60, kc=100, hn=12, pw=0, pwo=0, pp=0, hf=0, emu=0, xs=80, fs=80,
           F='1,3,2,0', W1='0,0,4,4,0,8,0,4,0,0', WB='0,0,0,0,0,10,0', W2='8,4,0,30,2,2,3,8,0,3',
           td=50, tpd=50, la1=9, la2=8, k1e=80, k2e=82, k3e=85, s3e=55, s6e=40, g1s=50, gae=100, fq=28,
           pa=22, qa=32, oa=0, pb=24, qb=46, cb=78, r1=16, ca=1)
for a in sys.argv[2:]:
    k, v = a.split('=')
    assert k in OPT, k
    OPT[k] = v if isinstance(OPT[k], str) else int(v)
SF = [int(x) for x in OPT['F'].split(',')] + [0] * 11
SW1 = [int(x) for x in OPT['W1'].split(',')] + [0] * 5
SWB = [0] * 5 + [int(x) for x in OPT['WB'].split(',')] + [0] * 3
SW2 = [0] * 5 + [int(x) for x in OPT['W2'].split(',')]
assert sum(SF) == 6 and sum(SW1) == 20 and sum(SWB) == 10 and sum(SW2) == 60
assert OPT['bs'] % 8 == 0 or not OPT['sk'] & 6
assert OPT['sk'] == 0 and OPT['pa'] < OPT['qa'] < 40 - 8 * OPT['nb']
assert SW2[14] <= 20 and sum(SW1[:2]) <= 14
assert not OPT['late'] or sum(SW2[:8]) + sum(SWB[:8]) == 0
OPT.update(spread=1, two=0, ub=0, rot=0)

WS_EPOCH = 0x0
WS_XID = 0x400
WS_HINT = 0x2000
WS_FLAG = 0x8000
WS_MOD = 0x10000
MP = 15360
BS = 128 * OPT['bs']
WS_T = 0x100000
WS_TP = WS_T + 256 * BS
WS_Y2 = WS_T
WS_H = 0xA00000
WS_W1P = 0x1200000
WS_W2P = 0x1440000
WS_STAMP = 0x1800000
WS_SIZE = 268435456
SKIP = 0x2000000 + 128
OOB = 0x7ff00000

BIG = 0
B_N, B_W1, B_W2, B_F = 15360, 20480, 22528, 24576
SCR = 122880
L_X1E = SCR
L_M1 = SCR + 24576
L_K2I = SCR + 24576
L_K2O = SCR
L_M2 = SCR + 12416
L_B1 = L_M2 + 9216
L_K3I = SCR + 24576
L_Y = SCR
L_Y2 = SCR + 24576
LDS_SIZE = 163840

S_X, S_WR, S_WI, S_W1, S_B1, S_W2, S_B2, S_C, S_WM, S_OUT, S_WS = [4 + 4 * i for i in range(11)]
sME, sW, sTAG, sXC, sG, sK1, sCL, sJ = range(48, 56)
sT0, sT1, sT2, sT3, sT4, sT5, sT6, sT7 = range(56, 64)
sM1, sM2 = 64, 66
sMODST, sW2ST, sFSH = 68, 69, 70
sPID = sME
sTB = 72
sLD = 76
sST = 80
sW2O = 84
sWB = 85
sDW = 70 if OPT['hr'] else 49
sW1O, sW1E = 90, 91
sBGO, sBG2 = 92, 93
sXID, sFAST, sCNT = 94, 95, 96
sSTAMP = 98

OSC = ['', ' sc1', ' nt', ' sc0 sc1'][OPT['osc']]
YSC = ['', ' sc1', ' nt'][OPT['ysc']]
A = Asm()
A.smart = bool(OPT['smart'])
RETRY = Asm()
nstamp = [0]
STAMPS = []


def srd(s):
    return sr(s, 4)


NOTES = dict(
    start='set-up; loads of c, w_mod (K split in four), x; weight formatting units',
    silu='modulation GEMV: partial sums, published with the launch tag in their low bytes',
    gemv='LayerNorm 1 statistics, operand exchange, address set-up',
    Miss='gather shift / scale partial sums',
    mod1='phase 1: modulate, DFT over (d mod 5, 8 rows), DFT-32, radix-4; publish T',
    k1='constants of phase 2, filter, late modulation vectors',
    Tiss='gather T',
    T='phase 2: 256-point FFT along the sequence, filter, inverse; publish T2',
    k2='constants of phase 3',
    Tpiss='gather T2',
    Tp='phase 3: inverse row transform, residual, LayerNorm 2, modulate, LayerNorm 3; publish y2',
    k3='hand-off of y2 inside the cluster of 16 workgroups',
    y2='GEMM1, first 64 hidden columns',
    g1a='gelu, publish h (first group)',
    gelua='GEMM1, last 32 hidden columns',
    g1b='gelu, publish h (second group)',
    gelub='GEMM2 (K split over the waves, reduced through LDS)',
    g2='output')


def stamp(name):
    if name in NOTES:
        A('; ---- ' + NOTES[name])
    if OPT['stamps'] == 3 and name not in ('start', 'end'):
        return
    if OPT['fine'] and name in ('silu', 'gemv', 'ln1', 'Tiss', 'Tpiss', 'pub0', 'y2', 'g1', 'gelu', 'pub1', 'h', 'g2'):
        return
    if not OPT['stamps']:
        if OPT['probe'] == nstamp[0]:
            A('s_memrealtime s[100:101]\ns_waitcnt lgkmcnt(0)\ns_sub_u32 s97, s100, s98')
        nstamp[0] += 1
        return
    i = nstamp[0]
    nstamp[0] += 1
    A(f'''s_memrealtime {sr(sSTAMP, 2)}
    s_memtime {sr(sSTAMP + 2, 2)}
    s_waitcnt lgkmcnt(0)
    v_writelane_b32 v255, s{sSTAMP}, {i}
    v_writelane_b32 v255, s{sSTAMP + 2}, {i + 32}''')
    STAMPS.append(name)


def fine(ph, name):
    if OPT['fine'] == ph:
        stamp(name)


def masked(loads, tagregs):
    if not OPT['mask']:
        return loads
    out = ''
    for ld, r in zip(loads.strip().split('\n'), tagregs):
        nlab[0] += 1
        out += f'v_cmp_ne_u32 vcc, s{sTAG}, v{r}\ns_cbranch_vccz L_m{nlab[0]}\ns_mov_b64 exec, vcc\n{ld}\ns_mov_b64 exec, -1\nL_m{nlab[0]}:\n'
    return out


nlab = [0]


def poll_check(label, loads, bad_cmp):
    if OPT['inl'] and label not in ('mod2', 'fl2'):
        A(f'L_pre_{label}:\ns_branch L_chk_{label}')
        A.blob(f'''L_retry_{label}:
        s_sub_u32 s{sCNT}, s{sCNT}, 1
        s_cmp_lt_i32 s{sCNT}, 0
        s_cbranch_scc1 L_ok_{label}
        {loads}
        s_waitcnt vmcnt(0)''')
        A(f'L_chk_{label}:')
        A(bad_cmp)
        A(f's_cbranch_vccnz L_retry_{label}')
        A(f'L_ok_{label}:')
        return
    A(f'L_chk_{label}:')
    A(bad_cmp)
    A(f's_cbranch_vccnz L_retry_{label}')
    A(f'L_ok_{label}:')
    RETRY('.segment')
    RETRY(f'''L_retry_{label}:
    s_sub_u32 s{sCNT}, s{sCNT}, 1
    s_cmp_lt_i32 s{sCNT}, 0
    s_cbranch_scc1 L_ok_{label}''')
    bo = OPT['bf'] if label.startswith('fl') else OPT['bo']
    if bo:
        RETRY(f's_sleep {bo}')
    RETRY(loads)
    RETRY(f'''s_waitcnt vmcnt(0)
    s_branch L_chk_{label}''')


def tagcheck(regs, tmp):
    if len(regs) == 1:
        return f'v_cmp_ne_u32 vcc, s{sTAG}, v{regs[0]}'
    s = f'v_min3_u32 v{tmp}, v{regs[0]}, v{regs[1]}, v{regs[2]}\n'
    s += f'v_max3_u32 v{tmp + 1}, v{regs[0]}, v{regs[1]}, v{regs[2]}\n'
    s += f'v_min3_u32 v{tmp}, v{tmp}, v{regs[3]}, s{sTAG}\n'
    s += f'v_max3_u32 v{tmp + 1}, v{tmp + 1}, v{regs[3]}, s{sTAG}\n'
    s += f'v_cmp_ne_u32 vcc, v{tmp}, v{tmp + 1}\n'
    return s


def sincos(ang, c, s):
    A(f'v_cos_f32 v{c}, v{ang}')
    A(f'v_sin_f32 v{s}, v{ang}')


def fmamk(d, a, k, b):
    if k == 0:
        A(f'v_mov_b32 v{d}, v{b}')
    elif k == 1:
        A(f'v_add_f32 v{d}, v{a}, v{b}')
    else:
        A(f'v_fmamk_f32 v{d}, v{a}, {f2u(k)}, v{b}')


def unpack(lo, hi, src):
    A(f'v_lshlrev_b32 v{lo}, 16, v{src}')
    A(f'v_and_b32 v{hi}, 0xffff0000, v{src}')


def mod5(d, src, tmp):
    A(f'v_mul_u32_u24 v{tmp}, 205, v{src}')
    A(f'v_lshrrev_b32 v{tmp}, 10, v{tmp}')
    A(f'v_mad_i32_i24 v{d}, v{tmp}, -5, v{src}')


def pk(op, d, *src, mods=''):
    A(f'v_pk_{op}_f32 {vr(d, 2)}, ' + ', '.join(vr(s, 2) if isinstance(s, int) else s for s in src) + (' ' + mods if mods else ''))


NEG1 = 'neg_lo:[0,1] neg_hi:[0,1]'

vL = 1
vL31, vH = 2, 3
vL15, vQ = 4, 5
vL16, vT16 = 6, 7
vLX = 254
vLW = vLX if OPT['sk'] & 1 else vL16
vLT = vLX if OPT['sk'] & 2 else vL16
vLY = vLX if OPT['sk'] & 4 else vL16
TMP = 8
vW1 = 240
vXID = 243
vBG = 244
vFL = 250


SIZES = {S_X: 2621440, S_WR: 1314816, S_WI: 1314816, S_W1: 1966080, S_B1: 3072, S_W2: 1966080, S_B2: 1280,
         S_C: 1280, S_WM: 4915200, S_OUT: 2621440, S_WS: WS_SIZE}
KSRC = {S_X: 64, S_WR: 66, S_WI: 68, S_W1: 72, S_B1: 74, S_W2: 76, S_B2: 78, S_C: 80, S_WM: 82, S_OUT: 84, S_WS: 88}


def srd_tail(*ss):
    for s in ss:
        A(f's_mov_b32 s{s + 2}, {SIZES[s]}')
        A(f's_mov_b32 s{s + 3}, 0x00020000')


def setup_lean():
    A(f"""s_cmp_ge_u32 s2, 256
    s_cbranch_scc1 L_end
    s_load_dwordx2 {sr(S_C, 2)}, s[0:1], 64
    s_load_dwordx2 {sr(S_WM, 2)}, s[0:1], 72
    s_load_dwordx2 {sr(S_WS, 2)}, s[0:1], 96
    s_load_dwordx2 {sr(S_OUT, 2)}, s[0:1], 80
    s_load_dwordx16 s[64:79], s[0:1], 0
    v_lshrrev_b32 v{TMP}, 6, v0
    v_and_b32 v{vL}, 63, v0
    v_readfirstlane_b32 s{sW}, v{TMP}""")
    srd_tail(S_C, S_WM)
    gemv_addr()
    A('s_waitcnt lgkmcnt(0)')
    gemv_issue()
    A(f"""s_load_dword s{sTAG}, {sr(S_WS, 2)}, {WS_EPOCH}
    s_mov_b64 {sr(S_X, 2)}, s[64:65]
    s_and_b32 s{sXC}, s2, 7
    s_lshr_b32 s{sG}, s2, 3
    s_lshl_b32 s{sME}, s{sXC}, 5
    s_or_b32 s{sME}, s{sME}, s{sG}
    v_and_b32 v{vL31}, 31, v0
    v_lshrrev_b32 v{vH}, 5, v{vL}
    v_lshlrev_b32 v{vL16}, 4, v{vL}""")
    srd_tail(S_X)
    if OPT['lean'] == 2:
        code_prefetch(0)
    x1_issue()
    if OPT['lean'] == 1:
        code_prefetch(0)
    A(f"""s_mov_b32 s{sCNT}, 200000
    v_and_b32 v{vL15}, 15, v0
    v_lshrrev_b32 v{vQ}, 4, v{vL}
    v_lshlrev_b32 v{vT16}, 4, v0""")
    for s in (S_W2, S_W1, S_WR, S_WI, S_B1, S_B2):
        A(f's_mov_b64 {sr(s, 2)}, {sr(KSRC[s], 2)}')
    srd_tail(S_W2, S_W1, S_WS, S_WR, S_WI)


def setup():
    A(f'''s_cmp_ge_u32 s2, 256
    s_cbranch_scc1 L_end
    s_load_dwordx8 s[80:87], s[0:1], 64
    s_load_dwordx2 s[88:89], s[0:1], 96
    s_load_dwordx16 s[64:79], s[0:1], 0
    s_lshr_b32 s{sG}, s2, 3''')
    if OPT['cpf']:
        code_prefetch(30 * 1024)
    A(f'''s_and_b32 s{sXC}, s2, 7
    s_lshl_b32 s{sME}, s{sXC}, 5
    s_or_b32 s{sME}, s{sME}, s{sG}
    s_mov_b32 s{sCNT}, 200000
    v_and_b32 v{vL}, 63, v0
    v_lshrrev_b32 v{TMP}, 6, v0
    v_and_b32 v{vL31}, 31, v0
    v_readfirstlane_b32 s{sW}, v{TMP}
    v_lshrrev_b32 v{vH}, 5, v{vL}
    v_and_b32 v{vL15}, 15, v0
    v_lshrrev_b32 v{vQ}, 4, v{vL}
    v_lshlrev_b32 v{vL16}, 4, v{vL}
    v_lshlrev_b32 v{vT16}, 4, v0''')
    sizes = {S_X: 2621440, S_WR: 1314816, S_WI: 1314816, S_W1: 1966080, S_B1: 3072, S_W2: 1966080, S_B2: 1280,
             S_C: 1280, S_WM: 4915200, S_OUT: 2621440, S_WS: WS_SIZE}
    for s in sizes:
        A(f's_mov_b32 s{s + 2}, {sizes[s]}')
        A(f's_mov_b32 s{s + 3}, 0x00020000')
    gemv_addr()
    A('s_waitcnt lgkmcnt(0)')
    src = {S_X: 64, S_WR: 66, S_WI: 68, S_W1: 72, S_B1: 74, S_W2: 76, S_B2: 78, S_C: 80, S_WM: 82, S_OUT: 84, S_WS: 88}
    for s in (S_WM, S_C):
        A(f's_mov_b64 {sr(s, 2)}, {sr(src[s], 2)}')
    if OPT['xfirst']:
        A(f's_mov_b64 {sr(S_X, 2)}, {sr(src[S_X], 2)}')
        x1_issue()
    gemv_issue()
    A(f's_mov_b64 {sr(S_WS, 2)}, s[88:89]')
    A(f's_load_dword s{sTAG}, {sr(S_WS, 2)}, {WS_EPOCH}')
    for s in (S_X, S_W2, S_WR, S_WI, S_W1, S_B1, S_B2, S_OUT):
        A(f's_mov_b64 {sr(s, 2)}, {sr(src[s], 2)}')


def roles():
    A(f'''s_sub_u32 s{sT0}, 8, s{sXC}
    s_and_b32 s{sT0}, s{sT0}, 7
    s_cmp_lt_u32 s{sG}, 16
    s_cselect_b32 s{sK1}, s{sXC}, s{sT0}
    s_mul_i32 s{sWB}, s{sW}, 30720''')
    A(f's_lshr_b32 s{sCL}, s{sME}, 4\ns_and_b32 s{sJ}, s{sME}, 15')
    cols(sCA, sCB, sJ)
    if OPT['sk']:
        A(f'''v_add_u32 v{vLX}, {SKIP}, v{vL16}
        s_mov_b64 vcc, 0xff000000
        v_cndmask_b32 v{vLX}, v{vL16}, v{vLX}, vcc''')


sCA, sCB = 88, 89
POS = sum(p << (2 * i) for i, p in enumerate([1, 0, 1, 2, 1, 1, 1, 1]))


def cols(da, db, j):
    A(f'''s_and_b32 s{sT5}, s{j}, 14
    s_lshr_b32 s{sT6}, {POS}, s{sT5}
    s_and_b32 s{sT6}, s{sT6}, 3
    s_mul_i32 s{sT5}, s{sT5}, 3
    s_and_b32 s{sT7}, s{j}, 1
    s_lshl_b32 s{db}, s{sT6}, 1
    s_add_u32 s{db}, s{db}, s{sT5}
    s_add_u32 s{db}, s{db}, s{sT7}
    s_lshl_b32 s{sT7}, s{sT7}, 1
    s_cmp_eq_u32 s{sT6}, s{sT7}
    s_cselect_b32 s{sT7}, 1, s{sT7}
    s_lshl_b32 s{sT7}, s{sT7}, 1
    s_add_u32 s{da}, s{sT5}, s{sT7}''')


def touch_w():
    if OPT['now'] & 2:
        return
    d = 247
    if OPT['tc'] == 0:
        A(f"""s_lshl_b32 s{sBGO}, s{sCL}, 2
        s_add_u32 s{sBGO}, s{sBGO}, s{sW}
        s_mul_i32 s{sBGO}, s{sBGO}, {10 * 48}
        s_add_u32 s{sBGO}, s{sBGO}, s{sCA}
        s_lshl_b32 s{sBGO}, s{sBGO}, 6
        v_min_u32 v{d}, 9, v{vL}
        v_mul_u32_u24 v{d}, 3072, v{d}
        buffer_load_dword v{vXID}, v{d}, {srd(S_W1)}, s{sBGO} offen""")
    else:
        A(f"""s_lshl_b32 s{sBGO}, s{sME}, 2
        s_add_u32 s{sBGO}, s{sBGO}, s{sW}
        s_mul_i32 s{sBGO}, s{sBGO}, 1920
        v_min_u32 v{d}, 14, v{vL}
        v_lshlrev_b32 v{d}, 7, v{d}
        buffer_load_dword v{vXID}, v{d}, {srd(S_W1)}, s{sBGO} offen""")
        if OPT['tc'] == 2:
            A(f'buffer_load_dword v{d}, v{d}, {srd(S_W2)}, s{sBGO} offen')


def touch():
    t = TMP
    if OPT['tw'] == 0:
        touch_w()
    A(f'''s_lshl_b32 s{sT0}, s{sG}, 2
    s_add_u32 s{sT0}, s{sT0}, s{sW}
    s_lshl_b32 s{sT0}, s{sT0}, 4
    s_add_u32 s{sT0}, s{sT0}, s{sXC}
    s_mul_i32 s{sT0}, s{sT0}, 642
    s_and_b32 s{sT0}, s{sT0}, -4
    v_min_u32 v{t}, 5, v{vL31}
    v_lshlrev_b32 v{t}, 7, v{t}
    v_mul_u32_u24 v{t + 1}, {8 * 642}, v{vH}
    v_add_u32 v{t}, v{t}, v{t + 1}
    buffer_load_dword v248, v{t}, {srd(S_WR)}, s{sT0} offen
    buffer_load_dword v249, v{t}, {srd(S_WI)}, s{sT0} offen''')


def pid_to_me(d, p, t1):
    b = {1: 0, 2: 1, 4: 2, 8: 3}[OPT['spread']]
    if b == 0:
        A(f's_mov_b32 s{d}, s{p}')
        return
    A(f'''s_lshr_b32 s{d}, s{p}, {5 + b}
    s_lshl_b32 s{d}, s{d}, {5 + b}
    s_bfe_u32 s{t1}, s{p}, {(b << 16) | (4 - b)}
    s_lshl_b32 s{t1}, s{t1}, 5
    s_or_b32 s{d}, s{d}, s{t1}
    s_bfe_u32 s{t1}, s{p}, {((1 + b) << 16) | 4}
    s_lshl_b32 s{t1}, s{t1}, {4 - b}
    s_or_b32 s{d}, s{d}, s{t1}
    s_and_b32 s{t1}, s{p}, {(1 << (4 - b)) - 1}
    s_or_b32 s{d}, s{d}, s{t1}''')


G_C = 188
vGS, vGM, vGA = 194, 195, 236
G_W2 = 216
sGW, sMODS2 = 89, 97
G_W = 32
G_ACC = 52


def gemv_addr():
    A(f'''s_cmp_lt_u32 s2, 240
    s_cselect_b32 s{sT0}, s2, 0
    s_and_b32 s{sT1}, s{sT0}, 3''')
    if OPT['um']:
        A(f'''s_bfe_u32 s{sT2}, s{sT0}, 0x10002
        s_mul_i32 s{sT2}, s{sT2}, 30
        s_lshr_b32 s{sT0}, s{sT0}, 3
        s_add_u32 s{sT0}, s{sT0}, s{sT2}''')
    else:
        A(f's_lshr_b32 s{sT0}, s{sT0}, 2')
    A(f'''    s_lshl_b32 s{sT0}, s{sT0}, 2
    s_add_u32 s{sT0}, s{sT0}, s{sW}
    s_mul_i32 s{sT2}, s{sT1}, {160 * 7680}
    s_lshl_b32 s{sT3}, s{sT0}, 5
    s_add_u32 s{sT2}, s{sT2}, s{sT3}
    s_mul_i32 s{sT4}, s{sT1}, 320
    s_mul_i32 s{sT1}, s{sT1}, {MP}
    s_lshl_b32 s{sT3}, s{sT0}, 6
    s_add_u32 s{sT5}, s{sT1}, s{sT3}
    v_lshrrev_b32 v{TMP}, 1, v{vL}
    v_lshlrev_b32 v{TMP + 1}, 1, v{TMP}
    v_lshlrev_b32 v{TMP + 3}, 3, v{TMP}
    v_mul_u32_u24 v{TMP}, 7680, v{TMP}
    v_and_b32 v{TMP + 2}, 1, v0
    v_lshlrev_b32 v{TMP + 2}, 4, v{TMP + 2}
    v_lshl_add_u32 v{vGA}, v{TMP}, 2, v{TMP + 2}
    v_add_u32 v{vGA + 2}, v{TMP}, v{TMP + 2}''')
    if OPT['two'] or OPT['ub']:
        A(f's_cmp_lt_u32 s2, 80\ns_cselect_b32 s{sT2}, s{sT2}, {OOB // 2}')


def gemv2_issue():
    for i in range(5):
        if i:
            A(f's_add_u32 s{sGW}, s{sGW}, {7680 if i < 4 else 125 * 7680}')
        A(f'buffer_load_dwordx4 {vr(G_W2 + 4 * i, 4)}, v{vGA + 2 * (i // 4)}, {srd(S_WM)}, s{sGW} offen')


def gemv_issue():
    A(f'buffer_load_dwordx2 {vr(G_C + 2, 2)}, v{TMP + 3}, {srd(S_C)}, s{sT4} offen')
    A(f'buffer_load_ushort v{G_C + 4}, v{TMP + 1}, {srd(S_C)}, s{sT4} offen offset:256')
    for i in range(5):
        A(f'buffer_load_dwordx4 {vr(G_W + 4 * i, 4)}, v{vGA + 2 * (i // 4)}, {srd(S_WM)}, s{sT2} offen')
        if i < 4:
            A(f's_add_u32 s{sT2}, s{sT2}, {7680 if i < 3 else 125 * 7680}')


def gemv_store_addr():
    A(f'''s_add_u32 s{sT5}, s{sT5}, {WS_MOD}
    s_cmp_lt_u32 s2, 240
    s_cselect_b32 s{sMODST}, s{sT5}, {OOB}''')
    if OPT['two']:
        A(f'''s_sub_u32 s{sT0}, s2, 80
        s_cmp_lt_u32 s{sT0}, 160
        s_cselect_b32 s{sMODS2}, s{sT5}, {OOB}
        s_cselect_b32 s{sMODST}, {OOB}, s{sMODST}
        s_cselect_b32 s{sW2O}, s{sT6}, {OOB // 2}''')


def silu():
    t = TMP
    unpack(G_C, G_C + 1, G_C + 2)
    unpack(G_C + 2, G_C + 3, G_C + 3)
    A(f'v_lshlrev_b32 v{G_C + 4}, 16, v{G_C + 4}')
    for i in range(5):
        A(f'v_mul_f32 v{t + i}, {f2u(-1.4426950408889634)}, v{G_C + i}')
    for i in range(5):
        A(f'v_exp_f32 v{t + i}, v{t + i}')
    for i in range(5):
        A(f'v_add_f32 v{t + i}, 1.0, v{t + i}')
    for i in range(5):
        A(f'v_rcp_f32 v{t + i}, v{t + i}')
    for i in range(5):
        A(f'v_mul_f32 v{t + i}, v{G_C + i}, v{t + i}')
    for i in range(5):
        A(f'v_cvt_pk_bf16_f32 v{t + i}, v{t + i}, v{t + i}')
    for i in range(5):
        A(f'v_lshlrev_b32 v{G_C + i}, 16, v{t + i}')
    A(f'''s_mul_i32 s{sTAG}, s{sTAG}, 0x9E3779B1
    s_add_u32 s{sTAG}, s{sTAG}, 0x7F4A7C15
    s_or_b32 s{sTAG}, s{sTAG}, 0xffc00000''')
    for k in range(4):
        A(f's_bfe_u32 s{sTB + k}, s{sTAG}, {(8 << 16) | (8 * k)}')
    A(f'''v_and_b32 v{t + 5}, 1, v{vL}
    v_lshlrev_b32 v{t + 5}, 5, v{t + 5}
    v_lshl_add_u32 v{t + 5}, v{vH}, 4, v{t + 5}
    v_mov_b32 v{t + 6}, {OOB}
    v_cmp_gt_u32 vcc, 2, v{vL31}
    v_cndmask_b32 v{vGS}, v{t + 6}, v{t + 5}, vcc
    v_mov_b32 v{vGM}, 0xffffff00''')


def gemv_compute(G_W, sdst):
    t = TMP
    for i in range(5):
        sp = (G_C + i) & ~1
        sel = (G_C + i) & 1
        for k in range(4):
            u = t + 2 * (k & 1)
            unpack(u, u + 1, G_W + 4 * i + k)
            if i == 0:
                pk('mul', G_ACC + 2 * k, u, sp, mods=f'op_sel:[0,{sel}] op_sel_hi:[1,{sel}]')
            else:
                pk('fma', G_ACC + 2 * k, u, sp, G_ACC + 2 * k, mods=f'op_sel:[0,{sel},0] op_sel_hi:[1,{sel},1]')
    a = G_ACC
    for k in range(4):
        A(f'v_permlane32_swap_b32 v{a + k}, v{a + k + 4}')
    pk('add', a, a, a + 4)
    pk('add', a + 2, a + 2, a + 6)
    A(f'''v_permlane16_swap_b32 v{a}, v{a + 1}
    v_permlane16_swap_b32 v{a + 2}, v{a + 3}
    v_add_f32 v{a}, v{a}, v{a + 1}
    v_add_f32 v{a + 2}, v{a + 2}, v{a + 3}''')
    for r in (8, 4):
        A(f'v_add_f32_dpp v{a}, v{a}, v{a} row_ror:{r} row_mask:0xf bank_mask:0xf')
        A(f'v_add_f32_dpp v{a + 2}, v{a + 2}, v{a + 2} row_ror:{r} row_mask:0xf bank_mask:0xf')
    for d in (1, 3, 0, 2):
        s_ = a + (d & 2)
        A(f'v_add_f32_dpp v{a + d}, v{s_}, v{s_} row_ror:2 row_mask:0xf bank_mask:0xf')
    A(f'''v_permlane16_swap_b32 v{a}, v{a + 1}
    v_permlane16_swap_b32 v{a + 2}, v{a + 3}''')
    for k in range(4):
        A(f'v_and_or_b32 v{a + k}, v{a + k}, v{vGM}, s{sTB + k}')
    A(f'buffer_store_dwordx4 {vr(a, 4)}, v{vGS}, {srd(S_WS)}, s{sdst} offen sc1')


def code_prefetch(nbytes):
    t = TMP + 4
    A(f"""s_getpc_b64 {sr(sT2, 2)}
    L_pc:
    v_and_b32 v{t}, 7, v0
    v_lshl_add_u32 v{t}, v{t}, 5, s{sG}
    v_lshlrev_b32 v{t}, 7, v{t}
    v_min_u32 v{t}, L_last-L_pc, v{t}
    v_mov_b32 v{t + 1}, s{sT3}
    v_add_co_u32 v{t}, vcc, s{sT2}, v{t}
    v_addc_co_u32 v{t + 1}, vcc, 0, v{t + 1}, vcc
    global_load_dword v{vFL}, {vr(t, 2)}, off""")


def xid_store():
    t = TMP
    A(f'''s_getreg_b32 s{sXID}, hwreg(HW_REG_XCC_ID, 0, 4)
    s_lshl_b32 s{sT0}, s{sPID}, 2
    s_add_u32 s{sT0}, s{sT0}, {WS_XID}
    v_mov_b32 v{t}, s{sXID}
    v_cmp_eq_u32 vcc, 0, v0
    v_mov_b32 v{t + 1}, {OOB}
    v_cndmask_b32 v{t + 1}, v{t + 1}, v0, vcc
    buffer_store_dword v{t}, v{t + 1}, {srd(S_WS)}, s{sT0} offen sc1''')


def xid_load():
    A(f'''s_lshl_b32 s{sBGO}, s{sCL}, 6
    s_add_u32 s{sBGO}, s{sBGO}, {WS_XID}
    v_lshlrev_b32 v{vXID}, 2, v{vL15}
    buffer_load_dword v{vXID}, v{vXID}, {srd(S_WS)}, s{sBGO} offen sc1
    s_lshl_b32 s{sBGO}, s{sCL}, 10
    s_add_u32 s{sBGO}, s{sBGO}, {WS_FLAG}
    buffer_load_dword v{vFL}, v{vL16}, {srd(S_WS)}, s{sBGO} offen sc1''')


def xid_check():
    A(f'''v_cmp_ne_u32 vcc, s{sXID}, v{vXID}
    s_cmp_eq_u64 vcc, 0
    s_cselect_b32 s{sFAST}, {0 if OPT['slow'] else 1}, 0''')


def flag_prep(which):
    if which == 0:
        A(f"""s_lshl_b32 s{sBGO}, s{sCL}, 10
        s_add_u32 s{sBGO}, s{sBGO}, {WS_FLAG}
        s_lshl_b32 s{sBG2}, s{sJ}, 2
        s_add_u32 s{sBG2}, s{sBG2}, s{sW}
        s_lshl_b32 s{sBG2}, s{sBG2}, 2
        v_mov_b32 v{vFL + 2}, s{sBG2}
        v_mov_b32 v{vFL + 3}, s{sTAG}
        s_lshl_b32 s{sBG2}, s{sW}, 6
        v_lshl_add_u32 v{vFL}, v{vL15}, 2, s{sBG2}""")
    else:
        A(f"""s_lshl_b32 s{sBG2}, s{sW}, 6
        s_and_b32 s{sT7}, s{sJ}, 8
        s_add_u32 s{sBG2}, s{sBG2}, s{sT7}
        v_and_b32 v{vFL}, 13, v{vL}
        v_lshl_add_u32 v{vFL}, v{vFL}, 2, s{sBG2}""")
        if OPT['xl'] or OPT['sn'] == 1:
            A(f"""s_lshl_b32 s{sBG2}, s{sDW}, 1
            s_add_u32 s{sBG2}, s{sBG2}, s{sT7}
            s_lshl_b32 s{sBG2}, s{sBG2}, 4
            v_writelane_b32 v{vFL}, s{sBG2}, 62
            s_add_u32 s{sBG2}, s{sBG2}, 16
            v_writelane_b32 v{vFL}, s{sBG2}, 63""")


vHT, sHT, sHS, sHC = 253, 82, 83, 71


def prewarm():
    A('v_mov_b32 v159, 0')
    for n in range(OPT['pw']):
        i = n + OPT['pwo']
        base = [WS_TP, WS_T, 0x3000000, 0x3800000][i // 4] + 4096 * (i % 4)
        A(f'''s_mul_i32 s{sT0}, s{sME}, {BS}
        s_add_u32 s{sT0}, s{sT0}, {base}
        buffer_store_dwordx4 v[156:159], v{vT16}, {srd(S_WS)}, s{sT0} offen sc1''')


def hint_prep():
    A(f'''s_lshl_b32 s{sHT}, s{sXC}, 7
    s_add_u32 s{sHT}, s{sHT}, {WS_HINT}
    s_lshl_b32 s{sHS}, s{sG}, 2
    s_add_u32 s{sHS}, s{sHS}, s{sHT}
    s_cmp_eq_u32 s{sW}, 0
    s_cselect_b32 s{sHS}, s{sHS}, {OOB}
    v_lshlrev_b32 v{vHT}, 10, v{vH}
    buffer_load_dword v{vHT}, v{vHT}, {srd(S_WS)}, s{sHT} offen sc1''')


def hint_set(k):
    A(f'''v_mov_b32 v{vHT - 1}, s{sTAG}
    buffer_store_dword v{vHT - 1}, off, {srd(S_WS)}, s{sHS} offset:{1024 * k}''')


def hint_ld(k):
    return f'buffer_load_dword v{vHT}, v{vHT - 2}, {srd(S_WS)}, s{sHT} offen offset:{1024 * k} sc1'


def hint_issue(k):
    A(f'''v_lshlrev_b32 v{vHT - 2}, 2, v{vL31}
    s_mov_b32 s{sHC}, {OPT['hn']}
    {hint_ld(k)}''')


def hint_check(k):
    A(f's_branch L_chk_h{k}')
    A.blob(f'''L_retry_h{k}:
    s_sub_u32 s{sHC}, s{sHC}, 1
    s_cmp_lt_i32 s{sHC}, 0
    s_cbranch_scc1 L_ok_h{k}
    {hint_ld(k)}
    s_waitcnt vmcnt(0)''')
    A(f'''L_chk_h{k}:
    v_cmp_ne_u32 vcc, s{sTAG}, v{vHT}
    s_cbranch_vccnz L_retry_h{k}
    L_ok_h{k}:''')


def insert_at(start, pct, fn):
    it = A.items
    k = start + (len(it) - start) * pct // 100
    while k < len(it) and it[k].kind != 'valu':
        k += 1
    inside = [x.text[:5] for x in it[start:k] if x.kind == 'label']
    assert not inside or inside[-1] != 'L_chk'
    it[k:k] = A.capture(fn)


def nvm(items):
    return sum(1 for i in items if i.kind == 'vmem')


def after_last(pred):
    i = max([k for k, x in enumerate(A.items) if x.kind == 'vmem' and pred(x)] or [len(A.items) - 300])
    return min(63, nvm(A.items[i + 1:]))


def flag_publish(which):
    if which == 3:
        younger = after_last(lambda x: 'store_dwordx4' in x.op and 'offset:0 sc1' in x.text)
    elif which:
        younger = after_last(lambda x: 'store_dwordx4' in x.op)
    else:
        younger = after_last(lambda x: 'store' in x.op or ' lds' in x.text)
    st = f'buffer_store_dword v{vFL + 3}, v{vFL + 2}, {srd(S_WS)}, s{sBGO} offen offset:{256 * which}'
    if which and OPT['hf']:
        A(f's_waitcnt vmcnt({younger})\n{st} sc1')
        return
    A(f"""s_cmp_eq_u32 s{sFAST}, 0
    s_waitcnt vmcnt({min(younger, 63)})
    s_cbranch_scc1 L_slow_pub{which}
    {st}
    L_join_pub{which}:""")
    RETRY('.segment')
    RETRY(f'L_slow_pub{which}:')
    if which == 0 and not OPT['sn']:
        RETRY('buffer_wbl2 sc1\ns_waitcnt vmcnt(0)')
    RETRY(f'{st} sc1\ns_branch L_join_pub{which}')


def flag_ld(which):
    return f'buffer_load_dword v{vFL + 1}, v{vFL}, {srd(S_WS)}, s{sBGO} offen offset:{256 * which} sc1'


def flag_check(which):
    poll_check(f'fl{which}', flag_ld(which), tagcheck([vFL + 1], 0))
    if which == 0 and not OPT['sn']:
        A(f"""s_cmp_eq_u32 s{sFAST}, 0
        s_cbranch_scc1 L_slow_acq{which}
        L_join_acq{which}:""")
        RETRY('.segment')
        RETRY(f"""L_slow_acq{which}:
        buffer_inv sc1
        s_waitcnt vmcnt(0)
        s_branch L_join_acq{which}""")


sW1ST, sW1S = 86, 87
vU1, vU2 = 251, 252


def fmt_prep():
    t = TMP
    A(f"""s_mul_i32 s{sT0}, s{sME}, 205
    s_lshr_b32 s{sT0}, s{sT0}, 10
    s_mul_i32 s{sT1}, s{sT0}, 5
    s_sub_u32 s{sT1}, s{sME}, s{sT1}
    s_lshl_b32 s{sT1}, s{sT1}, 2
    s_add_u32 s{sT1}, s{sT1}, s{sW}
    s_mul_i32 s{sT2}, s{sT0}, 40960
    s_lshl_b32 s{sT3}, s{sT1}, 11
    s_add_u32 s{sW2ST}, s{sT2}, s{sT3}
    s_add_u32 s{sW2ST}, s{sW2ST}, {WS_W2P}
    s_mul_i32 s{sT2}, s{sT0}, 171
    s_lshr_b32 s{sT2}, s{sT2}, 9
    s_mul_i32 s{sT3}, s{sT2}, 3
    s_sub_u32 s{sT0}, s{sT0}, s{sT3}""")
    cols(sT3, sT4, sT2)
    if OPT['ua']:
        UA = f'''s_sub_u32 s{sT0}, 30, s{sG}
        s_lshl_b32 s{sT0}, s{sT0}, 2
        s_add_u32 s{sT0}, s{sT0}, s{sXC}
        s_bitcmp1_b32 s{sG}, 0
        s_cselect_b32 s{sT0}, 255, s{sT0}'''
    else:
        UA = f's_sub_u32 s{sT0}, 255, s2'
    A(f"""s_add_u32 s{sT3}, s{sT3}, s{sT0}
    s_cmp_lt_u32 s{sT0}, 2
    s_cselect_b32 s{sT3}, s{sT3}, s{sT4}
    s_mul_i32 s{sT3}, s{sT3}, 40960
    s_lshl_b32 s{sT1}, s{sT1}, 6
    s_add_u32 s{sW2O}, s{sT3}, s{sT1}
    s_cmp_lt_u32 s{sME}, 240
    s_cselect_b32 s{sW2ST}, s{sW2ST}, {OOB}
    s_cselect_b32 s{sW2O}, s{sW2O}, {OOB // 2}
    {UA}
    s_and_b32 s{sT1}, s{sT0}, 3
    s_lshl_b32 s{sT1}, s{sT1}, 2
    s_add_u32 s{sT1}, s{sT1}, s{sW}
    s_lshr_b32 s{sT0}, s{sT0}, 2""")
    cols(sT3, sT4, sT1)
    A(f"""s_mul_i32 s{sT2}, s{sT0}, {32 * 3072}
    s_lshl_b32 s{sT4}, s{sT4}, 6
    s_add_u32 s{sW1S}, s{sT2}, s{sT4}
    s_mul_i32 s{sT1}, s{sT1}, 20
    s_add_u32 s{sT1}, s{sT1}, s{sT0}
    s_lshl_b32 s{sT1}, s{sT1}, 11
    s_add_u32 s{sW1ST}, s{sT1}, {WS_W1P}
    s_cmp_lt_u32 s{sT0}, 20
    s_cselect_b32 s{sW1ST}, s{sW1ST}, {OOB}
    {f's_mov_b32 s{sW1ST}, {OOB}' if OPT['now'] & 4 else ''}
    {f's_mov_b32 s{sW2ST}, {OOB}' if OPT['now'] & 8 else ''}
    {f's_mov_b32 s{sW1S}, {OOB // 2}' if OPT['now'] & 16 else ''}
    {f's_mov_b32 s{sW2O}, {OOB // 2}' if OPT['now'] & 32 else ''}
    v_lshrrev_b32 v{t}, 2, v{vL}
    v_and_b32 v{t + 1}, 3, v{vL}
    v_lshlrev_b32 v{t + 1}, 4, v{t + 1}
    v_mul_u32_u24 v{t + 2}, 1280, v{t}
    v_add_u32 v{vU2}, v{t + 1}, v{t + 2}
    v_mul_u32_u24 v{t + 2}, 3072, v{t}
    v_add_u32 v{vU1}, v{t + 1}, v{t + 2}""")


def fmt_issue():
    if OPT['now'] & 1:
        return
    for sd, so, v, pitch, lds in ((S_W1, sW1S, vU1, 3072, B_W1), (S_W2, sW2O, vU2, 1280, B_W2)):
        A(f"""s_add_u32 m0, s{sWB}, {BIG + lds}
        buffer_load_dwordx4 v{v}, {srd(sd)}, s{so} offen lds
        s_add_u32 m0, s{sWB}, {BIG + lds + 1024}
        s_add_u32 s{so}, s{so}, {16 * pitch}
        buffer_load_dwordx4 v{v}, {srd(sd)}, s{so} offen lds""")


def fmt_finish():
    if OPT['now'] & 1:
        return
    A(f's_waitcnt vmcnt({min(63, after_last(lambda x: srd(S_W2) in x.text and x.lds))})')
    fmt_body()


def fmt_addr():
    t = 96
    A(f"""v_lshrrev_b32 v{t}, 2, v{vL}
    v_lshlrev_b32 v{t}, 6, v{t}
    v_and_b32 v99, 3, v{vL}
    v_lshl_add_u32 v{t}, v99, 3, v{t}
    v_add_u32 v242, s{sWB}, v{t}
    v_lshl_add_u32 v99, v{vQ}, 8, v242""")


def fmt_body():
    for i in range(2):
        A(f'ds_read_b64_tr_b16 {ar(4 * i, 2)}, v99 offset:{BIG + B_W1 + 32 * i}')
        A(f'ds_read_b64_tr_b16 {ar(2 + 4 * i, 2)}, v99 offset:{BIG + B_W1 + 32 * i + 256}')
    for i in range(2):
        A(f'ds_read_b64_tr_b16 {ar(8 + 4 * i, 2)}, v242 offset:{BIG + B_W2 + 32 * i}')
        A(f'ds_read_b64_tr_b16 {ar(10 + 4 * i, 2)}, v242 offset:{BIG + B_W2 + 32 * i + 1024}')
    for i in range(4):
        A(f'buffer_store_dwordx4 {ar(4 * i, 4)}, v{vLW}, {srd(S_WS)}, s{sW1ST if i < 2 else sW2ST} offen offset:{1024 * (i & 1)} sc1')


def w_prep():
    A(f"""s_mul_i32 s{sW2O}, s{sW}, {12 * 40960}
    s_and_b32 s{sT0}, s{sJ}, {3 if OPT['emu'] & 1 else 7}
    s_mul_i32 s{sT0}, s{sT0}, 5120
    s_add_u32 s{sW2O}, s{sW2O}, s{sT0}
    s_add_u32 s{sW2ST}, s{sW2O}, {WS_W2P}
    s_mul_i32 s{sW1ST}, s{sJ}, 40960
    s_mul_i32 s{sT0}, s{sW}, 10240
    s_add_u32 s{sW1ST}, s{sW1ST}, s{sT0}
    s_add_u32 s{sW1ST}, s{sW1ST}, {WS_W1P}""")


def w1_prep():
    t = TMP
    A(f"""v_lshrrev_b32 v{t}, 3, v{vL}
    v_and_b32 v{t + 1}, 2, v{t}
    v_and_b32 v{t + 2}, 7, v{vL}
    v_xor_b32 v{t + 1}, v{t + 1}, v{t + 2}
    v_mul_u32_u24 v{t}, 3072, v{t}
    v_lshl_add_u32 v{vW1}, v{t + 1}, 4, v{t}
    v_xor_b32 v{vW1 + 1}, 64, v{vW1}
    v_add_u32 v{vW1 + 1}, {8 * 3072}, v{vW1 + 1}
    s_mul_i32 s{sW1O}, s{sW}, {160 * 3072}
    s_lshl_b32 s{sT1}, s{sCA}, 6
    {f's_and_b32 s{sT1}, s{sT1}, 0x5ff' if OPT['emu'] & 2 else ''}
    s_add_u32 s{sW1O}, s{sW1O}, s{sT1}""")


def w1_dma():
    for n in range(20):
        A(f's_add_u32 m0, s{sWB}, {BIG + 1024 * n}')
        if n and n % 2 == 0:
            A(f's_add_u32 s{sW1O}, s{sW1O}, {16 * 3072}')
        A(f'buffer_load_dwordx4 v{vW1 + (n & 1)}, {srd(S_W1)}, s{sW1O} offen lds')


def wb_dma():
    for n in range(10):
        A(f's_add_u32 m0, s{sWB}, {BIG + 20480 + 1024 * n}')
        A(f's_add_u32 s{sW1E}, s{sW1ST}, {1024 * n}')
        A(f'buffer_load_dwordx4 v{vLW}, {srd(S_WS)}, s{sW1E} offen sc1 lds')


KA = [k for u in range(2) for k in range(12) if k % 3 == u] if OPT['t3'] else [k for k in range(12) if k % 3 < 2]
KB = [k for k in range(12) if k % 3 == 2]


def w2_load():
    for kl in KA + KB:
        for nt in range(5):
            if nt in (0, 4):
                A(f's_add_u32 s{sW2O}, s{sW2ST}, {40960 * kl + 1024 * nt}')
            A(f'buffer_load_dwordx4 {ar((kl * 5 + nt) * 4, 4)}, v{vLW}, {srd(S_WS)}, s{sW2O} offen offset:{1024 * (nt & 3)} sc1')


F_RAW = 200
F_W = 216
vFA = 196


def filt_prep():
    t = TMP
    A(f'''s_mul_i32 s{sT0}, s{sG}, 20
    s_sub_u32 s{sT1}, 623, s{sT0}
    s_mul_i32 s{sT3}, s{sW}, 5
    s_sub_u32 s{sT4}, 15, s{sT3}
    s_cmp_lt_u32 s{sG}, 16
    s_cselect_b32 s{sT0}, s{sT0}, s{sT1}
    s_cselect_b32 s{sT2}, 1, -1
    s_cselect_b32 s{sT3}, s{sT3}, s{sT4}
    s_add_u32 s{sT4}, s{sT0}, s{sK1}
    s_and_b32 s{sT4}, s{sT4}, 1
    s_add_u32 s{sFSH}, s{sT3}, s{sT4}
    s_sub_u32 s{sT0}, s{sT0}, s{sT4}
    s_lshl_b32 s{sT5}, s{sW}, 9
    s_add_u32 s{sT5}, s{sT5}, s{sK1}
    s_movk_i32 s{sT6}, 321''')
    for i in range(3):
        A(f'''v_add_u32 v{t}, {64 * i}, v{vL}
        v_mul_u32_u24 v{t + 1}, 171, v{t}
        v_lshrrev_b32 v{t + 1}, 9, v{t + 1}
        v_mad_i32_i24 v{t + 2}, v{t + 1}, -3, v{t}
        v_lshl_add_u32 v{t + 1}, v{t + 1}, 3, s{sT5}
        v_mul_i32_i24 v{t + 1}, s{sT2}, v{t + 1}
        v_and_b32 v{t + 1}, 2047, v{t + 1}
        v_lshl_add_u32 v{t + 2}, v{t + 2}, 3, s{sT0}
        v_mad_u32_u24 v{t + 1}, v{t + 1}, s{sT6}, v{t + 2}
        v_lshlrev_b32 v{vFA + i}, 1, v{t + 1}''')


def filt_dma():
    for p, s_ in enumerate((S_WR, S_WI)):
        for i in range(3):
            A(f's_add_u32 m0, s{sWB}, {BIG + B_F + 3072 * p + 1024 * i}')
            A(f'buffer_load_dwordx4 v{vFA + i}, {srd(s_)}, 0 offen lds')


def filt_finish():
    t = TMP + 4
    sc = 1.0 / (2048.0 * 640.0)
    A(f'''s_lshr_b32 s{sT0}, s{sFSH}, 1
    s_lshl_b32 s{sT0}, s{sT0}, 2
    s_add_u32 s{sT0}, s{sT0}, {BIG + B_F}
    s_and_b32 s{sFSH}, s{sFSH}, 1
    s_lshl_b32 s{sFSH}, s{sFSH}, 4
    v_mul_u32_u24 v{t}, 30720, v{vQ}
    v_mul_u32_u24 v{t + 1}, 48, v{vL15}
    v_add3_u32 v{vFA}, v{t}, v{t + 1}, s{sT0}
    v_add_u32 v{vFA + 1}, 1536, v{vFA}
    v_add_u32 v{vFA + 2}, 3072, v{vFA}
    v_add_u32 v{vFA + 3}, {3072 + 1536}, v{vFA}''')
    for j in range(4):
        for p in range(2):
            o = 192 * (j & 1)
            A(f'ds_read2_b32 {vr(F_RAW + 4 * j + 2 * p, 2)}, v{vFA + 2 * p + (j >> 1)} offset0:{o} offset1:{o + 1}')
    A(f'''s_cmp_lt_u32 s{sG}, 16
    s_cselect_b64 vcc, -1, 0
    s_cselect_b32 s{sT3}, 0, 0x80000000
    s_mov_b32 s{sT0}, {f2u(sc)}
    s_mov_b32 s{sT1}, {f2u(2 * sc)}
    s_xor_b32 s{sT2}, s{sT0}, s{sT3}
    s_xor_b32 s{sT3}, s{sT1}, s{sT3}''')
    for j in range(4):
        for p in range(2):
            r = F_RAW + 4 * j + 2 * p
            A(f'''v_lshrrev_b64 {vr(r, 2)}, s{sFSH}, {vr(r, 2)}
            v_lshlrev_b32 v{t}, 16, v{r}
            v_lshlrev_b32 v{t + 1}, 16, v{r + 1}
            v_and_b32 v{t + 2}, 0xffff0000, v{r}
            v_cndmask_b32 v{t + 3}, v{t + 1}, v{t}, vcc
            v_cndmask_b32 v{t + 4}, v{t}, v{t + 1}, vcc
            v_mul_f32 v{F_W + 8 + 4 * p + j}, s{sT1 + 2 * p}, v{t + 2}
            v_mul_f32 v{F_W + 4 * p + j}, s{sT0 + 2 * p}, v{t + 3}
            v_mul_f32 v{F_W + 16 + 4 * p + j}, s{sT1 + 2 * p}, v{t + 4}''')


X_RAW = 60
X_N = 72
K1_M1 = 100
K1_M2 = 124
MODR = 24
K1A = 200
aMX, aMWX, aMW, aADD, aMR, aEW, aER, aST = K1A, K1A + 1, K1A + 2, K1A + 4, K1A + 5, K1A + 8, K1A + 11, K1A + 14


def x1_issue():
    A(f'''s_lshl_b32 s{sT0}, s{sW}, 9
    s_add_u32 s{sT0}, s{sT0}, s{sME}
    s_mul_i32 s{sT0}, s{sT0}, 1280
    s_add_u32 s{sT1}, s{sT0}, {256 * 1280}
    v_lshlrev_b32 v{TMP + 7}, 2, v{vH}
    v_lshl_add_u32 v{TMP + 7}, v{vL31}, 3, v{TMP + 7}
    buffer_load_dwordx4 {vr(X_RAW, 4)}, v{vL16}, {srd(S_X)}, s{sT0} offen
    buffer_load_dwordx4 {vr(X_RAW + 4, 4)}, v{vL16}, {srd(S_X)}, s{sT1} offen
    buffer_load_dword v{X_RAW + 8}, v{TMP + 7}, {srd(S_X)}, s{sT0} offen offset:1024
    buffer_load_dword v{X_RAW + 9}, v{TMP + 7}, {srd(S_X)}, s{sT1} offen offset:1024''')


def k1_const_a():
    t = TMP
    A(f'''v_lshrrev_b32 v{t}, 3, v{vL31}
    v_cvt_f32_u32 v{t}, v{t}
    v_mul_f32 v{t}, {f2u(0.4)}, v{t}
    v_and_b32 v{t + 1}, 7, v{vL}
    v_cvt_f32_u32 v{t + 1}, v{t + 1}
    v_mul_f32 v{t + 1}, {f2u(0.125)}, v{t + 1}
    v_cvt_f32_u32 v{t + 2}, v{vH}
    v_mul_f32 v{t + 2}, v{t + 2}, v{t}
    v_and_b32 v{t + 10}, 1, v{vL}
    v_mul_u32_u24 v{t + 10}, 0x8000, v{t + 10}
    v_lshl_or_b32 v{t + 10}, v{t + 10}, 16, v{t + 10}''')
    for tau in range(3):
        fmamk(t + 3, t, 2 * tau, t + 2)
        for p in range(2):
            fmamk(t + 4, t + 1, 2 * p, t + 3)
            fmamk(t + 5, t + 1, 2 * p + 1, t + 3)
            sincos(t + 4, t + 6, t + 8)
            sincos(t + 5, t + 7, t + 9)
            A(f'v_cvt_pk_bf16_f32 v{K1_M1 + 4 * tau + p}, v{t + 6}, v{t + 7}')
            A(f'v_cvt_pk_bf16_f32 v{K1_M1 + 12 + 4 * tau + p}, -v{t + 8}, -v{t + 9}')
    A('s_mov_b32 exec_lo, 0')
    for p in range(2):
        A(f'v_mov_b32 v{K1_M1 + 8 + p}, 0')
        A(f'v_mov_b32 v{K1_M1 + 20 + p}, 0')
    A('s_mov_b32 exec_lo, -1')
    for k in range(6):
        for p in range(2):
            A(f'v_xor_b32 v{K1_M1 + 4 * k + 2 + p}, v{t + 10}, v{K1_M1 + 4 * k + p}')


def k1_const_b():
    t = 216
    A(f'''v_cvt_f32_u32 v{t}, v{vL31}
    v_lshlrev_b32 v{t + 1}, 4, v{vH}
    v_add_u32 v{t + 1}, s{sW}, v{t + 1}
    v_cvt_f32_u32 v{t + 1}, v{t + 1}
    v_mul_f32 v{t}, {f2u(1.0 / 128)}, v{t}
    v_mul_f32 v{t + 1}, v{t + 1}, v{t}
    v_and_b32 v{t + 10}, 1, v{vL}
    v_mul_u32_u24 v{t + 10}, 0x8000, v{t + 10}
    v_lshl_or_b32 v{t + 10}, v{t + 10}, 16, v{t + 10}''')
    for u in range(2):
        for jp in (0, 2):
            fmamk(t + 2, t, 4 * (8 * u + jp), t + 1)
            fmamk(t + 5, t, 4 * (8 * u + jp + 1), t + 1)
            sincos(t + 2, t + 3, t + 4)
            sincos(t + 5, t + 6, t + 7)
            for jj, e in ((jp, 3), (jp + 1, 6)):
                A(f'v_cvt_pk_bf16_f32 v{K1_M2 + 4 * u + jj}, v{t + e}, v{t + e + 1}')
                A(f'v_cvt_pk_bf16_f32 v{K1_M2 + 16 + 4 * u + jj}, -v{t + e + 1}, v{t + e}')
    for p in range(2):
        for k in range(8):
            A(f'v_xor_b32 v{K1_M2 + 16 * p + 8 + k}, v{t + 10}, v{K1_M2 + 16 * p + k}')


def ln1():
    t = TMP
    AD = 92
    A(f'''v_mul_u32_u24 v{t}, 3, v{vL}
    v_lshl_add_u32 v{t + 1}, v{vL15}, 4, s{sWB}''')
    for k in range(5):
        A(f'v_add_u32 v{t + 2}, {k}, v{t}')
        mod5(t + 2, t + 2, t + 3)
        A(f'v_lshl_add_u32 v{AD + k}, v{t + 2}, 10, v{t + 1}')
    A(f'''v_lshl_add_u32 v{t + 1}, v{vL31}, 3, s{sWB}
    v_lshl_add_u32 v{t + 1}, v{vH}, 9, v{t + 1}
    v_lshl_add_u32 v{t}, v{vL31}, 1, v{vH}''')
    for e in range(2):
        A(f'v_lshl_add_u32 v{t + 2}, v{t}, 1, {2 + e}')
        mod5(t + 2, t + 2, t + 3)
        A(f'v_lshl_add_u32 v{AD + 5 + e}, v{t + 2}, 10, v{t + 1}')
    for r in range(2):
        for k in range(4):
            unpack(X_N + 4 * k + r, X_N + 4 * k + 2 + r, X_RAW + 4 * r + k)
        unpack(X_N + 16 + r, X_N + 18 + r, X_RAW + 8 + r)
    pk('add', t, X_N, X_N + 2)
    pk('mul', t + 2, X_N, X_N)
    for e in range(1, 10):
        if e > 1:
            pk('add', t, t, X_N + 2 * e)
        pk('fma', t + 2, X_N + 2 * e, X_N + 2 * e, t + 2)
    A(f'''v_permlane32_swap_b32 v{t}, v{t + 1}
    v_permlane32_swap_b32 v{t + 2}, v{t + 3}
    v_add_f32 v{t}, v{t}, v{t + 1}
    v_add_f32 v{t + 2}, v{t + 2}, v{t + 3}
    v_permlane16_swap_b32 v{t}, v{t + 2}
    v_add_f32 v{t}, v{t}, v{t + 2}''')
    for r in (8, 4, 2, 1):
        A(f'v_add_f32_dpp v{t}, v{t}, v{t} row_ror:{r} row_mask:0xf bank_mask:0xf')
    A(f'v_mul_f32 v{t}, {f2u(1.0 / 640)}, v{t}')
    for k in range(4):
        A(f'v_readlane_b32 s{sT0 + k}, v{t}, {16 * k}')
    for r in range(2):
        A(f'v_mov_b32 v{t + 2 + r}, s{sT0 + 2 * r}')
    for r in range(2):
        A(f'v_fma_f32 v{t + r}, -v{t + 2 + r}, v{t + 2 + r}, s{sT1 + 2 * r}')
    for r in range(2):
        A(f'v_max_f32 v{t + r}, 0, v{t + r}')
    for r in range(2):
        A(f'v_add_f32 v{t + r}, {f2u(1e-5)}, v{t + r}')
    for r in range(2):
        A(f'v_rsq_f32 v{t + r}, v{t + r}')
    A(f'''s_lshl_b32 s{sT0}, s{sW}, 8
    s_add_u32 s{sT0}, s{sT0}, {BIG + B_N}''')
    pk('mul', t + 2, t + 2, t)
    for e in range(10):
        pk('fma', X_N + 2 * e, X_N + 2 * e, t, t + 2, mods='neg_lo:[0,0,1] neg_hi:[0,0,1]')
        if e < 8:
            A(f'ds_write_b64 v{AD + e % 5}, {vr(X_N + 2 * e, 2)} offset:{BIG + B_N + (e & 3) * 256 + (e >> 2) * 8}')
        else:
            A(f'ds_write_b64 v{AD + 5 + e - 8}, {vr(X_N + 2 * e, 2)} offset:{BIG + B_N + (e - 8) * 256}')
    A(f'''v_lshl_add_u32 v{t + 1}, v{vL31}, 3, s{sT0}
    v_lshl_add_u32 v{t}, v{vH}, 10, v{t + 1}
    s_waitcnt lgkmcnt(0)
    s_barrier''')
    for tau in range(3):
        ad = t if tau < 2 else t + 1
        for p in (0, 2):
            A(f'ds_read2st64_b64 {vr(X_N + 8 * tau + 2 * p, 4)}, v{ad} offset0:{4 * tau + 60 * p} offset1:{4 * tau + 60 * p + 60}')


def x_keep():
    for k in range(4):
        A(f'v_permlane32_swap_b32 v{X_RAW + k}, v{X_RAW + 4 + k}')
    A(f'v_permlane32_swap_b32 v{X_RAW + 8}, v{X_RAW + 9}')
    for k in range(10):
        A(f'v_accvgpr_write_b32 a{240 + k}, v{X_RAW + k}')


def k1_addr():
    t = TMP + 4
    A(f'''s_lshl_b32 s{sT0}, s{sW}, 8
    s_add_u32 s{sT0}, s{sT0}, 4096
    s_mov_b32 s{sT1}, {L_M1}
    v_lshl_add_u32 v{t}, v{vL15}, 4, s{sT0}
    v_mul_u32_u24 v{t + 1}, {MP}, v{vQ}
    v_add_u32 v{aMX}, v{t}, v{t + 1}
    v_lshrrev_b32 v{t}, 2, v{t}
    v_and_b32 v{t + 1}, 1, v{vQ}
    v_lshl_add_u32 v{t + 1}, v{t + 1}, 1, v{vH}
    v_mul_u32_u24 v{t + 1}, 1280, v{t + 1}
    v_add3_u32 v{aMWX}, v{t}, v{t + 1}, s{sT1}
    v_lshl_add_u32 v{aMW}, v0, 2, s{sT1}
    v_cmp_lt_u32 vcc, 159, v0
    v_cndmask_b32 v{aADD}, 0, 1.0, vcc
    v_lshl_add_u32 v{t}, v{vL31}, 2, s{sW}
    v_mul_u32_u24 v{t + 1}, 3, v{t}
    s_mul_i32 s{sT0}, s{sW}, 1280
    s_add_u32 s{sT0}, s{sT0}, s{sT1}
    v_lshl_add_u32 v{t}, v{vL31}, 2, s{sT0}
    v_lshl_add_u32 v{t + 2}, v{vH}, 1, v{t + 1}''')
    for tau in range(3):
        A(f'v_add_u32 v{t + 3}, {4 * tau}, v{t + 2 if tau < 2 else t + 1}')
        mod5(t + 3, t + 3, t + 4)
        A(f'v_lshl_add_u32 v{aMR + tau}, v{t + 3}, 7, v{t}')
    for p in range(4):
        A(f's_mov_b32 s{sLD + p}, {WS_MOD + MP * p}')


aSX, sSK, sCH = 232, 81, 97


def k1_addr2():
    t = 228
    A(f'''s_mul_i32 s{sT0}, s{sW}, 6144
    s_add_u32 s{sT0}, s{sT0}, {L_X1E}
    v_lshl_add_u32 v{aEW}, v{vL31}, 3, s{sT0}
    v_lshl_add_u32 v{aEW}, v{vH}, 10, v{aEW}
    v_add_u32 v{aEW + 1}, 2048, v{aEW}
    v_add_u32 v{aEW + 2}, 4096, v{aEW}
    v_lshrrev_b32 v{t}, 5, v0
    v_lshlrev_b32 v{t + 1}, 8, v{t}''')
    for c in range(3):
        A(f'''v_add_u32 v{t + 2}, {13 * c}, v{vL31}
        v_and_b32 v{t + 2}, 31, v{t + 2}
        v_lshl_add_u32 v{t + 2}, v{t + 2}, 3, v{t + 1}
        v_add_u32 v{aER + c}, {L_X1E + 2048 * c}, v{t + 2}''')
    A(f'''v_lshlrev_b32 v{t + 1}, 4, v{vL31}
    v_sub_u32 v{t + 2}, 8, v{t}
    v_and_b32 v{t + 2}, 7, v{t + 2}
    v_lshl_add_u32 v{aST + 1}, v{t + 2}, 11, v{t + 1}
    v_lshl_add_u32 v{aST}, v{t}, 11, v{t + 1}
    s_mul_i32 s{sST}, s{sME}, {BS}
    s_add_u32 s{sST}, s{sST}, {WS_T}
    v_cmp_gt_u32 {sr(sM1, 2)}, 19, v{vL31}
    v_cmp_gt_u32 {sr(sM2, 2)}, 6, v{vL31}''')


def mod1_loads():
    s = ''
    for p in range(4):
        s += f'buffer_load_dwordx4 {vr(MODR + 4 * p, 4)}, v{vT16}, {srd(S_WS)}, s{sLD + p} offen sc1\n'
    s += f'buffer_load_dwordx4 {vr(MODR + 16, 4)}, v{aMX}, {srd(S_WS)}, s{sLD} offen sc1\n'
    return s


def bytecheck(base, n, t):
    c = ''
    for g in range(n):
        r = base + 4 * g
        for k in range(4):
            c += f'v_xor_b32 v{r + k}, s{sTB + k}, v{r + k}\n'
        if g == 0:
            c += f'v_or3_b32 v{t}, v{r}, v{r + 1}, v{r + 2}\nv_or_b32 v{t}, v{t}, v{r + 3}\n'
        else:
            c += f'v_or3_b32 v{t}, v{t}, v{r}, v{r + 1}\nv_or3_b32 v{t}, v{t}, v{r + 2}, v{r + 3}\n'
    return c + f'v_and_b32 v{t}, 0xff, v{t}\nv_cmp_ne_u32 vcc, 0, v{t}\n'


def k1_poll():
    poll_check('mod1', mod1_loads(), bytecheck(MODR, 5, TMP))
    stamp('mod1')


def round_add(r, add, t):
    A(f'v_cvt_pk_bf16_f32 v{t}, v{r}, v{r + 1}')
    A(f'v_cvt_pk_bf16_f32 v{t + 1}, v{r + 2}, v{r + 3}')
    unpack(r, r + 1, t)
    unpack(r + 2, r + 3, t + 1)
    if add is None:
        return
    for p in (0, 2):
        pk('add', r + p, r + p, add, mods='op_sel_hi:[1,0]')
    A(f'v_cvt_pk_bf16_f32 v{t}, v{r}, v{r + 1}')
    A(f'v_cvt_pk_bf16_f32 v{t + 1}, v{r + 2}, v{r + 3}')
    unpack(r, r + 1, t)
    unpack(r + 2, r + 3, t + 1)


def sum4(r):
    for p in (0, 2):
        pk('add', r + p, r + p, r + 4 + p)
        pk('add', r + 8 + p, r + 8 + p, r + 12 + p)
    for p in (0, 2):
        pk('add', r + p, r + p, r + 8 + p)


def radix4(z, P, inverse):
    pk('add', P, z, z + 4)
    pk('add', P + 2, z, z + 4, mods=NEG1)
    pk('add', P + 4, z + 2, z + 6)
    pk('add', P + 6, z + 2, z + 6, mods=NEG1)
    pk('add', z, P, P + 4)
    pk('add', z + 4, P, P + 4, mods=NEG1)
    a, b = ('neg_lo', 'neg_hi') if inverse else ('neg_hi', 'neg_lo')
    pk('add', z + 2, P + 2, P + 6, mods=f'op_sel:[0,1] op_sel_hi:[1,0] {a}:[0,1]')
    pk('add', z + 6, P + 2, P + 6, mods=f'op_sel:[0,1] op_sel_hi:[1,0] {b}:[0,1]')


def k1_head():
    t = TMP
    x = MODR + 16
    A(f'''v_permlane32_swap_b32 v{x}, v{x + 1}
    v_permlane32_swap_b32 v{x + 2}, v{x + 3}''')
    sum4(MODR)
    A(f'''v_add_f32 v{x}, v{x}, v{x + 1}
    v_add_f32 v{x + 2}, v{x + 2}, v{x + 3}''')
    round_add(MODR, aADD, t)
    A(f'''v_permlane16_swap_b32 v{x}, v{x + 2}
    ds_write2st64_b32 v{aMW}, v{MODR}, v{MODR + 1} offset0:0 offset1:5
    ds_write2st64_b32 v{aMW}, v{MODR + 2}, v{MODR + 3} offset0:10 offset1:15
    v_add_f32 v{x}, v{x}, v{x + 2}
    v_cvt_pk_bf16_f32 v{x}, v{x}, v{x}
    v_lshlrev_b32 v{x}, 16, v{x}
    v_add_f32 v{x}, 1.0, v{x}
    v_cvt_pk_bf16_f32 v{x}, v{x}, v{x}
    v_lshlrev_b32 v{x}, 16, v{x}
    ds_write_b32 v{aMWX}, v{x}
    .fill {OPT['g1']}''')
    fine(1, '1a_wr')
    A('s_waitcnt lgkmcnt(0)\ns_barrier')
    fine(1, '1b_bar')


def k1_main():
    t = TMP
    OPA = 60
    DRE, DIM = 24, 40
    for tau in range(3):
        A(f'ds_read2_b32 {vr(t + 2 * tau, 2)}, v{aMR + tau} offset0:0 offset1:160')
    A(f'.fill {OPT["g2"]}')
    for tau in range(3):
        for p in range(4):
            n = X_N + 8 * tau + 2 * p
            pk('fma', n, n, t + 2 * tau, t + 2 * tau, mods='op_sel:[0,1,0] op_sel_hi:[1,1,0]')
    O = 76

    def cva(tau):
        for p in range(4):
            n = X_N + 8 * tau + 2 * p
            A(f'v_cvt_pk_bf16_f32 v{OPA + 4 * tau + p}, v{n}, v{n + 1}')
    cva(0)
    A('.fill 8')
    for tau in range(3):
        A(f'v_mfma_f32_32x32x16_bf16 {vr(DRE, 16)}, {vr(OPA + 4 * tau, 4)}, {vr(K1_M1 + 4 * tau, 4)}, {vr(DRE, 16) if tau else 0}')
        if tau < 2:
            cva(tau + 1)
        A(f'.fill {8 if tau < 2 else 24}')
        A(f'v_mfma_f32_32x32x16_bf16 {vr(DIM, 16)}, {vr(OPA + 4 * tau, 4)}, {vr(K1_M1 + 12 + 4 * tau, 4)}, {vr(DIM, 16) if tau else 0}')
        A(f'.fill {24 if tau < 2 else 32}')
    fine(1, '1c_st1')
    for m in range(4):
        A(f'v_mov_b32 v{O + 4 * m + 3}, s{sTAG}')
    OPB = 60
    ERE, EIM = 100, 24

    def cvb(u):
        for jj in range(4):
            A(f'v_cvt_pk_bf16_f32 v{OPB + 4 * u + jj}, v{DRE + 4 * u + jj}, v{DIM + 4 * u + jj}')

    def wr(E, im):
        return [f'ds_write2_b32 v{aEW + (j >> 2)}, v{E + j}, v{E + j + 1} offset0:{64 * (j & 3) + im} offset1:{64 * (j & 3) + 64 + im}' for j in range(0, 12, 2)]
    cvb(0)
    A('.fill 8')
    for u in range(4):
        A(f'v_mfma_f32_32x32x16_bf16 {vr(ERE, 16)}, {vr(OPB + 4 * u, 4)}, {vr(K1_M2 + 4 * u, 4)}, {vr(ERE, 16) if u else 0}')
        if u < 3:
            cvb(u + 1)
        A('.fill 8' if u < 3 else '.fill 24 5')
    w = wr(ERE, 0)
    for u in range(4):
        A(f'v_mfma_f32_32x32x16_bf16 {vr(EIM, 16)}, {vr(OPB + 4 * u, 4)}, {vr(K1_M2 + 16 + 4 * u, 4)}, {vr(EIM, 16) if u else 0}')
        if u == 0:
            A('.fill 24 5')
        else:
            A(w.pop(0))
            A(w.pop(0))
            A('.fill 12' if u < 3 else '.fill 40')
    fine(1, '1d_st2')
    for x in wr(EIM, 1)[:1 if OPT['cutx'] & 8 else 6]:
        A(x)
    A(f'.fill {OPT["g3"]}')
    fine(1, '1e_wr')
    A('s_waitcnt lgkmcnt(0)\ns_barrier')
    fine(1, '1f_bar')
    Z = 24
    for c in (1, 2, 0):
        for b2 in (0, 2, 1, 3):
            A(f'ds_read_b64 {vr(Z + 8 * c + 2 * b2, 2)}, v{aER + c} offset:{6144 * b2}')
    fine(1, '1g_rd')
    P = 48
    for c in (1, 2, 0):
        z = Z + 8 * c
        if not OPT['cutx'] & 8:
            radix4(z, P, False)
        if c == 0:
            fine(1, '1h_rx')
            for m in range(4):
                A(f'v_cvt_pk_bf16_f32 v{O + 4 * m}, v{z + 2 * m}, v{z + 2 * m + 1}')
                A(f'buffer_store_dwordx4 {vr(O + 4 * m, 4)}, v{aST + (m >> 1)}, {srd(S_WS)}, s{sST} offen offset:{512 * m} sc1')
        else:
            for k in range(4):
                A(f'v_cvt_pk_bf16_f32 v{56 + k}, v{z + 2 * k}, v{z + 2 * k + 1}')
            r0 = 1 if c == 1 else 3
            for m in range(4):
                A(f'v_cndmask_b32 v{O + 4 * m + c}, v{56 + (m - r0) % 4}, v{56 + (m - r0 - 1) % 4}, {sr(sM1 if c == 1 else sM2, 2)}')


K2C = 100
C_M1, C_TW1, C_M2, C_M3, C_TW2, C_M4 = [K2C + 8 * i for i in range(6)]
K2_IN = 24
vK2A, aIW, aIR, aOR, aOW, vTG = 148, 149, 150, 151, 152, 154


def k2_const():
    t = TMP
    A(f'''v_cvt_f32_u32 v{t}, v{vL15}
    v_cvt_f32_u32 v{t + 1}, v{vQ}
    v_cvt_f32_u32 v{t + 2}, s{sK1}
    v_mul_f32 v{t + 1}, 4.0, v{t + 1}''')
    fmamk(t + 3, t, 8, t + 2)
    A(f'v_mul_f32 v{t + 3}, {f2u(1.0 / 128)}, v{t + 3}')
    A(f'v_mul_f32 v{t + 4}, {f2u(1.0 / 16)}, v{t}')
    A(f'v_mul_f32 v{t + 5}, {f2u(1.0 / 128)}, v{t}')
    A(f'v_mul_f32 v{t + 5}, v{t + 5}, v{t + 2}')
    for jj in range(4):
        A(f'v_add_f32 v{t + 6}, {f2u(float(jj))}, v{t + 1}')
        A(f'v_mul_f32 v{t + 7}, v{t + 6}, v{t + 3}')
        A(f'v_mul_f32 v{t + 8}, {f2u(1.0 / 16)}, v{t + 7}')
        A(f'v_mul_f32 v{t + 9}, v{t + 6}, v{t + 4}')
        A(f'v_add_f32 v{t + 10}, v{t + 9}, v{t + 5}')
        A(f'v_mul_f32 v{t + 11}, {f2u(1.0 / 16)}, v{t + 10}')
        sincos(t + 7, t + 12, t + 13)
        sincos(t + 8, C_TW1 + jj, C_TW1 + 4 + jj)
        A(f'v_cvt_pk_bf16_f32 v{C_M1 + jj}, v{t + 12}, v{t + 13}')
        A(f'v_cvt_pk_bf16_f32 v{C_M1 + 4 + jj}, -v{t + 13}, v{t + 12}')
        sincos(t + 9, t + 12, t + 13)
        sincos(t + 10, t + 14, t + 15)
        sincos(t + 11, C_TW2 + jj, C_TW2 + 4 + jj)
        A(f'v_cvt_pk_bf16_f32 v{C_M2 + jj}, v{t + 12}, v{t + 13}')
        A(f'v_cvt_pk_bf16_f32 v{C_M2 + 4 + jj}, -v{t + 13}, v{t + 12}')
        A(f'v_cvt_pk_bf16_f32 v{C_M3 + jj}, v{t + 12}, -v{t + 13}')
        A(f'v_cvt_pk_bf16_f32 v{C_M3 + 4 + jj}, v{t + 13}, v{t + 12}')
        A(f'v_cvt_pk_bf16_f32 v{C_M4 + jj}, v{t + 14}, -v{t + 15}')
        A(f'v_cvt_pk_bf16_f32 v{C_M4 + 4 + jj}, v{t + 15}, v{t + 14}')


def k2_loads():
    return ''.join(f'buffer_load_dwordx4 {vr(K2_IN + 4 * j, 4)}, v{vK2A}, {srd(S_WS)}, s{sLD + j} offen sc1\n' for j in range(4))


def k2_addr():
    t = TMP
    A(f'''v_lshrrev_b32 v{t}, 2, v{vL}
    v_mul_u32_u24 v{t}, {BS}, v{t}
    v_and_b32 v{t + 1}, 3, v{vL}
    v_lshl_add_u32 v{vK2A}, v{t + 1}, 4, v{t}
    s_mul_i32 s{sT0}, s{sW}, {64 * BS}
    s_lshl_b32 s{sMODST}, s{sME}, 6
    s_add_u32 s{sT0}, s{sT0}, s{sMODST}
    s_add_u32 s{sLD}, s{sT0}, {WS_T}''')
    for j in range(1, 4):
        A(f's_add_u32 s{sLD + j}, s{sLD}, {16 * j * BS}')
    A(f'''v_mul_u32_u24 v{t}, 3104, v{t + 1}
    v_lshrrev_b32 v{t + 1}, 2, v0
    v_lshl_add_u32 v{t}, v{t + 1}, 4, v{t}
    s_mul_i32 s{sT0}, s{sW}, 3104
    v_add_u32 v{t + 1}, s{sT0}, v{vL16}
    v_add_u32 v{aOR}, {L_K2O}, v{t}
    v_add_u32 v{aOW}, {L_K2O}, v{t + 1}
    v_add_u32 v{aIW}, {L_K2I}, v{t}
    v_add_u32 v{aIR}, {L_K2I}, v{t + 1}
    s_mul_i32 s{sST}, s{sME}, {BS}
    s_lshl_b32 s{sT1}, s{sW}, 12
    s_add_u32 s{sST}, s{sST}, s{sT1}
    s_add_u32 s{sST}, s{sST}, {WS_TP}
    v_mov_b32 v{vTG}, s{sTAG}''')


def cmul(dre, dim, wr, wi, conj, tmp):
    for p in (0, 2):
        pk('mul', tmp + p, dre + p, wr + p)
        pk('mul', tmp + 4 + p, dim + p, wr + p)
    neg = 'neg_lo:[1,0,0] neg_hi:[1,0,0]'
    for p in (0, 2):
        pk('fma', tmp + p, dim + p, wi + p, tmp + p, mods='' if conj else neg)
        pk('fma', tmp + 4 + p, dre + p, wi + p, tmp + 4 + p, mods=neg if conj else '')


def k2_head():
    tg = [K2_IN + 4 * j + 3 for j in range(4)]
    poll_check('t', masked(k2_loads(), tg), tagcheck(tg, TMP))
    stamp('T')
    X = 40
    for c in range(3):
        cb, cs = c & ~1, c & 1
        for p in (0, 2):
            A(f'v_pk_mov_b32 {vr(X + 4 * c + p, 2)}, {vr(K2_IN + 4 * p + cb, 2)}, {vr(K2_IN + 4 * p + 4 + cb, 2)} op_sel:[{cs},{cs}]')
        A(f'ds_write_b128 v{aIW}, {vr(X + 4 * c, 4)} offset:{1024 * c}')
    fine(1, '2a_wr')
    A('s_waitcnt lgkmcnt(0)\ns_barrier')
    fine(1, '2b_bar')


def k2_main():
    X = 40
    OP = 24
    D = 40
    U = 64
    for c in range(3):
        A(f'ds_read_b128 {vr(OP + 4 * c, 4)}, v{aIR} offset:{1024 * c}')

    def mm(c, M, data_is_a):
        for p in range(2):
            a, b = (vr(OP + 4 * c, 4), vr(M + 4 * p, 4)) if data_is_a else (vr(M + 4 * p, 4), vr(OP + 4 * c, 4))
            A(f'v_mfma_f32_16x16x32_bf16 {vr(D + 8 * c + 4 * p, 4)}, {a}, {b}, 0')

    def mid(wr, wi, conj, M, data_is_a):
        for c in range(3):
            cmul(D + 8 * c, D + 8 * c + 4, wr(c), wi(c), conj, U + 8 * c)
        cv = [f'v_cvt_pk_bf16_f32 v{OP + 4 * c + jj}, v{U + 8 * c + jj}, v{U + 8 * c + 4 + jj}' for c in range(3) for jj in range(4)]
        for x in cv[:6]:
            A(x)
        cv = cv[6:]
        for c in range(3):
            for x in A.capture(lambda: mm(c, M, data_is_a)):
                A.items.append(x)
                for y in cv[:2]:
                    A(y)
                cv = cv[2:]
    fine(1, '2c_rd')
    for c in range(3):
        mm(c, C_M1, True)
    if not OPT['cutx'] & 1:
        mid(lambda c: C_TW1, lambda c: C_TW1 + 4, True, C_M2, False)
    mid(lambda c: F_W + 8 * c, lambda c: F_W + 8 * c + 4, False, C_M3, True)
    if not OPT['cutx'] & 1:
        mid(lambda c: C_TW2, lambda c: C_TW2 + 4, False, C_M4, False)
    fine(1, '2d_mm')
    for c in range(3):
        for jj in range(4):
            A(f'v_cvt_pk_bf16_f32 v{OP + 4 * c + jj}, v{D + 8 * c + jj}, v{D + 8 * c + 4 + jj}')
        A(f'ds_write_b128 v{aOW}, {vr(OP + 4 * c, 4)} offset:{1024 * c}')
    fine(1, '2e_wr')
    A('s_waitcnt lgkmcnt(0)\ns_barrier')
    fine(1, '2f_bar')
    for c in range(3):
        A(f'ds_read_b128 {vr(X + 4 * c, 4)}, v{aOR} offset:{1024 * c}')
    fine(1, '2g_rd')
    O = 64
    for j in range(4):
        jb, js = j & ~1, j & 1
        A(f'v_pk_mov_b32 {vr(O + 4 * j, 2)}, {vr(X + jb, 2)}, {vr(X + 4 + jb, 2)} op_sel:[{js},{js}]')
        A(f'v_pk_mov_b32 {vr(O + 4 * j + 2, 2)}, {vr(X + 8 + jb, 2)}, {vr(vTG, 2)} op_sel:[{js},0]')
        A(f'buffer_store_dwordx4 {vr(O + 4 * j, 4)}, v{vLT}, {srd(S_WS)}, s{sST} offen offset:{1024 * j} sc1')


def epoch_store():
    A(f'''s_cmp_eq_u32 s{sME}, 0
    s_cselect_b32 s{sBGO}, {WS_EPOCH}, {OOB}
    v_mov_b32 v{vBG + 3}, s{sTAG}
    buffer_store_dword v{vBG + 3}, off, {srd(S_WS)}, s{sBGO} sc1''')


K3_MA = 100
K3_MB = 132
K3_X = 156
K3_GA, K3_SB, K3_CB = 176, 196, 216
K3_IN = 24
vK3A, vK3B = 236, 237
M2R = 160
X3R = 88
B1R = 192


def side_loads():
    s = ''
    for p in range(4):
        s += f"""s_mov_b32 s{sBG2}, {WS_MOD + MP * p + 320 * 16}
        buffer_load_dwordx4 {vr(M2R + 4 * p, 4)}, v{vT16}, {srd(S_WS)}, s{sBG2} offen sc1
        buffer_load_dwordx4 {vr(M2R + 16 + 4 * p, 4)}, v{vBG + 2}, {srd(S_WS)}, s{sBG2} offen sc1
        """
    return s


def side_prep():
    t = TMP
    A(f"""s_and_b32 s{sT0}, s{sJ}, 7
    s_mul_i32 s{sT0}, s{sT0}, 320
    v_mov_b32 v{t}, s{sT0}
    v_cmp_lt_u32 vcc, 223, v0
    v_cndmask_b32 v{t}, 0, v{t}, vcc
    v_min_u32 v{t + 1}, {243 * 16}, v{vT16}
    v_add_u32 v{t}, v{t}, v{t + 1}
    v_add_u32 v{vBG + 2}, 4096, v{t}
    s_lshr_b32 s{sT0}, s{sT0}, 1
    v_lshl_add_u32 v{vBG + 1}, v{vL31}, 3, s{sT0}
    s_lshl_b32 s{sT0}, s{sCA}, 6
    s_lshl_b32 s{sT1}, s{sCB}, 6
    v_mov_b32 v{t}, s{sT0}
    v_mov_b32 v{t + 1}, s{sT1}
    v_cmp_gt_u32 vcc, 16, v{vL31}
    v_cndmask_b32 v{t}, v{t + 1}, v{t}, vcc
    v_lshl_add_u32 v{vBG}, v{vL15}, 3, v{t}""")


def b2_issue():
    A(f"""buffer_load_dwordx2 v[192:193], v{vBG + 1}, {srd(S_B2)}, 0 offen
    buffer_load_dwordx2 v[194:195], v{vBG}, {srd(S_B1)}, 0 offen""")


def side_finish():
    t = TMP
    poll_check('mod2', side_loads(), bytecheck(M2R, 8, t))
    A(f"""v_subrev_u32 v{t + 2}, 64, v0
    v_cmp_gt_u32 vcc, 160, v{t + 2}
    v_cndmask_b32 v{t + 2}, 0, 1.0, vcc
    v_add_u32 v{t + 5}, {L_M2}, v{vT16}""")
    for g in range(2):
        r = M2R + 16 * g
        sum4(r)
        round_add(r, t + 2 if g else None, t)
        if g:
            unpack(t + 6, t + 7, 192)
            unpack(t + 8, t + 9, 193)
            A(f'''v_mov_b32 v{t + 3}, {f2u(1.0 / GA)}
            v_cmp_lt_u32 vcc, 223, v0
            v_cndmask_b32 v{t + 2}, 1.0, v{t + 3}, vcc''')
            for p in (0, 2):
                pk('mul', t + 6 + p, t + 6 + p, r + p)
                pk('mul', r + p, r + p, t + 2, mods='op_sel_hi:[1,0]')
            A(f'''v_max_u32 v{t + 3}, {223 * 16}, v{vT16}
            v_add_u32 v{t + 3}, {L_M2 + 8192 - 223 * 16}, v{t + 3}
            ds_write_b128 v{t + 3}, {vr(t + 6, 4)}''')
        A(f'ds_write_b128 v{t + 5}, {vr(r, 4)} offset:{4096 * g}')
    unpack(t + 6, t + 7, 194)
    unpack(t + 8, t + 9, 195)
    A(f's_mov_b32 s{sT2}, {f2u(GA)}\ns_mov_b32 s{sT0}, {L_B1}')
    for p in (0, 2):
        pk('mul', t + 6 + p, t + 6 + p, sr(sT2, 2), mods='op_sel_hi:[1,0]')
    A(f'''v_lshl_add_u32 v{t + 3}, v{vL31}, 4, s{sT0}
    ds_write_b128 v{t + 3}, {vr(t + 6, 4)}''')
    for k in range(10):
        A(f'v_accvgpr_read_b32 v{X3R + k}, a{240 + k}')
    for k in range(10):
        unpack(K3_X + 2 * k, K3_X + 2 * k + 1, X3R + k)


def k3_const():
    t = TMP
    A(f'''v_lshlrev_b32 v{t}, 2, v{vL31}
    v_add_u32 v{t}, s{sW}, v{t}
    v_cvt_f32_u32 v{t}, v{t}
    v_mul_f32 v{t}, {f2u(1.0 / 128)}, v{t}
    v_cvt_f32_u32 v{t + 8}, v{vH}
    v_mul_f32 v{t + 8}, 4.0, v{t + 8}
    v_mul_f32 v{t + 1}, v{t + 8}, v{t}''')
    for u in range(4):
        for jp in (0, 2):
            fmamk(t + 2, t, 8 * u + jp, t + 1)
            fmamk(t + 5, t, 8 * u + jp + 1, t + 1)
            sincos(t + 2, t + 3, t + 4)
            sincos(t + 5, t + 6, t + 7)
            for jj, e in ((jp, 3), (jp + 1, 6)):
                A(f'v_cvt_pk_bf16_f32 v{K3_MA + 4 * u + jj}, v{t + e}, -v{t + e + 1}')
                A(f'v_cvt_pk_bf16_f32 v{K3_MA + 16 + 4 * u + jj}, v{t + e + 1}, v{t + e}')
    A(f'''v_lshrrev_b32 v{t}, 3, v{vL31}
    v_cvt_f32_u32 v{t}, v{t}
    v_mul_f32 v{t}, {f2u(0.4)}, v{t}
    v_and_b32 v{t + 1}, 7, v{vL}
    v_cvt_f32_u32 v{t + 1}, v{t + 1}
    v_mul_f32 v{t + 1}, {f2u(0.125)}, v{t + 1}
    v_mul_f32 v{t + 9}, v{t + 8}, v{t + 1}''')
    for jj in range(4):
        fmamk(t + 10, t + 1, jj, t + 9)
        for tau in range(3):
            fmamk(t + 2, t, tau, t + 10)
            sincos(t + 2, t + 3, t + 4)
            if tau:
                A(f'v_add_f32 v{t + 5}, {f2u(1.6 * tau)}, v{t + 10}')
                sincos(t + 5, t + 6, t + 7)
            A(f'v_cvt_pk_bf16_f32 v{K3_MB + 4 * tau + jj}, v{t + 3}, -v{t + 4}')
            if tau:
                A(f'v_cvt_pk_bf16_f32 v{K3_MB + 12 + 4 * tau + jj}, v{t + 6}, -v{t + 7}')
            else:
                A(f'v_mov_b32 v{K3_MB + 12 + jj}, v{K3_MB + jj}')


def k3_loads():
    return ''.join(f'buffer_load_dwordx4 {vr(K3_IN + 4 * m, 4)}, v{vK3A + (m >> 1)}, {srd(S_WS)}, s{sLD + m} offen sc1\n' for m in range(4))


def k3_ldaddr():
    t = TMP
    A(f'''v_lshrrev_b32 v{t}, 5, v0
    v_sub_u32 v{t + 1}, 8, v{t}
    v_and_b32 v{t + 1}, 7, v{t + 1}
    v_lshrrev_b32 v{t + 2}, 2, v{vL31}
    v_lshl_add_u32 v{t}, v{t}, 5, v{t + 2}
    v_lshl_add_u32 v{t + 1}, v{t + 1}, 5, v{t + 2}
    v_mul_u32_u24 v{t}, {BS}, v{t}
    v_mul_u32_u24 v{t + 1}, {BS}, v{t + 1}
    v_and_b32 v{t + 2}, 3, v{vL}
    v_lshl_add_u32 v{vK3A}, v{t + 2}, 4, v{t}
    v_lshl_add_u32 v{vK3B}, v{t + 2}, 4, v{t + 1}
    s_add_u32 s{sLD}, s{sMODST}, {WS_TP}''')
    for m in range(1, 4):
        A(f's_add_u32 s{sLD + m}, s{sLD}, {8 * m * BS}')


aWA, aRA, aYA = 8, 11, 12
aYR, aSEL, aX1 = 84, 86, 87
aRW, aRR, aY2, aMO = 89, 91, 92, 93
ST3 = 18
vEPS = 22
GK = 2.0 * 0.7978845608028654 * 1.4426950408889634
GA = (GK * 0.044715) ** (1.0 / 3.0)


def k3_addr():
    t = 95
    A(f'v_lshrrev_b32 v{t}, 5, v0')
    A(f'v_mul_u32_u24 v{t}, 144, v{t}')
    for c in range(3):
        A(f'''v_add_u32 v{t + 1}, {13 * c}, v{vL31}
        v_and_b32 v{t + 1}, 31, v{t + 1}
        v_lshl_add_u32 v{t + 1}, v{t + 1}, 2, v{t}
        v_add_u32 v{aWA + c}, {L_K3I + 8 * 144 * c}, v{t + 1}''')
    A(f'''s_mul_i32 s{sT0}, s{sW}, 3584
    s_add_u32 s{sT0}, s{sT0}, {L_K3I}
    v_mul_u32_u24 v{t}, 144, v{vL31}
    v_lshl_add_u32 v{t}, v{vH}, 4, v{t}
    v_add_u32 v{aRA}, s{sT0}, v{t}''')
    A(f'''v_lshl_add_u32 v{t}, v{vL31}, 2, s{sW}
    v_mul_u32_u24 v{t + 1}, 3, v{t}
    v_mul_u32_u24 v{t + 2}, 5120, v{vH}
    v_lshl_add_u32 v{t}, v{t}, 2, v{t + 2}
    v_add_u32 v{t}, {L_Y}, v{t}''')
    if OPT['ys']:
        A(f'v_and_b32 v{t + 4}, 16, v{vL}\nv_xor_b32 v{t}, v{t}, v{t + 4}')
    for a in range(5):
        A(f'v_add_u32 v{t + 2}, {2 * a}, v{t + 1}')
        mod5(t + 2, t + 2, t + 3)
        A(f'v_lshl_add_u32 v{aYA + a}, v{t + 2}, 9, v{t}')
    A(f'''s_mul_i32 s{sT0}, s{sW}, 2560
    s_add_u32 s{sT1}, s{sT0}, {L_Y}
    v_lshl_add_u32 v{aYR}, v{vL31}, 5, s{sT1}
    v_lshl_add_u32 v{aYR + 1}, v{vL31}, 4, s{sT1}
    {f'v_xor_b32 v{aYR + 1}, v{aYR + 1}, v{t + 4}' if OPT['ys'] else ''}
    v_and_b32 v{t + 4}, {8 if OPT['ys'] else 0}, v{vL}
    v_lshl_add_u32 v{aYR}, v{t + 4}, 1, v{aYR}
    v_xor_b32 v{aY2}, 16, v{aYR}
    s_mov_b32 s{sT1}, {L_M2}
    v_lshl_add_u32 v{aMO}, v{vL31}, 5, s{sT1}
    v_lshl_add_u32 v{aMO + 1}, v{vL31}, 4, s{sT1}
    v_mov_b32 v{t}, 0x01000c0c
    v_mov_b32 v{t + 1}, 0x03020c0c
    v_cmp_eq_u32 vcc, 1, v{vH}
    v_cndmask_b32 v{aSEL}, v{t}, v{t + 1}, vcc
    s_lshl_b32 s{sST + 3}, s{sW}, 9
    s_add_u32 s{sST + 3}, s{sST + 3}, s{sME}
    s_mul_i32 s{sST + 3}, s{sST + 3}, 1280
    s_mul_i32 s{sST}, s{sJ}, 10
    s_add_u32 s{sST}, s{sST}, s{sW}
    s_mul_i32 s{sST}, s{sST}, {BS}
    s_lshl_b32 s{sT1}, s{sCL}, 10
    s_add_u32 s{sST}, s{sST}, s{sT1}
    s_add_u32 s{sST}, s{sST}, {WS_Y2}
    s_add_u32 s{sST + 1}, s{sST}, {4 * BS}
    s_add_u32 s{sST + 2}, s{sST}, {8 * BS}
    s_cmp_lt_u32 s{sW}, 2
    s_cselect_b32 s{sST + 2}, s{sST + 2}, {OOB}
    v_mul_u32_u24 v{t}, {256 * 1280}, v{vH}
    v_lshl_add_u32 v{aX1}, v{vL31}, 4, v{t}
    v_lshl_add_u32 v{aX1 + 1}, v{vL31}, 3, v{t}''')
    A(f'''s_lshl_b32 s{sT2}, s{sW}, 1
    v_add_u32 v{t}, s{sT2}, v{vH}
    v_xor_b32 v{t + 1}, v{t}, v{vL31}
    v_and_b32 v{t + 1}, 7, v{t + 1}
    v_lshlrev_b32 v{t + 1}, 4, v{t + 1}
    v_lshl_add_u32 v{t + 1}, v{vL31}, 7, v{t + 1}
    v_add_u32 v{aRW}, {L_Y2}, v{t + 1}
    v_lshrrev_b32 v{t + 2}, 1, v{vL31}
    v_xor_b32 v{t + 3}, v{t}, v{t + 2}
    v_and_b32 v{t + 3}, 7, v{t + 3}
    v_lshlrev_b32 v{t + 3}, 4, v{t + 3}
    v_lshl_add_u32 v{t + 3}, v{t + 2}, 7, v{t + 3}
    v_and_b32 v{t + 2}, 1, v{vL}
    v_lshl_add_u32 v{t + 3}, v{t + 2}, 3, v{t + 3}
    v_add_u32 v{aRW + 1}, {L_Y2 + 64 * 128}, v{t + 3}
    v_lshrrev_b32 v{t + 2}, 3, v0
    v_xor_b32 v{t + 4}, v{t + 2}, v0
    v_and_b32 v{t + 4}, 7, v{t + 4}
    v_lshlrev_b32 v{t + 4}, 4, v{t + 4}
    v_lshl_add_u32 v{t + 4}, v{t + 2}, 7, v{t + 4}
    v_add_u32 v{aRR}, {L_Y2}, v{t + 4}
    v_mov_b32 v{vEPS}, {f2u(1e-5 / GA ** 2)}''')


def row_stats(b, t, scale=None):
    pk('add', t, b, b + 2)
    pk('mul', t + 2, b, b)
    for k in range(1, 10):
        if k > 1:
            pk('add', t, t, b + 2 * k)
        pk('fma', t + 2, b + 2 * k, b + 2 * k, t + 2)
    A(f'''v_add_f32 v{t}, v{t}, v{t + 1}
    v_add_f32 v{t + 2}, v{t + 2}, v{t + 3}
    v_permlane16_swap_b32 v{t}, v{t + 2}
    v_add_f32 v{t}, v{t}, v{t + 2}''')
    for r in (8, 4, 2, 1):
        A(f'v_add_f32_dpp v{t}, v{t}, v{t} row_ror:{r} row_mask:0xf bank_mask:0xf')
    A(f'''v_mul_f32 v{t + 1}, {f2u(1.0 / 640)}, v{t}
    v_mul_f32 v{t + 2}, {f2u(1.0 / 640)}, v{t}
    v_permlane16_swap_b32 v{t + 1}, v{t + 2}
    v_fma_f32 v{t}, -v{t + 1}, v{t + 1}, v{t + 2}
    v_max_f32 v{t}, 0, v{t}''')
    if scale is None:
        A(f'v_add_f32 v{t}, {f2u(1e-5)}, v{t}')
    else:
        A(f'v_fmamk_f32 v{t}, v{t}, {f2u(1.0 / scale ** 2)}, v{vEPS}')
    A(f'''v_rsq_f32 v{t}, v{t}
    v_mul_f32 v{t + 1}, v{t + 1}, v{t}''')


X1P = 72


def x1_store():
    A(f'''buffer_store_dwordx4 {vr(X1P, 4)}, v{aX1}, {srd(S_OUT)}, s{sST + 3} offen sc1
    buffer_store_dwordx4 {vr(X1P + 4, 4)}, v{aX1}, {srd(S_OUT)}, s{sST + 3} offen offset:512 sc1
    buffer_store_dwordx2 {vr(X1P + 8, 2)}, v{aX1 + 1}, {srd(S_OUT)}, s{sST + 3} offen offset:1024 sc1''')


def k3_poll():
    tg = [K3_IN + 4 * m + 3 for m in range(4)]
    poll_check('tp', masked(k3_loads(), tg), tagcheck(tg, ST3))
    stamp('Tp')


MOE = OPT['mo'] and OPT['m2'] < 5


def mo_reads():
    mo = []
    for v, dst in enumerate((K3_GA, K3_SB, K3_CB)):
        for k in range(4):
            mo.append(f'ds_read_b128 {vr(dst + 4 * k, 4)}, v{aMO} offset:{2560 * v + 1024 * (k >> 1) + 16 * (k & 1)}')
        mo.append(f'ds_read_b128 {vr(dst + 16, 4)}, v{aMO + 1} offset:{2560 * v + 2048}')
    return mo


def k3_main():
    Z, P, Q = 40, 48, 56
    for c in range(3):
        if c == 0:
            src = [K3_IN + 4 * k for k in range(4)]
        else:
            r0 = 1 if c == 1 else 3
            for k in range(4):
                A(f'v_cndmask_b32 v{Q + k}, v{K3_IN + 4 * ((k + r0) % 4) + c}, v{K3_IN + 4 * ((k + r0 + 1) % 4) + c}, {sr(sM1 if c == 1 else sM2, 2)}')
            src = [Q + k for k in range(4)]
        z = Z + 20 * (c & 1)
        for k in range(4):
            unpack(z + 2 * k, z + 2 * k + 1, src[k])
        radix4(z, P, True)
        for k in (0, 1):
            A(f'v_cvt_pk_bf16_f32 v{z + 2 * k}, v{z + 2 * k}, v{z + 2 * k + 1}')
            A(f'v_cvt_pk_bf16_f32 v{z + 2 * k + 4}, v{z + 2 * k + 4}, v{z + 2 * k + 5}')
            A(f'ds_write2st64_b32 v{aWA + c}, v{z + 2 * k}, v{z + 2 * k + 4} offset0:{14 * k} offset1:{14 * k + 28}')
    fine(3, '3a_wr')
    A('s_waitcnt lgkmcnt(0)\ns_barrier')
    fine(3, '3b_bar')
    OPA = 24
    DRE, DIM = 40, 56
    for u in range(4):
        A(f'ds_read_b128 {vr(OPA + 4 * u, 4)}, v{aRA} offset:{32 * u}')
    mo = mo_reads() if not MOE else [''] * 15
    for u in range(4):
        A(f'v_mfma_f32_32x32x16_bf16 {vr(DRE, 16)}, {vr(OPA + 4 * u, 4)}, {vr(K3_MA + 4 * u, 4)}, {vr(DRE, 16) if u else 0}')
        A(mo.pop(0))
        A(mo.pop(0))
        A(f'v_mfma_f32_32x32x16_bf16 {vr(DIM, 16)}, {vr(OPA + 4 * u, 4)}, {vr(K3_MA + 16 + 4 * u, 4)}, {vr(DIM, 16) if u else 0}')
        if u:
            A(mo.pop(0))
            A(mo.pop(0))
    A(mo.pop(0))
    fine(3, '3c_stA')
    OPB = 72
    E0, E1 = 100, 116
    def cvb(tau):
        for jj in range(4):
            A(f'v_cvt_pk_bf16_f32 v{OPB + 4 * tau + jj}, v{DRE + 4 * tau + jj}, v{DIM + 4 * tau + jj}')
    cvb(0)
    for tau in range(3):
        A(f'v_mfma_f32_32x32x16_bf16 {vr(E0, 16)}, {vr(K3_MB + 4 * tau, 4)}, {vr(OPB + 4 * tau, 4)}, {vr(E0, 16) if tau else 0}')
        if tau < 2:
            cvb(tau + 1)
            A('s_nop 1')
    for tau in range(3):
        A(f'v_mfma_f32_32x32x16_bf16 {vr(E1, 16)}, {vr(K3_MB + 12 + 4 * tau, 4)}, {vr(OPB + 4 * tau, 4)}, {vr(E1, 16) if tau else 0}')
        if tau < 2:
            A('s_nop 4')
    fine(3, '3d_stB')
    for a in range(5):
        e = E0 + 4 * a
        A(f'v_cvt_pk_bf16_f32 v{24 + 2 * a}, v{e}, v{e + 1}')
        A(f'v_cvt_pk_bf16_f32 v{25 + 2 * a}, v{e + 2}, v{e + 3}')
        A(f'ds_write2st64_b32 v{aYA + a}, v{24 + 2 * a}, v{25 + 2 * a} offset0:0 offset1:10')
    fine(3, '3e_wr')
    A('s_waitcnt lgkmcnt(0)\ns_barrier')
    fine(3, '3f_bar')
    Y = 40
    for k in range(4):
        A(f'ds_read_b128 {vr(Y + 4 * k, 4)}, v{aY2 if k & 1 else aYR} offset:{1024 * (k >> 1)}')
    A(f'ds_read_b128 {vr(Y + 16, 4)}, v{aYR + 1} offset:2048')
    fine(3, '3g_rd')
    PK = X1P
    for k in range(10):
        A(f'v_perm_b32 v{Y + 2 * k}, v{Y + 2 * k}, v{Y + 2 * k}, v{aSEL}')
        A(f'v_perm_b32 v{Y + 2 * k + 1}, v{Y + 2 * k + 1}, v{Y + 2 * k + 1}, v{aSEL}')
        pk('fma', Y + 2 * k, Y + 2 * k, K3_GA + 2 * k, K3_X + 2 * k)
    X1 = A.capture(lambda: [A(f'v_cvt_pk_bf16_f32 v{PK + k}, v{Y + 2 * k}, v{Y + 2 * k + 1}') for k in range(10)])
    st = A.capture(lambda: row_stats(Y, ST3))
    n0 = 21
    A.items.extend(st[:n0])
    for i in st[n0:]:
        if X1:
            A.items.append(X1.pop(0))
        A.items.append(i)
    A.items.extend(X1)
    fine(3, '3h_st1')
    xst = A.groups(x1_store) if not OPT['xl'] else []
    if OPT['cutx'] & 32:
        xst = []
    if not OPT['xs']:
        A.emit(xst)
        xst = []
    x0 = len(A.items)
    fine(3, '3i_x1')
    nm = 'op_sel:[0,0,1] op_sel_hi:[1,0,1] neg_lo:[0,0,1] neg_hi:[0,0,1]'
    if not OPT['cutx'] & 2:
        for k in range(10):
            pk('fma', Y + 2 * k, Y + 2 * k, ST3, ST3, mods=nm)
            pk('fma', Y + 2 * k, Y + 2 * k, K3_CB + 2 * k, K3_SB + 2 * k)
        row_stats(Y, ST3, GA)
    fine(3, '3j_st2')
    PK = 60
    for k in range(10):
        pk('fma', Y + 2 * k, Y + 2 * k, ST3, ST3, mods=nm)
        A(f'v_cvt_pk_bf16_f32 v{PK + k}, v{Y + 2 * k}, v{Y + 2 * k + 1}')
        if k == 3:
            A(f'ds_write_b128 v{aRW}, {vr(PK, 4)}')
        if k == 7:
            A(f'ds_write_b128 v{aRW}, {vr(PK + 4, 4)} offset:4096')
    A(f'ds_write_b64 v{aRW + 1}, {vr(PK + 8, 2)}')
    if xst:
        tail = A.items[x0:]
        del A.items[x0:]
        A.spread(tail, xst, 0, OPT['xs'] / 100)


def k3_tail():
    fine(3, '3k_wr')
    if OPT['sn']:
        A(f's_waitcnt vmcnt({after_last(lambda x: x.lds)})')
    A('s_waitcnt lgkmcnt(0)\ns_barrier')
    fine(3, '3l_bar')
    for i in range(3):
        A(f'ds_read_b128 {vr(24 + 4 * i, 4)}, v{aRR} offset:{4096 * i}')
    for i in range(3):
        A(f'buffer_store_dwordx4 {vr(24 + 4 * i, 4)}, v{vLY}, {srd(S_WS)}, s{sST + i} offen{YSC}')


G1_A = 24
G1_ACC = 184
G1_B = 232
NS, PRE = 4, 3
aB, aPW, aPR, vH4, vG1A, vGC, vT1 = 8, 12, 16, 18, 20, 22, 23
vG1X = 18
B1RAW = 132
sHB = 72
NB = OPT['nb']
PARTS = [[(ks, tl) for ks in range(20) for tl in range(6 if ks % 5 < NB else 4)], [(ks, tl) for ks in range(20) if ks % 5 >= NB for tl in (4, 5)]]
assert sum(SWB[:10]) >= 2 * NB
aBB = 254


def b1_issue():
    A(f"""s_mul_i32 s{sBG2}, s{sJ}, 192
    v_lshlrev_b32 v{vBG}, 3, v{vQ}""")
    for k in range(6):
        A(f'buffer_load_dwordx2 {vr(B1RAW + 2 * k, 2)}, v{vBG}, {srd(S_B1)}, s{sBG2} offen offset:{32 * k}')


def g1_load(i):
    ks, r = divmod(i, 2)
    pre = f's_add_u32 s{sLD}, s{sLD}, {BS}\n' if i and i % 4 == 0 else ''
    return pre + f'buffer_load_dwordx4 {vr(G1_A + 4 * i, 4)}, v{vG1A + r}, {srd(S_WS)}, s{sLD} offen offset:{512 * (ks & 1)} sc1'


def g1_rd(part, n):
    ks, tl = PARTS[part][n]
    s = G1_B + 4 * (n % NS)
    off = BIG + 30720 * ((ks // 5) & 1)
    if tl >= 4:
        return [f'ds_read_b128 {vr(s, 4)}, v{vL16 if ks < 10 else aBB} offset:{off + 20480 + 1024 * (2 * (ks % 5) + tl - 4)}']
    off += 4096 * (ks % 5)
    out = [f'ds_read_b64_tr_b16 {vr(s, 2)}, v{aB + tl} offset:{off}', f'ds_read_b64_tr_b16 {vr(s + 2, 2)}, v{aB + tl} offset:{off + 512}']
    if ks == 9:
        out[1] += f'\nv_add_u32 v{aB + tl}, 61440, v{aB + tl}'
    return out


def g1_bias():
    A(f's_mov_b32 s{sT2}, {L_B1}\nv_lshl_add_u32 v14, v{vQ}, 4, s{sT2}')
    for tl in range(6):
        for r in range(2):
            A(f'ds_read_b128 {vr(G1_ACC + 8 * tl + 4 * r, 4)}, v14 offset:{64 * tl}')


def g1_pre():
    t = 12
    A(f"""v_lshrrev_b32 v{t}, 3, v{vL15}
    v_mul_u32_u24 v{t}, {10 * BS}, v{t}
    v_lshl_add_u32 v{t}, v{vQ}, 7, v{t}
    v_and_b32 v{t + 1}, 7, v{vL}
    v_lshl_add_u32 v{vG1A}, v{t + 1}, 4, v{t}
    v_add_u32 v{vG1A + 1}, {20 * BS}, v{vG1A}
    s_mul_i32 s{sT0}, s{sW}, {40 * BS}
    s_lshl_b32 s{sT1}, s{sCL}, 10
    s_add_u32 s{sT0}, s{sT0}, s{sT1}
    s_add_u32 s{sLD}, s{sT0}, {WS_Y2}""")
    A(f"""v_lshrrev_b32 v{t}, 2, v{vL15}
    v_lshl_add_u32 v{t}, v{vQ}, 3, v{t}
    v_lshlrev_b32 v{t}, 7, v{t}
    v_and_b32 v{t + 1}, 3, v{vL}
    v_lshl_add_u32 v{t}, v{t + 1}, 3, v{t}
    v_bfe_u32 v{t + 1}, v{vL}, 3, 2
    v_lshl_add_u32 v{aB}, v{t + 1}, 5, v{t}
    v_xor_b32 v{aB + 1}, 32, v{aB}
    v_xor_b32 v{aB + 2}, 64, v{aB}
    v_xor_b32 v{aB + 3}, 96, v{aB}
    v_add_u32 v{aBB}, 61440, v{vL16}""")


def g1_part(part, side):
    fr = PARTS[part]
    for n, (ks, tl) in enumerate(fr):
        rd = g1_rd(part, n + PRE) if n + PRE < len(fr) else []
        for r in range(2):
            acc = vr(G1_ACC + 8 * tl + 4 * r, 4)
            A(f'v_mfma_f32_16x16x32_bf16 {acc}, {vr(G1_B + 4 * (n % NS), 4)}, {vr(G1_A + 4 * (2 * ks + r), 4)}, {acc}')
            if r < len(rd):
                A(rd[r])
        for x in side.get(n, []):
            if callable(x):
                x()
            else:
                A.items.extend(x)


def place(side, groups, lo, hi):
    for k, g in enumerate(groups):
        side.setdefault(lo + (hi - lo) * k // max(len(groups), 1), []).append(g)


def late_addr():
    t = vT1
    if OPT['hr']:
        A(f'''s_and_b32 s{sDW}, s{sJ}, {[0, 1, 1, 3][OPT['hr']]}
        s_lshl_b32 s{sDW}, s{sDW}, {[0, 1, 0, 0][OPT['hr']]}
        s_add_u32 s{sDW}, s{sDW}, s{sW}
        s_and_b32 s{sDW}, s{sDW}, 3''')
    A(f"""s_mul_i32 s{sST}, s{sCL}, 393216
    s_add_u32 s{sST}, s{sST}, {WS_H}
    s_lshr_b32 s{sT0}, s{sJ}, 3
    s_mul_i32 s{sT0}, s{sT0}, {4 * 48 * 1024}
    s_add_u32 s{sT0}, s{sT0}, s{sST}
    s_mul_i32 s{sT1}, s{sW}, {12 * 1024}
    s_add_u32 s{sT0}, s{sT0}, s{sT1}
    s_mul_i32 s{sT1}, s{sW}, {96 * 1024}
    s_add_u32 s{sST}, s{sST}, s{sT1}
    s_mul_i32 s{sT1}, s{sJ}, 3072
    s_add_u32 s{sST}, s{sST}, s{sT1}
    s_add_u32 s{sST + 1}, s{sST}, {48 * 1024}
    v_mov_b32 v{vGC}, {f2u(GK / GA)}
    v_add_u32 v{vH4}, 4096, v{vL16}
    v_add_u32 v{vH4 + 1}, 8192, v{vL16}""")
    if OPT['sn'] != 2:
        flag_prep(1)
    A(f"""v_mul_u32_u24 v{t}, {RS}, v{vL15}
    v_lshl_add_u32 v{t}, v{vQ}, 4, v{t}""")
    for blk in range(4):
        A(f"""s_add_u32 s{sT1}, s{sDW}, {blk + 1}
        s_and_b32 s{sT1}, s{sT1}, 3
        s_mul_i32 s{sT2}, s{sT1}, {48 * 1024}
        s_add_u32 s{sHB + blk}, s{sT0}, s{sT2}
        s_mul_i32 s{sT1}, s{sT1}, {4 * PS}
        s_add_u32 s{sT1}, s{sT1}, {blk * PS}
        v_add_u32 v{aPW + blk}, s{sT1}, v{t}""")
    A(f"""v_lshrrev_b32 v{aPR}, 2, v{vL}
    v_and_b32 v{vOA}, 7, v{aPR}
    v_mul_u32_u24 v{aPR}, {RS}, v{aPR}
    s_mul_i32 s{sT2}, s{sDW}, {4 * PS}
    v_add_u32 v{aPR}, s{sT2}, v{aPR}
    v_and_b32 v{t}, 3, v{vL}
    v_lshl_add_u32 v{aPR + 1}, v{t}, 4, v{aPR}
    v_lshl_add_u32 v{aPR}, v{t}, 5, v{aPR}
    s_and_b32 s{sT0}, s{sPID}, 0xf8
    s_lshl_b32 s{sT1}, s{sDW}, 1
    s_add_u32 s{sT0}, s{sT0}, s{sT1}
    s_and_b32 s{sT2}, s{sJ}, 7
    s_mul_i32 s{sT3}, s{sT2}, 160
    v_lshlrev_b32 v{vOA}, 8, v{vOA}
    v_add3_u32 v{vOA}, v{vH}, v{vOA}, s{sT0}
    v_mul_u32_u24 v{vOA}, 1280, v{vOA}
    v_add_u32 v{vOA}, s{sT3}, v{vOA}
    v_lshl_add_u32 v{vOC}, v{t}, 3, v{vOA}
    v_lshl_add_u32 v{vOA}, v{t}, 4, v{vOA}""")


def gelu_unit(u, r):
    b = G1_ACC + 16 * u + 4 * r
    regs = [b, b + 2, b + 8, b + 10]
    e = G1_B
    o = G1_B + 8 + 4 * r
    if OPT['gpre'] and u >= 1:
        e = G1_ACC
        o = G1_ACC + 8 + 4 * r
    for k, x in enumerate(regs):
        pk('fma', e + 2 * k, x, x, vGC, mods='op_sel_hi:[1,1,0]')
    for k, x in enumerate(regs):
        pk('mul', e + 2 * k, e + 2 * k, x, mods=NEG1)
    for k in range(0 if OPT['cutx'] & 4 else 8):
        A(f'v_exp_f32 v{e + k}, v{e + k}')
    for k in range(4):
        pk('add', e + 2 * k, e + 2 * k, '1.0', mods='op_sel_hi:[1,0]')
    for k in range(8):
        A(f'v_rcp_f32 v{e + k}, v{e + k}')
    for k, x in enumerate(regs):
        pk('mul', e + 2 * k, e + 2 * k, x)
    for k in range(4):
        A(f'v_cvt_pk_bf16_f32 v{o + k}, v{e + 2 * k}, v{e + 2 * k + 1}')
    A(f'buffer_store_dwordx4 {vr(o, 4)}, v{vLW}, {srd(S_WS)}, s{sST + r} offen offset:{1024 * u} sc1')


G2_H = 24
NH = 20
FINR = 104
G2_ACC = 120
G2_BASE = 200
G2_GB = 220
vOA, vOC = 248, 249
RS = 336
PS = 16 * RS
OA = OPT['oa']
G2SEQ = [(b, k) for b in range(3) for k in KA] + [(3, k) for k in KA[:OA]] + [(b, k) for b in range(3) for k in KB] + [(3, k) for k in KA[OA:] + KB]
NGA = 24 + OA
if OPT['t3']:
    assert OA <= 4
    G2SEQ = [(b, k) for b in range(3) for k in KA[:4]] + [(3, k) for k in KA[:OA]] + [(b, k) for b in range(3) for k in KA[4:]] + G2SEQ[NGA:]


def fin_issue():
    R = FINR
    A(f"""buffer_load_dwordx4 {vr(R, 4)}, v{vOA}, {srd(S_OUT)}, 0 offen sc1
    buffer_load_dwordx4 {vr(R + 4, 4)}, v{vOA}, {srd(S_OUT)}, 0 offen offset:64 sc1
    buffer_load_dwordx2 {vr(R + 8, 2)}, v{vOC}, {srd(S_OUT)}, 0 offen offset:128 sc1""")


def fin_finish():
    t = vG1A
    A(f"""v_and_b32 v{t}, 3, v{vL}
    v_lshlrev_b32 v{t + 1}, 4, v{t}
    v_add_u32 v{t + 1}, {L_M2 + 7680}, v{t + 1}
    v_lshl_add_u32 v{t}, v{t}, 4, v{t + 1}""")
    for dst, off in ((G2_BASE, 528), (G2_GB, 0)):
        for k in range(4):
            A(f'ds_read_b128 {vr(dst + 4 * k, 4)}, v{t} offset:{off + 128 * (k >> 1) + 16 * (k & 1)}')
        A(f'ds_read_b128 {vr(dst + 16, 4)}, v{t + 1} offset:{off + 256}')
    for k in range(10):
        unpack(114, 115, FINR + k)
        A(f'v_add_f32 v{G2_BASE + 2 * k}, v114, v{G2_BASE + 2 * k}')
        A(f'v_add_f32 v{G2_BASE + 2 * k + 1}, v115, v{G2_BASE + 2 * k + 1}')


def g2_load(n):
    blk, kl = G2SEQ[n]
    return f'buffer_load_dwordx4 {vr(G2_H + 4 * (n % NH), 4)}, v{[vLW, vH4, vH4 + 1][kl // 4]}, {srd(S_WS)}, s{sHB + blk} offen offset:{1024 * (kl % 4)} sc1'


def g2_main(nxt, bg):
    LA = OPT['la2']

    def rdp(dst, slot):
        out = [f'ds_read_b128 {vr(dst + 4 * k, 4)}, v{aPR} offset:{slot * PS + 128 * (k >> 1) + 16 * (k & 1)}' for k in range(4)]
        out.append(f'ds_read_b128 {vr(dst + 16, 4)}, v{aPR + 1} offset:{slot * PS + 256}')
        return out
    side = {}

    def put(pos, x):
        side.setdefault(pos, []).append(x)
    place(side, bg, 2, 5 * (NGA - 8))
    f0 = 30 if OPT['xq'] else 6
    if OPT['xl'] or OPT['sn'] == 1:
        place(side, A.groups(fin_issue), 7, 37)
        f0 = 66
    for k, x in enumerate(A.capture(fin_finish)):
        put(f0 + k + k // 4, [x])
    put(OPT['pb'], lambda: flag_publish(2))
    put(OPT['qb'], lambda: A(flag_ld(2)))
    put(OPT['cb'], lambda: (flag_check(2), stamp('hb')))
    m0 = 5 * NGA
    sp = OPT['wsp']
    for b in range(3):
        for nt in range(5):
            put(m0 + 20 * (b + 1) + 3 + sp * nt, lambda b=b, nt=nt: A(f'ds_write_b128 v{aPW + b}, {vr(G2_ACC + 20 * b + 4 * nt, 4)} offset:{64 * nt}'))
    m1 = m0 + 60 + 4 * sp + 7
    put(m1, lambda: A('s_waitcnt lgkmcnt(0)\ns_barrier'))
    pos = m1
    for sl in range(3):
        for x in rdp(G2_ACC + 20 * sl, sl):
            put(min(pos, 239), lambda x=x: A(x))
            pos += 1 if sl else 0
        pos += 0 if sl else 1
    ops = [f'v_fmac_f32 v{G2_BASE + k}, v{G2_GB + k}, v{G2_ACC + 20 * sl + k}' for sl in range(3) for k in range(20)]
    for p_ in range(m1 + 6, 240):
        n_ = 1 if p_ < m1 + 11 else 2
        for x in ops[:n_]:
            put(p_, lambda x=x: A(x))
        ops = ops[n_:]
    pa = G2_ACC + 60
    own = [f'ds_write_b128 v{aPW + 3}, {vr(pa + 4 * nt, 4)} offset:{64 * nt}' for nt in range(5)]
    order = [(n, nt) for n in range(48) for nt in range(5)]
    if OPT['pt']:
        order = order[:220] + [(n, nt) for nt in range(5) for n in range(44, 48)]
        for nt in range(3):
            put(227 + 4 * nt + 3, lambda x=own[nt]: A(x))
        own = own[3:]
    seen = set()
    for m, (n, nt) in enumerate(order):
        blk, kl = G2SEQ[n]
        acc = G2_ACC + 20 * blk
        assert nxt > n
        A(f'v_mfma_f32_16x16x32_bf16 {vr(acc + 4 * nt, 4)}, {ar((kl * 5 + nt) * 4, 4)}, {vr(G2_H + 4 * (n % NH), 4)}, {vr(acc + 4 * nt, 4) if (blk, nt) in seen else 0}')
        seen.add((blk, nt))
        for x in side.get(m, []):
            if callable(x):
                x()
            else:
                A.items.extend(x)
        if nt in (0, 3) and nxt < 48 and nxt <= n + LA and nxt - NH < n and (nxt < NGA or m >= OPT['cb']):
            A(g2_load(nxt))
            nxt += 1
    stamp('g2')
    A(own.pop(0))
    for x in ops:
        A(x)
    for x in own:
        A(x)
    R = G2_ACC
    for x in rdp(R, 3):
        A(x)
    for k in range(10):
        pk('fma', R + 2 * k, R + 2 * k, G2_GB + 2 * k, G2_BASE + 2 * k)
        A(f'v_cvt_pk_bf16_f32 v{R + 20 + k}, v{R + 2 * k}, v{R + 2 * k + 1}')
        if k == 3:
            A(f'buffer_store_dwordx4 {vr(R + 20, 4)}, v{vOA}, {srd(S_OUT)}, 0 offen{OSC}')
        if k == 7:
            A(f'buffer_store_dwordx4 {vr(R + 24, 4)}, v{vOA}, {srd(S_OUT)}, 0 offen offset:64{OSC}')
    A(f'buffer_store_dwordx2 {vr(R + 28, 2)}, v{vOC}, {srd(S_OUT)}, 0 offen offset:128{OSC}')


def y2_check(g, issued):
    r = G1_A + 16 * g + 3
    k = (issued - 1) // 4
    ld = ''
    for i in range(4 * g, issued):
        ks, rr = divmod(i, 2)
        if i % 4 == 0:
            ld += f's_sub_u32 s{sLD + 1}, s{sLD}, {(k - i // 4) * BS}\n'
        ld += f'buffer_load_dwordx4 {vr(G1_A + 4 * i, 4)}, v{vG1A + rr}, {srd(S_WS)}, s{sLD + 1} offen offset:{512 * (ks & 1)} sc1\n'
    nlab[0] += 1
    inv = f"""s_cmp_eq_u32 s{sFAST}, 0
    s_cbranch_scc0 L_m{nlab[0]}
    buffer_inv sc1
    L_m{nlab[0]}:
    s_waitcnt vmcnt(0)
    """
    poll_check(f'y{g}', inv + ld, f"""v_max3_u32 v{vT16}, v{r}, v{r + 4}, v{r + 8}
    v_max_u32 v{vT16}, v{vT16}, v{r + 12}
    v_cmp_le_u32 vcc, 0xffc00000, v{vT16}""")


def mlp(slot):
    A.spread(A.capture(seq(g1_bias, g1_pre)), slot(9), 0, 0.9)
    if OPT['sn']:
        assert SW1[9] + SWB[9] == 0 and not OPT['ysc'] & 2
        A(f"""s_cmp_eq_u32 s{sFAST}, 0
        s_cbranch_scc1 L_slow_y
        L_join_y:""")
        RETRY('.segment')
        RETRY('L_slow_y:\ns_waitcnt vmcnt(0)\nbuffer_wbl2 sc1\ns_waitcnt vmcnt(0)\ns_branch L_join_y')
        if OPT['sd']:
            A(f"s_waitcnt vmcnt({after_last(lambda x: 'store' in x.op)})")
    else:
        flag_publish(0)
        stamp('pub0')
        A(flag_ld(0))
        if OPT['xl']:
            x1_store()
        A('s_barrier')
    for n in range(PRE):
        A('\n'.join(g1_rd(0, n)))
    if not OPT['sn']:
        flag_check(0)
        stamp('y2')
    LA = OPT['la1']
    cnt = [0]

    def ld(i):
        A(g1_load(i))
        cnt[0] = i + 1
    for i in range(LA):
        ld(i)
    side = {}
    n0, n1 = len(PARTS[0]), len(PARTS[1])
    for i in range(LA, 40):
        side.setdefault((i - LA) * OPT['r1'] * n0 // 800, []).append(lambda i=i: ld(i))
    if OPT['sn']:
        y2_check(0, LA)
        stamp('y2')
        for g in range(1, 10):
            first = min(k for k, x in enumerate(PARTS[0]) if x[0] == 2 * g)
            side.setdefault(first - 1, []).append(lambda g=g: y2_check(g, cnt[0]))
    if OPT['sn'] == 2:
        side.setdefault(2, []).append(lambda: flag_publish(0))
        side.setdefault(40, []).append(lambda: A(flag_ld(0)))
        side.setdefault(70, []).append(lambda: (flag_check(0), flag_prep(1)))
    place(side, [[x] for x in A.capture(late_addr)], 0, n0 - 2)
    place(side, slot(10), OPT['g1s'] * n0 // 80, n0)
    g1_part(0, side)
    A('s_barrier')
    stamp('g1a')
    A.spread(A.capture(lambda: [gelu_unit(u, r) for u in range(2) for r in range(2)]), slot(11), 0, OPT['gae'] / 100)
    held = []
    if OPT['gpre']:
        cutg = len(A.items) - 22
        assert not any(x.kind == 'vmem' and x.lds for x in A.items[cutg:])
        held = A.items[cutg:]
        del A.items[cutg:]
    if SWB[10] + SWB[11]:
        A(f"s_waitcnt vmcnt({after_last(lambda x: ' lds' in x.text)})\ns_barrier")
    for n in range(PRE):
        A(g1_rd(1, n)[0])
    A.items.extend(held)
    stamp('gelua')
    side = {}
    LA = OPT['la2']
    hl = [A.capture(lambda n=n: A(g2_load(n))) for n in range(max(LA, OPT['n3'] if OPT['t3'] else 0))]
    nh = len(hl)
    if OPT['t3']:
        assert OPT['p3'] < OPT['q3'] < OPT['c3'] < OPT['qa'] and OPT['n3'] <= 12 + OA
        side.setdefault(OPT['p3'], []).append(lambda: flag_publish(3))
        side.setdefault(OPT['q3'], []).append(lambda: A(flag_ld(3)))
        side.setdefault(OPT['c3'], []).append(lambda: flag_check(3))
        place(side, hl[:OPT['n3']], OPT['c3'] + 1, n1)
        hl = hl[OPT['n3']:]
    place(side, slot(12), 0, (OPT['q3'] if OPT['t3'] else OPT['qa']) - 4)
    if not OPT['xl'] and not OPT['xq'] and OPT['sn'] != 1:
        place(side, A.groups(fin_issue), max(OPT['fq'] * n1 // 40, max(k for k, x in enumerate(PARTS[1]) if x[0] <= 11) + 1), n1 - 2)
    side.setdefault(OPT['pa'], []).append(lambda: flag_publish(1))
    side.setdefault(OPT['qa'], []).append(lambda: A(flag_ld(1)))
    g1_part(1, side)
    A('s_barrier')
    stamp('g1b')
    bg = slot(13) + (A.groups(fin_issue) if OPT['xq'] else [])
    for r in range(2):
        if OPT['ca'] == r:
            flag_check(1)
            stamp('ha')
        k = 0 if r < OPT['ca'] else (len(hl) if r else len(hl) // 2)
        A.spread(A.capture(lambda: gelu_unit(2, r)), (bg if r == 0 else []) + hl[:k], 0, 0.9)
        hl = hl[k:]
    if OPT['ca'] == 2:
        flag_check(1)
        stamp('ha')
        A.emit(hl)
    stamp('gelub')
    g2_main(nh, slot(14))


def seq(*fns):
    def f():
        for x in fns:
            x()
    return f


def weave(bit, fg, bg, lo, hi):
    if OPT['gp'] & bit:
        A.gaps(fg, bg, lo, hi, OPT['gs'])
    else:
        A.spread(fg, bg, lo, hi)


def program():
    if OPT['fixed']:
        A('s_memrealtime s[98:99]')
    if OPT['stamps']:
        A('v_mov_b32 v255, 0')
    stamp('start')
    if OPT['lean']:
        setup_lean()
    else:
        setup()
    gemv_store_addr()
    if not OPT['cpf'] and not OPT['lean']:
        code_prefetch(30 * 1024)
    Q = {}

    def slot(k):
        out = []
        for name, cnt in (('F', SF), ('W1', SW1), ('WB', SWB), ('W2', SW2)):
            if cnt[k]:
                if not (OPT['nobg'] >> ['F', 'W1', 'W2', 'WB'].index(name)) & 1:
                    out += Q[name][:cnt[k]]
                Q[name] = Q[name][cnt[k]:]
        if k == OPT['dslot']:
            out = [g if n < len(out) - OPT['dn'] else [x for x in g if x.kind != 'vmem'] for n, g in enumerate(out)]
            out = out[:len(out) - OPT['dn']] + [sum(out[len(out) - OPT['dn']:], [])]
        return out
    FS = []

    def fmt_split():
        fmt_finish()
        if OPT['fs'] and OPT['p0'].index('F') < OPT['p0'].index('L'):
            FS.extend([x] for x in A.items[-4:])
            del A.items[-4:]
    Q['F'] = A.groups(filt_dma)
    Q['W1'] = A.groups(w1_dma)
    Q['WB'] = A.groups(wb_dma)
    Q['W2'] = A.groups(w2_load)
    steps = dict(X=x1_issue, R=roles if OPT['late'] in (3, 4) else seq(roles, fmt_prep, fmt_addr), U=fmt_issue, T=touch, A=(lambda: None) if OPT['cutx'] & 16 else k1_const_a, B=k1_const_b, S=seq(silu, lambda: stamp('silu')),
                 G=seq(lambda: gemv_compute(G_W, sMODST), lambda: stamp('gemv')), I=seq(xid_store, hint_prep) if OPT['ht'] else xid_store, f=seq(filt_prep, w1_prep), K=seq(k1_addr, side_prep, lambda: srd_tail(S_B1, S_B2, S_OUT) if OPT['lean'] else None), F=fmt_split,
                 L=lambda: A.spread(A.capture(ln1), FS + slot(0), 0.05 if FS else 0, OPT['fs'] / 100 if FS else 0.6), Y=x_keep)
    p0a, p0b = OPT['p0'].split('M')
    assert SF[0] + SW1[0] == 0 or p0a.index('f') < p0a.index('L')
    assert sorted(OPT['p0']) == sorted('XRUASGTIfKFLM') and all(c in p0a for c in 'RUSGIKF')
    for nc, c in enumerate(p0a):
        if OPT['pw'] and nc == OPT['pp']:
            prewarm()
        if not (c == 'X' and (OPT['xfirst'] or OPT['lean'])) and not (c == 'F' and OPT['late']) and not (c == 'U' and 0 < OPT['late'] < 9):
            steps[c]()
    LU = [A.groups(fmt_issue) if OPT['late'] == k else [] for k in range(4)]
    TW = [A.groups(touch_w) if OPT['tw'] == k else [] for k in range(4)]
    stamp('Miss')
    A(mod1_loads())
    m2 = A.groups(seq(b2_issue, lambda: A(side_loads())))
    M2 = [m2 if OPT['m2'] == k else [] for k in range(7)]
    fq = A.capture(seq(x_keep, k1_const_b, k1_addr2))
    nf = len(fq) * OPT['fk'] // 100
    A.spread(A.capture(seq(*[steps[c] for c in p0b])) + fq[:nf], (LU[1] + slot(1) if OPT['uf'] else slot(1) + LU[1]) + TW[1] + M2[1], 0.1, 0.9)
    k1_poll()
    k1 = A.merge(A.capture(seq(k1_head, k1_main)), fq[nf:])
    cut0 = min(i for i, x in enumerate(k1) if x.op == 's_barrier') + 1
    A.items.extend(k1[:cut0])
    k0 = len(A.items)
    weave(1, k1[cut0:], slot(2) + TW[2] + LU[2] + M2[2], OPT['k1s'] / 100, OPT['k1e'] / 100)
    if OPT['lf'] == 2:
        tail = A.items[k0:]
        mf = [k for k, x in enumerate(tail) if x.kind == 'mfma']
        body = A.capture(fmt_body)
        p1 = OPT['fp'] // 10
        A.items = A.items[:k0] + tail[:mf[p1] + 1]
        A(f's_waitcnt vmcnt({after_last(lambda x: srd(S_W2) in x.text and x.lds)})')
        parts = [body[0:4], body[4:8], [], body[8:9], body[9:10], body[10:11], body[11:12]]
        for n, part in enumerate(parts):
            A.items.extend(part)
            A.items.extend(tail[mf[p1 + n] + 1:mf[p1 + n + 1] + 1])
        A.items.extend(tail[mf[p1 + len(parts)] + 1:])
    stamp('k1')
    if OPT['late'] in (3, 4):
        fmt_prep()
        fmt_addr()
    w0 = len(A.items)
    A.spread(A.capture(seq(k2_const, k2_addr)), LU[3] + slot(3) + TW[3] + M2[3], 0, OPT['s3e'] / 100)
    if OPT['ht'] & 1:
        if OPT['hl'] <= 100:
            insert_at(w0, OPT['hl'], lambda: hint_issue(0))
        insert_at(w0, OPT['hs'], lambda: hint_set(0))
    if OPT['late'] and not OPT['lf']:
        fmt_finish()
    A(f's_waitcnt vmcnt({after_last(lambda x: srd(S_WI) in x.text and x.lds)})\ns_barrier')

    def cut_at(rest, pct):
        c = len(rest) * pct // 100
        lab = [k for k, x in enumerate(rest) if x.kind == 'label']
        if lab and lab[0] < c <= lab[-1]:
            c = lab[-1] + 1
        return c
    early = OPT['m2'] < 5
    rest = A.capture(seq(filt_finish, *([side_finish] if early else [])))
    cutd = cut_at(rest, OPT['td'])
    if OPT['ht'] & 1 and OPT['hl'] > 100:
        hint_issue(0)
    A.items.extend(rest[:cutd])
    if OPT['ht'] & 1:
        hint_check(0)
    stamp('Tiss')
    A(k2_loads())
    if OPT['late'] == 4:
        fmt_issue()
    A.items.extend(rest[cutd:])
    if OPT['lf'] == 1:
        fmt_finish()
    mark = len(A.items)
    if OPT['lf'] != 3:
        w_prep()
    A.emit(slot(4))
    k2_head()
    k2 = A.capture(k2_main)
    if OPT['lf'] == 3:
        mf = [k for k, x in enumerate(k2) if x.kind == 'mfma']
        body = A.capture(fmt_body)
        A.items.extend(k2[:mf[0] + 1])
        A(f's_waitcnt vmcnt({after_last(lambda x: srd(S_W2) in x.text and x.lds)})')
        for n in range(4):
            A.items.extend(body[2 * n:2 * n + 2] + k2[mf[n] + 1:mf[n + 1] + 1])
        A.spread(k2[mf[4] + 1:mf[7]], [[x] for x in body[8:]], 0.2, 1.0)
        mark = len(A.items)
        w_prep()
        k2 = k2[mf[7]:]
    weave(2, k2, slot(5) + A.groups(seq(xid_load, epoch_store)) + M2[5], 0, OPT['k2e'] / 100)
    if OPT['lf'] in (1, 3):
        ib = max(k for k, x in enumerate(A.items) if x.op == 's_barrier')
        A.items[ib:ib] = A.capture(lambda n=nvm(A.items[mark:ib]): A(f's_waitcnt vmcnt({n})'))
    stamp('k2')
    w0 = len(A.items)
    kc = A.capture(seq(k3_ldaddr, k3_const))
    nk = len(kc) * OPT['kc'] // 100
    A.spread(kc[:nk], slot(6) + M2[6], 0, OPT['s6e'] / 100)
    if OPT['ht'] & 2:
        insert_at(w0, OPT['hl2'], lambda: hint_issue(1))
        insert_at(w0, OPT['hs2'], lambda: hint_set(1))
    rest = kc[nk:] + A.capture(seq(*([] if early else [side_finish]), k3_addr, xid_check, lambda: flag_prep(0), lambda: A('\n'.join(mo_reads()) if MOE else '')))
    cutd = cut_at(rest, OPT['tpd'])
    A.items.extend(rest[:cutd])
    if OPT['ht'] & 2:
        assert not any(('s', sHT) in x.defs or ('v', vHT) in x.defs or ('v', vHT - 2) in x.defs for x in rest[:cutd])
        hint_check(1)
    stamp('Tpiss')
    A(k3_loads())
    A.spread(rest[cutd:], slot(7), 0.3, 1.0)
    k3_poll()
    k3 = A.capture(k3_main)
    bg = slot(8)
    if OPT['late']:
        cut0 = min(i for i, x in enumerate(k3) if x.op == 's_barrier') + 1
        n0 = min(SW1[8], len(bg) // 4)
        A.spread(k3[:cut0], bg[:n0])
        A.spread(k3[cut0:], bg[n0:], 0, OPT['k3e'] / 100)
    else:
        weave(4, k3, bg, 0, OPT['k3e'] / 100)
    k3_tail()
    stamp('k3')
    mlp(slot)
    stamp('end')
    if OPT['stamps']:
        A(f'''s_lshl_b32 s{sT0}, s{sME}, 10
        s_lshl_b32 s{sT1}, s{sW}, 8
        s_add_u32 s{sT0}, s{sT0}, s{sT1}
        s_add_u32 s{sT0}, s{sT0}, {WS_STAMP}
        v_writelane_b32 v255, s{sCNT}, 63
        v_writelane_b32 v255, s{sFAST}, 31
        v_lshlrev_b32 v{TMP}, 2, v{vL}
        buffer_store_dword v255, v{TMP}, {srd(S_WS)}, s{sT0} offen
        ''')
    if OPT['fixed']:
        if OPT['clean']:
            A('s_waitcnt vmcnt(0)\ns_barrier\nbuffer_wbl2 sc1\ns_waitcnt vmcnt(0)')
        if OPT['probe'] >= 0:
            A(f's_mul_i32 s97, s97, 4\ns_add_u32 s97, s97, {OPT["fixed"]}')
        else:
            A(f's_mov_b32 s97, {OPT["fixed"]}')
        A('''L_fix:
        s_memrealtime s[100:101]
        s_waitcnt lgkmcnt(0)
        s_sub_u32 s100, s100, s98
        s_cmp_lt_u32 s100, s97
        s_cbranch_scc1 L_fix''')
    A('L_end:')
    A('s_endpgm')


program()
hdr = open('cdna_kernels/%s.s.ref' % NAME).read().split('; Override launch')[0]
out = hdr
out += f'; @launch grid=(256,1,1) block=(256,1,1) lds={LDS_SIZE}\n'
out += '''; One persistent launch, one workgroup per CU.  Workgroups hand data over through d_ws:
;   tag  = hash of the word the previous launch left at d_ws[0]; every all-to-all granule (16 B) carries it, flags hold it
;   T/T2 = [source][destination] 64-byte chunks of the half-transformed signal (write-through stores, L1-bypassing loads)
;   y2/h = MFMA fragments exchanged inside clusters; flags stay in L2 only when the whole cluster reports the same die
; All waits on other workgroups are bounded.  Generated by a script; registers are allocated per phase.
'''
out += f'''.amdgcn_target "amdgcn-amd-amdhsa--gfx950"
.text
.globl {NAME}_kernel
.p2align 8
.type {NAME}_kernel,@function
{NAME}_kernel:
'''
out += A.text()
out += RETRY.text()
out += f'''L_last:
    s_endpgm
.section .rodata,"a"
.p2align 6
.amdhsa_kernel {NAME}_kernel
  .amdhsa_next_free_vgpr 512
  .amdhsa_next_free_sgpr 102
  .amdhsa_accum_offset 256
  .amdhsa_group_segment_fixed_size 0
  .amdhsa_kernarg_size 104
  .amdhsa_user_sgpr_count 2
  .amdhsa_user_sgpr_kernarg_segment_ptr 1
  .amdhsa_system_sgpr_workgroup_id_x 1
.end_amdhsa_kernel
'''
open(sys.argv[1], 'w').write(out)
if OPT['stamps']:
    open(sys.argv[1] + '.stamps', 'w').write('\n'.join(STAMPS))
```

```python
import re

REG_RE = re.compile(r'^(-|abs\()?([vas])(?:(\d+)|\[(\d+):(\d+)\])\)?$')
TRANS = ('v_exp_f32', 'v_log_f32', 'v_rcp_f32', 'v_rsq_f32', 'v_sqrt_f32', 'v_sin_f32', 'v_cos_f32')


def regs_of(tok):
    tok = tok.strip()
    if tok == 'vcc':
        return [('s', 'vcc')]
    if tok == 'exec':
        return [('s', 'exec')]
    if tok in ('exec_lo', 'exec_hi'):
        return [('s', 'exec')]
    if tok in ('vcc_lo', 'vcc_hi'):
        return [('s', 'vcc')]
    if tok == 'm0':
        return [('s', 'm0')]
    m = REG_RE.match(tok)
    if not m:
        return []
    k = m.group(2)
    if m.group(3) is not None:
        return [(k, int(m.group(3)))]
    return [(k, i) for i in range(int(m.group(4)), int(m.group(5)) + 1)]


class Ins:
    def __init__(self, text):
        self.text = text
        t = text.split(';')[0].strip()
        self.label = t.endswith(':')
        self.directive = t.startswith('.')
        self.defs = []
        self.uses = []
        self.kind = 'other'
        self.op = ''
        if self.label or self.directive or not t:
            self.kind = 'label' if self.label else 'dir'
            self.base = ''
            return
        parts = t.split(None, 1)
        op = parts[0]
        self.op = op
        rest = parts[1] if len(parts) > 1 else ''
        ops = []
        cur = ''
        depth = 0
        for ch in rest:
            if ch in '[(':
                depth += 1
            if ch in '])':
                depth -= 1
            if ch == ',' and depth == 0:
                ops.append(cur.strip())
                cur = ''
            else:
                cur += ch
        if cur.strip():
            ops.append(cur.strip())
        mods = ''
        if ops:
            last = ops[-1].split(None, 1)
            if len(last) > 1:
                ops[-1] = last[0]
                mods = last[1]
        self.ops = ops
        self.mods = mods
        R = [regs_of(o) for o in ops]
        flat = lambda l: [r for x in l for r in x]
        base = op.replace('_e32', '').replace('_e64', '').replace('_dpp', '').replace('_sdwa', '')
        self.base = base
        self.dpp = op.endswith('_dpp')
        if op.startswith('v_mfma'):
            self.kind = 'mfma'
            self.defs = R[0]
            self.srcA, self.srcB, self.srcC = R[1], R[2], R[3]
            self.uses = flat(R[1:])
            self.passes = 8 if '32x32' in op else 4
        elif op.startswith('v_'):
            self.kind = 'valu'
            if base.startswith('v_cmp'):
                self.defs = R[0]
                self.uses = flat(R[1:])
            elif base in ('v_swap_b32', 'v_permlane16_swap_b32', 'v_permlane32_swap_b32'):
                self.defs = flat(R)
                self.uses = flat(R)
            elif base in ('v_add_co_u32', 'v_addc_co_u32', 'v_sub_co_u32'):
                self.defs = R[0] + R[1]
                self.uses = flat(R[2:])
            elif base == 'v_nop':
                pass
            else:
                self.defs = R[0]
                self.uses = flat(R[1:])
                if base in ('v_fmac_f32', 'v_dot2c_f32_bf16', 'v_writelane_b32') or self.dpp or op.endswith('_sdwa'):
                    self.uses = self.uses + R[0]
        elif op.startswith('ds_'):
            self.kind = 'ds'
            if op.startswith('ds_read') or op.startswith('ds_bpermute') or op.startswith('ds_permute') or op.startswith('ds_swizzle'):
                self.defs = R[0]
                self.uses = flat(R[1:])
            else:
                self.uses = flat(R)
            if 'addtid' in op:
                self.uses = self.uses + [('s', 'm0')]
        elif op.startswith('buffer_') or op.startswith('global_'):
            self.kind = 'vmem'
            self.store = 'store' in op
            self.lds = ' lds' in (' ' + mods) or op.startswith('global_load_lds')
            if op in ('buffer_wbl2', 'buffer_inv'):
                pass
            elif self.lds:
                self.uses = flat(R) + [('s', 'm0')]
            elif self.store:
                self.uses = flat(R)
                if op.startswith('buffer_'):
                    self.data = R[0]
                else:
                    self.data = R[1]
            else:
                self.defs = R[0]
                self.uses = flat(R[1:])
                if 'd16' in op:
                    self.uses = self.uses + R[0]
        elif op.startswith('s_load') or op in ('s_memtime', 's_memrealtime'):
            self.kind = 'smem'
            self.defs = R[0]
            self.uses = flat(R[1:])
        elif op == 's_waitcnt':
            self.kind = 'wait'
        elif op == 's_nop':
            self.kind = 'nop'
            self.n = int(ops[0], 0) + 1
        elif op in ('s_barrier', 's_endpgm', 's_sleep', 's_setprio'):
            self.kind = 'sctl'
        elif op.startswith('s_cbranch') or op == 's_branch':
            self.kind = 'branch'
            if 'vcc' in op:
                self.uses = [('s', 'vcc')]
        elif op.startswith('s_cmp') or op.startswith('s_bitcmp'):
            self.kind = 'salu'
            self.uses = flat(R)
        elif op.startswith('s_'):
            self.kind = 'salu'
            self.defs = R[0]
            self.uses = flat(R[1:])
            if 'saveexec' in op:
                self.defs = self.defs + [('s', 'exec')]
            if base in ('s_addk_i32', 's_mulk_i32', 's_cmov_b32'):
                self.uses = self.uses + R[0]
        else:
            raise ValueError('unknown instruction ' + text)


class Asm:
    def __init__(self):
        self.items = []
        self.smart = False

    def __call__(self, text):
        for line in text.split('\n'):
            line = line.strip()
            if line:
                if line.startswith('v_cndmask_b32 '):
                    line = 'v_cndmask_b32_e64' + line[len('v_cndmask_b32'):]
                self.items.append(Ins(line))

    def blob(self, text):
        sub = Asm()
        sub(text)
        i = Ins('.blob')
        i.kind = 'blob'
        i.blob = sub.finish()
        self.items.append(i)

    def capture(self, fn):
        old = self.items
        self.items = []
        fn()
        got = self.items
        self.items = old
        return got

    @staticmethod
    def cost(i):
        if i.kind in ('label', 'dir', 'blob'):
            return 0
        if i.kind == 'mfma':
            return 4 * i.passes
        if i.kind == 'valu' and (i.base in TRANS or 'swap' in i.base):
            return 8
        if i.op == 's_barrier':
            return 200
        if i.kind == 'ds':
            return 12
        return 4

    def weave(self, fg, bg, gap, start=0):
        bg = list(bg)
        t = 0
        nxt = start
        noins = False
        for k, i in enumerate(fg):
            reads_scc = i.op.startswith('s_cselect') or i.op.startswith('s_cbranch') or i.op.startswith('s_addc')
            if i.kind == 'label' and i.text.startswith('L_chk'):
                noins = True
            if bg and t >= nxt and not reads_scc and not noins and i.kind != 'label':
                self.items.extend(bg.pop(0))
                nxt = t + gap
            self.items.append(i)
            if i.kind == 'label' and i.text.startswith('L_ok'):
                noins = False
            if i.kind == 'salu' and ('s', 'exec') in i.defs:
                noins = not i.text.strip().endswith('-1')
            if i.kind == 'branch' and 'L_slow' in i.text:
                noins = True
            if i.kind == 'label' and i.text.startswith('L_join'):
                noins = False
            t += self.cost(i)
        return bg

    def spread(self, fg, bg, lo=0.0, hi=1.0):
        tot = sum(self.cost(i) for i in fg)
        n = len(bg)
        bg = list(bg)
        times = [tot * (lo + (hi - lo) * k / max(n, 1)) for k in range(n)]
        t = 0
        noins = False
        prev = ''
        for i in fg:
            reads_scc = i.op.startswith('s_cselect') or i.op.startswith('s_cbranch') or i.op.startswith('s_addc')
            if i.kind == 'label' and i.text.startswith('L_chk'):
                noins = True
            ok = not reads_scc and not noins and i.kind not in ('label', 'blob')
            if self.smart and (i.kind in ('ds', 'mfma') or i.op == 's_barrier'):
                ok = False
            while bg and t >= times[0] and ok:
                self.items.extend(bg.pop(0))
                times.pop(0)
                if not (self.smart and prev in ('ds',)):
                    break
            prev = i.kind
            self.items.append(i)
            if i.kind == 'label' and i.text.startswith('L_ok'):
                noins = False
            if i.kind == 'salu' and ('s', 'exec') in i.defs:
                noins = not i.text.strip().endswith('-1')
            t += self.cost(i)
        self.emit(bg)

    def gaps(self, fg, bg, lo=0.0, hi=1.0, slack=250):
        n = len(bg)
        t = 0
        times = []
        cap = {}
        for k, i in enumerate(fg):
            times.append(t)
            prev = fg[k - 1] if k else None
            c = 0
            if prev is not None:
                if prev.kind == 'mfma':
                    c = 1 if prev.passes == 8 or i.kind != 'valu' or i.base.startswith('v_pk') else 0
                    if i.kind != 'mfma' and (i.kind == 'valu' and set(i.uses) & set(prev.defs) or i.base.startswith('v_pk') if i.kind == 'valu' else False):
                        c = 2
                elif i.kind == 'wait' and 'lgkmcnt(0)' in i.text:
                    c = 2
                elif prev.kind == 'ds' and prev.defs and i.kind in ('valu', 'mfma', 'vmem') and fg[k - 3].kind == 'ds':
                    c = 2 if i.kind == 'valu' else 1
                elif i.kind == 'valu' and (i.dpp or 'swap' in i.base) and prev.kind == 'valu' and set(prev.defs) & set(i.uses):
                    c = 1
            if c:
                cap[k] = c
            t += self.cost(i)
        tot = t
        marks = [k for k in sorted(cap) for _ in range(cap[k]) if lo * tot <= times[k] <= hi * tot]
        if n <= len(marks):
            pos = [marks[(2 * j + 1) * len(marks) // (2 * n)] for j in range(n)]
        else:
            pos = list(marks)
            for _ in range(n - len(marks)):
                edges = [0] + sorted(pos) + [max(k for k in range(len(fg)) if times[k] <= hi * tot)]
                a, b = max(zip(edges, edges[1:]), key=lambda e: times[e[1]] - times[e[0]])
                mid = (times[a] + times[b]) / 2 if a else times[b] / 3
                ok = [k for k in range(a, b + 1) if times[k] >= mid and fg[k].kind == 'valu']
                pos.append(ok[0] if ok else b)
            pos.sort()
        at = {}
        for j in range(n):
            at.setdefault(pos[j], []).append(bg[j])
        for k, i in enumerate(fg):
            self.emit(at.get(k, []))
            self.items.append(i)
        self.emit(at.get(len(fg), []))

    def merge(self, fg, fq):
        out = []
        fq = list(fq)
        for i in fg:
            if i.kind == 'dir' and i.text.startswith('.fill'):
                p = i.text.split()
                n = int(p[1])
                k = 0
                while fq and n >= self.cost(fq[0]):
                    n -= self.cost(fq[0])
                    out.append(fq.pop(0))
                    k += 1
                if len(p) > 2 and int(p[2]) > k:
                    out.append(Ins('s_nop %d' % (int(p[2]) - k - 1)))
                continue
            u, d = set(i.uses), set(i.defs)
            last = -1
            for k, x in enumerate(fq):
                if set(x.defs) & (u | d) or set(x.uses) & d:
                    last = k
            out += fq[:last + 1]
            fq = fq[last + 1:]
            out.append(i)
        return out + fq

    def groups(self, fn):
        out = []
        cur = []
        for i in self.capture(fn):
            cur.append(i)
            if i.kind == 'vmem':
                out.append(cur)
                cur = []
        if cur:
            out[-1].extend(cur)
        return out

    def emit(self, groups):
        for g in groups:
            self.items.extend(g)

    def finish(self):
        out = []
        vm = []
        lg = []
        hist = []
        pos = [0]

        def issue(ins):
            out.append(ins)
            if ins.kind in ('label', 'dir'):
                return
            hist.append((pos[0], ins))
            pos[0] += ins.n if ins.kind == 'nop' else 1
            while hist and pos[0] - hist[0][0] > 40:
                hist.pop(0)

        def parse_wait(ins):
            t = ins.text
            m = re.search(r'vmcnt\((\d+)\)', t)
            if m:
                n = int(m.group(1))
                del vm[:max(0, len(vm) - n)]
            m = re.search(r'lgkmcnt\((\d+)\)', t)
            if m:
                n = int(m.group(1))
                if n == 0:
                    del lg[:]
                elif all(k == 'ds' for k, _ in lg):
                    del lg[:max(0, len(lg) - n)]

        for ins in self.items:
            if ins.kind == 'dir' and ins.text.startswith('.segment'):
                del vm[:]
                del lg[:]
                del hist[:]
                continue
            if ins.kind == 'blob':
                out.extend(ins.blob)
                continue
            if ins.kind in ('label', 'dir'):
                out.append(ins)
                continue
            if ins.kind == 'wait':
                parse_wait(ins)
                issue(ins)
                continue
            touched = set(ins.defs) | set(ins.uses)
            need_vm = None
            for i, d in enumerate(vm):
                if d & touched:
                    need_vm = len(vm) - 1 - i
            need_lg = None
            for i, (k, d) in enumerate(lg):
                if d & touched:
                    need_lg = len(lg) - 1 - i
            if need_lg is not None and any(k == 'smem' for k, _ in lg):
                need_lg = 0
            if need_vm is not None or need_lg is not None:
                w = 's_waitcnt'
                if need_vm is not None:
                    w += ' vmcnt(%d)' % min(need_vm, 63)
                if need_lg is not None:
                    w += ' lgkmcnt(%d)' % min(need_lg, 15)
                wi = Ins(w)
                parse_wait(wi)
                issue(wi)
            need = 0
            uses = set(ins.uses)
            defs = set(ins.defs)
            for p, h in hist:
                dist = pos[0] - p - 1
                req = 0
                hd = set(h.defs)
                if h.kind == 'valu':
                    vd = {r for r in hd if r[0] in 'va'}
                    sd = {r for r in hd if r[0] == 's'}
                    if ins.kind == 'mfma' and (vd & uses):
                        req = max(req, 2)
                    if ins.kind == 'valu':
                        if h.base in TRANS and (vd & uses):
                            req = max(req, 1)
                        if ins.dpp and (vd & uses):
                            req = max(req, 2)
                        if ins.base.startswith('v_permlane') and (vd & uses):
                            req = max(req, 2)
                        if ins.base in ('v_readlane_b32', 'v_readfirstlane_b32') and (vd & uses):
                            req = max(req, 1)
                        if sd & uses:
                            req = max(req, 4 if ins.base in ('v_readlane_b32', 'v_writelane_b32') else 2)
                        if (h.op.endswith('_sdwa') or 'op_sel' in h.mods) and (vd & (uses | defs)):
                            req = max(req, 1 if not h.base.startswith('v_pk_') else 0)
                    if h.base.startswith('v_dot') and ins.kind in ('valu', 'vmem', 'ds', 'mfma') and (vd & (uses | defs)):
                        req = max(req, 3)
                    if ins.kind == 'vmem' and (sd & uses):
                        req = max(req, 5)
                    if ins.kind in ('salu', 'smem') and (sd & uses):
                        req = max(req, 1)
                if h.kind == 'mfma':
                    long = 12 if h.passes == 8 else 8
                    if ins.kind == 'mfma':
                        if hd & (set(ins.srcA) | set(ins.srcB)):
                            req = max(req, long)
                        c = set(ins.srcC)
                        if hd & c and not (ins.srcC == h.defs and ins.passes == h.passes):
                            req = max(req, long - 2)
                        if (hd & defs) and not (ins.srcC == h.defs and ins.defs == h.defs and ins.passes == h.passes):
                            req = max(req, long - 2)
                    elif ins.kind in ('valu', 'vmem', 'ds'):
                        if hd & (uses | defs):
                            req = max(req, long)
                        if set(h.srcC) & defs:
                            req = max(req, 7 if h.passes == 8 else 3)
                if h.kind == 'vmem' and getattr(h, 'store', False) and len(h.data) >= 3:
                    if set(h.data) & defs:
                        req = max(req, 2)
                if h.kind == 'ds' and not h.defs and ins.kind == 'valu' and (set(h.uses) & defs) and ('b128' in h.op or 'b96' in h.op or 'write2_b64' in h.op):
                    req = max(req, 2)
                if h.kind == 'salu' and ('s', 'm0') in hd and ('s', 'm0') in uses:
                    req = max(req, 1)
                if h.kind == 'salu' and ('s', 'exec') in hd and ins.kind == 'valu' and (ins.dpp or ins.base.startswith('v_permlane')):
                    req = max(req, 1)
                need = max(need, req - dist)
            while need > 0:
                n = min(need, 16)
                issue(Ins('s_nop %d' % (n - 1)))
                need -= n
            issue(ins)
            if ins.kind == 'vmem':
                vm.append(set(ins.defs))
            elif ins.kind == 'ds':
                lg.append(('ds', set(ins.defs)))
            elif ins.kind == 'smem':
                lg.append(('smem', set(ins.defs)))
        return out

    @staticmethod
    def size(i):
        if i.kind in ('label', 'dir'):
            return 0
        if i.kind in ('mfma', 'ds', 'vmem', 'smem'):
            return 8
        lit = False
        for o in i.ops:
            if regs_of(o) or o.startswith('hwreg') or o.startswith('vmcnt') or o.startswith('lgkmcnt'):
                continue
            try:
                v = int(o, 0)
                v = v - (1 << 32) if v >= (1 << 31) else v
                inl = -16 <= v <= 64 or (v & 0xffffffff) in (0x3f000000, 0xbf000000, 0x3f800000, 0xbf800000, 0x40000000, 0xc0000000, 0x40800000, 0xc0800000, 0x3e22f983)
                lit = lit or not inl
            except ValueError:
                lit = lit or o.startswith('L_last')
        if i.kind == 'valu':
            short = ('v_mov_b32', 'v_add_u32', 'v_sub_u32', 'v_subrev_u32', 'v_and_b32', 'v_or_b32', 'v_xor_b32', 'v_lshlrev_b32', 'v_lshrrev_b32', 'v_ashrrev_i32',
                     'v_add_f32', 'v_mul_f32', 'v_max_f32', 'v_min_u32', 'v_max_u32', 'v_min_i32', 'v_mul_u32_u24', 'v_mul_i32_i24', 'v_fmac_f32', 'v_cvt_f32_u32', 'v_not_b32',
                     'v_readfirstlane_b32', 'v_permlane16_swap_b32', 'v_permlane32_swap_b32', 'v_add_co_u32', 'v_addc_co_u32') + TRANS
            if i.op in short or (i.op.startswith('v_cmp') and i.ops[0] == 'vcc'):
                return 8 if lit else 4
            return 8
        if i.kind in ('wait', 'nop', 'sctl', 'branch') or i.op in ('s_movk_i32', 's_getreg_b32'):
            return 4
        return 8 if lit else 4

    def align(self, items, run):
        wide = ('v_mov_b32', 'v_add_u32', 'v_and_b32', 'v_xor_b32', 'v_lshlrev_b32', 'v_lshrrev_b32', 'v_add_f32', 'v_mul_f32', 'v_max_f32', 'v_or_b32') + TRANS
        pos = 0
        k = 0
        last_aligned_run = -1
        while k < len(items):
            n = 0
            while k + n < len(items) and items[k + n].kind == 'valu' and self.size(items[k + n]) == 8:
                n += 1
            if n >= run:
                if pos % 8:
                    for j in range(k - 1, last_aligned_run, -1):
                        if items[j].kind == 'valu' and items[j].op in wide and self.size(items[j]) == 4:
                            items[j] = Ins(items[j].op + '_e64' + items[j].text[len(items[j].op):])
                            pos += 4
                            break
                if pos % 8 and items[k - 1].kind in ('mfma', 'wait'):
                    j = k if items[k - 1].kind == 'mfma' else k - 1
                    items.insert(j, Ins('s_nop 0'))
                    k += 1
                    pos += 4
                pos += 8 * n
                k += n
                last_aligned_run = k - 1
                continue
            pos += self.size(items[k])
            k += 1
        return items

    def text(self, run=0):
        lines = []
        items = self.finish()
        if run:
            items = self.align(items, run)
        for i in items:
            lines.append(i.text if i.kind in ('label', 'dir') else '    ' + i.text)
        return '\n'.join(lines) + '\n'


def vr(a, n=1):
    return 'v%d' % a if n == 1 else 'v[%d:%d]' % (a, a + n - 1)


def ar(a, n=1):
    return 'a%d' % a if n == 1 else 'a[%d:%d]' % (a, a + n - 1)


def sr(a, n=1):
    return 's%d' % a if n == 1 else 's[%d:%d]' % (a, a + n - 1)


def f2u(x):
    import struct
    return '0x%08x' % struct.unpack('<I', struct.pack('<f', x))[0]
```

```python
import sys, os
sys.path.insert(0, os.path.dirname(os.path.abspath(__file__)))
from asmlib import Asm, vr, ar, sr, f2u

NAME = 'adaLN_cond__spectral_gfnet__mixer_channel_mlp__prompt'
OPT = dict(stamps=0, fixed=0, probe=-1, slow=0, fine=0, clean=0, nobg=0, mask=1, x1sc=1, bs=128, xfirst=0, um=0,
           p0='XRUfKSGTIFLMA', m2=2, late=0, fk=30, g1=56, g2=32, g3=24, smart=0, tc=0, k1s=0, tw=0, lf=0, osc=0, ysc=0, inl=0, bo=0, bf=0, now=0, fp=45, uf=1, ua=1, sk=0, cutx=0, hr=0, dslot=-1, dn=0, gp=0, gs=250, xl=0, wsp=2, pt=1, gpre=1, cpf=0, lean=5, nb=0, t3=0, p3=10, q3=17, c3=25, n3=8, xq=0, mc=1, mo=1, ys=1, sn=0, sd=0, ht=0, hs=0, hs2=0, hl2=60, kc=100, hn=12, pw=0, pwo=0, pp=0, hf=0, emu=0, xs=80, fs=80, hl=60, h2=0, rb=2, rd=7, s9=5, bb=1, al=0, wb=1, d2=0, gf=0,
           F='1,3,2,0', W1='0,0,4,4,0,8,0,4,0,0', WB='0,0,0,0,0,10,0', W2='6,5,0,25,7,2,6,8,0,1',
           td=50, tpd=50, la1=7, la2=8, k1e=70, k2e=82, k3e=85, s3e=40, s6e=25, g1s=40, gae=100, fq=28,
           pa=19, qa=32, oa=3, pb=30, qb=62, cb=92, r1=16, ca=1)
for a in sys.argv[2:]:
    k, v = a.split('=')
    assert k in OPT, k
    OPT[k] = v if isinstance(OPT[k], str) else int(v)
SF = [int(x) for x in OPT['F'].split(',')] + [0] * 11
SW1 = [int(x) for x in OPT['W1'].split(',')] + [0] * 5
SWB = [0] * 5 + [int(x) for x in OPT['WB'].split(',')] + [0] * 3
SW2 = [0] * 5 + [int(x) for x in OPT['W2'].split(',')]
assert sum(SF) == 6 and sum(SW1) == 20 and sum(SWB) == 10 and sum(SW2) == 60
assert OPT['bs'] % 8 == 0 or not OPT['sk'] & 6
assert OPT['sk'] == 0 and OPT['pa'] < OPT['qa'] < 40 - 8 * OPT['nb']
assert SW2[14] <= 20 and sum(SW1[:2]) <= 14
assert not OPT['late'] or sum(SW2[:8]) + sum(SWB[:8]) == 0
OPT.update(spread=1, two=0, ub=0, rot=0)

WS_EPOCH = 0x0
WS_XID = 0x400
WS_HINT = 0x2000
WS_FLAG = 0x8000
WS_MOD = 0x10000
MP = 15360
BS = 128 * OPT['bs']
WS_T = 0x100000
WS_TP = WS_T + 256 * BS
WS_Y2 = WS_T
WS_H = 0xA00000
WS_W1P = 0x1200000
WS_W2P = 0x1440000
WS_STAMP = 0x1800000
WS_SIZE = 268435456
SKIP = 0x2000000 + 128
OOB = 0x7ff00000

BIG = 0
B_N, B_W1, B_W2, B_F = 15360, 20480, 22528, 24576
SCR = 122880
L_X1E = SCR
L_M1 = SCR + 24576
L_RED = SCR + 32768
L_K2I = SCR + 24576
L_K2O = SCR
L_M2 = SCR + 12416
L_B1 = L_M2 + 9216
L_K3I = SCR + 24576
L_Y = SCR
L_Y2 = SCR + 24576
LDS_SIZE = 163840

S_X, S_WR, S_WI, S_W1, S_B1, S_W2, S_B2, S_C, S_WM, S_OUT, S_WS = [4 + 4 * i for i in range(11)]
sME, sW, sTAG, sXC, sG, sK1, sCL, sJ = range(48, 56)
sT0, sT1, sT2, sT3, sT4, sT5, sT6, sT7 = range(56, 64)
sM1, sM2 = 64, 66
sMODST, sW2ST, sFSH = 68, 69, 70
sPID = sME
sTB = 72
sLD = 76
sST = 80
sW2O = 84
sWB = 85
sDW = 70 if OPT['hr'] else 49
sW1O, sW1E = 90, 91
sBGO, sBG2 = 92, 93
sXID, sFAST, sCNT = 94, 95, 96
sSTAMP = 98

OSC = ['', ' sc1', ' nt', ' sc0 sc1'][OPT['osc']]
YSC = ['', ' sc1', ' nt'][OPT['ysc']]
A = Asm()
A.smart = bool(OPT['smart'])
RETRY = Asm()
nstamp = [0]
STAMPS = []


def srd(s):
    return sr(s, 4)


NOTES = dict(
    start='set-up; loads of c, w_mod (K split in four), x; weight formatting units',
    silu='modulation GEMV: partial sums, published with the launch tag in their low bytes',
    gemv='LayerNorm 1 statistics, operand exchange, address set-up',
    Miss='gather shift / scale partial sums',
    mod1='phase 1: modulate, DFT over (d mod 5, 8 rows), DFT-32, radix-4; publish T',
    k1='constants of phase 2, filter, late modulation vectors',
    Tiss='gather T',
    T='phase 2: 256-point FFT along the sequence, filter, inverse; publish T2',
    k2='constants of phase 3',
    Tpiss='gather T2',
    Tp='phase 3: inverse row transform, residual, LayerNorm 2, modulate, LayerNorm 3; publish y2',
    k3='hand-off of y2 inside the cluster of 16 workgroups',
    y2='GEMM1, first 64 hidden columns',
    g1a='gelu, publish h (first group)',
    gelua='GEMM1, last 32 hidden columns',
    g1b='gelu, publish h (second group)',
    gelub='GEMM2 (K split over the waves, reduced through LDS)',
    g2='output')


def stamp(name):
    if name in NOTES:
        A('; ---- ' + NOTES[name])
    if OPT['stamps'] == 3 and name not in ('start', 'end'):
        return
    if OPT['fine'] and name in ('silu', 'gemv', 'ln1', 'Tiss', 'Tpiss', 'pub0', 'y2', 'g1', 'gelu', 'pub1', 'h', 'g2'):
        return
    if not OPT['stamps']:
        if OPT['probe'] == nstamp[0]:
            A('s_memrealtime s[100:101]\ns_waitcnt lgkmcnt(0)\ns_sub_u32 s97, s100, s98')
        nstamp[0] += 1
        return
    i = nstamp[0]
    nstamp[0] += 1
    A(f'''s_memrealtime {sr(sSTAMP, 2)}
    s_memtime {sr(sSTAMP + 2, 2)}
    s_waitcnt lgkmcnt(0)
    v_writelane_b32 v255, s{sSTAMP}, {i}
    v_writelane_b32 v255, s{sSTAMP + 2}, {i + 32}''')
    STAMPS.append(name)


def fine(ph, name):
    if OPT['fine'] == ph:
        stamp(name)


def masked(loads, tagregs):
    if not OPT['mask']:
        return loads
    out = ''
    for ld, r in zip(loads.strip().split('\n'), tagregs):
        nlab[0] += 1
        out += f'v_cmp_ne_u32 vcc, s{sTAG}, v{r}\ns_cbranch_vccz L_m{nlab[0]}\ns_mov_b64 exec, vcc\n{ld}\ns_mov_b64 exec, -1\nL_m{nlab[0]}:\n'
    return out


nlab = [0]


def poll_check(label, loads, bad_cmp):
    if OPT['inl'] and label not in ('mod2', 'fl2'):
        A(f'L_pre_{label}:\ns_branch L_chk_{label}')
        A.blob(f'''L_retry_{label}:
        s_sub_u32 s{sCNT}, s{sCNT}, 1
        s_cmp_lt_i32 s{sCNT}, 0
        s_cbranch_scc1 L_ok_{label}
        {loads}
        s_waitcnt vmcnt(0)''')
        A(f'L_chk_{label}:')
        A(bad_cmp)
        A(f's_cbranch_vccnz L_retry_{label}')
        A(f'L_ok_{label}:')
        return
    A(f'L_chk_{label}:')
    A(bad_cmp)
    A(f's_cbranch_vccnz L_retry_{label}')
    A(f'L_ok_{label}:')
    RETRY('.segment')
    RETRY(f'''L_retry_{label}:
    s_sub_u32 s{sCNT}, s{sCNT}, 1
    s_cmp_lt_i32 s{sCNT}, 0
    s_cbranch_scc1 L_ok_{label}''')
    bo = OPT['bf'] if label.startswith('fl') else OPT['bo']
    if bo:
        RETRY(f's_sleep {bo}')
    RETRY(loads)
    RETRY(f'''s_waitcnt vmcnt(0)
    s_branch L_chk_{label}''')


def tagcheck(regs, tmp):
    if len(regs) == 1:
        return f'v_cmp_ne_u32 vcc, s{sTAG}, v{regs[0]}'
    s = f'v_min3_u32 v{tmp}, v{regs[0]}, v{regs[1]}, v{regs[2]}\n'
    s += f'v_max3_u32 v{tmp + 1}, v{regs[0]}, v{regs[1]}, v{regs[2]}\n'
    s += f'v_min3_u32 v{tmp}, v{tmp}, v{regs[3]}, s{sTAG}\n'
    s += f'v_max3_u32 v{tmp + 1}, v{tmp + 1}, v{regs[3]}, s{sTAG}\n'
    s += f'v_cmp_ne_u32 vcc, v{tmp}, v{tmp + 1}\n'
    return s


def sincos(ang, c, s):
    A(f'v_cos_f32 v{c}, v{ang}')
    A(f'v_sin_f32 v{s}, v{ang}')


def fmamk(d, a, k, b):
    if k == 0:
        A(f'v_mov_b32 v{d}, v{b}')
    elif k == 1:
        A(f'v_add_f32 v{d}, v{a}, v{b}')
    else:
        A(f'v_fmamk_f32 v{d}, v{a}, {f2u(k)}, v{b}')


def unpack(lo, hi, src):
    A(f'v_lshlrev_b32 v{lo}, 16, v{src}')
    A(f'v_and_b32 v{hi}, 0xffff0000, v{src}')


def mod5(d, src, tmp):
    A(f'v_mul_u32_u24 v{tmp}, 205, v{src}')
    A(f'v_lshrrev_b32 v{tmp}, 10, v{tmp}')
    A(f'v_mad_i32_i24 v{d}, v{tmp}, -5, v{src}')


def pk(op, d, *src, mods=''):
    A(f'v_pk_{op}_f32 {vr(d, 2)}, ' + ', '.join(vr(s, 2) if isinstance(s, int) else s for s in src) + (' ' + mods if mods else ''))


NEG1 = 'neg_lo:[0,1] neg_hi:[0,1]'

vL = 1
vL31, vH = 2, 3
vL15, vQ = 4, 5
vL16, vT16 = 6, 7
vLX = 254
vLW = vLX if OPT['sk'] & 1 else vL16
vLT = vLX if OPT['sk'] & 2 else vL16
vLY = vLX if OPT['sk'] & 4 else vL16
TMP = 8
vW1 = 240
vXID = 243
vBG = 244
vFL = 250


SIZES = {S_X: 2621440, S_WR: 1314816, S_WI: 1314816, S_W1: 1966080, S_B1: 3072, S_W2: 1966080, S_B2: 1280,
         S_C: 1280, S_WM: 4915200, S_OUT: 2621440, S_WS: WS_SIZE}
KSRC = {S_X: 64, S_WR: 66, S_WI: 68, S_W1: 72, S_B1: 74, S_W2: 76, S_B2: 78, S_C: 80, S_WM: 82, S_OUT: 84, S_WS: 88}


def srd_tail(*ss):
    for s in ss:
        A(f's_mov_b32 s{s + 2}, {SIZES[s]}')
        A(f's_mov_b32 s{s + 3}, {f"s{S_C + 3}" if OPT["lean"] == 5 else "0x00020000"}')


def setup_tight():
    t = TMP
    gf = OPT['gf']
    A(f'''s_cmp_ge_u32 s2, 256
    s_cbranch_scc1 L_end
    s_load_dwordx2 {sr(S_WM, 2)}, s[0:1], 72
    s_load_dwordx2 {sr(S_C, 2)}, s[0:1], 64
    s_load_dwordx16 s[64:79], s[0:1], 0
    s_load_dwordx2 {sr(S_WS, 2)}, s[0:1], 96
    s_lshr_b32 s{sG}, s2, 3''')
    code_prefetch(0)
    A(f'''v_lshrrev_b32 v{t}, 6, v0
    v_and_b32 v{vL}, 63, v0
    v_readfirstlane_b32 s{sW}, v{t}
    s_mov_b32 s{S_C + 3}, 0x00020000
    s_movk_i32 s{S_C + 2}, 1280
    s_mov_b32 s{S_WM + 3}, s{S_C + 3}
    s_mov_b32 s{S_WM + 2}, {SIZES[S_WM]}
    s_mov_b32 s{S_X + 3}, s{S_C + 3}
    s_mov_b32 s{S_X + 2}, {SIZES[S_X]}
    s_and_b32 s{sT1}, s2, 3
    s_andn2_b32 s{sT0}, s2, 3
    {'' if gf else f's_add_u32 s{sT0}, s{sT0}, s{sW}'}
    s_mul_i32 s{sT2}, s{sT1}, {160 * 240}
    s_add_u32 s{sT2}, s{sT2}, s{sT0}
    s_lshl_b32 s{sT2}, s{sT2}, 5
    s_mul_i32 s{sT4}, s{sT1}, 320
    {f'v_lshrrev_b32 v{t}, 3, v0' if gf else f'v_lshrrev_b32 v{t}, 1, v{vL}'}
    v_lshlrev_b32 v{t + 1}, 1, v{t}
    v_lshlrev_b32 v{t + 3}, 3, v{t}
    v_mul_u32_u24 v{t}, 7680, v{t}
    v_and_b32 v{t + 2}, {7 if gf else 1}, v0
    v_lshlrev_b32 v{t + 2}, 4, v{t + 2}
    v_lshl_add_u32 v{vGA}, v{t}, 2, v{t + 2}
    v_add_u32 v{vGA + 2}, v{t}, v{t + 2}
    s_and_b32 s{sXC}, s2, 7
    s_lshl_b32 s{sME}, s{sXC}, 5
    s_or_b32 s{sME}, s{sME}, s{sG}
    s_lshl_b32 s{sT6}, s{sW}, 9
    s_add_u32 s{sT6}, s{sT6}, s{sME}
    s_mulk_i32 s{sT6}, 1280
    s_add_u32 s{sT7}, s{sT6}, {256 * 1280}
    v_and_b32 v{vL31}, 31, v0
    v_lshrrev_b32 v{vH}, 5, v{vL}
    v_lshlrev_b32 v{vL16}, 4, v{vL}
    v_lshlrev_b32 v{t + 7}, 2, v{vH}
    v_lshl_add_u32 v{t + 7}, v{vL31}, 3, v{t + 7}
    s_waitcnt lgkmcnt(0)''')
    gemv_issue()
    A(f'''s_mov_b64 {sr(S_X, 2)}, s[64:65]
    s_load_dword s{sTAG}, {sr(S_WS, 2)}, {WS_EPOCH}
    buffer_load_dwordx4 {vr(X_RAW, 4)}, v{vL16}, {srd(S_X)}, s{sT6} offen
    buffer_load_dwordx4 {vr(X_RAW + 4, 4)}, v{vL16}, {srd(S_X)}, s{sT7} offen
    buffer_load_dword v{X_RAW + 8}, v{t + 7}, {srd(S_X)}, s{sT6} offen offset:1024
    buffer_load_dword v{X_RAW + 9}, v{t + 7}, {srd(S_X)}, s{sT7} offen offset:1024
    L_tight:
    s_load_dwordx2 {sr(S_OUT, 2)}, s[0:1], 80
    s_mul_i32 s{sT1}, s{sT1}, {MP}
    s_lshl_b32 s{sT3}, s{sT0}, 6
    s_add_u32 s{sT5}, s{sT1}, s{sT3}
    s_mov_b32 s{sCNT}, 200000
    v_and_b32 v{vL15}, 15, v0
    v_lshrrev_b32 v{vQ}, 4, v{vL}
    v_lshlrev_b32 v{vT16}, 4, v0''')
    for s in (S_W2, S_W1, S_WR, S_WI, S_B1, S_B2):
        A(f's_mov_b64 {sr(s, 2)}, {sr(KSRC[s], 2)}')
    srd_tail(S_W2, S_W1, S_WS, S_WR, S_WI)


def setup_lean():
    A(f"""s_cmp_ge_u32 s2, 256
    s_cbranch_scc1 L_end
    s_load_dwordx2 {sr(S_C, 2)}, s[0:1], 64
    s_load_dwordx2 {sr(S_WM, 2)}, s[0:1], 72
    s_load_dwordx2 {sr(S_WS, 2)}, s[0:1], 96
    s_load_dwordx2 {sr(S_OUT, 2)}, s[0:1], 80
    s_load_dwordx16 s[64:79], s[0:1], 0
    v_lshrrev_b32 v{TMP}, 6, v0
    v_and_b32 v{vL}, 63, v0
    v_readfirstlane_b32 s{sW}, v{TMP}""")
    srd_tail(S_C, S_WM)
    if OPT['lean'] == 3:
        A(f's_lshr_b32 s{sG}, s2, 3')
        code_prefetch(0)
    gemv_addr()
    A('s_waitcnt lgkmcnt(0)')
    fine(5, 'karg')
    gemv_issue()
    fine(5, 'wiss')
    A(f"""s_load_dword s{sTAG}, {sr(S_WS, 2)}, {WS_EPOCH}
    s_mov_b64 {sr(S_X, 2)}, s[64:65]
    s_and_b32 s{sXC}, s2, 7
    s_lshr_b32 s{sG}, s2, 3
    s_lshl_b32 s{sME}, s{sXC}, 5
    s_or_b32 s{sME}, s{sME}, s{sG}
    v_and_b32 v{vL31}, 31, v0
    v_lshrrev_b32 v{vH}, 5, v{vL}
    v_lshlrev_b32 v{vL16}, 4, v{vL}""")
    srd_tail(S_X)
    fine(6, 'tag')
    if OPT['lean'] == 2:
        code_prefetch(0)
    if OPT['lean'] < 3:
        x1_issue()
    if OPT['lean'] == 1:
        code_prefetch(0)
    A(f"""s_mov_b32 s{sCNT}, 200000
    v_and_b32 v{vL15}, 15, v0
    v_lshrrev_b32 v{vQ}, 4, v{vL}
    v_lshlrev_b32 v{vT16}, 4, v0""")
    for s in (S_W2, S_W1, S_WR, S_WI, S_B1, S_B2):
        A(f's_mov_b64 {sr(s, 2)}, {sr(KSRC[s], 2)}')
    srd_tail(S_W2, S_W1, S_WS, S_WR, S_WI)


def setup():
    A(f'''s_cmp_ge_u32 s2, 256
    s_cbranch_scc1 L_end
    s_load_dwordx8 s[80:87], s[0:1], 64
    s_load_dwordx2 s[88:89], s[0:1], 96
    s_load_dwordx16 s[64:79], s[0:1], 0
    s_lshr_b32 s{sG}, s2, 3''')
    if OPT['cpf']:
        code_prefetch(30 * 1024)
    A(f'''s_and_b32 s{sXC}, s2, 7
    s_lshl_b32 s{sME}, s{sXC}, 5
    s_or_b32 s{sME}, s{sME}, s{sG}
    s_mov_b32 s{sCNT}, 200000
    v_and_b32 v{vL}, 63, v0
    v_lshrrev_b32 v{TMP}, 6, v0
    v_and_b32 v{vL31}, 31, v0
    v_readfirstlane_b32 s{sW}, v{TMP}
    v_lshrrev_b32 v{vH}, 5, v{vL}
    v_and_b32 v{vL15}, 15, v0
    v_lshrrev_b32 v{vQ}, 4, v{vL}
    v_lshlrev_b32 v{vL16}, 4, v{vL}
    v_lshlrev_b32 v{vT16}, 4, v0''')
    sizes = {S_X: 2621440, S_WR: 1314816, S_WI: 1314816, S_W1: 1966080, S_B1: 3072, S_W2: 1966080, S_B2: 1280,
             S_C: 1280, S_WM: 4915200, S_OUT: 2621440, S_WS: WS_SIZE}
    for s in sizes:
        A(f's_mov_b32 s{s + 2}, {sizes[s]}')
        A(f's_mov_b32 s{s + 3}, 0x00020000')
    gemv_addr()
    A('s_waitcnt lgkmcnt(0)')
    src = {S_X: 64, S_WR: 66, S_WI: 68, S_W1: 72, S_B1: 74, S_W2: 76, S_B2: 78, S_C: 80, S_WM: 82, S_OUT: 84, S_WS: 88}
    for s in (S_WM, S_C):
        A(f's_mov_b64 {sr(s, 2)}, {sr(src[s], 2)}')
    if OPT['xfirst']:
        A(f's_mov_b64 {sr(S_X, 2)}, {sr(src[S_X], 2)}')
        x1_issue()
    gemv_issue()
    A(f's_mov_b64 {sr(S_WS, 2)}, s[88:89]')
    A(f's_load_dword s{sTAG}, {sr(S_WS, 2)}, {WS_EPOCH}')
    for s in (S_X, S_W2, S_WR, S_WI, S_W1, S_B1, S_B2, S_OUT):
        A(f's_mov_b64 {sr(s, 2)}, {sr(src[s], 2)}')


def roles():
    A(f'''s_sub_u32 s{sT0}, 8, s{sXC}
    s_and_b32 s{sT0}, s{sT0}, 7
    s_cmp_lt_u32 s{sG}, 16
    s_cselect_b32 s{sK1}, s{sXC}, s{sT0}
    s_mul_i32 s{sWB}, s{sW}, 30720''')
    A(f's_lshr_b32 s{sCL}, s{sME}, 4\ns_and_b32 s{sJ}, s{sME}, 15')
    cols(sCA, sCB, sJ)
    if OPT['sk']:
        A(f'''v_add_u32 v{vLX}, {SKIP}, v{vL16}
        s_mov_b64 vcc, 0xff000000
        v_cndmask_b32 v{vLX}, v{vL16}, v{vLX}, vcc''')


sCA, sCB = 88, 89
POS = sum(p << (2 * i) for i, p in enumerate([1, 0, 1, 2, 1, 1, 1, 1]))


def cols(da, db, j):
    A(f'''s_and_b32 s{sT5}, s{j}, 14
    s_lshr_b32 s{sT6}, {POS}, s{sT5}
    s_and_b32 s{sT6}, s{sT6}, 3
    s_mul_i32 s{sT5}, s{sT5}, 3
    s_and_b32 s{sT7}, s{j}, 1
    s_lshl_b32 s{db}, s{sT6}, 1
    s_add_u32 s{db}, s{db}, s{sT5}
    s_add_u32 s{db}, s{db}, s{sT7}
    s_lshl_b32 s{sT7}, s{sT7}, 1
    s_cmp_eq_u32 s{sT6}, s{sT7}
    s_cselect_b32 s{sT7}, 1, s{sT7}
    s_lshl_b32 s{sT7}, s{sT7}, 1
    s_add_u32 s{da}, s{sT5}, s{sT7}''')


def touch_w():
    if OPT['now'] & 2:
        return
    d = 247
    if OPT['tc'] == 0:
        A(f"""s_lshl_b32 s{sBGO}, s{sCL}, 2
        s_add_u32 s{sBGO}, s{sBGO}, s{sW}
        s_mul_i32 s{sBGO}, s{sBGO}, {10 * 48}
        s_add_u32 s{sBGO}, s{sBGO}, s{sCA}
        s_lshl_b32 s{sBGO}, s{sBGO}, 6
        v_min_u32 v{d}, 9, v{vL}
        v_mul_u32_u24 v{d}, 3072, v{d}
        buffer_load_dword v{vXID}, v{d}, {srd(S_W1)}, s{sBGO} offen""")
    else:
        A(f"""s_lshl_b32 s{sBGO}, s{sME}, 2
        s_add_u32 s{sBGO}, s{sBGO}, s{sW}
        s_mul_i32 s{sBGO}, s{sBGO}, 1920
        v_min_u32 v{d}, 14, v{vL}
        v_lshlrev_b32 v{d}, 7, v{d}
        buffer_load_dword v{vXID}, v{d}, {srd(S_W1)}, s{sBGO} offen""")
        if OPT['tc'] == 2:
            A(f'buffer_load_dword v{d}, v{d}, {srd(S_W2)}, s{sBGO} offen')


def touch():
    t = TMP
    if OPT['tw'] == 0:
        touch_w()
    A(f'''s_lshl_b32 s{sT0}, s{sG}, 2
    s_add_u32 s{sT0}, s{sT0}, s{sW}
    s_lshl_b32 s{sT0}, s{sT0}, 4
    s_add_u32 s{sT0}, s{sT0}, s{sXC}
    s_mul_i32 s{sT0}, s{sT0}, 642
    s_and_b32 s{sT0}, s{sT0}, -4
    v_min_u32 v{t}, 5, v{vL31}
    v_lshlrev_b32 v{t}, 7, v{t}
    v_mul_u32_u24 v{t + 1}, {8 * 642}, v{vH}
    v_add_u32 v{t}, v{t}, v{t + 1}
    buffer_load_dword v248, v{t}, {srd(S_WR)}, s{sT0} offen
    buffer_load_dword v249, v{t}, {srd(S_WI)}, s{sT0} offen''')


def pid_to_me(d, p, t1):
    b = {1: 0, 2: 1, 4: 2, 8: 3}[OPT['spread']]
    if b == 0:
        A(f's_mov_b32 s{d}, s{p}')
        return
    A(f'''s_lshr_b32 s{d}, s{p}, {5 + b}
    s_lshl_b32 s{d}, s{d}, {5 + b}
    s_bfe_u32 s{t1}, s{p}, {(b << 16) | (4 - b)}
    s_lshl_b32 s{t1}, s{t1}, 5
    s_or_b32 s{d}, s{d}, s{t1}
    s_bfe_u32 s{t1}, s{p}, {((1 + b) << 16) | 4}
    s_lshl_b32 s{t1}, s{t1}, {4 - b}
    s_or_b32 s{d}, s{d}, s{t1}
    s_and_b32 s{t1}, s{p}, {(1 << (4 - b)) - 1}
    s_or_b32 s{d}, s{d}, s{t1}''')


G_C = 188
vGS, vGM, vGA = 194, 195, 236
G_W2 = 216
sGW, sMODS2 = 89, 97
G_W = 32
G_ACC = 52


def gemv_addr():
    A(f'''s_cmp_lt_u32 s2, 240
    s_cselect_b32 s{sT0}, s2, 0
    s_and_b32 s{sT1}, s{sT0}, 3''')
    if OPT['um']:
        A(f'''s_bfe_u32 s{sT2}, s{sT0}, 0x10002
        s_mul_i32 s{sT2}, s{sT2}, 30
        s_lshr_b32 s{sT0}, s{sT0}, 3
        s_add_u32 s{sT0}, s{sT0}, s{sT2}''')
    else:
        A(f's_lshr_b32 s{sT0}, s{sT0}, 2')
    A(f'''    s_lshl_b32 s{sT0}, s{sT0}, 2
    {'' if OPT['gf'] else f's_add_u32 s{sT0}, s{sT0}, s{sW}'}
    s_mul_i32 s{sT2}, s{sT1}, {160 * 7680}
    s_lshl_b32 s{sT3}, s{sT0}, 5
    s_add_u32 s{sT2}, s{sT2}, s{sT3}
    s_mul_i32 s{sT4}, s{sT1}, 320
    s_mul_i32 s{sT1}, s{sT1}, {MP}
    s_lshl_b32 s{sT3}, s{sT0}, 6
    s_add_u32 s{sT5}, s{sT1}, s{sT3}
    {f'v_lshrrev_b32 v{TMP}, 3, v0' if OPT['gf'] else f'v_lshrrev_b32 v{TMP}, 1, v{vL}'}
    v_lshlrev_b32 v{TMP + 1}, 1, v{TMP}
    v_lshlrev_b32 v{TMP + 3}, 3, v{TMP}
    v_mul_u32_u24 v{TMP}, 7680, v{TMP}
    v_and_b32 v{TMP + 2}, {7 if OPT['gf'] else 1}, v0
    v_lshlrev_b32 v{TMP + 2}, 4, v{TMP + 2}
    v_lshl_add_u32 v{vGA}, v{TMP}, 2, v{TMP + 2}
    v_add_u32 v{vGA + 2}, v{TMP}, v{TMP + 2}''')
    if OPT['two'] or OPT['ub']:
        A(f's_cmp_lt_u32 s2, 80\ns_cselect_b32 s{sT2}, s{sT2}, {OOB // 2}')


def gemv2_issue():
    for i in range(5):
        if i:
            A(f's_add_u32 s{sGW}, s{sGW}, {7680 if i < 4 else 125 * 7680}')
        A(f'buffer_load_dwordx4 {vr(G_W2 + 4 * i, 4)}, v{vGA + 2 * (i // 4)}, {srd(S_WM)}, s{sGW} offen')


def gemv_issue():
    A(f'buffer_load_dwordx2 {vr(G_C + 2, 2)}, v{TMP + 3}, {srd(S_C)}, s{sT4} offen')
    A(f'buffer_load_ushort v{G_C + 4}, v{TMP + 1}, {srd(S_C)}, s{sT4} offen offset:256')
    for i in range(5):
        A(f'buffer_load_dwordx4 {vr(G_W + 4 * i, 4)}, v{vGA + 2 * (i // 4)}, {srd(S_WM)}, s{sT2} offen')
        if i < 4:
            A(f's_add_u32 s{sT2}, s{sT2}, {7680 if i < 3 else 125 * 7680}')


def gemv_store_addr():
    A(f'''s_add_u32 s{sT5}, s{sT5}, {WS_MOD}
    s_cmp_lt_u32 s2, 240
    s_cselect_b32 s{sMODST}, s{sT5}, {OOB}''')
    if OPT['two']:
        A(f'''s_sub_u32 s{sT0}, s2, 80
        s_cmp_lt_u32 s{sT0}, 160
        s_cselect_b32 s{sMODS2}, s{sT5}, {OOB}
        s_cselect_b32 s{sMODST}, {OOB}, s{sMODST}
        s_cselect_b32 s{sW2O}, s{sT6}, {OOB // 2}''')


def silu():
    t = TMP
    unpack(G_C, G_C + 1, G_C + 2)
    fine(5, 'c')
    unpack(G_C + 2, G_C + 3, G_C + 3)
    A(f'v_lshlrev_b32 v{G_C + 4}, 16, v{G_C + 4}')
    for i in range(5):
        A(f'v_mul_f32 v{t + i}, {f2u(-1.4426950408889634)}, v{G_C + i}')
    for i in range(5):
        A(f'v_exp_f32 v{t + i}, v{t + i}')
    for i in range(5):
        A(f'v_add_f32 v{t + i}, 1.0, v{t + i}')
    for i in range(5):
        A(f'v_rcp_f32 v{t + i}, v{t + i}')
    for i in range(5):
        A(f'v_mul_f32 v{t + i}, v{G_C + i}, v{t + i}')
    for i in range(5):
        A(f'v_cvt_pk_bf16_f32 v{t + i}, v{t + i}, v{t + i}')
    for i in range(5):
        A(f'v_lshlrev_b32 v{G_C + i}, 16, v{t + i}')
    A(f'''s_mul_i32 s{sTAG}, s{sTAG}, 0x9E3779B1
    s_add_u32 s{sTAG}, s{sTAG}, 0x7F4A7C15
    s_or_b32 s{sTAG}, s{sTAG}, 0xffc00000''')
    for k in range(4):
        A(f's_bfe_u32 s{sTB + k}, s{sTAG}, {(8 << 16) | (8 * k)}')
    if OPT['gf']:
        A(f'''v_mov_b32 v{t + 6}, {OOB}
        v_cmp_gt_u32 vcc, 16, v0
        v_cndmask_b32 v{vGS}, v{t + 6}, v{vT16}, vcc
        v_mov_b32 v{vGM}, 0xffffff00
        s_lshl_b32 s{sT0}, s{sW}, 8
        s_add_u32 s{sT0}, s{sT0}, {L_RED}
        v_and_b32 v{t + 5}, 7, v{vL}
        v_lshl_add_u32 v{t + 5}, v{t + 5}, 5, s{sT0}
        v_lshl_add_u32 v{t + 5}, v{vH}, 4, v{t + 5}
        v_and_b32 v{t + 6}, 1, v{vQ}
        v_lshl_add_u32 v{vGA}, v{t + 6}, 2, v{t + 5}
        s_mov_b32 s{sT0}, {L_RED}
        v_lshl_add_u32 v{vGA + 2}, v{vL15}, 4, s{sT0}''')
        return
    A(f'''v_and_b32 v{t + 5}, 1, v{vL}
    v_lshlrev_b32 v{t + 5}, 5, v{t + 5}
    v_lshl_add_u32 v{t + 5}, v{vH}, 4, v{t + 5}
    v_mov_b32 v{t + 6}, {OOB}
    v_cmp_gt_u32 vcc, 2, v{vL31}
    v_cndmask_b32 v{vGS}, v{t + 6}, v{t + 5}, vcc
    v_mov_b32 v{vGM}, 0xffffff00''')


def gemv_compute(G_W, sdst):
    t = TMP
    for i in range(5):
        sp = (G_C + i) & ~1
        sel = (G_C + i) & 1
        for k in range(4):
            u = t + 2 * (k & 1)
            unpack(u, u + 1, G_W + 4 * i + k)
            if i == 0:
                pk('mul', G_ACC + 2 * k, u, sp, mods=f'op_sel:[0,{sel}] op_sel_hi:[1,{sel}]')
            else:
                pk('fma', G_ACC + 2 * k, u, sp, G_ACC + 2 * k, mods=f'op_sel:[0,{sel},0] op_sel_hi:[1,{sel},1]')
    a = G_ACC
    for k in range(4):
        A(f'v_permlane32_swap_b32 v{a + k}, v{a + k + 4}')
    pk('add', a, a, a + 4)
    pk('add', a + 2, a + 2, a + 6)
    A(f'''v_permlane16_swap_b32 v{a}, v{a + 1}
    v_permlane16_swap_b32 v{a + 2}, v{a + 3}
    v_add_f32 v{a}, v{a}, v{a + 1}
    v_add_f32 v{a + 2}, v{a + 2}, v{a + 3}''')
    if OPT['gf']:
        A(f'''v_add_f32_dpp v{a}, v{a}, v{a} row_ror:8 row_mask:0xf bank_mask:0xf
        v_add_f32_dpp v{a + 2}, v{a + 2}, v{a + 2} row_ror:8 row_mask:0xf bank_mask:0xf
        ds_write2_b32 v{vGA}, v{a}, v{a + 2} offset0:0 offset1:2
        s_waitcnt lgkmcnt(0)
        s_barrier''')
        for w in range(4):
            A(f'ds_read_b128 {vr(G_W + 4 * w, 4)}, v{vGA + 2} offset:{256 * w}')
        sum4(G_W)
        for k in range(4):
            A(f'v_and_or_b32 v{a + k}, v{G_W + k}, v{vGM}, s{sTB + k}')
        A(f'buffer_store_dwordx4 {vr(a, 4)}, v{vGS}, {srd(S_WS)}, s{sdst} offen sc1')
        return
    for r in (8, 4):
        A(f'v_add_f32_dpp v{a}, v{a}, v{a} row_ror:{r} row_mask:0xf bank_mask:0xf')
        A(f'v_add_f32_dpp v{a + 2}, v{a + 2}, v{a + 2} row_ror:{r} row_mask:0xf bank_mask:0xf')
    for d in (1, 3, 0, 2):
        s_ = a + (d & 2)
        A(f'v_add_f32_dpp v{a + d}, v{s_}, v{s_} row_ror:2 row_mask:0xf bank_mask:0xf')
    A(f'''v_permlane16_swap_b32 v{a}, v{a + 1}
    v_permlane16_swap_b32 v{a + 2}, v{a + 3}''')
    for k in range(4):
        A(f'v_and_or_b32 v{a + k}, v{a + k}, v{vGM}, s{sTB + k}')
    A(f'buffer_store_dwordx4 {vr(a, 4)}, v{vGS}, {srd(S_WS)}, s{sdst} offen sc1')


def code_prefetch(nbytes):
    t = TMP + 4
    A(f"""s_getpc_b64 {sr(sT2, 2)}
    L_pc:
    v_and_b32 v{t}, 7, v0
    v_lshl_add_u32 v{t}, v{t}, 5, s{sG}
    v_lshlrev_b32 v{t}, 7, v{t}
    v_min_u32 v{t}, L_last-L_pc, v{t}
    v_mov_b32 v{t + 1}, s{sT3}
    v_add_co_u32 v{t}, vcc, s{sT2}, v{t}
    v_addc_co_u32 v{t + 1}, vcc, 0, v{t + 1}, vcc
    global_load_dword v{vFL}, {vr(t, 2)}, off""")


def xid_store():
    t = TMP
    A(f'''s_getreg_b32 s{sXID}, hwreg(HW_REG_XCC_ID, 0, 4)
    s_lshl_b32 s{sT0}, s{sPID}, 2
    s_add_u32 s{sT0}, s{sT0}, {WS_XID}
    v_mov_b32 v{t}, s{sXID}
    v_cmp_eq_u32 vcc, 0, v0
    v_mov_b32 v{t + 1}, {OOB}
    v_cndmask_b32 v{t + 1}, v{t + 1}, v0, vcc
    buffer_store_dword v{t}, v{t + 1}, {srd(S_WS)}, s{sT0} offen sc1''')


def xid_load():
    A(f'''s_lshl_b32 s{sBGO}, s{sCL}, 6
    s_add_u32 s{sBGO}, s{sBGO}, {WS_XID}
    v_lshlrev_b32 v{vXID}, 2, v{vL15}
    buffer_load_dword v{vXID}, v{vXID}, {srd(S_WS)}, s{sBGO} offen sc1
    s_lshl_b32 s{sBGO}, s{sCL}, 10
    s_add_u32 s{sBGO}, s{sBGO}, {WS_FLAG}
    buffer_load_dword v{vFL}, v{vL16}, {srd(S_WS)}, s{sBGO} offen sc1''')


def xid_check():
    A(f'''v_cmp_ne_u32 vcc, s{sXID}, v{vXID}
    s_cmp_eq_u64 vcc, 0
    s_cselect_b32 s{sFAST}, {0 if OPT['slow'] else 1}, 0''')


def flag_prep(which):
    if which == 0:
        A(f"""s_lshl_b32 s{sBGO}, s{sCL}, 10
        s_add_u32 s{sBGO}, s{sBGO}, {WS_FLAG}
        s_lshl_b32 s{sBG2}, s{sJ}, 2
        s_add_u32 s{sBG2}, s{sBG2}, s{sW}
        s_lshl_b32 s{sBG2}, s{sBG2}, 2
        v_mov_b32 v{vFL + 2}, s{sBG2}
        v_mov_b32 v{vFL + 3}, s{sTAG}
        s_lshl_b32 s{sBG2}, s{sW}, 6
        v_lshl_add_u32 v{vFL}, v{vL15}, 2, s{sBG2}""")
    else:
        A(f"""s_lshl_b32 s{sBG2}, s{sW}, 6
        s_and_b32 s{sT7}, s{sJ}, 8
        s_add_u32 s{sBG2}, s{sBG2}, s{sT7}
        v_and_b32 v{vFL}, 13, v{vL}
        v_lshl_add_u32 v{vFL}, v{vFL}, 2, s{sBG2}""")
        if OPT['h2'] == 2:
            assert OPT['ca'] == 0
            A(f"""v_lshlrev_b32 v{vT16}, 4, v{vL15}
            v_cmp_eq_u32 vcc, 1, v{vQ}
            v_cndmask_b32 v{vFL}, v{vFL}, v{vT16}, vcc""")
        if OPT['xl'] or OPT['sn'] == 1:
            A(f"""s_lshl_b32 s{sBG2}, s{sDW}, 1
            s_add_u32 s{sBG2}, s{sBG2}, s{sT7}
            s_lshl_b32 s{sBG2}, s{sBG2}, 4
            v_writelane_b32 v{vFL}, s{sBG2}, 62
            s_add_u32 s{sBG2}, s{sBG2}, 16
            v_writelane_b32 v{vFL}, s{sBG2}, 63""")


vHT, sHT, sHS, sHC = 253, 82, 83, 71


def prewarm():
    A('v_mov_b32 v159, 0')
    for n in range(OPT['pw']):
        i = n + OPT['pwo']
        base = [WS_TP, WS_T, 0x3000000, 0x3800000][i // 4] + 4096 * (i % 4)
        A(f'''s_mul_i32 s{sT0}, s{sME}, {BS}
        s_add_u32 s{sT0}, s{sT0}, {base}
        buffer_store_dwordx4 v[156:159], v{vT16}, {srd(S_WS)}, s{sT0} offen sc1''')


def hint_prep():
    A(f'''s_lshl_b32 s{sHT}, s{sXC}, 7
    s_add_u32 s{sHT}, s{sHT}, {WS_HINT}
    s_lshl_b32 s{sHS}, s{sG}, 2
    s_add_u32 s{sHS}, s{sHS}, s{sHT}
    s_cmp_eq_u32 s{sW}, 0
    s_cselect_b32 s{sHS}, s{sHS}, {OOB}
    v_lshlrev_b32 v{vHT}, 10, v{vH}
    buffer_load_dword v{vHT}, v{vHT}, {srd(S_WS)}, s{sHT} offen sc1''')


def hint_set(k):
    A(f'''v_mov_b32 v{vHT - 1}, s{sTAG}
    buffer_store_dword v{vHT - 1}, off, {srd(S_WS)}, s{sHS} offset:{1024 * k}''')


def hint_ld(k):
    return f'buffer_load_dword v{vHT}, v{vHT - 2}, {srd(S_WS)}, s{sHT} offen offset:{1024 * k} sc1'


def hint_issue(k):
    A(f'''v_lshlrev_b32 v{vHT - 2}, 2, v{vL31}
    s_mov_b32 s{sHC}, {OPT['hn']}
    {hint_ld(k)}''')


def hint_check(k):
    A(f's_branch L_chk_h{k}')
    A.blob(f'''L_retry_h{k}:
    s_sub_u32 s{sHC}, s{sHC}, 1
    s_cmp_lt_i32 s{sHC}, 0
    s_cbranch_scc1 L_ok_h{k}
    {hint_ld(k)}
    s_waitcnt vmcnt(0)''')
    A(f'''L_chk_h{k}:
    v_cmp_ne_u32 vcc, s{sTAG}, v{vHT}
    s_cbranch_vccnz L_retry_h{k}
    L_ok_h{k}:''')


def insert_at(start, pct, fn):
    it = A.items
    k = start + (len(it) - start) * pct // 100
    while k < len(it) and it[k].kind != 'valu':
        k += 1
    inside = [x.text[:5] for x in it[start:k] if x.kind == 'label']
    assert not inside or inside[-1] != 'L_chk'
    it[k:k] = A.capture(fn)


def nvm(items):
    return sum(1 for i in items if i.kind == 'vmem')


def after_last(pred):
    i = max([k for k, x in enumerate(A.items) if x.kind == 'vmem' and pred(x)] or [len(A.items) - 300])
    return min(63, nvm(A.items[i + 1:]))


def flag_publish(which):
    if which == 3:
        younger = after_last(lambda x: 'store_dwordx4' in x.op and 'offset:0 sc1' in x.text)
    elif which:
        younger = after_last(lambda x: 'store_dwordx4' in x.op)
    else:
        younger = after_last(lambda x: 'store' in x.op or ' lds' in x.text)
    st = f'buffer_store_dword v{vFL + 3}, v{vFL + 2}, {srd(S_WS)}, s{sBGO} offen offset:{256 * which}'
    if which and OPT['hf']:
        A(f's_waitcnt vmcnt({younger})\n{st} sc1')
        return
    A(f"""s_cmp_eq_u32 s{sFAST}, 0
    s_waitcnt vmcnt({min(younger, 63)})
    s_cbranch_scc1 L_slow_pub{which}
    {st}
    L_join_pub{which}:""")
    RETRY('.segment')
    RETRY(f'L_slow_pub{which}:')
    if which == 0 and not OPT['sn'] or which == 1 and OPT['h2']:
        RETRY('buffer_wbl2 sc1\ns_waitcnt vmcnt(0)')
    RETRY(f'{st} sc1\ns_branch L_join_pub{which}')


def flag_ld(which):
    return f'buffer_load_dword v{vFL + 1}, v{vFL}, {srd(S_WS)}, s{sBGO} offen offset:{256 * which} sc1'


def flag_check(which):
    poll_check(f'fl{which}', flag_ld(which), tagcheck([vFL + 1], 0))
    if which == 0 and not OPT['sn'] or which == 1 and OPT['h2']:
        A(f"""s_cmp_eq_u32 s{sFAST}, 0
        s_cbranch_scc1 L_slow_acq{which}
        L_join_acq{which}:""")
        RETRY('.segment')
        RETRY(f"""L_slow_acq{which}:
        buffer_inv sc1
        s_waitcnt vmcnt(0)
        s_branch L_join_acq{which}""")


sW1ST, sW1S = 86, 87
vU1, vU2 = 251, 252


def fmt_prep():
    t = TMP
    A(f"""s_mul_i32 s{sT0}, s{sME}, 205
    s_lshr_b32 s{sT0}, s{sT0}, 10
    s_mul_i32 s{sT1}, s{sT0}, 5
    s_sub_u32 s{sT1}, s{sME}, s{sT1}
    s_lshl_b32 s{sT1}, s{sT1}, 2
    s_add_u32 s{sT1}, s{sT1}, s{sW}
    s_mul_i32 s{sT2}, s{sT0}, 40960
    s_lshl_b32 s{sT3}, s{sT1}, 11
    s_add_u32 s{sW2ST}, s{sT2}, s{sT3}
    s_add_u32 s{sW2ST}, s{sW2ST}, {WS_W2P}
    s_mul_i32 s{sT2}, s{sT0}, 171
    s_lshr_b32 s{sT2}, s{sT2}, 9
    s_mul_i32 s{sT3}, s{sT2}, 3
    s_sub_u32 s{sT0}, s{sT0}, s{sT3}""")
    cols(sT3, sT4, sT2)
    if OPT['ua']:
        UA = f'''s_sub_u32 s{sT0}, 30, s{sG}
        s_lshl_b32 s{sT0}, s{sT0}, 2
        s_add_u32 s{sT0}, s{sT0}, s{sXC}
        s_bitcmp1_b32 s{sG}, 0
        s_cselect_b32 s{sT0}, 255, s{sT0}'''
    else:
        UA = f's_sub_u32 s{sT0}, 255, s2'
    A(f"""s_add_u32 s{sT3}, s{sT3}, s{sT0}
    s_cmp_lt_u32 s{sT0}, 2
    s_cselect_b32 s{sT3}, s{sT3}, s{sT4}
    s_mul_i32 s{sT3}, s{sT3}, 40960
    s_lshl_b32 s{sT1}, s{sT1}, 6
    s_add_u32 s{sW2O}, s{sT3}, s{sT1}
    s_cmp_lt_u32 s{sME}, 240
    s_cselect_b32 s{sW2ST}, s{sW2ST}, {OOB}
    s_cselect_b32 s{sW2O}, s{sW2O}, {OOB // 2}
    {UA}
    s_and_b32 s{sT1}, s{sT0}, 3
    s_lshl_b32 s{sT1}, s{sT1}, 2
    s_add_u32 s{sT1}, s{sT1}, s{sW}
    s_lshr_b32 s{sT0}, s{sT0}, 2""")
    cols(sT3, sT4, sT1)
    A(f"""s_mul_i32 s{sT2}, s{sT0}, {32 * 3072}
    s_lshl_b32 s{sT4}, s{sT4}, 6
    s_add_u32 s{sW1S}, s{sT2}, s{sT4}
    s_mul_i32 s{sT1}, s{sT1}, 20
    s_add_u32 s{sT1}, s{sT1}, s{sT0}
    s_lshl_b32 s{sT1}, s{sT1}, 11
    s_add_u32 s{sW1ST}, s{sT1}, {WS_W1P}
    s_cmp_lt_u32 s{sT0}, 20
    s_cselect_b32 s{sW1ST}, s{sW1ST}, {OOB}
    {f's_mov_b32 s{sW1ST}, {OOB}' if OPT['now'] & 4 else ''}
    {f's_mov_b32 s{sW2ST}, {OOB}' if OPT['now'] & 8 else ''}
    {f's_mov_b32 s{sW1S}, {OOB // 2}' if OPT['now'] & 16 else ''}
    {f's_mov_b32 s{sW2O}, {OOB // 2}' if OPT['now'] & 32 else ''}
    v_lshrrev_b32 v{t}, 2, v{vL}
    v_and_b32 v{t + 1}, 3, v{vL}
    v_lshlrev_b32 v{t + 1}, 4, v{t + 1}
    v_mul_u32_u24 v{t + 2}, 1280, v{t}
    v_add_u32 v{vU2}, v{t + 1}, v{t + 2}
    v_mul_u32_u24 v{t + 2}, 3072, v{t}
    v_add_u32 v{vU1}, v{t + 1}, v{t + 2}""")


def fmt_issue():
    if OPT['now'] & 1:
        return
    for sd, so, v, pitch, lds in ((S_W1, sW1S, vU1, 3072, B_W1), (S_W2, sW2O, vU2, 1280, B_W2)):
        A(f"""s_add_u32 m0, s{sWB}, {BIG + lds}
        buffer_load_dwordx4 v{v}, {srd(sd)}, s{so} offen lds
        s_add_u32 m0, s{sWB}, {BIG + lds + 1024}
        s_add_u32 s{so}, s{so}, {16 * pitch}
        buffer_load_dwordx4 v{v}, {srd(sd)}, s{so} offen lds""")


def fmt_finish():
    if OPT['now'] & 1:
        return
    A(f's_waitcnt vmcnt({min(63, after_last(lambda x: srd(S_W2) in x.text and x.lds))})')
    fmt_body()


def fmt_addr():
    t = 96
    A(f"""v_lshrrev_b32 v{t}, 2, v{vL}
    v_lshlrev_b32 v{t}, 6, v{t}
    v_and_b32 v99, 3, v{vL}
    v_lshl_add_u32 v{t}, v99, 3, v{t}
    v_add_u32 v242, s{sWB}, v{t}
    v_lshl_add_u32 v99, v{vQ}, 8, v242""")


def fmt_body():
    for i in range(2):
        A(f'ds_read_b64_tr_b16 {ar(4 * i, 2)}, v99 offset:{BIG + B_W1 + 32 * i}')
        A(f'ds_read_b64_tr_b16 {ar(2 + 4 * i, 2)}, v99 offset:{BIG + B_W1 + 32 * i + 256}')
    for i in range(2):
        A(f'ds_read_b64_tr_b16 {ar(8 + 4 * i, 2)}, v242 offset:{BIG + B_W2 + 32 * i}')
        A(f'ds_read_b64_tr_b16 {ar(10 + 4 * i, 2)}, v242 offset:{BIG + B_W2 + 32 * i + 1024}')
    for i in range(4):
        A(f'buffer_store_dwordx4 {ar(4 * i, 4)}, v{vLW}, {srd(S_WS)}, s{sW1ST if i < 2 else sW2ST} offen offset:{1024 * (i & 1)} sc1')


def w_prep():
    A(f"""s_mul_i32 s{sW2O}, s{sW}, {12 * 40960}
    s_and_b32 s{sT0}, s{sJ}, {3 if OPT['emu'] & 1 else 7}
    s_mul_i32 s{sT0}, s{sT0}, 5120
    s_add_u32 s{sW2O}, s{sW2O}, s{sT0}
    s_add_u32 s{sW2ST}, s{sW2O}, {WS_W2P}
    s_mul_i32 s{sW1ST}, s{sJ}, 40960
    s_mul_i32 s{sT0}, s{sW}, 10240
    s_add_u32 s{sW1ST}, s{sW1ST}, s{sT0}
    s_add_u32 s{sW1ST}, s{sW1ST}, {WS_W1P}""")


def w1_prep():
    t = TMP
    A(f"""v_lshrrev_b32 v{t}, 3, v{vL}
    v_and_b32 v{t + 1}, 2, v{t}
    v_and_b32 v{t + 2}, 7, v{vL}
    v_xor_b32 v{t + 1}, v{t + 1}, v{t + 2}
    v_mul_u32_u24 v{t}, 3072, v{t}
    v_lshl_add_u32 v{vW1}, v{t + 1}, 4, v{t}
    v_xor_b32 v{vW1 + 1}, 64, v{vW1}
    v_add_u32 v{vW1 + 1}, {8 * 3072}, v{vW1 + 1}
    s_mul_i32 s{sW1O}, s{sW}, {160 * 3072}
    s_lshl_b32 s{sT1}, s{sCA}, 6
    {f's_and_b32 s{sT1}, s{sT1}, 0x5ff' if OPT['emu'] & 2 else ''}
    s_add_u32 s{sW1O}, s{sW1O}, s{sT1}""")


def w1_dma():
    for n in range(20):
        A(f's_add_u32 m0, s{sWB}, {BIG + 1024 * n}')
        if n and n % 2 == 0:
            A(f's_add_u32 s{sW1O}, s{sW1O}, {16 * 3072}')
        A(f'buffer_load_dwordx4 v{vW1 + (n & 1)}, {srd(S_W1)}, s{sW1O} offen lds')


def wb_dma():
    for n in range(10):
        A(f's_add_u32 m0, s{sWB}, {BIG + 20480 + 1024 * n}')
        A(f's_add_u32 s{sW1E}, s{sW1ST}, {1024 * n}')
        A(f'buffer_load_dwordx4 v{vLW}, {srd(S_WS)}, s{sW1E} offen sc1 lds')


KA = [k for u in range(2) for k in range(12) if k % 3 == u] if OPT['t3'] else [k for k in range(12) if k % 3 < 2]
KB = [k for k in range(12) if k % 3 == 2]


def w2_load():
    for kl in KA + KB:
        for nt in range(5):
            if nt in (0, 4):
                A(f's_add_u32 s{sW2O}, s{sW2ST}, {40960 * kl + 1024 * nt}')
            A(f'buffer_load_dwordx4 {ar((kl * 5 + nt) * 4, 4)}, v{vLW}, {srd(S_WS)}, s{sW2O} offen offset:{1024 * (nt & 3)} sc1')


F_RAW = 200
F_W = 216
vFA = 196


def filt_prep():
    t = TMP
    A(f'''s_mul_i32 s{sT0}, s{sG}, 20
    s_sub_u32 s{sT1}, 623, s{sT0}
    s_mul_i32 s{sT3}, s{sW}, 5
    s_sub_u32 s{sT4}, 15, s{sT3}
    s_cmp_lt_u32 s{sG}, 16
    s_cselect_b32 s{sT0}, s{sT0}, s{sT1}
    s_cselect_b32 s{sT2}, 1, -1
    s_cselect_b32 s{sT3}, s{sT3}, s{sT4}
    s_add_u32 s{sT4}, s{sT0}, s{sK1}
    s_and_b32 s{sT4}, s{sT4}, 1
    s_add_u32 s{sFSH}, s{sT3}, s{sT4}
    s_sub_u32 s{sT0}, s{sT0}, s{sT4}
    s_lshl_b32 s{sT5}, s{sW}, 9
    s_add_u32 s{sT5}, s{sT5}, s{sK1}
    s_movk_i32 s{sT6}, 321''')
    for i in range(3):
        A(f'''v_add_u32 v{t}, {64 * i}, v{vL}
        v_mul_u32_u24 v{t + 1}, 171, v{t}
        v_lshrrev_b32 v{t + 1}, 9, v{t + 1}
        v_mad_i32_i24 v{t + 2}, v{t + 1}, -3, v{t}
        v_lshl_add_u32 v{t + 1}, v{t + 1}, 3, s{sT5}
        v_mul_i32_i24 v{t + 1}, s{sT2}, v{t + 1}
        v_and_b32 v{t + 1}, 2047, v{t + 1}
        v_lshl_add_u32 v{t + 2}, v{t + 2}, 3, s{sT0}
        v_mad_u32_u24 v{t + 1}, v{t + 1}, s{sT6}, v{t + 2}
        v_lshlrev_b32 v{vFA + i}, 1, v{t + 1}''')


def filt_dma():
    for p, s_ in enumerate((S_WR, S_WI)):
        for i in range(3):
            A(f's_add_u32 m0, s{sWB}, {BIG + B_F + 3072 * p + 1024 * i}')
            A(f'buffer_load_dwordx4 v{vFA + i}, {srd(s_)}, 0 offen lds')


def filt_finish():
    t = TMP + 4
    sc = 1.0 / (2048.0 * 640.0)
    A(f'''s_lshr_b32 s{sT0}, s{sFSH}, 1
    s_lshl_b32 s{sT0}, s{sT0}, 2
    s_add_u32 s{sT0}, s{sT0}, {BIG + B_F}
    s_and_b32 s{sFSH}, s{sFSH}, 1
    s_lshl_b32 s{sFSH}, s{sFSH}, 4
    v_mul_u32_u24 v{t}, 30720, v{vQ}
    v_mul_u32_u24 v{t + 1}, 48, v{vL15}
    v_add3_u32 v{vFA}, v{t}, v{t + 1}, s{sT0}
    v_add_u32 v{vFA + 1}, 1536, v{vFA}
    v_add_u32 v{vFA + 2}, 3072, v{vFA}
    v_add_u32 v{vFA + 3}, {3072 + 1536}, v{vFA}''')
    for j in range(4):
        for p in range(2):
            o = 192 * (j & 1)
            A(f'ds_read2_b32 {vr(F_RAW + 4 * j + 2 * p, 2)}, v{vFA + 2 * p + (j >> 1)} offset0:{o} offset1:{o + 1}')
    A(f'''s_cmp_lt_u32 s{sG}, 16
    s_cselect_b64 vcc, -1, 0
    s_cselect_b32 s{sT3}, 0, 0x80000000
    s_mov_b32 s{sT0}, {f2u(sc)}
    s_mov_b32 s{sT1}, {f2u(2 * sc)}
    s_xor_b32 s{sT2}, s{sT0}, s{sT3}
    s_xor_b32 s{sT3}, s{sT1}, s{sT3}''')
    for j in range(4):
        for p in range(2):
            r = F_RAW + 4 * j + 2 * p
            A(f'''v_lshrrev_b64 {vr(r, 2)}, s{sFSH}, {vr(r, 2)}
            v_lshlrev_b32 v{t}, 16, v{r}
            v_lshlrev_b32 v{t + 1}, 16, v{r + 1}
            v_and_b32 v{t + 2}, 0xffff0000, v{r}
            v_cndmask_b32 v{t + 3}, v{t + 1}, v{t}, vcc
            v_cndmask_b32 v{t + 4}, v{t}, v{t + 1}, vcc
            v_mul_f32 v{F_W + 8 + 4 * p + j}, s{sT1 + 2 * p}, v{t + 2}
            v_mul_f32 v{F_W + 4 * p + j}, s{sT0 + 2 * p}, v{t + 3}
            v_mul_f32 v{F_W + 16 + 4 * p + j}, s{sT1 + 2 * p}, v{t + 4}''')


X_RAW = 60
X_N = 72
K1_M1 = 100
K1_M2 = 124
MODR = 24
K1A = 200
aMX, aMWX, aMW, aADD, aMR, aEW, aER, aST = K1A, K1A + 1, K1A + 2, K1A + 4, K1A + 5, K1A + 8, K1A + 11, K1A + 14


def x1_issue():
    A(f'''s_lshl_b32 s{sT0}, s{sW}, 9
    s_add_u32 s{sT0}, s{sT0}, s{sME}
    s_mul_i32 s{sT0}, s{sT0}, 1280
    s_add_u32 s{sT1}, s{sT0}, {256 * 1280}
    v_lshlrev_b32 v{TMP + 7}, 2, v{vH}
    v_lshl_add_u32 v{TMP + 7}, v{vL31}, 3, v{TMP + 7}
    buffer_load_dwordx4 {vr(X_RAW, 4)}, v{vL16}, {srd(S_X)}, s{sT0} offen
    buffer_load_dwordx4 {vr(X_RAW + 4, 4)}, v{vL16}, {srd(S_X)}, s{sT1} offen
    buffer_load_dword v{X_RAW + 8}, v{TMP + 7}, {srd(S_X)}, s{sT0} offen offset:1024
    buffer_load_dword v{X_RAW + 9}, v{TMP + 7}, {srd(S_X)}, s{sT1} offen offset:1024''')


def k1_const_a():
    t = TMP
    A(f'''v_lshrrev_b32 v{t}, 3, v{vL31}
    v_cvt_f32_u32 v{t}, v{t}
    v_mul_f32 v{t}, {f2u(0.4)}, v{t}
    v_and_b32 v{t + 1}, 7, v{vL}
    v_cvt_f32_u32 v{t + 1}, v{t + 1}
    v_mul_f32 v{t + 1}, {f2u(0.125)}, v{t + 1}
    v_cvt_f32_u32 v{t + 2}, v{vH}
    v_mul_f32 v{t + 2}, v{t + 2}, v{t}
    v_and_b32 v{t + 10}, 1, v{vL}
    v_mul_u32_u24 v{t + 10}, 0x8000, v{t + 10}
    v_lshl_or_b32 v{t + 10}, v{t + 10}, 16, v{t + 10}''')
    for tau in range(3):
        fmamk(t + 3, t, 2 * tau, t + 2)
        for p in range(2):
            fmamk(t + 4, t + 1, 2 * p, t + 3)
            fmamk(t + 5, t + 1, 2 * p + 1, t + 3)
            sincos(t + 4, t + 6, t + 8)
            sincos(t + 5, t + 7, t + 9)
            A(f'v_cvt_pk_bf16_f32 v{K1_M1 + 4 * tau + p}, v{t + 6}, v{t + 7}')
            A(f'v_cvt_pk_bf16_f32 v{K1_M1 + 12 + 4 * tau + p}, -v{t + 8}, -v{t + 9}')
    A('s_mov_b32 exec_lo, 0')
    for p in range(2):
        A(f'v_mov_b32 v{K1_M1 + 8 + p}, 0')
        A(f'v_mov_b32 v{K1_M1 + 20 + p}, 0')
    A('s_mov_b32 exec_lo, -1')
    for k in range(6):
        for p in range(2):
            A(f'v_xor_b32 v{K1_M1 + 4 * k + 2 + p}, v{t + 10}, v{K1_M1 + 4 * k + p}')


def k1_const_b():
    t = 216
    A(f'''v_cvt_f32_u32 v{t}, v{vL31}
    v_lshlrev_b32 v{t + 1}, 4, v{vH}
    v_add_u32 v{t + 1}, s{sW}, v{t + 1}
    v_cvt_f32_u32 v{t + 1}, v{t + 1}
    v_mul_f32 v{t}, {f2u(1.0 / 128)}, v{t}
    v_mul_f32 v{t + 1}, v{t + 1}, v{t}
    v_and_b32 v{t + 10}, 1, v{vL}
    v_mul_u32_u24 v{t + 10}, 0x8000, v{t + 10}
    v_lshl_or_b32 v{t + 10}, v{t + 10}, 16, v{t + 10}''')
    for u in range(2):
        for jp in (0, 2):
            fmamk(t + 2, t, 4 * (8 * u + jp), t + 1)
            fmamk(t + 5, t, 4 * (8 * u + jp + 1), t + 1)
            sincos(t + 2, t + 3, t + 4)
            sincos(t + 5, t + 6, t + 7)
            for jj, e in ((jp, 3), (jp + 1, 6)):
                A(f'v_cvt_pk_bf16_f32 v{K1_M2 + 4 * u + jj}, v{t + e}, v{t + e + 1}')
                A(f'v_cvt_pk_bf16_f32 v{K1_M2 + 16 + 4 * u + jj}, -v{t + e + 1}, v{t + e}')
    for p in range(2):
        for k in range(8):
            A(f'v_xor_b32 v{K1_M2 + 16 * p + 8 + k}, v{t + 10}, v{K1_M2 + 16 * p + k}')


def ln1():
    t = TMP
    AD = 92
    A(f'''v_mul_u32_u24 v{t}, 3, v{vL}
    v_lshl_add_u32 v{t + 1}, v{vL15}, 4, s{sWB}''')
    for k in range(5):
        A(f'v_add_u32 v{t + 2}, {k}, v{t}')
        mod5(t + 2, t + 2, t + 3)
        A(f'v_lshl_add_u32 v{AD + k}, v{t + 2}, 10, v{t + 1}')
    A(f'''v_lshl_add_u32 v{t + 1}, v{vL31}, 3, s{sWB}
    v_lshl_add_u32 v{t + 1}, v{vH}, 9, v{t + 1}
    v_lshl_add_u32 v{t}, v{vL31}, 1, v{vH}''')
    for e in range(2):
        A(f'v_lshl_add_u32 v{t + 2}, v{t}, 1, {2 + e}')
        mod5(t + 2, t + 2, t + 3)
        A(f'v_lshl_add_u32 v{AD + 5 + e}, v{t + 2}, 10, v{t + 1}')
    for r in range(2):
        for k in range(4):
            unpack(X_N + 4 * k + r, X_N + 4 * k + 2 + r, X_RAW + 4 * r + k)
        unpack(X_N + 16 + r, X_N + 18 + r, X_RAW + 8 + r)
    pk('add', t, X_N, X_N + 2)
    pk('mul', t + 2, X_N, X_N)
    for e in range(1, 10):
        if e > 1:
            pk('add', t, t, X_N + 2 * e)
        pk('fma', t + 2, X_N + 2 * e, X_N + 2 * e, t + 2)
    A(f'''v_permlane32_swap_b32 v{t}, v{t + 1}
    v_permlane32_swap_b32 v{t + 2}, v{t + 3}
    v_add_f32 v{t}, v{t}, v{t + 1}
    v_add_f32 v{t + 2}, v{t + 2}, v{t + 3}
    v_permlane16_swap_b32 v{t}, v{t + 2}
    v_add_f32 v{t}, v{t}, v{t + 2}''')
    for r in (8, 4, 2, 1):
        A(f'v_add_f32_dpp v{t}, v{t}, v{t} row_ror:{r} row_mask:0xf bank_mask:0xf')
    A(f'v_mul_f32 v{t}, {f2u(1.0 / 640)}, v{t}')
    for k in range(4):
        A(f'v_readlane_b32 s{sT0 + k}, v{t}, {16 * k}')
    for r in range(2):
        A(f'v_mov_b32 v{t + 2 + r}, s{sT0 + 2 * r}')
    for r in range(2):
        A(f'v_fma_f32 v{t + r}, -v{t + 2 + r}, v{t + 2 + r}, s{sT1 + 2 * r}')
    for r in range(2):
        A(f'v_max_f32 v{t + r}, 0, v{t + r}')
    for r in range(2):
        A(f'v_add_f32 v{t + r}, {f2u(1e-5)}, v{t + r}')
    for r in range(2):
        A(f'v_rsq_f32 v{t + r}, v{t + r}')
    A(f'''s_lshl_b32 s{sT0}, s{sW}, 8
    s_add_u32 s{sT0}, s{sT0}, {BIG + B_N}''')
    pk('mul', t + 2, t + 2, t)
    for e in range(10):
        pk('fma', X_N + 2 * e, X_N + 2 * e, t, t + 2, mods='neg_lo:[0,0,1] neg_hi:[0,0,1]')
        if e < 8:
            A(f'ds_write_b64 v{AD + e % 5}, {vr(X_N + 2 * e, 2)} offset:{BIG + B_N + (e & 3) * 256 + (e >> 2) * 8}')
        else:
            A(f'ds_write_b64 v{AD + 5 + e - 8}, {vr(X_N + 2 * e, 2)} offset:{BIG + B_N + (e - 8) * 256}')
    A(f'''v_lshl_add_u32 v{t + 1}, v{vL31}, 3, s{sT0}
    v_lshl_add_u32 v{t}, v{vH}, 10, v{t + 1}
    s_waitcnt lgkmcnt(0)
    s_barrier''')
    for tau in range(3):
        ad = t if tau < 2 else t + 1
        for p in (0, 2):
            A(f'ds_read2st64_b64 {vr(X_N + 8 * tau + 2 * p, 4)}, v{ad} offset0:{4 * tau + 60 * p} offset1:{4 * tau + 60 * p + 60}')


def x_keep():
    for k in range(4):
        A(f'v_permlane32_swap_b32 v{X_RAW + k}, v{X_RAW + 4 + k}')
    A(f'v_permlane32_swap_b32 v{X_RAW + 8}, v{X_RAW + 9}')
    for k in range(10):
        A(f'v_accvgpr_write_b32 a{240 + k}, v{X_RAW + k}')


def k1_addr():
    t = TMP + 4
    A(f'''s_lshl_b32 s{sT0}, s{sW}, 8
    s_add_u32 s{sT0}, s{sT0}, 4096
    s_mov_b32 s{sT1}, {L_M1}
    v_lshl_add_u32 v{t}, v{vL15}, 4, s{sT0}
    v_mul_u32_u24 v{t + 1}, {MP}, v{vQ}
    v_add_u32 v{aMX}, v{t}, v{t + 1}
    v_lshrrev_b32 v{t}, 2, v{t}
    v_and_b32 v{t + 1}, 1, v{vQ}
    v_lshl_add_u32 v{t + 1}, v{t + 1}, 1, v{vH}
    v_mul_u32_u24 v{t + 1}, 1280, v{t + 1}
    v_add3_u32 v{aMWX}, v{t}, v{t + 1}, s{sT1}
    v_lshl_add_u32 v{aMW}, v0, 2, s{sT1}
    v_cmp_lt_u32 vcc, 159, v0
    v_cndmask_b32 v{aADD}, 0, 1.0, vcc
    v_lshl_add_u32 v{t}, v{vL31}, 2, s{sW}
    v_mul_u32_u24 v{t + 1}, 3, v{t}
    s_mul_i32 s{sT0}, s{sW}, 1280
    s_add_u32 s{sT0}, s{sT0}, s{sT1}
    v_lshl_add_u32 v{t}, v{vL31}, 2, s{sT0}
    v_lshl_add_u32 v{t + 2}, v{vH}, 1, v{t + 1}''')
    for tau in range(3):
        A(f'v_add_u32 v{t + 3}, {4 * tau}, v{t + 2 if tau < 2 else t + 1}')
        mod5(t + 3, t + 3, t + 4)
        A(f'v_lshl_add_u32 v{aMR + tau}, v{t + 3}, 7, v{t}')
    for p in range(4):
        A(f's_mov_b32 s{sLD + p}, {WS_MOD + MP * p}')


aSX, sSK, sCH = 232, 81, 97


def k1_addr2():
    t = 228
    A(f'''s_mul_i32 s{sT0}, s{sW}, 6144
    s_add_u32 s{sT0}, s{sT0}, {L_X1E}
    v_lshl_add_u32 v{aEW}, v{vL31}, 3, s{sT0}
    v_lshl_add_u32 v{aEW}, v{vH}, 10, v{aEW}
    v_add_u32 v{aEW + 1}, 2048, v{aEW}
    v_add_u32 v{aEW + 2}, 4096, v{aEW}
    v_lshrrev_b32 v{t}, 5, v0
    v_lshlrev_b32 v{t + 1}, 8, v{t}''')
    for c in range(3):
        A(f'''v_add_u32 v{t + 2}, {13 * c}, v{vL31}
        v_and_b32 v{t + 2}, 31, v{t + 2}
        v_lshl_add_u32 v{t + 2}, v{t + 2}, 3, v{t + 1}
        v_add_u32 v{aER + c}, {L_X1E + 2048 * c}, v{t + 2}''')
    A(f'''v_lshlrev_b32 v{t + 1}, 4, v{vL31}
    v_sub_u32 v{t + 2}, 8, v{t}
    v_and_b32 v{t + 2}, 7, v{t + 2}
    v_lshl_add_u32 v{aST + 1}, v{t + 2}, 11, v{t + 1}
    v_lshl_add_u32 v{aST}, v{t}, 11, v{t + 1}
    s_mul_i32 s{sST}, s{sME}, {BS}
    s_add_u32 s{sST}, s{sST}, {WS_T}
    v_cmp_gt_u32 {sr(sM1, 2)}, 19, v{vL31}
    v_cmp_gt_u32 {sr(sM2, 2)}, 6, v{vL31}''')


def mod1_loads():
    s = ''
    for p in range(4):
        s += f'buffer_load_dwordx4 {vr(MODR + 4 * p, 4)}, v{vT16}, {srd(S_WS)}, s{sLD + p} offen sc1\n'
    s += f'buffer_load_dwordx4 {vr(MODR + 16, 4)}, v{aMX}, {srd(S_WS)}, s{sLD} offen sc1\n'
    return s


def bytecheck(base, n, t):
    c = ''
    for g in range(n):
        r = base + 4 * g
        for k in range(4):
            c += f'v_xor_b32 v{r + k}, s{sTB + k}, v{r + k}\n'
        if g == 0:
            c += f'v_or3_b32 v{t}, v{r}, v{r + 1}, v{r + 2}\nv_or_b32 v{t}, v{t}, v{r + 3}\n'
        else:
            c += f'v_or3_b32 v{t}, v{t}, v{r}, v{r + 1}\nv_or3_b32 v{t}, v{t}, v{r + 2}, v{r + 3}\n'
    return c + f'v_and_b32 v{t}, 0xff, v{t}\nv_cmp_ne_u32 vcc, 0, v{t}\n'


def k1_poll():
    poll_check('mod1', mod1_loads(), bytecheck(MODR, 5, TMP))
    stamp('mod1')


def round_add(r, add, t):
    A(f'v_cvt_pk_bf16_f32 v{t}, v{r}, v{r + 1}')
    A(f'v_cvt_pk_bf16_f32 v{t + 1}, v{r + 2}, v{r + 3}')
    unpack(r, r + 1, t)
    unpack(r + 2, r + 3, t + 1)
    if add is None:
        return
    for p in (0, 2):
        pk('add', r + p, r + p, add, mods='op_sel_hi:[1,0]')
    A(f'v_cvt_pk_bf16_f32 v{t}, v{r}, v{r + 1}')
    A(f'v_cvt_pk_bf16_f32 v{t + 1}, v{r + 2}, v{r + 3}')
    unpack(r, r + 1, t)
    unpack(r + 2, r + 3, t + 1)


def sum4(r):
    for p in (0, 2):
        pk('add', r + p, r + p, r + 4 + p)
        pk('add', r + 8 + p, r + 8 + p, r + 12 + p)
    for p in (0, 2):
        pk('add', r + p, r + p, r + 8 + p)


def radix4(z, P, inverse):
    pk('add', P, z, z + 4)
    pk('add', P + 2, z, z + 4, mods=NEG1)
    pk('add', P + 4, z + 2, z + 6)
    pk('add', P + 6, z + 2, z + 6, mods=NEG1)
    pk('add', z, P, P + 4)
    pk('add', z + 4, P, P + 4, mods=NEG1)
    a, b = ('neg_lo', 'neg_hi') if inverse else ('neg_hi', 'neg_lo')
    pk('add', z + 2, P + 2, P + 6, mods=f'op_sel:[0,1] op_sel_hi:[1,0] {a}:[0,1]')
    pk('add', z + 6, P + 2, P + 6, mods=f'op_sel:[0,1] op_sel_hi:[1,0] {b}:[0,1]')


def k1_head():
    t = TMP
    x = MODR + 16
    A(f'''v_permlane32_swap_b32 v{x}, v{x + 1}
    v_permlane32_swap_b32 v{x + 2}, v{x + 3}''')
    sum4(MODR)
    A(f'''v_add_f32 v{x}, v{x}, v{x + 1}
    v_add_f32 v{x + 2}, v{x + 2}, v{x + 3}''')
    round_add(MODR, aADD, t)
    A(f'''v_permlane16_swap_b32 v{x}, v{x + 2}
    ds_write2st64_b32 v{aMW}, v{MODR}, v{MODR + 1} offset0:0 offset1:5
    ds_write2st64_b32 v{aMW}, v{MODR + 2}, v{MODR + 3} offset0:10 offset1:15
    v_add_f32 v{x}, v{x}, v{x + 2}
    v_cvt_pk_bf16_f32 v{x}, v{x}, v{x}
    v_lshlrev_b32 v{x}, 16, v{x}
    v_add_f32 v{x}, 1.0, v{x}
    v_cvt_pk_bf16_f32 v{x}, v{x}, v{x}
    v_lshlrev_b32 v{x}, 16, v{x}
    ds_write_b32 v{aMWX}, v{x}
    .fill {OPT['g1']}''')
    fine(1, '1a_wr')
    A('s_waitcnt lgkmcnt(0)\ns_barrier')
    fine(1, '1b_bar')


def k1_main():
    t = TMP
    OPA = 60
    DRE, DIM = 24, 40
    for tau in range(3):
        A(f'ds_read2_b32 {vr(t + 2 * tau, 2)}, v{aMR + tau} offset0:0 offset1:160')
    A(f'.fill {OPT["g2"]}')
    for tau in range(3):
        for p in range(4):
            n = X_N + 8 * tau + 2 * p
            pk('fma', n, n, t + 2 * tau, t + 2 * tau, mods='op_sel:[0,1,0] op_sel_hi:[1,1,0]')
    O = 76

    def cva(tau):
        for p in range(4):
            n = X_N + 8 * tau + 2 * p
            A(f'v_cvt_pk_bf16_f32 v{OPA + 4 * tau + p}, v{n}, v{n + 1}')
    cva(0)
    A('.fill 8')
    for tau in range(3):
        A(f'v_mfma_f32_32x32x16_bf16 {vr(DRE, 16)}, {vr(OPA + 4 * tau, 4)}, {vr(K1_M1 + 4 * tau, 4)}, {vr(DRE, 16) if tau else 0}')
        if tau < 2:
            cva(tau + 1)
        A(f'.fill {8 if tau < 2 else 24}')
        A(f'v_mfma_f32_32x32x16_bf16 {vr(DIM, 16)}, {vr(OPA + 4 * tau, 4)}, {vr(K1_M1 + 12 + 4 * tau, 4)}, {vr(DIM, 16) if tau else 0}')
        A(f'.fill {24 if tau < 2 else 32}')
    fine(1, '1c_st1')
    for m in range(4):
        A(f'v_mov_b32 v{O + 4 * m + 3}, s{sTAG}')
    OPB = 60
    ERE, EIM = 100, 24

    def cvb(u):
        for jj in range(4):
            A(f'v_cvt_pk_bf16_f32 v{OPB + 4 * u + jj}, v{DRE + 4 * u + jj}, v{DIM + 4 * u + jj}')

    def wr(E, im):
        return [f'ds_write2_b32 v{aEW + (j >> 2)}, v{E + j}, v{E + j + 1} offset0:{64 * (j & 3) + im} offset1:{64 * (j & 3) + 64 + im}' for j in range(0, 12, 2)]
    cvb(0)
    A('.fill 8')
    for u in range(4):
        A(f'v_mfma_f32_32x32x16_bf16 {vr(ERE, 16)}, {vr(OPB + 4 * u, 4)}, {vr(K1_M2 + 4 * u, 4)}, {vr(ERE, 16) if u else 0}')
        if u < 3:
            cvb(u + 1)
        A('.fill 8' if u < 3 else '.fill 24 5')
    w = wr(ERE, 0)
    for u in range(4):
        A(f'v_mfma_f32_32x32x16_bf16 {vr(EIM, 16)}, {vr(OPB + 4 * u, 4)}, {vr(K1_M2 + 16 + 4 * u, 4)}, {vr(EIM, 16) if u else 0}')
        if u == 0:
            A('.fill 24 5')
        else:
            A(w.pop(0))
            A(w.pop(0))
            A('.fill 12' if u < 3 else '.fill 40')
    fine(1, '1d_st2')
    for x in wr(EIM, 1)[:1 if OPT['cutx'] & 8 else 6]:
        A(x)
    A(f'.fill {OPT["g3"]}')
    fine(1, '1e_wr')
    A('s_waitcnt lgkmcnt(0)\ns_barrier')
    fine(1, '1f_bar')
    Z = 24
    for c in (1, 2, 0):
        for b2 in (0, 2, 1, 3):
            A(f'ds_read_b64 {vr(Z + 8 * c + 2 * b2, 2)}, v{aER + c} offset:{6144 * b2}')
    fine(1, '1g_rd')
    P = 48
    for c in (1, 2, 0):
        z = Z + 8 * c
        if not OPT['cutx'] & 8:
            radix4(z, P, False)
        if c == 0:
            fine(1, '1h_rx')
            for m in range(4):
                A(f'v_cvt_pk_bf16_f32 v{O + 4 * m}, v{z + 2 * m}, v{z + 2 * m + 1}')
                A(f'buffer_store_dwordx4 {vr(O + 4 * m, 4)}, v{aST + (m >> 1)}, {srd(S_WS)}, s{sST} offen offset:{512 * m} sc1')
        else:
            for k in range(4):
                A(f'v_cvt_pk_bf16_f32 v{56 + k}, v{z + 2 * k}, v{z + 2 * k + 1}')
            r0 = 1 if c == 1 else 3
            for m in range(4):
                A(f'v_cndmask_b32 v{O + 4 * m + c}, v{56 + (m - r0) % 4}, v{56 + (m - r0 - 1) % 4}, {sr(sM1 if c == 1 else sM2, 2)}')


K2C = 100
C_M1, C_TW1, C_M2, C_M3, C_TW2, C_M4 = [K2C + 8 * i for i in range(6)]
K2_IN = 24
vK2A, aIW, aIR, aOR, aOW, vTG = 148, 149, 150, 151, 152, 154


def k2_const():
    t = TMP
    A(f'''v_cvt_f32_u32 v{t}, v{vL15}
    v_cvt_f32_u32 v{t + 1}, v{vQ}
    v_cvt_f32_u32 v{t + 2}, s{sK1}
    v_mul_f32 v{t + 1}, 4.0, v{t + 1}''')
    fmamk(t + 3, t, 8, t + 2)
    A(f'v_mul_f32 v{t + 3}, {f2u(1.0 / 128)}, v{t + 3}')
    A(f'v_mul_f32 v{t + 4}, {f2u(1.0 / 16)}, v{t}')
    A(f'v_mul_f32 v{t + 5}, {f2u(1.0 / 128)}, v{t}')
    A(f'v_mul_f32 v{t + 5}, v{t + 5}, v{t + 2}')
    for jj in range(4):
        A(f'v_add_f32 v{t + 6}, {f2u(float(jj))}, v{t + 1}')
        A(f'v_mul_f32 v{t + 7}, v{t + 6}, v{t + 3}')
        A(f'v_mul_f32 v{t + 8}, {f2u(1.0 / 16)}, v{t + 7}')
        A(f'v_mul_f32 v{t + 9}, v{t + 6}, v{t + 4}')
        A(f'v_add_f32 v{t + 10}, v{t + 9}, v{t + 5}')
        A(f'v_mul_f32 v{t + 11}, {f2u(1.0 / 16)}, v{t + 10}')
        sincos(t + 7, t + 12, t + 13)
        sincos(t + 8, C_TW1 + jj, C_TW1 + 4 + jj)
        A(f'v_cvt_pk_bf16_f32 v{C_M1 + jj}, v{t + 12}, v{t + 13}')
        A(f'v_cvt_pk_bf16_f32 v{C_M1 + 4 + jj}, -v{t + 13}, v{t + 12}')
        sincos(t + 9, t + 12, t + 13)
        sincos(t + 10, t + 14, t + 15)
        sincos(t + 11, C_TW2 + jj, C_TW2 + 4 + jj)
        A(f'v_cvt_pk_bf16_f32 v{C_M2 + jj}, v{t + 12}, v{t + 13}')
        A(f'v_cvt_pk_bf16_f32 v{C_M2 + 4 + jj}, -v{t + 13}, v{t + 12}')
        A(f'v_cvt_pk_bf16_f32 v{C_M3 + jj}, v{t + 12}, -v{t + 13}')
        A(f'v_cvt_pk_bf16_f32 v{C_M3 + 4 + jj}, v{t + 13}, v{t + 12}')
        A(f'v_cvt_pk_bf16_f32 v{C_M4 + jj}, v{t + 14}, -v{t + 15}')
        A(f'v_cvt_pk_bf16_f32 v{C_M4 + 4 + jj}, v{t + 15}, v{t + 14}')


def k2_loads():
    return ''.join(f'buffer_load_dwordx4 {vr(K2_IN + 4 * j, 4)}, v{vK2A}, {srd(S_WS)}, s{sLD + j} offen sc1\n' for j in range(4))


def k2_addr():
    t = TMP
    A(f'''v_lshrrev_b32 v{t}, 2, v{vL}
    v_mul_u32_u24 v{t}, {BS}, v{t}
    v_and_b32 v{t + 1}, 3, v{vL}
    v_lshl_add_u32 v{vK2A}, v{t + 1}, 4, v{t}
    s_mul_i32 s{sT0}, s{sW}, {64 * BS}
    s_lshl_b32 s{sMODST}, s{sME}, 6
    s_add_u32 s{sT0}, s{sT0}, s{sMODST}
    s_add_u32 s{sLD}, s{sT0}, {WS_T}''')
    for j in range(1, 4):
        A(f's_add_u32 s{sLD + j}, s{sLD}, {16 * j * BS}')
    A(f'''v_mul_u32_u24 v{t}, 3104, v{t + 1}
    v_lshrrev_b32 v{t + 1}, 2, v0
    v_lshl_add_u32 v{t}, v{t + 1}, 4, v{t}
    s_mul_i32 s{sT0}, s{sW}, 3104
    v_add_u32 v{t + 1}, s{sT0}, v{vL16}
    v_add_u32 v{aOR}, {L_K2O}, v{t}
    v_add_u32 v{aOW}, {L_K2O}, v{t + 1}
    v_add_u32 v{aIW}, {L_K2I}, v{t}
    v_add_u32 v{aIR}, {L_K2I}, v{t + 1}
    s_mul_i32 s{sST}, s{sME}, {BS}
    s_lshl_b32 s{sT1}, s{sW}, 12
    s_add_u32 s{sST}, s{sST}, s{sT1}
    s_add_u32 s{sST}, s{sST}, {WS_TP}
    v_mov_b32 v{vTG}, s{sTAG}''')


def cmul(dre, dim, wr, wi, conj, tmp):
    for p in (0, 2):
        pk('mul', tmp + p, dre + p, wr + p)
        pk('mul', tmp + 4 + p, dim + p, wr + p)
    neg = 'neg_lo:[1,0,0] neg_hi:[1,0,0]'
    for p in (0, 2):
        pk('fma', tmp + p, dim + p, wi + p, tmp + p, mods='' if conj else neg)
        pk('fma', tmp + 4 + p, dre + p, wi + p, tmp + 4 + p, mods=neg if conj else '')


def k2_head():
    tg = [K2_IN + 4 * j + 3 for j in range(4)]
    poll_check('t', masked(k2_loads(), tg), tagcheck(tg, TMP))
    stamp('T')
    X = 40
    for c in range(3):
        cb, cs = c & ~1, c & 1
        for p in (0, 2):
            A(f'v_pk_mov_b32 {vr(X + 4 * c + p, 2)}, {vr(K2_IN + 4 * p + cb, 2)}, {vr(K2_IN + 4 * p + 4 + cb, 2)} op_sel:[{cs},{cs}]')
        A(f'ds_write_b128 v{aIW}, {vr(X + 4 * c, 4)} offset:{1024 * c}')
    fine(1, '2a_wr')
    A('s_waitcnt lgkmcnt(0)\ns_barrier')
    fine(1, '2b_bar')


def k2_main():
    X = 40
    OP = 24
    D = 40
    U = 64
    for c in range(3):
        A(f'ds_read_b128 {vr(OP + 4 * c, 4)}, v{aIR} offset:{1024 * c}')

    def mm(c, M, data_is_a):
        for p in range(2):
            a, b = (vr(OP + 4 * c, 4), vr(M + 4 * p, 4)) if data_is_a else (vr(M + 4 * p, 4), vr(OP + 4 * c, 4))
            A(f'v_mfma_f32_16x16x32_bf16 {vr(D + 8 * c + 4 * p, 4)}, {a}, {b}, 0')

    def mid(wr, wi, conj, M, data_is_a):
        for c in range(3):
            cmul(D + 8 * c, D + 8 * c + 4, wr(c), wi(c), conj, U + 8 * c)
        cv = [f'v_cvt_pk_bf16_f32 v{OP + 4 * c + jj}, v{U + 8 * c + jj}, v{U + 8 * c + 4 + jj}' for c in range(3) for jj in range(4)]
        for x in cv[:6]:
            A(x)
        cv = cv[6:]
        for c in range(3):
            for x in A.capture(lambda: mm(c, M, data_is_a)):
                A.items.append(x)
                for y in cv[:2]:
                    A(y)
                cv = cv[2:]
    fine(1, '2c_rd')
    for c in range(3):
        mm(c, C_M1, True)
    if not OPT['cutx'] & 1:
        mid(lambda c: C_TW1, lambda c: C_TW1 + 4, True, C_M2, False)
    mid(lambda c: F_W + 8 * c, lambda c: F_W + 8 * c + 4, False, C_M3, True)
    if not OPT['cutx'] & 1:
        mid(lambda c: C_TW2, lambda c: C_TW2 + 4, False, C_M4, False)
    fine(1, '2d_mm')
    for c in range(3):
        for jj in range(4):
            A(f'v_cvt_pk_bf16_f32 v{OP + 4 * c + jj}, v{D + 8 * c + jj}, v{D + 8 * c + 4 + jj}')
        A(f'ds_write_b128 v{aOW}, {vr(OP + 4 * c, 4)} offset:{1024 * c}')
    fine(1, '2e_wr')
    A('s_waitcnt lgkmcnt(0)\ns_barrier')
    fine(1, '2f_bar')
    for c in range(3):
        A(f'ds_read_b128 {vr(X + 4 * c, 4)}, v{aOR} offset:{1024 * c}')
    fine(1, '2g_rd')
    O = 64
    for j in range(4):
        jb, js = j & ~1, j & 1
        A(f'v_pk_mov_b32 {vr(O + 4 * j, 2)}, {vr(X + jb, 2)}, {vr(X + 4 + jb, 2)} op_sel:[{js},{js}]')
        A(f'v_pk_mov_b32 {vr(O + 4 * j + 2, 2)}, {vr(X + 8 + jb, 2)}, {vr(vTG, 2)} op_sel:[{js},0]')
        A(f'buffer_store_dwordx4 {vr(O + 4 * j, 4)}, v{vLT}, {srd(S_WS)}, s{sST} offen offset:{1024 * j} sc1')


def epoch_store():
    A(f'''s_cmp_eq_u32 s{sME}, 0
    s_cselect_b32 s{sBGO}, {WS_EPOCH}, {OOB}
    v_mov_b32 v{vBG + 3}, s{sTAG}
    buffer_store_dword v{vBG + 3}, off, {srd(S_WS)}, s{sBGO} sc1''')


K3_MA = 100
K3_MB = 132
K3_X = 156
K3_GA, K3_SB, K3_CB = 176, 196, 216
K3_IN = 24
vK3A, vK3B = 236, 237
M2R = 160
X3R = 88
B1R = 192


def side_loads():
    s = ''
    for p in range(4):
        s += f"""s_mov_b32 s{sBG2}, {WS_MOD + MP * p + 320 * 16}
        buffer_load_dwordx4 {vr(M2R + 4 * p, 4)}, v{vT16}, {srd(S_WS)}, s{sBG2} offen sc1
        buffer_load_dwordx4 {vr(M2R + 16 + 4 * p, 4)}, v{vBG + 2}, {srd(S_WS)}, s{sBG2} offen sc1
        """
    return s


def side_prep():
    t = TMP
    A(f"""s_and_b32 s{sT0}, s{sJ}, 7
    s_mul_i32 s{sT0}, s{sT0}, 320
    v_mov_b32 v{t}, s{sT0}
    v_cmp_lt_u32 vcc, 223, v0
    v_cndmask_b32 v{t}, 0, v{t}, vcc
    v_min_u32 v{t + 1}, {243 * 16}, v{vT16}
    v_add_u32 v{t}, v{t}, v{t + 1}
    v_add_u32 v{vBG + 2}, 4096, v{t}
    s_lshr_b32 s{sT0}, s{sT0}, 1
    v_lshl_add_u32 v{vBG + 1}, v{vL31}, 3, s{sT0}
    s_lshl_b32 s{sT0}, s{sCA}, 6
    s_lshl_b32 s{sT1}, s{sCB}, 6
    v_mov_b32 v{t}, s{sT0}
    v_mov_b32 v{t + 1}, s{sT1}
    v_cmp_gt_u32 vcc, 16, v{vL31}
    v_cndmask_b32 v{t}, v{t + 1}, v{t}, vcc
    v_lshl_add_u32 v{vBG}, v{vL15}, 3, v{t}""")


def b2_issue():
    A(f"""buffer_load_dwordx2 v[192:193], v{vBG + 1}, {srd(S_B2)}, 0 offen
    buffer_load_dwordx2 v[194:195], v{vBG}, {srd(S_B1)}, 0 offen""")


def side_finish():
    t = TMP
    poll_check('mod2', side_loads(), bytecheck(M2R, 8, t))
    A(f"""v_subrev_u32 v{t + 2}, 64, v0
    v_cmp_gt_u32 vcc, 160, v{t + 2}
    v_cndmask_b32 v{t + 2}, 0, 1.0, vcc
    v_add_u32 v{t + 5}, {L_M2}, v{vT16}""")
    for g in range(2):
        r = M2R + 16 * g
        sum4(r)
        round_add(r, t + 2 if g else None, t)
        if g:
            unpack(t + 6, t + 7, 192)
            unpack(t + 8, t + 9, 193)
            A(f'''v_mov_b32 v{t + 3}, {f2u(1.0 / GA)}
            v_cmp_lt_u32 vcc, 223, v0
            v_cndmask_b32 v{t + 2}, 1.0, v{t + 3}, vcc''')
            for p in (0, 2):
                pk('mul', t + 6 + p, t + 6 + p, r + p)
                pk('mul', r + p, r + p, t + 2, mods='op_sel_hi:[1,0]')
            A(f'''v_max_u32 v{t + 3}, {223 * 16}, v{vT16}
            v_add_u32 v{t + 3}, {L_M2 + 8192 - 223 * 16}, v{t + 3}
            ds_write_b128 v{t + 3}, {vr(t + 6, 4)}''')
        A(f'ds_write_b128 v{t + 5}, {vr(r, 4)} offset:{4096 * g}')
    unpack(t + 6, t + 7, 194)
    unpack(t + 8, t + 9, 195)
    A(f's_mov_b32 s{sT2}, {f2u(GA)}\ns_mov_b32 s{sT0}, {L_B1}')
    for p in (0, 2):
        pk('mul', t + 6 + p, t + 6 + p, sr(sT2, 2), mods='op_sel_hi:[1,0]')
    A(f'''v_lshl_add_u32 v{t + 3}, v{vL31}, 4, s{sT0}
    ds_write_b128 v{t + 3}, {vr(t + 6, 4)}''')
    for k in range(10):
        A(f'v_accvgpr_read_b32 v{X3R + k}, a{240 + k}')
    for k in range(10):
        unpack(K3_X + 2 * k, K3_X + 2 * k + 1, X3R + k)


def k3_const():
    t = TMP
    A(f'''v_lshlrev_b32 v{t}, 2, v{vL31}
    v_add_u32 v{t}, s{sW}, v{t}
    v_cvt_f32_u32 v{t}, v{t}
    v_mul_f32 v{t}, {f2u(1.0 / 128)}, v{t}
    v_cvt_f32_u32 v{t + 8}, v{vH}
    v_mul_f32 v{t + 8}, 4.0, v{t + 8}
    v_mul_f32 v{t + 1}, v{t + 8}, v{t}''')
    for u in range(4):
        for jp in (0, 2):
            fmamk(t + 2, t, 8 * u + jp, t + 1)
            fmamk(t + 5, t, 8 * u + jp + 1, t + 1)
            sincos(t + 2, t + 3, t + 4)
            sincos(t + 5, t + 6, t + 7)
            for jj, e in ((jp, 3), (jp + 1, 6)):
                A(f'v_cvt_pk_bf16_f32 v{K3_MA + 4 * u + jj}, v{t + e}, -v{t + e + 1}')
                A(f'v_cvt_pk_bf16_f32 v{K3_MA + 16 + 4 * u + jj}, v{t + e + 1}, v{t + e}')
    A(f'''v_lshrrev_b32 v{t}, 3, v{vL31}
    v_cvt_f32_u32 v{t}, v{t}
    v_mul_f32 v{t}, {f2u(0.4)}, v{t}
    v_and_b32 v{t + 1}, 7, v{vL}
    v_cvt_f32_u32 v{t + 1}, v{t + 1}
    v_mul_f32 v{t + 1}, {f2u(0.125)}, v{t + 1}
    v_mul_f32 v{t + 9}, v{t + 8}, v{t + 1}''')
    for jj in range(4):
        fmamk(t + 10, t + 1, jj, t + 9)
        for tau in range(3):
            fmamk(t + 2, t, tau, t + 10)
            sincos(t + 2, t + 3, t + 4)
            if tau:
                A(f'v_add_f32 v{t + 5}, {f2u(1.6 * tau)}, v{t + 10}')
                sincos(t + 5, t + 6, t + 7)
            A(f'v_cvt_pk_bf16_f32 v{K3_MB + 4 * tau + jj}, v{t + 3}, -v{t + 4}')
            if tau:
                A(f'v_cvt_pk_bf16_f32 v{K3_MB + 12 + 4 * tau + jj}, v{t + 6}, -v{t + 7}')
            else:
                A(f'v_mov_b32 v{K3_MB + 12 + jj}, v{K3_MB + jj}')


def k3_loads():
    return ''.join(f'buffer_load_dwordx4 {vr(K3_IN + 4 * m, 4)}, v{vK3A + (m >> 1)}, {srd(S_WS)}, s{sLD + m} offen sc1\n' for m in range(4))


def k3_ldaddr():
    t = TMP
    A(f'''v_lshrrev_b32 v{t}, 5, v0
    v_sub_u32 v{t + 1}, 8, v{t}
    v_and_b32 v{t + 1}, 7, v{t + 1}
    v_lshrrev_b32 v{t + 2}, 2, v{vL31}
    v_lshl_add_u32 v{t}, v{t}, 5, v{t + 2}
    v_lshl_add_u32 v{t + 1}, v{t + 1}, 5, v{t + 2}
    v_mul_u32_u24 v{t}, {BS}, v{t}
    v_mul_u32_u24 v{t + 1}, {BS}, v{t + 1}
    v_and_b32 v{t + 2}, 3, v{vL}
    v_lshl_add_u32 v{vK3A}, v{t + 2}, 4, v{t}
    v_lshl_add_u32 v{vK3B}, v{t + 2}, 4, v{t + 1}
    s_add_u32 s{sLD}, s{sMODST}, {WS_TP}''')
    for m in range(1, 4):
        A(f's_add_u32 s{sLD + m}, s{sLD}, {8 * m * BS}')


aWA, aRA, aYA = 8, 11, 12
aYR, aSEL, aX1 = 84, 86, 87
aRW, aRR, aY2, aMO = 89, 91, 92, 93
ST3 = 18
vEPS = 22
GK = 2.0 * 0.7978845608028654 * 1.4426950408889634
GA = (GK * 0.044715) ** (1.0 / 3.0)


def k3_addr():
    t = 95
    A(f'v_lshrrev_b32 v{t}, 5, v0')
    A(f'v_mul_u32_u24 v{t}, 144, v{t}')
    for c in range(3):
        A(f'''v_add_u32 v{t + 1}, {13 * c}, v{vL31}
        v_and_b32 v{t + 1}, 31, v{t + 1}
        v_lshl_add_u32 v{t + 1}, v{t + 1}, 2, v{t}
        v_add_u32 v{aWA + c}, {L_K3I + 8 * 144 * c}, v{t + 1}''')
    A(f'''s_mul_i32 s{sT0}, s{sW}, 3584
    s_add_u32 s{sT0}, s{sT0}, {L_K3I}
    v_mul_u32_u24 v{t}, 144, v{vL31}
    v_lshl_add_u32 v{t}, v{vH}, 4, v{t}
    v_add_u32 v{aRA}, s{sT0}, v{t}''')
    A(f'''v_lshl_add_u32 v{t}, v{vL31}, 2, s{sW}
    v_mul_u32_u24 v{t + 1}, 3, v{t}
    v_mul_u32_u24 v{t + 2}, 5120, v{vH}
    v_lshl_add_u32 v{t}, v{t}, 2, v{t + 2}
    v_add_u32 v{t}, {L_Y}, v{t}''')
    if OPT['ys']:
        A(f'v_and_b32 v{t + 4}, 16, v{vL}\nv_xor_b32 v{t}, v{t}, v{t + 4}')
    for a in range(5):
        A(f'v_add_u32 v{t + 2}, {2 * a}, v{t + 1}')
        mod5(t + 2, t + 2, t + 3)
        A(f'v_lshl_add_u32 v{aYA + a}, v{t + 2}, 9, v{t}')
    A(f'''s_mul_i32 s{sT0}, s{sW}, 2560
    s_add_u32 s{sT1}, s{sT0}, {L_Y}
    v_lshl_add_u32 v{aYR}, v{vL31}, 5, s{sT1}
    v_lshl_add_u32 v{aYR + 1}, v{vL31}, 4, s{sT1}
    {f'v_xor_b32 v{aYR + 1}, v{aYR + 1}, v{t + 4}' if OPT['ys'] else ''}
    v_and_b32 v{t + 4}, {8 if OPT['ys'] else 0}, v{vL}
    v_lshl_add_u32 v{aYR}, v{t + 4}, 1, v{aYR}
    v_xor_b32 v{aY2}, 16, v{aYR}
    s_mov_b32 s{sT1}, {L_M2}
    v_lshl_add_u32 v{aMO}, v{vL31}, 5, s{sT1}
    v_lshl_add_u32 v{aMO + 1}, v{vL31}, 4, s{sT1}
    v_mov_b32 v{t}, 0x01000c0c
    v_mov_b32 v{t + 1}, 0x03020c0c
    v_cmp_eq_u32 vcc, 1, v{vH}
    v_cndmask_b32 v{aSEL}, v{t}, v{t + 1}, vcc
    s_lshl_b32 s{sST + 3}, s{sW}, 9
    s_add_u32 s{sST + 3}, s{sST + 3}, s{sME}
    s_mul_i32 s{sST + 3}, s{sST + 3}, 1280
    s_mul_i32 s{sST}, s{sJ}, 10
    s_add_u32 s{sST}, s{sST}, s{sW}
    s_mul_i32 s{sST}, s{sST}, {BS}
    s_lshl_b32 s{sT1}, s{sCL}, 10
    s_add_u32 s{sST}, s{sST}, s{sT1}
    s_add_u32 s{sST}, s{sST}, {WS_Y2}
    s_add_u32 s{sST + 1}, s{sST}, {4 * BS}
    s_add_u32 s{sST + 2}, s{sST}, {8 * BS}
    s_cmp_lt_u32 s{sW}, 2
    s_cselect_b32 s{sST + 2}, s{sST + 2}, {OOB}
    v_mul_u32_u24 v{t}, {256 * 1280}, v{vH}
    v_lshl_add_u32 v{aX1}, v{vL31}, 4, v{t}
    v_lshl_add_u32 v{aX1 + 1}, v{vL31}, 3, v{t}''')
    A(f'''s_lshl_b32 s{sT2}, s{sW}, 1
    v_add_u32 v{t}, s{sT2}, v{vH}
    v_xor_b32 v{t + 1}, v{t}, v{vL31}
    v_and_b32 v{t + 1}, 7, v{t + 1}
    v_lshlrev_b32 v{t + 1}, 4, v{t + 1}
    v_lshl_add_u32 v{t + 1}, v{vL31}, 7, v{t + 1}
    v_add_u32 v{aRW}, {L_Y2}, v{t + 1}
    v_lshrrev_b32 v{t + 2}, 1, v{vL31}
    v_xor_b32 v{t + 3}, v{t}, v{t + 2}
    v_and_b32 v{t + 3}, 7, v{t + 3}
    v_lshlrev_b32 v{t + 3}, 4, v{t + 3}
    v_lshl_add_u32 v{t + 3}, v{t + 2}, 7, v{t + 3}
    v_and_b32 v{t + 2}, 1, v{vL}
    v_lshl_add_u32 v{t + 3}, v{t + 2}, 3, v{t + 3}
    v_add_u32 v{aRW + 1}, {L_Y2 + 64 * 128}, v{t + 3}
    v_lshrrev_b32 v{t + 2}, 3, v0
    v_xor_b32 v{t + 4}, v{t + 2}, v0
    v_and_b32 v{t + 4}, 7, v{t + 4}
    v_lshlrev_b32 v{t + 4}, 4, v{t + 4}
    v_lshl_add_u32 v{t + 4}, v{t + 2}, 7, v{t + 4}
    v_add_u32 v{aRR}, {L_Y2}, v{t + 4}
    v_mov_b32 v{vEPS}, {f2u(1e-5 / GA ** 2)}''')


def row_stats(b, t, scale=None):
    pk('add', t, b, b + 2)
    pk('mul', t + 2, b, b)
    for k in range(1, 10):
        if k > 1:
            pk('add', t, t, b + 2 * k)
        pk('fma', t + 2, b + 2 * k, b + 2 * k, t + 2)
    A(f'''v_add_f32 v{t}, v{t}, v{t + 1}
    v_add_f32 v{t + 2}, v{t + 2}, v{t + 3}
    v_permlane16_swap_b32 v{t}, v{t + 2}
    v_add_f32 v{t}, v{t}, v{t + 2}''')
    for r in (8, 4, 2, 1):
        A(f'v_add_f32_dpp v{t}, v{t}, v{t} row_ror:{r} row_mask:0xf bank_mask:0xf')
    A(f'''v_mul_f32 v{t + 1}, {f2u(1.0 / 640)}, v{t}
    v_mul_f32 v{t + 2}, {f2u(1.0 / 640)}, v{t}
    v_permlane16_swap_b32 v{t + 1}, v{t + 2}
    v_fma_f32 v{t}, -v{t + 1}, v{t + 1}, v{t + 2}
    v_max_f32 v{t}, 0, v{t}''')
    if scale is None:
        A(f'v_add_f32 v{t}, {f2u(1e-5)}, v{t}')
    else:
        A(f'v_fmamk_f32 v{t}, v{t}, {f2u(1.0 / scale ** 2)}, v{vEPS}')
    A(f'''v_rsq_f32 v{t}, v{t}
    v_mul_f32 v{t + 1}, v{t + 1}, v{t}''')


X1P = 72


def x1_store():
    A(f'''buffer_store_dwordx4 {vr(X1P, 4)}, v{aX1}, {srd(S_OUT)}, s{sST + 3} offen sc1
    buffer_store_dwordx4 {vr(X1P + 4, 4)}, v{aX1}, {srd(S_OUT)}, s{sST + 3} offen offset:512 sc1
    buffer_store_dwordx2 {vr(X1P + 8, 2)}, v{aX1 + 1}, {srd(S_OUT)}, s{sST + 3} offen offset:1024 sc1''')


def k3_poll():
    tg = [K3_IN + 4 * m + 3 for m in range(4)]
    poll_check('tp', masked(k3_loads(), tg), tagcheck(tg, ST3))
    stamp('Tp')


MOE = OPT['mo'] and OPT['m2'] < 5


def mo_reads():
    mo = []
    for v, dst in enumerate((K3_GA, K3_SB, K3_CB)):
        for k in range(4):
            mo.append(f'ds_read_b128 {vr(dst + 4 * k, 4)}, v{aMO} offset:{2560 * v + 1024 * (k >> 1) + 16 * (k & 1)}')
        mo.append(f'ds_read_b128 {vr(dst + 16, 4)}, v{aMO + 1} offset:{2560 * v + 2048}')
    return mo


def ga_shift():
    if OPT['d2']:
        assert MOE
        A(f'v_sub_u32 v{aSEL}, 1, v{vH}\nv_lshlrev_b32 v{aSEL}, 4, v{aSEL}')
        for k in range(20):
            A(f'v_lshrrev_b32 v{K3_GA + k}, v{aSEL}, v{K3_GA + k}')


def k3_main():
    Z, P, Q = 40, 48, 56
    for c in range(3):
        if c == 0:
            src = [K3_IN + 4 * k for k in range(4)]
        else:
            r0 = 1 if c == 1 else 3
            for k in range(4):
                A(f'v_cndmask_b32 v{Q + k}, v{K3_IN + 4 * ((k + r0) % 4) + c}, v{K3_IN + 4 * ((k + r0 + 1) % 4) + c}, {sr(sM1 if c == 1 else sM2, 2)}')
            src = [Q + k for k in range(4)]
        z = Z + 20 * (c & 1)
        for k in range(4):
            unpack(z + 2 * k, z + 2 * k + 1, src[k])
        radix4(z, P, True)
        for k in (0, 1):
            A(f'v_cvt_pk_bf16_f32 v{z + 2 * k}, v{z + 2 * k}, v{z + 2 * k + 1}')
            A(f'v_cvt_pk_bf16_f32 v{z + 2 * k + 4}, v{z + 2 * k + 4}, v{z + 2 * k + 5}')
            A(f'ds_write2st64_b32 v{aWA + c}, v{z + 2 * k}, v{z + 2 * k + 4} offset0:{14 * k} offset1:{14 * k + 28}')
    fine(3, '3a_wr')
    A('s_waitcnt lgkmcnt(0)\ns_barrier')
    fine(3, '3b_bar')
    OPA = 24
    DRE, DIM = 40, 56
    for u in range(4):
        A(f'ds_read_b128 {vr(OPA + 4 * u, 4)}, v{aRA} offset:{32 * u}')
    mo = mo_reads() if not MOE else [''] * 15
    for u in range(4):
        A(f'v_mfma_f32_32x32x16_bf16 {vr(DRE, 16)}, {vr(OPA + 4 * u, 4)}, {vr(K3_MA + 4 * u, 4)}, {vr(DRE, 16) if u else 0}')
        A(mo.pop(0))
        A(mo.pop(0))
        A(f'v_mfma_f32_32x32x16_bf16 {vr(DIM, 16)}, {vr(OPA + 4 * u, 4)}, {vr(K3_MA + 16 + 4 * u, 4)}, {vr(DIM, 16) if u else 0}')
        if u:
            A(mo.pop(0))
            A(mo.pop(0))
    A(mo.pop(0))
    fine(3, '3c_stA')
    OPB = 72
    E0, E1 = 100, 116
    def cvb(tau):
        for jj in range(4):
            A(f'v_cvt_pk_bf16_f32 v{OPB + 4 * tau + jj}, v{DRE + 4 * tau + jj}, v{DIM + 4 * tau + jj}')
    cvb(0)
    for tau in range(3):
        A(f'v_mfma_f32_32x32x16_bf16 {vr(E0, 16)}, {vr(K3_MB + 4 * tau, 4)}, {vr(OPB + 4 * tau, 4)}, {vr(E0, 16) if tau else 0}')
        if tau < 2:
            cvb(tau + 1)
            A('s_nop 1')
    for tau in range(3):
        A(f'v_mfma_f32_32x32x16_bf16 {vr(E1, 16)}, {vr(K3_MB + 12 + 4 * tau, 4)}, {vr(OPB + 4 * tau, 4)}, {vr(E1, 16) if tau else 0}')
        if tau < 2:
            A('s_nop 4')
    fine(3, '3d_stB')
    for a in range(5):
        e = E0 + 4 * a
        A(f'v_cvt_pk_bf16_f32 v{24 + 2 * a}, v{e}, v{e + 1}')
        A(f'v_cvt_pk_bf16_f32 v{25 + 2 * a}, v{e + 2}, v{e + 3}')
        A(f'ds_write2st64_b32 v{aYA + a}, v{24 + 2 * a}, v{25 + 2 * a} offset0:0 offset1:10')
    fine(3, '3e_wr')
    A('s_waitcnt lgkmcnt(0)\ns_barrier')
    fine(3, '3f_bar')
    Y = 40
    for k in range(4):
        A(f'ds_read_b128 {vr(Y + 4 * k, 4)}, v{aY2 if k & 1 else aYR} offset:{1024 * (k >> 1)}')
    A(f'ds_read_b128 {vr(Y + 16, 4)}, v{aYR + 1} offset:2048')
    fine(3, '3g_rd')
    PK = X1P
    for k in range(20 if OPT['d2'] else 0):
        A(f'v_dot2_f32_bf16 v{Y + k}, v{Y + k}, v{K3_GA + k}, v{K3_X + k}')
    for k in range(0 if OPT['d2'] else 10):
        A(f'v_perm_b32 v{Y + 2 * k}, v{Y + 2 * k}, v{Y + 2 * k}, v{aSEL}')
        A(f'v_perm_b32 v{Y + 2 * k + 1}, v{Y + 2 * k + 1}, v{Y + 2 * k + 1}, v{aSEL}')
        pk('fma', Y + 2 * k, Y + 2 * k, K3_GA + 2 * k, K3_X + 2 * k)
    X1 = A.capture(lambda: [A(f'v_cvt_pk_bf16_f32 v{PK + k}, v{Y + 2 * k}, v{Y + 2 * k + 1}') for k in range(10)])
    st = A.capture(lambda: row_stats(Y, ST3))
    n0 = 21
    A.items.extend(st[:n0])
    for i in st[n0:]:
        if X1:
            A.items.append(X1.pop(0))
        A.items.append(i)
    A.items.extend(X1)
    fine(3, '3h_st1')
    xst = A.groups(x1_store) if not OPT['xl'] else []
    if OPT['cutx'] & 32:
        xst = []
    if not OPT['xs']:
        A.emit(xst)
        xst = []
    x0 = len(A.items)
    fine(3, '3i_x1')
    nm = 'op_sel:[0,0,1] op_sel_hi:[1,0,1] neg_lo:[0,0,1] neg_hi:[0,0,1]'
    if not OPT['cutx'] & 2:
        for k in range(10):
            pk('fma', Y + 2 * k, Y + 2 * k, ST3, ST3, mods=nm)
            pk('fma', Y + 2 * k, Y + 2 * k, K3_CB + 2 * k, K3_SB + 2 * k)
        row_stats(Y, ST3, GA)
    fine(3, '3j_st2')
    PK = 60
    for k in range(10):
        pk('fma', Y + 2 * k, Y + 2 * k, ST3, ST3, mods=nm)
        A(f'v_cvt_pk_bf16_f32 v{PK + k}, v{Y + 2 * k}, v{Y + 2 * k + 1}')
        if k == 3:
            A(f'ds_write_b128 v{aRW}, {vr(PK, 4)}')
        if k == 7:
            A(f'ds_write_b128 v{aRW}, {vr(PK + 4, 4)} offset:4096')
    A(f'ds_write_b64 v{aRW + 1}, {vr(PK + 8, 2)}')
    if xst:
        tail = A.items[x0:]
        del A.items[x0:]
        A.spread(tail, xst, 0, OPT['xs'] / 100)


def k3_tail():
    fine(3, '3k_wr')
    if OPT['sn'] or OPT['wb']:
        A(f's_waitcnt vmcnt({after_last(lambda x: x.lds)})')
    A('s_waitcnt lgkmcnt(0)\ns_barrier')
    fine(3, '3l_bar')
    for i in range(3):
        A(f'ds_read_b128 {vr(24 + 4 * i, 4)}, v{aRR} offset:{4096 * i}')
    for i in range(3):
        A(f'buffer_store_dwordx4 {vr(24 + 4 * i, 4)}, v{vLY}, {srd(S_WS)}, s{sST + i} offen{YSC}')


G1_A = 24
G1_ACC = 184
G1_B = 232
NS, PRE = 4, 3
aB, aPW, aPR, vH4, vG1A, vGC, vT1 = 8, 12, 16, 18, 20, 22, 23
vG1X = 18
B1RAW = 132
sHB = 72
sHC2 = 64
NB = OPT['nb']
PARTS = [[(ks, tl) for ks in range(20) for tl in range(6 if ks % 5 < NB else 4)], [(ks, tl) for ks in range(20) if ks % 5 >= NB for tl in (4, 5)]]
assert sum(SWB[:10]) >= 2 * NB
aBB = 254


def b1_issue():
    A(f"""s_mul_i32 s{sBG2}, s{sJ}, 192
    v_lshlrev_b32 v{vBG}, 3, v{vQ}""")
    for k in range(6):
        A(f'buffer_load_dwordx2 {vr(B1RAW + 2 * k, 2)}, v{vBG}, {srd(S_B1)}, s{sBG2} offen offset:{32 * k}')


def g1_load(i):
    ks, r = divmod(i, 2)
    pre = f's_add_u32 s{sLD}, s{sLD}, {BS}\n' if i and i % 4 == 0 else ''
    return pre + f'buffer_load_dwordx4 {vr(G1_A + 4 * i, 4)}, v{vG1A + r}, {srd(S_WS)}, s{sLD} offen offset:{512 * (ks & 1)} sc1'


def g1_rd(part, n):
    ks, tl = PARTS[part][n]
    s = G1_B + 4 * (n % NS)
    off = BIG + 30720 * ((ks // 5) & 1)
    if tl >= 4:
        return [f'ds_read_b128 {vr(s, 4)}, v{vL16 if ks < 10 else aBB} offset:{off + 20480 + 1024 * (2 * (ks % 5) + tl - 4)}']
    off += 4096 * (ks % 5)
    out = [f'ds_read_b64_tr_b16 {vr(s, 2)}, v{aB + tl} offset:{off}', f'ds_read_b64_tr_b16 {vr(s + 2, 2)}, v{aB + tl} offset:{off + 512}']
    if ks == 9:
        out[1] += f'\nv_add_u32 v{aB + tl}, 61440, v{aB + tl}'
    return out


def g1_bias():
    A(f's_mov_b32 s{sT2}, {L_B1}\nv_lshl_add_u32 v14, v{vQ}, 4, s{sT2}')
    for tl in range(6):
        for r in range(2):
            A(f'ds_read_b128 {vr(G1_ACC + 8 * tl + 4 * r, 4)}, v14 offset:{64 * tl}')


def g1_pre():
    t = 12
    A(f"""v_lshrrev_b32 v{t}, 3, v{vL15}
    v_mul_u32_u24 v{t}, {10 * BS}, v{t}
    v_lshl_add_u32 v{t}, v{vQ}, 7, v{t}
    v_and_b32 v{t + 1}, 7, v{vL}
    v_lshl_add_u32 v{vG1A}, v{t + 1}, 4, v{t}
    v_add_u32 v{vG1A + 1}, {20 * BS}, v{vG1A}
    s_mul_i32 s{sT0}, s{sW}, {40 * BS}
    s_lshl_b32 s{sT1}, s{sCL}, 10
    s_add_u32 s{sT0}, s{sT0}, s{sT1}
    s_add_u32 s{sLD}, s{sT0}, {WS_Y2}""")
    A(f"""v_lshrrev_b32 v{t}, 2, v{vL15}
    v_lshl_add_u32 v{t}, v{vQ}, 3, v{t}
    v_lshlrev_b32 v{t}, 7, v{t}
    v_and_b32 v{t + 1}, 3, v{vL}
    v_lshl_add_u32 v{t}, v{t + 1}, 3, v{t}
    v_bfe_u32 v{t + 1}, v{vL}, 3, 2
    v_lshl_add_u32 v{aB}, v{t + 1}, 5, v{t}
    v_xor_b32 v{aB + 1}, 32, v{aB}
    v_xor_b32 v{aB + 2}, 64, v{aB}
    v_xor_b32 v{aB + 3}, 96, v{aB}
    v_add_u32 v{aBB}, 61440, v{vL16}""")


def g1_part(part, side):
    fr = PARTS[part]
    for n, (ks, tl) in enumerate(fr):
        rd = g1_rd(part, n + PRE) if n + PRE < len(fr) else []
        for r in range(2):
            acc = vr(G1_ACC + 8 * tl + 4 * r, 4)
            A(f'v_mfma_f32_16x16x32_bf16 {acc}, {vr(G1_B + 4 * (n % NS), 4)}, {vr(G1_A + 4 * (2 * ks + r), 4)}, {acc}')
            if r < len(rd) and not OPT['cutx'] & 1024:
                A(rd[r])
        for x in side.get(n, []):
            if callable(x):
                x()
            else:
                A.items.extend(x)


def place(side, groups, lo, hi):
    for k, g in enumerate(groups):
        side.setdefault(lo + (hi - lo) * k // max(len(groups), 1), []).append(g)


def late_addr():
    t = vT1
    if OPT['hr']:
        A(f'''s_and_b32 s{sDW}, s{sJ}, {[0, 1, 1, 3][OPT['hr']]}
        s_lshl_b32 s{sDW}, s{sDW}, {[0, 1, 0, 0][OPT['hr']]}
        s_add_u32 s{sDW}, s{sDW}, s{sW}
        s_and_b32 s{sDW}, s{sDW}, 3''')
    if OPT['h2']:
        hb = WS_T if OPT['h2'] == 2 else WS_T + 512 * BS
        A(f"""s_lshl_b32 s{sT3}, s{sCL}, 10
        s_lshl_b32 s{sT1}, s{sW}, 5
        s_add_u32 s{sT1}, s{sT1}, s{sJ}
        s_mul_i32 s{sT1}, s{sT1}, {BS}
        s_add_u32 s{sST + 2}, s{sT1}, s{sT3}
        s_add_u32 s{sST}, s{sST + 2}, s{sT1}
        s_add_u32 s{sST}, s{sST}, {WS_TP}
        s_add_u32 s{sST + 1}, s{sST}, {32 * BS}
        s_add_u32 s{sST + 2}, s{sST + 2}, {hb}
        s_add_u32 s{sST + 3}, s{sST + 2}, {16 * BS}
        s_lshr_b32 s{sT0}, s{sJ}, 3
        s_lshl_b32 s{sT0}, s{sT0}, 4
        s_add_u32 s{sT0}, s{sT0}, s{sW}
        s_mul_i32 s{sT0}, s{sT0}, {4 * BS}""")
    else:
        A(f"""s_mul_i32 s{sST}, s{sCL}, 393216
        s_add_u32 s{sST}, s{sST}, {WS_H}
        s_lshr_b32 s{sT0}, s{sJ}, 3
        s_mul_i32 s{sT0}, s{sT0}, {4 * 48 * 1024}
        s_add_u32 s{sT0}, s{sT0}, s{sST}
        s_mul_i32 s{sT1}, s{sW}, {12 * 1024}
        s_add_u32 s{sT0}, s{sT0}, s{sT1}
        s_mul_i32 s{sT1}, s{sW}, {96 * 1024}
        s_add_u32 s{sST}, s{sST}, s{sT1}
        s_mul_i32 s{sT1}, s{sJ}, 3072
        s_add_u32 s{sST}, s{sST}, s{sT1}
        s_add_u32 s{sST + 1}, s{sST}, {48 * 1024}""")
    A(f"""v_mov_b32 v{vGC}, {f2u(GK / GA)}
    v_add_u32 v{vH4}, {BS if OPT['h2'] else 4096}, v{vL16}
    v_add_u32 v{vH4 + 1}, 8192, v{vL16}""")
    if OPT['sn'] != 2:
        flag_prep(1)
    A(f"""v_mul_u32_u24 v{t}, {RS}, v{vL15}
    v_lshl_add_u32 v{t}, v{vQ}, 4, v{t}""")
    for blk in range(4):
        A(f"""s_add_u32 s{sT1}, s{sDW}, {blk + 1}
        s_and_b32 s{sT1}, s{sT1}, 3
        s_mul_i32 s{sT2}, s{sT1}, {16 * BS if OPT['h2'] else 48 * 1024}
        s_add_u32 s{sHB + blk}, s{sT0}, s{sT2}
        {f's_add_u32 s{sHC2 + blk}, s{sHB + blk}, s{sT3}' if OPT['h2'] else ''}
        {f's_add_u32 s{sHB + blk}, s{sHB + blk}, s{sHC2 + blk}' if OPT['h2'] else ''}
        s_mul_i32 s{sT1}, s{sT1}, {4 * PS}
        s_add_u32 s{sT1}, s{sT1}, {blk * PS}
        v_add_u32 v{aPW + blk}, s{sT1}, v{t}""")
    A(f"""v_lshrrev_b32 v{aPR}, 2, v{vL}
    v_and_b32 v{vOA}, 7, v{aPR}
    v_mul_u32_u24 v{aPR}, {RS}, v{aPR}
    s_mul_i32 s{sT2}, s{sDW}, {4 * PS}
    v_add_u32 v{aPR}, s{sT2}, v{aPR}
    v_and_b32 v{t}, 3, v{vL}
    v_lshl_add_u32 v{aPR + 1}, v{t}, 4, v{aPR}
    v_lshl_add_u32 v{aPR}, v{t}, 5, v{aPR}
    s_and_b32 s{sT0}, s{sPID}, 0xf8
    s_lshl_b32 s{sT1}, s{sDW}, 1
    s_add_u32 s{sT0}, s{sT0}, s{sT1}
    s_and_b32 s{sT2}, s{sJ}, 7
    s_mul_i32 s{sT3}, s{sT2}, 160
    v_lshlrev_b32 v{vOA}, 8, v{vOA}
    v_add3_u32 v{vOA}, v{vH}, v{vOA}, s{sT0}
    v_mul_u32_u24 v{vOA}, 1280, v{vOA}
    v_add_u32 v{vOA}, s{sT3}, v{vOA}
    v_lshl_add_u32 v{vOC}, v{t}, 3, v{vOA}
    v_lshl_add_u32 v{vOA}, v{t}, 4, v{vOA}""")


def gelu_unit(u, r):
    b = G1_ACC + 16 * u + 4 * r
    regs = [b, b + 2, b + 8, b + 10]
    e = G1_B
    o = G1_B + 8 + 4 * r
    if OPT['gpre'] and u >= 1:
        e = G1_ACC
        o = G1_ACC + 8 + 4 * r
    for k, x in enumerate(regs):
        pk('fma', e + 2 * k, x, x, vGC, mods='op_sel_hi:[1,1,0]')
    for k, x in enumerate(regs):
        pk('mul', e + 2 * k, e + 2 * k, x, mods=NEG1)
    for k in range(0 if OPT['cutx'] & 4 else 8):
        A(f'v_exp_f32 v{e + k}, v{e + k}')
    for k in range(4):
        pk('add', e + 2 * k, e + 2 * k, '1.0', mods='op_sel_hi:[1,0]')
    for k in range(8):
        A(f'v_rcp_f32 v{e + k}, v{e + k}')
    for k, x in enumerate(regs):
        pk('mul', e + 2 * k, e + 2 * k, x)
    for k in range(4):
        A(f'v_cvt_pk_bf16_f32 v{o + k}, v{e + 2 * k}, v{e + 2 * k + 1}')
    if OPT['h2']:
        if u < 2:
            A(f'buffer_store_dwordx4 {vr(o, 4)}, v{vH4 if u else vL16}, {srd(S_WS)}, s{sST + r} offen')
        else:
            A(f'buffer_store_dwordx4 {vr(o, 4)}, v{vL16}, {srd(S_WS)}, s{sST + 2 + r} offen sc1')
        return
    A(f'buffer_store_dwordx4 {vr(o, 4)}, v{vLW}, {srd(S_WS)}, s{sST + r} offen offset:{1024 * u} sc1')


G2_H = 24
NH = 20
FINR = 104
G2_ACC = 120
G2_BASE = 200
G2_GB = 220
vOA, vOC = 248, 249
RS = 336
PS = 16 * RS
OA = OPT['oa']
G2SEQ = [(b, k) for b in range(3) for k in KA] + [(3, k) for k in KA[:OA]] + [(b, k) for b in range(3) for k in KB] + [(3, k) for k in KA[OA:] + KB]
NGA = 24 + OA
if OPT['t3']:
    assert OA <= 4
    G2SEQ = [(b, k) for b in range(3) for k in KA[:4]] + [(3, k) for k in KA[:OA]] + [(b, k) for b in range(3) for k in KA[4:]] + G2SEQ[NGA:]


def fin_issue():
    R = FINR
    A(f"""buffer_load_dwordx4 {vr(R, 4)}, v{vOA}, {srd(S_OUT)}, 0 offen sc1
    buffer_load_dwordx4 {vr(R + 4, 4)}, v{vOA}, {srd(S_OUT)}, 0 offen offset:64 sc1
    buffer_load_dwordx2 {vr(R + 8, 2)}, v{vOC}, {srd(S_OUT)}, 0 offen offset:128 sc1""")


def fin_finish():
    t = vG1A
    A(f"""v_and_b32 v{t}, 3, v{vL}
    v_lshlrev_b32 v{t + 1}, 4, v{t}
    v_add_u32 v{t + 1}, {L_M2 + 7680}, v{t + 1}
    v_lshl_add_u32 v{t}, v{t}, 4, v{t + 1}""")
    for dst, off in ((G2_BASE, 528), (G2_GB, 0)):
        for k in range(4):
            A(f'ds_read_b128 {vr(dst + 4 * k, 4)}, v{t} offset:{off + 128 * (k >> 1) + 16 * (k & 1)}')
        A(f'ds_read_b128 {vr(dst + 16, 4)}, v{t + 1} offset:{off + 256}')
    for k in range(10):
        unpack(114, 115, FINR + k)
        A(f'v_add_f32 v{G2_BASE + 2 * k}, v114, v{G2_BASE + 2 * k}')
        A(f'v_add_f32 v{G2_BASE + 2 * k + 1}, v115, v{G2_BASE + 2 * k + 1}')


def g2_load(n):
    blk, kl = G2SEQ[n]
    if OPT['h2']:
        p, u = divmod(kl, 3)
        hb = WS_T if OPT['h2'] == 2 else WS_T + 512 * BS
        base, off = (sHB + blk, WS_TP + (2 * p + u) * BS) if u < 2 else (sHC2 + blk, hb + p * BS)
        return f's_add_u32 s{sW1E}, s{base}, {off}\nbuffer_load_dwordx4 {vr(G2_H + 4 * (n % NH), 4)}, v{vL16}, {srd(S_WS)}, s{sW1E} offen sc1'
    return f'buffer_load_dwordx4 {vr(G2_H + 4 * (n % NH), 4)}, v{[vLW, vH4, vH4 + 1][kl // 4]}, {srd(S_WS)}, s{sHB + blk} offen offset:{1024 * (kl % 4)} sc1'


def g2_main(nxt, bg):
    LA = OPT['la2']

    def rdp(dst, slot):
        out = [f'ds_read_b128 {vr(dst + 4 * k, 4)}, v{aPR} offset:{slot * PS + 128 * (k >> 1) + 16 * (k & 1)}' for k in range(4)]
        out.append(f'ds_read_b128 {vr(dst + 16, 4)}, v{aPR + 1} offset:{slot * PS + 256}')
        return out
    side = {}

    def put(pos, x):
        side.setdefault(pos, []).append(x)
    place(side, bg, 2, 5 * (NGA - 8))
    f0 = 30 if OPT['xq'] else 6
    if OPT['xl'] or OPT['sn'] == 1:
        place(side, A.groups(fin_issue), 7, 37)
        f0 = 66
    for k, x in enumerate(A.capture(fin_finish) if not OPT['cutx'] & 128 else []):
        put(f0 + k + k // 4, [x])
    if OPT['bb'] & 2:
        put(OPT['cb'] + 4, lambda: A('s_barrier'))
    put(OPT['pb'], lambda: flag_publish(2))
    put(OPT['qb'], lambda: A(flag_ld(2)))
    put(OPT['cb'], lambda: (flag_check(2), stamp('hb')))
    m0 = 5 * NGA
    sp = OPT['wsp']
    for b in range(3):
        for nt in range(5):
            put(m0 + 20 * (b + 1) + 3 + sp * nt, lambda b=b, nt=nt: A(f'ds_write_b128 v{aPW + b}, {vr(G2_ACC + 20 * b + 4 * nt, 4)} offset:{64 * nt}'))
    if OPT['rb']:
        bars = {1: [(1, (0, 1)), (2, (2,))], 2: [(0, (0,)), (1, (1,)), (2, (2,))]}[OPT['rb']]
        free = 0
        ops = []
        for blk_, slots in bars:
            mb = m0 + 20 * (blk_ + 1) + 4 * sp + 7
            put(mb, lambda: A('s_waitcnt lgkmcnt(0)\ns_barrier'))
            pos = mb
            for sl in slots:
                for x in rdp(G2_ACC + 20 * sl, sl):
                    put(pos, lambda x=x: A(x))
                    pos += 1
            free = max(free, mb + 7)
            for sl in slots:
                for k in range(20):
                    x = f'v_fmac_f32 v{G2_BASE + k}, v{G2_GB + k}, v{G2_ACC + 20 * sl + k}'
                    if free < 240:
                        put(int(free), lambda x=x: A(x))
                    else:
                        ops.append(x)
                    free += OPT['rd'] / 10
    else:
        m1 = m0 + 60 + 4 * sp + 7
        put(m1, lambda: A('s_waitcnt lgkmcnt(0)\ns_barrier'))
        pos = m1
        for sl in range(3):
            for x in rdp(G2_ACC + 20 * sl, sl):
                put(min(pos, 239), lambda x=x: A(x))
                pos += 1 if sl else 0
            pos += 0 if sl else 1
        ops = [f'v_fmac_f32 v{G2_BASE + k}, v{G2_GB + k}, v{G2_ACC + 20 * sl + k}' for sl in range(3) for k in range(20)]
        for p_ in range(m1 + 6, 240):
            n_ = 1 if p_ < m1 + 11 else 2
            for x in ops[:n_]:
                put(p_, lambda x=x: A(x))
            ops = ops[n_:]
    if OPT['cutx'] & 64:
        ops = []
        for k in range(m0, 240):
            side.pop(k, None)
    pa = G2_ACC + 60
    own = [f'ds_write_b128 v{aPW + 3}, {vr(pa + 4 * nt, 4)} offset:{64 * nt}' for nt in range(5)]
    order = [(n, nt) for n in range(48) for nt in range(5)]
    if OPT['pt']:
        order = order[:220] + [(n, nt) for nt in range(5) for n in range(44, 48)]
        for nt in range(3):
            put(227 + 4 * nt + 3, lambda x=own[nt]: A(x))
        own = own[3:]
    seen = set()
    for m, (n, nt) in enumerate(order):
        blk, kl = G2SEQ[n]
        acc = G2_ACC + 20 * blk
        assert nxt > n
        A(f'v_mfma_f32_16x16x32_bf16 {vr(acc + 4 * nt, 4)}, {ar((kl * 5 + nt) * 4, 4)}, {vr(G2_H + 4 * (n % NH), 4)}, {vr(acc + 4 * nt, 4) if (blk, nt) in seen else 0}')
        seen.add((blk, nt))
        for x in side.get(m, []):
            if callable(x):
                x()
            else:
                A.items.extend(x)
        if nt in (0, 3) and nxt < 48 and nxt <= n + LA and nxt - NH < n and (nxt < NGA or m >= OPT['cb']):
            if not (OPT['cutx'] & 256 and nxt >= NH):
                A(g2_load(nxt))
            nxt += 1
    stamp('g2')
    A(own.pop(0))
    for x in ops:
        A(x)
    for x in own:
        A(x)
    R = G2_ACC
    for x in rdp(R, 3):
        A(x)
    for k in range(10):
        pk('fma', R + 2 * k, R + 2 * k, G2_GB + 2 * k, G2_BASE + 2 * k)
        A(f'v_cvt_pk_bf16_f32 v{R + 20 + k}, v{R + 2 * k}, v{R + 2 * k + 1}')
        if k == 3:
            A(f'buffer_store_dwordx4 {vr(R + 20, 4)}, v{vOA}, {srd(S_OUT)}, 0 offen{OSC}')
        if k == 7:
            A(f'buffer_store_dwordx4 {vr(R + 24, 4)}, v{vOA}, {srd(S_OUT)}, 0 offen offset:64{OSC}')
    A(f'buffer_store_dwordx2 {vr(R + 28, 2)}, v{vOC}, {srd(S_OUT)}, 0 offen offset:128{OSC}')


def y2_check(g, issued):
    r = G1_A + 16 * g + 3
    k = (issued - 1) // 4
    ld = ''
    for i in range(4 * g, issued):
        ks, rr = divmod(i, 2)
        if i % 4 == 0:
            ld += f's_sub_u32 s{sLD + 1}, s{sLD}, {(k - i // 4) * BS}\n'
        ld += f'buffer_load_dwordx4 {vr(G1_A + 4 * i, 4)}, v{vG1A + rr}, {srd(S_WS)}, s{sLD + 1} offen offset:{512 * (ks & 1)} sc1\n'
    nlab[0] += 1
    inv = f"""s_cmp_eq_u32 s{sFAST}, 0
    s_cbranch_scc0 L_m{nlab[0]}
    buffer_inv sc1
    L_m{nlab[0]}:
    s_waitcnt vmcnt(0)
    """
    poll_check(f'y{g}', inv + ld, f"""v_max3_u32 v{vT16}, v{r}, v{r + 4}, v{r + 8}
    v_max_u32 v{vT16}, v{vT16}, v{r + 12}
    v_cmp_le_u32 vcc, 0xffc00000, v{vT16}""")


def mlp(slot):
    bg9 = slot(9)
    n9 = len(bg9) - min(OPT['s9'], SW2[9])
    A.spread(A.capture(seq(g1_bias, g1_pre)), bg9[:n9], 0, 0.9)
    if OPT['sn']:
        assert SW1[9] + SWB[9] == 0 and not OPT['ysc'] & 2
        A(f"""s_cmp_eq_u32 s{sFAST}, 0
        s_cbranch_scc1 L_slow_y
        L_join_y:""")
        RETRY('.segment')
        RETRY('L_slow_y:\ns_waitcnt vmcnt(0)\nbuffer_wbl2 sc1\ns_waitcnt vmcnt(0)\ns_branch L_join_y')
        if OPT['sd']:
            A(f"s_waitcnt vmcnt({after_last(lambda x: 'store' in x.op)})")
    else:
        flag_publish(0)
        stamp('pub0')
        A(flag_ld(0))
        A.emit(bg9[n9:])
        if OPT['xl']:
            x1_store()
        if not OPT['wb'] or SW1[9] + SWB[9]:
            A('s_barrier')
    for n in range(PRE):
        A('\n'.join(g1_rd(0, n)))
    if not OPT['sn']:
        flag_check(0)
        stamp('y2')
    LA = OPT['la1']
    cnt = [0]

    def ld(i):
        if OPT['cutx'] & 512 and i & 2:
            return
        A(g1_load(i))
        cnt[0] = i + 1
    for i in range(LA):
        ld(i)
    side = {}
    n0, n1 = len(PARTS[0]), len(PARTS[1])
    for i in range(LA, 40):
        side.setdefault((i - LA) * OPT['r1'] * n0 // 800, []).append(lambda i=i: ld(i))
    if OPT['sn']:
        y2_check(0, LA)
        stamp('y2')
        for g in range(1, 10):
            first = min(k for k, x in enumerate(PARTS[0]) if x[0] == 2 * g)
            side.setdefault(first - 1, []).append(lambda g=g: y2_check(g, cnt[0]))
    if OPT['sn'] == 2:
        side.setdefault(2, []).append(lambda: flag_publish(0))
        side.setdefault(40, []).append(lambda: A(flag_ld(0)))
        side.setdefault(70, []).append(lambda: (flag_check(0), flag_prep(1)))
    place(side, [[x] for x in A.capture(late_addr)], 0, n0 - 2)
    place(side, slot(10), OPT['g1s'] * n0 // 80, n0)
    g1_part(0, side)
    if not (OPT['bb'] & 1 and SWB[10] + SWB[11]) or OPT['h2']:
        A('s_barrier')
    stamp('g1a')
    A.spread(A.capture(lambda: [gelu_unit(u, r) for u in range(2) for r in range(2)]), slot(11), 0, OPT['gae'] / 100)
    held = []
    if OPT['gpre']:
        cutg = len(A.items) - 22
        assert not any(x.kind == 'vmem' and x.lds for x in A.items[cutg:])
        held = A.items[cutg:]
        del A.items[cutg:]
    if SWB[10] + SWB[11]:
        A(f"s_waitcnt vmcnt({after_last(lambda x: ' lds' in x.text)})\ns_barrier")
    for n in range(PRE):
        A(g1_rd(1, n)[0])
    A.items.extend(held)
    stamp('gelua')
    side = {}
    LA = OPT['la2']
    hl = [A.capture(lambda n=n: A(g2_load(n))) for n in range(max(LA, OPT['n3'] if OPT['t3'] else 0))]
    nh = len(hl)
    if OPT['t3']:
        assert OPT['p3'] < OPT['q3'] < OPT['c3'] < OPT['qa'] and OPT['n3'] <= 12 + OA
        side.setdefault(OPT['p3'], []).append(lambda: flag_publish(3))
        side.setdefault(OPT['q3'], []).append(lambda: A(flag_ld(3)))
        side.setdefault(OPT['c3'], []).append(lambda: flag_check(3))
        place(side, hl[:OPT['n3']], OPT['c3'] + 1, n1)
        hl = hl[OPT['n3']:]
    place(side, slot(12), 0, (OPT['q3'] if OPT['t3'] else OPT['qa']) - 4)
    if not OPT['xl'] and not OPT['xq'] and OPT['sn'] != 1:
        place(side, A.groups(fin_issue), max(OPT['fq'] * n1 // 40, max(k for k, x in enumerate(PARTS[1]) if x[0] <= 11) + 1), n1 - 2)
    side.setdefault(OPT['pa'], []).append(lambda: flag_publish(1))
    side.setdefault(OPT['qa'], []).append(lambda: A(flag_ld(1)))
    g1_part(1, side)
    if not OPT['bb'] & 2:
        A('s_barrier')
    stamp('g1b')
    bg = slot(13) + (A.groups(fin_issue) if OPT['xq'] else [])
    for r in range(2):
        if OPT['ca'] == r:
            flag_check(1)
            stamp('ha')
        k = 0 if r < OPT['ca'] else (len(hl) if r else len(hl) // 2)
        A.spread(A.capture(lambda: gelu_unit(2, r)), (bg if r == 0 else []) + hl[:k], 0, 0.9)
        hl = hl[k:]
    if OPT['ca'] == 2:
        flag_check(1)
        stamp('ha')
        A.emit(hl)
    stamp('gelub')
    g2_main(nh, slot(14))


def seq(*fns):
    def f():
        for x in fns:
            x()
    return f


def weave(bit, fg, bg, lo, hi):
    if OPT['gp'] & bit:
        A.gaps(fg, bg, lo, hi, OPT['gs'])
    else:
        A.spread(fg, bg, lo, hi)


def program():
    if OPT['fixed']:
        A('s_memrealtime s[98:99]')
    if OPT['stamps'] == 3:
        A('s_memrealtime s[100:101]')
        nstamp[0] = 1
    else:
        if OPT['stamps']:
            A('v_mov_b32 v255, 0')
        stamp('start')
    if OPT['lean'] == 5:
        setup_tight()
    elif OPT['lean']:
        setup_lean()
    else:
        setup()
    gemv_store_addr()
    if not OPT['cpf'] and not OPT['lean']:
        code_prefetch(30 * 1024)
    Q = {}

    def slot(k):
        out = []
        for name, cnt in (('F', SF), ('W1', SW1), ('WB', SWB), ('W2', SW2)):
            if cnt[k]:
                if not (OPT['nobg'] >> ['F', 'W1', 'W2', 'WB'].index(name)) & 1:
                    out += Q[name][:cnt[k]]
                Q[name] = Q[name][cnt[k]:]
        if k == OPT['dslot']:
            out = [g if n < len(out) - OPT['dn'] else [x for x in g if x.kind != 'vmem'] for n, g in enumerate(out)]
            out = out[:len(out) - OPT['dn']] + [sum(out[len(out) - OPT['dn']:], [])]
        return out
    FS = []

    def fmt_split():
        fmt_finish()
        if OPT['fs'] and OPT['p0'].index('F') < OPT['p0'].index('L'):
            FS.extend([x] for x in A.items[-4:])
            del A.items[-4:]
    Q['F'] = A.groups(filt_dma)
    Q['W1'] = A.groups(w1_dma)
    Q['WB'] = A.groups(wb_dma)
    Q['W2'] = A.groups(w2_load)
    steps = dict(X=seq(x1_issue, lambda: code_prefetch(0)) if OPT['lean'] == 4 else x1_issue, R=roles if OPT['late'] in (3, 4) else seq(roles, fmt_prep, fmt_addr), U=fmt_issue, T=touch, A=(lambda: None) if OPT['cutx'] & 16 else k1_const_a, B=k1_const_b, S=seq(silu, lambda: stamp('silu')),
                 G=seq(lambda: gemv_compute(G_W, sMODST), lambda: stamp('gemv')), I=seq(xid_store, hint_prep) if OPT['ht'] else xid_store, f=seq(filt_prep, w1_prep), K=seq(k1_addr, side_prep, lambda: srd_tail(S_B1, S_B2, S_OUT) if OPT['lean'] else None), F=fmt_split,
                 L=lambda: A.spread(A.capture(ln1), FS + slot(0), 0.05 if FS else 0, OPT['fs'] / 100 if FS else 0.6), Y=x_keep)
    p0a, p0b = OPT['p0'].split('M')
    assert SF[0] + SW1[0] == 0 or p0a.index('f') < p0a.index('L')
    assert sorted(OPT['p0']) == sorted('XRUASGTIfKFLM') and all(c in p0a for c in 'RUSGIKF')
    for nc, c in enumerate(p0a):
        fine(6, 'pre' + c)
        if OPT['pw'] and nc == OPT['pp']:
            prewarm()
        if not (c == 'X' and (OPT['xfirst'] or OPT['lean'] in (1, 2, 5))) and not (c == 'F' and OPT['late']) and not (c == 'U' and 0 < OPT['late'] < 9):
            steps[c]()
    LU = [A.groups(fmt_issue) if OPT['late'] == k else [] for k in range(4)]
    TW = [A.groups(touch_w) if OPT['tw'] == k else [] for k in range(4)]
    stamp('Miss')
    A(mod1_loads())
    m2 = A.groups(seq(b2_issue, lambda: A(side_loads())))
    M2 = [m2 if OPT['m2'] == k else [] for k in range(7)]
    fq = A.capture(seq(x_keep, k1_const_b, k1_addr2))
    nf = len(fq) * OPT['fk'] // 100
    A.spread(A.capture(seq(*[steps[c] for c in p0b])) + fq[:nf], (LU[1] + slot(1) if OPT['uf'] else slot(1) + LU[1]) + TW[1] + M2[1], 0.1, 0.9)
    k1_poll()
    k1 = A.merge(A.capture(seq(k1_head, k1_main)), fq[nf:])
    cut0 = min(i for i, x in enumerate(k1) if x.op == 's_barrier') + 1
    A.items.extend(k1[:cut0])
    k0 = len(A.items)
    weave(1, k1[cut0:], slot(2) + TW[2] + LU[2] + M2[2], OPT['k1s'] / 100, OPT['k1e'] / 100)
    if OPT['lf'] == 2:
        tail = A.items[k0:]
        mf = [k for k, x in enumerate(tail) if x.kind == 'mfma']
        body = A.capture(fmt_body)
        p1 = OPT['fp'] // 10
        A.items = A.items[:k0] + tail[:mf[p1] + 1]
        A(f's_waitcnt vmcnt({after_last(lambda x: srd(S_W2) in x.text and x.lds)})')
        parts = [body[0:4], body[4:8], [], body[8:9], body[9:10], body[10:11], body[11:12]]
        for n, part in enumerate(parts):
            A.items.extend(part)
            A.items.extend(tail[mf[p1 + n] + 1:mf[p1 + n + 1] + 1])
        A.items.extend(tail[mf[p1 + len(parts)] + 1:])
    stamp('k1')
    if OPT['late'] in (3, 4):
        fmt_prep()
        fmt_addr()
    w0 = len(A.items)
    A.spread(A.capture(seq(k2_const, k2_addr)), LU[3] + slot(3) + TW[3] + M2[3], 0, OPT['s3e'] / 100)
    if OPT['ht'] & 1:
        if OPT['hl'] <= 100:
            insert_at(w0, OPT['hl'], lambda: hint_issue(0))
        insert_at(w0, OPT['hs'], lambda: hint_set(0))
    if OPT['late'] and not OPT['lf']:
        fmt_finish()
    A(f's_waitcnt vmcnt({after_last(lambda x: srd(S_WI) in x.text and x.lds)})\ns_barrier')

    def cut_at(rest, pct):
        c = len(rest) * pct // 100
        lab = [k for k, x in enumerate(rest) if x.kind == 'label']
        if lab and lab[0] < c <= lab[-1]:
            c = lab[-1] + 1
        return c
    early = OPT['m2'] < 5
    rest = A.capture(seq(filt_finish, *([side_finish] if early else [])))
    cutd = cut_at(rest, OPT['td'])
    if OPT['ht'] & 1 and OPT['hl'] > 100:
        hint_issue(0)
    A.items.extend(rest[:cutd])
    if OPT['ht'] & 1:
        hint_check(0)
    stamp('Tiss')
    A(k2_loads())
    if OPT['late'] == 4:
        fmt_issue()
    A.items.extend(rest[cutd:])
    if OPT['lf'] == 1:
        fmt_finish()
    mark = len(A.items)
    if OPT['lf'] != 3:
        w_prep()
    A.emit(slot(4))
    k2_head()
    k2 = A.capture(k2_main)
    if OPT['lf'] == 3:
        mf = [k for k, x in enumerate(k2) if x.kind == 'mfma']
        body = A.capture(fmt_body)
        A.items.extend(k2[:mf[0] + 1])
        A(f's_waitcnt vmcnt({after_last(lambda x: srd(S_W2) in x.text and x.lds)})')
        for n in range(4):
            A.items.extend(body[2 * n:2 * n + 2] + k2[mf[n] + 1:mf[n + 1] + 1])
        A.spread(k2[mf[4] + 1:mf[7]], [[x] for x in body[8:]], 0.2, 1.0)
        mark = len(A.items)
        w_prep()
        k2 = k2[mf[7]:]
    weave(2, k2, slot(5) + A.groups(seq(xid_load, epoch_store)) + M2[5], 0, OPT['k2e'] / 100)
    if OPT['lf'] in (1, 3):
        ib = max(k for k, x in enumerate(A.items) if x.op == 's_barrier')
        A.items[ib:ib] = A.capture(lambda n=nvm(A.items[mark:ib]): A(f's_waitcnt vmcnt({n})'))
    stamp('k2')
    w0 = len(A.items)
    kc = A.capture(seq(k3_ldaddr, k3_const))
    nk = len(kc) * OPT['kc'] // 100
    A.spread(kc[:nk], slot(6) + M2[6], 0, OPT['s6e'] / 100)
    if OPT['ht'] & 2:
        insert_at(w0, OPT['hl2'], lambda: hint_issue(1))
        insert_at(w0, OPT['hs2'], lambda: hint_set(1))
    rest = kc[nk:] + A.capture(seq(*([] if early else [side_finish]), k3_addr, xid_check, lambda: flag_prep(0), lambda: A('\n'.join(mo_reads()) if MOE else ''), ga_shift))
    cutd = cut_at(rest, OPT['tpd'])
    A.items.extend(rest[:cutd])
    if OPT['ht'] & 2:
        assert not any(('s', sHT) in x.defs or ('v', vHT) in x.defs or ('v', vHT - 2) in x.defs for x in rest[:cutd])
        hint_check(1)
    stamp('Tpiss')
    A(k3_loads())
    A.spread(rest[cutd:], slot(7), 0.3, 1.0)
    k3_poll()
    k3 = A.capture(k3_main)
    bg = slot(8)
    if OPT['late']:
        cut0 = min(i for i, x in enumerate(k3) if x.op == 's_barrier') + 1
        n0 = min(SW1[8], len(bg) // 4)
        A.spread(k3[:cut0], bg[:n0])
        A.spread(k3[cut0:], bg[n0:], 0, OPT['k3e'] / 100)
    else:
        weave(4, k3, bg, 0, OPT['k3e'] / 100)
    k3_tail()
    stamp('k3')
    mlp(slot)
    if OPT['stamps'] == 3:
        A('v_writelane_b32 v255, s100, 0')
    stamp('end')
    if OPT['stamps']:
        A(f'''s_lshl_b32 s{sT0}, s{sME}, 10
        s_lshl_b32 s{sT1}, s{sW}, 8
        s_add_u32 s{sT0}, s{sT0}, s{sT1}
        s_add_u32 s{sT0}, s{sT0}, {WS_STAMP}
        v_writelane_b32 v255, s{sCNT}, 63
        v_writelane_b32 v255, s{sFAST}, 31
        v_lshlrev_b32 v{TMP}, 2, v{vL}
        buffer_store_dword v255, v{TMP}, {srd(S_WS)}, s{sT0} offen
        ''')
    if OPT['fixed']:
        if OPT['clean']:
            A('s_waitcnt vmcnt(0)\ns_barrier\nbuffer_wbl2 sc1\ns_waitcnt vmcnt(0)')
        if OPT['probe'] >= 0:
            A(f's_mul_i32 s97, s97, 4\ns_add_u32 s97, s97, {OPT["fixed"]}')
        else:
            A(f's_mov_b32 s97, {OPT["fixed"]}')
        A('''L_fix:
        s_memrealtime s[100:101]
        s_waitcnt lgkmcnt(0)
        s_sub_u32 s100, s100, s98
        s_cmp_lt_u32 s100, s97
        s_cbranch_scc1 L_fix''')
    A('L_end:')
    A('s_endpgm')


program()
hdr = open('cdna_kernels/%s.s.ref' % NAME).read().split('; Override launch')[0]
out = hdr
out += f'; @launch grid=(256,1,1) block=(256,1,1) lds={LDS_SIZE}\n'
out += '''; One persistent launch, one workgroup per CU.  Workgroups hand data over through d_ws:
;   tag  = hash of the word the previous launch left at d_ws[0]; every all-to-all granule (16 B) carries it, flags hold it
;   T/T2 = [source][destination] 64-byte chunks of the half-transformed signal (write-through stores, L1-bypassing loads)
;   y2/h = MFMA fragments exchanged inside clusters; flags stay in L2 only when the whole cluster reports the same die
; All waits on other workgroups are bounded.  Generated by a script; registers are allocated per phase.
'''
out += f'''.amdgcn_target "amdgcn-amd-amdhsa--gfx950"
.text
.globl {NAME}_kernel
.p2align 8
.type {NAME}_kernel,@function
{NAME}_kernel:
'''
out += A.text(OPT['al'])
out += RETRY.text()
out += f'''L_last:
    s_endpgm
.section .rodata,"a"
.p2align 6
.amdhsa_kernel {NAME}_kernel
  .amdhsa_next_free_vgpr 512
  .amdhsa_next_free_sgpr 102
  .amdhsa_accum_offset 256
  .amdhsa_group_segment_fixed_size 0
  .amdhsa_kernarg_size 104
  .amdhsa_user_sgpr_count 2
  .amdhsa_user_sgpr_kernarg_segment_ptr 1
  .amdhsa_system_sgpr_workgroup_id_x 1
.end_amdhsa_kernel
'''
open(sys.argv[1], 'w').write(out)
if OPT['stamps']:
    open(sys.argv[1] + '.stamps', 'w').write('\n'.join(STAMPS))
```

```python
import sys, os
sys.path.insert(0, os.path.dirname(os.path.abspath(__file__)))
from asmlib import Asm, vr, ar, sr, f2u

NAME = 'adaLN_cond__spectral_gfnet__mixer_channel_mlp__prompt'
OPT = dict(stamps=0, fixed=0, probe=-1, slow=0, fine=0, clean=0, nobg=0, mask=1, x1sc=1, bs=128, xfirst=0, um=0,
           p0='XRUfSKIGTFLMA', m2=2, late=0, fk=30, g1=40, g2=16, g3=24, smart=0, tc=0, k1s=0, tw=0, lf=0, osc=0, ysc=0, inl=0, bo=0, bf=0, now=0, fp=45, uf=1, ua=1, sk=0, cutx=0, hr=0, dslot=-1, dn=0, gp=0, gs=250, xl=0, wsp=2, pt=1, gpre=1, cpf=0, lean=5, nb=0, t3=0, p3=10, q3=17, c3=25, n3=8, xq=0, mc=1, mo=1, ys=1, sn=0, sd=0, ht=0, hs=0, hs2=0, hl2=60, kc=100, hn=12, pw=0, pwo=0, pp=0, hf=0, emu=0, xs=100, fs=80, hl=60, h2=0, rb=2, rd=8, s9=5, bb=1, al=0, wb=1, d2=0, gf=0, cr=3, cn=8, fn=4, cf=50, ce=70, xt=0, gd=0, to=0, mul=4,
           F='1,3,2,0', W1='0,0,4,4,0,8,0,4,0,0', WB='0,0,0,0,0,10,0', W2='6,5,0,24,7,3,7,8,0,0',
           td=65, tpd=50, la1=8, la2=8, k1e=70, k2e=82, k3e=85, s3e=30, s6e=35, g1s=40, gae=100, fq=28,
           pa=19, qa=32, oa=3, pb=30, qb=62, cb=96, r1=18, ca=1)
for a in sys.argv[2:]:
    k, v = a.split('=')
    assert k in OPT, k
    OPT[k] = v if isinstance(OPT[k], str) else int(v)
SF = [int(x) for x in OPT['F'].split(',')] + [0] * 11
SW1 = [int(x) for x in OPT['W1'].split(',')] + [0] * 5
SWB = [0] * 5 + [int(x) for x in OPT['WB'].split(',')] + [0] * 3
SW2 = [0] * 5 + [int(x) for x in OPT['W2'].split(',')]
assert sum(SF) == 6 and sum(SW1) == 20 and sum(SWB) == 10 and sum(SW2) == 60
assert OPT['bs'] % 8 == 0 or not OPT['sk'] & 6
assert OPT['sk'] == 0 and OPT['pa'] < OPT['qa'] < 40 - 8 * OPT['nb']
assert OPT['m2'] != 4 and not (OPT['lf'] == 2 and OPT['late'] in (2, 3, 4))
assert SW2[14] <= 20 and sum(SW1[:2]) <= 14
assert not OPT['late'] or sum(SW2[:8]) + sum(SWB[:8]) == 0
OPT.update(spread=1, two=0, ub=0, rot=0)

WS_EPOCH = 0x0
WS_XID = 0x400
WS_HINT = 0x2000
WS_FLAG = 0x8000
WS_MOD = 0x10000
MP = 15360
BS = 128 * OPT['bs']
WS_T = 0x100000
WS_TP = WS_T + 256 * BS
WS_Y2 = WS_T
WS_H = 0xA00000
WS_W1P = 0x1200000
WS_W2P = 0x1440000
WS_STAMP = 0x1800000
WS_SIZE = 268435456
SKIP = 0x2000000 + 128
OOB = 0x7ff00000

BIG = 0
B_N, B_W1, B_W2, B_F = 15360, 20480, 22528, 24576
SCR = 122880
L_X1E = SCR
L_M1 = SCR + 24576
L_RED = SCR + 32768
L_K2I = SCR + 24576
L_K2O = SCR
L_M2 = SCR + 12416
L_B1 = L_M2 + 9216
L_K3I = SCR + 24576
L_Y = SCR
L_Y2 = SCR + 24576
LDS_SIZE = 163840

S_X, S_WR, S_WI, S_W1, S_B1, S_W2, S_B2, S_C, S_WM, S_OUT, S_WS = [4 + 4 * i for i in range(11)]
sME, sW, sTAG, sXC, sG, sK1, sCL, sJ = range(48, 56)
sT0, sT1, sT2, sT3, sT4, sT5, sT6, sT7 = range(56, 64)
sM1, sM2 = 64, 66
sMODST, sW2ST, sFSH = 68, 69, 70
sPID = sME
sTB = 72
sLD = 76
sST = 80
sW2O = 84
sWB = 85
sDW = 70 if OPT['hr'] else 49
sW1O, sW1E = 90, 91
sBGO, sBG2 = 92, 93
sXID, sFAST, sCNT = 94, 95, 96
sSTAMP = 98

OSC = ['', ' sc1', ' nt', ' sc0 sc1'][OPT['osc']]
YSC = ['', ' sc1', ' nt'][OPT['ysc']]
A = Asm()
A.smart = bool(OPT['smart'])
RETRY = Asm()
nstamp = [0]
STAMPS = []


def srd(s):
    return sr(s, 4)


NOTES = dict(
    start='set-up; loads of c, w_mod (K split in four), x; weight formatting units',
    silu='modulation GEMV: partial sums, published with the launch tag in their low bytes',
    gemv='LayerNorm 1 statistics, operand exchange, address set-up',
    Miss='gather shift / scale partial sums',
    mod1='phase 1: modulate, DFT over (d mod 5, 8 rows), DFT-32, radix-4; publish T',
    k1='constants of phase 2, filter, late modulation vectors',
    Tiss='gather T',
    T='phase 2: 256-point FFT along the sequence, filter, inverse; publish T2',
    k2='constants of phase 3',
    Tpiss='gather T2',
    Tp='phase 3: inverse row transform, residual, LayerNorm 2, modulate, LayerNorm 3; publish y2',
    k3='hand-off of y2 inside the cluster of 16 workgroups',
    y2='GEMM1, first 64 hidden columns',
    g1a='gelu, publish h (first group)',
    gelua='GEMM1, last 32 hidden columns',
    g1b='gelu, publish h (second group)',
    gelub='GEMM2 (K split over the waves, reduced through LDS)',
    g2='output')


def stamp(name):
    if name in NOTES:
        A('; ---- ' + NOTES[name])
    if OPT['stamps'] == 3 and name not in ('start', 'end'):
        return
    if OPT['fine'] and name in ('silu', 'gemv', 'ln1', 'Tiss', 'Tpiss', 'pub0', 'y2', 'g1', 'gelu', 'pub1', 'h', 'g2'):
        return
    if not OPT['stamps']:
        if OPT['probe'] == nstamp[0]:
            A('s_memrealtime s[100:101]\ns_waitcnt lgkmcnt(0)\ns_sub_u32 s97, s100, s98')
        nstamp[0] += 1
        return
    i = nstamp[0]
    nstamp[0] += 1
    A(f'''s_memrealtime {sr(sSTAMP, 2)}
    s_memtime {sr(sSTAMP + 2, 2)}
    s_waitcnt lgkmcnt(0)
    v_writelane_b32 v255, s{sSTAMP}, {i}
    v_writelane_b32 v255, s{sSTAMP + 2}, {i + 32}''')
    STAMPS.append(name)


def fine(ph, name):
    if OPT['fine'] == ph:
        stamp(name)


def masked(loads, tagregs):
    if not OPT['mask']:
        return loads
    out = ''
    for ld, r in zip(loads.strip().split('\n'), tagregs):
        nlab[0] += 1
        out += f'v_cmp_ne_u32 vcc, s{sTAG}, v{r}\ns_cbranch_vccz L_m{nlab[0]}\ns_mov_b64 exec, vcc\n{ld}\ns_mov_b64 exec, -1\nL_m{nlab[0]}:\n'
    return out


nlab = [0]


def poll_check(label, loads, bad_cmp):
    if OPT['inl'] and label not in ('mod2', 'fl2'):
        A(f'L_pre_{label}:\ns_branch L_chk_{label}')
        A.blob(f'''L_retry_{label}:
        s_sub_u32 s{sCNT}, s{sCNT}, 1
        s_cmp_lt_i32 s{sCNT}, 0
        s_cbranch_scc1 L_ok_{label}
        {loads}
        s_waitcnt vmcnt(0)''')
        A(f'L_chk_{label}:')
        A(bad_cmp)
        A(f's_cbranch_vccnz L_retry_{label}')
        A(f'L_ok_{label}:')
        return
    A(f'L_chk_{label}:')
    A(bad_cmp)
    A(f's_cbranch_vccnz L_retry_{label}')
    A(f'L_ok_{label}:')
    RETRY('.segment')
    RETRY(f'''L_retry_{label}:
    s_sub_u32 s{sCNT}, s{sCNT}, 1
    s_cmp_lt_i32 s{sCNT}, 0
    s_cbranch_scc1 L_ok_{label}''')
    bo = OPT['bf'] if label.startswith('fl') else OPT['bo']
    if bo:
        RETRY(f's_sleep {bo}')
    RETRY(loads)
    RETRY(f'''s_waitcnt vmcnt(0)
    s_branch L_chk_{label}''')


def tagcheck(regs, tmp):
    if len(regs) == 1:
        return f'v_cmp_ne_u32 vcc, s{sTAG}, v{regs[0]}'
    s = f'v_min3_u32 v{tmp}, v{regs[0]}, v{regs[1]}, v{regs[2]}\n'
    s += f'v_max3_u32 v{tmp + 1}, v{regs[0]}, v{regs[1]}, v{regs[2]}\n'
    s += f'v_min3_u32 v{tmp}, v{tmp}, v{regs[3]}, s{sTAG}\n'
    s += f'v_max3_u32 v{tmp + 1}, v{tmp + 1}, v{regs[3]}, s{sTAG}\n'
    s += f'v_cmp_ne_u32 vcc, v{tmp}, v{tmp + 1}\n'
    return s


def sincos(ang, c, s):
    A(f'v_cos_f32 v{c}, v{ang}')
    A(f'v_sin_f32 v{s}, v{ang}')


def fmamk(d, a, k, b):
    if k == 0:
        A(f'v_mov_b32 v{d}, v{b}')
    elif k == 1:
        A(f'v_add_f32 v{d}, v{a}, v{b}')
    else:
        A(f'v_fmamk_f32 v{d}, v{a}, {f2u(k)}, v{b}')


def unpack(lo, hi, src):
    A(f'v_lshlrev_b32 v{lo}, 16, v{src}')
    A(f'v_and_b32 v{hi}, 0xffff0000, v{src}')


def mod5(d, src, tmp):
    A(f'v_mul_u32_u24 v{tmp}, 205, v{src}')
    A(f'v_lshrrev_b32 v{tmp}, 10, v{tmp}')
    A(f'v_mad_i32_i24 v{d}, v{tmp}, -5, v{src}')


def pk(op, d, *src, mods=''):
    A(f'v_pk_{op}_f32 {vr(d, 2)}, ' + ', '.join(vr(s, 2) if isinstance(s, int) else s for s in src) + (' ' + mods if mods else ''))


NEG1 = 'neg_lo:[0,1] neg_hi:[0,1]'

vL = 1
vL31, vH = 2, 3
vL15, vQ = 4, 5
vL16, vT16 = 6, 7
vLX = 254
vLW = vLX if OPT['sk'] & 1 else vL16
vLT = vLX if OPT['sk'] & 2 else vL16
vLY = vLX if OPT['sk'] & 4 else vL16
TMP = 8
vW1 = 240
vXID = 243
vBG = 244
vFL = 250


SIZES = {S_X: 2621440, S_WR: 1314816, S_WI: 1314816, S_W1: 1966080, S_B1: 3072, S_W2: 1966080, S_B2: 1280,
         S_C: 1280, S_WM: 4915200, S_OUT: 2621440, S_WS: WS_SIZE}
KSRC = {S_X: 64, S_WR: 66, S_WI: 68, S_W1: 72, S_B1: 74, S_W2: 76, S_B2: 78, S_C: 80, S_WM: 82, S_OUT: 84, S_WS: 88}


def srd_tail(*ss):
    for s in ss:
        A(f's_mov_b32 s{s + 2}, {SIZES[s]}')
        A(f's_mov_b32 s{s + 3}, {f"s{S_C + 3}" if OPT["lean"] == 5 else "0x00020000"}')


sU = 3 if OPT['um'] else 2


def setup_tight():
    t = TMP
    gf = OPT['gf']
    A(f'''s_cmp_ge_u32 s2, 256
    s_cbranch_scc1 L_end
    s_load_dwordx2 {sr(S_WM, 2)}, s[0:1], 72
    s_load_dwordx2 {sr(S_C, 2)}, s[0:1], 64
    s_load_dwordx16 s[64:79], s[0:1], 0
    s_load_dwordx2 {sr(S_WS, 2)}, s[0:1], 96
    s_lshr_b32 s{sG}, s2, 3''')
    code_prefetch(0)
    UM = f'''s_add_u32 s{sU}, s2, {8 - OPT['um']}
    s_and_b32 s{sU}, s{sU}, 7
    s_lshl_b32 s{sU}, s{sU}, 5
    s_or_b32 s{sU}, s{sU}, s{sG}''' if OPT['um'] else ''
    A(f'''v_lshrrev_b32 v{t}, 6, v0
    v_and_b32 v{vL}, 63, v0
    v_readfirstlane_b32 s{sW}, v{t}
    s_mov_b32 s{S_C + 3}, 0x00020000
    s_movk_i32 s{S_C + 2}, 1280
    s_mov_b32 s{S_WM + 3}, s{S_C + 3}
    s_mov_b32 s{S_WM + 2}, {SIZES[S_WM]}
    s_mov_b32 s{S_X + 3}, s{S_C + 3}
    s_mov_b32 s{S_X + 2}, {SIZES[S_X]}
    {UM}
    s_and_b32 s{sT1}, s{sU}, 3
    s_andn2_b32 s{sT0}, s{sU}, 3
    {'' if gf else f's_add_u32 s{sT0}, s{sT0}, s{sW}'}
    s_mul_i32 s{sT2}, s{sT1}, {160 * 240}
    s_add_u32 s{sT2}, s{sT2}, s{sT0}
    s_lshl_b32 s{sT2}, s{sT2}, 5
    s_mul_i32 s{sT4}, s{sT1}, 320
    {f'v_lshrrev_b32 v{t}, 3, v0' if gf else f'v_lshrrev_b32 v{t}, 1, v{vL}'}
    v_lshlrev_b32 v{t + 1}, 1, v{t}
    v_lshlrev_b32 v{t + 3}, 3, v{t}
    v_mul_u32_u24 v{t}, 7680, v{t}
    v_and_b32 v{t + 2}, {7 if gf else 1}, v0
    v_lshlrev_b32 v{t + 2}, 4, v{t + 2}
    v_lshl_add_u32 v{vGA}, v{t}, 2, v{t + 2}
    v_add_u32 v{vGA + 2}, v{t}, v{t + 2}
    s_and_b32 s{sXC}, s2, 7
    s_lshl_b32 s{sME}, s{sXC}, 5
    s_or_b32 s{sME}, s{sME}, s{sG}
    s_lshl_b32 s{sT6}, s{sW}, 9
    s_add_u32 s{sT6}, s{sT6}, s{sME}
    s_mulk_i32 s{sT6}, 1280
    s_add_u32 s{sT7}, s{sT6}, {256 * 1280}
    v_and_b32 v{vL31}, 31, v0
    v_lshrrev_b32 v{vH}, 5, v{vL}
    v_lshlrev_b32 v{vL16}, 4, v{vL}
    v_lshlrev_b32 v{t + 7}, 2, v{vH}
    v_lshl_add_u32 v{t + 7}, v{vL31}, 3, v{t + 7}
    s_waitcnt lgkmcnt(0)''')
    if not OPT['xfirst']:
        gemv_issue()
    A(f'''s_mov_b64 {sr(S_X, 2)}, s[64:65]
    s_load_dword s{sTAG}, {sr(S_WS, 2)}, {WS_EPOCH}
    buffer_load_dwordx4 {vr(X_RAW, 4)}, v{vL16}, {srd(S_X)}, s{sT6} offen
    buffer_load_dwordx4 {vr(X_RAW + 4, 4)}, v{vL16}, {srd(S_X)}, s{sT7} offen
    buffer_load_dword v{X_RAW + 8}, v{t + 7}, {srd(S_X)}, s{sT6} offen offset:1024
    buffer_load_dword v{X_RAW + 9}, v{t + 7}, {srd(S_X)}, s{sT7} offen offset:1024''')
    if OPT['xfirst']:
        gemv_issue()
    A(f'''L_tight:
    s_load_dwordx2 {sr(S_OUT, 2)}, s[0:1], 80
    s_mul_i32 s{sT1}, s{sT1}, {MP}
    s_lshl_b32 s{sT3}, s{sT0}, 6
    s_add_u32 s{sT5}, s{sT1}, s{sT3}
    s_mov_b32 s{sCNT}, 200000
    v_and_b32 v{vL15}, 15, v0
    v_lshrrev_b32 v{vQ}, 4, v{vL}
    v_lshlrev_b32 v{vT16}, 4, v0''')
    for s in (S_W2, S_W1, S_WR, S_WI, S_B1, S_B2):
        A(f's_mov_b64 {sr(s, 2)}, {sr(KSRC[s], 2)}')
    srd_tail(S_W2, S_W1, S_WS, S_WR, S_WI)


def setup_lean():
    A(f"""s_cmp_ge_u32 s2, 256
    s_cbranch_scc1 L_end
    s_load_dwordx2 {sr(S_C, 2)}, s[0:1], 64
    s_load_dwordx2 {sr(S_WM, 2)}, s[0:1], 72
    s_load_dwordx2 {sr(S_WS, 2)}, s[0:1], 96
    s_load_dwordx2 {sr(S_OUT, 2)}, s[0:1], 80
    s_load_dwordx16 s[64:79], s[0:1], 0
    v_lshrrev_b32 v{TMP}, 6, v0
    v_and_b32 v{vL}, 63, v0
    v_readfirstlane_b32 s{sW}, v{TMP}""")
    srd_tail(S_C, S_WM)
    if OPT['lean'] == 3:
        A(f's_lshr_b32 s{sG}, s2, 3')
        code_prefetch(0)
    gemv_addr()
    A('s_waitcnt lgkmcnt(0)')
    fine(5, 'karg')
    gemv_issue()
    fine(5, 'wiss')
    A(f"""s_load_dword s{sTAG}, {sr(S_WS, 2)}, {WS_EPOCH}
    s_mov_b64 {sr(S_X, 2)}, s[64:65]
    s_and_b32 s{sXC}, s2, 7
    s_lshr_b32 s{sG}, s2, 3
    s_lshl_b32 s{sME}, s{sXC}, 5
    s_or_b32 s{sME}, s{sME}, s{sG}
    v_and_b32 v{vL31}, 31, v0
    v_lshrrev_b32 v{vH}, 5, v{vL}
    v_lshlrev_b32 v{vL16}, 4, v{vL}""")
    srd_tail(S_X)
    fine(6, 'tag')
    if OPT['lean'] == 2:
        code_prefetch(0)
    if OPT['lean'] < 3:
        x1_issue()
    if OPT['lean'] == 1:
        code_prefetch(0)
    A(f"""s_mov_b32 s{sCNT}, 200000
    v_and_b32 v{vL15}, 15, v0
    v_lshrrev_b32 v{vQ}, 4, v{vL}
    v_lshlrev_b32 v{vT16}, 4, v0""")
    for s in (S_W2, S_W1, S_WR, S_WI, S_B1, S_B2):
        A(f's_mov_b64 {sr(s, 2)}, {sr(KSRC[s], 2)}')
    srd_tail(S_W2, S_W1, S_WS, S_WR, S_WI)


def setup():
    A(f'''s_cmp_ge_u32 s2, 256
    s_cbranch_scc1 L_end
    s_load_dwordx8 s[80:87], s[0:1], 64
    s_load_dwordx2 s[88:89], s[0:1], 96
    s_load_dwordx16 s[64:79], s[0:1], 0
    s_lshr_b32 s{sG}, s2, 3''')
    if OPT['cpf']:
        code_prefetch(30 * 1024)
    A(f'''s_and_b32 s{sXC}, s2, 7
    s_lshl_b32 s{sME}, s{sXC}, 5
    s_or_b32 s{sME}, s{sME}, s{sG}
    s_mov_b32 s{sCNT}, 200000
    v_and_b32 v{vL}, 63, v0
    v_lshrrev_b32 v{TMP}, 6, v0
    v_and_b32 v{vL31}, 31, v0
    v_readfirstlane_b32 s{sW}, v{TMP}
    v_lshrrev_b32 v{vH}, 5, v{vL}
    v_and_b32 v{vL15}, 15, v0
    v_lshrrev_b32 v{vQ}, 4, v{vL}
    v_lshlrev_b32 v{vL16}, 4, v{vL}
    v_lshlrev_b32 v{vT16}, 4, v0''')
    sizes = {S_X: 2621440, S_WR: 1314816, S_WI: 1314816, S_W1: 1966080, S_B1: 3072, S_W2: 1966080, S_B2: 1280,
             S_C: 1280, S_WM: 4915200, S_OUT: 2621440, S_WS: WS_SIZE}
    for s in sizes:
        A(f's_mov_b32 s{s + 2}, {sizes[s]}')
        A(f's_mov_b32 s{s + 3}, 0x00020000')
    gemv_addr()
    A('s_waitcnt lgkmcnt(0)')
    src = {S_X: 64, S_WR: 66, S_WI: 68, S_W1: 72, S_B1: 74, S_W2: 76, S_B2: 78, S_C: 80, S_WM: 82, S_OUT: 84, S_WS: 88}
    for s in (S_WM, S_C):
        A(f's_mov_b64 {sr(s, 2)}, {sr(src[s], 2)}')
    if OPT['xfirst']:
        A(f's_mov_b64 {sr(S_X, 2)}, {sr(src[S_X], 2)}')
        x1_issue()
    gemv_issue()
    A(f's_mov_b64 {sr(S_WS, 2)}, s[88:89]')
    A(f's_load_dword s{sTAG}, {sr(S_WS, 2)}, {WS_EPOCH}')
    for s in (S_X, S_W2, S_WR, S_WI, S_W1, S_B1, S_B2, S_OUT):
        A(f's_mov_b64 {sr(s, 2)}, {sr(src[s], 2)}')


def roles():
    A(f'''s_sub_u32 s{sT0}, 8, s{sXC}
    s_and_b32 s{sT0}, s{sT0}, 7
    s_cmp_lt_u32 s{sG}, 16
    s_cselect_b32 s{sK1}, s{sXC}, s{sT0}
    s_mul_i32 s{sWB}, s{sW}, 30720''')
    A(f's_lshr_b32 s{sCL}, s{sME}, 4\ns_and_b32 s{sJ}, s{sME}, 15')
    cols(sCA, sCB, sJ)
    if OPT['sk']:
        A(f'''v_add_u32 v{vLX}, {SKIP}, v{vL16}
        s_mov_b64 vcc, 0xff000000
        v_cndmask_b32 v{vLX}, v{vL16}, v{vLX}, vcc''')


sCA, sCB = 88, 89
POS = sum(p << (2 * i) for i, p in enumerate([1, 0, 1, 2, 1, 1, 1, 1]))


def cols(da, db, j):
    A(f'''s_and_b32 s{sT5}, s{j}, 14
    s_lshr_b32 s{sT6}, {POS}, s{sT5}
    s_and_b32 s{sT6}, s{sT6}, 3
    s_mul_i32 s{sT5}, s{sT5}, 3
    s_and_b32 s{sT7}, s{j}, 1
    s_lshl_b32 s{db}, s{sT6}, 1
    s_add_u32 s{db}, s{db}, s{sT5}
    s_add_u32 s{db}, s{db}, s{sT7}
    s_lshl_b32 s{sT7}, s{sT7}, 1
    s_cmp_eq_u32 s{sT6}, s{sT7}
    s_cselect_b32 s{sT7}, 1, s{sT7}
    s_lshl_b32 s{sT7}, s{sT7}, 1
    s_add_u32 s{da}, s{sT5}, s{sT7}''')


def touch_w():
    if OPT['now'] & 2:
        return
    d = 247
    if OPT['tc'] == 0:
        A(f"""s_lshl_b32 s{sBGO}, s{sCL}, 2
        s_add_u32 s{sBGO}, s{sBGO}, s{sW}
        s_mul_i32 s{sBGO}, s{sBGO}, {10 * 48}
        s_add_u32 s{sBGO}, s{sBGO}, s{sCA}
        s_lshl_b32 s{sBGO}, s{sBGO}, 6
        v_min_u32 v{d}, 9, v{vL}
        v_mul_u32_u24 v{d}, 3072, v{d}
        {'s_mov_b64 exec, 0x3ff' if OPT['to'] else ''}
        buffer_load_dword v{vXID}, v{d}, {srd(S_W1)}, s{sBGO} offen
        {'s_mov_b64 exec, -1' if OPT['to'] else ''}""")
    else:
        A(f"""s_lshl_b32 s{sBGO}, s{sME}, 2
        s_add_u32 s{sBGO}, s{sBGO}, s{sW}
        s_mul_i32 s{sBGO}, s{sBGO}, 1920
        v_min_u32 v{d}, 14, v{vL}
        v_lshlrev_b32 v{d}, 7, v{d}
        buffer_load_dword v{vXID}, v{d}, {srd(S_W1)}, s{sBGO} offen""")
        if OPT['tc'] == 2:
            A(f'buffer_load_dword v{d}, v{d}, {srd(S_W2)}, s{sBGO} offen')


def touch():
    t = TMP
    if OPT['tw'] == 0:
        touch_w()
    A(f'''s_lshl_b32 s{sT0}, s{sG}, 2
    s_add_u32 s{sT0}, s{sT0}, s{sW}
    s_lshl_b32 s{sT0}, s{sT0}, 4
    s_add_u32 s{sT0}, s{sT0}, s{sXC}
    s_mul_i32 s{sT0}, s{sT0}, 642
    s_and_b32 s{sT0}, s{sT0}, -4
    v_min_u32 v{t}, 5, v{vL31}
    v_lshlrev_b32 v{t}, 7, v{t}
    v_mul_u32_u24 v{t + 1}, {8 * 642}, v{vH}
    v_add_u32 v{t}, v{t}, v{t + 1}
    {'s_mov_b32 exec_lo, 63' if OPT['to'] else ''}
    {'s_mov_b32 exec_hi, 63' if OPT['to'] else ''}
    buffer_load_dword v248, v{t}, {srd(S_WR)}, s{sT0} offen
    buffer_load_dword v249, v{t}, {srd(S_WI)}, s{sT0} offen
    {'s_mov_b64 exec, -1' if OPT['to'] else ''}''')


def pid_to_me(d, p, t1):
    b = {1: 0, 2: 1, 4: 2, 8: 3}[OPT['spread']]
    if b == 0:
        A(f's_mov_b32 s{d}, s{p}')
        return
    A(f'''s_lshr_b32 s{d}, s{p}, {5 + b}
    s_lshl_b32 s{d}, s{d}, {5 + b}
    s_bfe_u32 s{t1}, s{p}, {(b << 16) | (4 - b)}
    s_lshl_b32 s{t1}, s{t1}, 5
    s_or_b32 s{d}, s{d}, s{t1}
    s_bfe_u32 s{t1}, s{p}, {((1 + b) << 16) | 4}
    s_lshl_b32 s{t1}, s{t1}, {4 - b}
    s_or_b32 s{d}, s{d}, s{t1}
    s_and_b32 s{t1}, s{p}, {(1 << (4 - b)) - 1}
    s_or_b32 s{d}, s{d}, s{t1}''')


G_C = 188
vGS, vGM, vGA = 194, 195, 236
G_W2 = 216
sGW, sMODS2 = 89, 97
G_W = 32
G_ACC = 52


def gemv_addr():
    A(f'''s_cmp_lt_u32 s2, 240
    s_cselect_b32 s{sT0}, s2, 0
    s_and_b32 s{sT1}, s{sT0}, 3''')
    if OPT['um']:
        A(f'''s_bfe_u32 s{sT2}, s{sT0}, 0x10002
        s_mul_i32 s{sT2}, s{sT2}, 30
        s_lshr_b32 s{sT0}, s{sT0}, 3
        s_add_u32 s{sT0}, s{sT0}, s{sT2}''')
    else:
        A(f's_lshr_b32 s{sT0}, s{sT0}, 2')
    A(f'''    s_lshl_b32 s{sT0}, s{sT0}, 2
    {'' if OPT['gf'] else f's_add_u32 s{sT0}, s{sT0}, s{sW}'}
    s_mul_i32 s{sT2}, s{sT1}, {160 * 7680}
    s_lshl_b32 s{sT3}, s{sT0}, 5
    s_add_u32 s{sT2}, s{sT2}, s{sT3}
    s_mul_i32 s{sT4}, s{sT1}, 320
    s_mul_i32 s{sT1}, s{sT1}, {MP}
    s_lshl_b32 s{sT3}, s{sT0}, 6
    s_add_u32 s{sT5}, s{sT1}, s{sT3}
    {f'v_lshrrev_b32 v{TMP}, 3, v0' if OPT['gf'] else f'v_lshrrev_b32 v{TMP}, 1, v{vL}'}
    v_lshlrev_b32 v{TMP + 1}, 1, v{TMP}
    v_lshlrev_b32 v{TMP + 3}, 3, v{TMP}
    v_mul_u32_u24 v{TMP}, 7680, v{TMP}
    v_and_b32 v{TMP + 2}, {7 if OPT['gf'] else 1}, v0
    v_lshlrev_b32 v{TMP + 2}, 4, v{TMP + 2}
    v_lshl_add_u32 v{vGA}, v{TMP}, 2, v{TMP + 2}
    v_add_u32 v{vGA + 2}, v{TMP}, v{TMP + 2}''')
    if OPT['two'] or OPT['ub']:
        A(f's_cmp_lt_u32 s2, 80\ns_cselect_b32 s{sT2}, s{sT2}, {OOB // 2}')


def gemv2_issue():
    for i in range(5):
        if i:
            A(f's_add_u32 s{sGW}, s{sGW}, {7680 if i < 4 else 125 * 7680}')
        A(f'buffer_load_dwordx4 {vr(G_W2 + 4 * i, 4)}, v{vGA + 2 * (i // 4)}, {srd(S_WM)}, s{sGW} offen')


def gemv_issue():
    A(f'buffer_load_dwordx2 {vr(G_C + 2, 2)}, v{TMP + 3}, {srd(S_C)}, s{sT4} offen')
    A(f'buffer_load_ushort v{G_C + 4}, v{TMP + 1}, {srd(S_C)}, s{sT4} offen offset:256')
    for i in range(5):
        A(f'buffer_load_dwordx4 {vr(G_W + 4 * i, 4)}, v{vGA + 2 * (i // 4)}, {srd(S_WM)}, s{sT2} offen')
        if i < 4:
            A(f's_add_u32 s{sT2}, s{sT2}, {7680 if i < 3 else 125 * 7680}')


def gemv_store_addr():
    A(f'''s_add_u32 s{sT5}, s{sT5}, {WS_MOD}
    s_cmp_lt_u32 s{sU}, 240
    s_cselect_b32 s{sMODST}, s{sT5}, {OOB}''')
    if OPT['two']:
        A(f'''s_sub_u32 s{sT0}, s2, 80
        s_cmp_lt_u32 s{sT0}, 160
        s_cselect_b32 s{sMODS2}, s{sT5}, {OOB}
        s_cselect_b32 s{sMODST}, {OOB}, s{sMODST}
        s_cselect_b32 s{sW2O}, s{sT6}, {OOB // 2}''')


def silu():
    t = TMP
    unpack(G_C, G_C + 1, G_C + 2)
    fine(5, 'c')
    unpack(G_C + 2, G_C + 3, G_C + 3)
    A(f'v_lshlrev_b32 v{G_C + 4}, 16, v{G_C + 4}')
    for i in range(5):
        A(f'v_mul_f32 v{t + i}, {f2u(-1.4426950408889634)}, v{G_C + i}')
    for i in range(5):
        A(f'v_exp_f32 v{t + i}, v{t + i}')
    for i in range(5):
        A(f'v_add_f32 v{t + i}, 1.0, v{t + i}')
    for i in range(5):
        A(f'v_rcp_f32 v{t + i}, v{t + i}')
    for i in range(5):
        A(f'v_mul_f32 v{t + i}, v{G_C + i}, v{t + i}')
    for i in range(5):
        A(f'v_cvt_pk_bf16_f32 v{t + i}, v{t + i}, v{t + i}')
    for i in range(5):
        A(f'v_lshlrev_b32 v{G_C + i}, 16, v{t + i}')
    for i in range(5 if OPT['gd'] else 0):
        A(f'v_lshrrev_b32 v{24 + i}, 16, v{t + i}')
    A(f'''s_mul_i32 s{sTAG}, s{sTAG}, 0x9E3779B1
    s_add_u32 s{sTAG}, s{sTAG}, 0x7F4A7C15
    s_or_b32 s{sTAG}, s{sTAG}, 0xffc00000''')
    for k in range(4):
        A(f's_bfe_u32 s{sTB + k}, s{sTAG}, {(8 << 16) | (8 * k)}')
    if OPT['gf']:
        A(f'''v_mov_b32 v{t + 6}, {OOB}
        v_cmp_gt_u32 vcc, 16, v0
        v_cndmask_b32 v{vGS}, v{t + 6}, v{vT16}, vcc
        v_mov_b32 v{vGM}, 0xffffff00
        s_lshl_b32 s{sT0}, s{sW}, 8
        s_add_u32 s{sT0}, s{sT0}, {L_RED}
        v_and_b32 v{t + 5}, 7, v{vL}
        v_lshl_add_u32 v{t + 5}, v{t + 5}, 5, s{sT0}
        v_lshl_add_u32 v{t + 5}, v{vH}, 4, v{t + 5}
        v_and_b32 v{t + 6}, 1, v{vQ}
        v_lshl_add_u32 v{vGA}, v{t + 6}, 2, v{t + 5}
        s_mov_b32 s{sT0}, {L_RED}
        v_lshl_add_u32 v{vGA + 2}, v{vL15}, 4, s{sT0}''')
        return
    A(f'''v_and_b32 v{t + 5}, 1, v{vL}
    v_lshlrev_b32 v{t + 5}, 5, v{t + 5}
    v_lshl_add_u32 v{t + 5}, v{vH}, 4, v{t + 5}
    v_mov_b32 v{t + 6}, {OOB}
    v_cmp_gt_u32 vcc, 2, v{vL31}
    v_cndmask_b32 v{vGS}, v{t + 6}, v{t + 5}, vcc
    v_mov_b32 v{vGM}, 0xffffff00''')


def gemv_compute(G_W, sdst):
    t = TMP
    for i in range(5):
        sp = (G_C + i) & ~1
        sel = (G_C + i) & 1
        for k in range(4 if OPT['gd'] else 0):
            for e, sreg in ((0, 24 + i), (1, G_C + i)):
                if i:
                    A(f'v_dot2c_f32_bf16 v{G_ACC + 2 * k + e}, v{G_W + 4 * i + k}, v{sreg}')
                else:
                    A(f'v_dot2_f32_bf16 v{G_ACC + 2 * k + e}, v{G_W + 4 * i + k}, v{sreg}, 0')
        for k in range(0 if OPT['gd'] else 4):
            u = t + 2 * (k & 1)
            unpack(u, u + 1, G_W + 4 * i + k)
            if i == 0:
                pk('mul', G_ACC + 2 * k, u, sp, mods=f'op_sel:[0,{sel}] op_sel_hi:[1,{sel}]')
            else:
                pk('fma', G_ACC + 2 * k, u, sp, G_ACC + 2 * k, mods=f'op_sel:[0,{sel},0] op_sel_hi:[1,{sel},1]')
    a = G_ACC
    for k in range(4):
        A(f'v_permlane32_swap_b32 v{a + k}, v{a + k + 4}')
    pk('add', a, a, a + 4)
    pk('add', a + 2, a + 2, a + 6)
    A(f'''v_permlane16_swap_b32 v{a}, v{a + 1}
    v_permlane16_swap_b32 v{a + 2}, v{a + 3}
    v_add_f32 v{a}, v{a}, v{a + 1}
    v_add_f32 v{a + 2}, v{a + 2}, v{a + 3}''')
    if OPT['gf']:
        A(f'''v_add_f32_dpp v{a}, v{a}, v{a} row_ror:8 row_mask:0xf bank_mask:0xf
        v_add_f32_dpp v{a + 2}, v{a + 2}, v{a + 2} row_ror:8 row_mask:0xf bank_mask:0xf
        ds_write2_b32 v{vGA}, v{a}, v{a + 2} offset0:0 offset1:2
        s_waitcnt lgkmcnt(0)
        s_barrier''')
        for w in range(4):
            A(f'ds_read_b128 {vr(G_W + 4 * w, 4)}, v{vGA + 2} offset:{256 * w}')
        sum4(G_W)
        for k in range(4):
            A(f'v_and_or_b32 v{a + k}, v{G_W + k}, v{vGM}, s{sTB + k}')
        A(f'buffer_store_dwordx4 {vr(a, 4)}, v{vGS}, {srd(S_WS)}, s{sdst} offen sc1')
        return
    for r in (8, 4):
        A(f'v_add_f32_dpp v{a}, v{a}, v{a} row_ror:{r} row_mask:0xf bank_mask:0xf')
        A(f'v_add_f32_dpp v{a + 2}, v{a + 2}, v{a + 2} row_ror:{r} row_mask:0xf bank_mask:0xf')
    for d in (1, 3, 0, 2):
        s_ = a + (d & 2)
        A(f'v_add_f32_dpp v{a + d}, v{s_}, v{s_} row_ror:2 row_mask:0xf bank_mask:0xf')
    A(f'''v_permlane16_swap_b32 v{a}, v{a + 1}
    v_permlane16_swap_b32 v{a + 2}, v{a + 3}''')
    for k in range(4):
        A(f'v_and_or_b32 v{a + k}, v{a + k}, v{vGM}, s{sTB + k}')
    A(f'buffer_store_dwordx4 {vr(a, 4)}, v{vGS}, {srd(S_WS)}, s{sdst} offen sc1')


def code_prefetch(nbytes):
    t = TMP + 4
    A(f"""s_getpc_b64 {sr(sT2, 2)}
    L_pc:
    v_and_b32 v{t}, 7, v0
    v_lshl_add_u32 v{t}, v{t}, 5, s{sG}
    v_lshlrev_b32 v{t}, 7, v{t}
    v_min_u32 v{t}, L_last-L_pc, v{t}
    v_mov_b32 v{t + 1}, s{sT3}
    v_add_co_u32 v{t}, vcc, s{sT2}, v{t}
    v_addc_co_u32 v{t + 1}, vcc, 0, v{t + 1}, vcc
    {'s_mov_b64 exec, 0xff' if OPT['to'] else ''}
    global_load_dword v{vFL}, {vr(t, 2)}, off
    {'s_mov_b64 exec, -1' if OPT['to'] else ''}""")


def code_refresh(bit, t, dst):
    if not OPT['cr'] & bit:
        return
    A(f"""s_getpc_b64 {sr(sT2, 2)}
    L_pc{bit}:
    v_and_b32 v{t}, {OPT['cn'] - 1}, v{vL}
    v_lshl_add_u32 v{t}, v{t}, 5, s{sG}
    v_lshlrev_b32 v{t}, 7, v{t}
    v_min_u32 v{t}, L_last-L_pc{bit}, v{t}
    v_mov_b32 v{t + 1}, s{sT3}
    v_add_co_u32 v{t}, vcc, s{sT2}, v{t}
    v_addc_co_u32 v{t + 1}, vcc, 0, v{t + 1}, vcc
    {'s_mov_b64 exec, 0xff' if OPT['to'] else ''}
    global_load_dword v{dst}, {vr(t, 2)}, off
    {'s_mov_b64 exec, -1' if OPT['to'] else ''}""")


def xid_store():
    t = TMP
    A(f'''s_getreg_b32 s{sXID}, hwreg(HW_REG_XCC_ID, 0, 4)
    s_lshl_b32 s{sT0}, s{sPID}, 2
    s_add_u32 s{sT0}, s{sT0}, {WS_XID}
    v_mov_b32 v{t}, s{sXID}
    v_cmp_eq_u32 vcc, 0, v0
    v_mov_b32 v{t + 1}, {OOB}
    v_cndmask_b32 v{t + 1}, v{t + 1}, v0, vcc
    buffer_store_dword v{t}, v{t + 1}, {srd(S_WS)}, s{sT0} offen sc1''')


def xid_load():
    A(f'''s_lshl_b32 s{sBGO}, s{sCL}, 6
    s_add_u32 s{sBGO}, s{sBGO}, {WS_XID}
    v_lshlrev_b32 v{vXID}, 2, v{vL15}
    buffer_load_dword v{vXID}, v{vXID}, {srd(S_WS)}, s{sBGO} offen sc1
    s_lshl_b32 s{sBGO}, s{sCL}, 10
    s_add_u32 s{sBGO}, s{sBGO}, {WS_FLAG}
    buffer_load_dword v{vFL}, v{vL16}, {srd(S_WS)}, s{sBGO} offen sc1''')


def xid_check():
    A(f'''v_cmp_ne_u32 vcc, s{sXID}, v{vXID}
    s_cmp_eq_u64 vcc, 0
    s_cselect_b32 s{sFAST}, {0 if OPT['slow'] else 1}, 0''')


def flag_prep(which):
    if which == 0:
        A(f"""s_lshl_b32 s{sBGO}, s{sCL}, 10
        s_add_u32 s{sBGO}, s{sBGO}, {WS_FLAG}
        s_lshl_b32 s{sBG2}, s{sJ}, 2
        s_add_u32 s{sBG2}, s{sBG2}, s{sW}
        s_lshl_b32 s{sBG2}, s{sBG2}, 2
        v_mov_b32 v{vFL + 2}, s{sBG2}
        v_mov_b32 v{vFL + 3}, s{sTAG}
        s_lshl_b32 s{sBG2}, s{sW}, 6
        v_lshl_add_u32 v{vFL}, v{vL15}, 2, s{sBG2}""")
    else:
        A(f"""s_lshl_b32 s{sBG2}, s{sW}, 6
        s_and_b32 s{sT7}, s{sJ}, 8
        s_add_u32 s{sBG2}, s{sBG2}, s{sT7}
        v_and_b32 v{vFL}, 13, v{vL}
        v_lshl_add_u32 v{vFL}, v{vFL}, 2, s{sBG2}""")
        if OPT['h2'] == 2:
            assert OPT['ca'] == 0
            A(f"""v_lshlrev_b32 v{vT16}, 4, v{vL15}
            v_cmp_eq_u32 vcc, 1, v{vQ}
            v_cndmask_b32 v{vFL}, v{vFL}, v{vT16}, vcc""")
        if OPT['xl'] or OPT['sn'] == 1:
            A(f"""s_lshl_b32 s{sBG2}, s{sDW}, 1
            s_add_u32 s{sBG2}, s{sBG2}, s{sT7}
            s_lshl_b32 s{sBG2}, s{sBG2}, 4
            v_writelane_b32 v{vFL}, s{sBG2}, 62
            s_add_u32 s{sBG2}, s{sBG2}, 16
            v_writelane_b32 v{vFL}, s{sBG2}, 63""")


vHT, sHT, sHS, sHC = 253, 82, 83, 71


def prewarm():
    A('v_mov_b32 v159, 0')
    for n in range(OPT['pw']):
        i = n + OPT['pwo']
        base = [WS_TP, WS_T, 0x3000000, 0x3800000][i // 4] + 4096 * (i % 4)
        A(f'''s_mul_i32 s{sT0}, s{sME}, {BS}
        s_add_u32 s{sT0}, s{sT0}, {base}
        buffer_store_dwordx4 v[156:159], v{vT16}, {srd(S_WS)}, s{sT0} offen sc1''')


def hint_prep():
    A(f'''s_lshl_b32 s{sHT}, s{sXC}, 7
    s_add_u32 s{sHT}, s{sHT}, {WS_HINT}
    s_lshl_b32 s{sHS}, s{sG}, 2
    s_add_u32 s{sHS}, s{sHS}, s{sHT}
    s_cmp_eq_u32 s{sW}, 0
    s_cselect_b32 s{sHS}, s{sHS}, {OOB}
    v_lshlrev_b32 v{vHT}, 10, v{vH}
    buffer_load_dword v{vHT}, v{vHT}, {srd(S_WS)}, s{sHT} offen sc1''')


def hint_set(k):
    A(f'''v_mov_b32 v{vHT - 1}, s{sTAG}
    buffer_store_dword v{vHT - 1}, off, {srd(S_WS)}, s{sHS} offset:{1024 * k}''')


def hint_ld(k):
    return f'buffer_load_dword v{vHT}, v{vHT - 2}, {srd(S_WS)}, s{sHT} offen offset:{1024 * k} sc1'


def hint_issue(k):
    A(f'''v_lshlrev_b32 v{vHT - 2}, 2, v{vL31}
    s_mov_b32 s{sHC}, {OPT['hn']}
    {hint_ld(k)}''')


def hint_check(k):
    A(f's_branch L_chk_h{k}')
    A.blob(f'''L_retry_h{k}:
    s_sub_u32 s{sHC}, s{sHC}, 1
    s_cmp_lt_i32 s{sHC}, 0
    s_cbranch_scc1 L_ok_h{k}
    {hint_ld(k)}
    s_waitcnt vmcnt(0)''')
    A(f'''L_chk_h{k}:
    v_cmp_ne_u32 vcc, s{sTAG}, v{vHT}
    s_cbranch_vccnz L_retry_h{k}
    L_ok_h{k}:''')


def insert_at(start, pct, fn):
    it = A.items
    k = start + (len(it) - start) * pct // 100
    while k < len(it) and it[k].kind != 'valu':
        k += 1
    inside = [x.text[:5] for x in it[start:k] if x.kind == 'label']
    assert not inside or inside[-1] != 'L_chk'
    it[k:k] = A.capture(fn)


def nvm(items):
    return sum(1 for i in items if i.kind == 'vmem')


def after_last(pred):
    i = max([k for k, x in enumerate(A.items) if x.kind == 'vmem' and pred(x)] or [len(A.items) - 300])
    return min(63, nvm(A.items[i + 1:]))


def flag_publish(which):
    if which == 3:
        younger = after_last(lambda x: 'store_dwordx4' in x.op and 'offset:0 sc1' in x.text)
    elif which:
        younger = after_last(lambda x: 'store_dwordx4' in x.op)
    else:
        younger = after_last(lambda x: 'store' in x.op or ' lds' in x.text)
    st = f'buffer_store_dword v{vFL + 3}, v{vFL + 2}, {srd(S_WS)}, s{sBGO} offen offset:{256 * which}'
    if which and OPT['hf']:
        A(f's_waitcnt vmcnt({younger})\n{st} sc1')
        return
    A(f"""s_cmp_eq_u32 s{sFAST}, 0
    s_waitcnt vmcnt({min(younger, 63)})
    s_cbranch_scc1 L_slow_pub{which}
    {st}
    L_join_pub{which}:""")
    RETRY('.segment')
    RETRY(f'L_slow_pub{which}:')
    if which == 0 and not OPT['sn'] or which == 1 and OPT['h2']:
        RETRY('buffer_wbl2 sc1\ns_waitcnt vmcnt(0)')
    RETRY(f'{st} sc1\ns_branch L_join_pub{which}')


def flag_ld(which):
    return f'buffer_load_dword v{vFL + 1}, v{vFL}, {srd(S_WS)}, s{sBGO} offen offset:{256 * which} sc1'


def flag_check(which):
    poll_check(f'fl{which}', flag_ld(which), tagcheck([vFL + 1], 0))
    if which == 0 and not OPT['sn'] or which == 1 and OPT['h2']:
        A(f"""s_cmp_eq_u32 s{sFAST}, 0
        s_cbranch_scc1 L_slow_acq{which}
        L_join_acq{which}:""")
        RETRY('.segment')
        RETRY(f"""L_slow_acq{which}:
        buffer_inv sc1
        s_waitcnt vmcnt(0)
        s_branch L_join_acq{which}""")


sW1ST, sW1S = 86, 87
vU1, vU2 = 251, 252


def fmt_prep():
    t = TMP
    A(f"""s_mul_i32 s{sT0}, s{sME}, 205
    s_lshr_b32 s{sT0}, s{sT0}, 10
    s_mul_i32 s{sT1}, s{sT0}, 5
    s_sub_u32 s{sT1}, s{sME}, s{sT1}
    s_lshl_b32 s{sT1}, s{sT1}, 2
    s_add_u32 s{sT1}, s{sT1}, s{sW}
    s_mul_i32 s{sT2}, s{sT0}, 40960
    s_lshl_b32 s{sT3}, s{sT1}, 11
    s_add_u32 s{sW2ST}, s{sT2}, s{sT3}
    s_add_u32 s{sW2ST}, s{sW2ST}, {WS_W2P}
    s_mul_i32 s{sT2}, s{sT0}, 171
    s_lshr_b32 s{sT2}, s{sT2}, 9
    s_mul_i32 s{sT3}, s{sT2}, 3
    s_sub_u32 s{sT0}, s{sT0}, s{sT3}""")
    cols(sT3, sT4, sT2)
    if OPT['um']:
        UA = f'''s_lshr_b32 s{sT0}, s{sG}, 1
        s_and_b32 s{sT0}, s{sT0}, 8
        s_and_b32 s{sT1}, s{sG}, 7
        s_or_b32 s{sT0}, s{sT0}, s{sT1}
        s_lshl_b32 s{sT0}, s{sT0}, 3
        s_add_u32 s{sT0}, s{sT0}, s{sXC}
        s_bitcmp1_b32 s{sG}, 3
        s_cselect_b32 s{sT0}, 255, s{sT0}'''
    elif OPT['ua']:
        UA = f'''s_sub_u32 s{sT0}, 30, s{sG}
        s_lshl_b32 s{sT0}, s{sT0}, 2
        s_add_u32 s{sT0}, s{sT0}, s{sXC}
        s_bitcmp1_b32 s{sG}, 0
        s_cselect_b32 s{sT0}, 255, s{sT0}'''
    else:
        UA = f's_sub_u32 s{sT0}, 255, s2'
    A(f"""s_add_u32 s{sT3}, s{sT3}, s{sT0}
    s_cmp_lt_u32 s{sT0}, 2
    s_cselect_b32 s{sT3}, s{sT3}, s{sT4}
    s_mul_i32 s{sT3}, s{sT3}, 40960
    s_lshl_b32 s{sT1}, s{sT1}, 6
    s_add_u32 s{sW2O}, s{sT3}, s{sT1}
    s_cmp_lt_u32 s{sME}, 240
    s_cselect_b32 s{sW2ST}, s{sW2ST}, {OOB}
    s_cselect_b32 s{sW2O}, s{sW2O}, {OOB // 2}
    {UA}
    s_and_b32 s{sT1}, s{sT0}, 3
    s_lshl_b32 s{sT1}, s{sT1}, 2
    s_add_u32 s{sT1}, s{sT1}, s{sW}
    s_lshr_b32 s{sT0}, s{sT0}, 2""")
    cols(sT3, sT4, sT1)
    A(f"""s_mul_i32 s{sT2}, s{sT0}, {32 * 3072}
    s_lshl_b32 s{sT4}, s{sT4}, 6
    s_add_u32 s{sW1S}, s{sT2}, s{sT4}
    s_mul_i32 s{sT1}, s{sT1}, 20
    s_add_u32 s{sT1}, s{sT1}, s{sT0}
    s_lshl_b32 s{sT1}, s{sT1}, 11
    s_add_u32 s{sW1ST}, s{sT1}, {WS_W1P}
    s_cmp_lt_u32 s{sT0}, 20
    s_cselect_b32 s{sW1ST}, s{sW1ST}, {OOB}
    {f's_mov_b32 s{sW1ST}, {OOB}' if OPT['now'] & 4 else ''}
    {f's_mov_b32 s{sW2ST}, {OOB}' if OPT['now'] & 8 else ''}
    {f's_mov_b32 s{sW1S}, {OOB // 2}' if OPT['now'] & 16 else ''}
    {f's_mov_b32 s{sW2O}, {OOB // 2}' if OPT['now'] & 32 else ''}
    v_lshrrev_b32 v{t}, 2, v{vL}
    v_and_b32 v{t + 1}, 3, v{vL}
    v_lshlrev_b32 v{t + 1}, 4, v{t + 1}
    v_mul_u32_u24 v{t + 2}, 1280, v{t}
    v_add_u32 v{vU2}, v{t + 1}, v{t + 2}
    v_mul_u32_u24 v{t + 2}, 3072, v{t}
    v_add_u32 v{vU1}, v{t + 1}, v{t + 2}""")


def fmt_issue():
    if OPT['now'] & 1:
        return
    for sd, so, v, pitch, lds in ((S_W1, sW1S, vU1, 3072, B_W1), (S_W2, sW2O, vU2, 1280, B_W2)):
        A(f"""s_add_u32 m0, s{sWB}, {BIG + lds}
        buffer_load_dwordx4 v{v}, {srd(sd)}, s{so} offen lds
        s_add_u32 m0, s{sWB}, {BIG + lds + 1024}
        s_add_u32 s{so}, s{so}, {16 * pitch}
        buffer_load_dwordx4 v{v}, {srd(sd)}, s{so} offen lds""")


def fmt_finish():
    if OPT['now'] & 1:
        return
    A(f's_waitcnt vmcnt({min(63, after_last(lambda x: srd(S_W2) in x.text and x.lds))})')
    fmt_body()


def fmt_addr():
    t = 96
    A(f"""v_lshrrev_b32 v{t}, 2, v{vL}
    v_lshlrev_b32 v{t}, 6, v{t}
    v_and_b32 v99, 3, v{vL}
    v_lshl_add_u32 v{t}, v99, 3, v{t}
    v_add_u32 v242, s{sWB}, v{t}
    v_lshl_add_u32 v99, v{vQ}, 8, v242""")


def fmt_body():
    for i in range(2):
        A(f'ds_read_b64_tr_b16 {ar(4 * i, 2)}, v99 offset:{BIG + B_W1 + 32 * i}')
        A(f'ds_read_b64_tr_b16 {ar(2 + 4 * i, 2)}, v99 offset:{BIG + B_W1 + 32 * i + 256}')
    for i in range(2):
        A(f'ds_read_b64_tr_b16 {ar(8 + 4 * i, 2)}, v242 offset:{BIG + B_W2 + 32 * i}')
        A(f'ds_read_b64_tr_b16 {ar(10 + 4 * i, 2)}, v242 offset:{BIG + B_W2 + 32 * i + 1024}')
    for i in range(4):
        A(f'buffer_store_dwordx4 {ar(4 * i, 4)}, v{vLW}, {srd(S_WS)}, s{sW1ST if i < 2 else sW2ST} offen offset:{1024 * (i & 1)} sc1')


def w_prep():
    A(f"""s_mul_i32 s{sW2O}, s{sW}, {12 * 40960}
    s_and_b32 s{sT0}, s{sJ}, {3 if OPT['emu'] & 1 else 7}
    s_mul_i32 s{sT0}, s{sT0}, 5120
    s_add_u32 s{sW2O}, s{sW2O}, s{sT0}
    s_add_u32 s{sW2ST}, s{sW2O}, {WS_W2P}
    s_mul_i32 s{sW1ST}, s{sJ}, 40960
    s_mul_i32 s{sT0}, s{sW}, 10240
    s_add_u32 s{sW1ST}, s{sW1ST}, s{sT0}
    s_add_u32 s{sW1ST}, s{sW1ST}, {WS_W1P}""")


def w1_prep():
    t = TMP
    A(f"""v_lshrrev_b32 v{t}, 3, v{vL}
    v_and_b32 v{t + 1}, 2, v{t}
    v_and_b32 v{t + 2}, 7, v{vL}
    v_xor_b32 v{t + 1}, v{t + 1}, v{t + 2}
    v_mul_u32_u24 v{t}, 3072, v{t}
    v_lshl_add_u32 v{vW1}, v{t + 1}, 4, v{t}
    v_xor_b32 v{vW1 + 1}, 64, v{vW1}
    v_add_u32 v{vW1 + 1}, {8 * 3072}, v{vW1 + 1}
    s_mul_i32 s{sW1O}, s{sW}, {160 * 3072}
    s_lshl_b32 s{sT1}, s{sCA}, 6
    {f's_and_b32 s{sT1}, s{sT1}, 0x5ff' if OPT['emu'] & 2 else ''}
    s_add_u32 s{sW1O}, s{sW1O}, s{sT1}""")


def w1_dma():
    for n in range(20):
        A(f's_add_u32 m0, s{sWB}, {BIG + 1024 * n}')
        if n and n % 2 == 0:
            A(f's_add_u32 s{sW1O}, s{sW1O}, {16 * 3072}')
        A(f'buffer_load_dwordx4 v{vW1 + (n & 1)}, {srd(S_W1)}, s{sW1O} offen lds')


def wb_dma():
    for n in range(10):
        A(f's_add_u32 m0, s{sWB}, {BIG + 20480 + 1024 * n}')
        A(f's_add_u32 s{sW1E}, s{sW1ST}, {1024 * n}')
        A(f'buffer_load_dwordx4 v{vLW}, {srd(S_WS)}, s{sW1E} offen sc1 lds')


KA = [k for u in range(2) for k in range(12) if k % 3 == u] if OPT['t3'] else [k for k in range(12) if k % 3 < 2]
KB = [k for k in range(12) if k % 3 == 2]


def w2_load():
    for kl in KA + KB:
        for nt in range(5):
            if nt in (0, 4):
                A(f's_add_u32 s{sW2O}, s{sW2ST}, {40960 * kl + 1024 * nt}')
            A(f'buffer_load_dwordx4 {ar((kl * 5 + nt) * 4, 4)}, v{vLW}, {srd(S_WS)}, s{sW2O} offen offset:{1024 * (nt & 3)} sc1')


F_RAW = 200
F_W = 216
vFA = 196


def filt_prep():
    t = TMP
    A(f'''s_mul_i32 s{sT0}, s{sG}, 20
    s_sub_u32 s{sT1}, 623, s{sT0}
    s_mul_i32 s{sT3}, s{sW}, 5
    s_sub_u32 s{sT4}, 15, s{sT3}
    s_cmp_lt_u32 s{sG}, 16
    s_cselect_b32 s{sT0}, s{sT0}, s{sT1}
    s_cselect_b32 s{sT2}, 1, -1
    s_cselect_b32 s{sT3}, s{sT3}, s{sT4}
    s_add_u32 s{sT4}, s{sT0}, s{sK1}
    s_and_b32 s{sT4}, s{sT4}, 1
    s_add_u32 s{sFSH}, s{sT3}, s{sT4}
    s_sub_u32 s{sT0}, s{sT0}, s{sT4}
    s_lshl_b32 s{sT5}, s{sW}, 9
    s_add_u32 s{sT5}, s{sT5}, s{sK1}
    s_movk_i32 s{sT6}, 321''')
    for i in range(3):
        A(f'''v_add_u32 v{t}, {64 * i}, v{vL}
        v_mul_u32_u24 v{t + 1}, 171, v{t}
        v_lshrrev_b32 v{t + 1}, 9, v{t + 1}
        v_mad_i32_i24 v{t + 2}, v{t + 1}, -3, v{t}
        v_lshl_add_u32 v{t + 1}, v{t + 1}, 3, s{sT5}
        v_mul_i32_i24 v{t + 1}, s{sT2}, v{t + 1}
        v_and_b32 v{t + 1}, 2047, v{t + 1}
        v_lshl_add_u32 v{t + 2}, v{t + 2}, 3, s{sT0}
        v_mad_u32_u24 v{t + 1}, v{t + 1}, s{sT6}, v{t + 2}
        v_lshlrev_b32 v{vFA + i}, 1, v{t + 1}''')


def filt_dma():
    for p, s_ in enumerate((S_WR, S_WI)):
        for i in range(3):
            A(f's_add_u32 m0, s{sWB}, {BIG + B_F + 3072 * p + 1024 * i}')
            A(f'buffer_load_dwordx4 v{vFA + i}, {srd(s_)}, 0 offen lds')


def filt_finish():
    t = TMP + 4
    sc = 1.0 / (2048.0 * 640.0)
    A(f'''s_lshr_b32 s{sT0}, s{sFSH}, 1
    s_lshl_b32 s{sT0}, s{sT0}, 2
    s_add_u32 s{sT0}, s{sT0}, {BIG + B_F}
    s_and_b32 s{sFSH}, s{sFSH}, 1
    s_lshl_b32 s{sFSH}, s{sFSH}, 4
    v_mul_u32_u24 v{t}, 30720, v{vQ}
    v_mul_u32_u24 v{t + 1}, 48, v{vL15}
    v_add3_u32 v{vFA}, v{t}, v{t + 1}, s{sT0}
    v_add_u32 v{vFA + 1}, 1536, v{vFA}
    v_add_u32 v{vFA + 2}, 3072, v{vFA}
    v_add_u32 v{vFA + 3}, {3072 + 1536}, v{vFA}''')
    for j in range(4):
        for p in range(2):
            o = 192 * (j & 1)
            A(f'ds_read2_b32 {vr(F_RAW + 4 * j + 2 * p, 2)}, v{vFA + 2 * p + (j >> 1)} offset0:{o} offset1:{o + 1}')
    A(f'''s_cmp_lt_u32 s{sG}, 16
    s_cselect_b64 vcc, -1, 0
    s_cselect_b32 s{sT3}, 0, 0x80000000
    s_mov_b32 s{sT0}, {f2u(sc)}
    s_mov_b32 s{sT1}, {f2u(2 * sc)}
    s_xor_b32 s{sT2}, s{sT0}, s{sT3}
    s_xor_b32 s{sT3}, s{sT1}, s{sT3}''')
    for j in range(4):
        for p in range(2):
            r = F_RAW + 4 * j + 2 * p
            A(f'''v_lshrrev_b64 {vr(r, 2)}, s{sFSH}, {vr(r, 2)}
            v_lshlrev_b32 v{t}, 16, v{r}
            v_lshlrev_b32 v{t + 1}, 16, v{r + 1}
            v_and_b32 v{t + 2}, 0xffff0000, v{r}
            v_cndmask_b32 v{t + 3}, v{t + 1}, v{t}, vcc
            v_cndmask_b32 v{t + 4}, v{t}, v{t + 1}, vcc
            v_mul_f32 v{F_W + 8 + 4 * p + j}, s{sT1 + 2 * p}, v{t + 2}
            v_mul_f32 v{F_W + 4 * p + j}, s{sT0 + 2 * p}, v{t + 3}
            v_mul_f32 v{F_W + 16 + 4 * p + j}, s{sT1 + 2 * p}, v{t + 4}''')


X_RAW = 60
X_N = 72
K1_M1 = 100
K1_M2 = 124
MODR = 24
K1A = 200
aMX, aMWX, aMW, aADD, aMR, aEW, aER, aST = K1A, K1A + 1, K1A + 2, K1A + 4, K1A + 5, K1A + 8, K1A + 11, K1A + 14


def x1_issue():
    A(f'''s_lshl_b32 s{sT0}, s{sW}, 9
    s_add_u32 s{sT0}, s{sT0}, s{sME}
    s_mul_i32 s{sT0}, s{sT0}, 1280
    s_add_u32 s{sT1}, s{sT0}, {256 * 1280}
    v_lshlrev_b32 v{TMP + 7}, 2, v{vH}
    v_lshl_add_u32 v{TMP + 7}, v{vL31}, 3, v{TMP + 7}
    buffer_load_dwordx4 {vr(X_RAW, 4)}, v{vL16}, {srd(S_X)}, s{sT0} offen
    buffer_load_dwordx4 {vr(X_RAW + 4, 4)}, v{vL16}, {srd(S_X)}, s{sT1} offen
    buffer_load_dword v{X_RAW + 8}, v{TMP + 7}, {srd(S_X)}, s{sT0} offen offset:1024
    buffer_load_dword v{X_RAW + 9}, v{TMP + 7}, {srd(S_X)}, s{sT1} offen offset:1024''')


def k1_const_a():
    t = TMP
    A(f'''v_lshrrev_b32 v{t}, 3, v{vL31}
    v_cvt_f32_u32 v{t}, v{t}
    v_mul_f32 v{t}, {f2u(0.4)}, v{t}
    v_and_b32 v{t + 1}, 7, v{vL}
    v_cvt_f32_u32 v{t + 1}, v{t + 1}
    v_mul_f32 v{t + 1}, {f2u(0.125)}, v{t + 1}
    v_cvt_f32_u32 v{t + 2}, v{vH}
    v_mul_f32 v{t + 2}, v{t + 2}, v{t}
    v_and_b32 v{t + 10}, 1, v{vL}
    v_mul_u32_u24 v{t + 10}, 0x8000, v{t + 10}
    v_lshl_or_b32 v{t + 10}, v{t + 10}, 16, v{t + 10}''')
    for tau in range(3):
        fmamk(t + 3, t, 2 * tau, t + 2)
        for p in range(2):
            fmamk(t + 4, t + 1, 2 * p, t + 3)
            fmamk(t + 5, t + 1, 2 * p + 1, t + 3)
            sincos(t + 4, t + 6, t + 8)
            sincos(t + 5, t + 7, t + 9)
            A(f'v_cvt_pk_bf16_f32 v{K1_M1 + 4 * tau + p}, v{t + 6}, v{t + 7}')
            A(f'v_cvt_pk_bf16_f32 v{K1_M1 + 12 + 4 * tau + p}, -v{t + 8}, -v{t + 9}')
    A('s_mov_b32 exec_lo, 0')
    for p in range(2):
        A(f'v_mov_b32 v{K1_M1 + 8 + p}, 0')
        A(f'v_mov_b32 v{K1_M1 + 20 + p}, 0')
    A('s_mov_b32 exec_lo, -1')
    for k in range(6):
        for p in range(2):
            A(f'v_xor_b32 v{K1_M1 + 4 * k + 2 + p}, v{t + 10}, v{K1_M1 + 4 * k + p}')


def k1_const_b():
    t = 216
    A(f'''v_cvt_f32_u32 v{t}, v{vL31}
    v_lshlrev_b32 v{t + 1}, 4, v{vH}
    v_add_u32 v{t + 1}, s{sW}, v{t + 1}
    v_cvt_f32_u32 v{t + 1}, v{t + 1}
    v_mul_f32 v{t}, {f2u(1.0 / 128)}, v{t}
    v_mul_f32 v{t + 1}, v{t + 1}, v{t}
    v_and_b32 v{t + 10}, 1, v{vL}
    v_mul_u32_u24 v{t + 10}, 0x8000, v{t + 10}
    v_lshl_or_b32 v{t + 10}, v{t + 10}, 16, v{t + 10}''')
    for u in range(2):
        for jp in (0, 2):
            fmamk(t + 2, t, 4 * (8 * u + jp), t + 1)
            fmamk(t + 5, t, 4 * (8 * u + jp + 1), t + 1)
            sincos(t + 2, t + 3, t + 4)
            sincos(t + 5, t + 6, t + 7)
            for jj, e in ((jp, 3), (jp + 1, 6)):
                A(f'v_cvt_pk_bf16_f32 v{K1_M2 + 4 * u + jj}, v{t + e}, v{t + e + 1}')
                A(f'v_cvt_pk_bf16_f32 v{K1_M2 + 16 + 4 * u + jj}, -v{t + e + 1}, v{t + e}')
    for p in range(2):
        for k in range(8):
            A(f'v_xor_b32 v{K1_M2 + 16 * p + 8 + k}, v{t + 10}, v{K1_M2 + 16 * p + k}')


def ln1():
    t = TMP
    AD = 92
    A(f'''v_mul_u32_u24 v{t}, 3, v{vL}
    v_lshl_add_u32 v{t + 1}, v{vL15}, 4, s{sWB}''')
    for k in range(5):
        A(f'v_add_u32 v{t + 2}, {k}, v{t}')
        mod5(t + 2, t + 2, t + 3)
        A(f'v_lshl_add_u32 v{AD + k}, v{t + 2}, 10, v{t + 1}')
    A(f'''v_lshl_add_u32 v{t + 1}, v{vL31}, 3, s{sWB}
    v_lshl_add_u32 v{t + 1}, v{vH}, 9, v{t + 1}
    v_lshl_add_u32 v{t}, v{vL31}, 1, v{vH}''')
    for e in range(2):
        A(f'v_lshl_add_u32 v{t + 2}, v{t}, 1, {2 + e}')
        mod5(t + 2, t + 2, t + 3)
        A(f'v_lshl_add_u32 v{AD + 5 + e}, v{t + 2}, 10, v{t + 1}')
    for r in range(2):
        for k in range(4):
            unpack(X_N + 4 * k + r, X_N + 4 * k + 2 + r, X_RAW + 4 * r + k)
        unpack(X_N + 16 + r, X_N + 18 + r, X_RAW + 8 + r)
    pk('add', t, X_N, X_N + 2)
    pk('mul', t + 2, X_N, X_N)
    for e in range(1, 10):
        if e > 1:
            pk('add', t, t, X_N + 2 * e)
        pk('fma', t + 2, X_N + 2 * e, X_N + 2 * e, t + 2)
    A(f'''v_permlane32_swap_b32 v{t}, v{t + 1}
    v_permlane32_swap_b32 v{t + 2}, v{t + 3}
    v_add_f32 v{t}, v{t}, v{t + 1}
    v_add_f32 v{t + 2}, v{t + 2}, v{t + 3}
    v_permlane16_swap_b32 v{t}, v{t + 2}
    v_add_f32 v{t}, v{t}, v{t + 2}''')
    for r in (8, 4, 2, 1):
        A(f'v_add_f32_dpp v{t}, v{t}, v{t} row_ror:{r} row_mask:0xf bank_mask:0xf')
    A(f'v_mul_f32 v{t}, {f2u(1.0 / 640)}, v{t}')
    for k in range(4):
        A(f'v_readlane_b32 s{sT0 + k}, v{t}, {16 * k}')
    for r in range(2):
        A(f'v_mov_b32 v{t + 2 + r}, s{sT0 + 2 * r}')
    for r in range(2):
        A(f'v_fma_f32 v{t + r}, -v{t + 2 + r}, v{t + 2 + r}, s{sT1 + 2 * r}')
    for r in range(2):
        A(f'v_max_f32 v{t + r}, 0, v{t + r}')
    for r in range(2):
        A(f'v_add_f32 v{t + r}, {f2u(1e-5)}, v{t + r}')
    for r in range(2):
        A(f'v_rsq_f32 v{t + r}, v{t + r}')
    A(f'''s_lshl_b32 s{sT0}, s{sW}, 8
    s_add_u32 s{sT0}, s{sT0}, {BIG + B_N}''')
    pk('mul', t + 2, t + 2, t)
    for e in range(10):
        pk('fma', X_N + 2 * e, X_N + 2 * e, t, t + 2, mods='neg_lo:[0,0,1] neg_hi:[0,0,1]')
        if e < 8:
            A(f'ds_write_b64 v{AD + e % 5}, {vr(X_N + 2 * e, 2)} offset:{BIG + B_N + (e & 3) * 256 + (e >> 2) * 8}')
        else:
            A(f'ds_write_b64 v{AD + 5 + e - 8}, {vr(X_N + 2 * e, 2)} offset:{BIG + B_N + (e - 8) * 256}')
    A(f'''v_lshl_add_u32 v{t + 1}, v{vL31}, 3, s{sT0}
    v_lshl_add_u32 v{t}, v{vH}, 10, v{t + 1}
    s_waitcnt lgkmcnt(0)
    s_barrier''')
    for tau in range(3):
        ad = t if tau < 2 else t + 1
        for p in (0, 2):
            A(f'ds_read2st64_b64 {vr(X_N + 8 * tau + 2 * p, 4)}, v{ad} offset0:{4 * tau + 60 * p} offset1:{4 * tau + 60 * p + 60}')


def x_keep():
    for k in range(4):
        A(f'v_permlane32_swap_b32 v{X_RAW + k}, v{X_RAW + 4 + k}')
    A(f'v_permlane32_swap_b32 v{X_RAW + 8}, v{X_RAW + 9}')
    for k in range(10):
        A(f'v_accvgpr_write_b32 a{240 + k}, v{X_RAW + k}')


def k1_addr():
    t = TMP + 4
    A(f'''s_lshl_b32 s{sT0}, s{sW}, 8
    s_add_u32 s{sT0}, s{sT0}, 4096
    s_mov_b32 s{sT1}, {L_M1}
    v_lshl_add_u32 v{t}, v{vL15}, 4, s{sT0}
    v_mul_u32_u24 v{t + 1}, {MP}, v{vQ}
    v_add_u32 v{aMX}, v{t}, v{t + 1}
    v_lshrrev_b32 v{t}, 2, v{t}
    v_and_b32 v{t + 1}, 1, v{vQ}
    v_lshl_add_u32 v{t + 1}, v{t + 1}, 1, v{vH}
    v_mul_u32_u24 v{t + 1}, 1280, v{t + 1}
    v_add3_u32 v{aMWX}, v{t}, v{t + 1}, s{sT1}
    v_lshl_add_u32 v{aMW}, v0, 2, s{sT1}
    v_cmp_lt_u32 vcc, 159, v0
    v_cndmask_b32 v{aADD}, 0, 1.0, vcc
    v_lshl_add_u32 v{t}, v{vL31}, 2, s{sW}
    v_mul_u32_u24 v{t + 1}, 3, v{t}
    s_mul_i32 s{sT0}, s{sW}, 1280
    s_add_u32 s{sT0}, s{sT0}, s{sT1}
    v_lshl_add_u32 v{t}, v{vL31}, 2, s{sT0}
    v_lshl_add_u32 v{t + 2}, v{vH}, 1, v{t + 1}''')
    for tau in range(3):
        A(f'v_add_u32 v{t + 3}, {4 * tau}, v{t + 2 if tau < 2 else t + 1}')
        mod5(t + 3, t + 3, t + 4)
        A(f'v_lshl_add_u32 v{aMR + tau}, v{t + 3}, 7, v{t}')
    for p in range(4):
        A(f's_mov_b32 s{sLD + p}, {WS_MOD + MP * p}')


aSX, sSK, sCH = 232, 81, 97


def k1_addr2():
    t = 228
    A(f'''s_mul_i32 s{sT0}, s{sW}, 6144
    s_add_u32 s{sT0}, s{sT0}, {L_X1E}
    v_lshl_add_u32 v{aEW}, v{vL31}, 3, s{sT0}
    v_lshl_add_u32 v{aEW}, v{vH}, 10, v{aEW}
    v_add_u32 v{aEW + 1}, 2048, v{aEW}
    v_add_u32 v{aEW + 2}, 4096, v{aEW}
    v_lshrrev_b32 v{t}, 5, v0
    v_lshlrev_b32 v{t + 1}, 8, v{t}''')
    for c in range(3):
        A(f'''v_add_u32 v{t + 2}, {13 * c}, v{vL31}
        v_and_b32 v{t + 2}, 31, v{t + 2}
        v_lshl_add_u32 v{t + 2}, v{t + 2}, 3, v{t + 1}
        v_add_u32 v{aER + c}, {L_X1E + 2048 * c}, v{t + 2}''')
    A(f'''v_lshlrev_b32 v{t + 1}, 4, v{vL31}
    v_sub_u32 v{t + 2}, 8, v{t}
    v_and_b32 v{t + 2}, 7, v{t + 2}
    v_lshl_add_u32 v{aST + 1}, v{t + 2}, 11, v{t + 1}
    v_lshl_add_u32 v{aST}, v{t}, 11, v{t + 1}
    s_mul_i32 s{sST}, s{sME}, {BS}
    s_add_u32 s{sST}, s{sST}, {WS_T}
    v_cmp_gt_u32 {sr(sM1, 2)}, 19, v{vL31}
    v_cmp_gt_u32 {sr(sM2, 2)}, 6, v{vL31}''')


def mod1_loads():
    s = ''
    for p in range(4):
        s += f'buffer_load_dwordx4 {vr(MODR + 4 * p, 4)}, v{vT16}, {srd(S_WS)}, s{sLD + p} offen sc1\n'
    s += f'buffer_load_dwordx4 {vr(MODR + 16, 4)}, v{aMX}, {srd(S_WS)}, s{sLD} offen sc1\n'
    return s


def bytecheck(base, n, t):
    c = ''
    for g in range(n):
        r = base + 4 * g
        for k in range(4):
            c += f'v_xor_b32 v{r + k}, s{sTB + k}, v{r + k}\n'
        if g == 0:
            c += f'v_or3_b32 v{t}, v{r}, v{r + 1}, v{r + 2}\nv_or_b32 v{t}, v{t}, v{r + 3}\n'
        else:
            c += f'v_or3_b32 v{t}, v{t}, v{r}, v{r + 1}\nv_or3_b32 v{t}, v{t}, v{r + 2}, v{r + 3}\n'
    return c + f'v_and_b32 v{t}, 0xff, v{t}\nv_cmp_ne_u32 vcc, 0, v{t}\n'


def k1_poll():
    poll_check('mod1', mod1_loads(), bytecheck(MODR, 5, TMP))
    stamp('mod1')


def round_add(r, add, t):
    A(f'v_cvt_pk_bf16_f32 v{t}, v{r}, v{r + 1}')
    A(f'v_cvt_pk_bf16_f32 v{t + 1}, v{r + 2}, v{r + 3}')
    unpack(r, r + 1, t)
    unpack(r + 2, r + 3, t + 1)
    if add is None:
        return
    for p in (0, 2):
        pk('add', r + p, r + p, add, mods='op_sel_hi:[1,0]')
    A(f'v_cvt_pk_bf16_f32 v{t}, v{r}, v{r + 1}')
    A(f'v_cvt_pk_bf16_f32 v{t + 1}, v{r + 2}, v{r + 3}')
    unpack(r, r + 1, t)
    unpack(r + 2, r + 3, t + 1)


def sum4(r):
    for p in (0, 2):
        pk('add', r + p, r + p, r + 4 + p)
        pk('add', r + 8 + p, r + 8 + p, r + 12 + p)
    for p in (0, 2):
        pk('add', r + p, r + p, r + 8 + p)


def radix4(z, P, inverse):
    pk('add', P, z, z + 4)
    pk('add', P + 2, z, z + 4, mods=NEG1)
    pk('add', P + 4, z + 2, z + 6)
    pk('add', P + 6, z + 2, z + 6, mods=NEG1)
    pk('add', z, P, P + 4)
    pk('add', z + 4, P, P + 4, mods=NEG1)
    a, b = ('neg_lo', 'neg_hi') if inverse else ('neg_hi', 'neg_lo')
    pk('add', z + 2, P + 2, P + 6, mods=f'op_sel:[0,1] op_sel_hi:[1,0] {a}:[0,1]')
    pk('add', z + 6, P + 2, P + 6, mods=f'op_sel:[0,1] op_sel_hi:[1,0] {b}:[0,1]')


def k1_head():
    t = TMP
    x = MODR + 16
    A(f'''v_permlane32_swap_b32 v{x}, v{x + 1}
    v_permlane32_swap_b32 v{x + 2}, v{x + 3}''')
    sum4(MODR)
    A(f'''v_add_f32 v{x}, v{x}, v{x + 1}
    v_add_f32 v{x + 2}, v{x + 2}, v{x + 3}''')
    round_add(MODR, aADD, t)
    A(f'''v_permlane16_swap_b32 v{x}, v{x + 2}
    ds_write2st64_b32 v{aMW}, v{MODR}, v{MODR + 1} offset0:0 offset1:5
    ds_write2st64_b32 v{aMW}, v{MODR + 2}, v{MODR + 3} offset0:10 offset1:15
    v_add_f32 v{x}, v{x}, v{x + 2}
    v_cvt_pk_bf16_f32 v{x}, v{x}, v{x}
    v_lshlrev_b32 v{x}, 16, v{x}
    v_add_f32 v{x}, 1.0, v{x}
    v_cvt_pk_bf16_f32 v{x}, v{x}, v{x}
    v_lshlrev_b32 v{x}, 16, v{x}
    ds_write_b32 v{aMWX}, v{x}
    .fill {OPT['g1']}''')
    fine(1, '1a_wr')
    A('s_waitcnt lgkmcnt(0)\ns_barrier')
    fine(1, '1b_bar')


def k1_main():
    t = TMP
    OPA = 60
    DRE, DIM = 24, 40
    for tau in range(3):
        A(f'ds_read2_b32 {vr(t + 2 * tau, 2)}, v{aMR + tau} offset0:0 offset1:160')
    A(f'.fill {OPT["g2"]}')
    for tau in range(3):
        for p in range(4):
            n = X_N + 8 * tau + 2 * p
            pk('fma', n, n, t + 2 * tau, t + 2 * tau, mods='op_sel:[0,1,0] op_sel_hi:[1,1,0]')
    O = 76

    def cva(tau):
        for p in range(4):
            n = X_N + 8 * tau + 2 * p
            A(f'v_cvt_pk_bf16_f32 v{OPA + 4 * tau + p}, v{n}, v{n + 1}')
    cva(0)
    A('.fill 8')
    for tau in range(3):
        A(f'v_mfma_f32_32x32x16_bf16 {vr(DRE, 16)}, {vr(OPA + 4 * tau, 4)}, {vr(K1_M1 + 4 * tau, 4)}, {vr(DRE, 16) if tau else 0}')
        if tau < 2:
            cva(tau + 1)
        A(f'.fill {8 if tau < 2 else 24}')
        A(f'v_mfma_f32_32x32x16_bf16 {vr(DIM, 16)}, {vr(OPA + 4 * tau, 4)}, {vr(K1_M1 + 12 + 4 * tau, 4)}, {vr(DIM, 16) if tau else 0}')
        A(f'.fill {24 if tau < 2 else 32}')
    fine(1, '1c_st1')
    for m in range(4):
        A(f'v_mov_b32 v{O + 4 * m + 3}, s{sTAG}')
    OPB = 60
    ERE, EIM = 100, 24

    def cvb(u):
        for jj in range(4):
            A(f'v_cvt_pk_bf16_f32 v{OPB + 4 * u + jj}, v{DRE + 4 * u + jj}, v{DIM + 4 * u + jj}')

    def wr(E, im):
        return [f'ds_write2_b32 v{aEW + (j >> 2)}, v{E + j}, v{E + j + 1} offset0:{64 * (j & 3) + im} offset1:{64 * (j & 3) + 64 + im}' for j in range(0, 12, 2)]
    cvb(0)
    A('.fill 8')
    for u in range(4):
        A(f'v_mfma_f32_32x32x16_bf16 {vr(ERE, 16)}, {vr(OPB + 4 * u, 4)}, {vr(K1_M2 + 4 * u, 4)}, {vr(ERE, 16) if u else 0}')
        if u < 3:
            cvb(u + 1)
        A('.fill 8' if u < 3 else '.fill 24 5')
    w = wr(ERE, 0)
    for u in range(4):
        A(f'v_mfma_f32_32x32x16_bf16 {vr(EIM, 16)}, {vr(OPB + 4 * u, 4)}, {vr(K1_M2 + 16 + 4 * u, 4)}, {vr(EIM, 16) if u else 0}')
        if u == 0:
            A('.fill 24 5')
        else:
            A(w.pop(0))
            A(w.pop(0))
            A('.fill 12' if u < 3 else '.fill 40')
    fine(1, '1d_st2')
    for x in wr(EIM, 1)[:1 if OPT['cutx'] & 8 else 6]:
        A(x)
    A(f'.fill {OPT["g3"]}')
    fine(1, '1e_wr')
    A('s_waitcnt lgkmcnt(0)\ns_barrier')
    fine(1, '1f_bar')
    Z = 24
    for c in (1, 2, 0):
        for b2 in (0, 2, 1, 3):
            A(f'ds_read_b64 {vr(Z + 8 * c + 2 * b2, 2)}, v{aER + c} offset:{6144 * b2}')
    fine(1, '1g_rd')
    P = 48
    for c in (1, 2, 0):
        z = Z + 8 * c
        if not OPT['cutx'] & 8:
            radix4(z, P, False)
        if c == 0:
            fine(1, '1h_rx')
            for m in range(4):
                A(f'v_cvt_pk_bf16_f32 v{O + 4 * m}, v{z + 2 * m}, v{z + 2 * m + 1}')
                A(f'buffer_store_dwordx4 {vr(O + 4 * m, 4)}, v{aST + (m >> 1)}, {srd(S_WS)}, s{sST} offen offset:{512 * m} sc1')
        else:
            for k in range(4):
                A(f'v_cvt_pk_bf16_f32 v{56 + k}, v{z + 2 * k}, v{z + 2 * k + 1}')
            r0 = 1 if c == 1 else 3
            for m in range(4):
                A(f'v_cndmask_b32 v{O + 4 * m + c}, v{56 + (m - r0) % 4}, v{56 + (m - r0 - 1) % 4}, {sr(sM1 if c == 1 else sM2, 2)}')


K2C = 100
C_M1, C_TW1, C_M2, C_M3, C_TW2, C_M4 = [K2C + 8 * i for i in range(6)]
K2_IN = 24
vK2A, aIW, aIR, aOR, aOW, vTG = 148, 149, 150, 151, 152, 154


def k2_const():
    t = TMP
    A(f'''v_cvt_f32_u32 v{t}, v{vL15}
    v_cvt_f32_u32 v{t + 1}, v{vQ}
    v_cvt_f32_u32 v{t + 2}, s{sK1}
    v_mul_f32 v{t + 1}, 4.0, v{t + 1}''')
    fmamk(t + 3, t, 8, t + 2)
    A(f'v_mul_f32 v{t + 3}, {f2u(1.0 / 128)}, v{t + 3}')
    A(f'v_mul_f32 v{t + 4}, {f2u(1.0 / 16)}, v{t}')
    A(f'v_mul_f32 v{t + 5}, {f2u(1.0 / 128)}, v{t}')
    A(f'v_mul_f32 v{t + 5}, v{t + 5}, v{t + 2}')
    for jj in range(4):
        A(f'v_add_f32 v{t + 6}, {f2u(float(jj))}, v{t + 1}')
        A(f'v_mul_f32 v{t + 7}, v{t + 6}, v{t + 3}')
        A(f'v_mul_f32 v{t + 8}, {f2u(1.0 / 16)}, v{t + 7}')
        A(f'v_mul_f32 v{t + 9}, v{t + 6}, v{t + 4}')
        A(f'v_add_f32 v{t + 10}, v{t + 9}, v{t + 5}')
        A(f'v_mul_f32 v{t + 11}, {f2u(1.0 / 16)}, v{t + 10}')
        sincos(t + 7, t + 12, t + 13)
        sincos(t + 8, C_TW1 + jj, C_TW1 + 4 + jj)
        A(f'v_cvt_pk_bf16_f32 v{C_M1 + jj}, v{t + 12}, v{t + 13}')
        A(f'v_cvt_pk_bf16_f32 v{C_M1 + 4 + jj}, -v{t + 13}, v{t + 12}')
        sincos(t + 9, t + 12, t + 13)
        sincos(t + 10, t + 14, t + 15)
        sincos(t + 11, C_TW2 + jj, C_TW2 + 4 + jj)
        A(f'v_cvt_pk_bf16_f32 v{C_M2 + jj}, v{t + 12}, v{t + 13}')
        A(f'v_cvt_pk_bf16_f32 v{C_M2 + 4 + jj}, -v{t + 13}, v{t + 12}')
        A(f'v_cvt_pk_bf16_f32 v{C_M3 + jj}, v{t + 12}, -v{t + 13}')
        A(f'v_cvt_pk_bf16_f32 v{C_M3 + 4 + jj}, v{t + 13}, v{t + 12}')
        A(f'v_cvt_pk_bf16_f32 v{C_M4 + jj}, v{t + 14}, -v{t + 15}')
        A(f'v_cvt_pk_bf16_f32 v{C_M4 + 4 + jj}, v{t + 15}, v{t + 14}')


def k2_loads():
    return ''.join(f'buffer_load_dwordx4 {vr(K2_IN + 4 * j, 4)}, v{vK2A}, {srd(S_WS)}, s{sLD + j} offen sc1\n' for j in range(4))


def k2_addr():
    t = TMP
    A(f'''v_lshrrev_b32 v{t}, 2, v{vL}
    v_mul_u32_u24 v{t}, {BS}, v{t}
    v_and_b32 v{t + 1}, 3, v{vL}
    v_lshl_add_u32 v{vK2A}, v{t + 1}, 4, v{t}
    s_mul_i32 s{sT0}, s{sW}, {64 * BS}
    s_lshl_b32 s{sMODST}, s{sME}, 6
    s_add_u32 s{sT0}, s{sT0}, s{sMODST}
    s_add_u32 s{sLD}, s{sT0}, {WS_T}''')
    for j in range(1, 4):
        A(f's_add_u32 s{sLD + j}, s{sLD}, {16 * j * BS}')
    A(f'''v_mul_u32_u24 v{t}, 3104, v{t + 1}
    v_lshrrev_b32 v{t + 1}, 2, v0
    v_lshl_add_u32 v{t}, v{t + 1}, 4, v{t}
    s_mul_i32 s{sT0}, s{sW}, 3104
    v_add_u32 v{t + 1}, s{sT0}, v{vL16}
    v_add_u32 v{aOR}, {L_K2O}, v{t}
    v_add_u32 v{aOW}, {L_K2O}, v{t + 1}
    v_add_u32 v{aIW}, {L_K2I}, v{t}
    v_add_u32 v{aIR}, {L_K2I}, v{t + 1}
    s_mul_i32 s{sST}, s{sME}, {BS}
    s_lshl_b32 s{sT1}, s{sW}, 12
    s_add_u32 s{sST}, s{sST}, s{sT1}
    s_add_u32 s{sST}, s{sST}, {WS_TP}
    v_mov_b32 v{vTG}, s{sTAG}''')


def cmul(dre, dim, wr, wi, conj, tmp):
    for p in (0, 2):
        pk('mul', tmp + p, dre + p, wr + p)
        pk('mul', tmp + 4 + p, dim + p, wr + p)
    neg = 'neg_lo:[1,0,0] neg_hi:[1,0,0]'
    for p in (0, 2):
        pk('fma', tmp + p, dim + p, wi + p, tmp + p, mods='' if conj else neg)
        pk('fma', tmp + 4 + p, dre + p, wi + p, tmp + 4 + p, mods=neg if conj else '')


def k2_head():
    tg = [K2_IN + 4 * j + 3 for j in range(4)]
    poll_check('t', masked(k2_loads(), tg), tagcheck(tg, TMP))
    stamp('T')
    X = 40
    for c in range(3):
        cb, cs = c & ~1, c & 1
        for p in (0, 2):
            A(f'v_pk_mov_b32 {vr(X + 4 * c + p, 2)}, {vr(K2_IN + 4 * p + cb, 2)}, {vr(K2_IN + 4 * p + 4 + cb, 2)} op_sel:[{cs},{cs}]')
        A(f'ds_write_b128 v{aIW}, {vr(X + 4 * c, 4)} offset:{1024 * c}')
    fine(1, '2a_wr')
    A('s_waitcnt lgkmcnt(0)\ns_barrier')
    fine(1, '2b_bar')


def k2_main():
    X = 40
    OP = 24
    D = 40
    U = 64
    for c in range(3):
        A(f'ds_read_b128 {vr(OP + 4 * c, 4)}, v{aIR} offset:{1024 * c}')

    def mm(c, M, data_is_a):
        for p in range(2):
            a, b = (vr(OP + 4 * c, 4), vr(M + 4 * p, 4)) if data_is_a else (vr(M + 4 * p, 4), vr(OP + 4 * c, 4))
            A(f'v_mfma_f32_16x16x32_bf16 {vr(D + 8 * c + 4 * p, 4)}, {a}, {b}, 0')

    def mid(wr, wi, conj, M, data_is_a):
        for c in range(3):
            cmul(D + 8 * c, D + 8 * c + 4, wr(c), wi(c), conj, U + 8 * c)
        cv = [f'v_cvt_pk_bf16_f32 v{OP + 4 * c + jj}, v{U + 8 * c + jj}, v{U + 8 * c + 4 + jj}' for c in range(3) for jj in range(4)]
        for x in cv[:6]:
            A(x)
        cv = cv[6:]
        for c in range(3):
            for x in A.capture(lambda: mm(c, M, data_is_a)):
                A.items.append(x)
                for y in cv[:2]:
                    A(y)
                cv = cv[2:]
    fine(1, '2c_rd')
    for c in range(3):
        mm(c, C_M1, True)
    if not OPT['cutx'] & 1:
        mid(lambda c: C_TW1, lambda c: C_TW1 + 4, True, C_M2, False)
    mid(lambda c: F_W + 8 * c, lambda c: F_W + 8 * c + 4, False, C_M3, True)
    if not OPT['cutx'] & 1:
        mid(lambda c: C_TW2, lambda c: C_TW2 + 4, False, C_M4, False)
    fine(1, '2d_mm')
    for c in range(3):
        for jj in range(4):
            A(f'v_cvt_pk_bf16_f32 v{OP + 4 * c + jj}, v{D + 8 * c + jj}, v{D + 8 * c + 4 + jj}')
        A(f'ds_write_b128 v{aOW}, {vr(OP + 4 * c, 4)} offset:{1024 * c}')
    fine(1, '2e_wr')
    A('s_waitcnt lgkmcnt(0)\ns_barrier')
    fine(1, '2f_bar')
    for c in range(3):
        A(f'ds_read_b128 {vr(X + 4 * c, 4)}, v{aOR} offset:{1024 * c}')
    fine(1, '2g_rd')
    O = 64
    for j in range(4):
        jb, js = j & ~1, j & 1
        A(f'v_pk_mov_b32 {vr(O + 4 * j, 2)}, {vr(X + jb, 2)}, {vr(X + 4 + jb, 2)} op_sel:[{js},{js}]')
        A(f'v_pk_mov_b32 {vr(O + 4 * j + 2, 2)}, {vr(X + 8 + jb, 2)}, {vr(vTG, 2)} op_sel:[{js},0]')
        A(f'buffer_store_dwordx4 {vr(O + 4 * j, 4)}, v{vLT}, {srd(S_WS)}, s{sST} offen offset:{1024 * j} sc1')


def epoch_store():
    A(f'''s_cmp_eq_u32 s{sME}, 0
    s_cselect_b32 s{sBGO}, {WS_EPOCH}, {OOB}
    v_mov_b32 v{vBG + 3}, s{sTAG}
    buffer_store_dword v{vBG + 3}, off, {srd(S_WS)}, s{sBGO} sc1''')


K3_MA = 100
K3_MB = 132
K3_X = 156
K3_GA, K3_SB, K3_CB = 176, 196, 216
K3_IN = 24
vK3A, vK3B = 236, 237
M2R = 160
X3R = 88
B1R = 192


def side_loads():
    s = ''
    for p in range(4):
        s += f"""s_mov_b32 s{sBG2}, {WS_MOD + MP * p + 320 * 16}
        buffer_load_dwordx4 {vr(M2R + 4 * p, 4)}, v{vT16}, {srd(S_WS)}, s{sBG2} offen sc1
        buffer_load_dwordx4 {vr(M2R + 16 + 4 * p, 4)}, v{vBG + 2}, {srd(S_WS)}, s{sBG2} offen sc1
        """
    return s


def side_prep():
    t = TMP
    A(f"""s_and_b32 s{sT0}, s{sJ}, 7
    s_mul_i32 s{sT0}, s{sT0}, 320
    v_mov_b32 v{t}, s{sT0}
    v_cmp_lt_u32 vcc, 223, v0
    v_cndmask_b32 v{t}, 0, v{t}, vcc
    v_min_u32 v{t + 1}, {243 * 16}, v{vT16}
    v_add_u32 v{t}, v{t}, v{t + 1}
    v_add_u32 v{vBG + 2}, 4096, v{t}
    s_lshr_b32 s{sT0}, s{sT0}, 1
    v_lshl_add_u32 v{vBG + 1}, v{vL31}, 3, s{sT0}
    s_lshl_b32 s{sT0}, s{sCA}, 6
    s_lshl_b32 s{sT1}, s{sCB}, 6
    v_mov_b32 v{t}, s{sT0}
    v_mov_b32 v{t + 1}, s{sT1}
    v_cmp_gt_u32 vcc, 16, v{vL31}
    v_cndmask_b32 v{t}, v{t + 1}, v{t}, vcc
    v_lshl_add_u32 v{vBG}, v{vL15}, 3, v{t}""")


def b2_issue():
    A(f"""buffer_load_dwordx2 v[192:193], v{vBG + 1}, {srd(S_B2)}, 0 offen
    buffer_load_dwordx2 v[194:195], v{vBG}, {srd(S_B1)}, 0 offen""")


def side_finish():
    t = TMP
    poll_check('mod2', side_loads(), bytecheck(M2R, 8, t))
    A(f"""v_subrev_u32 v{t + 2}, 64, v0
    v_cmp_gt_u32 vcc, 160, v{t + 2}
    v_cndmask_b32 v{t + 2}, 0, 1.0, vcc
    v_add_u32 v{t + 5}, {L_M2}, v{vT16}""")
    for g in range(2):
        r = M2R + 16 * g
        sum4(r)
        round_add(r, t + 2 if g else None, t)
        if g:
            unpack(t + 6, t + 7, 192)
            unpack(t + 8, t + 9, 193)
            A(f'''v_mov_b32 v{t + 3}, {f2u(1.0 / GA)}
            v_cmp_lt_u32 vcc, 223, v0
            v_cndmask_b32 v{t + 2}, 1.0, v{t + 3}, vcc''')
            for p in (0, 2):
                pk('mul', t + 6 + p, t + 6 + p, r + p)
                pk('mul', r + p, r + p, t + 2, mods='op_sel_hi:[1,0]')
            A(f'''v_max_u32 v{t + 3}, {223 * 16}, v{vT16}
            v_add_u32 v{t + 3}, {L_M2 + 8192 - 223 * 16}, v{t + 3}
            ds_write_b128 v{t + 3}, {vr(t + 6, 4)}''')
        A(f'ds_write_b128 v{t + 5}, {vr(r, 4)} offset:{4096 * g}')
    unpack(t + 6, t + 7, 194)
    unpack(t + 8, t + 9, 195)
    A(f's_mov_b32 s{sT2}, {f2u(GA)}\ns_mov_b32 s{sT0}, {L_B1}')
    for p in (0, 2):
        pk('mul', t + 6 + p, t + 6 + p, sr(sT2, 2), mods='op_sel_hi:[1,0]')
    A(f'''v_lshl_add_u32 v{t + 3}, v{vL31}, 4, s{sT0}
    ds_write_b128 v{t + 3}, {vr(t + 6, 4)}''')
    for k in range(10):
        A(f'v_accvgpr_read_b32 v{X3R + k}, a{240 + k}')
    for k in range(10):
        unpack(K3_X + 2 * k, K3_X + 2 * k + 1, X3R + k)


def k3_const():
    t = TMP
    A(f'''v_lshlrev_b32 v{t}, 2, v{vL31}
    v_add_u32 v{t}, s{sW}, v{t}
    v_cvt_f32_u32 v{t}, v{t}
    v_mul_f32 v{t}, {f2u(1.0 / 128)}, v{t}
    v_cvt_f32_u32 v{t + 8}, v{vH}
    v_mul_f32 v{t + 8}, 4.0, v{t + 8}
    v_mul_f32 v{t + 1}, v{t + 8}, v{t}''')
    for u in range(4):
        for jp in (0, 2):
            fmamk(t + 2, t, 8 * u + jp, t + 1)
            fmamk(t + 5, t, 8 * u + jp + 1, t + 1)
            sincos(t + 2, t + 3, t + 4)
            sincos(t + 5, t + 6, t + 7)
            for jj, e in ((jp, 3), (jp + 1, 6)):
                A(f'v_cvt_pk_bf16_f32 v{K3_MA + 4 * u + jj}, v{t + e}, -v{t + e + 1}')
                A(f'v_cvt_pk_bf16_f32 v{K3_MA + 16 + 4 * u + jj}, v{t + e + 1}, v{t + e}')
    A(f'''v_lshrrev_b32 v{t}, 3, v{vL31}
    v_cvt_f32_u32 v{t}, v{t}
    v_mul_f32 v{t}, {f2u(0.4)}, v{t}
    v_and_b32 v{t + 1}, 7, v{vL}
    v_cvt_f32_u32 v{t + 1}, v{t + 1}
    v_mul_f32 v{t + 1}, {f2u(0.125)}, v{t + 1}
    v_mul_f32 v{t + 9}, v{t + 8}, v{t + 1}''')
    for jj in range(4):
        fmamk(t + 10, t + 1, jj, t + 9)
        for tau in range(3):
            fmamk(t + 2, t, tau, t + 10)
            sincos(t + 2, t + 3, t + 4)
            if tau:
                A(f'v_add_f32 v{t + 5}, {f2u(1.6 * tau)}, v{t + 10}')
                sincos(t + 5, t + 6, t + 7)
            A(f'v_cvt_pk_bf16_f32 v{K3_MB + 4 * tau + jj}, v{t + 3}, -v{t + 4}')
            if tau:
                A(f'v_cvt_pk_bf16_f32 v{K3_MB + 12 + 4 * tau + jj}, v{t + 6}, -v{t + 7}')
            else:
                A(f'v_mov_b32 v{K3_MB + 12 + jj}, v{K3_MB + jj}')


def k3_loads():
    return ''.join(f'buffer_load_dwordx4 {vr(K3_IN + 4 * m, 4)}, v{vK3A + (m >> 1)}, {srd(S_WS)}, s{sLD + m} offen sc1\n' for m in range(4))


def k3_ldaddr():
    t = TMP
    A(f'''v_lshrrev_b32 v{t}, 5, v0
    v_sub_u32 v{t + 1}, 8, v{t}
    v_and_b32 v{t + 1}, 7, v{t + 1}
    v_lshrrev_b32 v{t + 2}, 2, v{vL31}
    v_lshl_add_u32 v{t}, v{t}, 5, v{t + 2}
    v_lshl_add_u32 v{t + 1}, v{t + 1}, 5, v{t + 2}
    v_mul_u32_u24 v{t}, {BS}, v{t}
    v_mul_u32_u24 v{t + 1}, {BS}, v{t + 1}
    v_and_b32 v{t + 2}, 3, v{vL}
    v_lshl_add_u32 v{vK3A}, v{t + 2}, 4, v{t}
    v_lshl_add_u32 v{vK3B}, v{t + 2}, 4, v{t + 1}
    s_add_u32 s{sLD}, s{sMODST}, {WS_TP}''')
    for m in range(1, 4):
        A(f's_add_u32 s{sLD + m}, s{sLD}, {8 * m * BS}')


aWA, aRA, aYA = 8, 11, 12
aYR, aSEL, aX1 = 84, 86, 87
aRW, aRR, aY2, aMO = 89, 91, 92, 93
ST3 = 18
vEPS = 22
GK = 2.0 * 0.7978845608028654 * 1.4426950408889634
GA = (GK * 0.044715) ** (1.0 / 3.0)


def k3_addr():
    t = 95
    A(f'v_lshrrev_b32 v{t}, 5, v0')
    A(f'v_mul_u32_u24 v{t}, 144, v{t}')
    for c in range(3):
        A(f'''v_add_u32 v{t + 1}, {13 * c}, v{vL31}
        v_and_b32 v{t + 1}, 31, v{t + 1}
        v_lshl_add_u32 v{t + 1}, v{t + 1}, 2, v{t}
        v_add_u32 v{aWA + c}, {L_K3I + 8 * 144 * c}, v{t + 1}''')
    A(f'''s_mul_i32 s{sT0}, s{sW}, 3584
    s_add_u32 s{sT0}, s{sT0}, {L_K3I}
    v_mul_u32_u24 v{t}, 144, v{vL31}
    v_lshl_add_u32 v{t}, v{vH}, 4, v{t}
    v_add_u32 v{aRA}, s{sT0}, v{t}''')
    A(f'''v_lshl_add_u32 v{t}, v{vL31}, 2, s{sW}
    v_mul_u32_u24 v{t + 1}, 3, v{t}
    v_mul_u32_u24 v{t + 2}, 5120, v{vH}
    v_lshl_add_u32 v{t}, v{t}, 2, v{t + 2}
    v_add_u32 v{t}, {L_Y}, v{t}''')
    if OPT['ys']:
        A(f'v_and_b32 v{t + 4}, 16, v{vL}\nv_xor_b32 v{t}, v{t}, v{t + 4}')
    for a in range(5):
        A(f'v_add_u32 v{t + 2}, {2 * a}, v{t + 1}')
        mod5(t + 2, t + 2, t + 3)
        A(f'v_lshl_add_u32 v{aYA + a}, v{t + 2}, 9, v{t}')
    A(f'''s_mul_i32 s{sT0}, s{sW}, 2560
    s_add_u32 s{sT1}, s{sT0}, {L_Y}
    v_lshl_add_u32 v{aYR}, v{vL31}, 5, s{sT1}
    v_lshl_add_u32 v{aYR + 1}, v{vL31}, 4, s{sT1}
    {f'v_xor_b32 v{aYR + 1}, v{aYR + 1}, v{t + 4}' if OPT['ys'] else ''}
    v_and_b32 v{t + 4}, {8 if OPT['ys'] else 0}, v{vL}
    v_lshl_add_u32 v{aYR}, v{t + 4}, 1, v{aYR}
    v_xor_b32 v{aY2}, 16, v{aYR}
    s_mov_b32 s{sT1}, {L_M2}
    v_lshl_add_u32 v{aMO}, v{vL31}, 5, s{sT1}
    v_lshl_add_u32 v{aMO + 1}, v{vL31}, 4, s{sT1}
    v_mov_b32 v{t}, 0x01000c0c
    v_mov_b32 v{t + 1}, 0x03020c0c
    v_cmp_eq_u32 vcc, 1, v{vH}
    v_cndmask_b32 v{aSEL}, v{t}, v{t + 1}, vcc
    s_lshl_b32 s{sST + 3}, s{sW}, 9
    s_add_u32 s{sST + 3}, s{sST + 3}, s{sME}
    s_mul_i32 s{sST + 3}, s{sST + 3}, 1280
    s_mul_i32 s{sST}, s{sJ}, 10
    s_add_u32 s{sST}, s{sST}, s{sW}
    s_mul_i32 s{sST}, s{sST}, {BS}
    s_lshl_b32 s{sT1}, s{sCL}, 10
    s_add_u32 s{sST}, s{sST}, s{sT1}
    s_add_u32 s{sST}, s{sST}, {WS_Y2}
    s_add_u32 s{sST + 1}, s{sST}, {4 * BS}
    s_add_u32 s{sST + 2}, s{sST}, {8 * BS}
    s_cmp_lt_u32 s{sW}, 2
    s_cselect_b32 s{sST + 2}, s{sST + 2}, {OOB}
    v_mul_u32_u24 v{t}, {256 * 1280}, v{vH}
    v_lshl_add_u32 v{aX1}, v{vL31}, 4, v{t}
    v_lshl_add_u32 v{aX1 + 1}, v{vL31}, 3, v{t}''')
    A(f'''s_lshl_b32 s{sT2}, s{sW}, 1
    v_add_u32 v{t}, s{sT2}, v{vH}
    v_xor_b32 v{t + 1}, v{t}, v{vL31}
    v_and_b32 v{t + 1}, 7, v{t + 1}
    v_lshlrev_b32 v{t + 1}, 4, v{t + 1}
    v_lshl_add_u32 v{t + 1}, v{vL31}, 7, v{t + 1}
    v_add_u32 v{aRW}, {L_Y2}, v{t + 1}
    v_lshrrev_b32 v{t + 2}, 1, v{vL31}
    v_xor_b32 v{t + 3}, v{t}, v{t + 2}
    v_and_b32 v{t + 3}, 7, v{t + 3}
    v_lshlrev_b32 v{t + 3}, 4, v{t + 3}
    v_lshl_add_u32 v{t + 3}, v{t + 2}, 7, v{t + 3}
    v_and_b32 v{t + 2}, 1, v{vL}
    v_lshl_add_u32 v{t + 3}, v{t + 2}, 3, v{t + 3}
    v_add_u32 v{aRW + 1}, {L_Y2 + 64 * 128}, v{t + 3}
    v_lshrrev_b32 v{t + 2}, 3, v0
    v_xor_b32 v{t + 4}, v{t + 2}, v0
    v_and_b32 v{t + 4}, 7, v{t + 4}
    v_lshlrev_b32 v{t + 4}, 4, v{t + 4}
    v_lshl_add_u32 v{t + 4}, v{t + 2}, 7, v{t + 4}
    v_add_u32 v{aRR}, {L_Y2}, v{t + 4}
    v_mov_b32 v{vEPS}, {f2u(1e-5 / GA ** 2)}''')


def row_stats(b, t, scale=None):
    pk('add', t, b, b + 2)
    pk('mul', t + 2, b, b)
    for k in range(1, 10):
        if k > 1:
            pk('add', t, t, b + 2 * k)
        pk('fma', t + 2, b + 2 * k, b + 2 * k, t + 2)
    A(f'''v_add_f32 v{t}, v{t}, v{t + 1}
    v_add_f32 v{t + 2}, v{t + 2}, v{t + 3}
    v_permlane16_swap_b32 v{t}, v{t + 2}
    v_add_f32 v{t}, v{t}, v{t + 2}''')
    for r in (8, 4, 2, 1):
        A(f'v_add_f32_dpp v{t}, v{t}, v{t} row_ror:{r} row_mask:0xf bank_mask:0xf')
    A(f'''v_mul_f32 v{t + 1}, {f2u(1.0 / 640)}, v{t}
    v_mul_f32 v{t + 2}, {f2u(1.0 / 640)}, v{t}
    v_permlane16_swap_b32 v{t + 1}, v{t + 2}
    v_fma_f32 v{t}, -v{t + 1}, v{t + 1}, v{t + 2}
    v_max_f32 v{t}, 0, v{t}''')
    if scale is None:
        A(f'v_add_f32 v{t}, {f2u(1e-5)}, v{t}')
    else:
        A(f'v_fmamk_f32 v{t}, v{t}, {f2u(1.0 / scale ** 2)}, v{vEPS}')
    A(f'''v_rsq_f32 v{t}, v{t}
    v_mul_f32 v{t + 1}, v{t + 1}, v{t}''')


X1P = 72


def x1_store():
    sc = '' if OPT['xt'] else ' sc1'
    A(f'''buffer_store_dwordx4 {vr(X1P, 4)}, v{aX1}, {srd(S_OUT)}, s{sST + 3} offen{sc}
    buffer_store_dwordx4 {vr(X1P + 4, 4)}, v{aX1}, {srd(S_OUT)}, s{sST + 3} offen offset:512{sc}
    buffer_store_dwordx2 {vr(X1P + 8, 2)}, v{aX1 + 1}, {srd(S_OUT)}, s{sST + 3} offen offset:1024{sc}''')


def touch_out():
    A(f'''s_lshl_b32 s{sHC}, s{sW}, 9
    s_add_u32 s{sHC}, s{sHC}, s{sME}
    s_mulk_i32 s{sHC}, 1280
    v_min_u32 v251, 9, v{vL31}
    v_mul_u32_u24 v252, 2560, v{vH}
    v_add_lshl_u32 v251, v251, v252, 7
    buffer_load_dword v251, v251, {srd(S_OUT)}, s{sHC} offen''')


def k3_poll():
    tg = [K3_IN + 4 * m + 3 for m in range(4)]
    poll_check('tp', masked(k3_loads(), tg), tagcheck(tg, ST3))
    stamp('Tp')


MOE = OPT['mo'] and OPT['m2'] < 5


def mo_reads():
    mo = []
    for v, dst in enumerate((K3_GA, K3_SB, K3_CB)):
        for k in range(4):
            mo.append(f'ds_read_b128 {vr(dst + 4 * k, 4)}, v{aMO} offset:{2560 * v + 1024 * (k >> 1) + 16 * (k & 1)}')
        mo.append(f'ds_read_b128 {vr(dst + 16, 4)}, v{aMO + 1} offset:{2560 * v + 2048}')
    return mo


def ga_shift():
    if OPT['d2']:
        assert MOE
        A(f'v_sub_u32 v{aSEL}, 1, v{vH}\nv_lshlrev_b32 v{aSEL}, 4, v{aSEL}')
        for k in range(20):
            A(f'v_lshrrev_b32 v{K3_GA + k}, v{aSEL}, v{K3_GA + k}')


def k3_main():
    Z, P, Q = 40, 48, 56
    for c in range(3):
        if c == 0:
            src = [K3_IN + 4 * k for k in range(4)]
        else:
            r0 = 1 if c == 1 else 3
            for k in range(4):
                A(f'v_cndmask_b32 v{Q + k}, v{K3_IN + 4 * ((k + r0) % 4) + c}, v{K3_IN + 4 * ((k + r0 + 1) % 4) + c}, {sr(sM1 if c == 1 else sM2, 2)}')
            src = [Q + k for k in range(4)]
        z = Z + 20 * (c & 1)
        for k in range(4):
            unpack(z + 2 * k, z + 2 * k + 1, src[k])
        radix4(z, P, True)
        for k in (0, 1):
            A(f'v_cvt_pk_bf16_f32 v{z + 2 * k}, v{z + 2 * k}, v{z + 2 * k + 1}')
            A(f'v_cvt_pk_bf16_f32 v{z + 2 * k + 4}, v{z + 2 * k + 4}, v{z + 2 * k + 5}')
            A(f'ds_write2st64_b32 v{aWA + c}, v{z + 2 * k}, v{z + 2 * k + 4} offset0:{14 * k} offset1:{14 * k + 28}')
    fine(3, '3a_wr')
    A('s_waitcnt lgkmcnt(0)\ns_barrier')
    fine(3, '3b_bar')
    OPA = 24
    DRE, DIM = 40, 56
    for u in range(4):
        A(f'ds_read_b128 {vr(OPA + 4 * u, 4)}, v{aRA} offset:{32 * u}')
    mo = mo_reads() if not MOE else [''] * 15
    for u in range(4):
        A(f'v_mfma_f32_32x32x16_bf16 {vr(DRE, 16)}, {vr(OPA + 4 * u, 4)}, {vr(K3_MA + 4 * u, 4)}, {vr(DRE, 16) if u else 0}')
        A(mo.pop(0))
        A(mo.pop(0))
        A(f'v_mfma_f32_32x32x16_bf16 {vr(DIM, 16)}, {vr(OPA + 4 * u, 4)}, {vr(K3_MA + 16 + 4 * u, 4)}, {vr(DIM, 16) if u else 0}')
        if u:
            A(mo.pop(0))
            A(mo.pop(0))
    A(mo.pop(0))
    fine(3, '3c_stA')
    OPB = 72
    E0, E1 = 100, 116
    def cvb(tau):
        for jj in range(4):
            A(f'v_cvt_pk_bf16_f32 v{OPB + 4 * tau + jj}, v{DRE + 4 * tau + jj}, v{DIM + 4 * tau + jj}')
    cvb(0)
    for tau in range(3):
        A(f'v_mfma_f32_32x32x16_bf16 {vr(E0, 16)}, {vr(K3_MB + 4 * tau, 4)}, {vr(OPB + 4 * tau, 4)}, {vr(E0, 16) if tau else 0}')
        if tau < 2:
            cvb(tau + 1)
            A('s_nop 1')
    for tau in range(3):
        A(f'v_mfma_f32_32x32x16_bf16 {vr(E1, 16)}, {vr(K3_MB + 12 + 4 * tau, 4)}, {vr(OPB + 4 * tau, 4)}, {vr(E1, 16) if tau else 0}')
        if tau < 2:
            A('s_nop 4')
    fine(3, '3d_stB')
    for a in range(5):
        e = E0 + 4 * a
        A(f'v_cvt_pk_bf16_f32 v{24 + 2 * a}, v{e}, v{e + 1}')
        A(f'v_cvt_pk_bf16_f32 v{25 + 2 * a}, v{e + 2}, v{e + 3}')
        A(f'ds_write2st64_b32 v{aYA + a}, v{24 + 2 * a}, v{25 + 2 * a} offset0:0 offset1:10')
    fine(3, '3e_wr')
    A('s_waitcnt lgkmcnt(0)\ns_barrier')
    fine(3, '3f_bar')
    Y = 40
    for k in range(4):
        A(f'ds_read_b128 {vr(Y + 4 * k, 4)}, v{aY2 if k & 1 else aYR} offset:{1024 * (k >> 1)}')
    A(f'ds_read_b128 {vr(Y + 16, 4)}, v{aYR + 1} offset:2048')
    fine(3, '3g_rd')
    PK = X1P
    for k in range(20 if OPT['d2'] else 0):
        A(f'v_dot2_f32_bf16 v{Y + k}, v{Y + k}, v{K3_GA + k}, v{K3_X + k}')
    for k in range(0 if OPT['d2'] else 10):
        A(f'v_perm_b32 v{Y + 2 * k}, v{Y + 2 * k}, v{Y + 2 * k}, v{aSEL}')
        A(f'v_perm_b32 v{Y + 2 * k + 1}, v{Y + 2 * k + 1}, v{Y + 2 * k + 1}, v{aSEL}')
        pk('fma', Y + 2 * k, Y + 2 * k, K3_GA + 2 * k, K3_X + 2 * k)
    X1 = A.capture(lambda: [A(f'v_cvt_pk_bf16_f32 v{PK + k}, v{Y + 2 * k}, v{Y + 2 * k + 1}') for k in range(10)])
    st = A.capture(lambda: row_stats(Y, ST3))
    n0 = 21
    A.items.extend(st[:n0])
    for i in st[n0:]:
        if X1:
            A.items.append(X1.pop(0))
        A.items.append(i)
    A.items.extend(X1)
    fine(3, '3h_st1')
    xst = A.groups(x1_store) if not OPT['xl'] else []
    if OPT['cutx'] & 32:
        xst = []
    if not OPT['xs']:
        A.emit(xst)
        xst = []
    x0 = len(A.items)
    fine(3, '3i_x1')
    nm = 'op_sel:[0,0,1] op_sel_hi:[1,0,1] neg_lo:[0,0,1] neg_hi:[0,0,1]'
    if not OPT['cutx'] & 2:
        for k in range(10):
            pk('fma', Y + 2 * k, Y + 2 * k, ST3, ST3, mods=nm)
            pk('fma', Y + 2 * k, Y + 2 * k, K3_CB + 2 * k, K3_SB + 2 * k)
        row_stats(Y, ST3, GA)
    fine(3, '3j_st2')
    PK = 60
    for k in range(10):
        pk('fma', Y + 2 * k, Y + 2 * k, ST3, ST3, mods=nm)
        A(f'v_cvt_pk_bf16_f32 v{PK + k}, v{Y + 2 * k}, v{Y + 2 * k + 1}')
        if k == 3:
            A(f'ds_write_b128 v{aRW}, {vr(PK, 4)}')
        if k == 7:
            A(f'ds_write_b128 v{aRW}, {vr(PK + 4, 4)} offset:4096')
    A(f'ds_write_b64 v{aRW + 1}, {vr(PK + 8, 2)}')
    if xst:
        tail = A.items[x0:]
        del A.items[x0:]
        A.spread(tail, xst, 0, OPT['xs'] / 100)


def k3_tail():
    fine(3, '3k_wr')
    if OPT['sn'] or OPT['wb']:
        A(f's_waitcnt vmcnt({after_last(lambda x: x.lds)})')
    A('s_waitcnt lgkmcnt(0)\ns_barrier')
    fine(3, '3l_bar')
    for i in range(3):
        A(f'ds_read_b128 {vr(24 + 4 * i, 4)}, v{aRR} offset:{4096 * i}')
    for i in range(3):
        A(f'buffer_store_dwordx4 {vr(24 + 4 * i, 4)}, v{vLY}, {srd(S_WS)}, s{sST + i} offen{YSC}')


G1_A = 24
G1_ACC = 184
G1_B = 232
NS, PRE = 4, 3
aB, aPW, aPR, vH4, vG1A, vGC, vT1 = 8, 12, 16, 18, 20, 22, 23
vG1X = 18
B1RAW = 132
sHB = 72
sHC2 = 64
NB = OPT['nb']
PARTS = [[(ks, tl) for ks in range(20) for tl in range(6 if ks % 5 < NB else 4)], [(ks, tl) for ks in range(20) if ks % 5 >= NB for tl in (4, 5)]]
assert sum(SWB[:10]) >= 2 * NB
aBB = 254


def b1_issue():
    A(f"""s_mul_i32 s{sBG2}, s{sJ}, 192
    v_lshlrev_b32 v{vBG}, 3, v{vQ}""")
    for k in range(6):
        A(f'buffer_load_dwordx2 {vr(B1RAW + 2 * k, 2)}, v{vBG}, {srd(S_B1)}, s{sBG2} offen offset:{32 * k}')


def g1_load(i):
    ks, r = divmod(i, 2)
    pre = f's_add_u32 s{sLD}, s{sLD}, {BS}\n' if i and i % 4 == 0 else ''
    return pre + f'buffer_load_dwordx4 {vr(G1_A + 4 * i, 4)}, v{vG1A + r}, {srd(S_WS)}, s{sLD} offen offset:{512 * (ks & 1)} sc1'


def g1_rd(part, n):
    ks, tl = PARTS[part][n]
    s = G1_B + 4 * (n % NS)
    off = BIG + 30720 * ((ks // 5) & 1)
    if tl >= 4:
        return [f'ds_read_b128 {vr(s, 4)}, v{vL16 if ks < 10 else aBB} offset:{off + 20480 + 1024 * (2 * (ks % 5) + tl - 4)}']
    off += 4096 * (ks % 5)
    out = [f'ds_read_b64_tr_b16 {vr(s, 2)}, v{aB + tl} offset:{off}', f'ds_read_b64_tr_b16 {vr(s + 2, 2)}, v{aB + tl} offset:{off + 512}']
    if ks == 9:
        out[1] += f'\nv_add_u32 v{aB + tl}, 61440, v{aB + tl}'
    return out


def g1_bias():
    A(f's_mov_b32 s{sT2}, {L_B1}\nv_lshl_add_u32 v14, v{vQ}, 4, s{sT2}')
    for tl in range(6):
        for r in range(2):
            A(f'ds_read_b128 {vr(G1_ACC + 8 * tl + 4 * r, 4)}, v14 offset:{64 * tl}')


def g1_pre():
    t = 12
    A(f"""v_lshrrev_b32 v{t}, 3, v{vL15}
    v_mul_u32_u24 v{t}, {10 * BS}, v{t}
    v_lshl_add_u32 v{t}, v{vQ}, 7, v{t}
    v_and_b32 v{t + 1}, 7, v{vL}
    v_lshl_add_u32 v{vG1A}, v{t + 1}, 4, v{t}
    v_add_u32 v{vG1A + 1}, {20 * BS}, v{vG1A}
    s_mul_i32 s{sT0}, s{sW}, {40 * BS}
    s_lshl_b32 s{sT1}, s{sCL}, 10
    s_add_u32 s{sT0}, s{sT0}, s{sT1}
    s_add_u32 s{sLD}, s{sT0}, {WS_Y2}""")
    A(f"""v_lshrrev_b32 v{t}, 2, v{vL15}
    v_lshl_add_u32 v{t}, v{vQ}, 3, v{t}
    v_lshlrev_b32 v{t}, 7, v{t}
    v_and_b32 v{t + 1}, 3, v{vL}
    v_lshl_add_u32 v{t}, v{t + 1}, 3, v{t}
    v_bfe_u32 v{t + 1}, v{vL}, 3, 2
    v_lshl_add_u32 v{aB}, v{t + 1}, 5, v{t}
    v_xor_b32 v{aB + 1}, 32, v{aB}
    v_xor_b32 v{aB + 2}, 64, v{aB}
    v_xor_b32 v{aB + 3}, 96, v{aB}
    v_add_u32 v{aBB}, 61440, v{vL16}""")


def g1_part(part, side):
    fr = PARTS[part]
    for n, (ks, tl) in enumerate(fr):
        rd = g1_rd(part, n + PRE) if n + PRE < len(fr) else []
        for r in range(2):
            acc = vr(G1_ACC + 8 * tl + 4 * r, 4)
            A(f'v_mfma_f32_16x16x32_bf16 {acc}, {vr(G1_B + 4 * (n % NS), 4)}, {vr(G1_A + 4 * (2 * ks + r), 4)}, {acc}')
            if r < len(rd) and not OPT['cutx'] & 1024:
                A(rd[r])
        for x in side.get(n, []):
            if callable(x):
                x()
            else:
                A.items.extend(x)


def place(side, groups, lo, hi):
    for k, g in enumerate(groups):
        side.setdefault(lo + (hi - lo) * k // max(len(groups), 1), []).append(g)


def late_addr():
    t = vT1
    if OPT['hr']:
        A(f'''s_and_b32 s{sDW}, s{sJ}, {[0, 1, 1, 3][OPT['hr']]}
        s_lshl_b32 s{sDW}, s{sDW}, {[0, 1, 0, 0][OPT['hr']]}
        s_add_u32 s{sDW}, s{sDW}, s{sW}
        s_and_b32 s{sDW}, s{sDW}, 3''')
    if OPT['h2']:
        hb = WS_T if OPT['h2'] == 2 else WS_T + 512 * BS
        A(f"""s_lshl_b32 s{sT3}, s{sCL}, 10
        s_lshl_b32 s{sT1}, s{sW}, 5
        s_add_u32 s{sT1}, s{sT1}, s{sJ}
        s_mul_i32 s{sT1}, s{sT1}, {BS}
        s_add_u32 s{sST + 2}, s{sT1}, s{sT3}
        s_add_u32 s{sST}, s{sST + 2}, s{sT1}
        s_add_u32 s{sST}, s{sST}, {WS_TP}
        s_add_u32 s{sST + 1}, s{sST}, {32 * BS}
        s_add_u32 s{sST + 2}, s{sST + 2}, {hb}
        s_add_u32 s{sST + 3}, s{sST + 2}, {16 * BS}
        s_lshr_b32 s{sT0}, s{sJ}, 3
        s_lshl_b32 s{sT0}, s{sT0}, 4
        s_add_u32 s{sT0}, s{sT0}, s{sW}
        s_mul_i32 s{sT0}, s{sT0}, {4 * BS}""")
    else:
        A(f"""s_mul_i32 s{sST}, s{sCL}, 393216
        s_add_u32 s{sST}, s{sST}, {WS_H}
        s_lshr_b32 s{sT0}, s{sJ}, 3
        s_mul_i32 s{sT0}, s{sT0}, {4 * 48 * 1024}
        s_add_u32 s{sT0}, s{sT0}, s{sST}
        s_mul_i32 s{sT1}, s{sW}, {12 * 1024}
        s_add_u32 s{sT0}, s{sT0}, s{sT1}
        s_mul_i32 s{sT1}, s{sW}, {96 * 1024}
        s_add_u32 s{sST}, s{sST}, s{sT1}
        s_mul_i32 s{sT1}, s{sJ}, 3072
        s_add_u32 s{sST}, s{sST}, s{sT1}
        s_add_u32 s{sST + 1}, s{sST}, {48 * 1024}""")
    A(f"""v_mov_b32 v{vGC}, {f2u(GK / GA)}
    v_add_u32 v{vH4}, {BS if OPT['h2'] else 4096}, v{vL16}
    v_add_u32 v{vH4 + 1}, 8192, v{vL16}""")
    if OPT['sn'] != 2:
        flag_prep(1)
    A(f"""v_mul_u32_u24 v{t}, {RS}, v{vL15}
    v_lshl_add_u32 v{t}, v{vQ}, 4, v{t}""")
    for blk in range(4):
        A(f"""s_add_u32 s{sT1}, s{sDW}, {blk + 1}
        s_and_b32 s{sT1}, s{sT1}, 3
        s_mul_i32 s{sT2}, s{sT1}, {16 * BS if OPT['h2'] else 48 * 1024}
        s_add_u32 s{sHB + blk}, s{sT0}, s{sT2}
        {f's_add_u32 s{sHC2 + blk}, s{sHB + blk}, s{sT3}' if OPT['h2'] else ''}
        {f's_add_u32 s{sHB + blk}, s{sHB + blk}, s{sHC2 + blk}' if OPT['h2'] else ''}
        s_mul_i32 s{sT1}, s{sT1}, {4 * PS}
        s_add_u32 s{sT1}, s{sT1}, {blk * PS}
        v_add_u32 v{aPW + blk}, s{sT1}, v{t}""")
    A(f"""v_lshrrev_b32 v{aPR}, 2, v{vL}
    v_and_b32 v{vOA}, 7, v{aPR}
    v_mul_u32_u24 v{aPR}, {RS}, v{aPR}
    s_mul_i32 s{sT2}, s{sDW}, {4 * PS}
    v_add_u32 v{aPR}, s{sT2}, v{aPR}
    v_and_b32 v{t}, 3, v{vL}
    v_lshl_add_u32 v{aPR + 1}, v{t}, 4, v{aPR}
    v_lshl_add_u32 v{aPR}, v{t}, 5, v{aPR}
    s_and_b32 s{sT0}, s{sPID}, 0xf8
    s_lshl_b32 s{sT1}, s{sDW}, 1
    s_add_u32 s{sT0}, s{sT0}, s{sT1}
    s_and_b32 s{sT2}, s{sJ}, 7
    s_mul_i32 s{sT3}, s{sT2}, 160
    v_lshlrev_b32 v{vOA}, 8, v{vOA}
    v_add3_u32 v{vOA}, v{vH}, v{vOA}, s{sT0}
    v_mul_u32_u24 v{vOA}, 1280, v{vOA}
    v_add_u32 v{vOA}, s{sT3}, v{vOA}
    v_lshl_add_u32 v{vOC}, v{t}, 3, v{vOA}
    v_lshl_add_u32 v{vOA}, v{t}, 4, v{vOA}""")


def gelu_unit(u, r):
    b = G1_ACC + 16 * u + 4 * r
    regs = [b, b + 2, b + 8, b + 10]
    e = G1_B
    o = G1_B + 8 + 4 * r
    if OPT['gpre'] and u >= 1:
        e = G1_ACC
        o = G1_ACC + 8 + 4 * r
    for k, x in enumerate(regs):
        pk('fma', e + 2 * k, x, x, vGC, mods='op_sel_hi:[1,1,0]')
    for k, x in enumerate(regs):
        pk('mul', e + 2 * k, e + 2 * k, x, mods=NEG1)
    for k in range(0 if OPT['cutx'] & 4 else 8):
        A(f'v_exp_f32 v{e + k}, v{e + k}')
    for k in range(4):
        pk('add', e + 2 * k, e + 2 * k, '1.0', mods='op_sel_hi:[1,0]')
    for k in range(8):
        A(f'v_rcp_f32 v{e + k}, v{e + k}')
    for k, x in enumerate(regs):
        pk('mul', e + 2 * k, e + 2 * k, x)
    for k in range(4):
        A(f'v_cvt_pk_bf16_f32 v{o + k}, v{e + 2 * k}, v{e + 2 * k + 1}')
    if OPT['h2']:
        if u < 2:
            A(f'buffer_store_dwordx4 {vr(o, 4)}, v{vH4 if u else vL16}, {srd(S_WS)}, s{sST + r} offen')
        else:
            A(f'buffer_store_dwordx4 {vr(o, 4)}, v{vL16}, {srd(S_WS)}, s{sST + 2 + r} offen sc1')
        return
    A(f'buffer_store_dwordx4 {vr(o, 4)}, v{vLW}, {srd(S_WS)}, s{sST + r} offen offset:{1024 * u} sc1')


G2_H = 24
NH = 20
FINR = 104
G2_ACC = 120
G2_BASE = 200
G2_GB = 220
vOA, vOC = 248, 249
RS = 336
PS = 16 * RS
OA = OPT['oa']
G2SEQ = [(b, k) for b in range(3) for k in KA] + [(3, k) for k in KA[:OA]] + [(b, k) for b in range(3) for k in KB] + [(3, k) for k in KA[OA:] + KB]
NGA = 24 + OA
if OPT['t3']:
    assert OA <= 4
    G2SEQ = [(b, k) for b in range(3) for k in KA[:4]] + [(3, k) for k in KA[:OA]] + [(b, k) for b in range(3) for k in KA[4:]] + G2SEQ[NGA:]


def fin_issue():
    R = FINR
    A(f"""buffer_load_dwordx4 {vr(R, 4)}, v{vOA}, {srd(S_OUT)}, 0 offen sc1
    buffer_load_dwordx4 {vr(R + 4, 4)}, v{vOA}, {srd(S_OUT)}, 0 offen offset:64 sc1
    buffer_load_dwordx2 {vr(R + 8, 2)}, v{vOC}, {srd(S_OUT)}, 0 offen offset:128 sc1""")


def fin_finish():
    t = vG1A
    A(f"""v_and_b32 v{t}, 3, v{vL}
    v_lshlrev_b32 v{t + 1}, 4, v{t}
    v_add_u32 v{t + 1}, {L_M2 + 7680}, v{t + 1}
    v_lshl_add_u32 v{t}, v{t}, 4, v{t + 1}""")
    for dst, off in ((G2_BASE, 528), (G2_GB, 0)):
        for k in range(4):
            A(f'ds_read_b128 {vr(dst + 4 * k, 4)}, v{t} offset:{off + 128 * (k >> 1) + 16 * (k & 1)}')
        A(f'ds_read_b128 {vr(dst + 16, 4)}, v{t + 1} offset:{off + 256}')
    for k in range(10):
        unpack(114, 115, FINR + k)
        A(f'v_add_f32 v{G2_BASE + 2 * k}, v114, v{G2_BASE + 2 * k}')
        A(f'v_add_f32 v{G2_BASE + 2 * k + 1}, v115, v{G2_BASE + 2 * k + 1}')


def g2_load(n):
    blk, kl = G2SEQ[n]
    if OPT['h2']:
        p, u = divmod(kl, 3)
        hb = WS_T if OPT['h2'] == 2 else WS_T + 512 * BS
        base, off = (sHB + blk, WS_TP + (2 * p + u) * BS) if u < 2 else (sHC2 + blk, hb + p * BS)
        return f's_add_u32 s{sW1E}, s{base}, {off}\nbuffer_load_dwordx4 {vr(G2_H + 4 * (n % NH), 4)}, v{vL16}, {srd(S_WS)}, s{sW1E} offen sc1'
    return f'buffer_load_dwordx4 {vr(G2_H + 4 * (n % NH), 4)}, v{[vLW, vH4, vH4 + 1][kl // 4]}, {srd(S_WS)}, s{sHB + blk} offen offset:{1024 * (kl % 4)} sc1'


def g2_main(nxt, bg):
    LA = OPT['la2']

    def rdp(dst, slot):
        out = [f'ds_read_b128 {vr(dst + 4 * k, 4)}, v{aPR} offset:{slot * PS + 128 * (k >> 1) + 16 * (k & 1)}' for k in range(4)]
        out.append(f'ds_read_b128 {vr(dst + 16, 4)}, v{aPR + 1} offset:{slot * PS + 256}')
        return out
    side = {}

    def put(pos, x):
        side.setdefault(pos, []).append(x)
    place(side, bg, 2, 5 * (NGA - 8))
    f0 = 30 if OPT['xq'] else 6
    if OPT['xl'] or OPT['sn'] == 1:
        place(side, A.groups(fin_issue), 7, 37)
        f0 = 66
    for k, x in enumerate(A.capture(fin_finish) if not OPT['cutx'] & 128 else []):
        put(f0 + k + k // 4, [x])
    if OPT['bb'] & 2:
        put(OPT['cb'] + 4, lambda: A('s_barrier'))
    put(OPT['pb'], lambda: flag_publish(2))
    put(OPT['qb'], lambda: A(flag_ld(2)))
    put(OPT['cb'], lambda: (flag_check(2), stamp('hb')))
    m0 = 5 * NGA
    sp = OPT['wsp']
    for b in range(3):
        for nt in range(5):
            put(m0 + 20 * (b + 1) + 3 + sp * nt, lambda b=b, nt=nt: A(f'ds_write_b128 v{aPW + b}, {vr(G2_ACC + 20 * b + 4 * nt, 4)} offset:{64 * nt}'))
    if OPT['rb']:
        bars = {1: [(1, (0, 1)), (2, (2,))], 2: [(0, (0,)), (1, (1,)), (2, (2,))]}[OPT['rb']]
        free = 0
        ops = []
        for blk_, slots in bars:
            mb = m0 + 20 * (blk_ + 1) + 4 * sp + 7
            put(mb, lambda: A('s_waitcnt lgkmcnt(0)\ns_barrier'))
            pos = mb
            for sl in slots:
                for x in rdp(G2_ACC + 20 * sl, sl):
                    put(pos, lambda x=x: A(x))
                    pos += 1
            free = max(free, mb + 7)
            for sl in slots:
                for k in range(20):
                    x = f'v_fmac_f32 v{G2_BASE + k}, v{G2_GB + k}, v{G2_ACC + 20 * sl + k}'
                    if free < 240:
                        put(int(free), lambda x=x: A(x))
                    else:
                        ops.append(x)
                    free += OPT['rd'] / 10
    else:
        m1 = m0 + 60 + 4 * sp + 7
        put(m1, lambda: A('s_waitcnt lgkmcnt(0)\ns_barrier'))
        pos = m1
        for sl in range(3):
            for x in rdp(G2_ACC + 20 * sl, sl):
                put(min(pos, 239), lambda x=x: A(x))
                pos += 1 if sl else 0
            pos += 0 if sl else 1
        ops = [f'v_fmac_f32 v{G2_BASE + k}, v{G2_GB + k}, v{G2_ACC + 20 * sl + k}' for sl in range(3) for k in range(20)]
        for p_ in range(m1 + 6, 240):
            n_ = 1 if p_ < m1 + 11 else 2
            for x in ops[:n_]:
                put(p_, lambda x=x: A(x))
            ops = ops[n_:]
    if OPT['cutx'] & 64:
        ops = []
        for k in range(m0, 240):
            side.pop(k, None)
    pa = G2_ACC + 60
    own = [f'ds_write_b128 v{aPW + 3}, {vr(pa + 4 * nt, 4)} offset:{64 * nt}' for nt in range(5)]
    order = [(n, nt) for n in range(48) for nt in range(5)]
    if OPT['pt']:
        order = order[:220] + [(n, nt) for nt in range(5) for n in range(44, 48)]
        for nt in range(3):
            put(227 + 4 * nt + 3, lambda x=own[nt]: A(x))
        own = own[3:]
    seen = set()
    for m, (n, nt) in enumerate(order):
        blk, kl = G2SEQ[n]
        acc = G2_ACC + 20 * blk
        assert nxt > n
        A(f'v_mfma_f32_16x16x32_bf16 {vr(acc + 4 * nt, 4)}, {ar((kl * 5 + nt) * 4, 4)}, {vr(G2_H + 4 * (n % NH), 4)}, {vr(acc + 4 * nt, 4) if (blk, nt) in seen else 0}')
        seen.add((blk, nt))
        for x in side.get(m, []):
            if callable(x):
                x()
            else:
                A.items.extend(x)
        if nt in (0, 3) and nxt < 48 and nxt <= n + LA and nxt - NH < n and (nxt < NGA or m >= OPT['cb']):
            if not (OPT['cutx'] & 256 and nxt >= NH):
                A(g2_load(nxt))
            nxt += 1
    stamp('g2')
    A(own.pop(0))
    for x in ops:
        A(x)
    for x in own:
        A(x)
    R = G2_ACC
    for x in rdp(R, 3):
        A(x)
    for k in range(10):
        pk('fma', R + 2 * k, R + 2 * k, G2_GB + 2 * k, G2_BASE + 2 * k)
        A(f'v_cvt_pk_bf16_f32 v{R + 20 + k}, v{R + 2 * k}, v{R + 2 * k + 1}')
        if k == 3:
            A(f'buffer_store_dwordx4 {vr(R + 20, 4)}, v{vOA}, {srd(S_OUT)}, 0 offen{OSC}')
        if k == 7:
            A(f'buffer_store_dwordx4 {vr(R + 24, 4)}, v{vOA}, {srd(S_OUT)}, 0 offen offset:64{OSC}')
    A(f'buffer_store_dwordx2 {vr(R + 28, 2)}, v{vOC}, {srd(S_OUT)}, 0 offen offset:128{OSC}')


def y2_check(g, issued):
    r = G1_A + 16 * g + 3
    k = (issued - 1) // 4
    ld = ''
    for i in range(4 * g, issued):
        ks, rr = divmod(i, 2)
        if i % 4 == 0:
            ld += f's_sub_u32 s{sLD + 1}, s{sLD}, {(k - i // 4) * BS}\n'
        ld += f'buffer_load_dwordx4 {vr(G1_A + 4 * i, 4)}, v{vG1A + rr}, {srd(S_WS)}, s{sLD + 1} offen offset:{512 * (ks & 1)} sc1\n'
    nlab[0] += 1
    inv = f"""s_cmp_eq_u32 s{sFAST}, 0
    s_cbranch_scc0 L_m{nlab[0]}
    buffer_inv sc1
    L_m{nlab[0]}:
    s_waitcnt vmcnt(0)
    """
    poll_check(f'y{g}', inv + ld, f"""v_max3_u32 v{vT16}, v{r}, v{r + 4}, v{r + 8}
    v_max_u32 v{vT16}, v{vT16}, v{r + 12}
    v_cmp_le_u32 vcc, 0xffc00000, v{vT16}""")


def mlp(slot):
    bg9 = slot(9)
    n9 = len(bg9) - min(OPT['s9'], SW2[9])
    A.spread(A.capture(seq(g1_bias, g1_pre)), bg9[:n9], 0, 0.9)
    if OPT['sn']:
        assert SW1[9] + SWB[9] == 0 and not OPT['ysc'] & 2
        A(f"""s_cmp_eq_u32 s{sFAST}, 0
        s_cbranch_scc1 L_slow_y
        L_join_y:""")
        RETRY('.segment')
        RETRY('L_slow_y:\ns_waitcnt vmcnt(0)\nbuffer_wbl2 sc1\ns_waitcnt vmcnt(0)\ns_branch L_join_y')
        if OPT['sd']:
            A(f"s_waitcnt vmcnt({after_last(lambda x: 'store' in x.op)})")
    else:
        flag_publish(0)
        stamp('pub0')
        A(flag_ld(0))
        code_refresh(4, 12, vT16)
        A.emit(bg9[n9:])
        if OPT['xl']:
            x1_store()
        if not OPT['wb'] or SW1[9] + SWB[9]:
            A('s_barrier')
    for n in range(PRE):
        A('\n'.join(g1_rd(0, n)))
    if not OPT['sn']:
        flag_check(0)
        stamp('y2')
    LA = OPT['la1']
    cnt = [0]

    def ld(i):
        if OPT['cutx'] & 512 and i & 2:
            return
        A(g1_load(i))
        cnt[0] = i + 1
    for i in range(LA):
        ld(i)
    side = {}
    n0, n1 = len(PARTS[0]), len(PARTS[1])
    for i in range(LA, 40):
        side.setdefault((i - LA) * OPT['r1'] * n0 // 800, []).append(lambda i=i: ld(i))
    if OPT['sn']:
        y2_check(0, LA)
        stamp('y2')
        for g in range(1, 10):
            first = min(k for k, x in enumerate(PARTS[0]) if x[0] == 2 * g)
            side.setdefault(first - 1, []).append(lambda g=g: y2_check(g, cnt[0]))
    if OPT['sn'] == 2:
        side.setdefault(2, []).append(lambda: flag_publish(0))
        side.setdefault(40, []).append(lambda: A(flag_ld(0)))
        side.setdefault(70, []).append(lambda: (flag_check(0), flag_prep(1)))
    place(side, [[x] for x in A.capture(late_addr)], 0, n0 - 2)
    place(side, slot(10), OPT['g1s'] * n0 // 80, n0)
    g1_part(0, side)
    if not (OPT['bb'] & 1 and SWB[10] + SWB[11]) or OPT['h2']:
        A('s_barrier')
    stamp('g1a')
    A.spread(A.capture(lambda: [gelu_unit(u, r) for u in range(2) for r in range(2)]), slot(11), 0, OPT['gae'] / 100)
    held = []
    if OPT['gpre']:
        cutg = len(A.items) - 22
        assert not any(x.kind == 'vmem' and x.lds for x in A.items[cutg:])
        held = A.items[cutg:]
        del A.items[cutg:]
    if SWB[10] + SWB[11]:
        A(f"s_waitcnt vmcnt({after_last(lambda x: ' lds' in x.text)})\ns_barrier")
    for n in range(PRE):
        A(g1_rd(1, n)[0])
    A.items.extend(held)
    stamp('gelua')
    side = {}
    LA = OPT['la2']
    hl = [A.capture(lambda n=n: A(g2_load(n))) for n in range(max(LA, OPT['n3'] if OPT['t3'] else 0))]
    nh = len(hl)
    if OPT['t3']:
        assert OPT['p3'] < OPT['q3'] < OPT['c3'] < OPT['qa'] and OPT['n3'] <= 12 + OA
        side.setdefault(OPT['p3'], []).append(lambda: flag_publish(3))
        side.setdefault(OPT['q3'], []).append(lambda: A(flag_ld(3)))
        side.setdefault(OPT['c3'], []).append(lambda: flag_check(3))
        place(side, hl[:OPT['n3']], OPT['c3'] + 1, n1)
        hl = hl[OPT['n3']:]
    place(side, slot(12), 0, (OPT['q3'] if OPT['t3'] else OPT['qa']) - 4)
    if not OPT['xl'] and not OPT['xq'] and OPT['sn'] != 1:
        place(side, A.groups(fin_issue), max(OPT['fq'] * n1 // 40, max(k for k, x in enumerate(PARTS[1]) if x[0] <= 11) + 1), n1 - 2)
    side.setdefault(OPT['pa'], []).append(lambda: flag_publish(1))
    side.setdefault(OPT['qa'], []).append(lambda: A(flag_ld(1)))
    g1_part(1, side)
    if not OPT['bb'] & 2:
        A('s_barrier')
    stamp('g1b')
    bg = slot(13) + (A.groups(fin_issue) if OPT['xq'] else [])
    if OPT['cf']:
        gb = A.capture(lambda: [gelu_unit(2, r) for r in range(2)])
        c = len(gb) * OPT['cf'] // 100
        A.spread(gb[:c], bg, 0, 0.9)
        flag_check(1)
        stamp('ha')
        A.spread(gb[c:], hl, 0, OPT['ce'] / 100)
    for r in range(0 if OPT['cf'] else 2):
        if OPT['ca'] == r:
            flag_check(1)
            stamp('ha')
        k = 0 if r < OPT['ca'] else (len(hl) if r else len(hl) // 2)
        A.spread(A.capture(lambda: gelu_unit(2, r)), (bg if r == 0 else []) + hl[:k], 0, 0.9)
        hl = hl[k:]
    if OPT['ca'] == 2:
        flag_check(1)
        stamp('ha')
        A.emit(hl)
    stamp('gelub')
    g2_main(nh, slot(14))


def seq(*fns):
    def f():
        for x in fns:
            x()
    return f


def weave(bit, fg, bg, lo, hi):
    if OPT['gp'] & bit:
        A.gaps(fg, bg, lo, hi, OPT['gs'])
    else:
        A.spread(fg, bg, lo, hi)


def program():
    if OPT['fixed']:
        A('s_memrealtime s[98:99]')
    if OPT['stamps'] == 3:
        A('s_memrealtime s[100:101]')
        nstamp[0] = 1
    else:
        if OPT['stamps']:
            A('v_mov_b32 v255, 0')
        stamp('start')
    if OPT['lean'] == 5:
        setup_tight()
    elif OPT['lean']:
        setup_lean()
    else:
        setup()
    gemv_store_addr()
    if not OPT['cpf'] and not OPT['lean']:
        code_prefetch(30 * 1024)
    Q = {}

    def slot(k):
        out = []
        for name, cnt in (('F', SF), ('W1', SW1), ('WB', SWB), ('W2', SW2)):
            if cnt[k]:
                if not (OPT['nobg'] >> ['F', 'W1', 'W2', 'WB'].index(name)) & 1:
                    out += Q[name][:cnt[k]]
                Q[name] = Q[name][cnt[k]:]
        if OPT['xt'] and k == OPT['xt'] % 10:
            out = A.groups(touch_out) + out if OPT['xt'] < 10 else out + A.groups(touch_out)
        if k == OPT['dslot']:
            out = [g if n < len(out) - OPT['dn'] else [x for x in g if x.kind != 'vmem'] for n, g in enumerate(out)]
            out = out[:len(out) - OPT['dn']] + [sum(out[len(out) - OPT['dn']:], [])]
        return out
    FS = []

    def fmt_split():
        fmt_finish()
        if OPT['fs'] and OPT['p0'].index('F') < OPT['p0'].index('L'):
            FS.extend([x] for x in A.items[-4:])
            del A.items[-4:]
    Q['F'] = A.groups(filt_dma)
    Q['W1'] = A.groups(w1_dma)
    Q['WB'] = A.groups(wb_dma)
    Q['W2'] = A.groups(w2_load)
    steps = dict(X=seq(x1_issue, lambda: code_prefetch(0)) if OPT['lean'] == 4 else x1_issue, R=roles if OPT['late'] in (3, 4) else seq(roles, fmt_prep, fmt_addr), U=fmt_issue, T=touch, A=(lambda: None) if OPT['cutx'] & 16 else k1_const_a, B=k1_const_b, S=seq(silu, lambda: stamp('silu')),
                 G=seq(lambda: gemv_compute(G_W, sMODST), lambda: stamp('gemv')), I=seq(xid_store, hint_prep) if OPT['ht'] else xid_store, f=seq(filt_prep, w1_prep), K=seq(k1_addr, side_prep, lambda: srd_tail(S_B1, S_B2, S_OUT) if OPT['lean'] else None), F=fmt_split,
                 L=lambda: A.spread(A.capture(ln1), FS + slot(0), 0.05 if FS else 0, OPT['fs'] / 100 if FS else 0.6), Y=x_keep)
    p0a, p0b = OPT['p0'].split('M')
    assert SF[0] + SW1[0] == 0 or p0a.index('f') < p0a.index('L')
    assert sorted(OPT['p0']) == sorted('XRUASGTIfKFLM') and all(c in p0a for c in 'RUSGIK')
    for nc, c in enumerate(p0a):
        fine(6, 'pre' + c)
        if OPT['pw'] and nc == OPT['pp']:
            prewarm()
        if not (c == 'X' and (OPT['xfirst'] or OPT['lean'] in (1, 2, 5))) and not (c == 'F' and OPT['late']) and not (c == 'U' and 0 < OPT['late'] < 9):
            steps[c]()
    LU = [A.groups(fmt_issue) if OPT['late'] == k else [] for k in range(4)]
    TW = [A.groups(touch_w) if OPT['tw'] == k else [] for k in range(4)]
    stamp('Miss')
    A(mod1_loads())
    m2 = A.groups(seq(b2_issue, lambda: A(side_loads())))
    M2 = [m2 if OPT['m2'] == k else [] for k in range(7)]
    fq = A.capture(seq(x_keep, k1_const_b, k1_addr2))
    nf = len(fq) * OPT['fk'] // 100
    FL = []
    if 'F' in p0b:
        fmt_finish()
        FL = [[x] for x in A.items[-4:]]
        del A.items[-4:]
        p0b = p0b.replace('F', '')
    fl1 = FL[:OPT['fn']]
    FL = FL[OPT['fn']:]
    A.spread(A.capture(seq(*[steps[c] for c in p0b])) + fq[:nf], (fl1 + LU[1] + slot(1) if OPT['uf'] else slot(1) + LU[1] + fl1) + TW[1] + M2[1], 0.1, 0.9)
    k1_poll()
    k1 = A.merge(A.capture(seq(k1_head, k1_main)), fq[nf:])
    cut0 = min(i for i, x in enumerate(k1) if x.op == 's_barrier') + 1
    A.items.extend(k1[:cut0])
    k0 = len(A.items)
    weave(1, k1[cut0:], FL + slot(2) + TW[2] + LU[2] + M2[2], OPT['k1s'] / 100, OPT['k1e'] / 100)
    if 'F' not in p0a:
        ib = max(k for k, x in enumerate(A.items) if x.op == 's_barrier')
        i0 = max(k for k, x in enumerate(A.items[:ib]) if x.kind == 'vmem' and x.store)
        A.items[ib:ib] = A.capture(lambda n=nvm(A.items[i0 + 1:ib]): A(f's_waitcnt vmcnt({n})'))
    if OPT['lf'] == 2:
        tail = A.items[k0:]
        mf = [k for k, x in enumerate(tail) if x.kind == 'mfma']
        body = A.capture(fmt_body)
        p1 = OPT['fp'] // 10
        A.items = A.items[:k0] + tail[:mf[p1] + 1]
        A(f's_waitcnt vmcnt({after_last(lambda x: srd(S_W2) in x.text and x.lds)})')
        parts = [body[0:4], body[4:8], [], body[8:9], body[9:10], body[10:11], body[11:12]]
        for n, part in enumerate(parts):
            A.items.extend(part)
            A.items.extend(tail[mf[p1 + n] + 1:mf[p1 + n + 1] + 1])
        A.items.extend(tail[mf[p1 + len(parts)] + 1:])
    stamp('k1')
    if OPT['late'] in (3, 4):
        fmt_prep()
        fmt_addr()
    code_refresh(1, TMP, 248)
    w0 = len(A.items)
    A.spread(A.capture(seq(k2_const, k2_addr)), LU[3] + slot(3) + TW[3] + M2[3], 0, OPT['s3e'] / 100)
    if OPT['ht'] & 1:
        if OPT['hl'] <= 100:
            insert_at(w0, OPT['hl'], lambda: hint_issue(0))
        insert_at(w0, OPT['hs'], lambda: hint_set(0))
    if OPT['late'] and not OPT['lf']:
        fmt_finish()
    A(f's_waitcnt vmcnt({after_last(lambda x: srd(S_WI) in x.text and x.lds)})\ns_barrier')

    def cut_at(rest, pct):
        c = len(rest) * pct // 100
        lab = [k for k, x in enumerate(rest) if x.kind == 'label']
        if lab and lab[0] < c <= lab[-1]:
            c = lab[-1] + 1
        return c
    early = OPT['m2'] < 5
    rest = A.capture(seq(filt_finish, *([side_finish] if early else [])))
    cutd = cut_at(rest, OPT['td'])
    if OPT['ht'] & 1 and OPT['hl'] > 100:
        hint_issue(0)
    A.items.extend(rest[:cutd])
    if OPT['ht'] & 1:
        hint_check(0)
    stamp('Tiss')
    A(k2_loads())
    if OPT['late'] == 4:
        fmt_issue()
    A.items.extend(rest[cutd:])
    if OPT['lf'] == 1:
        fmt_finish()
    mark = len(A.items)
    if OPT['lf'] != 3:
        w_prep()
    A.emit(slot(4))
    k2_head()
    k2 = A.capture(k2_main)
    if OPT['lf'] == 3:
        mf = [k for k, x in enumerate(k2) if x.kind == 'mfma']
        body = A.capture(fmt_body)
        A.items.extend(k2[:mf[0] + 1])
        A(f's_waitcnt vmcnt({after_last(lambda x: srd(S_W2) in x.text and x.lds)})')
        for n in range(4):
            A.items.extend(body[2 * n:2 * n + 2] + k2[mf[n] + 1:mf[n + 1] + 1])
        A.spread(k2[mf[4] + 1:mf[7]], [[x] for x in body[8:]], 0.2, 1.0)
        mark = len(A.items)
        w_prep()
        k2 = k2[mf[7]:]
    weave(2, k2, slot(5) + A.groups(seq(xid_load, epoch_store)) + M2[5], 0, OPT['k2e'] / 100)
    if OPT['lf'] in (1, 3):
        ib = max(k for k, x in enumerate(A.items) if x.op == 's_barrier')
        A.items[ib:ib] = A.capture(lambda n=nvm(A.items[mark:ib]): A(f's_waitcnt vmcnt({n})'))
    stamp('k2')
    code_refresh(2, TMP, 249)
    w0 = len(A.items)
    kc = A.capture(seq(k3_ldaddr, k3_const))
    nk = len(kc) * OPT['kc'] // 100
    A.spread(kc[:nk], slot(6) + M2[6], 0, OPT['s6e'] / 100)
    if OPT['ht'] & 2:
        insert_at(w0, OPT['hl2'], lambda: hint_issue(1))
        insert_at(w0, OPT['hs2'], lambda: hint_set(1))
    rest = kc[nk:] + A.capture(seq(*([] if early else [side_finish]), k3_addr, xid_check, lambda: flag_prep(0), lambda: A('\n'.join(mo_reads()) if MOE else ''), ga_shift))
    cutd = cut_at(rest, OPT['tpd'])
    A.items.extend(rest[:cutd])
    if OPT['ht'] & 2:
        assert not any(('s', sHT) in x.defs or ('v', vHT) in x.defs or ('v', vHT - 2) in x.defs for x in rest[:cutd])
        hint_check(1)
    stamp('Tpiss')
    A(k3_loads())
    A.spread(rest[cutd:], slot(7), 0.3, 1.0)
    k3_poll()
    k3 = A.capture(k3_main)
    bg = slot(8)
    if OPT['late']:
        cut0 = min(i for i, x in enumerate(k3) if x.op == 's_barrier') + 1
        n0 = min(SW1[8], len(bg) // 4)
        A.spread(k3[:cut0], bg[:n0])
        A.spread(k3[cut0:], bg[n0:], 0, OPT['k3e'] / 100)
    else:
        weave(4, k3, bg, 0, OPT['k3e'] / 100)
    k3_tail()
    stamp('k3')
    mlp(slot)
    if OPT['stamps'] == 3:
        A('v_writelane_b32 v255, s100, 0')
    stamp('end')
    if OPT['stamps']:
        A(f'''s_lshl_b32 s{sT0}, s{sME}, 10
        s_lshl_b32 s{sT1}, s{sW}, 8
        s_add_u32 s{sT0}, s{sT0}, s{sT1}
        s_add_u32 s{sT0}, s{sT0}, {WS_STAMP}
        v_writelane_b32 v255, s{sCNT}, 63
        v_writelane_b32 v255, s{sFAST}, 31
        v_lshlrev_b32 v{TMP}, 2, v{vL}
        buffer_store_dword v255, v{TMP}, {srd(S_WS)}, s{sT0} offen
        ''')
    if OPT['fixed']:
        if OPT['clean']:
            A('s_waitcnt vmcnt(0)\ns_barrier\nbuffer_wbl2 sc1\ns_waitcnt vmcnt(0)')
        if OPT['probe'] >= 0:
            A(f's_mul_i32 s97, s97, {OPT["mul"]}\ns_add_u32 s97, s97, {OPT["fixed"]}')
        else:
            A(f's_mov_b32 s97, {OPT["fixed"]}')
        A('''L_fix:
        s_memrealtime s[100:101]
        s_waitcnt lgkmcnt(0)
        s_sub_u32 s100, s100, s98
        s_cmp_lt_u32 s100, s97
        s_cbranch_scc1 L_fix''')
    A('L_end:')
    A('s_endpgm')


program()
hdr = open('cdna_kernels/%s.s.ref' % NAME).read().split('; Override launch')[0]
out = hdr
out += f'; @launch grid=(256,1,1) block=(256,1,1) lds={LDS_SIZE}\n'
out += '''; One persistent launch, one workgroup per CU.  Workgroups hand data over through d_ws:
;   tag  = hash of the word the previous launch left at d_ws[0]; every all-to-all granule (16 B) carries it, flags hold it
;   T/T2 = [source][destination] 64-byte chunks of the half-transformed signal (write-through stores, L1-bypassing loads)
;   y2/h = MFMA fragments exchanged inside clusters; flags stay in L2 only when the whole cluster reports the same die
; All waits on other workgroups are bounded.  Generated by a script; registers are allocated per phase.
'''
out += f'''.amdgcn_target "amdgcn-amd-amdhsa--gfx950"
.text
.globl {NAME}_kernel
.p2align 8
.type {NAME}_kernel,@function
{NAME}_kernel:
'''
out += A.text(OPT['al'])
out += RETRY.text()
out += f'''L_last:
    s_endpgm
.section .rodata,"a"
.p2align 6
.amdhsa_kernel {NAME}_kernel
  .amdhsa_next_free_vgpr 512
  .amdhsa_next_free_sgpr 102
  .amdhsa_accum_offset 256
  .amdhsa_group_segment_fixed_size 0
  .amdhsa_kernarg_size 104
  .amdhsa_user_sgpr_count 2
  .amdhsa_user_sgpr_kernarg_segment_ptr 1
  .amdhsa_system_sgpr_workgroup_id_x 1
.end_amdhsa_kernel
'''
open(sys.argv[1], 'w').write(out)
if OPT['stamps']:
    open(sys.argv[1] + '.stamps', 'w').write('\n'.join(STAMPS))
```

```python
import re

REG_RE = re.compile(r'^(-|abs\()?([vas])(?:(\d+)|\[(\d+):(\d+)\])\)?$')
TRANS = ('v_exp_f32', 'v_log_f32', 'v_rcp_f32', 'v_rsq_f32', 'v_sqrt_f32', 'v_sin_f32', 'v_cos_f32')


def regs_of(tok):
    tok = tok.strip()
    if tok == 'vcc':
        return [('s', 'vcc')]
    if tok == 'exec':
        return [('s', 'exec')]
    if tok in ('exec_lo', 'exec_hi'):
        return [('s', 'exec')]
    if tok in ('vcc_lo', 'vcc_hi'):
        return [('s', 'vcc')]
    if tok == 'm0':
        return [('s', 'm0')]
    m = REG_RE.match(tok)
    if not m:
        return []
    k = m.group(2)
    if m.group(3) is not None:
        return [(k, int(m.group(3)))]
    return [(k, i) for i in range(int(m.group(4)), int(m.group(5)) + 1)]


class Ins:
    def __init__(self, text):
        self.text = text
        t = text.split(';')[0].strip()
        self.label = t.endswith(':')
        self.directive = t.startswith('.')
        self.defs = []
        self.uses = []
        self.kind = 'other'
        self.op = ''
        if self.label or self.directive or not t:
            self.kind = 'label' if self.label else 'dir'
            self.base = ''
            return
        parts = t.split(None, 1)
        op = parts[0]
        self.op = op
        rest = parts[1] if len(parts) > 1 else ''
        ops = []
        cur = ''
        depth = 0
        for ch in rest:
            if ch in '[(':
                depth += 1
            if ch in '])':
                depth -= 1
            if ch == ',' and depth == 0:
                ops.append(cur.strip())
                cur = ''
            else:
                cur += ch
        if cur.strip():
            ops.append(cur.strip())
        mods = ''
        if ops:
            last = ops[-1].split(None, 1)
            if len(last) > 1:
                ops[-1] = last[0]
                mods = last[1]
        self.ops = ops
        self.mods = mods
        R = [regs_of(o) for o in ops]
        flat = lambda l: [r for x in l for r in x]
        base = op.replace('_e32', '').replace('_e64', '').replace('_dpp', '').replace('_sdwa', '')
        self.base = base
        self.dpp = op.endswith('_dpp')
        if op.startswith('v_mfma'):
            self.kind = 'mfma'
            self.defs = R[0]
            self.srcA, self.srcB, self.srcC = R[1], R[2], R[3]
            self.uses = flat(R[1:])
            self.passes = 8 if '32x32' in op else 4
        elif op.startswith('v_'):
            self.kind = 'valu'
            if base.startswith('v_cmp'):
                self.defs = R[0]
                self.uses = flat(R[1:])
            elif base in ('v_swap_b32', 'v_permlane16_swap_b32', 'v_permlane32_swap_b32'):
                self.defs = flat(R)
                self.uses = flat(R)
            elif base in ('v_add_co_u32', 'v_addc_co_u32', 'v_sub_co_u32'):
                self.defs = R[0] + R[1]
                self.uses = flat(R[2:])
            elif base == 'v_nop':
                pass
            else:
                self.defs = R[0]
                self.uses = flat(R[1:])
                if base in ('v_fmac_f32', 'v_dot2c_f32_bf16', 'v_writelane_b32') or self.dpp or op.endswith('_sdwa'):
                    self.uses = self.uses + R[0]
        elif op.startswith('ds_'):
            self.kind = 'ds'
            if op.startswith('ds_read') or op.startswith('ds_bpermute') or op.startswith('ds_permute') or op.startswith('ds_swizzle'):
                self.defs = R[0]
                self.uses = flat(R[1:])
            else:
                self.uses = flat(R)
            if 'addtid' in op:
                self.uses = self.uses + [('s', 'm0')]
        elif op.startswith('buffer_') or op.startswith('global_'):
            self.kind = 'vmem'
            self.store = 'store' in op
            self.lds = ' lds' in (' ' + mods) or op.startswith('global_load_lds')
            if op in ('buffer_wbl2', 'buffer_inv'):
                pass
            elif self.lds:
                self.uses = flat(R) + [('s', 'm0')]
            elif self.store:
                self.uses = flat(R)
                if op.startswith('buffer_'):
                    self.data = R[0]
                else:
                    self.data = R[1]
            else:
                self.defs = R[0]
                self.uses = flat(R[1:])
                if 'd16' in op:
                    self.uses = self.uses + R[0]
        elif op.startswith('s_load') or op in ('s_memtime', 's_memrealtime'):
            self.kind = 'smem'
            self.defs = R[0]
            self.uses = flat(R[1:])
        elif op == 's_waitcnt':
            self.kind = 'wait'
        elif op == 's_nop':
            self.kind = 'nop'
            self.n = int(ops[0], 0) + 1
        elif op in ('s_barrier', 's_endpgm', 's_sleep', 's_setprio'):
            self.kind = 'sctl'
        elif op.startswith('s_cbranch') or op == 's_branch':
            self.kind = 'branch'
            if 'vcc' in op:
                self.uses = [('s', 'vcc')]
        elif op.startswith('s_cmp') or op.startswith('s_bitcmp'):
            self.kind = 'salu'
            self.uses = flat(R)
        elif op.startswith('s_'):
            self.kind = 'salu'
            self.defs = R[0]
            self.uses = flat(R[1:])
            if 'saveexec' in op:
                self.defs = self.defs + [('s', 'exec')]
            if base in ('s_addk_i32', 's_mulk_i32', 's_cmov_b32'):
                self.uses = self.uses + R[0]
        else:
            raise ValueError('unknown instruction ' + text)


class Asm:
    def __init__(self):
        self.items = []
        self.smart = False
        self.mw, self.bw, self.dw = 100, 200, 12

    def __call__(self, text):
        for line in text.split('\n'):
            line = line.strip()
            if line:
                if line.startswith('v_cndmask_b32 '):
                    line = 'v_cndmask_b32_e64' + line[len('v_cndmask_b32'):]
                self.items.append(Ins(line))

    def blob(self, text):
        sub = Asm()
        sub(text)
        i = Ins('.blob')
        i.kind = 'blob'
        i.blob = sub.finish()
        self.items.append(i)

    def capture(self, fn):
        old = self.items
        self.items = []
        fn()
        got = self.items
        self.items = old
        return got

    @staticmethod
    def cost(i):
        if i.kind in ('label', 'dir', 'blob'):
            return 0
        if i.kind == 'mfma':
            return 4 * i.passes
        if i.kind == 'valu' and (i.base in TRANS or 'swap' in i.base):
            return 8
        if i.op == 's_barrier':
            return 200
        if i.kind == 'ds':
            return 12
        return 4

    def weave(self, fg, bg, gap, start=0):
        bg = list(bg)
        t = 0
        nxt = start
        noins = False
        for k, i in enumerate(fg):
            reads_scc = i.op.startswith('s_cselect') or i.op.startswith('s_cbranch') or i.op.startswith('s_addc')
            if i.kind == 'label' and i.text.startswith('L_chk'):
                noins = True
            if bg and t >= nxt and not reads_scc and not noins and i.kind != 'label':
                self.items.extend(bg.pop(0))
                nxt = t + gap
            self.items.append(i)
            if i.kind == 'label' and i.text.startswith('L_ok'):
                noins = False
            if i.kind == 'salu' and ('s', 'exec') in i.defs:
                noins = not i.text.strip().endswith('-1')
            if i.kind == 'branch' and 'L_slow' in i.text:
                noins = True
            if i.kind == 'label' and i.text.startswith('L_join'):
                noins = False
            t += self.cost(i)
        return bg

    def wcost(self, i):
        if i.kind == 'mfma':
            return self.cost(i) * self.mw / 100
        if i.op == 's_barrier':
            return self.bw
        if i.kind == 'ds':
            return self.dw
        return self.cost(i)

    def spread(self, fg, bg, lo=0.0, hi=1.0):
        tot = sum(self.wcost(i) for i in fg)
        n = len(bg)
        bg = list(bg)
        times = [tot * (lo + (hi - lo) * k / max(n, 1)) for k in range(n)]
        t = 0
        noins = False
        prev = ''
        for i in fg:
            reads_scc = i.op.startswith('s_cselect') or i.op.startswith('s_cbranch') or i.op.startswith('s_addc')
            if i.kind == 'label' and i.text.startswith('L_chk'):
                noins = True
            ok = not reads_scc and not noins and i.kind not in ('label', 'blob')
            if self.smart == 1 and (i.kind in ('ds', 'mfma') or i.op == 's_barrier'):
                ok = False
            if self.smart >= 2 and (i.kind == 'ds' and i.defs or i.op == 's_barrier'):
                ok = False
            if self.smart == 3 and i.kind in ('ds', 'mfma'):
                ok = False
            while bg and t >= times[0] and ok:
                self.items.extend(bg.pop(0))
                times.pop(0)
                if not (self.smart == 1 and prev in ('ds',)):
                    break
            prev = i.kind
            self.items.append(i)
            if i.kind == 'label' and i.text.startswith('L_ok'):
                noins = False
            if i.kind == 'salu' and ('s', 'exec') in i.defs:
                noins = not i.text.strip().endswith('-1')
            t += self.wcost(i)
        self.emit(bg)

    def gaps(self, fg, bg, lo=0.0, hi=1.0, slack=250):
        n = len(bg)
        t = 0
        times = []
        cap = {}
        for k, i in enumerate(fg):
            times.append(t)
            prev = fg[k - 1] if k else None
            c = 0
            if prev is not None:
                if prev.kind == 'mfma':
                    c = 1 if prev.passes == 8 or i.kind != 'valu' or i.base.startswith('v_pk') else 0
                    if i.kind != 'mfma' and (i.kind == 'valu' and set(i.uses) & set(prev.defs) or i.base.startswith('v_pk') if i.kind == 'valu' else False):
                        c = 2
                elif i.kind == 'wait' and 'lgkmcnt(0)' in i.text:
                    c = 2
                elif prev.kind == 'ds' and prev.defs and i.kind in ('valu', 'mfma', 'vmem') and fg[k - 3].kind == 'ds':
                    c = 2 if i.kind == 'valu' else 1
                elif i.kind == 'valu' and (i.dpp or 'swap' in i.base) and prev.kind == 'valu' and set(prev.defs) & set(i.uses):
                    c = 1
            if c:
                cap[k] = c
            t += self.cost(i)
        tot = t
        marks = [k for k in sorted(cap) for _ in range(cap[k]) if lo * tot <= times[k] <= hi * tot]
        if n <= len(marks):
            pos = [marks[(2 * j + 1) * len(marks) // (2 * n)] for j in range(n)]
        else:
            pos = list(marks)
            for _ in range(n - len(marks)):
                edges = [0] + sorted(pos) + [max(k for k in range(len(fg)) if times[k] <= hi * tot)]
                a, b = max(zip(edges, edges[1:]), key=lambda e: times[e[1]] - times[e[0]])
                mid = (times[a] + times[b]) / 2 if a else times[b] / 3
                ok = [k for k in range(a, b + 1) if times[k] >= mid and fg[k].kind == 'valu']
                pos.append(ok[0] if ok else b)
            pos.sort()
        at = {}
        for j in range(n):
            at.setdefault(pos[j], []).append(bg[j])
        for k, i in enumerate(fg):
            self.emit(at.get(k, []))
            self.items.append(i)
        self.emit(at.get(len(fg), []))

    def merge(self, fg, fq):
        out = []
        fq = list(fq)
        for i in fg:
            if i.kind == 'dir' and i.text.startswith('.fill'):
                p = i.text.split()
                n = int(p[1])
                k = 0
                while fq and n >= self.cost(fq[0]):
                    n -= self.cost(fq[0])
                    out.append(fq.pop(0))
                    k += 1
                if len(p) > 2 and int(p[2]) > k:
                    out.append(Ins('s_nop %d' % (int(p[2]) - k - 1)))
                continue
            u, d = set(i.uses), set(i.defs)
            last = -1
            for k, x in enumerate(fq):
                if set(x.defs) & (u | d) or set(x.uses) & d:
                    last = k
            out += fq[:last + 1]
            fq = fq[last + 1:]
            out.append(i)
        return out + fq

    def groups(self, fn):
        out = []
        cur = []
        for i in self.capture(fn):
            cur.append(i)
            if i.kind == 'vmem':
                out.append(cur)
                cur = []
        if cur:
            out[-1].extend(cur)
        return out

    def emit(self, groups):
        for g in groups:
            self.items.extend(g)

    def finish(self):
        out = []
        vm = []
        lg = []
        hist = []
        pos = [0]

        def issue(ins):
            out.append(ins)
            if ins.kind in ('label', 'dir'):
                return
            hist.append((pos[0], ins))
            pos[0] += ins.n if ins.kind == 'nop' else 1
            while hist and pos[0] - hist[0][0] > 40:
                hist.pop(0)

        def parse_wait(ins):
            t = ins.text
            m = re.search(r'vmcnt\((\d+)\)', t)
            if m:
                n = int(m.group(1))
                del vm[:max(0, len(vm) - n)]
            m = re.search(r'lgkmcnt\((\d+)\)', t)
            if m:
                n = int(m.group(1))
                if n == 0:
                    del lg[:]
                elif all(k == 'ds' for k, _ in lg):
                    del lg[:max(0, len(lg) - n)]

        for ins in self.items:
            if ins.kind == 'dir' and ins.text.startswith('.segment'):
                del vm[:]
                del lg[:]
                del hist[:]
                continue
            if ins.kind == 'blob':
                out.extend(ins.blob)
                continue
            if ins.kind in ('label', 'dir'):
                out.append(ins)
                continue
            if ins.kind == 'wait':
                parse_wait(ins)
                issue(ins)
                continue
            touched = set(ins.defs) | set(ins.uses)
            need_vm = None
            for i, d in enumerate(vm):
                if d & touched:
                    need_vm = len(vm) - 1 - i
            need_lg = None
            for i, (k, d) in enumerate(lg):
                if d & touched:
                    need_lg = len(lg) - 1 - i
            if need_lg is not None and any(k == 'smem' for k, _ in lg):
                need_lg = 0
            if need_vm is not None or need_lg is not None:
                w = 's_waitcnt'
                if need_vm is not None:
                    w += ' vmcnt(%d)' % min(need_vm, 63)
                if need_lg is not None:
                    w += ' lgkmcnt(%d)' % min(need_lg, 15)
                wi = Ins(w)
                parse_wait(wi)
                issue(wi)
            need = 0
            uses = set(ins.uses)
            defs = set(ins.defs)
            for p, h in hist:
                dist = pos[0] - p - 1
                req = 0
                hd = set(h.defs)
                if h.kind == 'valu':
                    vd = {r for r in hd if r[0] in 'va'}
                    sd = {r for r in hd if r[0] == 's'}
                    if ins.kind == 'mfma' and (vd & uses):
                        req = max(req, 2)
                    if ins.kind == 'valu':
                        if h.base in TRANS and (vd & uses):
                            req = max(req, 1)
                        if ins.dpp and (vd & uses):
                            req = max(req, 2)
                        if ins.base.startswith('v_permlane') and (vd & uses):
                            req = max(req, 2)
                        if ins.base in ('v_readlane_b32', 'v_readfirstlane_b32') and (vd & uses):
                            req = max(req, 1)
                        if sd & uses:
                            req = max(req, 4 if ins.base in ('v_readlane_b32', 'v_writelane_b32') else 2)
                        if (h.op.endswith('_sdwa') or 'op_sel' in h.mods) and (vd & (uses | defs)):
                            req = max(req, 1 if not h.base.startswith('v_pk_') else 0)
                    if h.base.startswith('v_dot') and ins.kind in ('valu', 'vmem', 'ds', 'mfma') and (vd & (uses | defs)):
                        req = max(req, 3)
                    if ins.kind == 'vmem' and (sd & uses):
                        req = max(req, 5)
                    if ins.kind in ('salu', 'smem') and (sd & uses):
                        req = max(req, 1)
                if h.kind == 'mfma':
                    long = 12 if h.passes == 8 else 8
                    if ins.kind == 'mfma':
                        if hd & (set(ins.srcA) | set(ins.srcB)):
                            req = max(req, long)
                        c = set(ins.srcC)
                        if hd & c and not (ins.srcC == h.defs and ins.passes == h.passes):
                            req = max(req, long - 2)
                        if (hd & defs) and not (ins.srcC == h.defs and ins.defs == h.defs and ins.passes == h.passes):
                            req = max(req, long - 2)
                    elif ins.kind in ('valu', 'vmem', 'ds'):
                        if hd & (uses | defs):
                            req = max(req, long)
                        if set(h.srcC) & defs:
                            req = max(req, 7 if h.passes == 8 else 3)
                if h.kind == 'vmem' and getattr(h, 'store', False) and len(h.data) >= 3:
                    if set(h.data) & defs:
                        req = max(req, 2)
                if h.kind == 'ds' and not h.defs and ins.kind == 'valu' and (set(h.uses) & defs) and ('b128' in h.op or 'b96' in h.op or 'write2_b64' in h.op):
                    req = max(req, 2)
                if h.kind == 'salu' and ('s', 'm0') in hd and ('s', 'm0') in uses:
                    req = max(req, 1)
                if h.kind == 'salu' and ('s', 'exec') in hd and ins.kind == 'valu' and (ins.dpp or ins.base.startswith('v_permlane')):
                    req = max(req, 1)
                need = max(need, req - dist)
            while need > 0:
                n = min(need, 16)
                issue(Ins('s_nop %d' % (n - 1)))
                need -= n
            issue(ins)
            if ins.kind == 'vmem':
                vm.append(set(ins.defs))
            elif ins.kind == 'ds':
                lg.append(('ds', set(ins.defs)))
            elif ins.kind == 'smem':
                lg.append(('smem', set(ins.defs)))
        return out

    @staticmethod
    def size(i):
        if i.kind in ('label', 'dir'):
            return 0
        if i.kind in ('mfma', 'ds', 'vmem', 'smem'):
            return 8
        lit = False
        for o in i.ops:
            if regs_of(o) or o.startswith('hwreg') or o.startswith('vmcnt') or o.startswith('lgkmcnt'):
                continue
            try:
                v = int(o, 0)
                v = v - (1 << 32) if v >= (1 << 31) else v
                inl = -16 <= v <= 64 or (v & 0xffffffff) in (0x3f000000, 0xbf000000, 0x3f800000, 0xbf800000, 0x40000000, 0xc0000000, 0x40800000, 0xc0800000, 0x3e22f983)
                lit = lit or not inl
            except ValueError:
                lit = lit or o.startswith('L_last')
        if i.kind == 'valu':
            short = ('v_mov_b32', 'v_add_u32', 'v_sub_u32', 'v_subrev_u32', 'v_and_b32', 'v_or_b32', 'v_xor_b32', 'v_lshlrev_b32', 'v_lshrrev_b32', 'v_ashrrev_i32',
                     'v_add_f32', 'v_mul_f32', 'v_max_f32', 'v_min_u32', 'v_max_u32', 'v_min_i32', 'v_mul_u32_u24', 'v_mul_i32_i24', 'v_fmac_f32', 'v_cvt_f32_u32', 'v_not_b32',
                     'v_readfirstlane_b32', 'v_permlane16_swap_b32', 'v_permlane32_swap_b32', 'v_add_co_u32', 'v_addc_co_u32') + TRANS
            if i.op in short or (i.op.startswith('v_cmp') and i.ops[0] == 'vcc'):
                return 8 if lit else 4
            return 8
        if i.kind in ('wait', 'nop', 'sctl', 'branch') or i.op in ('s_movk_i32', 's_getreg_b32'):
            return 4
        return 8 if lit else 4

    def align(self, items, run):
        wide = ('v_mov_b32', 'v_add_u32', 'v_and_b32', 'v_xor_b32', 'v_lshlrev_b32', 'v_lshrrev_b32', 'v_add_f32', 'v_mul_f32', 'v_max_f32', 'v_or_b32') + TRANS
        pos = 0
        k = 0
        last_aligned_run = -1
        while k < len(items):
            n = 0
            while k + n < len(items) and items[k + n].kind == 'valu' and self.size(items[k + n]) == 8:
                n += 1
            if n >= run:
                if pos % 8:
                    for j in range(k - 1, last_aligned_run, -1):
                        if items[j].kind == 'valu' and items[j].op in wide and self.size(items[j]) == 4:
                            items[j] = Ins(items[j].op + '_e64' + items[j].text[len(items[j].op):])
                            pos += 4
                            break
                if pos % 8 and items[k - 1].kind in ('mfma', 'wait'):
                    j = k if items[k - 1].kind == 'mfma' else k - 1
                    items.insert(j, Ins('s_nop 0'))
                    k += 1
                    pos += 4
                pos += 8 * n
                k += n
                last_aligned_run = k - 1
                continue
            pos += self.size(items[k])
            k += 1
        return items

    def text(self, run=0):
        lines = []
        items = self.finish()
        if run:
            items = self.align(items, run)
        for i in items:
            lines.append(i.text if i.kind in ('label', 'dir') else '    ' + i.text)
        return '\n'.join(lines) + '\n'


def vr(a, n=1):
    return 'v%d' % a if n == 1 else 'v[%d:%d]' % (a, a + n - 1)


def ar(a, n=1):
    return 'a%d' % a if n == 1 else 'a[%d:%d]' % (a, a + n - 1)


def sr(a, n=1):
    return 's%d' % a if n == 1 else 's[%d:%d]' % (a, a + n - 1)


def f2u(x):
    import struct
    return '0x%08x' % struct.unpack('<I', struct.pack('<f', x))[0]
```

```python
import sys, os
sys.path.insert(0, os.path.dirname(os.path.abspath(__file__)))
from asmlib import Asm, vr, ar, sr, f2u

NAME = 'adaLN_cond__spectral_gfnet__mixer_channel_mlp__prompt'
OPT = dict(stamps=0, fixed=0, probe=-1, slow=0, fine=0, clean=0, nobg=0, mask=1, x1sc=1, bs=128, xfirst=0, um=0,
           p0='XRUfSKIGTFLMA', m2=2, late=0, fk=30, g1=40, g2=16, g3=24, smart=0, tc=0, k1s=0, tw=0, lf=0, osc=0, ysc=0, inl=0, bo=0, bf=0, now=0, fp=45, uf=1, ua=1, sk=0, cutx=0, hr=0, dslot=-1, dn=0, gp=0, gs=250, xl=0, wsp=2, pt=1, gpre=1, cpf=0, lean=5, nb=0, t3=0, p3=10, q3=17, c3=25, n3=8, xq=0, mc=1, mo=1, ys=1, sn=0, sd=0, ht=0, hs=0, hs2=0, hl2=60, kc=100, hn=12, pw=0, pwo=0, pp=0, hf=0, emu=0, xs=100, fs=80, hl=60, h2=0, rb=2, rd=8, s9=5, bb=1, al=0, wb=1, d2=0, gf=0, cr=3, cn=8, fn=4, cf=50, ce=70, xt=0, gd=0, to=0, mul=4, sm=1, kp=0, mw=150, bw=150, dw=14,
           F='1,3,2,0', W1='0,0,4,4,0,8,0,4,0,0', WB='0,0,0,0,0,10,0', W2='6,5,0,24,7,3,7,8,0,0',
           td=72, tpd=68, la1=8, la2=8, k1e=70, k2e=82, k3e=85, s3e=30, s6e=35, g1s=40, gae=100, fq=28,
           pa=19, qa=32, oa=3, pb=30, qb=62, cb=96, r1=18, ca=1)
for a in sys.argv[2:]:
    k, v = a.split('=')
    assert k in OPT, k
    OPT[k] = v if isinstance(OPT[k], str) else int(v)
SF = [int(x) for x in OPT['F'].split(',')] + [0] * 11
SW1 = [int(x) for x in OPT['W1'].split(',')] + [0] * 5
SWB = [0] * 5 + [int(x) for x in OPT['WB'].split(',')] + [0] * 3
SW2 = [0] * 5 + [int(x) for x in OPT['W2'].split(',')]
assert sum(SF) == 6 and sum(SW1) == 20 and sum(SWB) == 10 and sum(SW2) == 60
assert OPT['bs'] % 8 == 0 or not OPT['sk'] & 6
assert OPT['sk'] == 0 and OPT['pa'] < OPT['qa'] < 40 - 8 * OPT['nb']
assert OPT['m2'] != 4 and not (OPT['lf'] == 2 and OPT['late'] in (2, 3, 4))
assert SW2[14] <= 20 and sum(SW1[:2]) <= 14
assert not OPT['late'] or sum(SW2[:8]) + sum(SWB[:8]) == 0
OPT.update(spread=1, two=0, ub=0, rot=0)

WS_EPOCH = 0x0
WS_XID = 0x400
WS_HINT = 0x2000
WS_FLAG = 0x8000
WS_MOD = 0x10000
MP = 15360
BS = 128 * OPT['bs']
WS_T = 0x100000
WS_TP = WS_T + 256 * BS
WS_Y2 = WS_T
WS_H = 0xA00000
WS_W1P = 0x1200000
WS_W2P = 0x1440000
WS_STAMP = 0x1800000
WS_SIZE = 268435456
SKIP = 0x2000000 + 128
OOB = 0x7ff00000

BIG = 0
B_N, B_W1, B_W2, B_F = 15360, 20480, 22528, 24576
SCR = 122880
L_X1E = SCR
L_M1 = SCR + 24576
L_RED = SCR + 32768
L_K2I = SCR + 24576
L_K2O = SCR
L_M2 = SCR + 12416
L_B1 = L_M2 + 9216
L_K3I = SCR + 24576
L_Y = SCR
L_Y2 = SCR + 24576
LDS_SIZE = 163840

S_X, S_WR, S_WI, S_W1, S_B1, S_W2, S_B2, S_C, S_WM, S_OUT, S_WS = [4 + 4 * i for i in range(11)]
sME, sW, sTAG, sXC, sG, sK1, sCL, sJ = range(48, 56)
sT0, sT1, sT2, sT3, sT4, sT5, sT6, sT7 = range(56, 64)
sM1, sM2 = 64, 66
sMODST, sW2ST, sFSH = 68, 69, 70
sPID = sME
sTB = 72
sLD = 76
sST = 80
sW2O = 84
sWB = 85
sDW = 70 if OPT['hr'] else 49
sW1O, sW1E = 90, 91
sBGO, sBG2 = 92, 93
sXID, sFAST, sCNT = 94, 95, 96
sSTAMP = 98

OSC = ['', ' sc1', ' nt', ' sc0 sc1'][OPT['osc']]
YSC = ['', ' sc1', ' nt'][OPT['ysc']]
A = Asm()
A.smart = OPT['smart']
A.mw, A.bw, A.dw = OPT['mw'], OPT['bw'], OPT['dw']
RETRY = Asm()
nstamp = [0]
STAMPS = []


def srd(s):
    return sr(s, 4)


NOTES = dict(
    start='set-up; loads of c, w_mod (K split in four), x; weight formatting units',
    silu='modulation GEMV: partial sums, published with the launch tag in their low bytes',
    gemv='LayerNorm 1 statistics, operand exchange, address set-up',
    Miss='gather shift / scale partial sums',
    mod1='phase 1: modulate, DFT over (d mod 5, 8 rows), DFT-32, radix-4; publish T',
    k1='constants of phase 2, filter, late modulation vectors',
    Tiss='gather T',
    T='phase 2: 256-point FFT along the sequence, filter, inverse; publish T2',
    k2='constants of phase 3',
    Tpiss='gather T2',
    Tp='phase 3: inverse row transform, residual, LayerNorm 2, modulate, LayerNorm 3; publish y2',
    k3='hand-off of y2 inside the cluster of 16 workgroups',
    y2='GEMM1, first 64 hidden columns',
    g1a='gelu, publish h (first group)',
    gelua='GEMM1, last 32 hidden columns',
    g1b='gelu, publish h (second group)',
    gelub='GEMM2 (K split over the waves, reduced through LDS)',
    g2='output')


def stamp(name):
    if name in NOTES:
        A('; ---- ' + NOTES[name])
    if OPT['stamps'] == 3 and name not in ('start', 'end'):
        return
    if OPT['fine'] and name in ('silu', 'gemv', 'ln1', 'Tiss', 'Tpiss', 'pub0', 'y2', 'g1', 'gelu', 'pub1', 'h', 'g2'):
        return
    if not OPT['stamps']:
        if OPT['probe'] == nstamp[0]:
            A('s_memrealtime s[100:101]\ns_waitcnt lgkmcnt(0)\ns_sub_u32 s97, s100, s98')
        nstamp[0] += 1
        return
    i = nstamp[0]
    nstamp[0] += 1
    A(f'''s_memrealtime {sr(sSTAMP, 2)}
    s_memtime {sr(sSTAMP + 2, 2)}
    s_waitcnt lgkmcnt(0)
    v_writelane_b32 v255, s{sSTAMP}, {i}
    v_writelane_b32 v255, s{sSTAMP + 2}, {i + 32}''')
    STAMPS.append(name)


def fine(ph, name):
    if OPT['fine'] == ph:
        stamp(name)


def masked(loads, tagregs):
    if not OPT['mask']:
        return loads
    out = ''
    for ld, r in zip(loads.strip().split('\n'), tagregs):
        nlab[0] += 1
        out += f'v_cmp_ne_u32 vcc, s{sTAG}, v{r}\ns_cbranch_vccz L_m{nlab[0]}\ns_mov_b64 exec, vcc\n{ld}\ns_mov_b64 exec, -1\nL_m{nlab[0]}:\n'
    return out


nlab = [0]


def poll_check(label, loads, bad_cmp):
    if label in [(), ('mod1', 't', 'tp', 'fl0', 'fl1'), ('fl0',), ('fl0', 'fl1'), ('t', 'tp'), ('mod1',)][OPT['inl']]:
        A(f'L_pre_{label}:\ns_branch L_chk_{label}')
        A.blob(f'''L_retry_{label}:
        s_sub_u32 s{sCNT}, s{sCNT}, 1
        s_cmp_lt_i32 s{sCNT}, 0
        s_cbranch_scc1 L_ok_{label}
        {loads}
        s_waitcnt vmcnt(0)''')
        A(f'L_chk_{label}:')
        A(bad_cmp)
        A(f's_cbranch_vccnz L_retry_{label}')
        A(f'L_ok_{label}:')
        return
    A(f'L_chk_{label}:')
    A(bad_cmp)
    A(f's_cbranch_vccnz L_retry_{label}')
    A(f'L_ok_{label}:')
    RETRY('.segment')
    RETRY(f'''L_retry_{label}:
    s_sub_u32 s{sCNT}, s{sCNT}, 1
    s_cmp_lt_i32 s{sCNT}, 0
    s_cbranch_scc1 L_ok_{label}''')
    bo = OPT['bf'] if label.startswith('fl') else OPT['bo']
    if bo:
        RETRY(f's_sleep {bo}')
    RETRY(loads)
    RETRY(f'''s_waitcnt vmcnt(0)
    s_branch L_chk_{label}''')


def tagcheck(regs, tmp):
    if len(regs) == 1:
        return f'v_cmp_ne_u32 vcc, s{sTAG}, v{regs[0]}'
    s = f'v_min3_u32 v{tmp}, v{regs[0]}, v{regs[1]}, v{regs[2]}\n'
    s += f'v_max3_u32 v{tmp + 1}, v{regs[0]}, v{regs[1]}, v{regs[2]}\n'
    s += f'v_min3_u32 v{tmp}, v{tmp}, v{regs[3]}, s{sTAG}\n'
    s += f'v_max3_u32 v{tmp + 1}, v{tmp + 1}, v{regs[3]}, s{sTAG}\n'
    s += f'v_cmp_ne_u32 vcc, v{tmp}, v{tmp + 1}\n'
    return s


def sincos(ang, c, s):
    A(f'v_cos_f32 v{c}, v{ang}')
    A(f'v_sin_f32 v{s}, v{ang}')


def fmamk(d, a, k, b):
    if k == 0:
        A(f'v_mov_b32 v{d}, v{b}')
    elif k == 1:
        A(f'v_add_f32 v{d}, v{a}, v{b}')
    else:
        A(f'v_fmamk_f32 v{d}, v{a}, {f2u(k)}, v{b}')


HI = 's3' if OPT['sm'] else '0xffff0000'


def unpack(lo, hi, src):
    A(f'v_lshlrev_b32 v{lo}, 16, v{src}')
    A(f'v_and_b32 v{hi}, {HI}, v{src}')


def mod5(d, src, tmp):
    A(f'v_mul_u32_u24 v{tmp}, 205, v{src}')
    A(f'v_lshrrev_b32 v{tmp}, 10, v{tmp}')
    A(f'v_mad_i32_i24 v{d}, v{tmp}, -5, v{src}')


def pk(op, d, *src, mods=''):
    A(f'v_pk_{op}_f32 {vr(d, 2)}, ' + ', '.join(vr(s, 2) if isinstance(s, int) else s for s in src) + (' ' + mods if mods else ''))


NEG1 = 'neg_lo:[0,1] neg_hi:[0,1]'

vL = 1
vL31, vH = 2, 3
vL15, vQ = 4, 5
vL16, vT16 = 6, 7
vLX = 254
vLW = vLX if OPT['sk'] & 1 else vL16
vLT = vLX if OPT['sk'] & 2 else vL16
vLY = vLX if OPT['sk'] & 4 else vL16
TMP = 8
vW1 = 240
vXID = 243
vBG = 244
vFL = 250


SIZES = {S_X: 2621440, S_WR: 1314816, S_WI: 1314816, S_W1: 1966080, S_B1: 3072, S_W2: 1966080, S_B2: 1280,
         S_C: 1280, S_WM: 4915200, S_OUT: 2621440, S_WS: WS_SIZE}
KSRC = {S_X: 64, S_WR: 66, S_WI: 68, S_W1: 72, S_B1: 74, S_W2: 76, S_B2: 78, S_C: 80, S_WM: 82, S_OUT: 84, S_WS: 88}


def srd_tail(*ss):
    for s in ss:
        A(f's_mov_b32 s{s + 2}, {SIZES[s]}')
        A(f's_mov_b32 s{s + 3}, {f"s{S_C + 3}" if OPT["lean"] == 5 else "0x00020000"}')


sU = 3 if OPT['um'] else 2


def setup_tight():
    t = TMP
    gf = OPT['gf']
    A(f'''s_cmp_ge_u32 s2, 256
    s_cbranch_scc1 L_end
    s_load_dwordx2 {sr(S_WM, 2)}, s[0:1], 72
    s_load_dwordx2 {sr(S_C, 2)}, s[0:1], 64
    s_load_dwordx16 s[64:79], s[0:1], 0
    s_load_dwordx2 {sr(S_WS, 2)}, s[0:1], 96
    s_lshr_b32 s{sG}, s2, 3''')
    code_prefetch(0)
    UM = f'''s_add_u32 s{sU}, s2, {8 - OPT['um']}
    s_and_b32 s{sU}, s{sU}, 7
    s_lshl_b32 s{sU}, s{sU}, 5
    s_or_b32 s{sU}, s{sU}, s{sG}''' if OPT['um'] else ''
    A(f'''v_lshrrev_b32 v{t}, 6, v0
    v_and_b32 v{vL}, 63, v0
    v_readfirstlane_b32 s{sW}, v{t}
    s_mov_b32 s{S_C + 3}, 0x00020000
    s_movk_i32 s{S_C + 2}, 1280
    s_mov_b32 s{S_WM + 3}, s{S_C + 3}
    s_mov_b32 s{S_WM + 2}, {SIZES[S_WM]}
    s_mov_b32 s{S_X + 3}, s{S_C + 3}
    s_mov_b32 s{S_X + 2}, {SIZES[S_X]}
    {UM}
    s_and_b32 s{sT1}, s{sU}, 3
    s_andn2_b32 s{sT0}, s{sU}, 3
    {'' if gf else f's_add_u32 s{sT0}, s{sT0}, s{sW}'}
    s_mul_i32 s{sT2}, s{sT1}, {160 * 240}
    s_add_u32 s{sT2}, s{sT2}, s{sT0}
    s_lshl_b32 s{sT2}, s{sT2}, 5
    s_mul_i32 s{sT4}, s{sT1}, 320
    {f'v_lshrrev_b32 v{t}, 3, v0' if gf else f'v_lshrrev_b32 v{t}, 1, v{vL}'}
    v_lshlrev_b32 v{t + 1}, 1, v{t}
    v_lshlrev_b32 v{t + 3}, 3, v{t}
    v_mul_u32_u24 v{t}, 7680, v{t}
    v_and_b32 v{t + 2}, {7 if gf else 1}, v0
    v_lshlrev_b32 v{t + 2}, 4, v{t + 2}
    v_lshl_add_u32 v{vGA}, v{t}, 2, v{t + 2}
    v_add_u32 v{vGA + 2}, v{t}, v{t + 2}
    s_and_b32 s{sXC}, s2, 7
    s_lshl_b32 s{sME}, s{sXC}, 5
    s_or_b32 s{sME}, s{sME}, s{sG}
    s_lshl_b32 s{sT6}, s{sW}, 9
    s_add_u32 s{sT6}, s{sT6}, s{sME}
    s_mulk_i32 s{sT6}, 1280
    s_add_u32 s{sT7}, s{sT6}, {256 * 1280}
    v_and_b32 v{vL31}, 31, v0
    v_lshrrev_b32 v{vH}, 5, v{vL}
    v_lshlrev_b32 v{vL16}, 4, v{vL}
    v_lshlrev_b32 v{t + 7}, 2, v{vH}
    v_lshl_add_u32 v{t + 7}, v{vL31}, 3, v{t + 7}
    s_waitcnt lgkmcnt(0)''')
    if not OPT['xfirst']:
        gemv_issue()
    A(f'''s_mov_b64 {sr(S_X, 2)}, s[64:65]
    s_load_dword s{sTAG}, {sr(S_WS, 2)}, {WS_EPOCH}
    buffer_load_dwordx4 {vr(X_RAW, 4)}, v{vL16}, {srd(S_X)}, s{sT6} offen
    buffer_load_dwordx4 {vr(X_RAW + 4, 4)}, v{vL16}, {srd(S_X)}, s{sT7} offen
    buffer_load_dword v{X_RAW + 8}, v{t + 7}, {srd(S_X)}, s{sT6} offen offset:1024
    buffer_load_dword v{X_RAW + 9}, v{t + 7}, {srd(S_X)}, s{sT7} offen offset:1024''')
    if OPT['xfirst']:
        gemv_issue()
    A(f'''L_tight:
    s_load_dwordx2 {sr(S_OUT, 2)}, s[0:1], 80
    {'s_mov_b32 s3, 0xffff0000' if OPT['sm'] else ''}
    s_mul_i32 s{sT1}, s{sT1}, {MP}
    s_lshl_b32 s{sT3}, s{sT0}, 6
    s_add_u32 s{sT5}, s{sT1}, s{sT3}
    s_mov_b32 s{sCNT}, 200000
    v_and_b32 v{vL15}, 15, v0
    v_lshrrev_b32 v{vQ}, 4, v{vL}
    v_lshlrev_b32 v{vT16}, 4, v0''')
    for s in (S_W2, S_W1, S_WR, S_WI, S_B1, S_B2):
        A(f's_mov_b64 {sr(s, 2)}, {sr(KSRC[s], 2)}')
    srd_tail(S_W2, S_W1, S_WS, S_WR, S_WI)


def setup_lean():
    A(f"""s_cmp_ge_u32 s2, 256
    s_cbranch_scc1 L_end
    s_load_dwordx2 {sr(S_C, 2)}, s[0:1], 64
    s_load_dwordx2 {sr(S_WM, 2)}, s[0:1], 72
    s_load_dwordx2 {sr(S_WS, 2)}, s[0:1], 96
    s_load_dwordx2 {sr(S_OUT, 2)}, s[0:1], 80
    s_load_dwordx16 s[64:79], s[0:1], 0
    v_lshrrev_b32 v{TMP}, 6, v0
    v_and_b32 v{vL}, 63, v0
    v_readfirstlane_b32 s{sW}, v{TMP}""")
    srd_tail(S_C, S_WM)
    if OPT['lean'] == 3:
        A(f's_lshr_b32 s{sG}, s2, 3')
        code_prefetch(0)
    gemv_addr()
    A('s_waitcnt lgkmcnt(0)')
    fine(5, 'karg')
    gemv_issue()
    fine(5, 'wiss')
    A(f"""s_load_dword s{sTAG}, {sr(S_WS, 2)}, {WS_EPOCH}
    s_mov_b64 {sr(S_X, 2)}, s[64:65]
    s_and_b32 s{sXC}, s2, 7
    s_lshr_b32 s{sG}, s2, 3
    s_lshl_b32 s{sME}, s{sXC}, 5
    s_or_b32 s{sME}, s{sME}, s{sG}
    v_and_b32 v{vL31}, 31, v0
    v_lshrrev_b32 v{vH}, 5, v{vL}
    v_lshlrev_b32 v{vL16}, 4, v{vL}""")
    srd_tail(S_X)
    fine(6, 'tag')
    if OPT['lean'] == 2:
        code_prefetch(0)
    if OPT['lean'] < 3:
        x1_issue()
    if OPT['lean'] == 1:
        code_prefetch(0)
    A(f"""s_mov_b32 s{sCNT}, 200000
    v_and_b32 v{vL15}, 15, v0
    v_lshrrev_b32 v{vQ}, 4, v{vL}
    v_lshlrev_b32 v{vT16}, 4, v0""")
    for s in (S_W2, S_W1, S_WR, S_WI, S_B1, S_B2):
        A(f's_mov_b64 {sr(s, 2)}, {sr(KSRC[s], 2)}')
    srd_tail(S_W2, S_W1, S_WS, S_WR, S_WI)


def setup():
    A(f'''s_cmp_ge_u32 s2, 256
    s_cbranch_scc1 L_end
    s_load_dwordx8 s[80:87], s[0:1], 64
    s_load_dwordx2 s[88:89], s[0:1], 96
    s_load_dwordx16 s[64:79], s[0:1], 0
    s_lshr_b32 s{sG}, s2, 3''')
    if OPT['cpf']:
        code_prefetch(30 * 1024)
    A(f'''s_and_b32 s{sXC}, s2, 7
    s_lshl_b32 s{sME}, s{sXC}, 5
    s_or_b32 s{sME}, s{sME}, s{sG}
    s_mov_b32 s{sCNT}, 200000
    v_and_b32 v{vL}, 63, v0
    v_lshrrev_b32 v{TMP}, 6, v0
    v_and_b32 v{vL31}, 31, v0
    v_readfirstlane_b32 s{sW}, v{TMP}
    v_lshrrev_b32 v{vH}, 5, v{vL}
    v_and_b32 v{vL15}, 15, v0
    v_lshrrev_b32 v{vQ}, 4, v{vL}
    v_lshlrev_b32 v{vL16}, 4, v{vL}
    v_lshlrev_b32 v{vT16}, 4, v0''')
    sizes = {S_X: 2621440, S_WR: 1314816, S_WI: 1314816, S_W1: 1966080, S_B1: 3072, S_W2: 1966080, S_B2: 1280,
             S_C: 1280, S_WM: 4915200, S_OUT: 2621440, S_WS: WS_SIZE}
    for s in sizes:
        A(f's_mov_b32 s{s + 2}, {sizes[s]}')
        A(f's_mov_b32 s{s + 3}, 0x00020000')
    gemv_addr()
    A('s_waitcnt lgkmcnt(0)')
    src = {S_X: 64, S_WR: 66, S_WI: 68, S_W1: 72, S_B1: 74, S_W2: 76, S_B2: 78, S_C: 80, S_WM: 82, S_OUT: 84, S_WS: 88}
    for s in (S_WM, S_C):
        A(f's_mov_b64 {sr(s, 2)}, {sr(src[s], 2)}')
    if OPT['xfirst']:
        A(f's_mov_b64 {sr(S_X, 2)}, {sr(src[S_X], 2)}')
        x1_issue()
    gemv_issue()
    A(f's_mov_b64 {sr(S_WS, 2)}, s[88:89]')
    A(f's_load_dword s{sTAG}, {sr(S_WS, 2)}, {WS_EPOCH}')
    for s in (S_X, S_W2, S_WR, S_WI, S_W1, S_B1, S_B2, S_OUT):
        A(f's_mov_b64 {sr(s, 2)}, {sr(src[s], 2)}')


def roles():
    A(f'''s_sub_u32 s{sT0}, 8, s{sXC}
    s_and_b32 s{sT0}, s{sT0}, 7
    s_cmp_lt_u32 s{sG}, 16
    s_cselect_b32 s{sK1}, s{sXC}, s{sT0}
    s_mul_i32 s{sWB}, s{sW}, 30720''')
    A(f's_lshr_b32 s{sCL}, s{sME}, 4\ns_and_b32 s{sJ}, s{sME}, 15')
    cols(sCA, sCB, sJ)
    if OPT['sk']:
        A(f'''v_add_u32 v{vLX}, {SKIP}, v{vL16}
        s_mov_b64 vcc, 0xff000000
        v_cndmask_b32 v{vLX}, v{vL16}, v{vLX}, vcc''')


sCA, sCB = 88, 89
POS = sum(p << (2 * i) for i, p in enumerate([1, 0, 1, 2, 1, 1, 1, 1]))


def cols(da, db, j):
    A(f'''s_and_b32 s{sT5}, s{j}, 14
    s_lshr_b32 s{sT6}, {POS}, s{sT5}
    s_and_b32 s{sT6}, s{sT6}, 3
    s_mul_i32 s{sT5}, s{sT5}, 3
    s_and_b32 s{sT7}, s{j}, 1
    s_lshl_b32 s{db}, s{sT6}, 1
    s_add_u32 s{db}, s{db}, s{sT5}
    s_add_u32 s{db}, s{db}, s{sT7}
    s_lshl_b32 s{sT7}, s{sT7}, 1
    s_cmp_eq_u32 s{sT6}, s{sT7}
    s_cselect_b32 s{sT7}, 1, s{sT7}
    s_lshl_b32 s{sT7}, s{sT7}, 1
    s_add_u32 s{da}, s{sT5}, s{sT7}''')


def touch_w():
    if OPT['now'] & 2:
        return
    d = 247
    if OPT['tc'] == 0:
        A(f"""s_lshl_b32 s{sBGO}, s{sCL}, 2
        s_add_u32 s{sBGO}, s{sBGO}, s{sW}
        s_mul_i32 s{sBGO}, s{sBGO}, {10 * 48}
        s_add_u32 s{sBGO}, s{sBGO}, s{sCA}
        s_lshl_b32 s{sBGO}, s{sBGO}, 6
        v_min_u32 v{d}, 9, v{vL}
        v_mul_u32_u24 v{d}, 3072, v{d}
        {'s_mov_b64 exec, 0x3ff' if OPT['to'] else ''}
        buffer_load_dword v{vXID}, v{d}, {srd(S_W1)}, s{sBGO} offen
        {'s_mov_b64 exec, -1' if OPT['to'] else ''}""")
    else:
        A(f"""s_lshl_b32 s{sBGO}, s{sME}, 2
        s_add_u32 s{sBGO}, s{sBGO}, s{sW}
        s_mul_i32 s{sBGO}, s{sBGO}, 1920
        v_min_u32 v{d}, 14, v{vL}
        v_lshlrev_b32 v{d}, 7, v{d}
        buffer_load_dword v{vXID}, v{d}, {srd(S_W1)}, s{sBGO} offen""")
        if OPT['tc'] == 2:
            A(f'buffer_load_dword v{d}, v{d}, {srd(S_W2)}, s{sBGO} offen')


def touch():
    t = TMP
    if OPT['tw'] == 0:
        touch_w()
    A(f'''s_lshl_b32 s{sT0}, s{sG}, 2
    s_add_u32 s{sT0}, s{sT0}, s{sW}
    s_lshl_b32 s{sT0}, s{sT0}, 4
    s_add_u32 s{sT0}, s{sT0}, s{sXC}
    s_mul_i32 s{sT0}, s{sT0}, 642
    s_and_b32 s{sT0}, s{sT0}, -4
    v_min_u32 v{t}, 5, v{vL31}
    v_lshlrev_b32 v{t}, 7, v{t}
    v_mul_u32_u24 v{t + 1}, {8 * 642}, v{vH}
    v_add_u32 v{t}, v{t}, v{t + 1}
    {'s_mov_b32 exec_lo, 63' if OPT['to'] else ''}
    {'s_mov_b32 exec_hi, 63' if OPT['to'] else ''}
    buffer_load_dword v248, v{t}, {srd(S_WR)}, s{sT0} offen
    buffer_load_dword v249, v{t}, {srd(S_WI)}, s{sT0} offen
    {'s_mov_b64 exec, -1' if OPT['to'] else ''}''')


def pid_to_me(d, p, t1):
    b = {1: 0, 2: 1, 4: 2, 8: 3}[OPT['spread']]
    if b == 0:
        A(f's_mov_b32 s{d}, s{p}')
        return
    A(f'''s_lshr_b32 s{d}, s{p}, {5 + b}
    s_lshl_b32 s{d}, s{d}, {5 + b}
    s_bfe_u32 s{t1}, s{p}, {(b << 16) | (4 - b)}
    s_lshl_b32 s{t1}, s{t1}, 5
    s_or_b32 s{d}, s{d}, s{t1}
    s_bfe_u32 s{t1}, s{p}, {((1 + b) << 16) | 4}
    s_lshl_b32 s{t1}, s{t1}, {4 - b}
    s_or_b32 s{d}, s{d}, s{t1}
    s_and_b32 s{t1}, s{p}, {(1 << (4 - b)) - 1}
    s_or_b32 s{d}, s{d}, s{t1}''')


G_C = 188
vGS, vGM, vGA = 194, 195, 236
G_W2 = 216
sGW, sMODS2 = 89, 97
G_W = 32
G_ACC = 52


def gemv_addr():
    A(f'''s_cmp_lt_u32 s2, 240
    s_cselect_b32 s{sT0}, s2, 0
    s_and_b32 s{sT1}, s{sT0}, 3''')
    if OPT['um']:
        A(f'''s_bfe_u32 s{sT2}, s{sT0}, 0x10002
        s_mul_i32 s{sT2}, s{sT2}, 30
        s_lshr_b32 s{sT0}, s{sT0}, 3
        s_add_u32 s{sT0}, s{sT0}, s{sT2}''')
    else:
        A(f's_lshr_b32 s{sT0}, s{sT0}, 2')
    A(f'''    s_lshl_b32 s{sT0}, s{sT0}, 2
    {'' if OPT['gf'] else f's_add_u32 s{sT0}, s{sT0}, s{sW}'}
    s_mul_i32 s{sT2}, s{sT1}, {160 * 7680}
    s_lshl_b32 s{sT3}, s{sT0}, 5
    s_add_u32 s{sT2}, s{sT2}, s{sT3}
    s_mul_i32 s{sT4}, s{sT1}, 320
    s_mul_i32 s{sT1}, s{sT1}, {MP}
    s_lshl_b32 s{sT3}, s{sT0}, 6
    s_add_u32 s{sT5}, s{sT1}, s{sT3}
    {f'v_lshrrev_b32 v{TMP}, 3, v0' if OPT['gf'] else f'v_lshrrev_b32 v{TMP}, 1, v{vL}'}
    v_lshlrev_b32 v{TMP + 1}, 1, v{TMP}
    v_lshlrev_b32 v{TMP + 3}, 3, v{TMP}
    v_mul_u32_u24 v{TMP}, 7680, v{TMP}
    v_and_b32 v{TMP + 2}, {7 if OPT['gf'] else 1}, v0
    v_lshlrev_b32 v{TMP + 2}, 4, v{TMP + 2}
    v_lshl_add_u32 v{vGA}, v{TMP}, 2, v{TMP + 2}
    v_add_u32 v{vGA + 2}, v{TMP}, v{TMP + 2}''')
    if OPT['two'] or OPT['ub']:
        A(f's_cmp_lt_u32 s2, 80\ns_cselect_b32 s{sT2}, s{sT2}, {OOB // 2}')


def gemv2_issue():
    for i in range(5):
        if i:
            A(f's_add_u32 s{sGW}, s{sGW}, {7680 if i < 4 else 125 * 7680}')
        A(f'buffer_load_dwordx4 {vr(G_W2 + 4 * i, 4)}, v{vGA + 2 * (i // 4)}, {srd(S_WM)}, s{sGW} offen')


def gemv_issue():
    A(f'buffer_load_dwordx2 {vr(G_C + 2, 2)}, v{TMP + 3}, {srd(S_C)}, s{sT4} offen')
    A(f'buffer_load_ushort v{G_C + 4}, v{TMP + 1}, {srd(S_C)}, s{sT4} offen offset:256')
    for i in range(5):
        A(f'buffer_load_dwordx4 {vr(G_W + 4 * i, 4)}, v{vGA + 2 * (i // 4)}, {srd(S_WM)}, s{sT2} offen')
        if i < 4:
            A(f's_add_u32 s{sT2}, s{sT2}, {7680 if i < 3 else 125 * 7680}')


def gemv_store_addr():
    A(f'''s_add_u32 s{sT5}, s{sT5}, {WS_MOD}
    s_cmp_lt_u32 s{sU}, 240
    s_cselect_b32 s{sMODST}, s{sT5}, {OOB}''')
    if OPT['two']:
        A(f'''s_sub_u32 s{sT0}, s2, 80
        s_cmp_lt_u32 s{sT0}, 160
        s_cselect_b32 s{sMODS2}, s{sT5}, {OOB}
        s_cselect_b32 s{sMODST}, {OOB}, s{sMODST}
        s_cselect_b32 s{sW2O}, s{sT6}, {OOB // 2}''')


def silu():
    t = TMP
    unpack(G_C, G_C + 1, G_C + 2)
    fine(5, 'c')
    unpack(G_C + 2, G_C + 3, G_C + 3)
    A(f'v_lshlrev_b32 v{G_C + 4}, 16, v{G_C + 4}')
    for i in range(5):
        A(f'v_mul_f32 v{t + i}, {f2u(-1.4426950408889634)}, v{G_C + i}')
    for i in range(5):
        A(f'v_exp_f32 v{t + i}, v{t + i}')
    for i in range(5):
        A(f'v_add_f32 v{t + i}, 1.0, v{t + i}')
    for i in range(5):
        A(f'v_rcp_f32 v{t + i}, v{t + i}')
    for i in range(5):
        A(f'v_mul_f32 v{t + i}, v{G_C + i}, v{t + i}')
    for i in range(5):
        A(f'v_cvt_pk_bf16_f32 v{t + i}, v{t + i}, v{t + i}')
    for i in range(5):
        A(f'v_lshlrev_b32 v{G_C + i}, 16, v{t + i}')
    for i in range(5 if OPT['gd'] else 0):
        A(f'v_lshrrev_b32 v{24 + i}, 16, v{t + i}')
    A(f'''s_mul_i32 s{sTAG}, s{sTAG}, 0x9E3779B1
    s_add_u32 s{sTAG}, s{sTAG}, 0x7F4A7C15
    s_or_b32 s{sTAG}, s{sTAG}, 0xffc00000''')
    for k in range(4):
        A(f's_bfe_u32 s{sTB + k}, s{sTAG}, {(8 << 16) | (8 * k)}')
    if OPT['gf']:
        A(f'''v_mov_b32 v{t + 6}, {OOB}
        v_cmp_gt_u32 vcc, 16, v0
        v_cndmask_b32 v{vGS}, v{t + 6}, v{vT16}, vcc
        v_mov_b32 v{vGM}, 0xffffff00
        s_lshl_b32 s{sT0}, s{sW}, 8
        s_add_u32 s{sT0}, s{sT0}, {L_RED}
        v_and_b32 v{t + 5}, 7, v{vL}
        v_lshl_add_u32 v{t + 5}, v{t + 5}, 5, s{sT0}
        v_lshl_add_u32 v{t + 5}, v{vH}, 4, v{t + 5}
        v_and_b32 v{t + 6}, 1, v{vQ}
        v_lshl_add_u32 v{vGA}, v{t + 6}, 2, v{t + 5}
        s_mov_b32 s{sT0}, {L_RED}
        v_lshl_add_u32 v{vGA + 2}, v{vL15}, 4, s{sT0}''')
        return
    A(f'''v_and_b32 v{t + 5}, 1, v{vL}
    v_lshlrev_b32 v{t + 5}, 5, v{t + 5}
    v_lshl_add_u32 v{t + 5}, v{vH}, 4, v{t + 5}
    v_mov_b32 v{t + 6}, {OOB}
    v_cmp_gt_u32 vcc, 2, v{vL31}
    v_cndmask_b32 v{vGS}, v{t + 6}, v{t + 5}, vcc
    v_mov_b32 v{vGM}, 0xffffff00''')


def gemv_compute(G_W, sdst):
    t = TMP
    for i in range(5):
        sp = (G_C + i) & ~1
        sel = (G_C + i) & 1
        for k in range(4 if OPT['gd'] else 0):
            for e, sreg in ((0, 24 + i), (1, G_C + i)):
                if i:
                    A(f'v_dot2c_f32_bf16 v{G_ACC + 2 * k + e}, v{G_W + 4 * i + k}, v{sreg}')
                else:
                    A(f'v_dot2_f32_bf16 v{G_ACC + 2 * k + e}, v{G_W + 4 * i + k}, v{sreg}, 0')
        for k in range(0 if OPT['gd'] else 4):
            u = t + 2 * (k & 1)
            unpack(u, u + 1, G_W + 4 * i + k)
            if i == 0:
                pk('mul', G_ACC + 2 * k, u, sp, mods=f'op_sel:[0,{sel}] op_sel_hi:[1,{sel}]')
            else:
                pk('fma', G_ACC + 2 * k, u, sp, G_ACC + 2 * k, mods=f'op_sel:[0,{sel},0] op_sel_hi:[1,{sel},1]')
    a = G_ACC
    for k in range(4):
        A(f'v_permlane32_swap_b32 v{a + k}, v{a + k + 4}')
    pk('add', a, a, a + 4)
    pk('add', a + 2, a + 2, a + 6)
    A(f'''v_permlane16_swap_b32 v{a}, v{a + 1}
    v_permlane16_swap_b32 v{a + 2}, v{a + 3}
    v_add_f32 v{a}, v{a}, v{a + 1}
    v_add_f32 v{a + 2}, v{a + 2}, v{a + 3}''')
    if OPT['gf']:
        A(f'''v_add_f32_dpp v{a}, v{a}, v{a} row_ror:8 row_mask:0xf bank_mask:0xf
        v_add_f32_dpp v{a + 2}, v{a + 2}, v{a + 2} row_ror:8 row_mask:0xf bank_mask:0xf
        ds_write2_b32 v{vGA}, v{a}, v{a + 2} offset0:0 offset1:2
        s_waitcnt lgkmcnt(0)
        s_barrier''')
        for w in range(4):
            A(f'ds_read_b128 {vr(G_W + 4 * w, 4)}, v{vGA + 2} offset:{256 * w}')
        sum4(G_W)
        for k in range(4):
            A(f'v_and_or_b32 v{a + k}, v{G_W + k}, v{vGM}, s{sTB + k}')
        A(f'buffer_store_dwordx4 {vr(a, 4)}, v{vGS}, {srd(S_WS)}, s{sdst} offen sc1')
        return
    for r in (8, 4):
        A(f'v_add_f32_dpp v{a}, v{a}, v{a} row_ror:{r} row_mask:0xf bank_mask:0xf')
        A(f'v_add_f32_dpp v{a + 2}, v{a + 2}, v{a + 2} row_ror:{r} row_mask:0xf bank_mask:0xf')
    for d in (1, 3, 0, 2):
        s_ = a + (d & 2)
        A(f'v_add_f32_dpp v{a + d}, v{s_}, v{s_} row_ror:2 row_mask:0xf bank_mask:0xf')
    A(f'''v_permlane16_swap_b32 v{a}, v{a + 1}
    v_permlane16_swap_b32 v{a + 2}, v{a + 3}''')
    for k in range(4):
        A(f'v_and_or_b32 v{a + k}, v{a + k}, v{vGM}, s{sTB + k}')
    A(f'buffer_store_dwordx4 {vr(a, 4)}, v{vGS}, {srd(S_WS)}, s{sdst} offen sc1')


def code_prefetch(nbytes):
    t = TMP + 4
    A(f"""s_getpc_b64 {sr(sT2, 2)}
    L_pc:
    v_and_b32 v{t}, 7, v0
    v_lshl_add_u32 v{t}, v{t}, 5, s{sG}
    v_lshlrev_b32 v{t}, 7, v{t}
    v_min_u32 v{t}, L_last-L_pc, v{t}
    v_mov_b32 v{t + 1}, s{sT3}
    v_add_co_u32 v{t}, vcc, s{sT2}, v{t}
    v_addc_co_u32 v{t + 1}, vcc, 0, v{t + 1}, vcc
    {'s_mov_b64 exec, 0xff' if OPT['to'] else ''}
    global_load_dword v{vFL}, {vr(t, 2)}, off
    {'s_mov_b64 exec, -1' if OPT['to'] else ''}""")


def code_refresh(bit, t, dst):
    if not OPT['cr'] & bit:
        return
    A(f"""s_getpc_b64 {sr(sT2, 2)}
    L_pc{bit}:
    v_and_b32 v{t}, {OPT['cn'] - 1}, v{vL}
    v_lshl_add_u32 v{t}, v{t}, 5, s{sG}
    v_lshlrev_b32 v{t}, 7, v{t}
    v_min_u32 v{t}, L_last-L_pc{bit}, v{t}
    v_mov_b32 v{t + 1}, s{sT3}
    v_add_co_u32 v{t}, vcc, s{sT2}, v{t}
    v_addc_co_u32 v{t + 1}, vcc, 0, v{t + 1}, vcc
    {'s_mov_b64 exec, 0xff' if OPT['to'] else ''}
    global_load_dword v{dst}, {vr(t, 2)}, off
    {'s_mov_b64 exec, -1' if OPT['to'] else ''}""")


def xid_store():
    t = TMP
    A(f'''s_getreg_b32 s{sXID}, hwreg(HW_REG_XCC_ID, 0, 4)
    s_lshl_b32 s{sT0}, s{sPID}, 2
    s_add_u32 s{sT0}, s{sT0}, {WS_XID}
    v_mov_b32 v{t}, s{sXID}
    v_cmp_eq_u32 vcc, 0, v0
    v_mov_b32 v{t + 1}, {OOB}
    v_cndmask_b32 v{t + 1}, v{t + 1}, v0, vcc
    buffer_store_dword v{t}, v{t + 1}, {srd(S_WS)}, s{sT0} offen sc1''')


def xid_load():
    A(f'''s_lshl_b32 s{sBGO}, s{sCL}, 6
    s_add_u32 s{sBGO}, s{sBGO}, {WS_XID}
    v_lshlrev_b32 v{vXID}, 2, v{vL15}
    buffer_load_dword v{vXID}, v{vXID}, {srd(S_WS)}, s{sBGO} offen sc1
    s_lshl_b32 s{sBGO}, s{sCL}, 10
    s_add_u32 s{sBGO}, s{sBGO}, {WS_FLAG}
    buffer_load_dword v{vFL}, v{vL16}, {srd(S_WS)}, s{sBGO} offen sc1''')


def xid_check():
    A(f'''v_cmp_ne_u32 vcc, s{sXID}, v{vXID}
    s_cmp_eq_u64 vcc, 0
    s_cselect_b32 s{sFAST}, {0 if OPT['slow'] else 1}, 0''')


def flag_prep(which):
    if which == 0:
        A(f"""s_lshl_b32 s{sBGO}, s{sCL}, 10
        s_add_u32 s{sBGO}, s{sBGO}, {WS_FLAG}
        s_lshl_b32 s{sBG2}, s{sJ}, 2
        s_add_u32 s{sBG2}, s{sBG2}, s{sW}
        s_lshl_b32 s{sBG2}, s{sBG2}, 2
        v_mov_b32 v{vFL + 2}, s{sBG2}
        v_mov_b32 v{vFL + 3}, s{sTAG}
        s_lshl_b32 s{sBG2}, s{sW}, 6
        v_lshl_add_u32 v{vFL}, v{vL15}, 2, s{sBG2}""")
    else:
        A(f"""s_lshl_b32 s{sBG2}, s{sW}, 6
        s_and_b32 s{sT7}, s{sJ}, 8
        s_add_u32 s{sBG2}, s{sBG2}, s{sT7}
        v_and_b32 v{vFL}, 13, v{vL}
        v_lshl_add_u32 v{vFL}, v{vFL}, 2, s{sBG2}""")
        if OPT['h2'] == 2:
            assert OPT['ca'] == 0
            A(f"""v_lshlrev_b32 v{vT16}, 4, v{vL15}
            v_cmp_eq_u32 vcc, 1, v{vQ}
            v_cndmask_b32 v{vFL}, v{vFL}, v{vT16}, vcc""")
        if OPT['xl'] or OPT['sn'] == 1:
            A(f"""s_lshl_b32 s{sBG2}, s{sDW}, 1
            s_add_u32 s{sBG2}, s{sBG2}, s{sT7}
            s_lshl_b32 s{sBG2}, s{sBG2}, 4
            v_writelane_b32 v{vFL}, s{sBG2}, 62
            s_add_u32 s{sBG2}, s{sBG2}, 16
            v_writelane_b32 v{vFL}, s{sBG2}, 63""")


vHT, sHT, sHS, sHC = 253, 82, 83, 71


def prewarm():
    A('v_mov_b32 v159, 0')
    for n in range(OPT['pw']):
        i = n + OPT['pwo']
        base = [WS_TP, WS_T, 0x3000000, 0x3800000][i // 4] + 4096 * (i % 4)
        A(f'''s_mul_i32 s{sT0}, s{sME}, {BS}
        s_add_u32 s{sT0}, s{sT0}, {base}
        buffer_store_dwordx4 v[156:159], v{vT16}, {srd(S_WS)}, s{sT0} offen sc1''')


def hint_prep():
    A(f'''s_lshl_b32 s{sHT}, s{sXC}, 7
    s_add_u32 s{sHT}, s{sHT}, {WS_HINT}
    s_lshl_b32 s{sHS}, s{sG}, 2
    s_add_u32 s{sHS}, s{sHS}, s{sHT}
    s_cmp_eq_u32 s{sW}, 0
    s_cselect_b32 s{sHS}, s{sHS}, {OOB}
    v_lshlrev_b32 v{vHT}, 10, v{vH}
    buffer_load_dword v{vHT}, v{vHT}, {srd(S_WS)}, s{sHT} offen sc1''')


def hint_set(k):
    A(f'''v_mov_b32 v{vHT - 1}, s{sTAG}
    buffer_store_dword v{vHT - 1}, off, {srd(S_WS)}, s{sHS} offset:{1024 * k}''')


def hint_ld(k):
    return f'buffer_load_dword v{vHT}, v{vHT - 2}, {srd(S_WS)}, s{sHT} offen offset:{1024 * k} sc1'


def hint_issue(k):
    A(f'''v_lshlrev_b32 v{vHT - 2}, 2, v{vL31}
    s_mov_b32 s{sHC}, {OPT['hn']}
    {hint_ld(k)}''')


def hint_check(k):
    A(f's_branch L_chk_h{k}')
    A.blob(f'''L_retry_h{k}:
    s_sub_u32 s{sHC}, s{sHC}, 1
    s_cmp_lt_i32 s{sHC}, 0
    s_cbranch_scc1 L_ok_h{k}
    {hint_ld(k)}
    s_waitcnt vmcnt(0)''')
    A(f'''L_chk_h{k}:
    v_cmp_ne_u32 vcc, s{sTAG}, v{vHT}
    s_cbranch_vccnz L_retry_h{k}
    L_ok_h{k}:''')


def insert_at(start, pct, fn):
    it = A.items
    k = start + (len(it) - start) * pct // 100
    while k < len(it) and it[k].kind != 'valu':
        k += 1
    inside = [x.text[:5] for x in it[start:k] if x.kind == 'label']
    assert not inside or inside[-1] != 'L_chk'
    it[k:k] = A.capture(fn)


def nvm(items):
    return sum(1 for i in items if i.kind == 'vmem')


def after_last(pred):
    i = max([k for k, x in enumerate(A.items) if x.kind == 'vmem' and pred(x)] or [len(A.items) - 300])
    return min(63, nvm(A.items[i + 1:]))


def flag_publish(which):
    if which == 3:
        younger = after_last(lambda x: 'store_dwordx4' in x.op and 'offset:0 sc1' in x.text)
    elif which:
        younger = after_last(lambda x: 'store_dwordx4' in x.op)
    else:
        younger = after_last(lambda x: 'store' in x.op or ' lds' in x.text)
    st = f'buffer_store_dword v{vFL + 3}, v{vFL + 2}, {srd(S_WS)}, s{sBGO} offen offset:{256 * which}'
    if which and OPT['hf']:
        A(f's_waitcnt vmcnt({younger})\n{st} sc1')
        return
    A(f"""s_cmp_eq_u32 s{sFAST}, 0
    s_waitcnt vmcnt({min(younger, 63)})
    s_cbranch_scc1 L_slow_pub{which}
    {st}
    L_join_pub{which}:""")
    RETRY('.segment')
    RETRY(f'L_slow_pub{which}:')
    if which == 0 and not OPT['sn'] or which == 1 and OPT['h2']:
        RETRY('buffer_wbl2 sc1\ns_waitcnt vmcnt(0)')
    RETRY(f'{st} sc1\ns_branch L_join_pub{which}')


def flag_ld(which):
    return f'buffer_load_dword v{vFL + 1}, v{vFL}, {srd(S_WS)}, s{sBGO} offen offset:{256 * which} sc1'


def flag_check(which):
    poll_check(f'fl{which}', flag_ld(which), tagcheck([vFL + 1], 0))
    if which == 0 and not OPT['sn'] or which == 1 and OPT['h2']:
        A(f"""s_cmp_eq_u32 s{sFAST}, 0
        s_cbranch_scc1 L_slow_acq{which}
        L_join_acq{which}:""")
        RETRY('.segment')
        RETRY(f"""L_slow_acq{which}:
        buffer_inv sc1
        s_waitcnt vmcnt(0)
        s_branch L_join_acq{which}""")


sW1ST, sW1S = 86, 87
vU1, vU2 = 251, 252


def fmt_prep():
    t = TMP
    A(f"""s_mul_i32 s{sT0}, s{sME}, 205
    s_lshr_b32 s{sT0}, s{sT0}, 10
    s_mul_i32 s{sT1}, s{sT0}, 5
    s_sub_u32 s{sT1}, s{sME}, s{sT1}
    s_lshl_b32 s{sT1}, s{sT1}, 2
    s_add_u32 s{sT1}, s{sT1}, s{sW}
    s_mul_i32 s{sT2}, s{sT0}, 40960
    s_lshl_b32 s{sT3}, s{sT1}, 11
    s_add_u32 s{sW2ST}, s{sT2}, s{sT3}
    s_add_u32 s{sW2ST}, s{sW2ST}, {WS_W2P}
    s_mul_i32 s{sT2}, s{sT0}, 171
    s_lshr_b32 s{sT2}, s{sT2}, 9
    s_mul_i32 s{sT3}, s{sT2}, 3
    s_sub_u32 s{sT0}, s{sT0}, s{sT3}""")
    cols(sT3, sT4, sT2)
    if OPT['um']:
        UA = f'''s_lshr_b32 s{sT0}, s{sG}, 1
        s_and_b32 s{sT0}, s{sT0}, 8
        s_and_b32 s{sT1}, s{sG}, 7
        s_or_b32 s{sT0}, s{sT0}, s{sT1}
        s_lshl_b32 s{sT0}, s{sT0}, 3
        s_add_u32 s{sT0}, s{sT0}, s{sXC}
        s_bitcmp1_b32 s{sG}, 3
        s_cselect_b32 s{sT0}, 255, s{sT0}'''
    elif OPT['ua']:
        UA = f'''s_sub_u32 s{sT0}, 30, s{sG}
        s_lshl_b32 s{sT0}, s{sT0}, 2
        s_add_u32 s{sT0}, s{sT0}, s{sXC}
        s_bitcmp1_b32 s{sG}, 0
        s_cselect_b32 s{sT0}, 255, s{sT0}'''
    else:
        UA = f's_sub_u32 s{sT0}, 255, s2'
    A(f"""s_add_u32 s{sT3}, s{sT3}, s{sT0}
    s_cmp_lt_u32 s{sT0}, 2
    s_cselect_b32 s{sT3}, s{sT3}, s{sT4}
    s_mul_i32 s{sT3}, s{sT3}, 40960
    s_lshl_b32 s{sT1}, s{sT1}, 6
    s_add_u32 s{sW2O}, s{sT3}, s{sT1}
    s_cmp_lt_u32 s{sME}, 240
    s_cselect_b32 s{sW2ST}, s{sW2ST}, {OOB}
    s_cselect_b32 s{sW2O}, s{sW2O}, {OOB // 2}
    {UA}
    s_and_b32 s{sT1}, s{sT0}, 3
    s_lshl_b32 s{sT1}, s{sT1}, 2
    s_add_u32 s{sT1}, s{sT1}, s{sW}
    s_lshr_b32 s{sT0}, s{sT0}, 2""")
    cols(sT3, sT4, sT1)
    A(f"""s_mul_i32 s{sT2}, s{sT0}, {32 * 3072}
    s_lshl_b32 s{sT4}, s{sT4}, 6
    s_add_u32 s{sW1S}, s{sT2}, s{sT4}
    s_mul_i32 s{sT1}, s{sT1}, 20
    s_add_u32 s{sT1}, s{sT1}, s{sT0}
    s_lshl_b32 s{sT1}, s{sT1}, 11
    s_add_u32 s{sW1ST}, s{sT1}, {WS_W1P}
    s_cmp_lt_u32 s{sT0}, 20
    s_cselect_b32 s{sW1ST}, s{sW1ST}, {OOB}
    {f's_mov_b32 s{sW1ST}, {OOB}' if OPT['now'] & 4 else ''}
    {f's_mov_b32 s{sW2ST}, {OOB}' if OPT['now'] & 8 else ''}
    {f's_mov_b32 s{sW1S}, {OOB // 2}' if OPT['now'] & 16 else ''}
    {f's_mov_b32 s{sW2O}, {OOB // 2}' if OPT['now'] & 32 else ''}
    v_lshrrev_b32 v{t}, 2, v{vL}
    v_and_b32 v{t + 1}, 3, v{vL}
    v_lshlrev_b32 v{t + 1}, 4, v{t + 1}
    v_mul_u32_u24 v{t + 2}, 1280, v{t}
    v_add_u32 v{vU2}, v{t + 1}, v{t + 2}
    v_mul_u32_u24 v{t + 2}, 3072, v{t}
    v_add_u32 v{vU1}, v{t + 1}, v{t + 2}""")


def fmt_issue():
    if OPT['now'] & 1:
        return
    for sd, so, v, pitch, lds in ((S_W1, sW1S, vU1, 3072, B_W1), (S_W2, sW2O, vU2, 1280, B_W2)):
        A(f"""s_add_u32 m0, s{sWB}, {BIG + lds}
        buffer_load_dwordx4 v{v}, {srd(sd)}, s{so} offen lds
        s_add_u32 m0, s{sWB}, {BIG + lds + 1024}
        s_add_u32 s{so}, s{so}, {16 * pitch}
        buffer_load_dwordx4 v{v}, {srd(sd)}, s{so} offen lds""")


def fmt_finish():
    if OPT['now'] & 1:
        return
    A(f's_waitcnt vmcnt({min(63, after_last(lambda x: srd(S_W2) in x.text and x.lds))})')
    fmt_body()


def fmt_addr():
    t = 96
    A(f"""v_lshrrev_b32 v{t}, 2, v{vL}
    v_lshlrev_b32 v{t}, 6, v{t}
    v_and_b32 v99, 3, v{vL}
    v_lshl_add_u32 v{t}, v99, 3, v{t}
    v_add_u32 v242, s{sWB}, v{t}
    v_lshl_add_u32 v99, v{vQ}, 8, v242""")


def fmt_body():
    for i in range(2):
        A(f'ds_read_b64_tr_b16 {ar(4 * i, 2)}, v99 offset:{BIG + B_W1 + 32 * i}')
        A(f'ds_read_b64_tr_b16 {ar(2 + 4 * i, 2)}, v99 offset:{BIG + B_W1 + 32 * i + 256}')
    for i in range(2):
        A(f'ds_read_b64_tr_b16 {ar(8 + 4 * i, 2)}, v242 offset:{BIG + B_W2 + 32 * i}')
        A(f'ds_read_b64_tr_b16 {ar(10 + 4 * i, 2)}, v242 offset:{BIG + B_W2 + 32 * i + 1024}')
    for i in range(4):
        A(f'buffer_store_dwordx4 {ar(4 * i, 4)}, v{vLW}, {srd(S_WS)}, s{sW1ST if i < 2 else sW2ST} offen offset:{1024 * (i & 1)} sc1')


def w_prep():
    A(f"""s_mul_i32 s{sW2O}, s{sW}, {12 * 40960}
    s_and_b32 s{sT0}, s{sJ}, {3 if OPT['emu'] & 1 else 7}
    s_mul_i32 s{sT0}, s{sT0}, 5120
    s_add_u32 s{sW2O}, s{sW2O}, s{sT0}
    s_add_u32 s{sW2ST}, s{sW2O}, {WS_W2P}
    s_mul_i32 s{sW1ST}, s{sJ}, 40960
    s_mul_i32 s{sT0}, s{sW}, 10240
    s_add_u32 s{sW1ST}, s{sW1ST}, s{sT0}
    s_add_u32 s{sW1ST}, s{sW1ST}, {WS_W1P}""")


def w1_prep():
    t = TMP
    A(f"""v_lshrrev_b32 v{t}, 3, v{vL}
    v_and_b32 v{t + 1}, 2, v{t}
    v_and_b32 v{t + 2}, 7, v{vL}
    v_xor_b32 v{t + 1}, v{t + 1}, v{t + 2}
    v_mul_u32_u24 v{t}, 3072, v{t}
    v_lshl_add_u32 v{vW1}, v{t + 1}, 4, v{t}
    v_xor_b32 v{vW1 + 1}, 64, v{vW1}
    v_add_u32 v{vW1 + 1}, {8 * 3072}, v{vW1 + 1}
    s_mul_i32 s{sW1O}, s{sW}, {160 * 3072}
    s_lshl_b32 s{sT1}, s{sCA}, 6
    {f's_and_b32 s{sT1}, s{sT1}, 0x5ff' if OPT['emu'] & 2 else ''}
    s_add_u32 s{sW1O}, s{sW1O}, s{sT1}""")


def w1_dma():
    for n in range(20):
        A(f's_add_u32 m0, s{sWB}, {BIG + 1024 * n}')
        if n and n % 2 == 0:
            A(f's_add_u32 s{sW1O}, s{sW1O}, {16 * 3072}')
        A(f'buffer_load_dwordx4 v{vW1 + (n & 1)}, {srd(S_W1)}, s{sW1O} offen lds')


def wb_dma():
    for n in range(10):
        A(f's_add_u32 m0, s{sWB}, {BIG + 20480 + 1024 * n}')
        A(f's_add_u32 s{sW1E}, s{sW1ST}, {1024 * n}')
        A(f'buffer_load_dwordx4 v{vLW}, {srd(S_WS)}, s{sW1E} offen sc1 lds')


KA = [k for u in range(2) for k in range(12) if k % 3 == u] if OPT['t3'] else [k for k in range(12) if k % 3 < 2]
KB = [k for k in range(12) if k % 3 == 2]


def w2_load():
    for kl in KA + KB:
        for nt in range(5):
            if nt in (0, 4):
                A(f's_add_u32 s{sW2O}, s{sW2ST}, {40960 * kl + 1024 * nt}')
            A(f'buffer_load_dwordx4 {ar((kl * 5 + nt) * 4, 4)}, v{vLW}, {srd(S_WS)}, s{sW2O} offen offset:{1024 * (nt & 3)} sc1')


F_RAW = 200
F_W = 216
vFA = 196


def filt_prep():
    t = TMP
    A(f'''s_mul_i32 s{sT0}, s{sG}, 20
    s_sub_u32 s{sT1}, 623, s{sT0}
    s_mul_i32 s{sT3}, s{sW}, 5
    s_sub_u32 s{sT4}, 15, s{sT3}
    s_cmp_lt_u32 s{sG}, 16
    s_cselect_b32 s{sT0}, s{sT0}, s{sT1}
    s_cselect_b32 s{sT2}, 1, -1
    s_cselect_b32 s{sT3}, s{sT3}, s{sT4}
    s_add_u32 s{sT4}, s{sT0}, s{sK1}
    s_and_b32 s{sT4}, s{sT4}, 1
    s_add_u32 s{sFSH}, s{sT3}, s{sT4}
    s_sub_u32 s{sT0}, s{sT0}, s{sT4}
    s_lshl_b32 s{sT5}, s{sW}, 9
    s_add_u32 s{sT5}, s{sT5}, s{sK1}
    s_movk_i32 s{sT6}, 321''')
    for i in range(3):
        A(f'''v_add_u32 v{t}, {64 * i}, v{vL}
        v_mul_u32_u24 v{t + 1}, 171, v{t}
        v_lshrrev_b32 v{t + 1}, 9, v{t + 1}
        v_mad_i32_i24 v{t + 2}, v{t + 1}, -3, v{t}
        v_lshl_add_u32 v{t + 1}, v{t + 1}, 3, s{sT5}
        v_mul_i32_i24 v{t + 1}, s{sT2}, v{t + 1}
        v_and_b32 v{t + 1}, 2047, v{t + 1}
        v_lshl_add_u32 v{t + 2}, v{t + 2}, 3, s{sT0}
        v_mad_u32_u24 v{t + 1}, v{t + 1}, s{sT6}, v{t + 2}
        v_lshlrev_b32 v{vFA + i}, 1, v{t + 1}''')


def filt_dma():
    for p, s_ in enumerate((S_WR, S_WI)):
        for i in range(3):
            A(f's_add_u32 m0, s{sWB}, {BIG + B_F + 3072 * p + 1024 * i}')
            A(f'buffer_load_dwordx4 v{vFA + i}, {srd(s_)}, 0 offen lds')


def filt_finish():
    t = TMP + 4
    sc = 1.0 / (2048.0 * 640.0)
    A(f'''s_lshr_b32 s{sT0}, s{sFSH}, 1
    s_lshl_b32 s{sT0}, s{sT0}, 2
    s_add_u32 s{sT0}, s{sT0}, {BIG + B_F}
    s_and_b32 s{sFSH}, s{sFSH}, 1
    s_lshl_b32 s{sFSH}, s{sFSH}, 4
    v_mul_u32_u24 v{t}, 30720, v{vQ}
    v_mul_u32_u24 v{t + 1}, 48, v{vL15}
    v_add3_u32 v{vFA}, v{t}, v{t + 1}, s{sT0}
    v_add_u32 v{vFA + 1}, 1536, v{vFA}
    v_add_u32 v{vFA + 2}, 3072, v{vFA}
    v_add_u32 v{vFA + 3}, {3072 + 1536}, v{vFA}''')
    for j in range(4):
        for p in range(2):
            o = 192 * (j & 1)
            A(f'ds_read2_b32 {vr(F_RAW + 4 * j + 2 * p, 2)}, v{vFA + 2 * p + (j >> 1)} offset0:{o} offset1:{o + 1}')
    A(f'''s_cmp_lt_u32 s{sG}, 16
    s_cselect_b64 vcc, -1, 0
    s_cselect_b32 s{sT3}, 0, 0x80000000
    s_mov_b32 s{sT0}, {f2u(sc)}
    s_mov_b32 s{sT1}, {f2u(2 * sc)}
    s_xor_b32 s{sT2}, s{sT0}, s{sT3}
    s_xor_b32 s{sT3}, s{sT1}, s{sT3}''')
    for j in range(4):
        for p in range(2):
            r = F_RAW + 4 * j + 2 * p
            A(f'''v_lshrrev_b64 {vr(r, 2)}, s{sFSH}, {vr(r, 2)}
            v_lshlrev_b32 v{t}, 16, v{r}
            v_lshlrev_b32 v{t + 1}, 16, v{r + 1}
            v_and_b32 v{t + 2}, {HI}, v{r}
            v_cndmask_b32 v{t + 3}, v{t + 1}, v{t}, vcc
            v_cndmask_b32 v{t + 4}, v{t}, v{t + 1}, vcc
            v_mul_f32 v{F_W + 8 + 4 * p + j}, s{sT1 + 2 * p}, v{t + 2}
            v_mul_f32 v{F_W + 4 * p + j}, s{sT0 + 2 * p}, v{t + 3}
            v_mul_f32 v{F_W + 16 + 4 * p + j}, s{sT1 + 2 * p}, v{t + 4}''')


X_RAW = 60
X_N = 72
K1_M1 = 100
K1_M2 = 124
MODR = 24
K1A = 200
aMX, aMWX, aMW, aADD, aMR, aEW, aER, aST = K1A, K1A + 1, K1A + 2, K1A + 4, K1A + 5, K1A + 8, K1A + 11, K1A + 14


def x1_issue():
    A(f'''s_lshl_b32 s{sT0}, s{sW}, 9
    s_add_u32 s{sT0}, s{sT0}, s{sME}
    s_mul_i32 s{sT0}, s{sT0}, 1280
    s_add_u32 s{sT1}, s{sT0}, {256 * 1280}
    v_lshlrev_b32 v{TMP + 7}, 2, v{vH}
    v_lshl_add_u32 v{TMP + 7}, v{vL31}, 3, v{TMP + 7}
    buffer_load_dwordx4 {vr(X_RAW, 4)}, v{vL16}, {srd(S_X)}, s{sT0} offen
    buffer_load_dwordx4 {vr(X_RAW + 4, 4)}, v{vL16}, {srd(S_X)}, s{sT1} offen
    buffer_load_dword v{X_RAW + 8}, v{TMP + 7}, {srd(S_X)}, s{sT0} offen offset:1024
    buffer_load_dword v{X_RAW + 9}, v{TMP + 7}, {srd(S_X)}, s{sT1} offen offset:1024''')


def k1_const_a():
    t = TMP
    A(f'''v_lshrrev_b32 v{t}, 3, v{vL31}
    v_cvt_f32_u32 v{t}, v{t}
    v_mul_f32 v{t}, {f2u(0.4)}, v{t}
    v_and_b32 v{t + 1}, 7, v{vL}
    v_cvt_f32_u32 v{t + 1}, v{t + 1}
    v_mul_f32 v{t + 1}, {f2u(0.125)}, v{t + 1}
    v_cvt_f32_u32 v{t + 2}, v{vH}
    v_mul_f32 v{t + 2}, v{t + 2}, v{t}
    v_and_b32 v{t + 10}, 1, v{vL}
    v_mul_u32_u24 v{t + 10}, 0x8000, v{t + 10}
    v_lshl_or_b32 v{t + 10}, v{t + 10}, 16, v{t + 10}''')
    for tau in range(3):
        fmamk(t + 3, t, 2 * tau, t + 2)
        for p in range(2):
            fmamk(t + 4, t + 1, 2 * p, t + 3)
            fmamk(t + 5, t + 1, 2 * p + 1, t + 3)
            sincos(t + 4, t + 6, t + 8)
            sincos(t + 5, t + 7, t + 9)
            A(f'v_cvt_pk_bf16_f32 v{K1_M1 + 4 * tau + p}, v{t + 6}, v{t + 7}')
            A(f'v_cvt_pk_bf16_f32 v{K1_M1 + 12 + 4 * tau + p}, -v{t + 8}, -v{t + 9}')
    A('s_mov_b32 exec_lo, 0')
    for p in range(2):
        A(f'v_mov_b32 v{K1_M1 + 8 + p}, 0')
        A(f'v_mov_b32 v{K1_M1 + 20 + p}, 0')
    A('s_mov_b32 exec_lo, -1')
    for k in range(6):
        for p in range(2):
            A(f'v_xor_b32 v{K1_M1 + 4 * k + 2 + p}, v{t + 10}, v{K1_M1 + 4 * k + p}')


def k1_const_b():
    t = 216
    A(f'''v_cvt_f32_u32 v{t}, v{vL31}
    v_lshlrev_b32 v{t + 1}, 4, v{vH}
    v_add_u32 v{t + 1}, s{sW}, v{t + 1}
    v_cvt_f32_u32 v{t + 1}, v{t + 1}
    v_mul_f32 v{t}, {f2u(1.0 / 128)}, v{t}
    v_mul_f32 v{t + 1}, v{t + 1}, v{t}
    v_and_b32 v{t + 10}, 1, v{vL}
    v_mul_u32_u24 v{t + 10}, 0x8000, v{t + 10}
    v_lshl_or_b32 v{t + 10}, v{t + 10}, 16, v{t + 10}''')
    for u in range(2):
        for jp in (0, 2):
            fmamk(t + 2, t, 4 * (8 * u + jp), t + 1)
            fmamk(t + 5, t, 4 * (8 * u + jp + 1), t + 1)
            sincos(t + 2, t + 3, t + 4)
            sincos(t + 5, t + 6, t + 7)
            for jj, e in ((jp, 3), (jp + 1, 6)):
                A(f'v_cvt_pk_bf16_f32 v{K1_M2 + 4 * u + jj}, v{t + e}, v{t + e + 1}')
                A(f'v_cvt_pk_bf16_f32 v{K1_M2 + 16 + 4 * u + jj}, -v{t + e + 1}, v{t + e}')
    for p in range(2):
        for k in range(8):
            A(f'v_xor_b32 v{K1_M2 + 16 * p + 8 + k}, v{t + 10}, v{K1_M2 + 16 * p + k}')


def ln1():
    t = TMP
    AD = 92
    A(f'''v_mul_u32_u24 v{t}, 3, v{vL}
    v_lshl_add_u32 v{t + 1}, v{vL15}, 4, s{sWB}''')
    for k in range(5):
        A(f'v_add_u32 v{t + 2}, {k}, v{t}')
        mod5(t + 2, t + 2, t + 3)
        A(f'v_lshl_add_u32 v{AD + k}, v{t + 2}, 10, v{t + 1}')
    A(f'''v_lshl_add_u32 v{t + 1}, v{vL31}, 3, s{sWB}
    v_lshl_add_u32 v{t + 1}, v{vH}, 9, v{t + 1}
    v_lshl_add_u32 v{t}, v{vL31}, 1, v{vH}''')
    for e in range(2):
        A(f'v_lshl_add_u32 v{t + 2}, v{t}, 1, {2 + e}')
        mod5(t + 2, t + 2, t + 3)
        A(f'v_lshl_add_u32 v{AD + 5 + e}, v{t + 2}, 10, v{t + 1}')
    for r in range(2):
        for k in range(4):
            unpack(X_N + 4 * k + r, X_N + 4 * k + 2 + r, X_RAW + 4 * r + k)
        unpack(X_N + 16 + r, X_N + 18 + r, X_RAW + 8 + r)
    pk('add', t, X_N, X_N + 2)
    pk('mul', t + 2, X_N, X_N)
    for e in range(1, 10):
        if e > 1:
            pk('add', t, t, X_N + 2 * e)
        pk('fma', t + 2, X_N + 2 * e, X_N + 2 * e, t + 2)
    A(f'''v_permlane32_swap_b32 v{t}, v{t + 1}
    v_permlane32_swap_b32 v{t + 2}, v{t + 3}
    v_add_f32 v{t}, v{t}, v{t + 1}
    v_add_f32 v{t + 2}, v{t + 2}, v{t + 3}
    v_permlane16_swap_b32 v{t}, v{t + 2}
    v_add_f32 v{t}, v{t}, v{t + 2}''')
    for r in (8, 4, 2, 1):
        A(f'v_add_f32_dpp v{t}, v{t}, v{t} row_ror:{r} row_mask:0xf bank_mask:0xf')
    A(f'v_mul_f32 v{t}, {f2u(1.0 / 640)}, v{t}')
    for k in range(4):
        A(f'v_readlane_b32 s{sT0 + k}, v{t}, {16 * k}')
    for r in range(2):
        A(f'v_mov_b32 v{t + 2 + r}, s{sT0 + 2 * r}')
    for r in range(2):
        A(f'v_fma_f32 v{t + r}, -v{t + 2 + r}, v{t + 2 + r}, s{sT1 + 2 * r}')
    for r in range(2):
        A(f'v_max_f32 v{t + r}, 0, v{t + r}')
    for r in range(2):
        A(f'v_add_f32 v{t + r}, {f2u(1e-5)}, v{t + r}')
    for r in range(2):
        A(f'v_rsq_f32 v{t + r}, v{t + r}')
    A(f'''s_lshl_b32 s{sT0}, s{sW}, 8
    s_add_u32 s{sT0}, s{sT0}, {BIG + B_N}''')
    pk('mul', t + 2, t + 2, t)
    for e in range(10):
        pk('fma', X_N + 2 * e, X_N + 2 * e, t, t + 2, mods='neg_lo:[0,0,1] neg_hi:[0,0,1]')
        if e < 8:
            A(f'ds_write_b64 v{AD + e % 5}, {vr(X_N + 2 * e, 2)} offset:{BIG + B_N + (e & 3) * 256 + (e >> 2) * 8}')
        else:
            A(f'ds_write_b64 v{AD + 5 + e - 8}, {vr(X_N + 2 * e, 2)} offset:{BIG + B_N + (e - 8) * 256}')
    A(f'''v_lshl_add_u32 v{t + 1}, v{vL31}, 3, s{sT0}
    v_lshl_add_u32 v{t}, v{vH}, 10, v{t + 1}
    s_waitcnt lgkmcnt(0)
    s_barrier''')
    for tau in range(3):
        ad = t if tau < 2 else t + 1
        for p in (0, 2):
            A(f'ds_read2st64_b64 {vr(X_N + 8 * tau + 2 * p, 4)}, v{ad} offset0:{4 * tau + 60 * p} offset1:{4 * tau + 60 * p + 60}')


def x_keep():
    for k in range(4):
        A(f'v_permlane32_swap_b32 v{X_RAW + k}, v{X_RAW + 4 + k}')
    A(f'v_permlane32_swap_b32 v{X_RAW + 8}, v{X_RAW + 9}')
    for k in range(10):
        A(f'v_accvgpr_write_b32 a{240 + k}, v{X_RAW + k}')


def k1_addr():
    t = TMP + 4
    A(f'''s_lshl_b32 s{sT0}, s{sW}, 8
    s_add_u32 s{sT0}, s{sT0}, 4096
    s_mov_b32 s{sT1}, {L_M1}
    v_lshl_add_u32 v{t}, v{vL15}, 4, s{sT0}
    v_mul_u32_u24 v{t + 1}, {MP}, v{vQ}
    v_add_u32 v{aMX}, v{t}, v{t + 1}
    v_lshrrev_b32 v{t}, 2, v{t}
    v_and_b32 v{t + 1}, 1, v{vQ}
    v_lshl_add_u32 v{t + 1}, v{t + 1}, 1, v{vH}
    v_mul_u32_u24 v{t + 1}, 1280, v{t + 1}
    v_add3_u32 v{aMWX}, v{t}, v{t + 1}, s{sT1}
    v_lshl_add_u32 v{aMW}, v0, 2, s{sT1}
    v_cmp_lt_u32 vcc, 159, v0
    v_cndmask_b32 v{aADD}, 0, 1.0, vcc
    v_lshl_add_u32 v{t}, v{vL31}, 2, s{sW}
    v_mul_u32_u24 v{t + 1}, 3, v{t}
    s_mul_i32 s{sT0}, s{sW}, 1280
    s_add_u32 s{sT0}, s{sT0}, s{sT1}
    v_lshl_add_u32 v{t}, v{vL31}, 2, s{sT0}
    v_lshl_add_u32 v{t + 2}, v{vH}, 1, v{t + 1}''')
    for tau in range(3):
        A(f'v_add_u32 v{t + 3}, {4 * tau}, v{t + 2 if tau < 2 else t + 1}')
        mod5(t + 3, t + 3, t + 4)
        A(f'v_lshl_add_u32 v{aMR + tau}, v{t + 3}, 7, v{t}')
    for p in range(4):
        A(f's_mov_b32 s{sLD + p}, {WS_MOD + MP * p}')


aSX, sSK, sCH = 232, 81, 97


def k1_addr2():
    t = 228
    A(f'''s_mul_i32 s{sT0}, s{sW}, 6144
    s_add_u32 s{sT0}, s{sT0}, {L_X1E}
    v_lshl_add_u32 v{aEW}, v{vL31}, 3, s{sT0}
    v_lshl_add_u32 v{aEW}, v{vH}, 10, v{aEW}
    v_add_u32 v{aEW + 1}, 2048, v{aEW}
    v_add_u32 v{aEW + 2}, 4096, v{aEW}
    v_lshrrev_b32 v{t}, 5, v0
    v_lshlrev_b32 v{t + 1}, 8, v{t}''')
    for c in range(3):
        A(f'''v_add_u32 v{t + 2}, {13 * c}, v{vL31}
        v_and_b32 v{t + 2}, 31, v{t + 2}
        v_lshl_add_u32 v{t + 2}, v{t + 2}, 3, v{t + 1}
        v_add_u32 v{aER + c}, {L_X1E + 2048 * c}, v{t + 2}''')
    A(f'''v_lshlrev_b32 v{t + 1}, 4, v{vL31}
    v_sub_u32 v{t + 2}, 8, v{t}
    v_and_b32 v{t + 2}, 7, v{t + 2}
    v_lshl_add_u32 v{aST + 1}, v{t + 2}, 11, v{t + 1}
    v_lshl_add_u32 v{aST}, v{t}, 11, v{t + 1}
    s_mul_i32 s{sST}, s{sME}, {BS}
    s_add_u32 s{sST}, s{sST}, {WS_T}
    v_cmp_gt_u32 {sr(sM1, 2)}, 19, v{vL31}
    v_cmp_gt_u32 {sr(sM2, 2)}, 6, v{vL31}''')


def mod1_loads():
    s = ''
    for p in range(4):
        s += f'buffer_load_dwordx4 {vr(MODR + 4 * p, 4)}, v{vT16}, {srd(S_WS)}, s{sLD + p} offen sc1\n'
    s += f'buffer_load_dwordx4 {vr(MODR + 16, 4)}, v{aMX}, {srd(S_WS)}, s{sLD} offen sc1\n'
    return s


def bytecheck(base, n, t):
    c = ''
    for g in range(n):
        r = base + 4 * g
        for k in range(4):
            c += f'v_xor_b32 v{r + k}, s{sTB + k}, v{r + k}\n'
        if g == 0:
            c += f'v_or3_b32 v{t}, v{r}, v{r + 1}, v{r + 2}\nv_or_b32 v{t}, v{t}, v{r + 3}\n'
        else:
            c += f'v_or3_b32 v{t}, v{t}, v{r}, v{r + 1}\nv_or3_b32 v{t}, v{t}, v{r + 2}, v{r + 3}\n'
    return c + f'v_and_b32 v{t}, 0xff, v{t}\nv_cmp_ne_u32 vcc, 0, v{t}\n'


def k1_poll():
    poll_check('mod1', mod1_loads(), bytecheck(MODR, 5, TMP))
    stamp('mod1')


def round_add(r, add, t):
    A(f'v_cvt_pk_bf16_f32 v{t}, v{r}, v{r + 1}')
    A(f'v_cvt_pk_bf16_f32 v{t + 1}, v{r + 2}, v{r + 3}')
    unpack(r, r + 1, t)
    unpack(r + 2, r + 3, t + 1)
    if add is None:
        return
    for p in (0, 2):
        pk('add', r + p, r + p, add, mods='op_sel_hi:[1,0]')
    A(f'v_cvt_pk_bf16_f32 v{t}, v{r}, v{r + 1}')
    A(f'v_cvt_pk_bf16_f32 v{t + 1}, v{r + 2}, v{r + 3}')
    unpack(r, r + 1, t)
    unpack(r + 2, r + 3, t + 1)


def sum4(r):
    for p in (0, 2):
        pk('add', r + p, r + p, r + 4 + p)
        pk('add', r + 8 + p, r + 8 + p, r + 12 + p)
    for p in (0, 2):
        pk('add', r + p, r + p, r + 8 + p)


def radix4(z, P, inverse):
    pk('add', P, z, z + 4)
    pk('add', P + 2, z, z + 4, mods=NEG1)
    pk('add', P + 4, z + 2, z + 6)
    pk('add', P + 6, z + 2, z + 6, mods=NEG1)
    pk('add', z, P, P + 4)
    pk('add', z + 4, P, P + 4, mods=NEG1)
    a, b = ('neg_lo', 'neg_hi') if inverse else ('neg_hi', 'neg_lo')
    pk('add', z + 2, P + 2, P + 6, mods=f'op_sel:[0,1] op_sel_hi:[1,0] {a}:[0,1]')
    pk('add', z + 6, P + 2, P + 6, mods=f'op_sel:[0,1] op_sel_hi:[1,0] {b}:[0,1]')


def k1_head():
    t = TMP
    x = MODR + 16
    A(f'''v_permlane32_swap_b32 v{x}, v{x + 1}
    v_permlane32_swap_b32 v{x + 2}, v{x + 3}''')
    sum4(MODR)
    A(f'''v_add_f32 v{x}, v{x}, v{x + 1}
    v_add_f32 v{x + 2}, v{x + 2}, v{x + 3}''')
    round_add(MODR, aADD, t)
    A(f'''v_permlane16_swap_b32 v{x}, v{x + 2}
    ds_write2st64_b32 v{aMW}, v{MODR}, v{MODR + 1} offset0:0 offset1:5
    ds_write2st64_b32 v{aMW}, v{MODR + 2}, v{MODR + 3} offset0:10 offset1:15
    v_add_f32 v{x}, v{x}, v{x + 2}
    v_cvt_pk_bf16_f32 v{x}, v{x}, v{x}
    v_lshlrev_b32 v{x}, 16, v{x}
    v_add_f32 v{x}, 1.0, v{x}
    v_cvt_pk_bf16_f32 v{x}, v{x}, v{x}
    v_lshlrev_b32 v{x}, 16, v{x}
    ds_write_b32 v{aMWX}, v{x}
    .fill {OPT['g1']}''')
    fine(1, '1a_wr')
    A('s_waitcnt lgkmcnt(0)\ns_barrier')
    fine(1, '1b_bar')


def k1_main():
    t = TMP
    OPA = 60
    DRE, DIM = 24, 40
    for tau in range(3):
        A(f'ds_read2_b32 {vr(t + 2 * tau, 2)}, v{aMR + tau} offset0:0 offset1:160')
    A(f'.fill {OPT["g2"]}')
    for tau in range(3):
        for p in range(4):
            n = X_N + 8 * tau + 2 * p
            pk('fma', n, n, t + 2 * tau, t + 2 * tau, mods='op_sel:[0,1,0] op_sel_hi:[1,1,0]')
    O = 76

    def cva(tau):
        for p in range(4):
            n = X_N + 8 * tau + 2 * p
            A(f'v_cvt_pk_bf16_f32 v{OPA + 4 * tau + p}, v{n}, v{n + 1}')
    cva(0)
    A('.fill 8')
    for tau in range(3):
        A(f'v_mfma_f32_32x32x16_bf16 {vr(DRE, 16)}, {vr(OPA + 4 * tau, 4)}, {vr(K1_M1 + 4 * tau, 4)}, {vr(DRE, 16) if tau else 0}')
        if tau < 2:
            cva(tau + 1)
        A(f'.fill {8 if tau < 2 else 24}')
        A(f'v_mfma_f32_32x32x16_bf16 {vr(DIM, 16)}, {vr(OPA + 4 * tau, 4)}, {vr(K1_M1 + 12 + 4 * tau, 4)}, {vr(DIM, 16) if tau else 0}')
        A(f'.fill {24 if tau < 2 else 32}')
    fine(1, '1c_st1')
    for m in range(4):
        A(f'v_mov_b32 v{O + 4 * m + 3}, s{sTAG}')
    OPB = 60
    ERE, EIM = 100, 24

    def cvb(u):
        for jj in range(4):
            A(f'v_cvt_pk_bf16_f32 v{OPB + 4 * u + jj}, v{DRE + 4 * u + jj}, v{DIM + 4 * u + jj}')

    def wr(E, im):
        return [f'ds_write2_b32 v{aEW + (j >> 2)}, v{E + j}, v{E + j + 1} offset0:{64 * (j & 3) + im} offset1:{64 * (j & 3) + 64 + im}' for j in range(0, 12, 2)]
    cvb(0)
    A('.fill 8')
    for u in range(4):
        A(f'v_mfma_f32_32x32x16_bf16 {vr(ERE, 16)}, {vr(OPB + 4 * u, 4)}, {vr(K1_M2 + 4 * u, 4)}, {vr(ERE, 16) if u else 0}')
        if u < 3:
            cvb(u + 1)
        A('.fill 8' if u < 3 else '.fill 24 5')
    w = wr(ERE, 0)
    for u in range(4):
        A(f'v_mfma_f32_32x32x16_bf16 {vr(EIM, 16)}, {vr(OPB + 4 * u, 4)}, {vr(K1_M2 + 16 + 4 * u, 4)}, {vr(EIM, 16) if u else 0}')
        if u == 0:
            A('.fill 24 5')
        else:
            A(w.pop(0))
            A(w.pop(0))
            A('.fill 12' if u < 3 else '.fill 40')
    fine(1, '1d_st2')
    for x in wr(EIM, 1)[:1 if OPT['cutx'] & 8 else 6]:
        A(x)
    A(f'.fill {OPT["g3"]}')
    fine(1, '1e_wr')
    A('s_waitcnt lgkmcnt(0)\ns_barrier')
    fine(1, '1f_bar')
    Z = 24
    for c in (1, 2, 0):
        for b2 in (0, 2, 1, 3):
            A(f'ds_read_b64 {vr(Z + 8 * c + 2 * b2, 2)}, v{aER + c} offset:{6144 * b2}')
    fine(1, '1g_rd')
    P = 48
    for c in (1, 2, 0):
        z = Z + 8 * c
        if not OPT['cutx'] & 8:
            radix4(z, P, False)
        if c == 0:
            fine(1, '1h_rx')
            for m in range(4):
                A(f'v_cvt_pk_bf16_f32 v{O + 4 * m}, v{z + 2 * m}, v{z + 2 * m + 1}')
                A(f'buffer_store_dwordx4 {vr(O + 4 * m, 4)}, v{aST + (m >> 1)}, {srd(S_WS)}, s{sST} offen offset:{512 * m} sc1')
        else:
            for k in range(4):
                A(f'v_cvt_pk_bf16_f32 v{56 + k}, v{z + 2 * k}, v{z + 2 * k + 1}')
            r0 = 1 if c == 1 else 3
            for m in range(4):
                A(f'v_cndmask_b32 v{O + 4 * m + c}, v{56 + (m - r0) % 4}, v{56 + (m - r0 - 1) % 4}, {sr(sM1 if c == 1 else sM2, 2)}')


K2C = 100
C_M1, C_TW1, C_M2, C_M3, C_TW2, C_M4 = [K2C + 8 * i for i in range(6)]
K2_IN = 24
vK2A, aIW, aIR, aOR, aOW, vTG = 148, 149, 150, 151, 152, 154


def k2_const():
    t = TMP
    A(f'''v_cvt_f32_u32 v{t}, v{vL15}
    v_cvt_f32_u32 v{t + 1}, v{vQ}
    v_cvt_f32_u32 v{t + 2}, s{sK1}
    v_mul_f32 v{t + 1}, 4.0, v{t + 1}''')
    fmamk(t + 3, t, 8, t + 2)
    A(f'v_mul_f32 v{t + 3}, {f2u(1.0 / 128)}, v{t + 3}')
    A(f'v_mul_f32 v{t + 4}, {f2u(1.0 / 16)}, v{t}')
    A(f'v_mul_f32 v{t + 5}, {f2u(1.0 / 128)}, v{t}')
    A(f'v_mul_f32 v{t + 5}, v{t + 5}, v{t + 2}')
    for jj in range(4):
        A(f'v_add_f32 v{t + 6}, {f2u(float(jj))}, v{t + 1}')
        A(f'v_mul_f32 v{t + 7}, v{t + 6}, v{t + 3}')
        A(f'v_mul_f32 v{t + 8}, {f2u(1.0 / 16)}, v{t + 7}')
        A(f'v_mul_f32 v{t + 9}, v{t + 6}, v{t + 4}')
        A(f'v_add_f32 v{t + 10}, v{t + 9}, v{t + 5}')
        A(f'v_mul_f32 v{t + 11}, {f2u(1.0 / 16)}, v{t + 10}')
        sincos(t + 7, t + 12, t + 13)
        sincos(t + 8, C_TW1 + jj, C_TW1 + 4 + jj)
        A(f'v_cvt_pk_bf16_f32 v{C_M1 + jj}, v{t + 12}, v{t + 13}')
        A(f'v_cvt_pk_bf16_f32 v{C_M1 + 4 + jj}, -v{t + 13}, v{t + 12}')
        sincos(t + 9, t + 12, t + 13)
        sincos(t + 10, t + 14, t + 15)
        sincos(t + 11, C_TW2 + jj, C_TW2 + 4 + jj)
        A(f'v_cvt_pk_bf16_f32 v{C_M2 + jj}, v{t + 12}, v{t + 13}')
        A(f'v_cvt_pk_bf16_f32 v{C_M2 + 4 + jj}, -v{t + 13}, v{t + 12}')
        A(f'v_cvt_pk_bf16_f32 v{C_M3 + jj}, v{t + 12}, -v{t + 13}')
        A(f'v_cvt_pk_bf16_f32 v{C_M3 + 4 + jj}, v{t + 13}, v{t + 12}')
        A(f'v_cvt_pk_bf16_f32 v{C_M4 + jj}, v{t + 14}, -v{t + 15}')
        A(f'v_cvt_pk_bf16_f32 v{C_M4 + 4 + jj}, v{t + 15}, v{t + 14}')


def k2_loads():
    return ''.join(f'buffer_load_dwordx4 {vr(K2_IN + 4 * j, 4)}, v{vK2A}, {srd(S_WS)}, s{sLD + j} offen sc1\n' for j in range(4))


def k2_addr():
    t = TMP
    A(f'''v_lshrrev_b32 v{t}, 2, v{vL}
    v_mul_u32_u24 v{t}, {BS}, v{t}
    v_and_b32 v{t + 1}, 3, v{vL}
    v_lshl_add_u32 v{vK2A}, v{t + 1}, 4, v{t}
    s_mul_i32 s{sT0}, s{sW}, {64 * BS}
    s_lshl_b32 s{sMODST}, s{sME}, 6
    s_add_u32 s{sT0}, s{sT0}, s{sMODST}
    s_add_u32 s{sLD}, s{sT0}, {WS_T}''')
    for j in range(1, 4):
        A(f's_add_u32 s{sLD + j}, s{sLD}, {16 * j * BS}')
    A(f'''v_mul_u32_u24 v{t}, 3104, v{t + 1}
    v_lshrrev_b32 v{t + 1}, 2, v0
    v_lshl_add_u32 v{t}, v{t + 1}, 4, v{t}
    s_mul_i32 s{sT0}, s{sW}, 3104
    v_add_u32 v{t + 1}, s{sT0}, v{vL16}
    v_add_u32 v{aOR}, {L_K2O}, v{t}
    v_add_u32 v{aOW}, {L_K2O}, v{t + 1}
    v_add_u32 v{aIW}, {L_K2I}, v{t}
    v_add_u32 v{aIR}, {L_K2I}, v{t + 1}
    s_mul_i32 s{sST}, s{sME}, {BS}
    s_lshl_b32 s{sT1}, s{sW}, 12
    s_add_u32 s{sST}, s{sST}, s{sT1}
    s_add_u32 s{sST}, s{sST}, {WS_TP}
    v_mov_b32 v{vTG}, s{sTAG}''')


def cmul(dre, dim, wr, wi, conj, tmp):
    for p in (0, 2):
        pk('mul', tmp + p, dre + p, wr + p)
        pk('mul', tmp + 4 + p, dim + p, wr + p)
    neg = 'neg_lo:[1,0,0] neg_hi:[1,0,0]'
    for p in (0, 2):
        pk('fma', tmp + p, dim + p, wi + p, tmp + p, mods='' if conj else neg)
        pk('fma', tmp + 4 + p, dre + p, wi + p, tmp + 4 + p, mods=neg if conj else '')


def k2_head():
    tg = [K2_IN + 4 * j + 3 for j in range(4)]
    poll_check('t', masked(k2_loads(), tg), tagcheck(tg, TMP))
    stamp('T')
    X = 40
    for c in range(3):
        cb, cs = c & ~1, c & 1
        for p in (0, 2):
            A(f'v_pk_mov_b32 {vr(X + 4 * c + p, 2)}, {vr(K2_IN + 4 * p + cb, 2)}, {vr(K2_IN + 4 * p + 4 + cb, 2)} op_sel:[{cs},{cs}]')
        A(f'ds_write_b128 v{aIW}, {vr(X + 4 * c, 4)} offset:{1024 * c}')
    fine(1, '2a_wr')
    A('s_waitcnt lgkmcnt(0)\ns_barrier')
    fine(1, '2b_bar')


def k2_main():
    X = 40
    OP = 24
    D = 40
    U = 64
    for c in range(3):
        A(f'ds_read_b128 {vr(OP + 4 * c, 4)}, v{aIR} offset:{1024 * c}')

    def mm(c, M, data_is_a):
        for p in range(2):
            a, b = (vr(OP + 4 * c, 4), vr(M + 4 * p, 4)) if data_is_a else (vr(M + 4 * p, 4), vr(OP + 4 * c, 4))
            A(f'v_mfma_f32_16x16x32_bf16 {vr(D + 8 * c + 4 * p, 4)}, {a}, {b}, 0')

    def mid(wr, wi, conj, M, data_is_a, first=False):
        if OPT['kp']:
            pl = [f'v_mul_f32 v{U + 4 * h_ + jj}, v{D + 4 * h_ + jj}, v{wr(0) + jj}' for h_ in range(2) for jj in range(4)]
            last = A.items.pop()
            assert last.kind == 'mfma'
            if not first:
                A(pl.pop(0))
                A(pl.pop(0))
            A.items.append(last)
            for x in pl:
                A(x)
        for c in range(3):
            cm = A.capture(lambda: cmul(D + 8 * c, D + 8 * c + 4, wr(c), wi(c), conj, U + 8 * c))
            A.items.extend(cm[4:] if OPT['kp'] and c == 0 else cm)
        cv = [f'v_cvt_pk_bf16_f32 v{OP + 4 * c + jj}, v{U + 8 * c + jj}, v{U + 8 * c + 4 + jj}' for c in range(3) for jj in range(4)]
        for x in cv[:6]:
            A(x)
        cv = cv[6:]
        for c in range(3):
            for x in A.capture(lambda: mm(c, M, data_is_a)):
                A.items.append(x)
                for y in cv[:2]:
                    A(y)
                cv = cv[2:]
    fine(1, '2c_rd')
    for c in range(3):
        mm(c, C_M1, True)
    if not OPT['cutx'] & 1:
        mid(lambda c: C_TW1, lambda c: C_TW1 + 4, True, C_M2, False, True)
    mid(lambda c: F_W + 8 * c, lambda c: F_W + 8 * c + 4, False, C_M3, True)
    if not OPT['cutx'] & 1:
        mid(lambda c: C_TW2, lambda c: C_TW2 + 4, False, C_M4, False)
    fine(1, '2d_mm')
    for c in range(3):
        for jj in range(4):
            A(f'v_cvt_pk_bf16_f32 v{OP + 4 * c + jj}, v{D + 8 * c + jj}, v{D + 8 * c + 4 + jj}')
        A(f'ds_write_b128 v{aOW}, {vr(OP + 4 * c, 4)} offset:{1024 * c}')
    fine(1, '2e_wr')
    A('s_waitcnt lgkmcnt(0)\ns_barrier')
    fine(1, '2f_bar')
    for c in range(3):
        A(f'ds_read_b128 {vr(X + 4 * c, 4)}, v{aOR} offset:{1024 * c}')
    fine(1, '2g_rd')
    O = 64
    for j in range(4):
        jb, js = j & ~1, j & 1
        A(f'v_pk_mov_b32 {vr(O + 4 * j, 2)}, {vr(X + jb, 2)}, {vr(X + 4 + jb, 2)} op_sel:[{js},{js}]')
        A(f'v_pk_mov_b32 {vr(O + 4 * j + 2, 2)}, {vr(X + 8 + jb, 2)}, {vr(vTG, 2)} op_sel:[{js},0]')
        A(f'buffer_store_dwordx4 {vr(O + 4 * j, 4)}, v{vLT}, {srd(S_WS)}, s{sST} offen offset:{1024 * j} sc1')


def epoch_store():
    A(f'''s_cmp_eq_u32 s{sME}, 0
    s_cselect_b32 s{sBGO}, {WS_EPOCH}, {OOB}
    v_mov_b32 v{vBG + 3}, s{sTAG}
    buffer_store_dword v{vBG + 3}, off, {srd(S_WS)}, s{sBGO} sc1''')


K3_MA = 100
K3_MB = 132
K3_X = 156
K3_GA, K3_SB, K3_CB = 176, 196, 216
K3_IN = 24
vK3A, vK3B = 236, 237
M2R = 160
X3R = 88
B1R = 192


def side_loads():
    s = ''
    for p in range(4):
        s += f"""s_mov_b32 s{sBG2}, {WS_MOD + MP * p + 320 * 16}
        buffer_load_dwordx4 {vr(M2R + 4 * p, 4)}, v{vT16}, {srd(S_WS)}, s{sBG2} offen sc1
        buffer_load_dwordx4 {vr(M2R + 16 + 4 * p, 4)}, v{vBG + 2}, {srd(S_WS)}, s{sBG2} offen sc1
        """
    return s


def side_prep():
    t = TMP
    A(f"""s_and_b32 s{sT0}, s{sJ}, 7
    s_mul_i32 s{sT0}, s{sT0}, 320
    v_mov_b32 v{t}, s{sT0}
    v_cmp_lt_u32 vcc, 223, v0
    v_cndmask_b32 v{t}, 0, v{t}, vcc
    v_min_u32 v{t + 1}, {243 * 16}, v{vT16}
    v_add_u32 v{t}, v{t}, v{t + 1}
    v_add_u32 v{vBG + 2}, 4096, v{t}
    s_lshr_b32 s{sT0}, s{sT0}, 1
    v_lshl_add_u32 v{vBG + 1}, v{vL31}, 3, s{sT0}
    s_lshl_b32 s{sT0}, s{sCA}, 6
    s_lshl_b32 s{sT1}, s{sCB}, 6
    v_mov_b32 v{t}, s{sT0}
    v_mov_b32 v{t + 1}, s{sT1}
    v_cmp_gt_u32 vcc, 16, v{vL31}
    v_cndmask_b32 v{t}, v{t + 1}, v{t}, vcc
    v_lshl_add_u32 v{vBG}, v{vL15}, 3, v{t}""")


def b2_issue():
    A(f"""buffer_load_dwordx2 v[192:193], v{vBG + 1}, {srd(S_B2)}, 0 offen
    buffer_load_dwordx2 v[194:195], v{vBG}, {srd(S_B1)}, 0 offen""")


def side_finish():
    t = TMP
    poll_check('mod2', side_loads(), bytecheck(M2R, 8, t))
    A(f"""v_subrev_u32 v{t + 2}, 64, v0
    v_cmp_gt_u32 vcc, 160, v{t + 2}
    v_cndmask_b32 v{t + 2}, 0, 1.0, vcc
    v_add_u32 v{t + 5}, {L_M2}, v{vT16}""")
    for g in range(2):
        r = M2R + 16 * g
        sum4(r)
        round_add(r, t + 2 if g else None, t)
        if g:
            unpack(t + 6, t + 7, 192)
            unpack(t + 8, t + 9, 193)
            A(f'''v_mov_b32 v{t + 3}, {f2u(1.0 / GA)}
            v_cmp_lt_u32 vcc, 223, v0
            v_cndmask_b32 v{t + 2}, 1.0, v{t + 3}, vcc''')
            for p in (0, 2):
                pk('mul', t + 6 + p, t + 6 + p, r + p)
                pk('mul', r + p, r + p, t + 2, mods='op_sel_hi:[1,0]')
            A(f'''v_max_u32 v{t + 3}, {223 * 16}, v{vT16}
            v_add_u32 v{t + 3}, {L_M2 + 8192 - 223 * 16}, v{t + 3}
            ds_write_b128 v{t + 3}, {vr(t + 6, 4)}''')
        A(f'ds_write_b128 v{t + 5}, {vr(r, 4)} offset:{4096 * g}')
    unpack(t + 6, t + 7, 194)
    unpack(t + 8, t + 9, 195)
    A(f's_mov_b32 s{sT2}, {f2u(GA)}\ns_mov_b32 s{sT0}, {L_B1}')
    for p in (0, 2):
        pk('mul', t + 6 + p, t + 6 + p, sr(sT2, 2), mods='op_sel_hi:[1,0]')
    A(f'''v_lshl_add_u32 v{t + 3}, v{vL31}, 4, s{sT0}
    ds_write_b128 v{t + 3}, {vr(t + 6, 4)}''')
    for k in range(10):
        A(f'v_accvgpr_read_b32 v{X3R + k}, a{240 + k}')
    for k in range(10):
        unpack(K3_X + 2 * k, K3_X + 2 * k + 1, X3R + k)


def k3_const():
    t = TMP
    A(f'''v_lshlrev_b32 v{t}, 2, v{vL31}
    v_add_u32 v{t}, s{sW}, v{t}
    v_cvt_f32_u32 v{t}, v{t}
    v_mul_f32 v{t}, {f2u(1.0 / 128)}, v{t}
    v_cvt_f32_u32 v{t + 8}, v{vH}
    v_mul_f32 v{t + 8}, 4.0, v{t + 8}
    v_mul_f32 v{t + 1}, v{t + 8}, v{t}''')
    for u in range(4):
        for jp in (0, 2):
            fmamk(t + 2, t, 8 * u + jp, t + 1)
            fmamk(t + 5, t, 8 * u + jp + 1, t + 1)
            sincos(t + 2, t + 3, t + 4)
            sincos(t + 5, t + 6, t + 7)
            for jj, e in ((jp, 3), (jp + 1, 6)):
                A(f'v_cvt_pk_bf16_f32 v{K3_MA + 4 * u + jj}, v{t + e}, -v{t + e + 1}')
                A(f'v_cvt_pk_bf16_f32 v{K3_MA + 16 + 4 * u + jj}, v{t + e + 1}, v{t + e}')
    A(f'''v_lshrrev_b32 v{t}, 3, v{vL31}
    v_cvt_f32_u32 v{t}, v{t}
    v_mul_f32 v{t}, {f2u(0.4)}, v{t}
    v_and_b32 v{t + 1}, 7, v{vL}
    v_cvt_f32_u32 v{t + 1}, v{t + 1}
    v_mul_f32 v{t + 1}, {f2u(0.125)}, v{t + 1}
    v_mul_f32 v{t + 9}, v{t + 8}, v{t + 1}''')
    for jj in range(4):
        fmamk(t + 10, t + 1, jj, t + 9)
        for tau in range(3):
            fmamk(t + 2, t, tau, t + 10)
            sincos(t + 2, t + 3, t + 4)
            if tau:
                A(f'v_add_f32 v{t + 5}, {f2u(1.6 * tau)}, v{t + 10}')
                sincos(t + 5, t + 6, t + 7)
            A(f'v_cvt_pk_bf16_f32 v{K3_MB + 4 * tau + jj}, v{t + 3}, -v{t + 4}')
            if tau:
                A(f'v_cvt_pk_bf16_f32 v{K3_MB + 12 + 4 * tau + jj}, v{t + 6}, -v{t + 7}')
            else:
                A(f'v_mov_b32 v{K3_MB + 12 + jj}, v{K3_MB + jj}')


def k3_loads():
    return ''.join(f'buffer_load_dwordx4 {vr(K3_IN + 4 * m, 4)}, v{vK3A + (m >> 1)}, {srd(S_WS)}, s{sLD + m} offen sc1\n' for m in range(4))


def k3_ldaddr():
    t = TMP
    A(f'''v_lshrrev_b32 v{t}, 5, v0
    v_sub_u32 v{t + 1}, 8, v{t}
    v_and_b32 v{t + 1}, 7, v{t + 1}
    v_lshrrev_b32 v{t + 2}, 2, v{vL31}
    v_lshl_add_u32 v{t}, v{t}, 5, v{t + 2}
    v_lshl_add_u32 v{t + 1}, v{t + 1}, 5, v{t + 2}
    v_mul_u32_u24 v{t}, {BS}, v{t}
    v_mul_u32_u24 v{t + 1}, {BS}, v{t + 1}
    v_and_b32 v{t + 2}, 3, v{vL}
    v_lshl_add_u32 v{vK3A}, v{t + 2}, 4, v{t}
    v_lshl_add_u32 v{vK3B}, v{t + 2}, 4, v{t + 1}
    s_add_u32 s{sLD}, s{sMODST}, {WS_TP}''')
    for m in range(1, 4):
        A(f's_add_u32 s{sLD + m}, s{sLD}, {8 * m * BS}')


aWA, aRA, aYA = 8, 11, 12
aYR, aSEL, aX1 = 84, 86, 87
aRW, aRR, aY2, aMO = 89, 91, 92, 93
ST3 = 18
vEPS = 22
GK = 2.0 * 0.7978845608028654 * 1.4426950408889634
GA = (GK * 0.044715) ** (1.0 / 3.0)


def k3_addr():
    t = 95
    A(f'v_lshrrev_b32 v{t}, 5, v0')
    A(f'v_mul_u32_u24 v{t}, 144, v{t}')
    for c in range(3):
        A(f'''v_add_u32 v{t + 1}, {13 * c}, v{vL31}
        v_and_b32 v{t + 1}, 31, v{t + 1}
        v_lshl_add_u32 v{t + 1}, v{t + 1}, 2, v{t}
        v_add_u32 v{aWA + c}, {L_K3I + 8 * 144 * c}, v{t + 1}''')
    A(f'''s_mul_i32 s{sT0}, s{sW}, 3584
    s_add_u32 s{sT0}, s{sT0}, {L_K3I}
    v_mul_u32_u24 v{t}, 144, v{vL31}
    v_lshl_add_u32 v{t}, v{vH}, 4, v{t}
    v_add_u32 v{aRA}, s{sT0}, v{t}''')
    A(f'''v_lshl_add_u32 v{t}, v{vL31}, 2, s{sW}
    v_mul_u32_u24 v{t + 1}, 3, v{t}
    v_mul_u32_u24 v{t + 2}, 5120, v{vH}
    v_lshl_add_u32 v{t}, v{t}, 2, v{t + 2}
    v_add_u32 v{t}, {L_Y}, v{t}''')
    if OPT['ys']:
        A(f'v_and_b32 v{t + 4}, 16, v{vL}\nv_xor_b32 v{t}, v{t}, v{t + 4}')
    for a in range(5):
        A(f'v_add_u32 v{t + 2}, {2 * a}, v{t + 1}')
        mod5(t + 2, t + 2, t + 3)
        A(f'v_lshl_add_u32 v{aYA + a}, v{t + 2}, 9, v{t}')
    A(f'''s_mul_i32 s{sT0}, s{sW}, 2560
    s_add_u32 s{sT1}, s{sT0}, {L_Y}
    v_lshl_add_u32 v{aYR}, v{vL31}, 5, s{sT1}
    v_lshl_add_u32 v{aYR + 1}, v{vL31}, 4, s{sT1}
    {f'v_xor_b32 v{aYR + 1}, v{aYR + 1}, v{t + 4}' if OPT['ys'] else ''}
    v_and_b32 v{t + 4}, {8 if OPT['ys'] else 0}, v{vL}
    v_lshl_add_u32 v{aYR}, v{t + 4}, 1, v{aYR}
    v_xor_b32 v{aY2}, 16, v{aYR}
    s_mov_b32 s{sT1}, {L_M2}
    v_lshl_add_u32 v{aMO}, v{vL31}, 5, s{sT1}
    v_lshl_add_u32 v{aMO + 1}, v{vL31}, 4, s{sT1}
    v_mov_b32 v{t}, 0x01000c0c
    v_mov_b32 v{t + 1}, 0x03020c0c
    v_cmp_eq_u32 vcc, 1, v{vH}
    v_cndmask_b32 v{aSEL}, v{t}, v{t + 1}, vcc
    s_lshl_b32 s{sST + 3}, s{sW}, 9
    s_add_u32 s{sST + 3}, s{sST + 3}, s{sME}
    s_mul_i32 s{sST + 3}, s{sST + 3}, 1280
    s_mul_i32 s{sST}, s{sJ}, 10
    s_add_u32 s{sST}, s{sST}, s{sW}
    s_mul_i32 s{sST}, s{sST}, {BS}
    s_lshl_b32 s{sT1}, s{sCL}, 10
    s_add_u32 s{sST}, s{sST}, s{sT1}
    s_add_u32 s{sST}, s{sST}, {WS_Y2}
    s_add_u32 s{sST + 1}, s{sST}, {4 * BS}
    s_add_u32 s{sST + 2}, s{sST}, {8 * BS}
    s_cmp_lt_u32 s{sW}, 2
    s_cselect_b32 s{sST + 2}, s{sST + 2}, {OOB}
    v_mul_u32_u24 v{t}, {256 * 1280}, v{vH}
    v_lshl_add_u32 v{aX1}, v{vL31}, 4, v{t}
    v_lshl_add_u32 v{aX1 + 1}, v{vL31}, 3, v{t}''')
    A(f'''s_lshl_b32 s{sT2}, s{sW}, 1
    v_add_u32 v{t}, s{sT2}, v{vH}
    v_xor_b32 v{t + 1}, v{t}, v{vL31}
    v_and_b32 v{t + 1}, 7, v{t + 1}
    v_lshlrev_b32 v{t + 1}, 4, v{t + 1}
    v_lshl_add_u32 v{t + 1}, v{vL31}, 7, v{t + 1}
    v_add_u32 v{aRW}, {L_Y2}, v{t + 1}
    v_lshrrev_b32 v{t + 2}, 1, v{vL31}
    v_xor_b32 v{t + 3}, v{t}, v{t + 2}
    v_and_b32 v{t + 3}, 7, v{t + 3}
    v_lshlrev_b32 v{t + 3}, 4, v{t + 3}
    v_lshl_add_u32 v{t + 3}, v{t + 2}, 7, v{t + 3}
    v_and_b32 v{t + 2}, 1, v{vL}
    v_lshl_add_u32 v{t + 3}, v{t + 2}, 3, v{t + 3}
    v_add_u32 v{aRW + 1}, {L_Y2 + 64 * 128}, v{t + 3}
    v_lshrrev_b32 v{t + 2}, 3, v0
    v_xor_b32 v{t + 4}, v{t + 2}, v0
    v_and_b32 v{t + 4}, 7, v{t + 4}
    v_lshlrev_b32 v{t + 4}, 4, v{t + 4}
    v_lshl_add_u32 v{t + 4}, v{t + 2}, 7, v{t + 4}
    v_add_u32 v{aRR}, {L_Y2}, v{t + 4}
    v_mov_b32 v{vEPS}, {f2u(1e-5 / GA ** 2)}''')


def row_stats(b, t, scale=None):
    pk('add', t, b, b + 2)
    pk('mul', t + 2, b, b)
    for k in range(1, 10):
        if k > 1:
            pk('add', t, t, b + 2 * k)
        pk('fma', t + 2, b + 2 * k, b + 2 * k, t + 2)
    A(f'''v_add_f32 v{t}, v{t}, v{t + 1}
    v_add_f32 v{t + 2}, v{t + 2}, v{t + 3}
    v_permlane16_swap_b32 v{t}, v{t + 2}
    v_add_f32 v{t}, v{t}, v{t + 2}''')
    for r in (8, 4, 2, 1):
        A(f'v_add_f32_dpp v{t}, v{t}, v{t} row_ror:{r} row_mask:0xf bank_mask:0xf')
    A(f'''v_mul_f32 v{t + 1}, {f2u(1.0 / 640)}, v{t}
    v_mul_f32 v{t + 2}, {f2u(1.0 / 640)}, v{t}
    v_permlane16_swap_b32 v{t + 1}, v{t + 2}
    v_fma_f32 v{t}, -v{t + 1}, v{t + 1}, v{t + 2}
    v_max_f32 v{t}, 0, v{t}''')
    if scale is None:
        A(f'v_add_f32 v{t}, {f2u(1e-5)}, v{t}')
    else:
        A(f'v_fmamk_f32 v{t}, v{t}, {f2u(1.0 / scale ** 2)}, v{vEPS}')
    A(f'''v_rsq_f32 v{t}, v{t}
    v_mul_f32 v{t + 1}, v{t + 1}, v{t}''')


X1P = 72


def x1_store():
    sc = '' if OPT['xt'] else ' sc1'
    A(f'''buffer_store_dwordx4 {vr(X1P, 4)}, v{aX1}, {srd(S_OUT)}, s{sST + 3} offen{sc}
    buffer_store_dwordx4 {vr(X1P + 4, 4)}, v{aX1}, {srd(S_OUT)}, s{sST + 3} offen offset:512{sc}
    buffer_store_dwordx2 {vr(X1P + 8, 2)}, v{aX1 + 1}, {srd(S_OUT)}, s{sST + 3} offen offset:1024{sc}''')


def touch_out():
    A(f'''s_lshl_b32 s{sHC}, s{sW}, 9
    s_add_u32 s{sHC}, s{sHC}, s{sME}
    s_mulk_i32 s{sHC}, 1280
    v_min_u32 v251, 9, v{vL31}
    v_mul_u32_u24 v252, 2560, v{vH}
    v_add_lshl_u32 v251, v251, v252, 7
    buffer_load_dword v251, v251, {srd(S_OUT)}, s{sHC} offen''')


def k3_poll():
    tg = [K3_IN + 4 * m + 3 for m in range(4)]
    poll_check('tp', masked(k3_loads(), tg), tagcheck(tg, ST3))
    stamp('Tp')


MOE = OPT['mo'] and OPT['m2'] < 5


def mo_reads():
    mo = []
    for v, dst in enumerate((K3_GA, K3_SB, K3_CB)):
        for k in range(4):
            mo.append(f'ds_read_b128 {vr(dst + 4 * k, 4)}, v{aMO} offset:{2560 * v + 1024 * (k >> 1) + 16 * (k & 1)}')
        mo.append(f'ds_read_b128 {vr(dst + 16, 4)}, v{aMO + 1} offset:{2560 * v + 2048}')
    return mo


def ga_shift():
    if OPT['d2']:
        assert MOE
        A(f'v_sub_u32 v{aSEL}, 1, v{vH}\nv_lshlrev_b32 v{aSEL}, 4, v{aSEL}')
        for k in range(20):
            A(f'v_lshrrev_b32 v{K3_GA + k}, v{aSEL}, v{K3_GA + k}')


def k3_main():
    Z, P, Q = 40, 48, 56
    for c in range(3):
        if c == 0:
            src = [K3_IN + 4 * k for k in range(4)]
        else:
            r0 = 1 if c == 1 else 3
            for k in range(4):
                A(f'v_cndmask_b32 v{Q + k}, v{K3_IN + 4 * ((k + r0) % 4) + c}, v{K3_IN + 4 * ((k + r0 + 1) % 4) + c}, {sr(sM1 if c == 1 else sM2, 2)}')
            src = [Q + k for k in range(4)]
        z = Z + 20 * (c & 1)
        for k in range(4):
            unpack(z + 2 * k, z + 2 * k + 1, src[k])
        radix4(z, P, True)
        for k in (0, 1):
            A(f'v_cvt_pk_bf16_f32 v{z + 2 * k}, v{z + 2 * k}, v{z + 2 * k + 1}')
            A(f'v_cvt_pk_bf16_f32 v{z + 2 * k + 4}, v{z + 2 * k + 4}, v{z + 2 * k + 5}')
            A(f'ds_write2st64_b32 v{aWA + c}, v{z + 2 * k}, v{z + 2 * k + 4} offset0:{14 * k} offset1:{14 * k + 28}')
    fine(3, '3a_wr')
    A('s_waitcnt lgkmcnt(0)\ns_barrier')
    fine(3, '3b_bar')
    OPA = 24
    DRE, DIM = 40, 56
    for u in range(4):
        A(f'ds_read_b128 {vr(OPA + 4 * u, 4)}, v{aRA} offset:{32 * u}')
    mo = mo_reads() if not MOE else [''] * 15
    for u in range(4):
        A(f'v_mfma_f32_32x32x16_bf16 {vr(DRE, 16)}, {vr(OPA + 4 * u, 4)}, {vr(K3_MA + 4 * u, 4)}, {vr(DRE, 16) if u else 0}')
        A(mo.pop(0))
        A(mo.pop(0))
        A(f'v_mfma_f32_32x32x16_bf16 {vr(DIM, 16)}, {vr(OPA + 4 * u, 4)}, {vr(K3_MA + 16 + 4 * u, 4)}, {vr(DIM, 16) if u else 0}')
        if u:
            A(mo.pop(0))
            A(mo.pop(0))
    A(mo.pop(0))
    fine(3, '3c_stA')
    OPB = 72
    E0, E1 = 100, 116
    def cvb(tau):
        for jj in range(4):
            A(f'v_cvt_pk_bf16_f32 v{OPB + 4 * tau + jj}, v{DRE + 4 * tau + jj}, v{DIM + 4 * tau + jj}')
    cvb(0)
    for tau in range(3):
        A(f'v_mfma_f32_32x32x16_bf16 {vr(E0, 16)}, {vr(K3_MB + 4 * tau, 4)}, {vr(OPB + 4 * tau, 4)}, {vr(E0, 16) if tau else 0}')
        if tau < 2:
            cvb(tau + 1)
            A('s_nop 1')
    for tau in range(3):
        A(f'v_mfma_f32_32x32x16_bf16 {vr(E1, 16)}, {vr(K3_MB + 12 + 4 * tau, 4)}, {vr(OPB + 4 * tau, 4)}, {vr(E1, 16) if tau else 0}')
        if tau < 2:
            A('s_nop 4')
    fine(3, '3d_stB')
    for a in range(5):
        e = E0 + 4 * a
        A(f'v_cvt_pk_bf16_f32 v{24 + 2 * a}, v{e}, v{e + 1}')
        A(f'v_cvt_pk_bf16_f32 v{25 + 2 * a}, v{e + 2}, v{e + 3}')
        A(f'ds_write2st64_b32 v{aYA + a}, v{24 + 2 * a}, v{25 + 2 * a} offset0:0 offset1:10')
    fine(3, '3e_wr')
    A('s_waitcnt lgkmcnt(0)\ns_barrier')
    fine(3, '3f_bar')
    Y = 40
    for k in range(4):
        A(f'ds_read_b128 {vr(Y + 4 * k, 4)}, v{aY2 if k & 1 else aYR} offset:{1024 * (k >> 1)}')
    A(f'ds_read_b128 {vr(Y + 16, 4)}, v{aYR + 1} offset:2048')
    fine(3, '3g_rd')
    PK = X1P
    for k in range(20 if OPT['d2'] else 0):
        A(f'v_dot2_f32_bf16 v{Y + k}, v{Y + k}, v{K3_GA + k}, v{K3_X + k}')
    for k in range(0 if OPT['d2'] else 10):
        A(f'v_perm_b32 v{Y + 2 * k}, v{Y + 2 * k}, v{Y + 2 * k}, v{aSEL}')
        A(f'v_perm_b32 v{Y + 2 * k + 1}, v{Y + 2 * k + 1}, v{Y + 2 * k + 1}, v{aSEL}')
        pk('fma', Y + 2 * k, Y + 2 * k, K3_GA + 2 * k, K3_X + 2 * k)
    X1 = A.capture(lambda: [A(f'v_cvt_pk_bf16_f32 v{PK + k}, v{Y + 2 * k}, v{Y + 2 * k + 1}') for k in range(10)])
    st = A.capture(lambda: row_stats(Y, ST3))
    n0 = 21
    A.items.extend(st[:n0])
    for i in st[n0:]:
        if X1:
            A.items.append(X1.pop(0))
        A.items.append(i)
    A.items.extend(X1)
    fine(3, '3h_st1')
    xst = A.groups(x1_store) if not OPT['xl'] else []
    if OPT['cutx'] & 32:
        xst = []
    if not OPT['xs']:
        A.emit(xst)
        xst = []
    x0 = len(A.items)
    fine(3, '3i_x1')
    nm = 'op_sel:[0,0,1] op_sel_hi:[1,0,1] neg_lo:[0,0,1] neg_hi:[0,0,1]'
    if not OPT['cutx'] & 2:
        for k in range(10):
            pk('fma', Y + 2 * k, Y + 2 * k, ST3, ST3, mods=nm)
            pk('fma', Y + 2 * k, Y + 2 * k, K3_CB + 2 * k, K3_SB + 2 * k)
        row_stats(Y, ST3, GA)
    fine(3, '3j_st2')
    PK = 60
    for k in range(10):
        pk('fma', Y + 2 * k, Y + 2 * k, ST3, ST3, mods=nm)
        A(f'v_cvt_pk_bf16_f32 v{PK + k}, v{Y + 2 * k}, v{Y + 2 * k + 1}')
        if k == 3:
            A(f'ds_write_b128 v{aRW}, {vr(PK, 4)}')
        if k == 7:
            A(f'ds_write_b128 v{aRW}, {vr(PK + 4, 4)} offset:4096')
    A(f'ds_write_b64 v{aRW + 1}, {vr(PK + 8, 2)}')
    if xst:
        tail = A.items[x0:]
        del A.items[x0:]
        A.spread(tail, xst, 0, OPT['xs'] / 100)


def k3_tail():
    fine(3, '3k_wr')
    if OPT['sn'] or OPT['wb']:
        A(f's_waitcnt vmcnt({after_last(lambda x: x.lds)})')
    A('s_waitcnt lgkmcnt(0)\ns_barrier')
    fine(3, '3l_bar')
    for i in range(3):
        A(f'ds_read_b128 {vr(24 + 4 * i, 4)}, v{aRR} offset:{4096 * i}')
    for i in range(3):
        A(f'buffer_store_dwordx4 {vr(24 + 4 * i, 4)}, v{vLY}, {srd(S_WS)}, s{sST + i} offen{YSC}')


G1_A = 24
G1_ACC = 184
G1_B = 232
NS, PRE = 4, 3
aB, aPW, aPR, vH4, vG1A, vGC, vT1 = 8, 12, 16, 18, 20, 22, 23
vG1X = 18
B1RAW = 132
sHB = 72
sHC2 = 64
NB = OPT['nb']
PARTS = [[(ks, tl) for ks in range(20) for tl in range(6 if ks % 5 < NB else 4)], [(ks, tl) for ks in range(20) if ks % 5 >= NB for tl in (4, 5)]]
assert sum(SWB[:10]) >= 2 * NB
aBB = 254


def b1_issue():
    A(f"""s_mul_i32 s{sBG2}, s{sJ}, 192
    v_lshlrev_b32 v{vBG}, 3, v{vQ}""")
    for k in range(6):
        A(f'buffer_load_dwordx2 {vr(B1RAW + 2 * k, 2)}, v{vBG}, {srd(S_B1)}, s{sBG2} offen offset:{32 * k}')


def g1_load(i):
    ks, r = divmod(i, 2)
    pre = f's_add_u32 s{sLD}, s{sLD}, {BS}\n' if i and i % 4 == 0 else ''
    return pre + f'buffer_load_dwordx4 {vr(G1_A + 4 * i, 4)}, v{vG1A + r}, {srd(S_WS)}, s{sLD} offen offset:{512 * (ks & 1)} sc1'


def g1_rd(part, n):
    ks, tl = PARTS[part][n]
    s = G1_B + 4 * (n % NS)
    off = BIG + 30720 * ((ks // 5) & 1)
    if tl >= 4:
        return [f'ds_read_b128 {vr(s, 4)}, v{vL16 if ks < 10 else aBB} offset:{off + 20480 + 1024 * (2 * (ks % 5) + tl - 4)}']
    off += 4096 * (ks % 5)
    out = [f'ds_read_b64_tr_b16 {vr(s, 2)}, v{aB + tl} offset:{off}', f'ds_read_b64_tr_b16 {vr(s + 2, 2)}, v{aB + tl} offset:{off + 512}']
    if ks == 9:
        out[1] += f'\nv_add_u32 v{aB + tl}, 61440, v{aB + tl}'
    return out


def g1_bias():
    A(f's_mov_b32 s{sT2}, {L_B1}\nv_lshl_add_u32 v14, v{vQ}, 4, s{sT2}')
    for tl in range(6):
        for r in range(2):
            A(f'ds_read_b128 {vr(G1_ACC + 8 * tl + 4 * r, 4)}, v14 offset:{64 * tl}')


def g1_pre():
    t = 12
    A(f"""v_lshrrev_b32 v{t}, 3, v{vL15}
    v_mul_u32_u24 v{t}, {10 * BS}, v{t}
    v_lshl_add_u32 v{t}, v{vQ}, 7, v{t}
    v_and_b32 v{t + 1}, 7, v{vL}
    v_lshl_add_u32 v{vG1A}, v{t + 1}, 4, v{t}
    v_add_u32 v{vG1A + 1}, {20 * BS}, v{vG1A}
    s_mul_i32 s{sT0}, s{sW}, {40 * BS}
    s_lshl_b32 s{sT1}, s{sCL}, 10
    s_add_u32 s{sT0}, s{sT0}, s{sT1}
    s_add_u32 s{sLD}, s{sT0}, {WS_Y2}""")
    A(f"""v_lshrrev_b32 v{t}, 2, v{vL15}
    v_lshl_add_u32 v{t}, v{vQ}, 3, v{t}
    v_lshlrev_b32 v{t}, 7, v{t}
    v_and_b32 v{t + 1}, 3, v{vL}
    v_lshl_add_u32 v{t}, v{t + 1}, 3, v{t}
    v_bfe_u32 v{t + 1}, v{vL}, 3, 2
    v_lshl_add_u32 v{aB}, v{t + 1}, 5, v{t}
    v_xor_b32 v{aB + 1}, 32, v{aB}
    v_xor_b32 v{aB + 2}, 64, v{aB}
    v_xor_b32 v{aB + 3}, 96, v{aB}
    v_add_u32 v{aBB}, 61440, v{vL16}""")


def g1_part(part, side):
    fr = PARTS[part]
    for n, (ks, tl) in enumerate(fr):
        rd = g1_rd(part, n + PRE) if n + PRE < len(fr) else []
        for r in range(2):
            acc = vr(G1_ACC + 8 * tl + 4 * r, 4)
            A(f'v_mfma_f32_16x16x32_bf16 {acc}, {vr(G1_B + 4 * (n % NS), 4)}, {vr(G1_A + 4 * (2 * ks + r), 4)}, {acc}')
            if r < len(rd) and not OPT['cutx'] & 1024:
                A(rd[r])
        for x in side.get(n, []):
            if callable(x):
                x()
            else:
                A.items.extend(x)


def place(side, groups, lo, hi):
    for k, g in enumerate(groups):
        side.setdefault(lo + (hi - lo) * k // max(len(groups), 1), []).append(g)


def late_addr():
    t = vT1
    if OPT['hr']:
        A(f'''s_and_b32 s{sDW}, s{sJ}, {[0, 1, 1, 3][OPT['hr']]}
        s_lshl_b32 s{sDW}, s{sDW}, {[0, 1, 0, 0][OPT['hr']]}
        s_add_u32 s{sDW}, s{sDW}, s{sW}
        s_and_b32 s{sDW}, s{sDW}, 3''')
    if OPT['h2']:
        hb = WS_T if OPT['h2'] == 2 else WS_T + 512 * BS
        A(f"""s_lshl_b32 s{sT3}, s{sCL}, 10
        s_lshl_b32 s{sT1}, s{sW}, 5
        s_add_u32 s{sT1}, s{sT1}, s{sJ}
        s_mul_i32 s{sT1}, s{sT1}, {BS}
        s_add_u32 s{sST + 2}, s{sT1}, s{sT3}
        s_add_u32 s{sST}, s{sST + 2}, s{sT1}
        s_add_u32 s{sST}, s{sST}, {WS_TP}
        s_add_u32 s{sST + 1}, s{sST}, {32 * BS}
        s_add_u32 s{sST + 2}, s{sST + 2}, {hb}
        s_add_u32 s{sST + 3}, s{sST + 2}, {16 * BS}
        s_lshr_b32 s{sT0}, s{sJ}, 3
        s_lshl_b32 s{sT0}, s{sT0}, 4
        s_add_u32 s{sT0}, s{sT0}, s{sW}
        s_mul_i32 s{sT0}, s{sT0}, {4 * BS}""")
    else:
        A(f"""s_mul_i32 s{sST}, s{sCL}, 393216
        s_add_u32 s{sST}, s{sST}, {WS_H}
        s_lshr_b32 s{sT0}, s{sJ}, 3
        s_mul_i32 s{sT0}, s{sT0}, {4 * 48 * 1024}
        s_add_u32 s{sT0}, s{sT0}, s{sST}
        s_mul_i32 s{sT1}, s{sW}, {12 * 1024}
        s_add_u32 s{sT0}, s{sT0}, s{sT1}
        s_mul_i32 s{sT1}, s{sW}, {96 * 1024}
        s_add_u32 s{sST}, s{sST}, s{sT1}
        s_mul_i32 s{sT1}, s{sJ}, 3072
        s_add_u32 s{sST}, s{sST}, s{sT1}
        s_add_u32 s{sST + 1}, s{sST}, {48 * 1024}""")
    A(f"""v_mov_b32 v{vGC}, {f2u(GK / GA)}
    v_add_u32 v{vH4}, {BS if OPT['h2'] else 4096}, v{vL16}
    v_add_u32 v{vH4 + 1}, 8192, v{vL16}""")
    if OPT['sn'] != 2:
        flag_prep(1)
    A(f"""v_mul_u32_u24 v{t}, {RS}, v{vL15}
    v_lshl_add_u32 v{t}, v{vQ}, 4, v{t}""")
    for blk in range(4):
        A(f"""s_add_u32 s{sT1}, s{sDW}, {blk + 1}
        s_and_b32 s{sT1}, s{sT1}, 3
        s_mul_i32 s{sT2}, s{sT1}, {16 * BS if OPT['h2'] else 48 * 1024}
        s_add_u32 s{sHB + blk}, s{sT0}, s{sT2}
        {f's_add_u32 s{sHC2 + blk}, s{sHB + blk}, s{sT3}' if OPT['h2'] else ''}
        {f's_add_u32 s{sHB + blk}, s{sHB + blk}, s{sHC2 + blk}' if OPT['h2'] else ''}
        s_mul_i32 s{sT1}, s{sT1}, {4 * PS}
        s_add_u32 s{sT1}, s{sT1}, {blk * PS}
        v_add_u32 v{aPW + blk}, s{sT1}, v{t}""")
    A(f"""v_lshrrev_b32 v{aPR}, 2, v{vL}
    v_and_b32 v{vOA}, 7, v{aPR}
    v_mul_u32_u24 v{aPR}, {RS}, v{aPR}
    s_mul_i32 s{sT2}, s{sDW}, {4 * PS}
    v_add_u32 v{aPR}, s{sT2}, v{aPR}
    v_and_b32 v{t}, 3, v{vL}
    v_lshl_add_u32 v{aPR + 1}, v{t}, 4, v{aPR}
    v_lshl_add_u32 v{aPR}, v{t}, 5, v{aPR}
    s_and_b32 s{sT0}, s{sPID}, 0xf8
    s_lshl_b32 s{sT1}, s{sDW}, 1
    s_add_u32 s{sT0}, s{sT0}, s{sT1}
    s_and_b32 s{sT2}, s{sJ}, 7
    s_mul_i32 s{sT3}, s{sT2}, 160
    v_lshlrev_b32 v{vOA}, 8, v{vOA}
    v_add3_u32 v{vOA}, v{vH}, v{vOA}, s{sT0}
    v_mul_u32_u24 v{vOA}, 1280, v{vOA}
    v_add_u32 v{vOA}, s{sT3}, v{vOA}
    v_lshl_add_u32 v{vOC}, v{t}, 3, v{vOA}
    v_lshl_add_u32 v{vOA}, v{t}, 4, v{vOA}""")


def gelu_unit(u, r):
    b = G1_ACC + 16 * u + 4 * r
    regs = [b, b + 2, b + 8, b + 10]
    e = G1_B
    o = G1_B + 8 + 4 * r
    if OPT['gpre'] and u >= 1:
        e = G1_ACC
        o = G1_ACC + 8 + 4 * r
    for k, x in enumerate(regs):
        pk('fma', e + 2 * k, x, x, vGC, mods='op_sel_hi:[1,1,0]')
    for k, x in enumerate(regs):
        pk('mul', e + 2 * k, e + 2 * k, x, mods=NEG1)
    for k in range(0 if OPT['cutx'] & 4 else 8):
        A(f'v_exp_f32 v{e + k}, v{e + k}')
    for k in range(4):
        pk('add', e + 2 * k, e + 2 * k, '1.0', mods='op_sel_hi:[1,0]')
    for k in range(8):
        A(f'v_rcp_f32 v{e + k}, v{e + k}')
    for k, x in enumerate(regs):
        pk('mul', e + 2 * k, e + 2 * k, x)
    for k in range(4):
        A(f'v_cvt_pk_bf16_f32 v{o + k}, v{e + 2 * k}, v{e + 2 * k + 1}')
    if OPT['h2']:
        if u < 2:
            A(f'buffer_store_dwordx4 {vr(o, 4)}, v{vH4 if u else vL16}, {srd(S_WS)}, s{sST + r} offen')
        else:
            A(f'buffer_store_dwordx4 {vr(o, 4)}, v{vL16}, {srd(S_WS)}, s{sST + 2 + r} offen sc1')
        return
    A(f'buffer_store_dwordx4 {vr(o, 4)}, v{vLW}, {srd(S_WS)}, s{sST + r} offen offset:{1024 * u} sc1')


G2_H = 24
NH = 20
FINR = 104
G2_ACC = 120
G2_BASE = 200
G2_GB = 220
vOA, vOC = 248, 249
RS = 336
PS = 16 * RS
OA = OPT['oa']
G2SEQ = [(b, k) for b in range(3) for k in KA] + [(3, k) for k in KA[:OA]] + [(b, k) for b in range(3) for k in KB] + [(3, k) for k in KA[OA:] + KB]
NGA = 24 + OA
if OPT['t3']:
    assert OA <= 4
    G2SEQ = [(b, k) for b in range(3) for k in KA[:4]] + [(3, k) for k in KA[:OA]] + [(b, k) for b in range(3) for k in KA[4:]] + G2SEQ[NGA:]


def fin_issue():
    R = FINR
    A(f"""buffer_load_dwordx4 {vr(R, 4)}, v{vOA}, {srd(S_OUT)}, 0 offen sc1
    buffer_load_dwordx4 {vr(R + 4, 4)}, v{vOA}, {srd(S_OUT)}, 0 offen offset:64 sc1
    buffer_load_dwordx2 {vr(R + 8, 2)}, v{vOC}, {srd(S_OUT)}, 0 offen offset:128 sc1""")


def fin_finish():
    t = vG1A
    A(f"""v_and_b32 v{t}, 3, v{vL}
    v_lshlrev_b32 v{t + 1}, 4, v{t}
    v_add_u32 v{t + 1}, {L_M2 + 7680}, v{t + 1}
    v_lshl_add_u32 v{t}, v{t}, 4, v{t + 1}""")
    for dst, off in ((G2_BASE, 528), (G2_GB, 0)):
        for k in range(4):
            A(f'ds_read_b128 {vr(dst + 4 * k, 4)}, v{t} offset:{off + 128 * (k >> 1) + 16 * (k & 1)}')
        A(f'ds_read_b128 {vr(dst + 16, 4)}, v{t + 1} offset:{off + 256}')
    for k in range(10):
        unpack(114, 115, FINR + k)
        A(f'v_add_f32 v{G2_BASE + 2 * k}, v114, v{G2_BASE + 2 * k}')
        A(f'v_add_f32 v{G2_BASE + 2 * k + 1}, v115, v{G2_BASE + 2 * k + 1}')


def g2_load(n):
    blk, kl = G2SEQ[n]
    if OPT['h2']:
        p, u = divmod(kl, 3)
        hb = WS_T if OPT['h2'] == 2 else WS_T + 512 * BS
        base, off = (sHB + blk, WS_TP + (2 * p + u) * BS) if u < 2 else (sHC2 + blk, hb + p * BS)
        return f's_add_u32 s{sW1E}, s{base}, {off}\nbuffer_load_dwordx4 {vr(G2_H + 4 * (n % NH), 4)}, v{vL16}, {srd(S_WS)}, s{sW1E} offen sc1'
    return f'buffer_load_dwordx4 {vr(G2_H + 4 * (n % NH), 4)}, v{[vLW, vH4, vH4 + 1][kl // 4]}, {srd(S_WS)}, s{sHB + blk} offen offset:{1024 * (kl % 4)} sc1'


def g2_main(nxt, bg):
    LA = OPT['la2']

    def rdp(dst, slot):
        out = [f'ds_read_b128 {vr(dst + 4 * k, 4)}, v{aPR} offset:{slot * PS + 128 * (k >> 1) + 16 * (k & 1)}' for k in range(4)]
        out.append(f'ds_read_b128 {vr(dst + 16, 4)}, v{aPR + 1} offset:{slot * PS + 256}')
        return out
    side = {}

    def put(pos, x):
        side.setdefault(pos, []).append(x)
    place(side, bg, 2, 5 * (NGA - 8))
    f0 = 30 if OPT['xq'] else 6
    if OPT['xl'] or OPT['sn'] == 1:
        place(side, A.groups(fin_issue), 7, 37)
        f0 = 66
    for k, x in enumerate(A.capture(fin_finish) if not OPT['cutx'] & 128 else []):
        put(f0 + k + k // 4, [x])
    if OPT['bb'] & 2:
        put(OPT['cb'] + 4, lambda: A('s_barrier'))
    put(OPT['pb'], lambda: flag_publish(2))
    put(OPT['qb'], lambda: A(flag_ld(2)))
    put(OPT['cb'], lambda: (flag_check(2), stamp('hb')))
    m0 = 5 * NGA
    sp = OPT['wsp']
    for b in range(3):
        for nt in range(5):
            put(m0 + 20 * (b + 1) + 3 + sp * nt, lambda b=b, nt=nt: A(f'ds_write_b128 v{aPW + b}, {vr(G2_ACC + 20 * b + 4 * nt, 4)} offset:{64 * nt}'))
    if OPT['rb']:
        bars = {1: [(1, (0, 1)), (2, (2,))], 2: [(0, (0,)), (1, (1,)), (2, (2,))]}[OPT['rb']]
        free = 0
        ops = []
        for blk_, slots in bars:
            mb = m0 + 20 * (blk_ + 1) + 4 * sp + 7
            put(mb, lambda: A('s_waitcnt lgkmcnt(0)\ns_barrier'))
            pos = mb
            for sl in slots:
                for x in rdp(G2_ACC + 20 * sl, sl):
                    put(pos, lambda x=x: A(x))
                    pos += 1
            free = max(free, mb + 7)
            for sl in slots:
                for k in range(20):
                    x = f'v_fmac_f32 v{G2_BASE + k}, v{G2_GB + k}, v{G2_ACC + 20 * sl + k}'
                    if free < 240:
                        put(int(free), lambda x=x: A(x))
                    else:
                        ops.append(x)
                    free += OPT['rd'] / 10
    else:
        m1 = m0 + 60 + 4 * sp + 7
        put(m1, lambda: A('s_waitcnt lgkmcnt(0)\ns_barrier'))
        pos = m1
        for sl in range(3):
            for x in rdp(G2_ACC + 20 * sl, sl):
                put(min(pos, 239), lambda x=x: A(x))
                pos += 1 if sl else 0
            pos += 0 if sl else 1
        ops = [f'v_fmac_f32 v{G2_BASE + k}, v{G2_GB + k}, v{G2_ACC + 20 * sl + k}' for sl in range(3) for k in range(20)]
        for p_ in range(m1 + 6, 240):
            n_ = 1 if p_ < m1 + 11 else 2
            for x in ops[:n_]:
                put(p_, lambda x=x: A(x))
            ops = ops[n_:]
    if OPT['cutx'] & 64:
        ops = []
        for k in range(m0, 240):
            side.pop(k, None)
    pa = G2_ACC + 60
    own = [f'ds_write_b128 v{aPW + 3}, {vr(pa + 4 * nt, 4)} offset:{64 * nt}' for nt in range(5)]
    order = [(n, nt) for n in range(48) for nt in range(5)]
    if OPT['pt']:
        order = order[:220] + [(n, nt) for nt in range(5) for n in range(44, 48)]
        for nt in range(3):
            put(227 + 4 * nt + 3, lambda x=own[nt]: A(x))
        own = own[3:]
    seen = set()
    for m, (n, nt) in enumerate(order):
        blk, kl = G2SEQ[n]
        acc = G2_ACC + 20 * blk
        assert nxt > n
        A(f'v_mfma_f32_16x16x32_bf16 {vr(acc + 4 * nt, 4)}, {ar((kl * 5 + nt) * 4, 4)}, {vr(G2_H + 4 * (n % NH), 4)}, {vr(acc + 4 * nt, 4) if (blk, nt) in seen else 0}')
        seen.add((blk, nt))
        for x in side.get(m, []):
            if callable(x):
                x()
            else:
                A.items.extend(x)
        if nt in (0, 3) and nxt < 48 and nxt <= n + LA and nxt - NH < n and (nxt < NGA or m >= OPT['cb']):
            if not (OPT['cutx'] & 256 and nxt >= NH):
                A(g2_load(nxt))
            nxt += 1
    stamp('g2')
    A(own.pop(0))
    for x in ops:
        A(x)
    for x in own:
        A(x)
    R = G2_ACC
    for x in rdp(R, 3):
        A(x)
    for k in range(10):
        pk('fma', R + 2 * k, R + 2 * k, G2_GB + 2 * k, G2_BASE + 2 * k)
        A(f'v_cvt_pk_bf16_f32 v{R + 20 + k}, v{R + 2 * k}, v{R + 2 * k + 1}')
        if k == 3:
            A(f'buffer_store_dwordx4 {vr(R + 20, 4)}, v{vOA}, {srd(S_OUT)}, 0 offen{OSC}')
        if k == 7:
            A(f'buffer_store_dwordx4 {vr(R + 24, 4)}, v{vOA}, {srd(S_OUT)}, 0 offen offset:64{OSC}')
    A(f'buffer_store_dwordx2 {vr(R + 28, 2)}, v{vOC}, {srd(S_OUT)}, 0 offen offset:128{OSC}')


def y2_check(g, issued):
    r = G1_A + 16 * g + 3
    k = (issued - 1) // 4
    ld = ''
    for i in range(4 * g, issued):
        ks, rr = divmod(i, 2)
        if i % 4 == 0:
            ld += f's_sub_u32 s{sLD + 1}, s{sLD}, {(k - i // 4) * BS}\n'
        ld += f'buffer_load_dwordx4 {vr(G1_A + 4 * i, 4)}, v{vG1A + rr}, {srd(S_WS)}, s{sLD + 1} offen offset:{512 * (ks & 1)} sc1\n'
    nlab[0] += 1
    inv = f"""s_cmp_eq_u32 s{sFAST}, 0
    s_cbranch_scc0 L_m{nlab[0]}
    buffer_inv sc1
    L_m{nlab[0]}:
    s_waitcnt vmcnt(0)
    """
    poll_check(f'y{g}', inv + ld, f"""v_max3_u32 v{vT16}, v{r}, v{r + 4}, v{r + 8}
    v_max_u32 v{vT16}, v{vT16}, v{r + 12}
    v_cmp_le_u32 vcc, 0xffc00000, v{vT16}""")


def mlp(slot):
    bg9 = slot(9)
    n9 = len(bg9) - min(OPT['s9'], SW2[9])
    A.spread(A.capture(seq(g1_bias, g1_pre)), bg9[:n9], 0, 0.9)
    if OPT['sn']:
        assert SW1[9] + SWB[9] == 0 and not OPT['ysc'] & 2
        A(f"""s_cmp_eq_u32 s{sFAST}, 0
        s_cbranch_scc1 L_slow_y
        L_join_y:""")
        RETRY('.segment')
        RETRY('L_slow_y:\ns_waitcnt vmcnt(0)\nbuffer_wbl2 sc1\ns_waitcnt vmcnt(0)\ns_branch L_join_y')
        if OPT['sd']:
            A(f"s_waitcnt vmcnt({after_last(lambda x: 'store' in x.op)})")
    else:
        flag_publish(0)
        stamp('pub0')
        A(flag_ld(0))
        code_refresh(4, 12, vT16)
        A.emit(bg9[n9:])
        if OPT['xl']:
            x1_store()
        if not OPT['wb'] or SW1[9] + SWB[9]:
            A('s_barrier')
    for n in range(PRE):
        A('\n'.join(g1_rd(0, n)))
    if not OPT['sn']:
        flag_check(0)
        stamp('y2')
    LA = OPT['la1']
    cnt = [0]

    def ld(i):
        if OPT['cutx'] & 512 and i & 2:
            return
        A(g1_load(i))
        cnt[0] = i + 1
    for i in range(LA):
        ld(i)
    side = {}
    n0, n1 = len(PARTS[0]), len(PARTS[1])
    for i in range(LA, 40):
        side.setdefault((i - LA) * OPT['r1'] * n0 // 800, []).append(lambda i=i: ld(i))
    if OPT['sn']:
        y2_check(0, LA)
        stamp('y2')
        for g in range(1, 10):
            first = min(k for k, x in enumerate(PARTS[0]) if x[0] == 2 * g)
            side.setdefault(first - 1, []).append(lambda g=g: y2_check(g, cnt[0]))
    if OPT['sn'] == 2:
        side.setdefault(2, []).append(lambda: flag_publish(0))
        side.setdefault(40, []).append(lambda: A(flag_ld(0)))
        side.setdefault(70, []).append(lambda: (flag_check(0), flag_prep(1)))
    place(side, [[x] for x in A.capture(late_addr)], 0, n0 - 2)
    place(side, slot(10), OPT['g1s'] * n0 // 80, n0)
    g1_part(0, side)
    if not (OPT['bb'] & 1 and SWB[10] + SWB[11]) or OPT['h2']:
        A('s_barrier')
    stamp('g1a')
    A.spread(A.capture(lambda: [gelu_unit(u, r) for u in range(2) for r in range(2)]), slot(11), 0, OPT['gae'] / 100)
    held = []
    if OPT['gpre']:
        cutg = len(A.items) - 22
        assert not any(x.kind == 'vmem' and x.lds for x in A.items[cutg:])
        held = A.items[cutg:]
        del A.items[cutg:]
    if SWB[10] + SWB[11]:
        A(f"s_waitcnt vmcnt({after_last(lambda x: ' lds' in x.text)})\ns_barrier")
    for n in range(PRE):
        A(g1_rd(1, n)[0])
    A.items.extend(held)
    stamp('gelua')
    side = {}
    LA = OPT['la2']
    hl = [A.capture(lambda n=n: A(g2_load(n))) for n in range(max(LA, OPT['n3'] if OPT['t3'] else 0))]
    nh = len(hl)
    if OPT['t3']:
        assert OPT['p3'] < OPT['q3'] < OPT['c3'] < OPT['qa'] and OPT['n3'] <= 12 + OA
        side.setdefault(OPT['p3'], []).append(lambda: flag_publish(3))
        side.setdefault(OPT['q3'], []).append(lambda: A(flag_ld(3)))
        side.setdefault(OPT['c3'], []).append(lambda: flag_check(3))
        place(side, hl[:OPT['n3']], OPT['c3'] + 1, n1)
        hl = hl[OPT['n3']:]
    place(side, slot(12), 0, (OPT['q3'] if OPT['t3'] else OPT['qa']) - 4)
    if not OPT['xl'] and not OPT['xq'] and OPT['sn'] != 1:
        place(side, A.groups(fin_issue), max(OPT['fq'] * n1 // 40, max(k for k, x in enumerate(PARTS[1]) if x[0] <= 11) + 1), n1 - 2)
    side.setdefault(OPT['pa'], []).append(lambda: flag_publish(1))
    side.setdefault(OPT['qa'], []).append(lambda: A(flag_ld(1)))
    g1_part(1, side)
    if not OPT['bb'] & 2:
        A('s_barrier')
    stamp('g1b')
    bg = slot(13) + (A.groups(fin_issue) if OPT['xq'] else [])
    if OPT['cf']:
        gb = A.capture(lambda: [gelu_unit(2, r) for r in range(2)])
        c = len(gb) * OPT['cf'] // 100
        A.spread(gb[:c], bg, 0, 0.9)
        flag_check(1)
        stamp('ha')
        A.spread(gb[c:], hl, 0, OPT['ce'] / 100)
    for r in range(0 if OPT['cf'] else 2):
        if OPT['ca'] == r:
            flag_check(1)
            stamp('ha')
        k = 0 if r < OPT['ca'] else (len(hl) if r else len(hl) // 2)
        A.spread(A.capture(lambda: gelu_unit(2, r)), (bg if r == 0 else []) + hl[:k], 0, 0.9)
        hl = hl[k:]
    if OPT['ca'] == 2:
        flag_check(1)
        stamp('ha')
        A.emit(hl)
    stamp('gelub')
    g2_main(nh, slot(14))


def seq(*fns):
    def f():
        for x in fns:
            x()
    return f


def weave(bit, fg, bg, lo, hi):
    if OPT['gp'] & bit:
        A.gaps(fg, bg, lo, hi, OPT['gs'])
    else:
        A.spread(fg, bg, lo, hi)


def program():
    if OPT['fixed']:
        A('s_memrealtime s[98:99]')
    if OPT['stamps'] == 3:
        A('s_memrealtime s[100:101]')
        nstamp[0] = 1
    else:
        if OPT['stamps']:
            A('v_mov_b32 v255, 0')
        stamp('start')
    if OPT['lean'] == 5:
        setup_tight()
    elif OPT['lean']:
        setup_lean()
    else:
        setup()
    gemv_store_addr()
    if not OPT['cpf'] and not OPT['lean']:
        code_prefetch(30 * 1024)
    Q = {}

    def slot(k):
        out = []
        for name, cnt in (('F', SF), ('W1', SW1), ('WB', SWB), ('W2', SW2)):
            if cnt[k]:
                if not (OPT['nobg'] >> ['F', 'W1', 'W2', 'WB'].index(name)) & 1:
                    out += Q[name][:cnt[k]]
                Q[name] = Q[name][cnt[k]:]
        if OPT['xt'] and k == OPT['xt'] % 10:
            out = A.groups(touch_out) + out if OPT['xt'] < 10 else out + A.groups(touch_out)
        if k == OPT['dslot']:
            out = [g if n < len(out) - OPT['dn'] else [x for x in g if x.kind != 'vmem'] for n, g in enumerate(out)]
            out = out[:len(out) - OPT['dn']] + [sum(out[len(out) - OPT['dn']:], [])]
        return out
    FS = []

    def fmt_split():
        fmt_finish()
        if OPT['fs'] and OPT['p0'].index('F') < OPT['p0'].index('L'):
            FS.extend([x] for x in A.items[-4:])
            del A.items[-4:]
    Q['F'] = A.groups(filt_dma)
    Q['W1'] = A.groups(w1_dma)
    Q['WB'] = A.groups(wb_dma)
    Q['W2'] = A.groups(w2_load)
    steps = dict(X=seq(x1_issue, lambda: code_prefetch(0)) if OPT['lean'] == 4 else x1_issue, R=roles if OPT['late'] in (3, 4) else seq(roles, fmt_prep, fmt_addr), U=fmt_issue, T=touch, A=(lambda: None) if OPT['cutx'] & 16 else k1_const_a, B=k1_const_b, S=seq(silu, lambda: stamp('silu')),
                 G=seq(lambda: gemv_compute(G_W, sMODST), lambda: stamp('gemv')), I=seq(xid_store, hint_prep) if OPT['ht'] else xid_store, f=seq(filt_prep, w1_prep), K=seq(k1_addr, side_prep, lambda: srd_tail(S_B1, S_B2, S_OUT) if OPT['lean'] else None), F=fmt_split,
                 L=lambda: A.spread(A.capture(ln1), FS + slot(0), 0.05 if FS else 0, OPT['fs'] / 100 if FS else 0.6), Y=x_keep)
    p0a, p0b = OPT['p0'].split('M')
    assert SF[0] + SW1[0] == 0 or p0a.index('f') < p0a.index('L')
    assert sorted(OPT['p0']) == sorted('XRUASGTIfKFLM') and all(c in p0a for c in 'RUSGIK')
    for nc, c in enumerate(p0a):
        fine(6, 'pre' + c)
        if OPT['pw'] and nc == OPT['pp']:
            prewarm()
        if not (c == 'X' and (OPT['xfirst'] or OPT['lean'] in (1, 2, 5))) and not (c == 'F' and OPT['late']) and not (c == 'U' and 0 < OPT['late'] < 9):
            steps[c]()
    LU = [A.groups(fmt_issue) if OPT['late'] == k else [] for k in range(4)]
    TW = [A.groups(touch_w) if OPT['tw'] == k else [] for k in range(4)]
    stamp('Miss')
    A(mod1_loads())
    m2 = A.groups(seq(b2_issue, lambda: A(side_loads())))
    M2 = [m2 if OPT['m2'] == k else [] for k in range(7)]
    fq = A.capture(seq(x_keep, k1_const_b, k1_addr2))
    nf = len(fq) * OPT['fk'] // 100
    FL = []
    if 'F' in p0b:
        fmt_finish()
        FL = [[x] for x in A.items[-4:]]
        del A.items[-4:]
        p0b = p0b.replace('F', '')
    fl1 = FL[:OPT['fn']]
    FL = FL[OPT['fn']:]
    A.spread(A.capture(seq(*[steps[c] for c in p0b])) + fq[:nf], (fl1 + LU[1] + slot(1) if OPT['uf'] else slot(1) + LU[1] + fl1) + TW[1] + M2[1], 0.1, 0.9)
    k1_poll()
    k1 = A.merge(A.capture(seq(k1_head, k1_main)), fq[nf:])
    cut0 = min(i for i, x in enumerate(k1) if x.op == 's_barrier') + 1
    A.items.extend(k1[:cut0])
    k0 = len(A.items)
    weave(1, k1[cut0:], FL + slot(2) + TW[2] + LU[2] + M2[2], OPT['k1s'] / 100, OPT['k1e'] / 100)
    if 'F' not in p0a:
        ib = max(k for k, x in enumerate(A.items) if x.op == 's_barrier')
        i0 = max(k for k, x in enumerate(A.items[:ib]) if x.kind == 'vmem' and x.store)
        A.items[ib:ib] = A.capture(lambda n=nvm(A.items[i0 + 1:ib]): A(f's_waitcnt vmcnt({n})'))
    if OPT['lf'] == 2:
        tail = A.items[k0:]
        mf = [k for k, x in enumerate(tail) if x.kind == 'mfma']
        body = A.capture(fmt_body)
        p1 = OPT['fp'] // 10
        A.items = A.items[:k0] + tail[:mf[p1] + 1]
        A(f's_waitcnt vmcnt({after_last(lambda x: srd(S_W2) in x.text and x.lds)})')
        parts = [body[0:4], body[4:8], [], body[8:9], body[9:10], body[10:11], body[11:12]]
        for n, part in enumerate(parts):
            A.items.extend(part)
            A.items.extend(tail[mf[p1 + n] + 1:mf[p1 + n + 1] + 1])
        A.items.extend(tail[mf[p1 + len(parts)] + 1:])
    stamp('k1')
    if OPT['late'] in (3, 4):
        fmt_prep()
        fmt_addr()
    code_refresh(1, TMP, 248)
    w0 = len(A.items)
    A.spread(A.capture(seq(k2_const, k2_addr)), LU[3] + slot(3) + TW[3] + M2[3], 0, OPT['s3e'] / 100)
    if OPT['ht'] & 1:
        if OPT['hl'] <= 100:
            insert_at(w0, OPT['hl'], lambda: hint_issue(0))
        insert_at(w0, OPT['hs'], lambda: hint_set(0))
    if OPT['late'] and not OPT['lf']:
        fmt_finish()
    A(f's_waitcnt vmcnt({after_last(lambda x: srd(S_WI) in x.text and x.lds)})\ns_barrier')

    def cut_at(rest, pct):
        c = len(rest) * pct // 100
        lab = [k for k, x in enumerate(rest) if x.kind == 'label']
        if lab and lab[0] < c <= lab[-1]:
            c = lab[-1] + 1
        return c
    early = OPT['m2'] < 5
    rest = A.capture(seq(filt_finish, *([side_finish] if early else [])))
    cutd = cut_at(rest, OPT['td'])
    if OPT['ht'] & 1 and OPT['hl'] > 100:
        hint_issue(0)
    A.items.extend(rest[:cutd])
    if OPT['ht'] & 1:
        hint_check(0)
    stamp('Tiss')
    A(k2_loads())
    if OPT['late'] == 4:
        fmt_issue()
    A.items.extend(rest[cutd:])
    if OPT['lf'] == 1:
        fmt_finish()
    mark = len(A.items)
    if OPT['lf'] != 3:
        w_prep()
    A.emit(slot(4))
    k2_head()
    k2 = A.capture(k2_main)
    if OPT['lf'] == 3:
        mf = [k for k, x in enumerate(k2) if x.kind == 'mfma']
        body = A.capture(fmt_body)
        A.items.extend(k2[:mf[0] + 1])
        A(f's_waitcnt vmcnt({after_last(lambda x: srd(S_W2) in x.text and x.lds)})')
        for n in range(4):
            A.items.extend(body[2 * n:2 * n + 2] + k2[mf[n] + 1:mf[n + 1] + 1])
        A.spread(k2[mf[4] + 1:mf[7]], [[x] for x in body[8:]], 0.2, 1.0)
        mark = len(A.items)
        w_prep()
        k2 = k2[mf[7]:]
    weave(2, k2, slot(5) + A.groups(seq(xid_load, epoch_store)) + M2[5], 0, OPT['k2e'] / 100)
    if OPT['lf'] in (1, 3):
        ib = max(k for k, x in enumerate(A.items) if x.op == 's_barrier')
        A.items[ib:ib] = A.capture(lambda n=nvm(A.items[mark:ib]): A(f's_waitcnt vmcnt({n})'))
    stamp('k2')
    code_refresh(2, TMP, 249)
    w0 = len(A.items)
    kc = A.capture(seq(k3_ldaddr, k3_const))
    nk = len(kc) * OPT['kc'] // 100
    A.spread(kc[:nk], slot(6) + M2[6], 0, OPT['s6e'] / 100)
    if OPT['ht'] & 2:
        insert_at(w0, OPT['hl2'], lambda: hint_issue(1))
        insert_at(w0, OPT['hs2'], lambda: hint_set(1))
    rest = kc[nk:] + A.capture(seq(*([] if early else [side_finish]), k3_addr, xid_check, lambda: flag_prep(0), lambda: A('\n'.join(mo_reads()) if MOE else ''), ga_shift))
    cutd = cut_at(rest, OPT['tpd'])
    A.items.extend(rest[:cutd])
    if OPT['ht'] & 2:
        assert not any(('s', sHT) in x.defs or ('v', vHT) in x.defs or ('v', vHT - 2) in x.defs for x in rest[:cutd])
        hint_check(1)
    stamp('Tpiss')
    A(k3_loads())
    A.spread(rest[cutd:], slot(7), 0.3, 1.0)
    k3_poll()
    k3 = A.capture(k3_main)
    bg = slot(8)
    if OPT['late']:
        cut0 = min(i for i, x in enumerate(k3) if x.op == 's_barrier') + 1
        n0 = min(SW1[8], len(bg) // 4)
        A.spread(k3[:cut0], bg[:n0])
        A.spread(k3[cut0:], bg[n0:], 0, OPT['k3e'] / 100)
    else:
        weave(4, k3, bg, 0, OPT['k3e'] / 100)
    k3_tail()
    stamp('k3')
    mlp(slot)
    if OPT['stamps'] == 3:
        A('v_writelane_b32 v255, s100, 0')
    stamp('end')
    if OPT['stamps']:
        A(f'''s_lshl_b32 s{sT0}, s{sME}, 10
        s_lshl_b32 s{sT1}, s{sW}, 8
        s_add_u32 s{sT0}, s{sT0}, s{sT1}
        s_add_u32 s{sT0}, s{sT0}, {WS_STAMP}
        v_writelane_b32 v255, s{sCNT}, 63
        v_writelane_b32 v255, s{sFAST}, 31
        v_lshlrev_b32 v{TMP}, 2, v{vL}
        buffer_store_dword v255, v{TMP}, {srd(S_WS)}, s{sT0} offen
        ''')
    if OPT['fixed']:
        if OPT['clean']:
            A('s_waitcnt vmcnt(0)\ns_barrier\nbuffer_wbl2 sc1\ns_waitcnt vmcnt(0)')
        if OPT['probe'] >= 0:
            A(f's_mul_i32 s97, s97, {OPT["mul"]}\ns_add_u32 s97, s97, {OPT["fixed"]}')
        else:
            A(f's_mov_b32 s97, {OPT["fixed"]}')
        A('''L_fix:
        s_memrealtime s[100:101]
        s_waitcnt lgkmcnt(0)
        s_sub_u32 s100, s100, s98
        s_cmp_lt_u32 s100, s97
        s_cbranch_scc1 L_fix''')
    A('L_end:')
    A('s_endpgm')


program()
hdr = open('cdna_kernels/%s.s.ref' % NAME).read().split('; Override launch')[0]
out = hdr
out += f'; @launch grid=(256,1,1) block=(256,1,1) lds={LDS_SIZE}\n'
out += '''; One persistent launch, one workgroup per CU.  Workgroups hand data over through d_ws:
;   tag  = hash of the word the previous launch left at d_ws[0]; every all-to-all granule (16 B) carries it, flags hold it
;   T/T2 = [source][destination] 64-byte chunks of the half-transformed signal (write-through stores, L1-bypassing loads)
;   y2/h = MFMA fragments exchanged inside clusters; flags stay in L2 only when the whole cluster reports the same die
; All waits on other workgroups are bounded.  Generated by a script; registers are allocated per phase.
'''
out += f'''.amdgcn_target "amdgcn-amd-amdhsa--gfx950"
.text
.globl {NAME}_kernel
.p2align 8
.type {NAME}_kernel,@function
{NAME}_kernel:
'''
out += A.text(OPT['al'])
out += RETRY.text()
out += f'''L_last:
    s_endpgm
.section .rodata,"a"
.p2align 6
.amdhsa_kernel {NAME}_kernel
  .amdhsa_next_free_vgpr 512
  .amdhsa_next_free_sgpr 102
  .amdhsa_accum_offset 256
  .amdhsa_group_segment_fixed_size 0
  .amdhsa_kernarg_size 104
  .amdhsa_user_sgpr_count 2
  .amdhsa_user_sgpr_kernarg_segment_ptr 1
  .amdhsa_system_sgpr_workgroup_id_x 1
.end_amdhsa_kernel
'''
open(sys.argv[1], 'w').write(out)
if OPT['stamps']:
    open(sys.argv[1] + '.stamps', 'w').write('\n'.join(STAMPS))
```
